```python
import torch

def _softmax(x, axis=-1):
    return torch.softmax(x, dim=axis)
def _gelu(x):
    return torch.nn.functional.gelu(x, approximate="tanh")
def _silu(x):
    return torch.nn.functional.silu(x)
def _sigmoid(x):
    return torch.sigmoid(x)
def _layernorm(x, axis=-1, eps=1e-5):
    m = x.mean(dim=axis, keepdim=True)
    v = x.var(dim=axis, keepdim=True, unbiased=False)
    return (x - m) / torch.sqrt(v + eps)
def _scatter_add(tgt, idx, src, axis=0):
    return tgt.clone().index_add_(axis, idx, src)
def _segment_sum(src, seg, n):
    out = torch.zeros((n,) + src.shape[1:], dtype=src.dtype)
    return out.index_add_(0, seg, src)
def _pad(x, pw):
    flat = tuple(v for pair in reversed(pw) for v in pair)
    return torch.nn.functional.pad(x, flat)

kernel_name = 'parallel_sum__ssm_conv_h3__dense_activation_gelu__prompt'

def setup_inputs():

    _w = (lambda a: (lambda t: t.to(torch.bfloat16) if t.is_floating_point() else t)(torch.as_tensor(a)))
    def _A_setup():
        B, S, D = 1, 2048, 576
        ks = 4
        return {
            "q": _w((lambda *s: torch.randn(*s, dtype=torch.bfloat16) * 0.05)(B, S, D)),
            "k": _w((lambda *s: torch.randn(*s, dtype=torch.bfloat16) * 0.2)(B, S, D)),
            "v": _w((lambda *s: torch.randn(*s, dtype=torch.bfloat16) * 0.2)(B, S, D)),
            "shift_k": _w((lambda *s: torch.randn(*s, dtype=torch.bfloat16) * 0.2)(D, ks) * 0.5),
            "ssm_k": _w((lambda *s: torch.randn(*s, dtype=torch.bfloat16) * 0.8)(D, S) * (1.0 / S ** 0.5)),
            "ssm_D": _w((lambda *s: torch.randn(*s, dtype=torch.bfloat16) * 0.2)(D)),
        }
    _A_in = _A_setup()

    def _B_setup():
        B, S, D, F = 1, 2048, 576, 4608
        return {
            "x": _w((lambda *s: torch.randn(*s, dtype=torch.bfloat16) * 0.05)(B, S, D)),
            "w1": _w((lambda *s: torch.randn(*s, dtype=torch.bfloat16) * 0.4)(D, F) * (D ** -0.5)),
            "b1": _w((lambda *s: torch.randn(*s, dtype=torch.bfloat16) * 12.8)(F) * 0.01),
            "w2": _w((lambda *s: torch.randn(*s, dtype=torch.bfloat16) * 0.2)(F, D) * (F ** -0.5)),
            "b2": _w((lambda *s: torch.randn(*s, dtype=torch.bfloat16) * 1.6)(D) * 0.01),
        }
    _B_in = _B_setup()

    return {
        "A_q": _A_in["q"],
        "A_k": _A_in["k"],
        "A_v": _A_in["v"],
        "A_shift_k": _A_in["shift_k"],
        "A_ssm_k": _A_in["ssm_k"],
        "A_ssm_D": _A_in["ssm_D"],
        "B_x": _B_in["x"],
        "B_w1": _B_in["w1"],
        "B_b1": _B_in["b1"],
        "B_w2": _B_in["w2"],
        "B_b2": _B_in["b2"],
    }

def reference(A_q, A_k, A_v, A_shift_k, A_ssm_k, A_ssm_D, B_x, B_w1, B_b1, B_w2, B_b2):
    def _A_ref(q, k, v, shift_k, ssm_k, ssm_D):
        B, S, D = q.shape
        ks = shift_k.shape[-1]
        k_pad = _pad(k, ((0, 0), (ks - 1, 0), (0, 0)))
        k_shift = torch.zeros_like(k)
        for t in range(ks):
            k_shift = k_shift + k_pad[:, t:t + S, :] * shift_k[:, ks - 1 - t][None, None, :]
        kv = k_shift * v
        L = 2 * S
        kv_pad = _pad(kv, ((0, 0), (0, S), (0, 0)))
        kf_pad = _pad(ssm_k, ((0, 0), (0, S)))
        kv_f = (lambda x, axes=(-2,-1): torch.fft.rfft2(x.float(), dim=axes))(kv_pad[:, None, :, :], axes=(1, 2))
        kf_f = (lambda x, axes=(-2,-1): torch.fft.rfft2(x.float(), dim=axes))(kf_pad[:, None, :], axes=(1, 2))
        kf_f = (lambda x, *d: x.permute(*d))(kf_f, 1, 2, 0)
        y_f = kv_f * kf_f[None, :, :, :]
        y = (lambda x, s, axes=(-2,-1): torch.fft.irfft2(x, s=s, dim=axes).to(torch.bfloat16))(y_f, (1, L), axes=(1, 2))[:, 0, :S, :]
        y = y + kv * ssm_D[None, None, :]
        return q * y

    def _B_ref(x, w1, b1, w2, b2):
        h = torch.einsum("bsd,df->bsf", x, w1) + b1
        h = _gelu(h)
        return torch.einsum("bsf,fd->bsd", h, w2) + b2

    x = A_q
    xn = _layernorm(x, axis=-1)
    return x + _A_ref(xn, A_k, A_v, A_shift_k, A_ssm_k, A_ssm_D) + _B_ref(xn, B_w1, B_b1, B_w2, B_b2)
```

```python
import struct, math
def f32bits(x): return struct.unpack("<I", struct.pack("<f", x))[0]

RING = 0
ACT = 73728
ASTR = 1184
M16 = True
TBL1 = ACT + 64 * ASTR
TBL2 = TBL1 + 4096
LDS_K1 = TBL2 + 4096
PART_OFF = 0
STAMP_OFF = 32 << 20
KVT_OFF = 20 << 20
STAT_OFF = 24 << 20

V_TID = 0; V_LANE = 1; V_TR2 = 80; V_TR3 = 81
V_TR0 = 2; V_TR1 = 3; V_HW = 4; V_FR = 5; V_BI = 6
V_O1A = 7; V_O1B = 8; V_O2A = 9; V_O2B = 10; V_ST = 11; V_C1 = 12; V_STAMP = 13; V_T = 14; V_T2 = 15
ACC = 16
WB = 32
GT = 64
PK = 72
XR = 32
LT = 68
NVGPR = 112

S_Q = 4; S_W1 = 8; S_W2 = 12; S_B1 = 16; S_B2 = 20; S_WS = 24
S_J = 28; S_RB = 29; S_ROT = 30; S_W = 31; S_QW = 32; S_M0B = 33
S_C0 = 34; S_C1 = 35; S_C2 = 36; S_W1B = 37; S_N = 38; S_T = 39; S_T2 = 40; S_GC2 = 41
S_ROW = 44
S_PB = 53; S_SI = 54; S_GRP = 55
S_PC = 56
S_TM = 58
S_K = 64; S_V = 68; S_SH = 72; S_KVO = 76
KR = 82
VR = [104, 106, 108, 110, 64, 66, 68, 70]

class G:
    def __init__(self, opt):
        self.L = []; self.o = opt
    def e(self, s): self.L.append("  " + s)
    def lab(self, s): self.L.append(s + ":")
    def stamp(self):
        if not self.o.get("stamps"): return
        self.e(f"s_memtime s[{S_TM}:{S_TM+1}]")
        self.e(f"s_memrealtime s[{S_TM+2}:{S_TM+3}]")
        self.e("s_waitcnt lgkmcnt(0)")
        self.e(f"s_mov_b32 m0, s{S_SI}")
        self.e(f"s_add_u32 s{S_SI}, s{S_SI}, 1")
        self.e(f"v_writelane_b32 v{V_STAMP}, s{S_TM}, m0")
        self.e(f"s_add_u32 m0, m0, 30")
        self.e(f"s_nop 0")
        self.e(f"v_writelane_b32 v{V_STAMP}, s{S_TM+2}, m0")
    def rstamp(self, lane):
        if not self.o.get("stamps"): return
        self.e(f"s_memrealtime s[{S_TM}:{S_TM+1}]")
        self.e("s_waitcnt lgkmcnt(0)")
        self.e(f"v_writelane_b32 v{V_STAMP}, s{S_TM}, {lane}")
    def barrier(self):
        self.e("s_barrier")

def srd(g, s, nrec):
    g.e(f"s_mov_b32 s{s+2}, {nrec}")
    g.e(f"s_mov_b32 s{s+3}, 0x00020000")

def nextcol(g, dst, src):
    g.e(f"s_add_u32 s{dst}, s{src}, 128")
    g.e(f"s_cmp_eq_u32 s{dst}, 1152")
    g.e(f"s_cselect_b32 s{dst}, 0, s{dst}")

def dma_unit(g, u, w2, scol):
    o = g.o
    L = []
    L.append(f"s_add_u32 m0, s{S_M0B}, {u*8192}")
    if w2:
        L.append(f"s_add_u32 s{S_T}, s{S_ROW+u}, s{scol}")
        a, b, s = V_O2A, V_O2B, S_W2
    else:
        L.append(f"s_add_u32 s{S_T}, s{scol}, {u*64*9216}")
        a, b, s = V_O1A, V_O1B, S_W1
    d1 = f"buffer_load_dwordx4 v{a}, s[{s}:{s+3}], s{S_T} offen lds"
    d2 = f"buffer_load_dwordx4 v{b}, s[{s}:{s+3}], s{S_T} offen offset:1024 lds"
    if o.get("nodma"):
        return [L, []]
    return [L + [d1], [d2]]

def dma_stage(g, st, w2, scol):
    R = []
    for u in range(3*st, 3*st+3):
        R += dma_unit(g, u, w2, scol)
    return R

def mfma(k):
    b = WB + 4*(k % 8)
    if M16:
        ks, a = k // 2, k % 2
        L = []
        for t in ((0, 1) if a == 0 else (1, 0)):
            c = ACC + 8*t + 4*a
            f = 8*ks + 4*t
            L.append(f"v_mfma_f32_16x16x32_bf16 v[{c}:{c+3}], v[{b}:{b+3}], a[{f}:{f+3}], v[{c}:{c+3}]")
        return "\n  ".join(L)
    return f"v_mfma_f32_32x32x16_bf16 v[{ACC}:{ACC+15}], v[{b}:{b+3}], a[{4*k}:{4*k+3}], v[{ACC}:{ACC+15}]"

def trread(k):
    b = WB + 4*(k % 8)
    if M16:
        ks, a = k // 2, k % 2
        if ks < 12: v, off = (V_TR0, V_TR2)[a], ks*4096
        else: v, off = (V_TR1, V_TR3)[a], (ks-12)*4096
        return [f"ds_read_b64_tr_b16 v[{b}:{b+1}], v{v} offset:{off}",
                f"ds_read_b64_tr_b16 v[{b+2}:{b+3}], v{v} offset:{off+2048}"]
    if k < 24: v, off = V_TR0, k*2048
    else: v, off = V_TR1, (k-24)*2048
    return [f"ds_read_b64_tr_b16 v[{b}:{b+1}], v{v} offset:{off}",
            f"ds_read_b64_tr_b16 v[{b+2}:{b+3}], v{v} offset:{off+1024}"]

def fragread(k):
    if M16:
        return f"ds_read_b128 a[{4*k}:{4*k+3}], v{V_FR} offset:{(k//2)*64 + (k%2)*16*ASTR}"
    return f"ds_read_b128 a[{4*k}:{4*k+3}], v{V_FR} offset:{k*32}"

def kv_addr(g):
    e = g.e
    e(f"v_mul_u32_u24 v{V_T}, 57, v{V_LANE}")
    e(f"v_lshrrev_b32 v{V_T}, 10, v{V_T}")
    e(f"v_mul_u32_u24 v{V_C1}, 18, v{V_T}")
    e(f"v_sub_u32 v{V_C1}, v{V_LANE}, v{V_C1}")
    e(f"s_lshl_b32 s{S_T}, s{S_RB}, 2")
    e(f"s_add_u32 s{S_T}, s{S_T}, s{S_QW}")
    e(f"s_lshl_b32 s{S_KVO}, s{S_T}, 5")
    e(f"s_mul_i32 s{S_T}, s{S_T}, {16*1152}")
    e(f"s_mul_i32 s{S_T2}, s{S_J}, 144")
    e(f"s_add_u32 s{S_T}, s{S_T}, s{S_T2}")
    e(f"v_mul_u32_u24 v{V_O1A}, {8*1152}, v{V_T}")
    e(f"v_lshl_add_u32 v{V_O1A}, v{V_C1}, 3, v{V_O1A}")
    e(f"v_add_u32 v{V_O1A}, s{S_T}, v{V_O1A}")
    e(f"v_lshlrev_b32 v{V_HW}, 30, v{V_T}")
    e(f"v_and_b32 v{V_HW}, 0x80000000, v{V_HW}")
    e(f"v_or_b32 v{V_O1A}, v{V_HW}, v{V_O1A}")
    e(f"v_lshlrev_b32 v{V_C1}, 14, v{V_C1}")
    e(f"v_lshl_add_u32 v{V_C1}, v{V_T}, 4, v{V_C1}")
    e(f"v_or_b32 v{V_C1}, v{V_HW}, v{V_C1}")
    e(f"v_add_u32 v{V_O1B}, 4608, v{V_O1A}")
    e(f"v_cmp_gt_u32 vcc, 1152, v{V_O1A}")
    e(f"v_subrev_u32 v{V_HW}, 3456, v{V_O1A}")
    e(f"v_bfrev_b32 v{V_T}, 1")
    e(f"v_cndmask_b32 v{V_HW}, v{V_HW}, v{V_T}, vcc")
    e(f"s_mul_i32 s{S_T2}, s{S_J}, {72*4096}")
    e(f"s_add_u32 s{S_KVO}, s{S_KVO}, s{S_T2}")
    e(f"s_add_u32 s{S_KVO}, s{S_KVO}, {KVT_OFF}")

def kv_loads(g):
    e = g.e
    for r in range(11):
        if r < 3: v, off = V_HW, 1152*r
        elif r < 7: v, off = V_O1A, 1152*(r-3)
        else: v, off = V_O1B, 1152*(r-7)
        e(f"buffer_load_dwordx2 v[{KR+2*r}:{KR+2*r+1}], v{v}, s[{S_K}:{S_K+3}], 0 offen offset:{off}")
    for r in range(8):
        v, off = (V_O1A, 1152*r) if r < 4 else (V_O1B, 1152*(r-4))
        e(f"buffer_load_dwordx2 v[{VR[r]}:{VR[r]+1}], v{v}, s[{S_V}:{S_V+3}], 0 offen offset:{off}")

def kv_shift_load(g):
    e = g.e
    e(f"v_lshrrev_b32 v{V_T}, 9, v{V_C1}")
    e(f"v_and_b32 v{V_T}, -32, v{V_T}")
    e(f"s_mul_i32 s{S_T2}, s{S_J}, 576")
    e(f"buffer_load_dwordx4 v[{WB}:{WB+3}], v{V_T}, s[{S_SH}:{S_SH+3}], s{S_T2} offen")
    e(f"buffer_load_dwordx4 v[{WB+4}:{WB+7}], v{V_T}, s[{S_SH}:{S_SH+3}], s{S_T2} offen offset:16")

def kv_compute(g):
    L = []
    e = L.append
    C = WB + 8
    F = [48 + 2*i for i in range(8)] + [72, 74, 76]
    fl = g.o.get("stflags", "")
    for p in range(2):
        for h in range(2):
            w = WB + 4*p + 2*h
            e(f"v_lshlrev_b32 v{C+h}, 16, v{w}")
            e(f"v_and_b32 v{C+2+h}, 0xffff0000, v{w}")
            e(f"v_lshlrev_b32 v{C+4+h}, 16, v{w+1}")
            e(f"v_and_b32 v{C+6+h}, 0xffff0000, v{w+1}")
        for r in range(11):
            e(f"v_lshlrev_b32 v{F[r]}, 16, v{KR+2*r+p}")
            e(f"v_and_b32 v{F[r]+1}, 0xffff0000, v{KR+2*r+p}")
        for j in (3, 2, 1, 0):
            for t in range(8):
                a = ACC + 2*t; f = F[t + 3 - j]; c = C + 2*j
                if j == 3: e(f"v_pk_mul_f32 v[{a}:{a+1}], v[{f}:{f+1}], v[{c}:{c+1}]")
                else: e(f"v_pk_fma_f32 v[{a}:{a+1}], v[{f}:{f+1}], v[{c}:{c+1}], v[{a}:{a+1}]")
        for t in range(8):
            e(f"v_lshlrev_b32 v{F[t]}, 16, v{VR[t]+p}")
            e(f"v_and_b32 v{F[t]+1}, 0xffff0000, v{VR[t]+p}")
        for t in range(8):
            a = ACC + 2*t
            e(f"v_pk_mul_f32 v[{a}:{a+1}], v[{a}:{a+1}], v[{F[t]}:{F[t]+1}]")
        for h in range(2):
            for t in range(4):
                e(f"v_cvt_pk_bf16_f32 v{48+4*h+t}, v{ACC+4*t+h}, v{ACC+4*t+2+h}")
            e(f"buffer_store_dwordx4 v[{48+4*h}:{48+4*h+3}], v{V_C1}, s[{S_WS}:{S_WS+3}], s{S_KVO} offen {fl}")
            e(f"s_add_u32 s{S_KVO}, s{S_KVO}, 4096")
    return L

def mphase(g, g2, tag):
    o = g.o
    if o.get("prio", 1): g.e("s_setprio 2")
    seqs = []
    s0 = [("R", k) for k in range(7)]
    for k in range(5): s0 += [("M", k), ("R", k+7)]
    s0 += [("M", 5), ("M", 6), ("M", 7)]
    seqs.append(s0)
    for st in (1, 2):
        b = 12*st
        s = [("M", b-4), ("R", b), ("R", b+1), ("M", b-3), ("R", b+2), ("R", b+3), ("M", b-2), ("R", b+4), ("R", b+5),
             ("M", b-1), ("R", b+6)]
        for k in range(5): s += [("M", b+k), ("R", b+7+k)]
        s += [("M", b+5), ("M", b+6), ("M", b+7)]
        seqs.append(s)
    for st, s in enumerate(seqs):
        issued = []
        lastw = None
        for idx, (t, k) in enumerate(s):
            if t == "R":
                if not o.get("noread"):
                    for x in trread(k): g.e(x)
                issued.append(k)
            else:
                if k in issued:
                    n = 2*(len(issued) - 1 - issued.index(k))
                    g.e(f"s_waitcnt lgkmcnt({n})")
                if not o.get("nomfma"): g.e(mfma(k))
                if g2 and st == 1 and idx == 0:
                    g.e(f"s_cmp_gt_u32 s{S_N}, 10")
                    g.e(f"s_cbranch_scc1 x1_{tag}")
                    for kk in range(28, 36): g.e(fragread(kk))
                    g.lab(f"x1_{tag}")
                    g.e(f"s_cmp_lg_u32 s{S_N}, {o.get('kvn', 14)}")
                    g.e(f"s_cbranch_scc1 x3_{tag}")
                    kv_loads(g)
                    g.lab(f"x3_{tag}")
        if st == 0:
            g.e(f"s_waitcnt vmcnt({2 if g2 else 0}) lgkmcnt(0)")
        else:
            g.e("s_waitcnt lgkmcnt(0)")
        if st == 2: g.stamp()
        if g2 and st == 2:
            g.e(f"s_cmp_eq_u32 s{S_N}, 17")
            g.e(f"s_cbranch_scc1 x2_{tag}")
        g.barrier()
    if g2:
        g.e(f"s_cmp_lg_u32 s{S_N}, 9")
        g.e(f"s_cbranch_scc1 x2_{tag}")
        for kk in range(32, 36): g.e(fragread(kk))
        g.e("s_waitcnt lgkmcnt(0)")
        g.lab(f"x2_{tag}")
    for k in range(32, 36):
        if not o.get("nomfma"): g.e(mfma(k))
    if o.get("prio", 1): g.e("s_setprio 0")

def gelu_list(o):
    L = []
    if o.get("nogelu"):
        for i in range(8):
            L.append(f"v_cvt_pk_bf16_f32 v{PK+i}, v{ACC+2*i}, v{ACC+2*i+1}")
            if i % 4 == 3:
                L.append(f"ds_write_b128 v{V_HW}, v[{PK+i-3}:{PK+i}] offset:{(16*ASTR if M16 else 32)*(i//4)}")
        return L
    for b in range(4):
        x = [ACC + 4*b + i for i in range(4)]
        t = [GT + 4*(b % 2) + i for i in range(4)]
        for i in range(4): L.append(f"v_mul_f32 v{t[i]}, v{x[i]}, v{x[i]}")
        for i in range(4): L.append(f"v_fma_f32 v{t[i]}, v{t[i]}, s{S_GC2}, v{V_C1}")
        for i in range(4): L.append(f"v_mul_f32 v{t[i]}, v{t[i]}, v{x[i]}")
        for i in range(4): L.append(f"v_exp_f32 v{t[i]}, v{t[i]}")
        for i in range(4): L.append(f"v_add_f32 v{t[i]}, 1.0, v{t[i]}")
        for i in range(4): L.append(f"v_rcp_f32 v{t[i]}, v{t[i]}")
        for i in range(4): L.append(f"v_mul_f32 v{t[i]}, v{t[i]}, v{x[i]}")
        p = PK + 2*b
        L.append(f"v_cvt_pk_bf16_f32 v{p}, v{t[0]}, v{t[1]}")
        L.append(f"v_cvt_pk_bf16_f32 v{p+1}, v{t[2]}, v{t[3]}")
        if b % 2 == 1:
            L.append(f"ds_write_b128 v{V_HW}, v[{p-2}:{p+1}] offset:{(16*ASTR if M16 else 32)*(b//2)}")
    return L

def bias_reads(tbl):
    L = [f"s_lshl_b32 s{S_T2}, s{S_C2}, 1",
         f"v_add_u32 v{V_T}, s{S_T2}, v{V_BI}"]
    for q in range(4):
        L.append(f"ds_read_b128 v[{ACC+4*q}:{ACC+4*q+3}], v{V_T} offset:{tbl - TBL1 + ((q%2)*64 if M16 else 32*q)}")
    return L

def weave(g, work, dmas, spread):
    n = len(dmas)
    m = int(len(work) * spread)
    pos = [(i * m) // n for i in range(n)] if n else []
    di = 0
    for i in range(len(work) + 1):
        while di < n and pos[di] == i:
            for x in dmas[di]: g.e(x)
            di += 1
        if i < len(work): g.e(work[i])

def advance(g):
    g.e(f"s_mov_b32 s{S_C0}, s{S_C2}")
    nextcol(g, S_C1, S_C2)
    nextcol(g, S_C2, S_C1)
    g.e(f"s_add_u32 s{S_N}, s{S_N}, 2")

def w1col(g, dst, c):
    g.e(f"s_add_u32 s{dst}, s{c}, s{S_W1B}")

def off_gelu(g, srcs, frags, tbl):
    o = g.o
    sp = o.get("spread", 0.7)
    gl = gelu_list(o)
    n1 = int(len(gl) * 0.26); n2 = int(len(gl) * 0.66)
    parts = [gl[:n1], gl[n1:n2], gl[n2:]]
    if frags:
        fr = [fragread(k) for k in range(28)]
        def mix(a, b):
            r = [];
            for i in range(max(len(a), len(b))):
                if i < len(a): r.append(a[i])
                if i < len(b): r.append(b[i])
            return r
        parts = [parts[0] + fr[:6], mix(parts[1], fr[6:18]), mix(parts[2], fr[18:])]
    cols = [S_C1, S_C2, S_C2]
    stg = [2, 0, 1]
    for iv in range(3):
        sc = cols[iv]
        if not srcs[iv]:
            w1col(g, S_T2, sc); sc = S_T2
        d = dma_stage(g, stg[iv], srcs[iv], sc)
        w = parts[iv]
        if iv == 0:
            for x in d[0] + d[1]: g.e(x)
            g.e("s_nop 7")
            g.e("s_nop 3")
            d = d[2:]
        weave(g, w, d, sp)
        if iv == 2:
            for x in bias_reads(tbl): g.e(x)
            g.e(f"v_add_u32 v{V_HW}, 256, v{V_HW}")
            advance(g)
        if iv == 0:
            pass
        else:
            g.e("s_waitcnt vmcnt(6)" + (" lgkmcnt(0)" if iv == 2 else ""))
        g.barrier()

def cvt_list():
    L = []
    for i in range(8):
        L.append(f"v_cvt_pk_bf16_f32 v{PK+i}, v{ACC+2*i}, v{ACC+2*i+1}")
    L.append("s_nop 1")
    if M16:
        L = []
        for a in range(2):
            for t in range(2):
                for i in range(2):
                    c = ACC + 8*t + 4*a + 2*i
                    L.append(f"v_cvt_pk_bf16_f32 v{PK+4*a+2*t+i}, v{c}, v{c+1}")
        L.append("s_nop 1")
        for a in range(2):
            L.append(f"v_permlane16_swap_b32 v{PK+4*a}, v{PK+4*a+2}")
            L.append(f"v_permlane16_swap_b32 v{PK+4*a+1}, v{PK+4*a+3}")
        return L
    for h in range(2):
        L.append(f"v_permlane32_swap_b32 v{PK+4*h}, v{PK+4*h+2}")
        L.append(f"v_permlane32_swap_b32 v{PK+4*h+1}, v{PK+4*h+3}")
    return L

def stores(g):
    fl = g.o.get("stflags", "")
    g.e(f"s_lshl_b32 s{S_T2}, s{S_C0}, 11")
    g.e(f"s_add_u32 s{S_T2}, s{S_T2}, s{S_PB}")
    g.e(f"s_add_u32 s{S_T}, s{S_T2}, 65536")
    g.e(f"buffer_store_dwordx4 v[{PK}:{PK+3}], v{V_ST}, s[{S_WS}:{S_WS+3}], s{S_T2} offen {fl}")
    g.e(f"buffer_store_dwordx4 v[{PK+4}:{PK+7}], v{V_ST}, s[{S_WS}:{S_WS+3}], s{S_T} offen {fl}")

def off_store(g, last):
    cols = [S_C1, S_C2, S_C2]
    stg = [2, 0, 1]
    for iv in range(3):
        d = dma_stage(g, stg[iv], True, cols[iv])
        for x in d:
            for y in x: g.e(y)
        if iv == 0:
            g.e("s_nop 3")
            for x in cvt_list(): g.e(x)
            if last:
                stores(g)
                g.barrier()
                return
            for x in bias_reads(TBL2): g.e(x)
        if iv == 1:
            g.e("s_waitcnt vmcnt(6)")
        if iv == 2:
            stores(g)
            advance(g)
            g.e("s_waitcnt vmcnt(8) lgkmcnt(0)")
        g.barrier()

def finish(g):
    if g.o.get("stamps"):
        g.stamp()
        g.rstamp(63)
        g.e(f"s_lshl_b32 s{S_T}, s2, 11")
        g.e(f"s_add_u32 s{S_T}, s{S_T}, {STAMP_OFF}")
        g.e(f"v_lshlrev_b32 v{V_T}, 2, v{V_TID}")
        g.e(f"buffer_store_dword v{V_STAMP}, v{V_T}, s[{S_WS}:{S_WS+3}], s{S_T} offen")
    g.e("s_endpgm")

def bf16round(g, v):
    g.e(f"v_cvt_pk_bf16_f32 v{v}, v{v}, v{v}")
    g.e(f"v_and_b32 v{v}, 0xffff0000, v{v}")

def gen_k1(name, opt):
    g = G(opt); o = opt
    e = g.e
    g.L.append(f".globl {name}\n.p2align 8\n.type {name},@function\n{name}:")
    e("s_cmp_ge_u32 s2, 256")
    e(f"s_cbranch_scc1 {name}_exit")
    if o.get("stamps"):
        e(f"s_mov_b32 s{S_SI}, 0"); e(f"v_mov_b32 v{V_STAMP}, 0")
        g.rstamp(62)
        g.stamp()
    e(f"s_load_dwordx2 s[{S_Q}:{S_Q+1}], s[0:1], 0")
    e(f"s_load_dwordx2 s[{S_W1}:{S_W1+1}], s[0:1], 56")
    e(f"s_load_dwordx2 s[{S_B1}:{S_B1+1}], s[0:1], 64")
    e(f"s_load_dwordx2 s[{S_W2}:{S_W2+1}], s[0:1], 72")
    e(f"s_load_dwordx2 s[{S_B2}:{S_B2+1}], s[0:1], 80")
    e(f"s_load_dwordx2 s[{S_WS}:{S_WS+1}], s[0:1], 104")
    e(f"s_load_dwordx2 s[{S_K}:{S_K+1}], s[0:1], 8")
    e(f"s_load_dwordx2 s[{S_V}:{S_V+1}], s[0:1], 16")
    e(f"s_load_dwordx2 s[{S_SH}:{S_SH+1}], s[0:1], 24")
    e(f"s_getpc_b64 s[{S_PC}:{S_PC+1}]")
    g.lab(f"{name}_pc")
    e(f"v_lshlrev_b32 v{V_T}, 7, v{V_TID}")
    e(f"v_min_u32 v{V_T}, {name}_exit-{name}_pc, v{V_T}")
    if o.get("codepf", 1):
        e(f"global_load_dword v{V_T2}, v{V_T}, s[{S_PC}:{S_PC+1}]")
    e(f"v_lshrrev_b32 v{V_T}, 6, v{V_TID}")
    e(f"v_and_b32 v{V_LANE}, 63, v{V_TID}")
    e(f"v_readfirstlane_b32 s{S_W}, v{V_T}")
    e(f"s_and_b32 s{S_J}, s2, 7")
    e(f"s_lshr_b32 s{S_RB}, s2, 3")
    srd(g, S_Q, 2359296); srd(g, S_W1, 5308416); srd(g, S_W2, 5308416); srd(g, S_B1, 9216)
    srd(g, S_WS, 268435456)
    srd(g, S_K, 2359296); srd(g, S_V, 2359296); srd(g, S_SH, 4608)
    e(f"s_cmp_eq_u32 s{S_J}, 0")
    e(f"s_cselect_b32 s{S_B2+2}, 1152, 0")
    e(f"s_mov_b32 s{S_B2+3}, 0x00020000")
    e(f"v_lshrrev_b32 v{LT}, 3, v{V_TID}")
    e(f"v_and_b32 v{LT+1}, 7, v{V_TID}")
    e(f"v_mul_u32_u24 v{LT+2}, 1152, v{LT}")
    e(f"v_lshl_add_u32 v{LT+2}, v{LT+1}, 4, v{LT+2}")
    e(f"s_mul_i32 s{S_T2}, s{S_RB}, {64*1152}")
    e(f"s_and_b32 s{S_QW}, s{S_W}, 3")
    e(f"s_lshr_b32 s{S_GRP}, s{S_W}, 2")
    e(f"s_lshl_b32 s{S_M0B}, s{S_QW}, 11")
    if o.get("rot", 1):
        e(f"s_mul_i32 s{S_T}, s{S_RB}, 57")
        e(f"s_lshr_b32 s{S_T}, s{S_T}, 9")
        e(f"s_mul_i32 s{S_T}, s{S_T}, 9")
        e(f"s_sub_u32 s{S_ROT}, s{S_RB}, s{S_T}")
    else:
        e(f"s_mov_b32 s{S_ROT}, 0")
    e(f"s_mul_i32 s{S_W1B}, s{S_J}, 1152")
    e(f"v_lshrrev_b32 v{LT+3}, 3, v{V_LANE}")
    e(f"s_lshl_b32 s{S_T}, s{S_QW}, 4")
    e(f"v_add_u32 v{LT+3}, s{S_T}, v{LT+3}")
    if M16:
        e(f"v_lshrrev_b32 v{LT+4}, 3, v{V_LANE}")
        e(f"v_and_b32 v{LT+4}, 6, v{LT+4}")
    else:
        e(f"v_lshrrev_b32 v{LT+4}, 2, v{V_LANE}")
        e(f"v_and_b32 v{LT+4}, 4, v{LT+4}")
    e(f"v_xor_b32 v{LT+4}, v{LT+4}, v{LT+1}")
    e(f"v_lshlrev_b32 v{LT+4}, 4, v{LT+4}")
    e(f"v_mul_u32_u24 v{V_O1A}, 9216, v{LT+3}")
    e(f"v_add_u32 v{V_O1A}, v{V_O1A}, v{LT+4}")
    e(f"v_add_u32 v{V_O1B}, {8*9216-1024}, v{V_O1A}")
    e(f"s_lshl_b32 s{S_C2}, s{S_ROT}, 7")
    e("s_waitcnt lgkmcnt(0)")
    for i in range(9):
        e(f"buffer_load_dwordx4 v[{XR+4*i}:{XR+4*i+3}], v{LT+2}, s[{S_Q}:{S_Q+3}], s{S_T2} offen offset:{128*i}")
    e(f"v_lshlrev_b32 v{LT+5}, 2, v{V_TID}")
    e(f"buffer_load_dword v{LT+6}, v{LT+5}, s[{S_B1}:{S_B1+3}], s{S_W1B} offen")
    e(f"buffer_load_dword v{LT+7}, v{LT+5}, s[{S_B2}:{S_B2+3}], 0 offen")
    w1col(g, S_C0, S_C2)
    e(f"s_mul_i32 s{S_T}, s{S_GRP}, {64*9216}")
    e(f"s_add_u32 s{S_C0}, s{S_C0}, s{S_T}")
    e(f"s_lshl_b32 s{S_T}, s{S_GRP}, 13")
    e(f"s_add_u32 s{S_M0B}, s{S_M0B}, s{S_T}")
    for u in (0, 2, 4, 6):
        for x in dma_unit(g, u, False, S_C0):
            for y in x: e(y)
    e(f"s_cmp_eq_u32 s{S_GRP}, 1")
    e(f"s_cbranch_scc1 {name}_skip8")
    for x in dma_unit(g, 8, False, S_C0):
        for y in x: e(y)
    g.lab(f"{name}_skip8")
    e(f"s_lshl_b32 s{S_M0B}, s{S_QW}, 11")
    e(f"s_mul_i32 s{S_T}, s{S_J}, {576*1152}")
    e(f"s_mul_i32 s{S_T2}, s{S_RB}, 20736")
    e(f"s_add_u32 s{S_T2}, s{S_T2}, s{S_T}")
    e(f"v_lshlrev_b32 v{V_T}, 7, v{V_TID}")
    e(f"v_min_u32 v{V_T}, {161*128}, v{V_T}")
    if o.get("w2pf", 1):
        e(f"buffer_load_dword v{V_T2}, v{V_T}, s[{S_W2}:{S_W2+3}], s{S_T2} offen")
    npost = 1 if o.get("w2pf", 1) else 0
    e(f"s_mul_i32 s{S_T2}, s{S_ROT}, {64*1152}")
    for u in range(9):
        e(f"s_add_u32 s{S_ROW+u}, s{S_T}, s{S_T2}")
        if u < 8:
            e(f"s_add_u32 s{S_T2}, s{S_T2}, {64*1152}")
            e(f"s_cmp_eq_u32 s{S_T2}, {9*64*1152}")
            e(f"s_cselect_b32 s{S_T2}, 0, s{S_T2}")
    e(f"v_mul_u32_u24 v{V_O2A}, 1152, v{LT+3}")
    e(f"v_add_u32 v{V_O2A}, v{V_O2A}, v{LT+4}")
    e(f"v_add_u32 v{V_O2B}, {8*1152-1024}, v{V_O2A}")
    if M16:
        e(f"v_lshrrev_b32 v{LT+8}, 4, v{V_LANE}")
        e(f"v_lshrrev_b32 v{LT+9}, 2, v{V_LANE}")
        e(f"v_lshlrev_b32 v{V_TR0}, 7, v{LT+9}")
        e(f"s_lshr_b32 s{S_T2}, s{S_QW}, 1")
        e(f"s_and_b32 s{S_T}, s{S_QW}, 2")
        e(f"v_bfe_u32 v{LT+9}, v{V_LANE}, 3, 2")
        e(f"v_xor_b32 v{LT+9}, s{S_T}, v{LT+9}")
        e(f"v_lshl_add_u32 v{V_TR0}, v{LT+9}, 5, v{V_TR0}")
        e(f"v_and_b32 v{LT+9}, 3, v{V_LANE}")
        e(f"v_lshl_add_u32 v{V_TR0}, v{LT+9}, 3, v{V_TR0}")
        e(f"v_add_u32 v{V_TR1}, {12*4096}, v{V_TR0}")
        e(f"s_and_b32 s{S_T}, s{S_QW}, 1")
        e(f"s_mul_i32 s{S_T}, s{S_T}, {32*ASTR}")
        e(f"s_add_u32 s{S_T}, s{S_T}, {ACT}")
        e(f"v_and_b32 v{LT+9}, 15, v{V_LANE}")
        e(f"v_mul_u32_u24 v{V_FR}, {ASTR}, v{LT+9}")
        e(f"v_lshl_add_u32 v{V_FR}, v{LT+8}, 4, v{V_FR}")
        e(f"v_add_u32 v{V_FR}, s{S_T}, v{V_FR}")
    else:
        e(f"v_lshrrev_b32 v{LT+8}, 5, v{V_LANE}")
        e(f"v_bfe_u32 v{LT+9}, v{V_LANE}, 2, 2")
        e(f"v_lshl_add_u32 v{LT+10}, v{LT+8}, 2, v{LT+9}")
        e(f"v_lshlrev_b32 v{V_TR0}, 7, v{LT+10}")
        e(f"s_lshr_b32 s{S_T2}, s{S_QW}, 1")
        e(f"v_bfe_u32 v{LT+9}, v{V_LANE}, 3, 1")
        e(f"v_xor_b32 v{LT+9}, s{S_T2}, v{LT+9}")
        e(f"v_lshl_add_u32 v{V_TR0}, v{LT+9}, 6, v{V_TR0}")
        e(f"v_bfe_u32 v{LT+9}, v{V_LANE}, 4, 1")
        e(f"v_lshl_add_u32 v{V_TR0}, v{LT+9}, 5, v{V_TR0}")
        e(f"v_and_b32 v{LT+9}, 3, v{V_LANE}")
        e(f"v_lshl_add_u32 v{V_TR0}, v{LT+9}, 3, v{V_TR0}")
        e(f"v_add_u32 v{V_TR1}, {24*2048}, v{V_TR0}")
        e(f"s_and_b32 s{S_T}, s{S_QW}, 1")
        e(f"s_mul_i32 s{S_T}, s{S_T}, {32*ASTR}")
        e(f"s_add_u32 s{S_T}, s{S_T}, {ACT}")
        e(f"v_and_b32 v{LT+9}, 31, v{V_LANE}")
        e(f"v_mul_u32_u24 v{V_FR}, {ASTR}, v{LT+9}")
        e(f"v_lshl_add_u32 v{V_FR}, v{LT+8}, 4, v{V_FR}")
        e(f"v_add_u32 v{V_FR}, s{S_T}, v{V_FR}")
    e(f"s_lshl_b32 s{S_T}, s{S_T2}, 6")
    e(f"s_lshl_b32 s{S_C0}, s{S_GRP}, 7")
    e(f"s_add_u32 s{S_T}, s{S_T}, s{S_C0}")
    e(f"v_add_u32 v{V_HW}, s{S_T}, v{V_FR}")
    e(f"s_lshl_b32 s{S_T}, s{S_T2}, 7")
    e(f"s_add_u32 s{S_T}, s{S_T}, {TBL1}")
    e(f"v_lshlrev_b32 v{V_BI}, 4, v{LT+8}")
    e(f"v_add_u32 v{V_BI}, s{S_T}, v{V_BI}")
    e(f"v_and_b32 v{V_ST}, 31, v{V_LANE}")
    e(f"v_lshlrev_b32 v{V_ST}, 4, v{V_ST}")
    e(f"v_lshrrev_b32 v{LT+9}, 5, v{V_LANE}")
    e(f"v_lshl_add_u32 v{V_ST}, v{LT+9}, 15, v{V_ST}")
    e(f"s_mul_i32 s{S_PB}, s{S_J}, {72*32768}")
    e(f"s_lshl_b32 s{S_T}, s{S_T2}, 17")
    e(f"s_add_u32 s{S_PB}, s{S_PB}, s{S_T}")
    e(f"s_lshl_b32 s{S_T}, s{S_RB}, 10")
    e(f"s_add_u32 s{S_PB}, s{S_PB}, s{S_T}")
    e(f"s_and_b32 s{S_T}, s{S_QW}, 1")
    e(f"s_lshl_b32 s{S_T}, s{S_T}, 9")
    e(f"s_add_u32 s{S_PB}, s{S_PB}, s{S_T}")
    c1 = 2.0 * math.sqrt(2.0 / math.pi) * math.log2(math.e)
    e(f"v_mov_b32 v{V_C1}, 0x{f32bits(-c1):08x}")
    e(f"s_mov_b32 s{S_GC2}, 0x{f32bits(-c1*0.044715):08x}")
    if M16:
        e(f"v_mul_u32_u24 v{LT+2}, {ASTR}, v{LT}")
        e(f"v_bfe_u32 v{LT+9}, v{V_LANE}, 2, 1")
        e(f"v_lshl_add_u32 v{LT+2}, v{LT+9}, 6, v{LT+2}")
        e(f"v_and_b32 v{LT+9}, 1, v{V_LANE}")
        e(f"v_lshl_add_u32 v{LT+2}, v{LT+9}, 5, v{LT+2}")
        e(f"v_bfe_u32 v{LT+9}, v{V_LANE}, 1, 1")
        e(f"v_lshl_add_u32 v{LT+2}, v{LT+9}, 3, v{LT+2}")
        e(f"v_add_u32 v{LT+2}, {ACT}, v{LT+2}")
    else:
        e(f"v_mul_u32_u24 v{LT+2}, {ASTR}, v{LT}")
        e(f"v_lshrrev_b32 v{LT+9}, 1, v{LT+1}")
        e(f"v_lshl_add_u32 v{LT+2}, v{LT+9}, 5, v{LT+2}")
        e(f"v_and_b32 v{LT+9}, 1, v{LT+1}")
        e(f"v_lshl_add_u32 v{LT+2}, v{LT+9}, 3, v{LT+2}")
        e(f"v_add_u32 v{LT+2}, {ACT}, v{LT+2}")
    SA, SB, QA, QB, ONE = LT+10, LT+11, LT+12, LT+13, LT+14
    for r in (SA, SB, QA, QB): e(f"v_mov_b32 v{r}, 0")
    e(f"v_mov_b32 v{ONE}, 0x3f803f80")
    ndma = 0 if o.get("nodma") else 8
    for i in range(9):
        e(f"s_waitcnt vmcnt({8 - i + 2 + ndma + npost})")
        if i == 0: g.stamp()
        for c in range(4):
            x = XR + 4*i + c
            e(f"v_dot2c_f32_bf16 v{SA if c%2==0 else SB}, v{x}, v{ONE}")
            e(f"v_dot2c_f32_bf16 v{QA if c%2==0 else QB}, v{x}, v{x}")
    e("s_nop 2")
    e(f"v_add_f32 v{SA}, v{SA}, v{SB}")
    e(f"v_add_f32 v{QA}, v{QA}, v{QB}")
    for dpp in ("quad_perm:[1,0,3,2]", "quad_perm:[2,3,0,1]", "row_half_mirror"):
        e("s_nop 0")
        e(f"v_add_f32 v{SA}, v{SA}, v{SA} {dpp} row_mask:0xf bank_mask:0xf")
        e(f"v_add_f32 v{QA}, v{QA}, v{QA} {dpp} row_mask:0xf bank_mask:0xf")
    inv = f"0x{f32bits(1.0/576.0):08x}"
    e(f"v_mul_f32 v{SA}, {inv}, v{SA}")
    e(f"v_mul_f32 v{QA}, {inv}, v{QA}")
    e(f"v_fma_f32 v{QA}, -v{SA}, v{SA}, v{QA}")
    e(f"v_max_f32 v{QA}, 0, v{QA}")
    bf16round(g, SA)
    bf16round(g, QA)
    e(f"v_add_f32 v{QA}, 0x{f32bits(1e-5):08x}, v{QA}")
    bf16round(g, QA)
    e(f"v_sqrt_f32 v{QA}, v{QA}")
    e("s_nop 0")
    bf16round(g, QA)
    e(f"v_rcp_f32 v{QA}, v{QA}")
    e("s_nop 0")
    e(f"v_mul_f32 v{QB}, v{SA}, v{QA}")
    e(f"v_xor_b32 v{SA}, 0x80000000, v{QB}")
    assert SA % 2 == 0 and QA % 2 == 0
    T0 = LT + 16
    for i in range(9):
        t = T0 + 8*(i % 2)
        for c in range(4):
            x = XR + 4*i + c
            e(f"v_lshlrev_b32 v{t+2*c}, 16, v{x}")
            e(f"v_and_b32 v{t+2*c+1}, 0xffff0000, v{x}")
        for c in range(4):
            e(f"v_pk_fma_f32 v[{t+2*c}:{t+2*c+1}], v[{t+2*c}:{t+2*c+1}], v[{QA}:{QA+1}], v[{SA}:{SA+1}] op_sel_hi:[1,0,0]")
        for c in range(4):
            x = XR + 4*i + c
            e(f"v_cvt_pk_bf16_f32 v{x}, v{t+2*c}, v{t+2*c+1}")
        x = XR + 4*i
        e(f"ds_write2_b64 v{LT+2}, v[{x}:{x+1}], v[{x+2}:{x+3}] offset0:{16*i} offset1:{16*i+2}")
    e(f"s_waitcnt vmcnt({ndma + npost})")
    e(f"v_lshlrev_b32 v{T0}, 16, v{LT+6}")
    e(f"v_and_b32 v{T0+1}, 0xffff0000, v{LT+6}")
    e(f"v_lshlrev_b32 v{T0+2}, 16, v{LT+7}")
    e(f"v_and_b32 v{T0+3}, 0xffff0000, v{LT+7}")
    e(f"v_lshlrev_b32 v{LT+5}, 3, v{V_TID}")
    e(f"v_add_u32 v{LT+5}, {TBL1}, v{LT+5}")
    e(f"ds_write_b64 v{LT+5}, v[{T0}:{T0+1}]")
    e(f"ds_write_b64 v{LT+5}, v[{T0+2}:{T0+3}] offset:4096")
    e(f"v_mov_b32 v{T0+4}, v{QA}")
    e(f"v_mov_b32 v{T0+5}, v{SA}")
    e(f"v_xor_b32 v{V_TR2}, 32, v{V_TR0}")
    e(f"v_xor_b32 v{V_TR3}, 32, v{V_TR1}")
    g.stamp()
    e(f"v_or_b32 v{LT+1}, s{S_J}, v{LT+1}")
    e(f"v_lshlrev_b32 v{LT+1}, 28, v{LT+1}")
    e(f"v_lshl_add_u32 v{LT+1}, v{LT}, 3, v{LT+1}")
    e(f"s_lshl_b32 s{S_T}, s{S_RB}, 9")
    e(f"s_add_u32 s{S_T}, s{S_T}, {STAT_OFF}")
    e(f"s_waitcnt vmcnt({npost}) lgkmcnt(0)")
    e(f"buffer_store_dwordx2 v[{T0+4}:{T0+5}], v{LT+1}, s[{S_WS}:{S_WS+3}], s{S_T} offen")
    g.stamp()
    g.barrier()
    e(f"s_cmp_eq_u32 s{S_GRP}, 1")
    e(f"s_cbranch_scc1 {name}_p0")
    for x in bias_reads(TBL1): e(x)
    for k in range(36): e(fragread(k))
    e(f"s_mov_b32 s{S_N}, -2")
    advance(g)
    g.lab(f"{name}_loop1")
    mphase(g, False, name + "_m1")
    e(f"s_cmp_ge_u32 s{S_N}, 7")
    e(f"s_cbranch_scc1 {name}_trans")
    off_gelu(g, [False]*3, False, TBL1)
    e(f"s_branch {name}_loop1")
    g.lab(f"{name}_p0")
    nextcol(g, S_C2, S_C2)
    g.barrier()
    for iv in (1, 2):
        w1col(g, S_T2, S_C2)
        d = dma_stage(g, iv - 1, False, S_T2)
        w = [fragread(k) for k in range(18*(iv-1), 18*iv)]
        weave(g, w, d, 0.7)
        if iv == 2:
            for x in bias_reads(TBL1): e(x)
            e(f"s_mov_b32 s{S_N}, -1")
            advance(g)
            e("s_waitcnt vmcnt(6) lgkmcnt(0)")
        g.barrier()
    e(f"s_branch {name}_loop1")
    g.lab(f"{name}_trans")
    e(f"s_cmp_eq_u32 s{S_N}, 8")
    e(f"s_cbranch_scc1 {name}_p2b")
    off_gelu(g, [False, True, True], True, TBL2)
    e(f"s_branch {name}_loop2e")
    g.lab(f"{name}_p2b")
    off_gelu(g, [True, True, True], True, TBL2)
    g.lab(f"{name}_loop2e")
    kv_addr(g)
    e(f"buffer_load_dword v{V_T2}, v{V_ST}, s[{S_B1}:{S_B1+3}], 0 offen")
    e(f"buffer_load_dword v{V_T2}, v{V_ST}, s[{S_B1}:{S_B1+3}], 0 offen")
    g.lab(f"{name}_loop2")
    mphase(g, True, name + "_m2")
    e(f"s_cmp_ge_u32 s{S_N}, 16")
    e(f"s_cbranch_scc1 {name}_tail")
    off_store(g, False)
    e(f"s_branch {name}_loop2")
    g.lab(f"{name}_tail")
    e(f"s_cmp_eq_u32 s{S_N}, 17")
    e(f"s_cbranch_scc1 {name}_p4")
    kv_shift_load(g)
    off_store(g, True)
    kl = kv_compute(g)
    ks = o.get("kvsplit", 60)
    e("s_waitcnt vmcnt(8)")
    for x in kl[:ks]: e(x)
    e("s_waitcnt vmcnt(2)")
    g.barrier()
    for x in kl[ks:]: e(x)
    finish(g)
    g.lab(f"{name}_p4")
    e("s_nop 7"); e("s_nop 3")
    for x in cvt_list(): e(x)
    stores(g)
    finish(g)
    g.lab(f"{name}_exit")
    e("s_endpgm")
    desc = f""".amdhsa_kernel {name}
  .amdhsa_next_free_vgpr {NVGPR+144}
  .amdhsa_next_free_sgpr 96
  .amdhsa_accum_offset {NVGPR}
  .amdhsa_group_segment_fixed_size 0
  .amdhsa_kernarg_size 112
  .amdhsa_user_sgpr_count 2
  .amdhsa_user_sgpr_kernarg_segment_ptr 1
  .amdhsa_system_sgpr_workgroup_id_x 1
.end_amdhsa_kernel"""
    return "\n".join(g.L) + "\n", desc

KN = "parallel_sum__ssm_conv_h3__dense_activation_gelu__prompt_kernel"
def setmode(opt):
    global M16, ASTR, TBL1, TBL2, LDS_K1
    M16 = bool(opt.get("m16", 1))
    ASTR = 1184 if M16 else 1168
    TBL1 = ACT + 64 * ASTR; TBL2 = TBL1 + 4096; LDS_K1 = TBL2 + 4096

def single(opt):
    setmode(opt)
    body, desc = gen_k1(KN, opt)
    return (f"; @launch grid=(256,1,1) block=(512,1,1) lds={LDS_K1}\n"
            '.amdgcn_target "amdgcn-amd-amdhsa--gfx950"\n.text\n' + body +
            '.section .rodata,"a"\n.p2align 6\n' + desc + "\n")

if __name__ == "__main__":
    import sys, json
    opt = json.loads(sys.argv[2]) if len(sys.argv) > 2 else {}
    open(sys.argv[1], "w").write(single(opt))
```

```python
PART_OFF = 0
KVT_OFF = 20 << 20
STAT_OFF = 24 << 20
STAMP2_OFF = 40 << 20
JOBS = [[(0, 6), (27, 32)], [(6, 11), (22, 27)], [(11, 22)]]
WSTR = 8704
YOFF = 8 * WSTR
LDS_K2 = YOFF + 11 * 2048

V_TID = 0; V_LANE = 1; V_AF = 2; V_BF = 3; V_KV = 4; V_YW = 5; V_YR = 6; V_T = 7
V_R = [8, 9]
V_X = [10, 11]
V_S = [12, 13]
V_STAMP = 14; V_T2 = 15
AF = 16
ACC = 80
BB = 128
NB = 6
LD = [152, 192]
SUM = [232, 240]
XN = 248
NV = 256
S_Q = 4; S_KF = 8; S_WS = 12; S_OUT = 16; S_DP = 20
S_G = 22; S_PART = 23; S_W = 24; S_T = 25; S_T2 = 26; S_D = 27; S_LO = 28; S_HI = 29
S_PJ = 32
S_H2 = 40; S_SI = 41; S_TM = 42; S_PC = 46; S_CH = 48

class G:
    def __init__(self, opt):
        self.L = []; self.o = opt
    def e(self, s): self.L.append("  " + s)
    def lab(self, s): self.L.append(s + ":")
    def stamp(self):
        if not self.o.get("stamps"): return
        self.e(f"s_memtime s[{S_TM}:{S_TM+1}]")
        self.e(f"s_memrealtime s[{S_TM+2}:{S_TM+3}]")
        self.e("s_waitcnt lgkmcnt(0)")
        self.e(f"s_mov_b32 m0, s{S_SI}")
        self.e(f"s_add_u32 s{S_SI}, s{S_SI}, 1")
        self.e(f"v_writelane_b32 v{V_STAMP}, s{S_TM}, m0")
        self.e(f"s_add_u32 m0, m0, 30")
        self.e(f"s_nop 0")
        self.e(f"v_writelane_b32 v{V_STAMP}, s{S_TM+2}, m0")
    def rstamp(self, lane):
        if not self.o.get("stamps"): return
        self.e(f"s_memrealtime s[{S_TM}:{S_TM+1}]")
        self.e("s_waitcnt lgkmcnt(0)")
        self.e(f"v_writelane_b32 v{V_STAMP}, s{S_TM}, {lane}")

def srd(g, s, nrec):
    g.e(f"s_mov_b32 s{s+2}, {nrec}")
    g.e(f"s_mov_b32 s{s+3}, 0x00020000")

def sum_list(r, nafter):
    L = []
    b = LD[r]; x = b + 32; st = b + 36; s = SUM[r]
    L.append(f"s_waitcnt vmcnt({nafter + 8})")
    for c in range(4):
        L.append(f"v_lshlrev_b32 v{s+2*c}, 16, v{x+c}")
        L.append(f"v_and_b32 v{s+2*c+1}, 0xffff0000, v{x+c}")
    return L

def part_list(r, nafter):
    L = []
    b = LD[r]; s = SUM[r]
    for j in range(8):
        L.append(f"s_waitcnt vmcnt({nafter + 7 - j})")
        for c in range(4):
            L.append(f"v_dot2c_f32_bf16 v{s+2*c}, s{S_LO}, v{b+4*j+c}")
            L.append(f"v_dot2c_f32_bf16 v{s+2*c+1}, s{S_HI}, v{b+4*j+c}")
    return L

def conv_job(g, job, extra_work):
    o = g.o
    tiles = []; allt = []; prev = {}
    for a, b in job:
        if a > 0: allt.append(a - 1)
        for t in range(a, b):
            tiles.append(t); allt.append(t)
    ai = {t: ACC + 4*i for i, t in enumerate(allt)}
    tmax = max(allt)
    M = []
    for n in range(tmax, -1, -1):
        ts = [t for t in allt if t >= n and (t - n) % 2 == 0]
        ts.sort()
        for t in ts: M.append((t, n, (t - n)//2))
    order = []
    for (t, n, be) in M:
        for f in (("B", n), ("A", be)):
            if f not in order: order.append(f)
    bslot = {}
    nb = 0
    for f in order:
        if f[0] == "B":
            bslot[f[1]] = BB + 4*(nb % NB); nb += 1
    lastuse = {}
    for i, (t, n, be) in enumerate(M): lastuse[n] = i
    bl = [f[1] for f in order if f[0] == "B"]
    def reads(f):
        if f[0] == "A":
            r = AF + 4*f[1]; off = 256*f[1]
            return [f"ds_read_b64_tr_b16 v[{r}:{r+1}], v{V_AF} offset:{off}",
                    f"ds_read_b64_tr_b16 v[{r+2}:{r+3}], v{V_AF} offset:{off+32}"]
        r = bslot[f[1]]; off = 128*f[1] + 32
        return [f"ds_read_b64_tr_b16 v[{r}:{r+1}], v{V_BF} offset:{off}",
                f"ds_read_b64_tr_b16 v[{r+2}:{r+3}], v{V_BF} offset:{off-32}"]
    issued = 0
    MAXF = o.get("ahead", 6)
    started = set()
    ew = list(extra_work)
    w0 = int(len(M) * o.get("wstart", 0.5))
    nslots = len(M) - w0
    waited = -1
    for i, (t, n, be) in enumerate(M):
        need = max(order.index(("B", n)), order.index(("A", be)))
        while issued < len(order) and issued <= need + MAXF:
            f = order[issued]
            if f[0] == "B":
                k = bl.index(f[1])
                if k >= NB and lastuse[bl[k - NB]] >= i:
                    break
            for x in reads(f): g.e(x)
            issued += 1
        assert issued > need
        if need > waited:
            g.e(f"s_waitcnt lgkmcnt({min(15, 2*(issued - 1 - need))})")
            waited = need
        a = ai[t]; bs = bslot[n]; af = AF + 4*be
        c = f"v[{a}:{a+3}]" if t in started else "0"
        started.add(t)
        g.e(f"v_mfma_f32_16x16x32_bf16 v[{a}:{a+3}], v[{bs}:{bs+3}], v[{af}:{af+3}], {c}")
        if i >= w0 and ew:
            k = -(-len(ew) // (len(M) - i))
            for x in ew[:k]: g.e(x)
            ew = ew[k:]
    assert not ew
    g.e("s_nop 7")
    KVV = AF + 48
    for i, t in enumerate(tiles):
        g.e(f"ds_read_u16 v{KVV+i}, v{V_KV} offset:{128*t}")
    H2 = AF; H1 = AF + 12; Y = AF + 24
    idx = {t: i for i, t in enumerate(allt)}
    m = "row_mask:0xf bank_mask:0xf"
    def level(dst, src, zc, ts):
        for t in ts:
            if t in tiles and t > 0:
                g.e(f"v_add_f32 v{dst+idx[t]}, v{src(t-1)}, v{ai[t]+zc} wave_ror:1 row_mask:0x1 bank_mask:0x1")
        for t in ts:
            bc = "" if (t in tiles and t > 0) else " bound_ctrl:0"
            g.e(f"v_add_f32 v{dst+idx[t]}, v{src(t)}, v{ai[t]+zc} wave_shr:1 {m}{bc}")
    level(H2, lambda t: ai[t] + 3, 2, allt)
    g.e("s_waitcnt lgkmcnt(0)")
    for i, t in enumerate(tiles):
        g.e(f"v_dot2c_f32_bf16 v{ai[t]}, s{S_D}, v{KVV+i}")
    level(H1, lambda t: H2 + idx[t], 1, allt)
    level(Y, lambda t: H1 + idx[t], 0, tiles)
    for i, t in enumerate(tiles):
        g.e(f"ds_write_b32 v{V_YW}, v{Y+idx[t]} offset:{2048*i}")

def final(g, r):
    b = LD[r]; x = b + 32; st = b + 36; s = SUM[r]
    y = b
    for c in range(4):
        g.e(f"ds_read2st64_b32 v[{y+2*c}:{y+2*c+1}], v{V_YR} offset0:{64*r + 2*c} offset1:{64*r + 2*c + 1}")
    for c in range(4):
        g.e(f"v_lshlrev_b32 v{XN+2*c}, 16, v{x+c}")
        g.e(f"v_and_b32 v{XN+2*c+1}, 0xffff0000, v{x+c}")
    for c in range(4):
        g.e(f"v_pk_fma_f32 v[{XN+2*c}:{XN+2*c+1}], v[{XN+2*c}:{XN+2*c+1}], v[{st}:{st+1}], v[{st}:{st+1}] op_sel:[0,0,1] op_sel_hi:[1,0,1]")
    for c in range(4):
        g.e(f"s_waitcnt lgkmcnt({3-c})")
        g.e(f"v_pk_fma_f32 v[{s+2*c}:{s+2*c+1}], v[{XN+2*c}:{XN+2*c+1}], v[{y+2*c}:{y+2*c+1}], v[{s+2*c}:{s+2*c+1}]")
    for c in range(4):
        g.e(f"v_cvt_pk_bf16_f32 v{x+c}, v{s+2*c}, v{s+2*c+1}")
    g.e(f"buffer_store_dwordx4 v[{x}:{x+3}], v{V_X[r]}, s[{S_OUT}:{S_OUT+3}], 0 offen")

def gen_k2(name, opt):
    g = G(opt); o = opt; e = g.e
    g.L.append(f".globl {name}\n.p2align 8\n.type {name},@function\n{name}:")
    e("s_cmp_ge_u32 s2, 216")
    e(f"s_cbranch_scc1 {name}_exit")
    if o.get("stamps"):
        e(f"s_mov_b32 s{S_SI}, 0"); e(f"v_mov_b32 v{V_STAMP}, 0")
        g.rstamp(62)
        g.stamp()
    e(f"s_load_dwordx2 s[{S_KF}:{S_KF+1}], s[0:1], 32")
    e(f"s_load_dwordx2 s[{S_WS}:{S_WS+1}], s[0:1], 104")
    e(f"s_load_dwordx2 s[{S_Q}:{S_Q+1}], s[0:1], 0")
    e(f"s_load_dwordx2 s[{S_DP}:{S_DP+1}], s[0:1], 40")
    e(f"s_load_dwordx2 s[{S_OUT}:{S_OUT+1}], s[0:1], 88")
    if o.get("codepf2", 1):
        e(f"s_getpc_b64 s[{S_PC}:{S_PC+1}]")
        g.lab(f"{name}_pc")
        e(f"v_lshlrev_b32 v{V_T}, 6, v{V_TID}")
        e(f"v_min_u32 v{V_T}, {name}_exit-{name}_pc, v{V_T}")
        e(f"global_load_dword v{V_T2}, v{V_T}, s[{S_PC}:{S_PC+1}]")
    e(f"v_lshrrev_b32 v{V_T}, 6, v{V_TID}")
    e(f"v_and_b32 v{V_LANE}, 63, v{V_TID}")
    e(f"v_readfirstlane_b32 s{S_W}, v{V_T}")
    e(f"s_lshr_b32 s{S_T}, s2, 3")
    e(f"s_mul_i32 s{S_PART}, s{S_T}, 57")
    e(f"s_lshr_b32 s{S_PART}, s{S_PART}, 9")
    e(f"s_and_b32 s{S_G}, s2, 7")
    e(f"s_sub_u32 s{S_G}, s{S_G}, s{S_PART}")
    e(f"s_mul_i32 s{S_G}, s{S_G}, 9")
    e(f"s_add_u32 s{S_G}, s{S_G}, s{S_T}")
    e(f"s_lshl_b32 s{S_CH}, s{S_G}, 3")
    e(f"s_add_u32 s{S_CH}, s{S_CH}, s{S_W}")
    srd(g, S_KF, 2359296); srd(g, S_WS, 268435456); srd(g, S_Q, 2359296); srd(g, S_OUT, 2359296)
    e(f"s_mul_i32 s{S_H2}, s{S_W}, {WSTR}")
    e(f"v_lshlrev_b32 v{V_T}, 4, v{V_LANE}")
    e(f"s_lshl_b32 s{S_T}, s{S_CH}, 12")
    e(f"s_add_u32 m0, s{S_H2}, 4608")
    e(f"s_add_u32 s{S_T2}, s{S_T}, {KVT_OFF}")
    e("s_waitcnt lgkmcnt(0)")
    for c in (3, 2, 1, 0):
        e(f"buffer_load_dwordx4 v{V_T}, s[{S_WS}:{S_WS+3}], s{S_T2} offen offset:{1024*c} lds")
    e(f"s_add_u32 m0, s{S_H2}, 256")
    e(f"s_lshl_b32 s{S_T2}, s{S_CH}, 1")
    for c in range(4):
        e(f"buffer_load_dwordx4 v{V_T}, s[{S_KF}:{S_KF+3}], s{S_T} offen offset:{1024*c} lds")
    e(f"s_and_b32 s{S_T2}, s{S_T2}, -4")
    e(f"s_load_dword s{S_D}, s[{S_DP}:{S_DP+1}], s{S_T2}")
    info = []
    for job in JOBS:
        a0 = job[0][0]; l0 = job[0][1] - job[0][0]
        a1 = job[1][0] - l0 if len(job) > 1 else a0
        n = sum(b - a for a, b in job)
        info.append(a0 | (l0 << 8) | (a1 << 16) | (n << 24))
    e(f"s_mov_b32 s{S_T}, {info[0]}")
    e(f"s_cmp_eq_u32 s{S_PART}, 1")
    e(f"s_cselect_b32 s{S_T}, {info[1]}, s{S_T}")
    e(f"s_cmp_eq_u32 s{S_PART}, 2")
    e(f"s_cselect_b32 s{S_T}, {info[2]}, s{S_T}")
    e(f"s_bfe_u32 s{S_LO}, s{S_T}, {8 | (8 << 16)}")
    e(f"s_bfe_u32 s{S_HI}, s{S_T}, {16 | (8 << 16)}")
    e(f"s_and_b32 s{S_T2}, s{S_T}, 255")
    e(f"s_cmp_lt_u32 s{S_W}, s{S_LO}")
    e(f"s_cselect_b32 s{S_T2}, s{S_T2}, s{S_HI}")
    e(f"s_add_u32 s{S_T2}, s{S_T2}, s{S_W}")
    e(f"s_lshl_b32 s{S_T2}, s{S_T2}, 6")
    e(f"v_add_u32 v{V_T2+0 if False else V_KV}, s{S_T2}, v{V_LANE}")
    e(f"s_lshl_b32 s{S_LO}, s{S_G}, 4")
    e(f"v_lshlrev_b32 v{V_R[0]}, 4, v{V_KV}")
    e(f"v_mul_u32_u24 v{V_X[0]}, 1152, v{V_KV}")
    e(f"v_add_u32 v{V_X[0]}, s{S_LO}, v{V_X[0]}")
    e(f"v_lshlrev_b32 v{V_S[0]}, 3, v{V_KV}")
    e(f"s_lshl_b32 s{S_PJ}, s{S_G}, 15")
    for j in range(1, 8):
        e(f"s_add_u32 s{S_PJ+j}, s{S_PJ+j-1}, {72*32768}")
    e(f"s_mov_b32 s{S_T2}, {STAT_OFF}")
    def loads(r):
        b = LD[r]
        e(f"buffer_load_dwordx2 v[{b+36}:{b+37}], v{V_S[r]}, s[{S_WS}:{S_WS+3}], s{S_T2} offen")
        e(f"buffer_load_dwordx4 v[{b+32}:{b+35}], v{V_X[r]}, s[{S_Q}:{S_Q+3}], 0 offen")
        for j in range(8):
            e(f"buffer_load_dwordx4 v[{b+4*j}:{b+4*j+3}], v{V_R[r]}, s[{S_WS}:{S_WS+3}], s{S_PJ+j} offen " + o.get("ldflags", ""))
    loads(0)
    e(f"s_add_u32 s{S_HI}, s{S_HI}, s{S_W}")
    e(f"s_lshl_b32 s{S_HI}, s{S_HI}, 6")
    e(f"s_add_u32 s{S_HI}, s{S_HI}, 512")
    e(f"v_add_u32 v{V_KV}, s{S_HI}, v{V_LANE}")
    e(f"v_lshlrev_b32 v{V_R[1]}, 4, v{V_KV}")
    e(f"v_mul_u32_u24 v{V_X[1]}, 1152, v{V_KV}")
    e(f"v_add_u32 v{V_X[1]}, s{S_LO}, v{V_X[1]}")
    e(f"v_lshlrev_b32 v{V_S[1]}, 3, v{V_KV}")
    e(f"s_lshr_b32 s{S_T}, s{S_T}, 24")
    e(f"s_sub_u32 s{S_T}, s{S_T}, 8")
    e(f"s_cmp_lt_u32 s{S_W}, s{S_T}")
    e(f"s_cselect_b32 s{S_G}, 0, 0x80000000")
    for v in (V_R[1], V_X[1], V_S[1]):
        e(f"v_or_b32 v{v}, s{S_G}, v{v}")
    loads(1)
    e(f"v_mov_b32 v{V_T}, 0")
    e(f"v_lshlrev_b32 v{V_YW}, 2, v{V_LANE}")
    e(f"v_add_u32 v{V_KV}, s{S_H2}, v{V_YW}")
    e(f"ds_write2st64_b32 v{V_KV}, v{V_T}, v{V_T} offset0:0 offset1:17")
    e(f"s_lshl_b32 s{S_T}, s{S_W}, 11")
    e(f"s_add_u32 s{S_T}, s{S_T}, {YOFF}")
    e(f"v_add_u32 v{V_YR}, s{S_T}, v{V_YW}")
    e(f"s_lshl_b32 s{S_T}, s{S_W}, 8")
    e(f"s_add_u32 s{S_T}, s{S_T}, {YOFF}")
    e(f"v_add_u32 v{V_YW}, s{S_T}, v{V_YW}")
    e(f"s_add_u32 s{S_T}, s{S_H2}, 4608")
    e(f"v_lshlrev_b32 v{V_KV}, 1, v{V_LANE}")
    e(f"v_add_u32 v{V_KV}, s{S_T}, v{V_KV}")
    e(f"v_lshrrev_b32 v{V_T}, 4, v{V_LANE}")
    e(f"v_lshlrev_b32 v{V_T}, 3, v{V_T}")
    e(f"v_bfe_u32 v{V_AF}, v{V_LANE}, 2, 2")
    e(f"v_add_u32 v{V_T}, v{V_T}, v{V_AF}")
    e(f"v_and_b32 v{V_BF}, 3, v{V_LANE}")
    e(f"v_add_u32 v{V_AF}, v{V_T}, v{V_BF}")
    e(f"v_lshlrev_b32 v{V_AF}, 3, v{V_AF}")
    e(f"s_add_u32 s{S_T}, s{S_H2}, {256 - 24}")
    e(f"v_add_u32 v{V_AF}, s{S_T}, v{V_AF}")
    e(f"v_lshlrev_b32 v{V_BF}, 2, v{V_BF}")
    e(f"v_sub_u32 v{V_BF}, v{V_BF}, v{V_T}")
    e(f"v_lshlrev_b32 v{V_BF}, 3, v{V_BF}")
    e(f"s_add_u32 s{S_T}, s{S_H2}, {4608 + 24 - 32}")
    e(f"v_add_u32 v{V_BF}, s{S_T}, v{V_BF}")
    e(f"s_mov_b32 s{S_LO}, 0x3f80")
    e(f"s_mov_b32 s{S_HI}, 0x3f800000")
    e("s_waitcnt lgkmcnt(0)")
    e(f"s_and_b32 s{S_T}, s{S_CH}, 1")
    e(f"s_lshl_b32 s{S_T}, s{S_T}, 4")
    e(f"s_lshr_b32 s{S_D}, s{S_D}, s{S_T}")
    e(f"s_and_b32 s{S_D}, s{S_D}, 0xffff")
    g.stamp()
    e("s_waitcnt vmcnt(20)")
    g.stamp()
    e(f"s_cmp_eq_u32 s{S_PART}, 1")
    e(f"s_cbranch_scc1 {name}_j1")
    e(f"s_cmp_eq_u32 s{S_PART}, 2")
    e(f"s_cbranch_scc1 {name}_j2")
    ew = sum_list(0, 10) + part_list(0, 10)
    for p in range(3):
        if p: g.lab(f"{name}_j{p}")
        conv_job(g, JOBS[p], ew)
        if p < 2: e(f"s_branch {name}_fin")
    g.lab(f"{name}_fin")
    g.stamp()
    e(f"s_cmp_lg_u32 s{S_G}, 0")
    e(f"s_cbranch_scc1 {name}_f1")
    for x in sum_list(1, 0) + part_list(1, 0): e(x)
    g.lab(f"{name}_f1")
    e("s_waitcnt lgkmcnt(0)")
    g.stamp()
    e("s_barrier")
    final(g, 0)
    e(f"s_cmp_lg_u32 s{S_G}, 0")
    e(f"s_cbranch_scc1 {name}_f2")
    final(g, 1)
    g.lab(f"{name}_f2")
    if o.get("stamps"):
        g.stamp()
        e("s_waitcnt vmcnt(0)")
        g.stamp()
        g.rstamp(63)
        e(f"s_lshl_b32 s{S_T}, s2, 11")
        e(f"s_add_u32 s{S_T}, s{S_T}, {STAMP2_OFF}")
        e(f"v_lshlrev_b32 v{V_T}, 2, v{V_TID}")
        e(f"buffer_store_dword v{V_STAMP}, v{V_T}, s[{S_WS}:{S_WS+3}], s{S_T} offen")
    g.lab(f"{name}_exit")
    e("s_endpgm")
    desc = f""".amdhsa_kernel {name}
  .amdhsa_next_free_vgpr {NV}
  .amdhsa_next_free_sgpr 96
  .amdhsa_accum_offset {NV}
  .amdhsa_group_segment_fixed_size 0
  .amdhsa_kernarg_size 112
  .amdhsa_user_sgpr_count 2
  .amdhsa_user_sgpr_kernarg_segment_ptr 1
  .amdhsa_system_sgpr_workgroup_id_x 1
.end_amdhsa_kernel"""
    return "\n".join(g.L) + "\n", desc
```

```python
import sys, json
import k1, k2
KN = "parallel_sum__ssm_conv_h3__dense_activation_gelu__prompt_kernel"
def full(opt):
    k1.setmode(opt)
    b1, d1 = k1.gen_k1(KN, opt)
    b2, d2 = k2.gen_k2("conv_combine_kernel", opt)
    return (f"; @launch kernel={KN} grid=(256,1,1) block=(512,1,1) lds={k1.LDS_K1}\n"
            f"; @launch kernel=conv_combine_kernel grid=(216,1,1) block=(512,1,1) lds={k2.LDS_K2}\n"
            '.amdgcn_target "amdgcn-amd-amdhsa--gfx950"\n.text\n' + b1 + b2 +
            '.section .rodata,"a"\n.p2align 6\n' + d1 + "\n.p2align 6\n" + d2 + "\n")
if __name__ == "__main__":
    opt = json.loads(sys.argv[2]) if len(sys.argv) > 2 else {}
    open(sys.argv[1], "w").write(full(opt))
```

```python
import struct, math
def f32bits(x): return struct.unpack("<I", struct.pack("<f", x))[0]

RING = 0
ACT = 73728
ASTR = 1184
M16 = True
TBL1 = ACT + 64 * ASTR
TBL2 = TBL1 + 4096
LDS_K1 = TBL2 + 4096
PART_OFF = 0
STAMP_OFF = 32 << 20
KVT_OFF = 20 << 20
STAT_OFF = 24 << 20

V_TID = 0; V_LANE = 1; V_TR2 = 80; V_TR3 = 81
V_TR0 = 2; V_TR1 = 3; V_HW = 4; V_FR = 5; V_BI = 6
V_O1A = 7; V_O1B = 8; V_O2A = 9; V_O2B = 10; V_ST = 11; V_C1 = 12; V_STAMP = 13; V_T = 14; V_T2 = 15
ACC = 16
WB = 32
GT = 64
PK = 72
XR = 32
LT = 68
NVGPR = 112

S_Q = 4; S_W1 = 8; S_W2 = 12; S_B1 = 16; S_B2 = 20; S_WS = 24
S_J = 28; S_RB = 29; S_ROT = 30; S_W = 31; S_QW = 32; S_M0B = 33
S_C0 = 34; S_C1 = 35; S_C2 = 36; S_W1B = 37; S_N = 38; S_T = 39; S_T2 = 40; S_GC2 = 41
S_ROW = 44
S_PB = 53; S_SI = 54; S_GRP = 55
S_PC = 56
S_TM = 58
S_K = 64; S_V = 68; S_SH = 72; S_KVO = 76
KR = 82
VR = [104, 106, 108, 110, 64, 66, 68, 70]

class G:
    def __init__(self, opt):
        self.L = []; self.o = opt
    def e(self, s): self.L.append("  " + s)
    def lab(self, s): self.L.append(s + ":")
    def stamp(self):
        if not self.o.get("stamps"): return
        self.e(f"s_memtime s[{S_TM}:{S_TM+1}]")
        self.e(f"s_memrealtime s[{S_TM+2}:{S_TM+3}]")
        self.e("s_waitcnt lgkmcnt(0)")
        self.e(f"s_mov_b32 m0, s{S_SI}")
        self.e(f"s_add_u32 s{S_SI}, s{S_SI}, 1")
        self.e(f"v_writelane_b32 v{V_STAMP}, s{S_TM}, m0")
        self.e(f"s_add_u32 m0, m0, 30")
        self.e(f"s_nop 0")
        self.e(f"v_writelane_b32 v{V_STAMP}, s{S_TM+2}, m0")
    def rstamp(self, lane):
        if not self.o.get("stamps"): return
        self.e(f"s_memrealtime s[{S_TM}:{S_TM+1}]")
        self.e("s_waitcnt lgkmcnt(0)")
        self.e(f"v_writelane_b32 v{V_STAMP}, s{S_TM}, {lane}")
    def barrier(self):
        self.e("s_barrier")

def srd(g, s, nrec):
    g.e(f"s_mov_b32 s{s+2}, {nrec}")
    g.e(f"s_mov_b32 s{s+3}, 0x00020000")

def nextcol(g, dst, src):
    g.e(f"s_add_u32 s{dst}, s{src}, 128")
    g.e(f"s_cmp_eq_u32 s{dst}, 1152")
    g.e(f"s_cselect_b32 s{dst}, 0, s{dst}")

def dma_unit(g, u, w2, scol):
    o = g.o
    L = []
    L.append(f"s_add_u32 m0, s{S_M0B}, {u*8192}")
    if w2:
        L.append(f"s_add_u32 s{S_T}, s{S_ROW+u}, s{scol}")
        a, b, s = V_O2A, V_O2B, S_W2
    else:
        L.append(f"s_add_u32 s{S_T}, s{scol}, {u*64*9216}")
        a, b, s = V_O1A, V_O1B, S_W1
    d1 = f"buffer_load_dwordx4 v{a}, s[{s}:{s+3}], s{S_T} offen lds"
    d2 = f"buffer_load_dwordx4 v{b}, s[{s}:{s+3}], s{S_T} offen offset:1024 lds"
    if o.get("nodma"):
        return [L, []]
    return [L + [d1], [d2]]

def dma_stage(g, st, w2, scol):
    R = []
    for u in range(3*st, 3*st+3):
        R += dma_unit(g, u, w2, scol)
    return R

def mfma(k):
    b = WB + 4*(k % 8)
    if M16:
        ks, a = k // 2, k % 2
        L = []
        for t in ((0, 1) if a == 0 else (1, 0)):
            c = ACC + 8*t + 4*a
            f = 8*ks + 4*t
            L.append(f"v_mfma_f32_16x16x32_bf16 v[{c}:{c+3}], v[{b}:{b+3}], a[{f}:{f+3}], v[{c}:{c+3}]")
        return "\n  ".join(L)
    return f"v_mfma_f32_32x32x16_bf16 v[{ACC}:{ACC+15}], v[{b}:{b+3}], a[{4*k}:{4*k+3}], v[{ACC}:{ACC+15}]"

def trread(k):
    b = WB + 4*(k % 8)
    if M16:
        ks, a = k // 2, k % 2
        if ks < 12: v, off = (V_TR0, V_TR2)[a], ks*4096
        else: v, off = (V_TR1, V_TR3)[a], (ks-12)*4096
        return [f"ds_read_b64_tr_b16 v[{b}:{b+1}], v{v} offset:{off}",
                f"ds_read_b64_tr_b16 v[{b+2}:{b+3}], v{v} offset:{off+2048}"]
    if k < 24: v, off = V_TR0, k*2048
    else: v, off = V_TR1, (k-24)*2048
    return [f"ds_read_b64_tr_b16 v[{b}:{b+1}], v{v} offset:{off}",
            f"ds_read_b64_tr_b16 v[{b+2}:{b+3}], v{v} offset:{off+1024}"]

def fragread(k):
    if M16:
        return f"ds_read_b128 a[{4*k}:{4*k+3}], v{V_FR} offset:{(k//2)*64 + (k%2)*16*ASTR}"
    return f"ds_read_b128 a[{4*k}:{4*k+3}], v{V_FR} offset:{k*32}"

def kv_addr(g):
    e = g.e
    e(f"v_mul_u32_u24 v{V_T}, 57, v{V_LANE}")
    e(f"v_lshrrev_b32 v{V_T}, 10, v{V_T}")
    e(f"v_mul_u32_u24 v{V_C1}, 18, v{V_T}")
    e(f"v_sub_u32 v{V_C1}, v{V_LANE}, v{V_C1}")
    e(f"s_lshl_b32 s{S_T}, s{S_RB}, 2")
    e(f"s_add_u32 s{S_T}, s{S_T}, s{S_QW}")
    e(f"s_lshl_b32 s{S_KVO}, s{S_T}, 5")
    e(f"s_mul_i32 s{S_T}, s{S_T}, {16*1152}")
    e(f"s_mul_i32 s{S_T2}, s{S_J}, 144")
    e(f"s_add_u32 s{S_T}, s{S_T}, s{S_T2}")
    e(f"v_mul_u32_u24 v{V_O1A}, {8*1152}, v{V_T}")
    e(f"v_lshl_add_u32 v{V_O1A}, v{V_C1}, 3, v{V_O1A}")
    e(f"v_add_u32 v{V_O1A}, s{S_T}, v{V_O1A}")
    e(f"v_lshlrev_b32 v{V_HW}, 30, v{V_T}")
    e(f"v_and_b32 v{V_HW}, 0x80000000, v{V_HW}")
    e(f"v_or_b32 v{V_O1A}, v{V_HW}, v{V_O1A}")
    e(f"v_lshlrev_b32 v{V_C1}, 14, v{V_C1}")
    e(f"v_lshl_add_u32 v{V_C1}, v{V_T}, 4, v{V_C1}")
    e(f"v_or_b32 v{V_C1}, v{V_HW}, v{V_C1}")
    e(f"v_add_u32 v{V_O1B}, 4608, v{V_O1A}")
    e(f"v_cmp_gt_u32 vcc, 1152, v{V_O1A}")
    e(f"v_subrev_u32 v{V_HW}, 3456, v{V_O1A}")
    e(f"v_bfrev_b32 v{V_T}, 1")
    e(f"v_cndmask_b32 v{V_HW}, v{V_HW}, v{V_T}, vcc")
    e(f"s_mul_i32 s{S_T2}, s{S_J}, {72*4096}")
    e(f"s_add_u32 s{S_KVO}, s{S_KVO}, s{S_T2}")
    e(f"s_add_u32 s{S_KVO}, s{S_KVO}, {KVT_OFF}")

def kv_loads(g):
    e = g.e
    for r in range(11):
        if r < 3: v, off = V_HW, 1152*r
        elif r < 7: v, off = V_O1A, 1152*(r-3)
        else: v, off = V_O1B, 1152*(r-7)
        e(f"buffer_load_dwordx2 v[{KR+2*r}:{KR+2*r+1}], v{v}, s[{S_K}:{S_K+3}], 0 offen offset:{off}")
    for r in range(8):
        v, off = (V_O1A, 1152*r) if r < 4 else (V_O1B, 1152*(r-4))
        e(f"buffer_load_dwordx2 v[{VR[r]}:{VR[r]+1}], v{v}, s[{S_V}:{S_V+3}], 0 offen offset:{off}")

def kv_shift_load(g):
    e = g.e
    e(f"v_lshrrev_b32 v{V_T}, 9, v{V_C1}")
    e(f"v_and_b32 v{V_T}, -32, v{V_T}")
    e(f"s_mul_i32 s{S_T2}, s{S_J}, 576")
    e(f"buffer_load_dwordx4 v[{WB}:{WB+3}], v{V_T}, s[{S_SH}:{S_SH+3}], s{S_T2} offen")
    e(f"buffer_load_dwordx4 v[{WB+4}:{WB+7}], v{V_T}, s[{S_SH}:{S_SH+3}], s{S_T2} offen offset:16")

def kv_compute(g):
    L = []
    e = L.append
    C = WB + 8
    F = [48 + 2*i for i in range(8)] + [72, 74, 76]
    fl = g.o.get("stflags", "")
    for p in range(2):
        for h in range(2):
            w = WB + 4*p + 2*h
            e(f"v_lshlrev_b32 v{C+h}, 16, v{w}")
            e(f"v_and_b32 v{C+2+h}, 0xffff0000, v{w}")
            e(f"v_lshlrev_b32 v{C+4+h}, 16, v{w+1}")
            e(f"v_and_b32 v{C+6+h}, 0xffff0000, v{w+1}")
        for r in range(11):
            e(f"v_lshlrev_b32 v{F[r]}, 16, v{KR+2*r+p}")
            e(f"v_and_b32 v{F[r]+1}, 0xffff0000, v{KR+2*r+p}")
        for j in (3, 2, 1, 0):
            for t in range(8):
                a = ACC + 2*t; f = F[t + 3 - j]; c = C + 2*j
                if j == 3: e(f"v_pk_mul_f32 v[{a}:{a+1}], v[{f}:{f+1}], v[{c}:{c+1}]")
                else: e(f"v_pk_fma_f32 v[{a}:{a+1}], v[{f}:{f+1}], v[{c}:{c+1}], v[{a}:{a+1}]")
        for t in range(8):
            e(f"v_lshlrev_b32 v{F[t]}, 16, v{VR[t]+p}")
            e(f"v_and_b32 v{F[t]+1}, 0xffff0000, v{VR[t]+p}")
        for t in range(8):
            a = ACC + 2*t
            e(f"v_pk_mul_f32 v[{a}:{a+1}], v[{a}:{a+1}], v[{F[t]}:{F[t]+1}]")
        for h in range(2):
            for t in range(4):
                e(f"v_cvt_pk_bf16_f32 v{48+4*h+t}, v{ACC+4*t+h}, v{ACC+4*t+2+h}")
            e(f"buffer_store_dwordx4 v[{48+4*h}:{48+4*h+3}], v{V_C1}, s[{S_WS}:{S_WS+3}], s{S_KVO} offen {fl}")
            e(f"s_add_u32 s{S_KVO}, s{S_KVO}, 4096")
    return L

def mphase(g, g2, tag):
    o = g.o
    if o.get("prio", 1): g.e("s_setprio 2")
    seqs = []
    s0 = [("R", k) for k in range(7)]
    for k in range(5): s0 += [("M", k), ("R", k+7)]
    s0 += [("M", 5), ("M", 6), ("M", 7)]
    seqs.append(s0)
    for st in (1, 2):
        b = 12*st
        s = [("M", b-4), ("R", b), ("R", b+1), ("M", b-3), ("R", b+2), ("R", b+3), ("M", b-2), ("R", b+4), ("R", b+5),
             ("M", b-1), ("R", b+6)]
        for k in range(5): s += [("M", b+k), ("R", b+7+k)]
        s += [("M", b+5), ("M", b+6), ("M", b+7)]
        seqs.append(s)
    for st, s in enumerate(seqs):
        issued = []
        lastw = None
        for idx, (t, k) in enumerate(s):
            if t == "R":
                if not o.get("noread"):
                    for x in trread(k): g.e(x)
                issued.append(k)
            else:
                if k in issued:
                    n = 2*(len(issued) - 1 - issued.index(k))
                    g.e(f"s_waitcnt lgkmcnt({n})")
                if not o.get("nomfma"): g.e(mfma(k))
                if g2 and st == 1 and idx == 0:
                    g.e(f"s_cmp_gt_u32 s{S_N}, 10")
                    g.e(f"s_cbranch_scc1 x1_{tag}")
                    for kk in range(28, 36): g.e(fragread(kk))
                    g.lab(f"x1_{tag}")
                    g.e(f"s_cmp_lg_u32 s{S_N}, {o.get('kvn', 14)}")
                    g.e(f"s_cbranch_scc1 x3_{tag}")
                    kv_loads(g)
                    g.lab(f"x3_{tag}")
        if st == 0:
            g.e(f"s_waitcnt vmcnt({2 if g2 else 0}) lgkmcnt(0)")
        else:
            g.e("s_waitcnt lgkmcnt(0)")
        if st == 2: g.stamp()
        if g2 and st == 2:
            g.e(f"s_cmp_eq_u32 s{S_N}, 17")
            g.e(f"s_cbranch_scc1 x2_{tag}")
        g.barrier()
    if g2:
        g.e(f"s_cmp_lg_u32 s{S_N}, 9")
        g.e(f"s_cbranch_scc1 x2_{tag}")
        for kk in range(32, 36): g.e(fragread(kk))
        g.e("s_waitcnt lgkmcnt(0)")
        g.lab(f"x2_{tag}")
    for k in range(32, 36):
        if not o.get("nomfma"): g.e(mfma(k))
    if o.get("prio", 1): g.e("s_setprio 0")

def gelu_list(o):
    L = []
    if o.get("nogelu"):
        for i in range(8):
            L.append(f"v_cvt_pk_bf16_f32 v{PK+i}, v{ACC+2*i}, v{ACC+2*i+1}")
            if i % 4 == 3:
                L.append(f"ds_write_b128 v{V_HW}, v[{PK+i-3}:{PK+i}] offset:{(16*ASTR if M16 else 32)*(i//4)}")
        return L
    for b in range(4):
        x = [ACC + 4*b + i for i in range(4)]
        t = [GT + 4*(b % 2) + i for i in range(4)]
        for i in range(4): L.append(f"v_mul_f32 v{t[i]}, v{x[i]}, v{x[i]}")
        for i in range(4): L.append(f"v_fma_f32 v{t[i]}, v{t[i]}, s{S_GC2}, v{V_C1}")
        for i in range(4): L.append(f"v_mul_f32 v{t[i]}, v{t[i]}, v{x[i]}")
        for i in range(4): L.append(f"v_exp_f32 v{t[i]}, v{t[i]}")
        for i in range(4): L.append(f"v_add_f32 v{t[i]}, 1.0, v{t[i]}")
        for i in range(4): L.append(f"v_rcp_f32 v{t[i]}, v{t[i]}")
        for i in range(4): L.append(f"v_mul_f32 v{t[i]}, v{t[i]}, v{x[i]}")
        p = PK + 2*b
        L.append(f"v_cvt_pk_bf16_f32 v{p}, v{t[0]}, v{t[1]}")
        L.append(f"v_cvt_pk_bf16_f32 v{p+1}, v{t[2]}, v{t[3]}")
        if b % 2 == 1:
            L.append(f"ds_write_b128 v{V_HW}, v[{p-2}:{p+1}] offset:{(16*ASTR if M16 else 32)*(b//2)}")
    return L

def bias_reads(tbl):
    L = [f"s_lshl_b32 s{S_T2}, s{S_C2}, 1",
         f"v_add_u32 v{V_T}, s{S_T2}, v{V_BI}"]
    for q in range(4):
        L.append(f"ds_read_b128 v[{ACC+4*q}:{ACC+4*q+3}], v{V_T} offset:{tbl - TBL1 + ((q%2)*64 if M16 else 32*q)}")
    return L

def weave(g, work, dmas, spread):
    n = len(dmas)
    m = int(len(work) * spread)
    pos = [(i * m) // n for i in range(n)] if n else []
    di = 0
    for i in range(len(work) + 1):
        while di < n and pos[di] == i:
            for x in dmas[di]: g.e(x)
            di += 1
        if i < len(work): g.e(work[i])

def advance(g):
    g.e(f"s_mov_b32 s{S_C0}, s{S_C2}")
    nextcol(g, S_C1, S_C2)
    nextcol(g, S_C2, S_C1)
    g.e(f"s_add_u32 s{S_N}, s{S_N}, 2")

def w1col(g, dst, c):
    g.e(f"s_add_u32 s{dst}, s{c}, s{S_W1B}")

def off_gelu(g, srcs, frags, tbl):
    o = g.o
    sp = o.get("spread", 0.7)
    gl = gelu_list(o)
    n1 = int(len(gl) * 0.26); n2 = int(len(gl) * 0.66)
    parts = [gl[:n1], gl[n1:n2], gl[n2:]]
    if frags:
        fr = [fragread(k) for k in range(28)]
        def mix(a, b):
            r = [];
            for i in range(max(len(a), len(b))):
                if i < len(a): r.append(a[i])
                if i < len(b): r.append(b[i])
            return r
        parts = [parts[0] + fr[:6], mix(parts[1], fr[6:18]), mix(parts[2], fr[18:])]
    cols = [S_C1, S_C2, S_C2]
    stg = [2, 0, 1]
    for iv in range(3):
        sc = cols[iv]
        if not srcs[iv]:
            w1col(g, S_T2, sc); sc = S_T2
        d = dma_stage(g, stg[iv], srcs[iv], sc)
        w = parts[iv]
        if iv == 0:
            for x in d[0] + d[1]: g.e(x)
            g.e("s_nop 7")
            g.e("s_nop 3")
            d = d[2:]
        weave(g, w, d, sp)
        if iv == 2:
            for x in bias_reads(tbl): g.e(x)
            g.e(f"v_add_u32 v{V_HW}, 256, v{V_HW}")
            advance(g)
        if iv == 0:
            pass
        else:
            g.e("s_waitcnt vmcnt(6)" + (" lgkmcnt(0)" if iv == 2 else ""))
        g.barrier()

def cvt_list():
    L = []
    for i in range(8):
        L.append(f"v_cvt_pk_bf16_f32 v{PK+i}, v{ACC+2*i}, v{ACC+2*i+1}")
    L.append("s_nop 1")
    if M16:
        L = []
        for a in range(2):
            for t in range(2):
                for i in range(2):
                    c = ACC + 8*t + 4*a + 2*i
                    L.append(f"v_cvt_pk_bf16_f32 v{PK+4*a+2*t+i}, v{c}, v{c+1}")
        L.append("s_nop 1")
        for a in range(2):
            L.append(f"v_permlane16_swap_b32 v{PK+4*a}, v{PK+4*a+2}")
            L.append(f"v_permlane16_swap_b32 v{PK+4*a+1}, v{PK+4*a+3}")
        return L
    for h in range(2):
        L.append(f"v_permlane32_swap_b32 v{PK+4*h}, v{PK+4*h+2}")
        L.append(f"v_permlane32_swap_b32 v{PK+4*h+1}, v{PK+4*h+3}")
    return L

def stores(g):
    fl = g.o.get("stflags", "")
    g.e(f"s_lshl_b32 s{S_T2}, s{S_C0}, 11")
    g.e(f"s_add_u32 s{S_T2}, s{S_T2}, s{S_PB}")
    g.e(f"s_add_u32 s{S_T}, s{S_T2}, 65536")
    g.e(f"buffer_store_dwordx4 v[{PK}:{PK+3}], v{V_ST}, s[{S_WS}:{S_WS+3}], s{S_T2} offen {fl}")
    g.e(f"buffer_store_dwordx4 v[{PK+4}:{PK+7}], v{V_ST}, s[{S_WS}:{S_WS+3}], s{S_T} offen {fl}")

def off_store(g, last):
    cols = [S_C1, S_C2, S_C2]
    stg = [2, 0, 1]
    for iv in range(3):
        d = dma_stage(g, stg[iv], True, cols[iv])
        for x in d:
            for y in x: g.e(y)
        if iv == 0:
            g.e("s_nop 3")
            for x in cvt_list(): g.e(x)
            if last:
                stores(g)
                g.barrier()
                return
            for x in bias_reads(TBL2): g.e(x)
        if iv == 1:
            g.e("s_waitcnt vmcnt(6)")
        if iv == 2:
            stores(g)
            advance(g)
            g.e("s_waitcnt vmcnt(8) lgkmcnt(0)")
        g.barrier()

def finish(g):
    if g.o.get("stamps"):
        g.stamp()
        g.rstamp(63)
        g.e(f"s_lshl_b32 s{S_T}, s2, 11")
        g.e(f"s_add_u32 s{S_T}, s{S_T}, {STAMP_OFF}")
        g.e(f"v_lshlrev_b32 v{V_T}, 2, v{V_TID}")
        g.e(f"buffer_store_dword v{V_STAMP}, v{V_T}, s[{S_WS}:{S_WS+3}], s{S_T} offen")
        if g.o.get("dbgst"):
            g.e(f"s_load_dwordx2 s[{S_K}:{S_K+1}], s[0:1], 96")
            g.e(f"s_mov_b32 s{S_K+2}, 256")
            g.e(f"v_readlane_b32 s{S_T}, v{V_STAMP}, 62")
            g.e(f"s_not_b32 s{S_T}, s{S_T}")
            g.e(f"v_writelane_b32 v{V_STAMP}, s{S_T}, 62")
            g.e(f"v_sub_u32 v{V_T}, 63, v{V_LANE}")
            g.e(f"v_lshlrev_b32 v{V_T}, 2, v{V_T}")
            g.e(f"v_bfrev_b32 v{V_T2}, 1")
            g.e(f"v_cmp_gt_u32 vcc, 62, v{V_LANE}")
            g.e(f"v_cndmask_b32 v{V_T}, v{V_T}, v{V_T2}, vcc")
            g.e("s_waitcnt lgkmcnt(0)")
            g.e(f"buffer_atomic_umax v{V_STAMP}, v{V_T}, s[{S_K}:{S_K+3}], 0 offen")
            g.e(f"v_subrev_u32 v{V_T}, {256+28}, v{V_TID}")
            g.e(f"v_lshlrev_b32 v{V_T}, 2, v{V_T}")
            g.e(f"v_cmp_gt_u32 vcc, 8, v{V_T}")
            g.e(f"v_cndmask_b32 v{V_T}, v{V_T}, v{V_T2}, vcc")
            g.e(f"s_cmp_eq_u32 s2, 17")
            g.e(f"s_cselect_b32 s{S_K+2}, 64, 0")
            g.e(f"buffer_store_dword v{V_STAMP}, v{V_T}, s[{S_K}:{S_K+3}], 0 offen")
    g.e("s_endpgm")

def bf16round(g, v):
    g.e(f"v_cvt_pk_bf16_f32 v{v}, v{v}, v{v}")
    g.e(f"v_and_b32 v{v}, 0xffff0000, v{v}")

def gen_k1(name, opt):
    g = G(opt); o = opt
    e = g.e
    g.L.append(f".globl {name}\n.p2align 8\n.type {name},@function\n{name}:")
    e("s_cmp_ge_u32 s2, 256")
    e(f"s_cbranch_scc1 {name}_exit")
    if o.get("stamps"):
        e(f"s_mov_b32 s{S_SI}, 0"); e(f"v_mov_b32 v{V_STAMP}, 0")
        g.rstamp(62)
        g.stamp()
    e(f"s_load_dwordx2 s[{S_Q}:{S_Q+1}], s[0:1], 0")
    e(f"s_load_dwordx2 s[{S_W1}:{S_W1+1}], s[0:1], 56")
    e(f"s_load_dwordx2 s[{S_B1}:{S_B1+1}], s[0:1], 64")
    e(f"s_load_dwordx2 s[{S_W2}:{S_W2+1}], s[0:1], 72")
    e(f"s_load_dwordx2 s[{S_B2}:{S_B2+1}], s[0:1], 80")
    e(f"s_load_dwordx2 s[{S_WS}:{S_WS+1}], s[0:1], 104")
    e(f"s_load_dwordx2 s[{S_K}:{S_K+1}], s[0:1], 8")
    e(f"s_load_dwordx2 s[{S_V}:{S_V+1}], s[0:1], 16")
    e(f"s_load_dwordx2 s[{S_SH}:{S_SH+1}], s[0:1], 24")
    e(f"s_getpc_b64 s[{S_PC}:{S_PC+1}]")
    g.lab(f"{name}_pc")
    e(f"v_lshlrev_b32 v{V_T}, 7, v{V_TID}")
    e(f"v_min_u32 v{V_T}, {name}_exit-{name}_pc, v{V_T}")
    if o.get("codepf", 1):
        e(f"global_load_dword v{V_T2}, v{V_T}, s[{S_PC}:{S_PC+1}]")
    e(f"v_lshrrev_b32 v{V_T}, 6, v{V_TID}")
    e(f"v_and_b32 v{V_LANE}, 63, v{V_TID}")
    e(f"v_readfirstlane_b32 s{S_W}, v{V_T}")
    e(f"s_and_b32 s{S_J}, s2, 7")
    e(f"s_lshr_b32 s{S_RB}, s2, 3")
    srd(g, S_Q, 2359296); srd(g, S_W1, 5308416); srd(g, S_W2, 5308416); srd(g, S_B1, 9216)
    srd(g, S_WS, 268435456)
    srd(g, S_K, 2359296); srd(g, S_V, 2359296); srd(g, S_SH, 4608)
    e(f"s_cmp_eq_u32 s{S_J}, 0")
    e(f"s_cselect_b32 s{S_B2+2}, 1152, 0")
    e(f"s_mov_b32 s{S_B2+3}, 0x00020000")
    e(f"v_lshrrev_b32 v{LT}, 3, v{V_TID}")
    e(f"v_and_b32 v{LT+1}, 7, v{V_TID}")
    e(f"v_mul_u32_u24 v{LT+2}, 1152, v{LT}")
    e(f"v_lshl_add_u32 v{LT+2}, v{LT+1}, 4, v{LT+2}")
    e(f"s_mul_i32 s{S_T2}, s{S_RB}, {64*1152}")
    e(f"s_and_b32 s{S_QW}, s{S_W}, 3")
    e(f"s_lshr_b32 s{S_GRP}, s{S_W}, 2")
    e(f"s_lshl_b32 s{S_M0B}, s{S_QW}, 11")
    if o.get("rot", 1):
        e(f"s_mul_i32 s{S_T}, s{S_RB}, 57")
        e(f"s_lshr_b32 s{S_T}, s{S_T}, 9")
        e(f"s_mul_i32 s{S_T}, s{S_T}, 9")
        e(f"s_sub_u32 s{S_ROT}, s{S_RB}, s{S_T}")
    else:
        e(f"s_mov_b32 s{S_ROT}, 0")
    e(f"s_mul_i32 s{S_W1B}, s{S_J}, 1152")
    e(f"v_lshrrev_b32 v{LT+3}, 3, v{V_LANE}")
    e(f"s_lshl_b32 s{S_T}, s{S_QW}, 4")
    e(f"v_add_u32 v{LT+3}, s{S_T}, v{LT+3}")
    if M16:
        e(f"v_lshrrev_b32 v{LT+4}, 3, v{V_LANE}")
        e(f"v_and_b32 v{LT+4}, 6, v{LT+4}")
    else:
        e(f"v_lshrrev_b32 v{LT+4}, 2, v{V_LANE}")
        e(f"v_and_b32 v{LT+4}, 4, v{LT+4}")
    e(f"v_xor_b32 v{LT+4}, v{LT+4}, v{LT+1}")
    e(f"v_lshlrev_b32 v{LT+4}, 4, v{LT+4}")
    e(f"v_mul_u32_u24 v{V_O1A}, 9216, v{LT+3}")
    e(f"v_add_u32 v{V_O1A}, v{V_O1A}, v{LT+4}")
    e(f"v_add_u32 v{V_O1B}, {8*9216-1024}, v{V_O1A}")
    e(f"s_lshl_b32 s{S_C2}, s{S_ROT}, 7")
    e("s_waitcnt lgkmcnt(0)")
    for i in range(9):
        e(f"buffer_load_dwordx4 v[{XR+4*i}:{XR+4*i+3}], v{LT+2}, s[{S_Q}:{S_Q+3}], s{S_T2} offen offset:{128*i}")
    e(f"v_lshlrev_b32 v{LT+5}, 2, v{V_TID}")
    e(f"buffer_load_dword v{LT+6}, v{LT+5}, s[{S_B1}:{S_B1+3}], s{S_W1B} offen")
    e(f"buffer_load_dword v{LT+7}, v{LT+5}, s[{S_B2}:{S_B2+3}], 0 offen")
    w1col(g, S_C0, S_C2)
    e(f"s_mul_i32 s{S_T}, s{S_GRP}, {64*9216}")
    e(f"s_add_u32 s{S_C0}, s{S_C0}, s{S_T}")
    e(f"s_lshl_b32 s{S_T}, s{S_GRP}, 13")
    e(f"s_add_u32 s{S_M0B}, s{S_M0B}, s{S_T}")
    for u in (0, 2, 4, 6):
        for x in dma_unit(g, u, False, S_C0):
            for y in x: e(y)
    e(f"s_cmp_eq_u32 s{S_GRP}, 1")
    e(f"s_cbranch_scc1 {name}_skip8")
    for x in dma_unit(g, 8, False, S_C0):
        for y in x: e(y)
    g.lab(f"{name}_skip8")
    e(f"s_lshl_b32 s{S_M0B}, s{S_QW}, 11")
    e(f"s_mul_i32 s{S_T}, s{S_J}, {576*1152}")
    e(f"s_mul_i32 s{S_T2}, s{S_RB}, 20736")
    e(f"s_add_u32 s{S_T2}, s{S_T2}, s{S_T}")
    e(f"v_lshlrev_b32 v{V_T}, 7, v{V_TID}")
    e(f"v_min_u32 v{V_T}, {161*128}, v{V_T}")
    if o.get("w2pf", 1):
        e(f"buffer_load_dword v{V_T2}, v{V_T}, s[{S_W2}:{S_W2+3}], s{S_T2} offen")
    npost = 1 if o.get("w2pf", 1) else 0
    e(f"s_mul_i32 s{S_T2}, s{S_ROT}, {64*1152}")
    for u in range(9):
        e(f"s_add_u32 s{S_ROW+u}, s{S_T}, s{S_T2}")
        if u < 8:
            e(f"s_add_u32 s{S_T2}, s{S_T2}, {64*1152}")
            e(f"s_cmp_eq_u32 s{S_T2}, {9*64*1152}")
            e(f"s_cselect_b32 s{S_T2}, 0, s{S_T2}")
    e(f"v_mul_u32_u24 v{V_O2A}, 1152, v{LT+3}")
    e(f"v_add_u32 v{V_O2A}, v{V_O2A}, v{LT+4}")
    e(f"v_add_u32 v{V_O2B}, {8*1152-1024}, v{V_O2A}")
    if M16:
        e(f"v_lshrrev_b32 v{LT+8}, 4, v{V_LANE}")
        e(f"v_lshrrev_b32 v{LT+9}, 2, v{V_LANE}")
        e(f"v_lshlrev_b32 v{V_TR0}, 7, v{LT+9}")
        e(f"s_lshr_b32 s{S_T2}, s{S_QW}, 1")
        e(f"s_and_b32 s{S_T}, s{S_QW}, 2")
        e(f"v_bfe_u32 v{LT+9}, v{V_LANE}, 3, 2")
        e(f"v_xor_b32 v{LT+9}, s{S_T}, v{LT+9}")
        e(f"v_lshl_add_u32 v{V_TR0}, v{LT+9}, 5, v{V_TR0}")
        e(f"v_and_b32 v{LT+9}, 3, v{V_LANE}")
        e(f"v_lshl_add_u32 v{V_TR0}, v{LT+9}, 3, v{V_TR0}")
        e(f"v_add_u32 v{V_TR1}, {12*4096}, v{V_TR0}")
        e(f"s_and_b32 s{S_T}, s{S_QW}, 1")
        e(f"s_mul_i32 s{S_T}, s{S_T}, {32*ASTR}")
        e(f"s_add_u32 s{S_T}, s{S_T}, {ACT}")
        e(f"v_and_b32 v{LT+9}, 15, v{V_LANE}")
        e(f"v_mul_u32_u24 v{V_FR}, {ASTR}, v{LT+9}")
        e(f"v_lshl_add_u32 v{V_FR}, v{LT+8}, 4, v{V_FR}")
        e(f"v_add_u32 v{V_FR}, s{S_T}, v{V_FR}")
    else:
        e(f"v_lshrrev_b32 v{LT+8}, 5, v{V_LANE}")
        e(f"v_bfe_u32 v{LT+9}, v{V_LANE}, 2, 2")
        e(f"v_lshl_add_u32 v{LT+10}, v{LT+8}, 2, v{LT+9}")
        e(f"v_lshlrev_b32 v{V_TR0}, 7, v{LT+10}")
        e(f"s_lshr_b32 s{S_T2}, s{S_QW}, 1")
        e(f"v_bfe_u32 v{LT+9}, v{V_LANE}, 3, 1")
        e(f"v_xor_b32 v{LT+9}, s{S_T2}, v{LT+9}")
        e(f"v_lshl_add_u32 v{V_TR0}, v{LT+9}, 6, v{V_TR0}")
        e(f"v_bfe_u32 v{LT+9}, v{V_LANE}, 4, 1")
        e(f"v_lshl_add_u32 v{V_TR0}, v{LT+9}, 5, v{V_TR0}")
        e(f"v_and_b32 v{LT+9}, 3, v{V_LANE}")
        e(f"v_lshl_add_u32 v{V_TR0}, v{LT+9}, 3, v{V_TR0}")
        e(f"v_add_u32 v{V_TR1}, {24*2048}, v{V_TR0}")
        e(f"s_and_b32 s{S_T}, s{S_QW}, 1")
        e(f"s_mul_i32 s{S_T}, s{S_T}, {32*ASTR}")
        e(f"s_add_u32 s{S_T}, s{S_T}, {ACT}")
        e(f"v_and_b32 v{LT+9}, 31, v{V_LANE}")
        e(f"v_mul_u32_u24 v{V_FR}, {ASTR}, v{LT+9}")
        e(f"v_lshl_add_u32 v{V_FR}, v{LT+8}, 4, v{V_FR}")
        e(f"v_add_u32 v{V_FR}, s{S_T}, v{V_FR}")
    e(f"s_lshl_b32 s{S_T}, s{S_T2}, 6")
    e(f"s_lshl_b32 s{S_C0}, s{S_GRP}, 7")
    e(f"s_add_u32 s{S_T}, s{S_T}, s{S_C0}")
    e(f"v_add_u32 v{V_HW}, s{S_T}, v{V_FR}")
    e(f"s_lshl_b32 s{S_T}, s{S_T2}, 7")
    e(f"s_add_u32 s{S_T}, s{S_T}, {TBL1}")
    e(f"v_lshlrev_b32 v{V_BI}, 4, v{LT+8}")
    e(f"v_add_u32 v{V_BI}, s{S_T}, v{V_BI}")
    e(f"v_and_b32 v{V_ST}, 31, v{V_LANE}")
    e(f"v_lshlrev_b32 v{V_ST}, 4, v{V_ST}")
    e(f"v_lshrrev_b32 v{LT+9}, 5, v{V_LANE}")
    e(f"v_lshl_add_u32 v{V_ST}, v{LT+9}, 15, v{V_ST}")
    e(f"s_mul_i32 s{S_PB}, s{S_J}, {72*32768}")
    e(f"s_lshl_b32 s{S_T}, s{S_T2}, 17")
    e(f"s_add_u32 s{S_PB}, s{S_PB}, s{S_T}")
    e(f"s_lshl_b32 s{S_T}, s{S_RB}, 10")
    e(f"s_add_u32 s{S_PB}, s{S_PB}, s{S_T}")
    e(f"s_and_b32 s{S_T}, s{S_QW}, 1")
    e(f"s_lshl_b32 s{S_T}, s{S_T}, 9")
    e(f"s_add_u32 s{S_PB}, s{S_PB}, s{S_T}")
    c1 = 2.0 * math.sqrt(2.0 / math.pi) * math.log2(math.e)
    e(f"v_mov_b32 v{V_C1}, 0x{f32bits(-c1):08x}")
    e(f"s_mov_b32 s{S_GC2}, 0x{f32bits(-c1*0.044715):08x}")
    if M16:
        e(f"v_mul_u32_u24 v{LT+2}, {ASTR}, v{LT}")
        e(f"v_bfe_u32 v{LT+9}, v{V_LANE}, 2, 1")
        e(f"v_lshl_add_u32 v{LT+2}, v{LT+9}, 6, v{LT+2}")
        e(f"v_and_b32 v{LT+9}, 1, v{V_LANE}")
        e(f"v_lshl_add_u32 v{LT+2}, v{LT+9}, 5, v{LT+2}")
        e(f"v_bfe_u32 v{LT+9}, v{V_LANE}, 1, 1")
        e(f"v_lshl_add_u32 v{LT+2}, v{LT+9}, 3, v{LT+2}")
        e(f"v_add_u32 v{LT+2}, {ACT}, v{LT+2}")
    else:
        e(f"v_mul_u32_u24 v{LT+2}, {ASTR}, v{LT}")
        e(f"v_lshrrev_b32 v{LT+9}, 1, v{LT+1}")
        e(f"v_lshl_add_u32 v{LT+2}, v{LT+9}, 5, v{LT+2}")
        e(f"v_and_b32 v{LT+9}, 1, v{LT+1}")
        e(f"v_lshl_add_u32 v{LT+2}, v{LT+9}, 3, v{LT+2}")
        e(f"v_add_u32 v{LT+2}, {ACT}, v{LT+2}")
    SA, SB, QA, QB, ONE = LT+10, LT+11, LT+12, LT+13, LT+14
    for r in (SA, SB, QA, QB): e(f"v_mov_b32 v{r}, 0")
    e(f"v_mov_b32 v{ONE}, 0x3f803f80")
    ndma = 0 if o.get("nodma") else 8
    for i in range(9):
        e(f"s_waitcnt vmcnt({8 - i + 2 + ndma + npost})")
        if i == 0: g.stamp()
        for c in range(4):
            x = XR + 4*i + c
            e(f"v_dot2c_f32_bf16 v{SA if c%2==0 else SB}, v{x}, v{ONE}")
            e(f"v_dot2c_f32_bf16 v{QA if c%2==0 else QB}, v{x}, v{x}")
    e("s_nop 2")
    e(f"v_add_f32 v{SA}, v{SA}, v{SB}")
    e(f"v_add_f32 v{QA}, v{QA}, v{QB}")
    for dpp in ("quad_perm:[1,0,3,2]", "quad_perm:[2,3,0,1]", "row_half_mirror"):
        e("s_nop 0")
        e(f"v_add_f32 v{SA}, v{SA}, v{SA} {dpp} row_mask:0xf bank_mask:0xf")
        e(f"v_add_f32 v{QA}, v{QA}, v{QA} {dpp} row_mask:0xf bank_mask:0xf")
    inv = f"0x{f32bits(1.0/576.0):08x}"
    e(f"v_mul_f32 v{SA}, {inv}, v{SA}")
    e(f"v_mul_f32 v{QA}, {inv}, v{QA}")
    e(f"v_fma_f32 v{QA}, -v{SA}, v{SA}, v{QA}")
    e(f"v_max_f32 v{QA}, 0, v{QA}")
    bf16round(g, SA)
    bf16round(g, QA)
    e(f"v_add_f32 v{QA}, 0x{f32bits(1e-5):08x}, v{QA}")
    bf16round(g, QA)
    e(f"v_sqrt_f32 v{QA}, v{QA}")
    e("s_nop 0")
    bf16round(g, QA)
    e(f"v_rcp_f32 v{QA}, v{QA}")
    e("s_nop 0")
    e(f"v_mul_f32 v{QB}, v{SA}, v{QA}")
    e(f"v_xor_b32 v{SA}, 0x80000000, v{QB}")
    assert SA % 2 == 0 and QA % 2 == 0
    T0 = LT + 16
    for i in range(9):
        t = T0 + 8*(i % 2)
        for c in range(4):
            x = XR + 4*i + c
            e(f"v_lshlrev_b32 v{t+2*c}, 16, v{x}")
            e(f"v_and_b32 v{t+2*c+1}, 0xffff0000, v{x}")
        for c in range(4):
            e(f"v_pk_fma_f32 v[{t+2*c}:{t+2*c+1}], v[{t+2*c}:{t+2*c+1}], v[{QA}:{QA+1}], v[{SA}:{SA+1}] op_sel_hi:[1,0,0]")
        for c in range(4):
            x = XR + 4*i + c
            e(f"v_cvt_pk_bf16_f32 v{x}, v{t+2*c}, v{t+2*c+1}")
        x = XR + 4*i
        e(f"ds_write2_b64 v{LT+2}, v[{x}:{x+1}], v[{x+2}:{x+3}] offset0:{16*i} offset1:{16*i+2}")
    e(f"s_waitcnt vmcnt({ndma + npost})")
    e(f"v_lshlrev_b32 v{T0}, 16, v{LT+6}")
    e(f"v_and_b32 v{T0+1}, 0xffff0000, v{LT+6}")
    e(f"v_lshlrev_b32 v{T0+2}, 16, v{LT+7}")
    e(f"v_and_b32 v{T0+3}, 0xffff0000, v{LT+7}")
    e(f"v_lshlrev_b32 v{LT+5}, 3, v{V_TID}")
    e(f"v_add_u32 v{LT+5}, {TBL1}, v{LT+5}")
    e(f"ds_write_b64 v{LT+5}, v[{T0}:{T0+1}]")
    e(f"ds_write_b64 v{LT+5}, v[{T0+2}:{T0+3}] offset:4096")
    e(f"v_mov_b32 v{T0+4}, v{QA}")
    e(f"v_mov_b32 v{T0+5}, v{SA}")
    e(f"v_xor_b32 v{V_TR2}, 32, v{V_TR0}")
    e(f"v_xor_b32 v{V_TR3}, 32, v{V_TR1}")
    g.stamp()
    e(f"v_or_b32 v{LT+1}, s{S_J}, v{LT+1}")
    e(f"v_lshlrev_b32 v{LT+1}, 28, v{LT+1}")
    e(f"v_lshl_add_u32 v{LT+1}, v{LT}, 3, v{LT+1}")
    e(f"s_lshl_b32 s{S_T}, s{S_RB}, 9")
    e(f"s_add_u32 s{S_T}, s{S_T}, {STAT_OFF}")
    e(f"s_waitcnt vmcnt({npost}) lgkmcnt(0)")
    e(f"buffer_store_dwordx2 v[{T0+4}:{T0+5}], v{LT+1}, s[{S_WS}:{S_WS+3}], s{S_T} offen")
    g.stamp()
    g.barrier()
    e(f"s_cmp_eq_u32 s{S_GRP}, 1")
    e(f"s_cbranch_scc1 {name}_p0")
    for x in bias_reads(TBL1): e(x)
    for k in range(36): e(fragread(k))
    e(f"s_mov_b32 s{S_N}, -2")
    advance(g)
    g.lab(f"{name}_loop1")
    mphase(g, False, name + "_m1")
    e(f"s_cmp_ge_u32 s{S_N}, 7")
    e(f"s_cbranch_scc1 {name}_trans")
    off_gelu(g, [False]*3, False, TBL1)
    e(f"s_branch {name}_loop1")
    g.lab(f"{name}_p0")
    nextcol(g, S_C2, S_C2)
    g.barrier()
    for iv in (1, 2):
        w1col(g, S_T2, S_C2)
        d = dma_stage(g, iv - 1, False, S_T2)
        w = [fragread(k) for k in range(18*(iv-1), 18*iv)]
        weave(g, w, d, 0.7)
        if iv == 2:
            for x in bias_reads(TBL1): e(x)
            e(f"s_mov_b32 s{S_N}, -1")
            advance(g)
            e("s_waitcnt vmcnt(6) lgkmcnt(0)")
        g.barrier()
    e(f"s_branch {name}_loop1")
    g.lab(f"{name}_trans")
    e(f"s_cmp_eq_u32 s{S_N}, 8")
    e(f"s_cbranch_scc1 {name}_p2b")
    off_gelu(g, [False, True, True], True, TBL2)
    e(f"s_branch {name}_loop2e")
    g.lab(f"{name}_p2b")
    off_gelu(g, [True, True, True], True, TBL2)
    g.lab(f"{name}_loop2e")
    kv_addr(g)
    e(f"buffer_load_dword v{V_T2}, v{V_ST}, s[{S_B1}:{S_B1+3}], 0 offen")
    e(f"buffer_load_dword v{V_T2}, v{V_ST}, s[{S_B1}:{S_B1+3}], 0 offen")
    g.lab(f"{name}_loop2")
    mphase(g, True, name + "_m2")
    e(f"s_cmp_ge_u32 s{S_N}, 16")
    e(f"s_cbranch_scc1 {name}_tail")
    off_store(g, False)
    e(f"s_branch {name}_loop2")
    g.lab(f"{name}_tail")
    e(f"s_cmp_eq_u32 s{S_N}, 17")
    e(f"s_cbranch_scc1 {name}_p4")
    kv_shift_load(g)
    off_store(g, True)
    kl = kv_compute(g)
    ks = o.get("kvsplit", 60)
    e("s_waitcnt vmcnt(8)")
    for x in kl[:ks]: e(x)
    e("s_waitcnt vmcnt(2)")
    g.barrier()
    for x in kl[ks:]: e(x)
    finish(g)
    g.lab(f"{name}_p4")
    e("s_nop 7"); e("s_nop 3")
    for x in cvt_list(): e(x)
    stores(g)
    finish(g)
    g.lab(f"{name}_exit")
    e("s_endpgm")
    desc = f""".amdhsa_kernel {name}
  .amdhsa_next_free_vgpr {NVGPR+144}
  .amdhsa_next_free_sgpr 96
  .amdhsa_accum_offset {NVGPR}
  .amdhsa_group_segment_fixed_size 0
  .amdhsa_kernarg_size 112
  .amdhsa_user_sgpr_count 2
  .amdhsa_user_sgpr_kernarg_segment_ptr 1
  .amdhsa_system_sgpr_workgroup_id_x 1
.end_amdhsa_kernel"""
    return "\n".join(g.L) + "\n", desc

KN = "parallel_sum__ssm_conv_h3__dense_activation_gelu__prompt_kernel"
def setmode(opt):
    global M16, ASTR, TBL1, TBL2, LDS_K1
    M16 = bool(opt.get("m16", 1))
    ASTR = 1184 if M16 else 1168
    TBL1 = ACT + 64 * ASTR; TBL2 = TBL1 + 4096; LDS_K1 = TBL2 + 4096

def single(opt):
    setmode(opt)
    body, desc = gen_k1(KN, opt)
    return (f"; @launch grid=(256,1,1) block=(512,1,1) lds={LDS_K1}\n"
            '.amdgcn_target "amdgcn-amd-amdhsa--gfx950"\n.text\n' + body +
            '.section .rodata,"a"\n.p2align 6\n' + desc + "\n")

if __name__ == "__main__":
    import sys, json
    opt = json.loads(sys.argv[2]) if len(sys.argv) > 2 else {}
    open(sys.argv[1], "w").write(single(opt))
```

```python
PART_OFF = 0
KVT_OFF = 20 << 20
STAT_OFF = 24 << 20
STAMP2_OFF = 40 << 20
JOBS = [[(0, 6), (27, 32)], [(6, 11), (22, 27)], [(11, 22)]]
WSTR = 8704
YOFF = 8 * WSTR
LDS_K2 = YOFF + 11 * 2048

V_TID = 0; V_LANE = 1; V_AF = 2; V_BF = 3; V_KV = 4; V_YW = 5; V_YR = 6; V_T = 7
V_R = [8, 9]
V_X = [10, 11]
V_S = [12, 13]
V_STAMP = 14; V_T2 = 15
AF = 16
ACC = 80
BB = 128
NB = 6
LD = [152, 192]
SUM = [232, 240]
XN = 248
NV = 256
S_Q = 4; S_KF = 8; S_WS = 12; S_OUT = 16; S_DP = 20
S_G = 22; S_PART = 23; S_W = 24; S_T = 25; S_T2 = 26; S_D = 27; S_LO = 28; S_HI = 29
S_PJ = 32
S_H2 = 40; S_SI = 41; S_TM = 42; S_PC = 46; S_CH = 48

class G:
    def __init__(self, opt):
        self.L = []; self.o = opt
    def e(self, s): self.L.append("  " + s)
    def lab(self, s): self.L.append(s + ":")
    def stamp(self):
        if not self.o.get("stamps"): return
        self.e(f"s_memtime s[{S_TM}:{S_TM+1}]")
        self.e(f"s_memrealtime s[{S_TM+2}:{S_TM+3}]")
        self.e("s_waitcnt lgkmcnt(0)")
        self.e(f"s_mov_b32 m0, s{S_SI}")
        self.e(f"s_add_u32 s{S_SI}, s{S_SI}, 1")
        self.e(f"v_writelane_b32 v{V_STAMP}, s{S_TM}, m0")
        self.e(f"s_add_u32 m0, m0, 30")
        self.e(f"s_nop 0")
        self.e(f"v_writelane_b32 v{V_STAMP}, s{S_TM+2}, m0")
    def rstamp(self, lane):
        if not self.o.get("stamps"): return
        self.e(f"s_memrealtime s[{S_TM}:{S_TM+1}]")
        self.e("s_waitcnt lgkmcnt(0)")
        self.e(f"v_writelane_b32 v{V_STAMP}, s{S_TM}, {lane}")

def srd(g, s, nrec):
    g.e(f"s_mov_b32 s{s+2}, {nrec}")
    g.e(f"s_mov_b32 s{s+3}, 0x00020000")

def sum_list(r, nafter):
    L = []
    b = LD[r]; x = b + 32; st = b + 36; s = SUM[r]
    L.append(f"s_waitcnt vmcnt({nafter + 8})")
    for c in range(4):
        L.append(f"v_lshlrev_b32 v{s+2*c}, 16, v{x+c}")
        L.append(f"v_and_b32 v{s+2*c+1}, 0xffff0000, v{x+c}")
    return L

def part_list(r, nafter):
    L = []
    b = LD[r]; s = SUM[r]
    for j in range(8):
        L.append(f"s_waitcnt vmcnt({nafter + 7 - j})")
        for c in range(4):
            L.append(f"v_dot2c_f32_bf16 v{s+2*c}, s{S_LO}, v{b+4*j+c}")
            L.append(f"v_dot2c_f32_bf16 v{s+2*c+1}, s{S_HI}, v{b+4*j+c}")
    return L

def conv_job(g, job, extra_work):
    o = g.o
    tiles = []; allt = []; prev = {}
    for a, b in job:
        if a > 0: allt.append(a - 1)
        for t in range(a, b):
            tiles.append(t); allt.append(t)
    ai = {t: ACC + 4*i for i, t in enumerate(allt)}
    tmax = max(allt)
    M = []
    for n in range(tmax, -1, -1):
        ts = [t for t in allt if t >= n and (t - n) % 2 == 0]
        ts.sort()
        for t in ts: M.append((t, n, (t - n)//2))
    order = []
    for (t, n, be) in M:
        for f in (("B", n), ("A", be)):
            if f not in order: order.append(f)
    bslot = {}
    nb = 0
    for f in order:
        if f[0] == "B":
            bslot[f[1]] = BB + 4*(nb % NB); nb += 1
    lastuse = {}
    for i, (t, n, be) in enumerate(M): lastuse[n] = i
    bl = [f[1] for f in order if f[0] == "B"]
    def reads(f):
        if f[0] == "A":
            r = AF + 4*f[1]; off = 256*f[1]
            return [f"ds_read_b64_tr_b16 v[{r}:{r+1}], v{V_AF} offset:{off}",
                    f"ds_read_b64_tr_b16 v[{r+2}:{r+3}], v{V_AF} offset:{off+32}"]
        r = bslot[f[1]]; off = 128*f[1] + 32
        return [f"ds_read_b64_tr_b16 v[{r}:{r+1}], v{V_BF} offset:{off}",
                f"ds_read_b64_tr_b16 v[{r+2}:{r+3}], v{V_BF} offset:{off-32}"]
    issued = 0
    MAXF = o.get("ahead", 6)
    started = set()
    ew = list(extra_work)
    w0 = int(len(M) * o.get("wstart", 0.5))
    nslots = len(M) - w0
    waited = -1
    for i, (t, n, be) in enumerate(M):
        need = max(order.index(("B", n)), order.index(("A", be)))
        while issued < len(order) and issued <= need + MAXF:
            f = order[issued]
            if f[0] == "B":
                k = bl.index(f[1])
                if k >= NB and lastuse[bl[k - NB]] >= i:
                    break
            for x in reads(f): g.e(x)
            issued += 1
        assert issued > need
        if need > waited:
            g.e(f"s_waitcnt lgkmcnt({min(15, 2*(issued - 1 - need))})")
            waited = need
        a = ai[t]; bs = bslot[n]; af = AF + 4*be
        c = f"v[{a}:{a+3}]" if t in started else "0"
        started.add(t)
        g.e(f"v_mfma_f32_16x16x32_bf16 v[{a}:{a+3}], v[{bs}:{bs+3}], v[{af}:{af+3}], {c}")
        if i >= w0 and ew:
            k = -(-len(ew) // (len(M) - i))
            for x in ew[:k]: g.e(x)
            ew = ew[k:]
    assert not ew
    g.e("s_nop 7")
    KVV = AF + 48
    for i, t in enumerate(tiles):
        g.e(f"ds_read_u16 v{KVV+i}, v{V_KV} offset:{128*t}")
    H2 = AF; H1 = AF + 12; Y = AF + 24
    idx = {t: i for i, t in enumerate(allt)}
    m = "row_mask:0xf bank_mask:0xf"
    def level(dst, src, zc, ts):
        for t in ts:
            if t in tiles and t > 0:
                g.e(f"v_add_f32 v{dst+idx[t]}, v{src(t-1)}, v{ai[t]+zc} wave_ror:1 row_mask:0x1 bank_mask:0x1")
        for t in ts:
            bc = "" if (t in tiles and t > 0) else " bound_ctrl:0"
            g.e(f"v_add_f32 v{dst+idx[t]}, v{src(t)}, v{ai[t]+zc} wave_shr:1 {m}{bc}")
    level(H2, lambda t: ai[t] + 3, 2, allt)
    g.e("s_waitcnt lgkmcnt(0)")
    for i, t in enumerate(tiles):
        g.e(f"v_dot2c_f32_bf16 v{ai[t]}, s{S_D}, v{KVV+i}")
    level(H1, lambda t: H2 + idx[t], 1, allt)
    level(Y, lambda t: H1 + idx[t], 0, tiles)
    for i, t in enumerate(tiles):
        g.e(f"ds_write_b32 v{V_YW}, v{Y+idx[t]} offset:{2048*i}")

def final(g, r):
    b = LD[r]; x = b + 32; st = b + 36; s = SUM[r]
    y = b
    for c in range(4):
        g.e(f"ds_read2st64_b32 v[{y+2*c}:{y+2*c+1}], v{V_YR} offset0:{64*r + 2*c} offset1:{64*r + 2*c + 1}")
    for c in range(4):
        g.e(f"v_lshlrev_b32 v{XN+2*c}, 16, v{x+c}")
        g.e(f"v_and_b32 v{XN+2*c+1}, 0xffff0000, v{x+c}")
    for c in range(4):
        g.e(f"v_pk_fma_f32 v[{XN+2*c}:{XN+2*c+1}], v[{XN+2*c}:{XN+2*c+1}], v[{st}:{st+1}], v[{st}:{st+1}] op_sel:[0,0,1] op_sel_hi:[1,0,1]")
    for c in range(4):
        g.e(f"s_waitcnt lgkmcnt({3-c})")
        g.e(f"v_pk_fma_f32 v[{s+2*c}:{s+2*c+1}], v[{XN+2*c}:{XN+2*c+1}], v[{y+2*c}:{y+2*c+1}], v[{s+2*c}:{s+2*c+1}]")
    for c in range(4):
        g.e(f"v_cvt_pk_bf16_f32 v{x+c}, v{s+2*c}, v{s+2*c+1}")
    g.e(f"buffer_store_dwordx4 v[{x}:{x+3}], v{V_X[r]}, s[{S_OUT}:{S_OUT+3}], 0 offen")

def gen_k2(name, opt):
    g = G(opt); o = opt; e = g.e
    g.L.append(f".globl {name}\n.p2align 8\n.type {name},@function\n{name}:")
    e("s_cmp_ge_u32 s2, 216")
    e(f"s_cbranch_scc1 {name}_exit")
    if o.get("stamps"):
        e(f"s_mov_b32 s{S_SI}, 0"); e(f"v_mov_b32 v{V_STAMP}, 0")
        g.rstamp(62)
        g.stamp()
    e(f"s_load_dwordx2 s[{S_KF}:{S_KF+1}], s[0:1], 32")
    e(f"s_load_dwordx2 s[{S_WS}:{S_WS+1}], s[0:1], 104")
    e(f"s_load_dwordx2 s[{S_Q}:{S_Q+1}], s[0:1], 0")
    e(f"s_load_dwordx2 s[{S_DP}:{S_DP+1}], s[0:1], 40")
    e(f"s_load_dwordx2 s[{S_OUT}:{S_OUT+1}], s[0:1], 88")
    if o.get("codepf2", 1):
        e(f"s_getpc_b64 s[{S_PC}:{S_PC+1}]")
        g.lab(f"{name}_pc")
        e(f"v_lshlrev_b32 v{V_T}, 6, v{V_TID}")
        e(f"v_min_u32 v{V_T}, {name}_exit-{name}_pc, v{V_T}")
        e(f"global_load_dword v{V_T2}, v{V_T}, s[{S_PC}:{S_PC+1}]")
    e(f"v_lshrrev_b32 v{V_T}, 6, v{V_TID}")
    e(f"v_and_b32 v{V_LANE}, 63, v{V_TID}")
    e(f"v_readfirstlane_b32 s{S_W}, v{V_T}")
    e(f"s_lshr_b32 s{S_T}, s2, 3")
    e(f"s_mul_i32 s{S_PART}, s{S_T}, 57")
    e(f"s_lshr_b32 s{S_PART}, s{S_PART}, 9")
    e(f"s_and_b32 s{S_G}, s2, 7")
    e(f"s_sub_u32 s{S_G}, s{S_G}, s{S_PART}")
    e(f"s_mul_i32 s{S_G}, s{S_G}, 9")
    e(f"s_add_u32 s{S_G}, s{S_G}, s{S_T}")
    e(f"s_lshl_b32 s{S_CH}, s{S_G}, 3")
    e(f"s_add_u32 s{S_CH}, s{S_CH}, s{S_W}")
    srd(g, S_KF, 2359296); srd(g, S_WS, 268435456); srd(g, S_Q, 2359296); srd(g, S_OUT, 2359296)
    e(f"s_mul_i32 s{S_H2}, s{S_W}, {WSTR}")
    e(f"v_lshlrev_b32 v{V_T}, 4, v{V_LANE}")
    e(f"s_lshl_b32 s{S_T}, s{S_CH}, 12")
    e(f"s_add_u32 m0, s{S_H2}, 4608")
    e(f"s_add_u32 s{S_T2}, s{S_T}, {KVT_OFF}")
    e("s_waitcnt lgkmcnt(0)")
    for c in (3, 2, 1, 0):
        e(f"buffer_load_dwordx4 v{V_T}, s[{S_WS}:{S_WS+3}], s{S_T2} offen offset:{1024*c} lds")
    e(f"s_add_u32 m0, s{S_H2}, 256")
    e(f"s_lshl_b32 s{S_T2}, s{S_CH}, 1")
    for c in range(4):
        e(f"buffer_load_dwordx4 v{V_T}, s[{S_KF}:{S_KF+3}], s{S_T} offen offset:{1024*c} lds")
    e(f"s_and_b32 s{S_T2}, s{S_T2}, -4")
    e(f"s_load_dword s{S_D}, s[{S_DP}:{S_DP+1}], s{S_T2}")
    info = []
    for job in JOBS:
        a0 = job[0][0]; l0 = job[0][1] - job[0][0]
        a1 = job[1][0] - l0 if len(job) > 1 else a0
        n = sum(b - a for a, b in job)
        info.append(a0 | (l0 << 8) | (a1 << 16) | (n << 24))
    e(f"s_mov_b32 s{S_T}, {info[0]}")
    e(f"s_cmp_eq_u32 s{S_PART}, 1")
    e(f"s_cselect_b32 s{S_T}, {info[1]}, s{S_T}")
    e(f"s_cmp_eq_u32 s{S_PART}, 2")
    e(f"s_cselect_b32 s{S_T}, {info[2]}, s{S_T}")
    e(f"s_bfe_u32 s{S_LO}, s{S_T}, {8 | (8 << 16)}")
    e(f"s_bfe_u32 s{S_HI}, s{S_T}, {16 | (8 << 16)}")
    e(f"s_and_b32 s{S_T2}, s{S_T}, 255")
    e(f"s_cmp_lt_u32 s{S_W}, s{S_LO}")
    e(f"s_cselect_b32 s{S_T2}, s{S_T2}, s{S_HI}")
    e(f"s_add_u32 s{S_T2}, s{S_T2}, s{S_W}")
    e(f"s_lshl_b32 s{S_T2}, s{S_T2}, 6")
    e(f"v_add_u32 v{V_T2+0 if False else V_KV}, s{S_T2}, v{V_LANE}")
    e(f"s_lshl_b32 s{S_LO}, s{S_G}, 4")
    e(f"v_lshlrev_b32 v{V_R[0]}, 4, v{V_KV}")
    e(f"v_mul_u32_u24 v{V_X[0]}, 1152, v{V_KV}")
    e(f"v_add_u32 v{V_X[0]}, s{S_LO}, v{V_X[0]}")
    e(f"v_lshlrev_b32 v{V_S[0]}, 3, v{V_KV}")
    e(f"s_lshl_b32 s{S_PJ}, s{S_G}, 15")
    for j in range(1, 8):
        e(f"s_add_u32 s{S_PJ+j}, s{S_PJ+j-1}, {72*32768}")
    e(f"s_mov_b32 s{S_T2}, {STAT_OFF}")
    def loads(r):
        b = LD[r]
        e(f"buffer_load_dwordx2 v[{b+36}:{b+37}], v{V_S[r]}, s[{S_WS}:{S_WS+3}], s{S_T2} offen")
        e(f"buffer_load_dwordx4 v[{b+32}:{b+35}], v{V_X[r]}, s[{S_Q}:{S_Q+3}], 0 offen")
        for j in range(8):
            e(f"buffer_load_dwordx4 v[{b+4*j}:{b+4*j+3}], v{V_R[r]}, s[{S_WS}:{S_WS+3}], s{S_PJ+j} offen " + o.get("ldflags", ""))
    loads(0)
    e(f"s_add_u32 s{S_HI}, s{S_HI}, s{S_W}")
    e(f"s_lshl_b32 s{S_HI}, s{S_HI}, 6")
    e(f"s_add_u32 s{S_HI}, s{S_HI}, 512")
    e(f"v_add_u32 v{V_KV}, s{S_HI}, v{V_LANE}")
    e(f"v_lshlrev_b32 v{V_R[1]}, 4, v{V_KV}")
    e(f"v_mul_u32_u24 v{V_X[1]}, 1152, v{V_KV}")
    e(f"v_add_u32 v{V_X[1]}, s{S_LO}, v{V_X[1]}")
    e(f"v_lshlrev_b32 v{V_S[1]}, 3, v{V_KV}")
    e(f"s_lshr_b32 s{S_T}, s{S_T}, 24")
    e(f"s_sub_u32 s{S_T}, s{S_T}, 8")
    e(f"s_cmp_lt_u32 s{S_W}, s{S_T}")
    e(f"s_cselect_b32 s{S_G}, 0, 0x80000000")
    for v in (V_R[1], V_X[1], V_S[1]):
        e(f"v_or_b32 v{v}, s{S_G}, v{v}")
    loads(1)
    e(f"v_mov_b32 v{V_T}, 0")
    e(f"v_lshlrev_b32 v{V_YW}, 2, v{V_LANE}")
    e(f"v_add_u32 v{V_KV}, s{S_H2}, v{V_YW}")
    e(f"ds_write2st64_b32 v{V_KV}, v{V_T}, v{V_T} offset0:0 offset1:17")
    e(f"s_lshl_b32 s{S_T}, s{S_W}, 11")
    e(f"s_add_u32 s{S_T}, s{S_T}, {YOFF}")
    e(f"v_add_u32 v{V_YR}, s{S_T}, v{V_YW}")
    e(f"s_lshl_b32 s{S_T}, s{S_W}, 8")
    e(f"s_add_u32 s{S_T}, s{S_T}, {YOFF}")
    e(f"v_add_u32 v{V_YW}, s{S_T}, v{V_YW}")
    e(f"s_add_u32 s{S_T}, s{S_H2}, 4608")
    e(f"v_lshlrev_b32 v{V_KV}, 1, v{V_LANE}")
    e(f"v_add_u32 v{V_KV}, s{S_T}, v{V_KV}")
    e(f"v_lshrrev_b32 v{V_T}, 4, v{V_LANE}")
    e(f"v_lshlrev_b32 v{V_T}, 3, v{V_T}")
    e(f"v_bfe_u32 v{V_AF}, v{V_LANE}, 2, 2")
    e(f"v_add_u32 v{V_T}, v{V_T}, v{V_AF}")
    e(f"v_and_b32 v{V_BF}, 3, v{V_LANE}")
    e(f"v_add_u32 v{V_AF}, v{V_T}, v{V_BF}")
    e(f"v_lshlrev_b32 v{V_AF}, 3, v{V_AF}")
    e(f"s_add_u32 s{S_T}, s{S_H2}, {256 - 24}")
    e(f"v_add_u32 v{V_AF}, s{S_T}, v{V_AF}")
    e(f"v_lshlrev_b32 v{V_BF}, 2, v{V_BF}")
    e(f"v_sub_u32 v{V_BF}, v{V_BF}, v{V_T}")
    e(f"v_lshlrev_b32 v{V_BF}, 3, v{V_BF}")
    e(f"s_add_u32 s{S_T}, s{S_H2}, {4608 + 24 - 32}")
    e(f"v_add_u32 v{V_BF}, s{S_T}, v{V_BF}")
    e(f"s_mov_b32 s{S_LO}, 0x3f80")
    e(f"s_mov_b32 s{S_HI}, 0x3f800000")
    e("s_waitcnt lgkmcnt(0)")
    e(f"s_and_b32 s{S_T}, s{S_CH}, 1")
    e(f"s_lshl_b32 s{S_T}, s{S_T}, 4")
    e(f"s_lshr_b32 s{S_D}, s{S_D}, s{S_T}")
    e(f"s_and_b32 s{S_D}, s{S_D}, 0xffff")
    g.stamp()
    e("s_waitcnt vmcnt(20)")
    g.stamp()
    e(f"s_cmp_eq_u32 s{S_PART}, 1")
    e(f"s_cbranch_scc1 {name}_j1")
    e(f"s_cmp_eq_u32 s{S_PART}, 2")
    e(f"s_cbranch_scc1 {name}_j2")
    ew = sum_list(0, 10) + part_list(0, 10)
    for p in range(3):
        if p: g.lab(f"{name}_j{p}")
        conv_job(g, JOBS[p], ew)
        if p < 2: e(f"s_branch {name}_fin")
    g.lab(f"{name}_fin")
    g.stamp()
    e(f"s_cmp_lg_u32 s{S_G}, 0")
    e(f"s_cbranch_scc1 {name}_f1")
    for x in sum_list(1, 0) + part_list(1, 0): e(x)
    g.lab(f"{name}_f1")
    e("s_waitcnt lgkmcnt(0)")
    g.stamp()
    e("s_barrier")
    final(g, 0)
    e(f"s_cmp_lg_u32 s{S_G}, 0")
    e(f"s_cbranch_scc1 {name}_f2")
    final(g, 1)
    g.lab(f"{name}_f2")
    if o.get("stamps"):
        g.stamp()
        e("s_waitcnt vmcnt(0)")
        g.stamp()
        g.rstamp(63)
        e(f"s_lshl_b32 s{S_T}, s2, 11")
        e(f"s_add_u32 s{S_T}, s{S_T}, {STAMP2_OFF}")
        e(f"v_lshlrev_b32 v{V_T}, 2, v{V_TID}")
        e(f"buffer_store_dword v{V_STAMP}, v{V_T}, s[{S_WS}:{S_WS+3}], s{S_T} offen")
        if o.get("dbg2"):
            e(f"s_load_dwordx2 s[{S_KF}:{S_KF+1}], s[0:1], 96")
            e(f"s_mov_b32 s{S_T}, {(32 << 20) + 17*2048 + 4*256 + 30*4}")
            e(f"buffer_load_dword v{V_T2}, v{V_T}, s[{S_WS}:{S_WS+3}], s{S_T} offen")
            e(f"v_readlane_b32 s{S_T}, v{V_STAMP}, 62")
            e(f"v_readlane_b32 s{S_T2}, v{V_STAMP}, 63")
            e("s_waitcnt vmcnt(0) lgkmcnt(0)")
            e(f"v_writelane_b32 v{V_T2}, s{S_T}, 14")
            e(f"v_writelane_b32 v{V_T2}, s{S_T2}, 15")
            e(f"v_readlane_b32 s{S_T}, v{V_T2}, 0")
            e(f"s_cmp_eq_u32 s2, 0")
            e(f"s_cselect_b32 s{S_KF+2}, 64, 0")
            e(f"v_subrev_u32 v{V_T2}, s{S_T}, v{V_T2}")
            e(f"buffer_store_dword v{V_T2}, v{V_T}, s[{S_KF}:{S_KF+3}], 0 offen")
    g.lab(f"{name}_exit")
    e("s_endpgm")
    desc = f""".amdhsa_kernel {name}
  .amdhsa_next_free_vgpr {NV}
  .amdhsa_next_free_sgpr 96
  .amdhsa_accum_offset {NV}
  .amdhsa_group_segment_fixed_size 0
  .amdhsa_kernarg_size 112
  .amdhsa_user_sgpr_count 2
  .amdhsa_user_sgpr_kernarg_segment_ptr 1
  .amdhsa_system_sgpr_workgroup_id_x 1
.end_amdhsa_kernel"""
    return "\n".join(g.L) + "\n", desc
```

```python
import struct, math
def f32bits(x): return struct.unpack("<I", struct.pack("<f", x))[0]

RING1 = 0
RING2 = 73728
ACT = RING2
ASTR = 1184
HBUF = 147456
HSTR = 160
TBL = HBUF + 64 * HSTR
LDS_SZ = TBL + 4096
PART_OFF = 0
STAMP_OFF = 32 << 20
KVT_OFF = 20 << 20
STAT_OFF = 24 << 20
FLAG_OFF = 25 << 20
RDY_OFF = 26 << 20
EPO_OFF = 27 << 20
XG_OFF = 28 << 20
XGR = 128
JOBS = [[(0, 6), (27, 32)], [(6, 11), (22, 27)], [(11, 22)]]
WSTR = 8704
SPIN = 1 << 15

V_TID = 0; V_LANE = 1
V_TR = [2, 3, 4, 5]
V_H = 6
V_FR = 7; V_BO = 12; V_C1 = 9
V_O1A = 7; V_O1B = 8; V_O2A = 9; V_O2B = 10; V_ST = 11
V_STAMP = 13; V_T = 14; V_T2 = 15
ACC = [16, 32]
WB = 48
GT = 80; PK = 88
BI = 96; BR = 104
BIG = 112
XR = 16
LT = 52
KA0 = 108; KA1 = 109; KA2 = 110; KST = 111
KR = 16
VR = 38
KSH = 54
KC = 62
KF = 70
KAC = 92

S_Q = 4; S_W1 = 8; S_W2 = 12; S_B1 = 16; S_WS = 24
S_J = 28; S_RB = 29; S_ROT = 30; S_W = 31; S_QW = 32; S_M0B = 33
S_C1 = 34; S_C1N = 35; S_R2 = 36; S_R2N = 37; S_N = 38; S_T = 39; S_T2 = 40; S_GC2 = 41
S_W1E = 42; S_R2E = 43
S_COL = 44
S_PB = 53; S_SI = 54; S_GRP = 55
S_PC = 56
S_TM = 58
S_K = 64; S_V = 68; S_SH = 72; S_KVO = 76
S_G = 77; S_PART = 78; S_INFO = 79
S_OUT = 80; S_KF = 84; S_DBG = 88; S_DP = 92; S_BP = 94; S_DR = 20; S_B2 = 96
S_FLG = 62; S_ONES = 63; S_TOK = 3
S_BV = 64; S_LO = 72; S_HI = 73
S_D = 64; S_D2 = 65; S_H2 = 66; S_CH = 67
V_L0 = 3; V_RDY = 5; V_L4 = 12
V_AF = 2; V_BF = 3; V_KV = 4; V_YW = 5
AF = 112; CACC = 176; BB = 224; NB = 6
V_R = [64, 65, 66]; V_X = [67, 68, 69]; V_S = [70, 71, 72]; V_FA = 73; V_YR = 74
LD = [112, 152, 192]; SUM = [232, 240, 248]; XN = 16

class G:
    def __init__(self, opt):
        self.L = []; self.o = opt
        self.lds = []; self.nvm = 0
    def e(self, s):
        self.L.append("  " + s)
        if s.startswith("ds_"): self.lds.append(None)
        if s.startswith("buffer_") or s.startswith("global_"): self.nvm += 1
    def tag(self, t): self.lds[-1] = t
    def lab(self, s): self.L.append(s + ":")
    def stamp(self):
        if not self.o.get("stamps"): return
        self.e(f"s_memtime s[{S_TM}:{S_TM+1}]")
        self.e(f"s_memrealtime s[{S_TM+2}:{S_TM+3}]")
        self.e("s_waitcnt lgkmcnt(0)")
        self.e(f"s_mov_b32 m0, s{S_SI}")
        self.e(f"s_add_u32 s{S_SI}, s{S_SI}, 1")
        self.e(f"v_writelane_b32 v{V_STAMP}, s{S_TM}, m0")
        self.e(f"s_add_u32 m0, m0, 30")
        self.e(f"s_nop 0")
        self.e(f"v_writelane_b32 v{V_STAMP}, s{S_TM+2}, m0")
    def rstamp(self, lane):
        if not self.o.get("stamps"): return
        self.e(f"s_memrealtime s[{S_TM}:{S_TM+1}]")
        self.e("s_waitcnt lgkmcnt(0)")
        self.e(f"v_writelane_b32 v{V_STAMP}, s{S_TM}, {lane}")
    def endstage(self, vm=True, stamp=False, bar=True, keep=0, hook=None):
        w = f"lgkmcnt({keep})"
        if vm: w = f"vmcnt({self.nvm}) " + w
        self.e("s_waitcnt " + w)
        if hook: hook()
        if stamp: self.stamp()
        if bar: self.e("s_barrier")
        self.lds = []; self.nvm = 0

def srd(g, s, nrec):
    g.e(f"s_mov_b32 s{s+2}, {nrec}")
    g.e(f"s_mov_b32 s{s+3}, 0x00020000")

def wrap_add(dst, src, inc, end, start):
    return [f"s_add_u32 s{dst}, s{src}, {inc}",
            f"s_cmp_eq_u32 s{dst}, s{end}",
            f"s_cselect_b32 s{dst}, {start}, s{dst}"]

def dma_unit(g, u, w2, sreg):
    L = [f"s_add_u32 m0, s{S_M0B}, {(RING2 if w2 else RING1) + u*8192}"]
    if w2:
        L.append(f"s_add_u32 s{S_T}, s{S_COL+u}, s{sreg}")
        a, b, s = V_O2A, V_O2B, S_W2
    else:
        L.append(f"s_add_u32 s{S_T}, s{sreg}, {u*64*9216}")
        a, b, s = V_O1A, V_O1B, S_W1
    d1 = f"buffer_load_dwordx4 v{a}, s[{s}:{s+3}], s{S_T} offen lds"
    d2 = f"buffer_load_dwordx4 v{b}, s[{s}:{s+3}], s{S_T} offen offset:1024 lds"
    if g.o.get("nodma"): return [L, []]
    return [L + [d1], [d2]]

def dma_third(g, th, w2, sreg):
    R = []
    for u in range(3*th, 3*th+3): R += dma_unit(g, u, w2, sreg)
    return R

def wslot(par, k): return WB + 4*((k + 4*par) % 8)

def mfma(grp, par, k, first=False):
    if k < 0:
        k += 36; par ^= 1
    b = wslot(par, k)
    ks, a = k // 2, k % 2
    L = []
    for t in ((0, 1) if a == 0 else (1, 0)):
        if grp == "A":
            c = ACC[par] + 8*t + 4*a
            f = BIG + 8*ks + 4*t
            src = BI + 4*a if ks == 0 else c
        else:
            c = BIG + 16*(ks // 2) + 8*t + 4*a
            f = ACC[par] + 8*(ks % 2) + 4*t
            src = c
        L.append(f"v_mfma_f32_16x16x32_bf16 v[{c}:{c+3}], v[{b}:{b+3}], v[{f}:{f+3}], v[{src}:{src+3}]")
    return L

def trread(par, k):
    b = wslot(par, k)
    ks, a = k // 2, k % 2
    if ks < 12: v, off = V_TR[a], ks*4096
    else: v, off = V_TR[2+a], (ks-12)*4096
    return [f"ds_read_b64_tr_b16 v[{b}:{b+1}], v{v} offset:{off}",
            f"ds_read_b64_tr_b16 v[{b+2}:{b+3}], v{v} offset:{off+2048}"]

def fragread(k):
    return f"ds_read_b128 v[{BIG+4*k}:{BIG+4*k+3}], v{V_FR} offset:{(k//2)*64 + (k%2)*16*ASTR}"

def hread(par, k):
    r = ACC[par] + 4*k
    return f"ds_read_b128 v[{r}:{r+3}], v{V_H} offset:{(k//2)*64 + (k%2)*16*HSTR}"

def stage_seq(st, lead=True, body=True):
    b = 12*st
    if not body:
        return [("M", b-4), ("M", b-3), ("M", b-2), ("M", b-1)]
    if lead:
        s = [("M", b-4), ("R", b), ("R", b+1), ("M", b-3), ("R", b+2), ("R", b+3), ("M", b-2), ("R", b+4), ("R", b+5),
             ("M", b-1), ("R", b+6)]
    else:
        s = [("R", b+k) for k in range(7)]
    for k in range(5): s += [("M", b+k), ("R", b+7+k)]
    s += [("M", b+5), ("M", b+6), ("M", b+7)]
    return s

def emit_stage(g, grp, par, seq, work, need=None):
    o = g.o
    slot = [0]
    for x in work.get(-1, []): put(g, x)
    def M(x):
        if not (o.get("nomfma") or o.get("nomfmaA")): g.e(x)
    def W():
        for x in work.get(slot[0], []): put(g, x)
        slot[0] += 1
    done = set()
    pend = None
    def wait(tags):
        idx = [i for i, t in enumerate(g.lds) if t in tags]
        if not idx: return
        n = len(g.lds) - 1 - max(idx)
        g.e(f"s_waitcnt lgkmcnt({min(n, 15)})")
        for i in range(max(idx) + 1): g.lds[i] = None
    for idx, (t, k) in enumerate(seq):
        if t == "R":
            rr = trread(par, k)
            if o.get("noread") or o.get("noreadA"):
                continue
            nxtR = idx + 1 < len(seq) and seq[idx+1][0] == "R"
            if pend is not None:
                if nxtR:
                    g.e(rr[0]); g.e(rr[1]); g.tag(k); W(); M(pend); W()
                else:
                    g.e(rr[0]); W(); M(pend); g.e(rr[1]); g.tag(k); W()
                pend = None
            else:
                g.e(rr[0]); g.e(rr[1]); g.tag(k)
        else:
            if pend is not None:
                W(); M(pend); W(); pend = None
            tags = [k]
            if need and k in need: tags += need[k]
            if k in g.lds and (k + 1) in g.lds and o.get("w2", 1):
                i = g.lds.index(k)
                if len(g.lds) - i >= 9 and sum(1 for x in g.lds[:i]) >= 2: tags.append(k + 1)
            wait(tags)
            mm = mfma(grp, par, k)
            M(mm[0]); pend = mm[1]
    if pend is not None:
        W(); M(pend); W()
    for s in sorted(work):
        if s >= slot[0]:
            for x in work[s]: put(g, x)

def put(g, x):
    if isinstance(x, tuple):
        g.e(x[0]); g.tag(x[1])
    else: g.e(x)

def spread(items, s0, s1, work):
    n = len(items)
    for i, it in enumerate(items):
        s = s0 + (i * (s1 - s0)) // n
        work.setdefault(s, []).extend(it if isinstance(it, list) else [it])

def split3(work):
    R = [{}, {}, {}]
    for s, l in work.items():
        if s < 0: R[0].setdefault(-1, []).extend(l)
        else: R[min(s // 24, 2)].setdefault(s - 24*min(s // 24, 2), []).extend(l)
    return R

def gelu_list(o, par):
    L = []
    A = ACC[par]
    for b in range(4):
        x = [A + 4*b + i for i in range(4)]
        t = [GT + 4*(b % 2) + i for i in range(4)]
        p = PK + 2*b
        if o.get("nogelu"):
            L.append(f"v_cvt_pk_bf16_f32 v{p}, v{x[0]}, v{x[1]}")
            L.append(f"v_cvt_pk_bf16_f32 v{p+1}, v{x[2]}, v{x[3]}")
        else:
            for i in range(4): L.append(f"v_mul_f32 v{t[i]}, v{x[i]}, v{x[i]}")
            for i in range(4): L.append(f"v_fma_f32 v{t[i]}, v{t[i]}, s{S_GC2}, v{V_C1}")
            for i in range(4): L.append(f"v_mul_f32 v{t[i]}, v{t[i]}, v{x[i]}")
            for i in range(4): L.append(f"v_exp_f32 v{t[i]}, v{t[i]}")
            for i in range(4): L.append(f"v_add_f32 v{t[i]}, 1.0, v{t[i]}")
            for i in range(4): L.append(f"v_rcp_f32 v{t[i]}, v{t[i]}")
            for i in range(4): L.append(f"v_mul_f32 v{t[i]}, v{t[i]}, v{x[i]}")
            L.append(f"v_cvt_pk_bf16_f32 v{p}, v{t[0]}, v{t[1]}")
            L.append(f"v_cvt_pk_bf16_f32 v{p+1}, v{t[2]}, v{t[3]}")
        if b % 2 == 1:
            L.append(f"ds_write_b128 v{V_H}, v[{p-2}:{p+1}] offset:{16*HSTR*(b//2)}")
    return L

def bias_read():
    return [f"v_add_u32 v{V_T}, s{S_C1}, v{V_BO}",
            f"ds_read_b128 v[{BI}:{BI+3}], v{V_T}",
            f"ds_read_b128 v[{BI+4}:{BI+7}], v{V_T} offset:64",
            f"s_add_u32 s{S_C1}, s{S_C1}, 256",
            f"s_cmp_eq_u32 s{S_C1}, 2304",
            f"s_cselect_b32 s{S_C1}, 0, s{S_C1}"]

def a_block(g, par, first=False):
    o = g.o
    work = {}
    if first:
        work[-1] = bias_read() + [(fragread(k), ("f", k)) for k in range(4)]
        spread([[(fragread(k), ("f", k))] for k in range(4, 36)], 0, 12, work)
        need = {k: [("f", 2*(k//2)), ("f", 2*(k//2)+1)] for k in range(8)}
        emit_stage(g, "A", par, stage_seq(0, lead=False), work, need)
        g.nvm = 4
        g.endstage(stamp=True)
        for st in (1, 2):
            emit_stage(g, "A", par, stage_seq(st), {18: bias_read()} if st == 1 else {})
            g.endstage(vm=(st == 1))
        return
    work[18] = bias_read()
    gl = gelu_list(o, par ^ 1)
    h = [i for i, x in enumerate(gl) if x.startswith("ds_write")]
    ws_ = o.get("wslot", 18)
    gv = [x for x in gl if not x.startswith("ds_write")]
    g0 = o.get("g0", 10); g1 = 48 + ws_
    spread(gv, g0, g1, work)
    assert g0 + ((h[0] - 1) * (g1 - g0)) // len(gv) < 24 + ws_
    if not o.get("nohw"):
        work.setdefault(24 + ws_, []).insert(0, gl[h[0]])
        work.setdefault(48 + ws_, []).insert(0, gl[h[1]])
    ws = split3(work)
    for st in range(3):
        emit_stage(g, "A", par, stage_seq(st), ws[st])
        g.endstage(vm=False, stamp=(st == o.get("sst", 0)), keep=(1 if st and not o.get("nohw") else 0))

def conv_job(g, job, name):
    o = g.o
    tiles = []; allt = []
    for a, b in job:
        if a > 0: allt.append(a - 1)
        for t in range(a, b):
            tiles.append(t); allt.append(t)
    ai = {t: CACC + 4*i for i, t in enumerate(allt)}
    tmax = max(allt)
    M = []
    for n in range(tmax, -1, -1):
        ts = [t for t in allt if t >= n and (t - n) % 2 == 0]
        ts.sort()
        for t in ts: M.append((t, n, (t - n)//2))
    order = []
    for (t, n, be) in M:
        for f in (("B", n), ("A", be)):
            if f not in order: order.append(f)
    bslot = {}
    nb = 0
    for f in order:
        if f[0] == "B":
            bslot[f[1]] = BB + 4*(nb % NB); nb += 1
    lastuse = {}
    for i, (t, n, be) in enumerate(M): lastuse[n] = i
    bl = [f[1] for f in order if f[0] == "B"]
    def reads(f):
        if f[0] == "A":
            r = AF + 4*f[1]; off = 256*f[1]
            return [f"ds_read_b64_tr_b16 v[{r}:{r+1}], v{V_AF} offset:{off}",
                    f"ds_read_b64_tr_b16 v[{r+2}:{r+3}], v{V_AF} offset:{off+32}"]
        r = bslot[f[1]]; off = 128*f[1] + 32
        return [f"ds_read_b64_tr_b16 v[{r}:{r+1}], v{V_BF} offset:{off}",
                f"ds_read_b64_tr_b16 v[{r+2}:{r+3}], v{V_BF} offset:{off-32}"]
    issued = 0
    MAXF = o.get("ahead", 6)
    started = set()
    waited = -1
    bars = o.get("cbar", [6, 18, 30])
    for i, (t, n, be) in enumerate(M):
        need = max(order.index(("B", n)), order.index(("A", be)))
        while issued < len(order) and issued <= need + MAXF:
            f = order[issued]
            if f[0] == "B":
                k = bl.index(f[1])
                if k >= NB and lastuse[bl[k - NB]] >= i:
                    break
            for x in reads(f): g.e(x)
            issued += 1
        assert issued > need
        if i in bars:
            g.e(f"s_cbranch_vccnz {name}_{i}")
            g.e("s_barrier")
            g.lab(f"{name}_{i}")
        if need > waited:
            g.e(f"s_waitcnt lgkmcnt({min(15, 2*(issued - 1 - need))})")
            waited = need
        a = ai[t]; bs = bslot[n]; af = AF + 4*be
        c = f"v[{a}:{a+3}]" if t in started else "0"
        started.add(t)
        g.e(f"v_mfma_f32_16x16x32_bf16 v[{a}:{a+3}], v[{bs}:{bs+3}], v[{af}:{af+3}], {c}")
    KVV = 16
    for i, t in enumerate(tiles):
        g.e(f"ds_read_u16 v{KVV+i}, v{V_KV} offset:{128*t}")
    g.e("s_nop 3")
    H2 = 28; H1 = 40; Y = 52
    idx = {t: i for i, t in enumerate(allt)}
    m = "row_mask:0xf bank_mask:0xf"
    def level(dst, src, zc, ts):
        for t in ts:
            if t in tiles and t > 0:
                g.e(f"v_add_f32 v{dst+idx[t]}, v{src(t-1)}, v{ai[t]+zc} wave_ror:1 row_mask:0x1 bank_mask:0x1")
        for t in ts:
            bc = "" if (t in tiles and t > 0) else " bound_ctrl:0"
            g.e(f"v_add_f32 v{dst+idx[t]}, v{src(t)}, v{ai[t]+zc} wave_shr:1 {m}{bc}")
    level(H2, lambda t: ai[t] + 3, 2, allt)
    g.e("s_waitcnt lgkmcnt(0)")
    for i, t in enumerate(tiles):
        g.e(f"v_dot2c_f32_bf16 v{ai[t]}, s{S_D}, v{KVV+i}")
    level(H1, lambda t: H2 + idx[t], 1, allt)
    level(Y, lambda t: H1 + idx[t], 0, tiles)
    for i, t in enumerate(tiles):
        g.e(f"ds_write_b32 v{V_YW}, v{Y+idx[t]} offset:{256*i}")

def conv_loads(g):
    e = g.e
    fl = g.o.get("hotfl", "")
    e(f"s_mul_i32 s{S_H2}, s{S_W}, {WSTR}")
    e(f"s_lshl_b32 s{S_CH}, s{S_G}, 3")
    e(f"s_add_u32 s{S_CH}, s{S_CH}, s{S_W}")
    e(f"v_lshlrev_b32 v{V_T}, 4, v{V_LANE}")
    e(f"s_lshl_b32 s{S_T}, s{S_CH}, 12")
    for p in range(2):
        e(f"s_add_u32 m0, s{S_H2}, {4608 + 4*WSTR*p}")
        e(f"s_add_u32 s{S_T2}, s{S_T}, {KVT_OFF + 4*4096*p}")
        for c in (3, 2, 1, 0):
            e(f"buffer_load_dwordx4 v{V_T}, s[{S_WS}:{S_WS+3}], s{S_T2} offen offset:{1024*c} {fl} lds")
        e(f"s_add_u32 m0, s{S_H2}, {256 + 4*WSTR*p}")
        e(f"s_add_u32 s{S_T2}, s{S_T}, {4*4096*p}")
        for c in range(4):
            e(f"buffer_load_dwordx4 v{V_T}, s[{S_KF}:{S_KF+3}], s{S_T2} offen offset:{1024*c} lds")

def conv_setup(g):
    e = g.e
    e(f"v_mov_b32 v{V_T}, 0")
    e(f"v_lshlrev_b32 v{V_YW}, 2, v{V_LANE}")
    e(f"v_add_u32 v{V_YW}, s{S_H2}, v{V_YW}")
    e(f"ds_write2st64_b32 v{V_YW}, v{V_T}, v{V_T} offset0:0 offset1:17")
    e(f"ds_write2st64_b32 v{V_YW}, v{V_T}, v{V_T} offset0:136 offset1:153")
    e(f"s_add_u32 s{S_T}, s{S_H2}, 4608")
    e(f"v_lshlrev_b32 v{V_KV}, 1, v{V_LANE}")
    e(f"v_add_u32 v{V_KV}, s{S_T}, v{V_KV}")
    e(f"v_lshrrev_b32 v{V_T2}, 4, v{V_LANE}")
    e(f"v_lshlrev_b32 v{V_T2}, 3, v{V_T2}")
    e(f"v_bfe_u32 v{V_AF}, v{V_LANE}, 2, 2")
    e(f"v_add_u32 v{V_T2}, v{V_T2}, v{V_AF}")
    e(f"v_and_b32 v{V_BF}, 3, v{V_LANE}")
    e(f"v_add_u32 v{V_AF}, v{V_T2}, v{V_BF}")
    e(f"v_lshlrev_b32 v{V_AF}, 3, v{V_AF}")
    e(f"s_add_u32 s{S_T}, s{S_H2}, {256 - 24}")
    e(f"v_add_u32 v{V_AF}, s{S_T}, v{V_AF}")
    e(f"v_lshlrev_b32 v{V_BF}, 2, v{V_BF}")
    e(f"v_sub_u32 v{V_BF}, v{V_BF}, v{V_T2}")
    e(f"v_lshlrev_b32 v{V_BF}, 3, v{V_BF}")
    e(f"s_add_u32 s{S_T}, s{S_H2}, {4608 + 24 - 32}")
    e(f"v_add_u32 v{V_BF}, s{S_T}, v{V_BF}")
    e(f"s_lshl_b32 s{S_T}, s{S_W}, 4")
    e(f"s_lshr_b64 s[{S_DR}:{S_DR+1}], s[{S_DR}:{S_DR+1}], s{S_T}")
    e(f"s_lshr_b64 s[{S_DR+2}:{S_DR+3}], s[{S_DR+2}:{S_DR+3}], s{S_T}")
    e(f"s_and_b32 s{S_D}, s{S_DR}, 0xffff")
    e(f"s_and_b32 s{S_D2}, s{S_DR+2}, 0xffff")

def a_drain(g, name):
    e = g.e
    emit_stage(g, "A", 1, stage_seq(0, body=False), {})
    conv_loads(g)
    gl = gelu_list(g.o, 0)
    h = [i for i, x in enumerate(gl) if x.startswith("ds_write")][0]
    for x in gl[:h]: g.e(x)
    g.endstage(vm=False, stamp=True)
    for x in gl[h:-1]: g.e(x)
    g.endstage(vm=False)
    g.e(gl[-1])
    conv_setup(g)
    g.endstage(vm=False)
    e(f"s_cmp_eq_u32 s{S_PART}, 3")
    e(f"s_cbranch_scc1 {name}_anone")
    e("s_mov_b64 vcc, 0")
    e("s_waitcnt vmcnt(8)")
    g.stamp()
    g.lab(f"{name}_cloop")
    e(f"s_cmp_eq_u32 s{S_PART}, 1")
    e(f"s_cbranch_scc1 {name}_j1")
    e(f"s_cmp_eq_u32 s{S_PART}, 2")
    e(f"s_cbranch_scc1 {name}_j2")
    for p in range(3):
        if p: g.lab(f"{name}_j{p}")
        conv_job(g, JOBS[p], f"{name}_c{p}")
        if p < 2: e(f"s_branch {name}_cfin")
    g.lab(f"{name}_cfin")
    e(f"s_cbranch_vccnz {name}_cdone")
    g.stamp()
    e("s_mov_b64 vcc, -1")
    for v in (V_AF, V_BF, V_KV, V_YW): e(f"v_add_u32 v{v}, {4*WSTR}, v{v}")
    e(f"s_mov_b32 s{S_D}, s{S_D2}")
    e("s_waitcnt vmcnt(0)")
    e(f"s_branch {name}_cloop")
    g.lab(f"{name}_cdone")
    e("s_waitcnt lgkmcnt(0)")
    g.stamp()
    e("s_barrier")
    finish(g)
    g.lab(f"{name}_anone")
    e("s_waitcnt vmcnt(0)")
    e("s_barrier"); e("s_barrier"); e("s_barrier")
    finish(g)

HF = [16, 48]
WB2 = 80
def b_mfma(par, k):
    if k < 0:
        k += 18; par ^= 1
    b = WB2 + 4*(k % 6)
    L = []
    for t in range(4):
        c = BIG + 16*(k // 2) + 4*t
        f = HF[par] + 16*(k % 2) + 4*t
        L.append(f"v_mfma_f32_16x16x32_bf16 v[{c}:{c+3}], v[{b}:{b+3}], v[{f}:{f+3}], v[{c}:{c+3}]")
    return L

def b_read(k):
    b = WB2 + 4*(k % 6)
    if k < 12: v, off = V_TR[0], k*4096
    else: v, off = V_TR[2], (k-12)*4096
    return [f"ds_read_b64_tr_b16 v[{b}:{b+1}], v{v} offset:{off}",
            f"ds_read_b64_tr_b16 v[{b+2}:{b+3}], v{v} offset:{off+2048}"]

def b_hread(par, k):
    r = HF[par] + 4*k
    return f"ds_read_b128 v[{r}:{r+3}], v{V_H} offset:{(k//4)*64 + (k%4)*16*HSTR}"

def b_stage(g, par, st, work, tail=False):
    o = g.o
    b = 6*st
    rd = {}
    items = []
    if st == 0:
        items += [(b_hread(par, k), ("h", k)) for k in (1, 3)]
    for k in range(6):
        r = b_read(b + k)
        if st == 0 and k == 1: items += [(b_hread(par, kk), ("h", kk)) for kk in (5, 7)]
        if not (o.get("noread") or o.get("noreadB")): items += [(r[0], None, k), (r[1], b + k, k)]
    if st == 2 and not tail: items += [(b_hread(par ^ 1, k), None) for k in (0, 2, 4, 6)]
    rpm = o.get("brpm", 1)
    s = 0; n = 0
    for it in items:
        if len(it) == 3 and it[2] >= 4: s = max(s, 4*(it[2] - 4) + 3)
        rd.setdefault(s, []).append(it[:2])
        n += 1
        if n >= (2 if (st == 0 and s < 4) else rpm): s += 1; n = 0
    slot = 0
    def wait(tags):
        idx = [i for i, t in enumerate(g.lds) if t is not None and t in tags]
        if not idx: return
        n = len(g.lds) - 1 - max(idx)
        g.e(f"s_waitcnt lgkmcnt({min(n, 15)})")
        for i in range(max(idx) + 1): g.lds[i] = None
    for k in range(b - 2, b + (6 if tail else 4)):
        tags = [k]
        if k == 0: tags += [("h", i) for i in range(4)]
        if k == 1: tags += [("h", i) for i in range(4, 8)]
        wait(tags)
        for m in b_mfma(par, k):
            if not (o.get("nomfma") or o.get("nomfmaB")): g.e(m)
            for x in rd.get(slot, []): put(g, x)
            for x in work.get(slot, []): put(g, x)
            slot += 1
    assert not rd or max(rd) < 20
    assert not work or max(work) < slot

def cvt_store(g, c):
    fl = g.o.get("stflags", "sc1")
    P = HF[1] + 8*(c % 2)
    L = []
    for i in range(8):
        r = BIG + 16*c + 2*i
        L.append(f"v_cvt_pk_bf16_f32 v{P+i}, v{r}, v{r+1}")
    L.append(f"s_lshl_b32 s{S_T2}, s{S_COL+c}, 11")
    L.append(f"s_add_u32 s{S_T2}, s{S_T2}, s{S_PB}")
    for a in range(2):
        L.append(f"v_permlane16_swap_b32 v{P+4*a}, v{P+4*a+2}")
        L.append(f"v_permlane16_swap_b32 v{P+4*a+1}, v{P+4*a+3}")
    L.append(f"buffer_store_dwordx4 v[{P}:{P+3}], v{V_ST}, s[{S_WS}:{S_WS+3}], s{S_T2} offen {fl}")
    L.append(f"buffer_store_dwordx4 v[{P+4}:{P+7}], v{V_ST}, s[{S_WS}:{S_WS+3}], s{S_T2} offen offset:512 {fl}")
    return L

def tail_addr():
    L = []; e = L.append
    e(f"s_bfe_u32 s{S_LO}, s{S_INFO}, {8 | (8 << 16)}")
    e(f"s_bfe_u32 s{S_HI}, s{S_INFO}, {16 | (8 << 16)}")
    e(f"s_and_b32 s{S_BV}, s{S_INFO}, 255")
    e(f"s_lshr_b32 s{S_BV+1}, s{S_INFO}, 24")
    e(f"s_lshl_b32 s{S_BV+2}, s{S_G}, 4")
    e(f"v_lshrrev_b32 v{V_YR}, 3, v{V_LANE}")
    for i in range(3):
        t = S_BV + 3 + i
        e(f"s_add_u32 s{S_BV+6}, s{S_QW}, {4*i}")
        e(f"s_cmp_lt_u32 s{S_BV+6}, s{S_LO}")
        e(f"s_cselect_b32 s{t}, s{S_BV}, s{S_HI}")
        e(f"s_add_u32 s{t}, s{t}, s{S_BV+6}")
        e(f"s_cmp_lt_u32 s{S_BV+6}, s{S_BV+1}")
        e(f"s_cselect_b32 s{S_BV+7}, 0, 0x80000000")
        if i: e(f"s_cselect_b32 s{t}, s{t}, s{S_BV+3}")
        e(f"v_lshl_add_u32 v{V_S[i]}, s{t}, 6, v{V_LANE}")
        e(f"v_mul_u32_u24 v{V_X[i]}, 1152, v{V_S[i]}")
        e(f"v_add_u32 v{V_X[i]}, s{S_BV+2}, v{V_X[i]}")
        e(f"v_or_b32 v{V_X[i]}, s{S_BV+7}, v{V_X[i]}")
        e(f"v_lshl_or_b32 v{V_R[i]}, v{V_S[i]}, 4, s{S_BV+7}")
        e(f"v_lshl_or_b32 v{V_S[i]}, v{V_S[i]}, 3, s{S_BV+7}")
        if i == 0: e(f"v_mov_b32 v{V_FA}, s{t}")
        else:
            e(f"v_cmp_eq_u32 vcc, {i}, v{V_YR}")
            e(f"v_mov_b32 v{V_T}, s{t}")
            e(f"v_cndmask_b32 v{V_FA}, v{V_FA}, v{V_T}, vcc")
    e(f"v_and_b32 v{V_T}, 7, v{V_LANE}")
    e(f"v_mul_u32_u24 v{V_FA}, {72*128}, v{V_FA}")
    e(f"v_lshl_add_u32 v{V_FA}, v{V_T}, 2, v{V_FA}")
    e(f"s_lshl_b32 s{S_BV}, s{S_QW}, 8")
    e(f"v_lshl_add_u32 v{V_YR}, v{V_LANE}, 2, s{S_BV}")
    for c in range(4):
        e(f"s_lshl_b32 s{S_BV+2*c}, s{S_B2+c}, 16")
        e(f"s_and_b32 s{S_BV+2*c+1}, s{S_B2+c}, 0xffff0000")
    e(f"s_mov_b32 s{S_LO}, 0x3f80")
    e(f"s_mov_b32 s{S_HI}, 0x3f800000")
    e(f"s_lshl_b32 s{S_INFO}, s{S_G}, 7")
    e(f"s_add_u32 s{S_INFO}, s{S_INFO}, {FLAG_OFF}")
    e(f"s_lshl_b32 s{S_G}, s{S_G}, 15")
    R = []
    for x in L:
        if x.startswith("s_cselect"): R[-1].append(x)
        else: R.append([x])
    return R

def b_tail(g, name):
    e = g.e; o = g.o
    fl = o.get("ldflags", "sc1")
    e(f"s_mov_b32 s{S_T2}, {STAT_OFF}")
    e(f"s_add_u32 s{S_T}, s{S_G}, {XG_OFF}")
    for r in range(3):
        b = LD[r]
        e(f"buffer_load_dwordx2 v[{b+36}:{b+37}], v{V_S[r]}, s[{S_WS}:{S_WS+3}], s{S_T2} offen {fl}")
        e(f"buffer_load_dwordx4 v[{b+32}:{b+35}], v{V_R[r]}, s[{S_WS}:{S_WS+3}], s{S_T} offen {o.get('hotfl', '')}")
    e(f"v_mov_b32 v{V_T}, s{S_TOK}")
    g.stamp()
    e("s_waitcnt vmcnt(6)")
    e(f"buffer_store_dword v{V_T}, v{V_L0}, s[{S_WS}:{S_WS+3}], s{S_FLG} offen sc1")
    g.stamp()
    e(f"s_cmp_eq_u32 s{S_PART}, 3")
    e(f"s_cbranch_scc1 {name}_bend")
    e(f"s_mov_b32 s{S_N}, {SPIN}")
    g.lab(f"{name}_poll")
    e(f"buffer_load_dword v{V_T2}, v{V_FA}, s[{S_WS}:{S_WS+3}], s{S_INFO} offen sc1")
    e(f"s_sub_u32 s{S_N}, s{S_N}, 1")
    e(f"s_cbranch_scc1 {name}_pollx")
    e("s_waitcnt vmcnt(0)")
    e(f"v_cmp_ne_u32 vcc, s{S_TOK}, v{V_T2}")
    e(f"s_cbranch_vccnz {name}_poll")
    g.lab(f"{name}_pollx")
    g.stamp()
    for r in range(3):
        for j in range(8):
            b = LD[r]
            if j: e(f"s_add_u32 s{S_T}, s{S_G}, {j*72*32768}")
            e(f"buffer_load_dwordx4 v[{b+4*j}:{b+4*j+3}], v{V_R[r]}, s[{S_WS}:{S_WS+3}], s{S_T if j else S_G} offen {fl}")
    e("s_waitcnt vmcnt(24)")
    for r in range(3):
        b = LD[r]; x = b + 32; st = b + 36; s = SUM[r]; xn = XN + 8*r
        for c in range(4):
            e(f"v_lshlrev_b32 v{s+2*c}, 16, v{x+c}")
            e(f"v_and_b32 v{s+2*c+1}, 0xffff0000, v{x+c}")
        for c in range(4):
            e(f"v_pk_fma_f32 v[{xn+2*c}:{xn+2*c+1}], v[{s+2*c}:{s+2*c+1}], v[{st}:{st+1}], v[{st}:{st+1}] op_sel:[0,0,1] op_sel_hi:[1,0,1]")
        for c in range(8): e(f"v_add_f32 v{s+c}, s{S_BV+c}, v{s+c}")
    def sums():
        for r in range(3):
            b = LD[r]; s = SUM[r]
            for j in range(8):
                e(f"s_waitcnt vmcnt({8*(2-r) + 7 - j + (r if o.get('yfirst') else 0)})")
                for c in range(4):
                    e(f"v_dot2c_f32_bf16 v{s+2*c}, s{S_LO}, v{b+4*j+c}")
                    e(f"v_dot2c_f32_bf16 v{s+2*c+1}, s{S_HI}, v{b+4*j+c}")
            if o.get("yfirst"):
                e("s_nop 2")
                out(r)
    Y = XN + 24
    def ypart():
        g.stamp()
        e("s_barrier")
        g.stamp()
        for r in range(3):
            for c in range(4):
                y = Y + 8*r
                e(f"ds_read2st64_b32 v[{y+2*c}:{y+2*c+1}], v{V_YR} offset0:{68*c + 4*r} offset1:{68*c + 34 + 4*r}")
        for r in range(3):
            s = SUM[r]; xn = XN + 8*r; y = Y + 8*r
            for c in range(4):
                e(f"s_waitcnt lgkmcnt({4*(2-r) + 3 - c})")
                e(f"v_pk_fma_f32 v[{s+2*c}:{s+2*c+1}], v[{xn+2*c}:{xn+2*c+1}], v[{y+2*c}:{y+2*c+1}], v[{s+2*c}:{s+2*c+1}]")
            if not o.get("yfirst"): out(r)
    def out(r):
        s = SUM[r]; x = LD[r] + 32
        for c in range(4):
            e(f"v_cvt_pk_bf16_f32 v{x+c}, v{s+2*c}, v{s+2*c+1}")
        e(f"buffer_store_dwordx4 v[{x}:{x+3}], v{V_X[r]}, s[{S_OUT}:{S_OUT+3}], 0 offen")
    if o.get("yfirst"): ypart(); sums()
    else: sums(); ypart()
    g.lab(f"{name}_bend")
    finish(g)

def b_block(g, par, w1st=(0, 1, 2), w2st=(0, 1, 2), last=False, rdy=None):
    o = g.o
    extra = {}
    if last: spread(tail_addr(), 9, 60, extra)
    if rdy:
        extra[20] = [f"buffer_load_dword v{V_RDY}, v{V_L4}, s[{S_WS}:{S_WS+3}], 0 offen " + o.get("rdyfl", "")]
    if last:
        for c in range(7):
            s0 = 8 + 8*c + 8 + 3
            spread(cvt_store(g, c), s0, s0 + 8, extra)
        assert max(extra) < 72 + 8
    ex = split3(extra)
    for st in range(3):
        work = ex[st]
        d = []
        d1 = dma_third(g, st, False, S_C1) if st in w1st else []
        d2 = dma_third(g, (2, 0, 1)[st], True, S_R2 if st == 0 else S_R2N) if st in w2st else []
        if o.get("dmaonly") == 1: d2 = []
        if o.get("dmaonly") == 2: d1 = []
        for i in range(0, 6, 2):
            d += d2[i:i+2] + d1[i:i+2]
        if o.get("thr") and not last:
            d = [x[:-1] + [f"s_waitcnt vmcnt({o['thr'] - 1})"] + x[-1:] for x in d]
        if d: spread(d, 0, o.get("dsp", 24) * len(d) // 12, work)
        if st == 2 and not last:
            work.setdefault(23, []).extend([f"s_mov_b32 s{S_R2}, s{S_R2N}"] +
                wrap_add(S_C1, S_C1, 128, S_W1E, f"s{S_ROT}") + wrap_add(S_R2N, S_R2N, 64*1152, S_R2E, f"s{S_GC2}"))
        b_stage(g, par, st, work, tail=(last and st == 2))
        if last and st == 2:
            for x in cvt_store(g, 7): g.e(x)
            for x in cvt_store(g, 8): g.e(x)
        else:
            def chk():
                g.e(f"v_cmp_ne_u32 vcc, s{S_ONES}, v{V_RDY}")
                g.e(f"s_cbranch_vccnz {rdy}_slow")
                g.lab(f"{rdy}_back")
            g.endstage(stamp=(st == (o.get("sst", 0) + 2) % 3), hook=(chk if rdy and st == 1 else None))

def kv_addr(g):
    e = g.e
    e(f"s_mul_i32 s{S_T}, s{S_QW}, 19")
    e(f"s_add_u32 s{S_T}, s{S_T}, 2")
    e(f"s_lshr_b32 s{S_T}, s{S_T}, 2")
    e(f"s_lshr_b32 s{S_T2}, s{S_QW}, 1")
    e(f"s_sub_u32 s{S_T2}, 5, s{S_T2}")
    e(f"v_lshrrev_b32 v{KST}, 3, v{V_LANE}")
    e(f"v_cmp_le_u32 vcc, s{S_T2}, v{KST}")
    e(f"v_add_u32 v{KST}, s{S_T}, v{KST}")
    e(f"v_and_b32 v{V_T}, 7, v{V_LANE}")
    e(f"v_cndmask_b32 v{KA0}, 0, 1, vcc")
    e(f"v_lshlrev_b32 v{KA0}, 31, v{KA0}")
    e(f"s_lshr_b32 s{S_T}, s2, 3")
    e(f"s_lshl_b32 s{S_KVO}, s{S_T}, 7")
    e(f"s_mul_i32 s{S_T}, s{S_T}, {64*1152}")
    e(f"s_and_b32 s{S_TOK}, s2, 7")
    e(f"s_mul_i32 s{S_T2}, s{S_TOK}, 144")
    e(f"s_add_u32 s{S_ONES}, s{S_T}, s{S_T2}")
    e(f"v_mul_u32_u24 v{KA1}, {8*1152}, v{V_T}")
    e(f"v_lshl_add_u32 v{KA1}, v{KST}, 3, v{KA1}")
    e(f"v_add_u32 v{KA1}, s{S_ONES}, v{KA1}")
    e(f"v_or_b32 v{KA1}, v{KA0}, v{KA1}")
    e(f"v_lshlrev_b32 v{KST}, 14, v{KST}")
    e(f"v_lshl_add_u32 v{KST}, v{V_T}, 4, v{KST}")
    e(f"v_or_b32 v{KST}, v{KA0}, v{KST}")
    e(f"v_add_u32 v{KA2}, 4608, v{KA1}")
    e(f"v_cmp_gt_u32 vcc, 1152, v{KA1}")
    e(f"v_subrev_u32 v{KA0}, 3456, v{KA1}")
    e(f"v_bfrev_b32 v{V_T}, 1")
    e(f"v_cndmask_b32 v{KA0}, v{KA0}, v{V_T}, vcc")
    e(f"s_mul_i32 s{S_T2}, s{S_TOK}, {72*4096}")
    e(f"s_add_u32 s{S_KVO}, s{S_KVO}, s{S_T2}")
    e(f"s_add_u32 s{S_KVO}, s{S_KVO}, {KVT_OFF}")

def xg_loads(g):
    e = g.e
    A0, A1 = XGR + 12, XGR + 13
    e(f"s_lshl_b32 s{S_T}, s{S_QW}, 4")
    e(f"s_add_u32 s{S_T}, s{S_T}, s{S_ONES}")
    e(f"s_cmp_eq_u32 s{S_QW}, 0")
    e(f"s_cselect_b32 s{S_T2}, 0, 0x80000000")
    e(f"v_mul_u32_u24 v{A0}, 1152, v{V_LANE}")
    e(f"v_or_b32 v{A1}, s{S_T2}, v{A0}")
    for i in range(3):
        e(f"buffer_load_dwordx4 v[{XGR+4*i}:{XGR+4*i+3}], v{A1 if i == 2 else A0}, s[{S_Q}:{S_Q+3}], s{S_T} offen offset:{64*i}")

def xg_stores(g):
    e = g.e
    A0, A1 = XGR + 12, XGR + 13
    e(f"s_and_b32 s{S_T}, s2, 7")
    e(f"s_mul_i32 s{S_T}, s{S_T}, 9")
    e(f"s_add_u32 s{S_T}, s{S_T}, s{S_QW}")
    e(f"s_lshl_b32 s{S_T}, s{S_T}, 8")
    e(f"s_and_b32 s{S_T2}, s2, -8")
    e(f"s_add_u32 s{S_T}, s{S_T}, s{S_T2}")
    e(f"s_lshl_b32 s{S_T}, s{S_T}, 7")
    e(f"v_lshlrev_b32 v{A0}, 4, v{V_LANE}")
    e(f"v_and_b32 v{A1}, 0x80000000, v{A1}")
    e(f"v_or_b32 v{A1}, v{A0}, v{A1}")
    for i in range(3):
        e(f"s_add_u32 s{S_T2}, s{S_T}, {XG_OFF + 4*32768*i}")
        e(f"buffer_store_dwordx4 v[{XGR+4*i}:{XGR+4*i+3}], v{A1 if i == 2 else A0}, s[{S_WS}:{S_WS+3}], s{S_T2} offen sc1")

def kf_touch(g):
    e = g.e
    e(f"s_mul_i32 s{S_T}, s{S_PART}, 88")
    e(f"s_mul_i32 s{S_T2}, s{S_QW}, 22")
    e(f"s_add_u32 s{S_T}, s{S_T}, s{S_T2}")
    e(f"v_min_u32 v{V_T}, 21, v{V_LANE}")
    e(f"v_add_u32 v{V_T}, s{S_T}, v{V_T}")
    e(f"v_min_u32 v{V_T}, 255, v{V_T}")
    e(f"v_lshlrev_b32 v{V_T}, 7, v{V_T}")
    e(f"s_lshl_b32 s{S_T}, s{S_G}, 15")
    e(f"buffer_load_dword v{V_T2}, v{V_T}, s[{S_KF}:{S_KF+3}], s{S_T} offen")

def kv_loads(g):
    e = g.e
    e(f"v_lshrrev_b32 v{V_T}, 9, v{KST}")
    e(f"v_and_b32 v{V_T}, -32, v{V_T}")
    e(f"s_mul_i32 s{S_T2}, s{S_TOK}, 576")
    e(f"buffer_load_dwordx4 v[{KSH}:{KSH+3}], v{V_T}, s[{S_SH}:{S_SH+3}], s{S_T2} offen")
    e(f"buffer_load_dwordx4 v[{KSH+4}:{KSH+7}], v{V_T}, s[{S_SH}:{S_SH+3}], s{S_T2} offen offset:16")
    for r in range(11):
        if r < 3: v, off = KA0, 1152*r
        elif r < 7: v, off = KA1, 1152*(r-3)
        else: v, off = KA2, 1152*(r-7)
        e(f"buffer_load_dwordx2 v[{KR+2*r}:{KR+2*r+1}], v{v}, s[{S_K}:{S_K+3}], 0 offen offset:{off}")
    for r in range(8):
        v, off = (KA1, 1152*r) if r < 4 else (KA2, 1152*(r-4))
        e(f"buffer_load_dwordx2 v[{VR+2*r}:{VR+2*r+1}], v{v}, s[{S_V}:{S_V+3}], 0 offen offset:{off}")

def kv_compute(g, p):
    L = []; e = L.append
    C = KC
    F = [KF + 2*i for i in range(11)]
    fl = g.o.get("kvfl", "sc1")
    pk = g.o.get("kvpk", 1)
    for h in range(2):
        w = KSH + 4*p + 2*h
        e(f"v_lshlrev_b32 v{C+h}, 16, v{w}")
        e(f"v_and_b32 v{C+2+h}, 0xffff0000, v{w}")
        e(f"v_lshlrev_b32 v{C+4+h}, 16, v{w+1}")
        e(f"v_and_b32 v{C+6+h}, 0xffff0000, v{w+1}")
    for r in range(11):
        e(f"v_lshlrev_b32 v{F[r]}, 16, v{KR+2*r+p}")
        e(f"v_and_b32 v{F[r]+1}, 0xffff0000, v{KR+2*r+p}")
    for j in (3, 2, 1, 0):
        for t in range(8):
            a = KAC + 2*t; f = F[t + 3 - j]; c = C + 2*j
            if j == 3: e(f"v_pk_mul_f32 v[{a}:{a+1}], v[{f}:{f+1}], v[{c}:{c+1}]")
            else: e(f"v_pk_fma_f32 v[{a}:{a+1}], v[{f}:{f+1}], v[{c}:{c+1}], v[{a}:{a+1}]")
    for t in range(8):
        e(f"v_lshlrev_b32 v{F[t]}, 16, v{VR+2*t+p}")
        e(f"v_and_b32 v{F[t]+1}, 0xffff0000, v{VR+2*t+p}")
    for t in range(8):
        a = KAC + 2*t
        e(f"v_pk_mul_f32 v[{a}:{a+1}], v[{a}:{a+1}], v[{F[t]}:{F[t]+1}]")
    S = []
    KO = BIG + 8*p
    for h in range(2):
        for t in range(4):
            e(f"v_cvt_pk_bf16_f32 v{KO+4*h+t}, v{KAC+4*t+h}, v{KAC+4*t+2+h}")
        S.append(f"buffer_store_dwordx4 v[{KO+4*h}:{KO+4*h+3}], v{KST}, s[{S_WS}:{S_WS+3}], s{S_KVO} offen {fl}")
        S.append(f"s_add_u32 s{S_KVO}, s{S_KVO}, 4096")
    return L, S

def b_fill(g, name):
    e = g.e
    def dm(d):
        for x in d:
            for y in x: e(y)
    k0, s0 = kv_compute(g, 0)
    k1, s1 = kv_compute(g, 1)
    zero = [f"v_mov_b32 v{r}, 0" for r in range(BIG + 32, BIG + 144)]
    kv_loads(g)
    xg_loads(g)
    for x in zero: e(x)
    g.nvm += 4
    g.endstage(stamp=True)
    dm(dma_third(g, 0, False, S_C1)); dm(dma_third(g, 0, True, S_R2))
    g.nvm += 25
    g.endstage()
    dm(dma_third(g, 1, False, S_C1)); dm(dma_third(g, 1, True, S_R2))
    nd = 0 if g.o.get("nodma") else 1
    e(f"s_waitcnt vmcnt({24*nd + 3})")
    for x in k0[:len(k0)//2]: e(x)
    g.nvm += 6*nd
    g.endstage()
    dm(dma_third(g, 2, False, S_C1))
    if g.o.get("kft", 1): kf_touch(g)
    xg_stores(g)
    for x in k0[len(k0)//2:] + k1[:len(k1)//3]: e(x)
    g.nvm += 6*nd
    g.endstage(stamp=True)
    dm(dma_third(g, 0, False, S_C1N))
    e(f"s_load_dword s{S_TOK}, s[{S_DBG}:{S_DBG+1}], 0")
    for x in k1[len(k1)//3:]: e(x)
    def chk():
        e(f"s_cmp_eq_u32 s{S_TOK}, 0")
        e(f"s_cbranch_scc1 {name}_tok_slow")
        g.lab(f"{name}_tok_back")
    g.endstage(hook=chk)
    for x in s0 + s1: e(x)
    dm(dma_third(g, 1, False, S_C1N))
    g.endstage()
    dm(dma_third(g, 2, False, S_C1N))
    for k in (0, 2, 4, 6): e(b_hread(0, k))
    for x in wrap_add(S_C1, S_C1N, 128, S_W1E, f"s{S_ROT}"): e(x)
    for r in list(range(HF[1], HF[1] + 32)) + list(range(WB2 + 16, WB2 + 24)) + list(range(BIG, BIG + 32)):
        e(f"v_mov_b32 v{r}, 0")
    g.endstage(stamp=True)

def finish(g):
    if g.o.get("stamps"):
        g.stamp()
        g.e("s_waitcnt vmcnt(0)")
        g.stamp()
        g.rstamp(63)
        g.e(f"s_lshl_b32 s{S_T}, s2, 11")
        g.e(f"s_add_u32 s{S_T}, s{S_T}, {STAMP_OFF}")
        g.e(f"v_lshlrev_b32 v{V_T}, 2, v{V_TID}")
        g.e(f"buffer_store_dword v{V_STAMP}, v{V_T}, s[{S_WS}:{S_WS+3}], s{S_T} offen")
    g.e("s_endpgm")

def bf16round(g, v):
    g.e(f"v_cvt_pk_bf16_f32 v{v}, v{v}, v{v}")
    g.e(f"v_and_b32 v{v}, 0xffff0000, v{v}")

def gen(name, opt):
    g = G(opt); o = opt
    e = g.e
    g.L.append(f".globl {name}\n.p2align 8\n.type {name},@function\n{name}:")
    e("s_cmp_ge_u32 s2, 256")
    e(f"s_cbranch_scc1 {name}_exit")
    if o.get("stamps"):
        e(f"s_mov_b32 s{S_SI}, 0"); e(f"v_mov_b32 v{V_STAMP}, 0")
        g.rstamp(62)
        g.stamp()
    e(f"s_load_dwordx2 s[{S_Q}:{S_Q+1}], s[0:1], 0")
    e(f"s_load_dwordx2 s[{S_W1}:{S_W1+1}], s[0:1], 56")
    e(f"s_load_dwordx2 s[{S_B1}:{S_B1+1}], s[0:1], 64")
    e(f"s_load_dwordx2 s[{S_W2}:{S_W2+1}], s[0:1], 72")
    e(f"s_load_dwordx2 s[{S_WS}:{S_WS+1}], s[0:1], 104")
    e(f"s_load_dwordx2 s[{S_K}:{S_K+1}], s[0:1], 8")
    e(f"s_load_dwordx2 s[{S_V}:{S_V+1}], s[0:1], 16")
    e(f"s_load_dwordx2 s[{S_SH}:{S_SH+1}], s[0:1], 24")
    e(f"s_load_dwordx2 s[{S_KF}:{S_KF+1}], s[0:1], 32")
    e(f"s_load_dwordx2 s[{S_DP}:{S_DP+1}], s[0:1], 40")
    e(f"s_load_dwordx2 s[{S_BP}:{S_BP+1}], s[0:1], 80")
    e(f"s_load_dwordx2 s[{S_OUT}:{S_OUT+1}], s[0:1], 88")
    e(f"s_load_dwordx2 s[{S_DBG}:{S_DBG+1}], s[0:1], 96")
    e(f"s_getpc_b64 s[{S_PC}:{S_PC+1}]")
    g.lab(f"{name}_pc")
    if o.get("codepf", 1):
        e(f"v_lshlrev_b32 v{V_T}, 7, v{V_TID}")
        e(f"v_min_u32 v{V_T}, {name}_exit-{name}_pc, v{V_T}")
        e(f"global_load_dword v{V_T2}, v{V_T}, s[{S_PC}:{S_PC+1}]")
    e(f"v_lshrrev_b32 v{V_T}, 6, v{V_TID}")
    e(f"v_and_b32 v{V_LANE}, 63, v{V_TID}")
    e(f"v_readfirstlane_b32 s{S_W}, v{V_T}")
    xs = o.get("xs", 1)
    if xs == 1:
        e(f"s_and_b32 s{S_J}, s2, 7")
        e(f"s_lshr_b32 s{S_RB}, s2, 3")
    else:
        lg = {2: 1, 4: 2, 8: 3}[xs]
        e(f"s_and_b32 s{S_J}, s2, {7 >> lg}")
        e(f"s_lshl_b32 s{S_J}, s{S_J}, {lg}")
        e(f"s_bfe_u32 s{S_T}, s2, {3 | (lg << 16)}")
        e(f"s_or_b32 s{S_J}, s{S_J}, s{S_T}")
        e(f"s_lshr_b32 s{S_RB}, s2, {3 + lg}")
        e(f"s_bfe_u32 s{S_T}, s2, {(3 - lg) | (lg << 16)}")
        e(f"s_lshl_b32 s{S_T}, s{S_T}, {5 - lg}")
        e(f"s_or_b32 s{S_RB}, s{S_RB}, s{S_T}")
    srd(g, S_Q, 2359296)
    e(f"v_lshrrev_b32 v{LT}, 3, v{V_TID}")
    e(f"v_and_b32 v{LT+1}, 7, v{V_TID}")
    e(f"v_mul_u32_u24 v{LT+2}, 1152, v{LT}")
    e(f"v_lshl_add_u32 v{LT+2}, v{LT+1}, 4, v{LT+2}")
    e(f"s_mul_i32 s{S_T2}, s{S_RB}, {64*1152}")
    e("s_waitcnt lgkmcnt(0)")
    for i in range(9):
        e(f"buffer_load_dwordx4 v[{XR+4*i}:{XR+4*i+3}], v{LT+2}, s[{S_Q}:{S_Q+3}], s{S_T2} offen offset:{128*i}")
    srd(g, S_W1, 5308416); srd(g, S_W2, 5308416); srd(g, S_B1, 9216)
    srd(g, S_WS, 268435456)
    srd(g, S_K, 2359296); srd(g, S_V, 2359296); srd(g, S_SH, 4608)
    e(f"s_and_b32 s{S_QW}, s{S_W}, 3")
    e(f"s_lshr_b32 s{S_GRP}, s{S_W}, 2")
    e(f"s_lshl_b32 s{S_M0B}, s{S_QW}, 11")
    if o.get("rot", 1):
        e(f"s_mul_i32 s{S_T}, s{S_RB}, 57")
        e(f"s_lshr_b32 s{S_T}, s{S_T}, 9")
        e(f"s_mul_i32 s{S_T}, s{S_T}, 9")
        e(f"s_sub_u32 s{S_ROT}, s{S_RB}, s{S_T}")
    else:
        e(f"s_mov_b32 s{S_ROT}, 0")
    D1A, D1B = LT+5, LT+6
    e(f"v_lshrrev_b32 v{LT+3}, 3, v{V_LANE}")
    e(f"v_and_b32 v{LT+4}, 6, v{LT+3}")
    e(f"s_lshl_b32 s{S_T}, s{S_QW}, 4")
    e(f"v_add_u32 v{LT+3}, s{S_T}, v{LT+3}")
    e(f"v_xor_b32 v{LT+4}, v{LT+4}, v{LT+1}")
    e(f"v_lshlrev_b32 v{LT+4}, 4, v{LT+4}")
    e(f"v_mul_u32_u24 v{V_O1A}, 9216, v{LT+3}")
    e(f"v_add_u32 v{V_O1A}, v{V_O1A}, v{LT+4}")
    e(f"v_add_u32 v{V_O1B}, {8*9216-1024}, v{V_O1A}")
    e(f"s_mul_i32 s{S_C1N}, s{S_J}, 1152")
    e(f"s_add_u32 s{S_W1E}, s{S_C1N}, 1152")
    e(f"s_lshl_b32 s{S_COL}, s{S_ROT}, 7")
    e(f"s_add_u32 s{S_C1}, s{S_C1N}, s{S_COL}")
    e(f"v_lshrrev_b32 v{LT+8}, 4, v{V_LANE}")
    e(f"v_lshlrev_b32 v{V_BO}, 2, v{V_TID}")
    e(f"s_mul_i32 s{S_T}, s{S_GRP}, {8*9216}")
    e(f"s_add_u32 s{S_N}, s{S_C1}, s{S_T}")
    e(f"s_lshl_b32 s{S_T}, s{S_GRP}, 10")
    e(f"s_add_u32 s{S_PB}, s{S_M0B}, s{S_T}")
    if o.get("xbar", 1): e("s_barrier")
    e(f"buffer_load_dword v{BR}, v{V_BO}, s[{S_B1}:{S_B1+3}], s{S_C1N} offen")
    def pdma(u):
        e(f"s_add_u32 m0, s{S_PB}, {RING1 + u*8192}")
        e(f"s_add_u32 s{S_T}, s{S_N}, {u*64*9216}")
        e(f"buffer_load_dwordx4 v{V_O1A}, s[{S_W1}:{S_W1+3}], s{S_T} offen lds")
    npre = o.get("npre", 3)
    for u in range(npre): pdma(u)
    e(f"s_lshr_b32 s{S_T}, s2, 3")
    e(f"s_mul_i32 s{S_PART}, s{S_T}, 57")
    e(f"s_lshr_b32 s{S_PART}, s{S_PART}, 9")
    e(f"s_and_b32 s{S_G}, s2, 7")
    e(f"s_sub_u32 s{S_G}, s{S_G}, s{S_PART}")
    e(f"s_mul_i32 s{S_G}, s{S_G}, 9")
    e(f"s_add_u32 s{S_G}, s{S_G}, s{S_T}")
    e(f"s_lshl_b32 s{S_T}, s{S_G}, 4")
    e(f"s_load_dwordx4 s[{S_DR}:{S_DR+3}], s[{S_DP}:{S_DP+1}], s{S_T}")
    e(f"s_load_dwordx4 s[{S_B2}:{S_B2+3}], s[{S_BP}:{S_BP+1}], s{S_T}")
    srd(g, S_KF, 2359296); srd(g, S_OUT, 2359296); srd(g, S_DBG, 256)
    e(f"s_or_b32 s{S_T}, s2, s{S_W}")
    e(f"s_cbranch_scc0 {name}_mk")
    g.lab(f"{name}_mkb")
    for u in range(1, 9):
        e(f"s_add_u32 s{S_COL+u}, s{S_COL+u-1}, 128")
        e(f"s_cmp_eq_u32 s{S_COL+u}, 1152")
        e(f"s_cselect_b32 s{S_COL+u}, 0, s{S_COL+u}")
    e(f"v_mul_u32_u24 v{V_O2A}, 1152, v{LT+3}")
    e(f"v_add_u32 v{V_O2A}, v{V_O2A}, v{LT+4}")
    e(f"v_add_u32 v{V_O2B}, {8*1152-1024}, v{V_O2A}")
    e(f"v_lshrrev_b32 v{LT+9}, 2, v{V_LANE}")
    e(f"v_lshlrev_b32 v{V_TR[0]}, 7, v{LT+9}")
    e(f"s_and_b32 s{S_T}, s{S_QW}, 2")
    e(f"v_bfe_u32 v{LT+9}, v{V_LANE}, 3, 2")
    e(f"v_xor_b32 v{LT+9}, s{S_T}, v{LT+9}")
    e(f"v_lshl_add_u32 v{V_TR[0]}, v{LT+9}, 5, v{V_TR[0]}")
    e(f"v_and_b32 v{LT+9}, 3, v{V_LANE}")
    e(f"v_lshl_add_u32 v{V_TR[0]}, v{LT+9}, 3, v{V_TR[0]}")
    e(f"s_mul_i32 s{S_T}, s{S_GRP}, {RING2}")
    e(f"v_add_u32 v{V_TR[0]}, s{S_T}, v{V_TR[0]}")
    e(f"v_xor_b32 v{V_TR[1]}, 32, v{V_TR[0]}")
    e(f"v_add_u32 v{V_TR[2]}, {12*4096}, v{V_TR[0]}")
    e(f"v_xor_b32 v{V_TR[3]}, 32, v{V_TR[2]}")
    e(f"s_and_b32 s{S_T}, s{S_QW}, 1")
    e(f"s_lshl_b32 s{S_T}, s{S_T}, 5")
    e(f"v_and_b32 v{LT+7}, 15, v{V_LANE}")
    e(f"v_add_u32 v{LT+7}, s{S_T}, v{LT+7}")
    e(f"v_mul_u32_u24 v{V_H}, {HSTR}, v{LT+7}")
    e(f"v_lshl_add_u32 v{V_H}, v{LT+8}, 4, v{V_H}")
    e(f"v_add_u32 v{V_H}, {HBUF}, v{V_H}")
    e(f"v_mul_u32_u24 v{LT+2}, {ASTR}, v{LT}")
    e(f"v_bfe_u32 v{LT+9}, v{V_LANE}, 2, 1")
    e(f"v_lshl_add_u32 v{LT+2}, v{LT+9}, 6, v{LT+2}")
    e(f"v_and_b32 v{LT+9}, 1, v{V_LANE}")
    e(f"v_lshl_add_u32 v{LT+2}, v{LT+9}, 5, v{LT+2}")
    e(f"v_bfe_u32 v{LT+9}, v{V_LANE}, 1, 1")
    e(f"v_lshl_add_u32 v{LT+2}, v{LT+9}, 3, v{LT+2}")
    e(f"v_add_u32 v{LT+2}, {ACT}, v{LT+2}")
    kv_addr(g)
    SA, SB, QA, QB, ONE = LT+10, LT+11, LT+12, LT+13, LT+14
    for r in (SA, SB, QA, QB): e(f"v_mov_b32 v{r}, 0")
    e(f"v_mov_b32 v{ONE}, 0x3f803f80")
    for i in range(9):
        e(f"s_waitcnt vmcnt({8 - i + 1 + npre})")
        if i == 0: g.stamp()
        for c in range(4):
            x = XR + 4*i + c
            e(f"v_dot2c_f32_bf16 v{SA if c%2==0 else SB}, v{x}, v{ONE}")
            e(f"v_dot2c_f32_bf16 v{QA if c%2==0 else QB}, v{x}, v{x}")
    g.stamp()
    for u in range(npre, 9): pdma(u)
    e("s_nop 2")
    e(f"v_add_f32 v{SA}, v{SA}, v{SB}")
    e(f"v_add_f32 v{QA}, v{QA}, v{QB}")
    for dpp in ("quad_perm:[1,0,3,2]", "quad_perm:[2,3,0,1]", "row_half_mirror"):
        e("s_nop 0")
        e(f"v_add_f32 v{SA}, v{SA}, v{SA} {dpp} row_mask:0xf bank_mask:0xf")
        e(f"v_add_f32 v{QA}, v{QA}, v{QA} {dpp} row_mask:0xf bank_mask:0xf")
    inv = f"0x{f32bits(1.0/576.0):08x}"
    e(f"v_mul_f32 v{SA}, {inv}, v{SA}")
    e(f"v_mul_f32 v{QA}, {inv}, v{QA}")
    e(f"v_fma_f32 v{QA}, -v{SA}, v{SA}, v{QA}")
    e(f"v_max_f32 v{QA}, 0, v{QA}")
    bf16round(g, SA)
    bf16round(g, QA)
    e(f"v_add_f32 v{QA}, 0x{f32bits(1e-5):08x}, v{QA}")
    bf16round(g, QA)
    e(f"v_sqrt_f32 v{QA}, v{QA}")
    e("s_nop 0")
    bf16round(g, QA)
    e(f"v_rcp_f32 v{QA}, v{QA}")
    e("s_nop 0")
    e(f"v_mul_f32 v{QB}, v{SA}, v{QA}")
    e(f"v_xor_b32 v{SA}, 0x80000000, v{QB}")
    assert SA % 2 == 0 and QA % 2 == 0
    T0 = LT + 16
    for i in range(9):
        t = T0 + 8*(i % 2)
        for c in range(4):
            x = XR + 4*i + c
            e(f"v_lshlrev_b32 v{t+2*c}, 16, v{x}")
            e(f"v_and_b32 v{t+2*c+1}, 0xffff0000, v{x}")
        for c in range(4):
            e(f"v_pk_fma_f32 v[{t+2*c}:{t+2*c+1}], v[{t+2*c}:{t+2*c+1}], v[{QA}:{QA+1}], v[{SA}:{SA+1}] op_sel_hi:[1,0,0]")
        for c in range(4):
            x = XR + 4*i + c
            e(f"v_cvt_pk_bf16_f32 v{x}, v{t+2*c}, v{t+2*c+1}")
        x = XR + 4*i
        e(f"ds_write2_b64 v{LT+2}, v[{x}:{x+1}], v[{x+2}:{x+3}] offset0:{16*i} offset1:{16*i+2}")
    e(f"s_waitcnt vmcnt(9)")
    e(f"v_lshlrev_b32 v{T0}, 16, v{BR}")
    e(f"v_and_b32 v{T0+1}, 0xffff0000, v{BR}")
    e(f"v_lshlrev_b32 v{V_BO}, 1, v{V_BO}")
    e(f"v_add_u32 v{V_BO}, {TBL}, v{V_BO}")
    e(f"ds_write_b64 v{V_BO}, v[{T0}:{T0+1}]")
    e(f"v_mov_b32 v{T0+16}, v{QA}")
    e(f"v_mov_b32 v{T0+17}, v{SA}")
    g.stamp()
    e(f"v_or_b32 v{LT+1}, s{S_J}, v{LT+1}")
    e(f"v_lshlrev_b32 v{LT+1}, 28, v{LT+1}")
    e(f"v_lshl_add_u32 v{T0+18}, v{LT}, 3, v{LT+1}")
    e(f"s_lshl_b32 s{S_T}, s{S_RB}, 9")
    e(f"s_add_u32 s{S_T}, s{S_T}, {STAT_OFF}")
    e(f"s_waitcnt vmcnt(6) lgkmcnt(0)")
    e(f"buffer_store_dwordx2 v[{T0+16}:{T0+17}], v{T0+18}, s[{S_WS}:{S_WS+3}], s{S_T} offen " + o.get("stflags", "sc1"))
    e(f"s_cmp_eq_u32 s{S_GRP}, 1")
    e(f"s_cbranch_scc1 {name}_b")
    e(f"v_mul_u32_u24 v{V_FR}, {ASTR}, v{LT+7}")
    e(f"v_lshl_add_u32 v{V_FR}, v{LT+8}, 4, v{V_FR}")
    e(f"v_add_u32 v{V_FR}, {ACT}, v{V_FR}")
    e(f"s_lshl_b32 s{S_T}, s{S_QW}, 5")
    e(f"s_and_b32 s{S_T}, s{S_T}, 64")
    e(f"v_add_u32 v{V_H}, s{S_T}, v{V_H}")
    c1 = 2.0 * math.sqrt(2.0 / math.pi) * math.log2(math.e)
    e(f"v_mov_b32 v{V_C1}, 0x{f32bits(-c1):08x}")
    e(f"s_mov_b32 s{S_GC2}, 0x{f32bits(-c1*0.044715):08x}")
    e(f"s_lshl_b32 s{S_T}, s{S_T}, 1")
    e(f"s_add_u32 s{S_T}, s{S_T}, {TBL}")
    e(f"v_lshlrev_b32 v{V_BO}, 4, v{LT+8}")
    e(f"v_add_u32 v{V_BO}, s{S_T}, v{V_BO}")
    e(f"s_lshl_b32 s{S_C1}, s{S_COL}, 1")
    g.stamp()
    e("s_barrier")
    g.lds = []; g.nvm = 0
    e(f"s_setprio {o.get('pa', 0)}")
    a_block(g, 0, first=True)
    e(f"s_mov_b32 s{S_N}, 4")
    g.lab(f"{name}_aloop")
    a_block(g, 1)
    a_block(g, 0)
    e(f"s_sub_u32 s{S_N}, s{S_N}, 1")
    e(f"s_cbranch_scc0 {name}_chk" if False else f"s_cmp_lg_u32 s{S_N}, 0")
    e(f"s_cbranch_scc1 {name}_aloop")
    a_drain(g, name)
    g.lab(f"{name}_b")
    e(f"v_lshrrev_b32 v{V_L0}, 1, v{V_LANE}")
    e(f"v_and_b32 v{V_T}, 1, v{V_LANE}")
    e(f"v_lshl_add_u32 v{V_L0}, v{V_L0}, 3, v{V_T}")
    e(f"v_lshlrev_b32 v{V_L0}, 7, v{V_L0}")
    e(f"v_cmp_gt_u32 vcc, 18, v{V_LANE}")
    e(f"v_bfrev_b32 v{V_T}, 1")
    e(f"v_cndmask_b32 v{V_L0}, v{V_T}, v{V_L0}, vcc")
    e(f"s_mul_i32 s{S_FLG}, s{S_RB}, 36")
    e(f"s_add_u32 s{S_FLG}, s{S_FLG}, s{S_QW}")
    e(f"s_lshl_b32 s{S_FLG}, s{S_FLG}, 6")
    e(f"s_add_u32 s{S_FLG}, s{S_FLG}, s{S_J}")
    e(f"s_lshl_b32 s{S_FLG}, s{S_FLG}, 2")
    e(f"s_add_u32 s{S_FLG}, s{S_FLG}, {FLAG_OFF}")
    lg = {1: 0, 2: 1, 4: 2, 8: 3}[xs]
    e(f"s_and_b32 s{S_T}, s2, 7")
    e(f"v_lshl_add_u32 v{V_L4}, v{V_LANE}, 3, s{S_T}")
    e(f"v_and_b32 v{V_T}, {(1 << (5 - lg)) - 1}, v{V_LANE}")
    e(f"v_lshlrev_b32 v{V_T}, {3 + lg}, v{V_T}")
    if lg:
        e(f"v_bfe_u32 v{V_RDY}, v{V_LANE}, {5 - lg}, {lg}")
        e(f"v_lshl_add_u32 v{V_T}, v{V_RDY}, {3 - lg}, v{V_T}")
    e(f"v_cmp_gt_u32 vcc, 32, v{V_LANE}")
    e(f"v_cndmask_b32 v{V_L4}, v{V_T}, v{V_L4}, vcc")
    e(f"v_lshlrev_b32 v{V_L4}, 7, v{V_L4}")
    e(f"s_cmp_eq_u32 s{S_QW}, 0")
    e(f"s_cselect_b32 s{S_T}, 0, 0x80000000")
    e(f"s_add_u32 s{S_T}, s{S_T}, {RDY_OFF}")
    e(f"v_add_u32 v{V_L4}, s{S_T}, v{V_L4}")
    info = []
    for job in JOBS:
        a0 = job[0][0]; l0 = job[0][1] - job[0][0]
        a1 = job[1][0] - l0 if len(job) > 1 else a0
        n = sum(b - a for a, b in job)
        info.append(a0 | (l0 << 8) | (a1 << 16) | (n << 24))
    e(f"s_mov_b32 s{S_INFO}, 0")
    for p_ in range(3):
        e(f"s_cmp_eq_u32 s{S_PART}, {p_}")
        e(f"s_cselect_b32 s{S_INFO}, {info[p_]}, s{S_INFO}")
    e(f"v_and_b32 v{V_ST}, 31, v{V_LANE}")
    e(f"v_lshlrev_b32 v{V_ST}, 4, v{V_ST}")
    e(f"v_lshrrev_b32 v{V_T}, 5, v{V_LANE}")
    e(f"v_lshl_add_u32 v{V_ST}, v{V_T}, 15, v{V_ST}")
    e(f"s_mul_i32 s{S_PB}, s{S_J}, {72*32768}")
    e(f"s_lshl_b32 s{S_T}, s{S_QW}, 16")
    e(f"s_add_u32 s{S_PB}, s{S_PB}, s{S_T}")
    e(f"s_lshl_b32 s{S_T}, s{S_RB}, 10")
    e(f"s_add_u32 s{S_PB}, s{S_PB}, s{S_T}")
    e(f"s_and_b32 s{S_T}, s{S_QW}, 1")
    e(f"s_lshl_b32 s{S_T2}, s{S_T}, 5")
    e(f"v_xor_b32 v{V_TR[0]}, s{S_T2}, v{V_TR[0]}")
    e(f"v_xor_b32 v{V_TR[2]}, s{S_T2}, v{V_TR[2]}")
    e(f"s_mul_i32 s{S_T}, s{S_T}, {32*HSTR}")
    e(f"v_subrev_u32 v{V_H}, s{S_T}, v{V_H}")
    e(f"s_mul_i32 s{S_GC2}, s{S_J}, {576*1152}")
    e(f"s_add_u32 s{S_R2E}, s{S_GC2}, {576*1152}")
    e(f"s_mul_i32 s{S_R2}, s{S_ROT}, {64*1152}")
    e(f"s_add_u32 s{S_R2}, s{S_R2}, s{S_GC2}")
    for x in wrap_add(S_R2N, S_R2, 64*1152, S_R2E, f"s{S_GC2}"): e(x)
    e(f"s_mov_b32 s{S_ROT}, s{S_C1N}")
    for x in wrap_add(S_C1, S_C1, 128, S_W1E, f"s{S_ROT}"): e(x)
    for x in wrap_add(S_C1N, S_C1, 128, S_W1E, f"s{S_ROT}"): e(x)
    g.stamp()
    e("s_barrier")
    g.lds = []; g.nvm = 0
    e(f"s_setprio {o.get('pb', 0)}")
    b_fill(g, name)
    e(f"s_lshl_b32 s{S_T}, s2, 7")
    e(f"s_add_u32 s{S_T}, s{S_T}, {RDY_OFF}")
    e(f"v_lshlrev_b32 v{V_T}, 24, v{V_TID}")
    e(f"v_cmp_eq_u32 vcc, 0, v{V_T}")
    e(f"v_bfrev_b32 v{V_T2}, 1")
    e(f"v_cndmask_b32 v{V_T}, v{V_T2}, v{V_T}, vcc")
    e(f"v_mov_b32 v{V_RDY}, s{S_TOK}")
    e(f"s_cmp_eq_u32 s{S_QW}, 0")
    e(f"s_cselect_b32 s{S_ONES}, s{S_TOK}, 0")
    e(f"s_mov_b32 s{S_N}, 3")
    e(f"buffer_store_dword v{V_RDY}, v{V_T}, s[{S_WS}:{S_WS+3}], s{S_T} offen sc1")
    g.nvm = 0
    g.lab(f"{name}_bloop")
    b_block(g, 0)
    b_block(g, 1)
    e(f"s_sub_u32 s{S_N}, s{S_N}, 1")
    e(f"s_cmp_lg_u32 s{S_N}, 0")
    e(f"s_cbranch_scc1 {name}_bloop")
    b_block(g, 0, w1st=(), rdy=f"{name}_rdy")
    if o.get("pbd", 1): e(f"s_setprio {o.get('pbd', 1)}")
    b_block(g, 1, w1st=())
    b_block(g, 0, w1st=(), w2st=(0,), last=True)
    b_tail(g, name)
    g.lab(f"{name}_rdy_slow")
    e(f"s_mov_b32 s{S_N}, {SPIN}")
    g.lab(f"{name}_rdy_lp")
    e(f"buffer_load_dword v{V_RDY}, v{V_L4}, s[{S_WS}:{S_WS+3}], 0 offen sc1")
    e(f"s_sub_u32 s{S_N}, s{S_N}, 1")
    e("s_waitcnt vmcnt(0)")
    e(f"s_cbranch_scc1 {name}_rdy_back")
    e(f"v_cmp_ne_u32 vcc, s{S_ONES}, v{V_RDY}")
    e(f"s_cbranch_vccnz {name}_rdy_lp")
    e(f"s_branch {name}_rdy_back")
    g.lab(f"{name}_tok_slow")
    e(f"s_mov_b32 s{S_N}, {SPIN}")
    g.lab(f"{name}_tok_lp")
    e(f"buffer_load_dword v{V_RDY}, off, s[{S_DBG}:{S_DBG+3}], 0 sc1")
    e(f"s_sub_u32 s{S_N}, s{S_N}, 1")
    e("s_waitcnt vmcnt(0)")
    e(f"s_cbranch_scc1 {name}_tok_back")
    e(f"v_readfirstlane_b32 s{S_TOK}, v{V_RDY}")
    e(f"s_cmp_eq_u32 s{S_TOK}, 0")
    e(f"s_cbranch_scc1 {name}_tok_lp")
    e(f"s_branch {name}_tok_back")
    g.lab(f"{name}_mk")
    e(f"s_mov_b32 s{S_T}, {EPO_OFF}")
    e(f"s_load_dword s{S_TOK}, s[{S_WS}:{S_WS+1}], s{S_T}")
    e(f"v_cmp_eq_u32 vcc, 0, v{V_LANE}")
    e(f"v_bfrev_b32 v{V_T}, 1")
    e(f"v_cndmask_b32 v{V_T}, v{V_T}, v{V_LANE}, vcc")
    e("s_waitcnt lgkmcnt(0)")
    e(f"s_add_u32 s{S_TOK}, s{S_TOK}, 1")
    e(f"s_addc_u32 s{S_TOK}, s{S_TOK}, 0")
    e(f"v_mov_b32 v{V_RDY}, s{S_TOK}")
    e(f"buffer_store_dword v{V_RDY}, v{V_T}, s[{S_DBG}:{S_DBG+3}], 0 offen sc1")
    e(f"buffer_store_dword v{V_RDY}, v{V_T}, s[{S_WS}:{S_WS+3}], s{S_T} offen sc1")
    e(f"s_branch {name}_mkb")
    g.lab(f"{name}_exit")
    e("s_endpgm")
    desc = f""".amdhsa_kernel {name}
  .amdhsa_next_free_vgpr 256
  .amdhsa_next_free_sgpr 100
  .amdhsa_accum_offset 256
  .amdhsa_group_segment_fixed_size 0
  .amdhsa_kernarg_size 112
  .amdhsa_user_sgpr_count 2
  .amdhsa_user_sgpr_kernarg_segment_ptr 1
  .amdhsa_system_sgpr_workgroup_id_x 1
.end_amdhsa_kernel"""
    return "\n".join(g.L) + "\n", desc
```

```python
import sys, json
import k4
KN = "parallel_sum__ssm_conv_h3__dense_activation_gelu__prompt_kernel"
def full(opt):
    b1, d1 = k4.gen(KN, opt)
    return (f"; @launch grid=(256,1,1) block=(512,1,1) lds={k4.LDS_SZ}\n"
            '.amdgcn_target "amdgcn-amd-amdhsa--gfx950"\n.text\n' + b1 +
            '.section .rodata,"a"\n.p2align 6\n' + d1 + "\n")
if __name__ == "__main__":
    opt = json.loads(sys.argv[2]) if len(sys.argv) > 2 else {}
    open(sys.argv[1], "w").write(full(opt))
```

```python
import struct, math
def f32bits(x): return struct.unpack("<I", struct.pack("<f", x))[0]

LDS_SZ = 163840
ASTR = 1184
ACT = LDS_SZ - 64 * ASTR
KSTG = 73728
VSTG = KSTG + 9856
TBL = VSTG
STAMP_OFF = 32 << 20
KVT_OFF = 20 << 20
STAT_OFF = 24 << 20
FLAG_OFF = 25 << 20
RDY_OFF = 26 << 20
EPO_OFF = 27 << 20
JOBS = [[(0, 6), (27, 32)], [(6, 11), (22, 27)], [(11, 22)]]
WSTR = 8704
SPIN = 1 << 15

V_TID = 0; V_LANE = 1
V_TR = [2, 3, 4]
V_FR = 5; V_HW = 6; V_C1 = 7
V_O1 = 8; V_O2 = 9; V_BO = 10; V_ST = 11; V_L0 = 12
V_STAMP = 13; V_T = 14; V_T2 = 15
V_O1B = 52; V_O2B = 53; V_O1G = 54; V_O2G = 55
ACC = [16, 24]
WF = 32
GT = 56; BI = 64; SP = 68; HP = 76; BIG = 112
XR = 16; LT = 112; BR = 104
PKR = 56
V_K1 = 68; V_K2 = 69; V_DUM = 70; V_KFT = 71; V_XA = 72; V_XB = 73; V_KG = 74; V_KST = 75
XA = 64; XB = 68; V_KT = 53
KR = 76; KT = 87; VR = 88; SH = 96; KC = 100; KA = 104
V_TOK = 8; V_RDY = 76; V_L4 = 77
V_AF = 5; V_BF = 6; V_KV = 7; V_YW = 10; V_RA = 52; V_RB = 54; V_FA = 74; V_P = 75; V_CL = 110; V_OOB = 111
AF = 112; CACC = 176; BB = 224; NB = 6
LDA = 76; LDB = 16

S_TOK = 3
S_Q = 4; S_W1 = 8; S_W2 = 12; S_B1 = 16; S_DR = 20; S_WS = 24
S_J = 28; S_RB = 29; S_ROT = 30; S_W = 31; S_QW = 32; S_M0B = 33
S_GC = 34
S_N = 38; S_T = 39; S_T2 = 40
S_COL = 44
S_ROW = [16, 17, 18, 19, 36, 37, 41, 42, 43]
S_PB = 53; S_SI = 54; S_MH = 55
S_PC = 56; S_TM = 58; S_M0G = 56
S_FLG = 62; S_ONES = 63
S_K = 64; S_V = 68; S_SH = 72; S_KVO = 76
S_G = 77; S_PART = 78; S_INFO = 79
S_OUT = 80; S_KF = 84; S_DBG = 88; S_DP = 92; S_BP = 94; S_B2 = 96
S_TA = 92; S_TB = 93; S_IA = 94; S_IB = 95; S_BM = 57; S_KM = 30
S_BV = 64; S_LO = 72; S_HI = 73; S_D = 74; S_PA = 75; S_PQ = 76; S_H2 = 8; S_CH = 9; S_FB = 10; S_GO = 11

class G:
    def __init__(self, opt):
        self.L = []; self.o = opt
        self.lds = []; self.vm = []; self.done = set()
    def e(self, s, tag=None):
        self.L.append("  " + s)
        if s.startswith("ds_"): self.lds.append(tag)
        if s.startswith("buffer_") or s.startswith("global_"): self.vm.append(tag)
    def put(self, x):
        if callable(x): x()
        elif isinstance(x, tuple): self.e(x[0], x[1])
        else: self.e(x)
    def lab(self, s): self.L.append(s + ":")
    def _n(self, q, tags):
        idx = [i for i, t in enumerate(q) if t is not None and t in tags]
        if not idx: return None
        m = max(idx)
        for t in q[:m+1]:
            if t is not None: self.done.add(t)
        n = len(q) - 1 - m
        del q[:m+1]
        return n
    def wait(self, lds=(), vm=(), alllds=False, allvm=False):
        w = []
        if allvm:
            for t in self.vm: self.done.add(t)
            self.vm = []; w.append("vmcnt(0)")
        else:
            n = self._n(self.vm, set(vm))
            if n is not None: w.append(f"vmcnt({min(n, 63)})")
        if alllds:
            for t in self.lds: self.done.add(t)
            self.lds = []; w.append("lgkmcnt(0)")
        else:
            n = self._n(self.lds, set(lds))
            if n is not None: w.append(f"lgkmcnt({min(n, 15)})")
        if w: self.e("s_waitcnt " + " ".join(w))
    def stamp(self):
        if not self.o.get("stamps"): return
        self.e(f"s_memtime s[{S_TM}:{S_TM+1}]")
        self.e(f"s_memrealtime s[{S_TM+2}:{S_TM+3}]")
        self.e("s_waitcnt lgkmcnt(0)")
        self.e(f"s_mov_b32 m0, s{S_SI}")
        self.e(f"s_add_u32 s{S_SI}, s{S_SI}, 1")
        self.e(f"v_writelane_b32 v{V_STAMP}, s{S_TM}, m0")
        self.e(f"s_add_u32 m0, m0, 30")
        self.e(f"s_nop 0")
        self.e(f"v_writelane_b32 v{V_STAMP}, s{S_TM+2}, m0")
    def rstamp(self, lane):
        if not self.o.get("stamps"): return
        self.e(f"s_memrealtime s[{S_TM}:{S_TM+1}]")
        self.e("s_waitcnt lgkmcnt(0)")
        self.e(f"v_writelane_b32 v{V_STAMP}, s{S_TM}, {lane}")

def srd(g, s, nrec):
    g.e(f"s_mov_b32 s{s+2}, {nrec}")
    g.e(f"s_mov_b32 s{s+3}, 0x00020000")

SM = [0]
def slot(N, u):
    if N % 2 == 0: return u
    if N < 9 and SM[0]: return 11 + u
    return 12 + u if u < 8 else 11

def dma(g, N, u, grp=False):
    L = [f"s_add_u32 m0, s{S_M0G if grp else S_M0B}, {slot(N, u) * 8192}"]
    if N < 9:
        L.append(f"s_add_u32 s{S_T}, s{S_COL+N}, {u*64*9216}")
        v, s = (V_O1G if grp else V_O1), S_W1
        v2 = V_O1B
    else:
        L.append(f"s_add_u32 s{S_T}, s{S_COL+N-9}, s{S_ROW[u]}")
        v, s = (V_O2G if grp else V_O2), S_W2
        v2 = V_O2B
    if g.o.get("nodma") and N: return [L]
    L.append((f"buffer_load_dwordx4 v{v}, s[{s}:{s+3}], s{S_T} offen lds", ("u", N, u)))
    if not grp: return [L]
    d2 = (f"buffer_load_dwordx4 v{v2}, s[{s}:{s+3}], s{S_T} offen offset:1024 lds", ("u", N, u))
    if g.o.get("dpair"): return [L + [d2]]
    return [L, [d2]]

def parts(N, ks):
    if N < 9: return [(ks // 2, 2*(ks % 2)), (ks // 2, 2*(ks % 2) + 1)]
    if ks < 16: return [(2*(ks // 4), ks % 4), (2*(ks // 4) + 1, ks % 4)]
    return [(8, 2*(ks - 16)), (8, 2*(ks - 16) + 1)]

def wreads(g, r):
    N, ks = r // 18, r % 18
    b = WF + 4*(r % g.NF)
    L = []
    for h, (u, g16) in enumerate(parts(N, ks)):
        a = slot(N, u)*8192 + 2048*g16
        L.append((f"ds_read_b64_tr_b16 v[{b+2*h}:{b+2*h+1}], v{V_TR[a >> 16]} offset:{a & 0xffff}", ("w", r) if h else None))
    return L

def mfmas(g, i):
    N, ks = i // 18, i % 18
    b = WF + 4*(i % g.NF)
    L = []
    for t in range(2):
        c = ACC[N % 2] + 4*t
        f = BIG + 8*ks + 4*t
        src = f"v[{c}:{c+3}]" if ks else (f"v[{BI}:{BI+3}]" if N < 9 else "0")
        L.append(f"v_mfma_f32_16x16x32_bf16 v[{c}:{c+3}], v[{b}:{b+3}], v[{f}:{f+3}], {src}")
    return L

def sread(ph, k):
    off = (k//2)*64 + (k % 2)*16*ASTR if ph == 0 else 1024*k
    return (f"ds_read_b128 v[{BIG+4*k}:{BIG+4*k+3}], v{V_FR} offset:{off}", ("s", k))

def spread(items, s0, s1, work):
    n = len(items)
    for i, it in enumerate(items):
        s = s0 + (i * (s1 - s0)) // n
        work.setdefault(s, []).extend(it if isinstance(it, list) else [it])

def gelu_list(o, n):
    L = []
    A = ACC[n % 2]
    x = [A + i for i in range(8)]
    t = [GT + i for i in range(8)]
    def dst(i):
        if n == 8: return HP + 32 + i
        return HP + 8*(n // 2) + 4*(i // 2) + 2*(n % 2) + (i % 2)
    if o.get("nogelu"):
        return [f"v_cvt_pk_bf16_f32 v{dst(i)}, v{x[2*i]}, v{x[2*i+1]}" for i in range(4)]
    P = lambda r: f"v[{r}:{r+1}]"
    if o.get("pk", 1):
        sc = f"s[{S_GC}:{S_GC+1}]"
        for i in range(0, 8, 2): L.append(f"v_pk_mul_f32 {P(t[i])}, {P(x[i])}, {P(x[i])}")
        for i in range(0, 8, 2): L.append(f"v_pk_fma_f32 {P(t[i])}, {P(t[i])}, {sc}, {sc} op_sel:[0,0,1] op_sel_hi:[1,0,1]")
        for i in range(0, 8, 2): L.append(f"v_pk_mul_f32 {P(t[i])}, {P(t[i])}, {P(x[i])}")
        for i in range(8): L.append(f"v_exp_f32 v{t[i]}, v{t[i]}")
        for i in range(0, 8, 2): L.append(f"v_pk_add_f32 {P(t[i])}, {P(t[i])}, 1.0 op_sel_hi:[1,0]")
        for i in range(8): L.append(f"v_rcp_f32 v{t[i]}, v{t[i]}")
        for i in range(0, 8, 2): L.append(f"v_pk_mul_f32 {P(t[i])}, {P(t[i])}, {P(x[i])}")
    else:
        for i in range(8): L.append(f"v_mul_f32 v{t[i]}, v{x[i]}, v{x[i]}")
        for i in range(8): L.append(f"v_fma_f32 v{t[i]}, v{t[i]}, s{S_GC}, v{V_C1}")
        for i in range(8): L.append(f"v_mul_f32 v{t[i]}, v{t[i]}, v{x[i]}")
        for i in range(8): L.append(f"v_exp_f32 v{t[i]}, v{t[i]}")
        for i in range(8): L.append(f"v_add_f32 v{t[i]}, 1.0, v{t[i]}")
        for i in range(8): L.append(f"v_rcp_f32 v{t[i]}, v{t[i]}")
        for i in range(8): L.append(f"v_mul_f32 v{t[i]}, v{t[i]}, v{x[i]}")
    for i in range(4): L.append(f"v_cvt_pk_bf16_f32 v{dst(i)}, v{t[2*i]}, v{t[2*i+1]}")
    return L

def cvt(g, n):
    A = ACC[(n + 9) % 2]; P = PKR + 4*(n % g.o.get("npk", 2))
    L = [f"v_cvt_pk_bf16_f32 v{P+i}, v{A+2*i}, v{A+2*i+1}" for i in range(4)]
    L.append("s_nop 0")
    L.append(f"v_permlane16_swap_b32 v{P}, v{P+2}")
    L.append(f"v_permlane16_swap_b32 v{P+1}, v{P+3}")
    return L

def pstore(g, n):
    fl = g.o.get("stflags", "sc1")
    P = PKR + 4*(n % g.o.get("npk", 2))
    L = [f"s_lshl_b32 s{S_T2}, s{S_COL+n}, 11", f"s_add_u32 s{S_T2}, s{S_T2}, s{S_PB}"]
    if not (g.o.get("nostore") or g.o.get("nostore" + g.grp)): L.append((f"buffer_store_dwordx4 v[{P}:{P+3}], v{V_ST}, s[{S_WS}:{S_WS+3}], s{S_T2} offen {fl}", ("p", n)))
    return L

def flag_store(g, n):
    return [f"s_add_u32 s{S_N}, s{S_COL+n}, s{S_FLG}",
            (f"buffer_store_dword v{V_TOK}, v{V_L0}, s[{S_WS}:{S_WS+3}], s{S_N} offen sc1", ("f", n))]

class Sched:
    def __init__(self, g, first):
        self.g = g
        self.q = [(N, u) for N in range(18) for u in range(9)][first:]
        self.rel = set()
    def ok(self, N, u):
        if N == 0: return True
        if N == 1: return "act" in self.rel
        if N == 10: return "h" in self.rel
        if N == 9 and u == 8 and self.g.o.get("kv", 1): return "stg" in self.rel
        if N == 9 and SM[0]: return (7, (u + 1) % 9) in self.rel
        return (N - 2, u) in self.rel
    def release(self, i):
        for N in range(18):
            for u in range(9):
                last = max(ks for ks in range(18) if any(p[0] == u for p in parts(N, ks)))
                if 18*N + last <= i: self.rel.add((N, u))
    def take(self, cap):
        R = []
        while self.q and len(R) < cap and self.ok(*self.q[0]):
            R.append(self.q.pop(0))
        return R

def stream(g, sc, ph, work, endhook=None, hooks=None, pre=None, post=None):
    o = g.o; L = g.LA
    i0 = 162*ph; i1 = i0 + 162
    bs = o.get("bs", [0, 8])
    bars = sorted(18*N + b for N in range(9*ph, 9*ph + 9) for b in (bs if N < 17 or o.get("core") else [L, 12]))
    if o.get("bs6"):
        bars = list(range(i0, i1, 12))
    bars = [b for b in bars if b > i0]
    fb = o.get("fb", 8) + i0
    bars = sorted(set([b for b in bars if b > fb] + [fb]))
    def need(r0):
        nx = min([b for b in bars if b > r0] + [i1])
        return [("u", r // 18, p[0]) for r in range(r0, nx) for p in parts(r // 18, r % 18)], nx
    flagged = set()
    def plan(r0, s0):
        _, nx = need(r0)
        s1 = 2*(nx - L) if nx < i1 else 2*i1 - 2
        cap = (nx - r0 + 1)//2 + o.get("xcap", 1)
        us = sc.take(cap)
        role = g.role(r0)
        it = list(pre.get(r0, [])) if pre else []
        if role in ("A", g.grp): it += [x for N, u in us for x in dma(g, N, u, role != "A")]
        if post: it += post.get(r0, [])
        if it:
            spread(it, s0, s0 + max(len(it), ((s1 - s0) * o.get("dfr", 100)) // 100), work)
        if o.get("prio"):
            work.setdefault(s0, []).insert(0, f"s_setprio {o['prio'] if role == g.grp else 0}")
    ns = 0
    for r in range(i0, i0 + L):
        for x in wreads(g, r): g.put(x)
        if r - i0 < 2:
            g.put(sread(ph, ns)); g.put(sread(ph, ns + 1)); ns += 2
    spread([sread(ph, k) for k in range(ns, 36)], 2*i0, 2*(fb - L) - 1 if o.get("sfast", 1) else 2*i0 + 24, work)
    plan(i0, 2*i0)
    def W(s):
        for x in work.pop(s, []): g.put(x)
    for i in range(i0, i1):
        r = i + L
        tags = [("w", i)]
        if i - i0 < 18: tags += [("s", 2*(i - i0)), ("s", 2*(i - i0) + 1)]
        if i % 18 == 0: tags.append("bias")
        g.wait(lds=tags)
        m = mfmas(g, i)
        if i == i1 - 1 and endhook: endhook()
        if not o.get("nomfma"): g.e(m[0])
        if r in bars:
            nd, _ = need(r)
            left = [x[1] for l in work.values() for x in l if isinstance(x, tuple) and isinstance(x[1], tuple) and x[1][0] == "u"]
            assert not left, (r, left)
            assert not [t for t in nd if t[1:] in sc.q], r
            g.wait(vm=nd, lds=[("s", k) for k in range(36)] if r == fb else ["bias"] if r == 134 else [])
            if hooks and r in hooks: hooks[r]()
            if r % 18 in (o.get("sst", 8), 12) and r // 18 in o.get("sblk", range(18) if o.get("core") else (0, 4, 8, 9, 11, 13, 15, 16, 17)): g.stamp()
            if not o.get("nobar") or r == fb: g.e("s_barrier")
            sc.release(i)
            if r == fb: sc.rel.add("act" if ph == 0 else "h")
            plan(r, 2*i)
        rr = wreads(g, r) if r < i1 and not o.get("noread") else []
        if rr: g.put(rr[0])
        W(2*i)
        if not o.get("nomfma"): g.e(m[1])
        if rr: g.put(rr[1])
        W(2*i + 1)
    assert not [s for s in work if s < 2*i1], sorted(work)
    return flagged

def finish(g):
    if g.o.get("stamps"):
        g.stamp()
        g.e("s_waitcnt vmcnt(0)")
        g.stamp()
        g.rstamp(63)
        g.e(f"s_lshl_b32 s{S_T}, s2, 11")
        g.e(f"s_add_u32 s{S_T}, s{S_T}, {STAMP_OFF}")
        g.e(f"v_lshlrev_b32 v{V_T}, 2, v{V_TID}")
        g.e(f"buffer_store_dword v{V_STAMP}, v{V_T}, s[{S_WS}:{S_WS+3}], s{S_T} offen")
    g.e("s_endpgm")

def bf16round(g, v):
    g.e(f"v_cvt_pk_bf16_f32 v{v}, v{v}, v{v}")
    g.e(f"v_and_b32 v{v}, 0xffff0000, v{v}")

def prologue(g, name):
    o = g.o; e = g.e
    e("s_cmp_ge_u32 s2, 256")
    e(f"s_cbranch_scc1 {name}_exit")
    e(f"s_load_dwordx2 s[{S_Q}:{S_Q+1}], s[0:1], 0")
    if o.get("stamps"):
        e(f"s_mov_b32 s{S_SI}, 0"); e(f"v_mov_b32 v{V_STAMP}, 0")
        g.rstamp(62)
        g.stamp()
    e(f"s_lshr_b32 s{S_RB}, s2, 4")
    e(f"s_and_b32 s{S_T}, s2, 4")
    e(f"s_lshl2_add_u32 s{S_RB}, s{S_T}, s{S_RB}")
    e(f"v_lshrrev_b32 v{LT}, 3, v{V_TID}")
    if o.get("xpair", 1):
        e(f"s_and_b32 s{S_T}, s2, 8")
        e(f"s_lshl_b32 s{S_T}, s{S_T}, 2")
        e(f"v_xor_b32 v{LT}, s{S_T}, v{LT}")
    e(f"v_and_b32 v{LT+1}, 7, v{V_TID}")
    e(f"v_mul_u32_u24 v{LT+2}, 1152, v{LT}")
    e(f"v_lshl_add_u32 v{LT+2}, v{LT+1}, 4, v{LT+2}")
    e(f"s_mul_i32 s{S_T2}, s{S_RB}, {64*1152}")
    srd(g, S_Q, 2359296)
    e("s_waitcnt lgkmcnt(0)")
    if o.get("pst"): g.stamp()
    for i in range(9):
        e(f"buffer_load_dwordx4 v[{XR+4*i}:{XR+4*i+3}], v{LT+2}, s[{S_Q}:{S_Q+3}], s{S_T2} offen offset:{128*i}", ("x", i))
    for s, off in ((S_W1, 56), (S_B1, 64), (S_W2, 72), (S_WS, 104), (S_K, 8), (S_V, 16), (S_SH, 24), (S_KF, 32),
                   (S_DP, 40), (S_BP, 80), (S_OUT, 88), (S_DBG, 96)):
        e(f"s_load_dwordx2 s[{s}:{s+1}], s[0:1], {off}")
    if o.get("pst"): g.stamp()
    e(f"s_getpc_b64 s[{S_PC}:{S_PC+1}]")
    g.lab(f"{name}_pc")
    if o.get("codepf", 1):
        e(f"v_lshlrev_b32 v{V_T}, 7, v{V_TID}")
        e(f"v_min_u32 v{V_T}, {name}_exit-{name}_pc, v{V_T}")
        e(f"global_load_dword v{V_T2}, v{V_T}, s[{S_PC}:{S_PC+1}]")
    e(f"v_lshrrev_b32 v{V_T}, 6, v{V_TID}")
    e(f"v_and_b32 v{V_LANE}, 63, v{V_TID}")
    e(f"v_readfirstlane_b32 s{S_W}, v{V_T}")
    e(f"s_and_b32 s{S_J}, s2, 3")
    e(f"s_bfe_u32 s{S_T}, s2, {3 | (1 << 16)}")
    e(f"s_lshl1_add_u32 s{S_J}, s{S_J}, s{S_T}")
    srd(g, S_W1, 5308416); srd(g, S_W2, 5308416); srd(g, S_B1, 9216)
    srd(g, S_WS, 268435456)
    srd(g, S_K, 2359296); srd(g, S_V, 2359296); srd(g, S_SH, 4608)
    srd(g, S_KF, 2359296); srd(g, S_OUT, 2359296); srd(g, S_DBG, 256)
    e(f"s_and_b32 s{S_QW}, s{S_W}, 3")
    e(f"s_lshr_b32 s{S_MH}, s{S_W}, 2")
    e(f"s_lshl_b32 s{S_M0B}, s{S_W}, 10")
    e(f"s_mul_i32 s{S_T}, s{S_RB}, 57")
    e(f"s_lshr_b32 s{S_T}, s{S_T}, 9")
    e(f"s_mul_i32 s{S_T}, s{S_T}, 9")
    e(f"s_sub_u32 s{S_ROT}, s{S_RB}, s{S_T}")
    e(f"s_lshl_b32 s{S_COL}, s{S_ROT}, 7")
    for u in range(1, 9):
        e(f"s_add_u32 s{S_COL+u}, s{S_COL+u-1}, 128")
        e(f"s_cmp_eq_u32 s{S_COL+u}, 1152")
        e(f"s_cselect_b32 s{S_COL+u}, 0, s{S_COL+u}")
    e(f"v_lshrrev_b32 v{LT+3}, 3, v{V_TID}")
    e(f"v_and_b32 v{LT+4}, 6, v{LT+3}")
    e(f"v_xor_b32 v{LT+4}, v{LT+4}, v{LT+1}")
    e(f"v_lshlrev_b32 v{LT+4}, 4, v{LT+4}")
    e(f"s_mul_i32 s{S_N}, s{S_J}, 1152")
    e(f"v_mul_u32_u24 v{V_O1}, 9216, v{LT+3}")
    e(f"v_add3_u32 v{V_O1}, v{V_O1}, v{LT+4}, s{S_N}")
    e(f"s_mul_i32 s{S_T}, s{S_J}, {576*1152}")
    e(f"v_mul_u32_u24 v{V_O2}, 1152, v{LT+3}")
    e(f"v_add3_u32 v{V_O2}, v{V_O2}, v{LT+4}, s{S_T}")
    e(f"s_lshl_b32 s{S_T}, s{S_QW}, 1")
    e(f"s_sub_u32 s{S_T}, s{S_T}, s{S_W}")
    e(f"s_mul_i32 s{S_T2}, s{S_T}, {8*9216}")
    e(f"v_add_u32 v{V_O1G}, s{S_T2}, v{V_O1}")
    e(f"v_add_u32 v{V_O1B}, {8*9216-1024}, v{V_O1G}")
    e(f"s_mul_i32 s{S_T2}, s{S_T}, {8*1152}")
    e(f"v_add_u32 v{V_O2G}, s{S_T2}, v{V_O2}")
    e(f"v_add_u32 v{V_O2B}, {8*1152-1024}, v{V_O2G}")
    e(f"s_lshl_b32 s{S_M0G}, s{S_QW}, 11")
    e(f"v_lshl_add_u32 v{V_BO}, v{V_TID}, 2, s{S_COL}")
    e(f"v_subrev_u32 v{V_T}, 1152, v{V_BO}")
    e(f"v_min_u32 v{V_BO}, v{V_BO}, v{V_T}")
    e(f"v_lshrrev_b32 v{LT+8}, 4, v{V_LANE}")
    e(f"v_lshrrev_b32 v{LT+9}, 2, v{V_LANE}")
    e(f"v_lshlrev_b32 v{V_TR[0]}, 7, v{LT+9}")
    e(f"v_bfe_u32 v{LT+9}, v{V_LANE}, 3, 2")
    e(f"v_xor_b32 v{LT+9}, s{S_QW}, v{LT+9}")
    e(f"v_lshl_add_u32 v{V_TR[0]}, v{LT+9}, 5, v{V_TR[0]}")
    e(f"v_and_b32 v{LT+9}, 3, v{V_LANE}")
    e(f"v_lshl_add_u32 v{V_TR[0]}, v{LT+9}, 3, v{V_TR[0]}")
    e(f"v_add_u32 v{V_TR[1]}, 65536, v{V_TR[0]}")
    e(f"v_add_u32 v{V_TR[2]}, 131072, v{V_TR[0]}")
    e(f"s_mul_i32 s{S_T}, s{S_MH}, {32*ASTR}")
    e(f"s_add_u32 s{S_T}, s{S_T}, {ACT}")
    e(f"v_and_b32 v{LT+7}, 15, v{V_LANE}")
    e(f"v_mul_u32_u24 v{V_FR}, {ASTR}, v{LT+7}")
    e(f"v_lshl_add_u32 v{V_FR}, v{LT+8}, 4, v{V_FR}")
    e(f"v_add_u32 v{V_FR}, s{S_T}, v{V_FR}")
    e(f"v_mul_u32_u24 v{LT+2}, {ASTR}, v{LT}")
    e(f"v_bfe_u32 v{LT+9}, v{V_LANE}, 2, 1")
    e(f"v_lshl_add_u32 v{LT+2}, v{LT+9}, 6, v{LT+2}")
    e(f"v_and_b32 v{LT+9}, 1, v{V_LANE}")
    e(f"v_lshl_add_u32 v{LT+2}, v{LT+9}, 5, v{LT+2}")
    e(f"v_bfe_u32 v{LT+9}, v{V_LANE}, 1, 1")
    e(f"v_lshl_add_u32 v{LT+2}, v{LT+9}, 3, v{LT+2}")
    e(f"v_add_u32 v{LT+2}, {ACT}, v{LT+2}")
    c1 = 2.0 * math.sqrt(2.0 / math.pi) * math.log2(math.e)
    e(f"v_mov_b32 v{V_C1}, 0x{f32bits(-c1):08x}")
    e(f"s_mov_b32 s{S_GC}, 0x{f32bits(-c1*0.044715):08x}")
    e(f"s_mov_b32 s{S_GC+1}, 0x{f32bits(-c1):08x}")
    e(f"v_or_b32 v{LT+5}, s{S_J}, v{LT+1}")
    e(f"v_lshlrev_b32 v{LT+5}, 28, v{LT+5}")
    e(f"v_lshl_add_u32 v{LT+5}, v{LT}, 3, v{LT+5}")
    SA, SB, QA, QB, ONE = LT+10, LT+11, LT+12, LT+13, LT+14
    for r in (SA, SB, QA, QB): e(f"v_mov_b32 v{r}, 0")
    e(f"v_mov_b32 v{ONE}, 0x3f803f80")
    e(f"s_lshr_b32 s{S_T}, s2, 3")
    e(f"s_mul_i32 s{S_PART}, s{S_T}, 57")
    e(f"s_lshr_b32 s{S_PART}, s{S_PART}, 9")
    e(f"s_and_b32 s{S_G}, s2, 7")
    e(f"s_sub_u32 s{S_G}, s{S_G}, s{S_PART}")
    e(f"s_mul_i32 s{S_G}, s{S_G}, 9")
    e(f"s_add_u32 s{S_G}, s{S_G}, s{S_T}")
    e(f"s_lshl_b32 s{S_T}, s{S_G}, 4")
    e("s_waitcnt lgkmcnt(0)")
    e(f"s_load_dwordx4 s[{S_DR}:{S_DR+3}], s[{S_DP}:{S_DP+1}], s{S_T}")
    e(f"s_load_dwordx4 s[{S_B2}:{S_B2+3}], s[{S_BP}:{S_BP+1}], s{S_T}")
    e(f"s_or_b32 s{S_T}, s2, s{S_W}")
    e(f"s_cbranch_scc0 {name}_mk")
    g.lab(f"{name}_mkb")
    if o.get("pst"): g.stamp()
    if o.get("xbar", 1): e("s_barrier")
    e(f"buffer_load_dword v{BR}, v{V_BO}, s[{S_B1}:{S_B1+3}], s{S_N} offen", "b1")
    pl = o.get("pl", [-2, -2, -2, -2, -1, 3, 5, 7, 8])
    def pd(pos):
        for u in range(9):
            if pl[u] == pos:
                for x in dma(g, 0, u)[0]: g.put(x)
        if o.get("cv") == 3 and o["evp"] == pos:
            for x in touches(o, S_TM, S_TM + 1): g.put(x)
    pd(-3)
    pd(-2)
    if o.get("pst"): g.stamp()
    for i in range(9):
        g.wait(vm=[("x", i)])
        if i == 0: g.stamp()
        for c in range(4):
            x = XR + 4*i + c
            e(f"v_dot2c_f32_bf16 v{SA if c%2==0 else SB}, v{x}, v{ONE}")
            e(f"v_dot2c_f32_bf16 v{QA if c%2==0 else QB}, v{x}, v{x}")
    g.stamp()
    pd(-1)
    e("s_nop 2")
    e(f"v_add_f32 v{SA}, v{SA}, v{SB}")
    e(f"v_add_f32 v{QA}, v{QA}, v{QB}")
    for dpp in ("quad_perm:[1,0,3,2]", "quad_perm:[2,3,0,1]", "row_half_mirror"):
        e("s_nop 0")
        e(f"v_add_f32 v{SA}, v{SA}, v{SA} {dpp} row_mask:0xf bank_mask:0xf")
        e(f"v_add_f32 v{QA}, v{QA}, v{QA} {dpp} row_mask:0xf bank_mask:0xf")
    inv = f"0x{f32bits(1.0/576.0):08x}"
    e(f"v_mul_f32 v{SA}, {inv}, v{SA}")
    e(f"v_mul_f32 v{QA}, {inv}, v{QA}")
    e(f"v_fma_f32 v{QA}, -v{SA}, v{SA}, v{QA}")
    e(f"v_max_f32 v{QA}, 0, v{QA}")
    bf16round(g, SA)
    bf16round(g, QA)
    e(f"v_add_f32 v{QA}, 0x{f32bits(1e-5):08x}, v{QA}")
    bf16round(g, QA)
    e(f"v_sqrt_f32 v{QA}, v{QA}")
    e("s_nop 0")
    bf16round(g, QA)
    e(f"v_rcp_f32 v{QA}, v{QA}")
    e("s_nop 0")
    e(f"v_mul_f32 v{QB}, -v{SA}, v{QA}")
    assert QA % 2 == 0
    T0 = LT + 16
    for i in range(9):
        t = T0 + 8*(i % 2)
        for c in range(4):
            x = XR + 4*i + c
            e(f"v_lshlrev_b32 v{t+2*c}, 16, v{x}")
            e(f"v_and_b32 v{t+2*c+1}, 0xffff0000, v{x}")
        for c in range(4):
            e(f"v_pk_fma_f32 v[{t+2*c}:{t+2*c+1}], v[{t+2*c}:{t+2*c+1}], v[{QA}:{QA+1}], v[{QA}:{QA+1}] op_sel:[0,0,1] op_sel_hi:[1,0,1]")
        for c in range(4):
            x = XR + 4*i + c
            e(f"v_cvt_pk_bf16_f32 v{x}, v{t+2*c}, v{t+2*c+1}")
        x = XR + 4*i
        e(f"ds_write2_b64 v{LT+2}, v[{x}:{x+1}], v[{x+2}:{x+3}] offset0:{16*i} offset1:{16*i+2}")
        if i == 1:
            g.wait(vm=["b1"])
            e(f"v_lshlrev_b32 v{SA}, 16, v{BR}")
            e(f"v_and_b32 v{SB}, 0xffff0000, v{BR}")
            e(f"v_lshlrev_b32 v{V_BO}, 3, v{V_TID}")
            e(f"v_add_u32 v{V_BO}, {TBL}, v{V_BO}")
            e(f"ds_write_b64 v{V_BO}, v[{SA}:{SB}]")
        pd(i)
    g.stamp()
    e(f"s_lshl_b32 s{S_T}, s{S_RB}, 9")
    e(f"s_add_u32 s{S_T}, s{S_T}, {STAT_OFF}")
    e(f"buffer_store_dwordx2 v[{QA}:{QB}], v{LT+5}, s[{S_WS}:{S_WS+3}], s{S_T} offen sc1", "stat")
    e(f"s_lshl_b32 s{S_T}, s{S_QW}, 6")
    e(f"s_add_u32 s{S_T}, s{S_T}, {TBL}")
    e(f"v_lshl_add_u32 v{V_BO}, v{LT+8}, 4, s{S_T}")
    fb = o.get("fb", 8)
    g.wait(vm=[("u", 0, u) for u in range((fb + 1)//2)], alllds=True)
    g.stamp()
    e("s_barrier")

def bias_read(n):
    return [(f"ds_read_b128 v[{BI}:{BI+3}], v{V_BO} offset:{256*n}", "bias")]

def setup2():
    L = []; e = L.append
    for u in range(9): e(f"s_mul_i32 s{S_ROW[u]}, s{S_COL+u}, 576")
    e(f"v_and_b32 v{V_ST}, 31, v{V_LANE}")
    e(f"v_lshlrev_b32 v{V_ST}, 4, v{V_ST}")
    e(f"v_lshrrev_b32 v{V_T}, 5, v{V_LANE}")
    e(f"v_lshl_add_u32 v{V_ST}, v{V_T}, 15, v{V_ST}")
    e(f"s_mul_i32 s{S_PB}, s{S_J}, 36")
    e(f"s_add_u32 s{S_PB}, s{S_PB}, s{S_QW}")
    e(f"s_lshl_b32 s{S_PB}, s{S_PB}, 6")
    e(f"s_add_u32 s{S_PB}, s{S_PB}, s{S_RB}")
    e(f"s_lshl1_add_u32 s{S_PB}, s{S_PB}, s{S_MH}")
    e(f"s_lshl_b32 s{S_PB}, s{S_PB}, 9")
    e(f"s_mul_i32 s{S_N}, s{S_MH}, 18")
    e(f"s_add_u32 s{S_N}, s{S_N}, s{S_QW}")
    e(f"s_lshl_b32 s{S_N}, s{S_N}, 11")
    e(f"v_lshl_add_u32 v{V_HW}, v{V_LANE}, 4, s{S_N}")
    e(f"v_min_u32 v{V_L0}, 1, v{V_TID}")
    e(f"v_lshlrev_b32 v{V_L0}, 31, v{V_L0}")
    e(f"s_mul_i32 s{S_FLG}, s{S_RB}, 288")
    e(f"s_add_u32 s{S_FLG}, s{S_FLG}, s{S_J}")
    e(f"s_lshl2_add_u32 s{S_FLG}, s{S_FLG}, {FLAG_OFF}")
    return L

def atoms(L):
    R = []; open_ = False
    for x in L:
        t = x[0] if isinstance(x, tuple) else x
        if isinstance(t, str) and (t.startswith("s_cselect") or (open_ and t.startswith("s_mov"))): R[-1].append(x)
        else:
            R.append([x]); open_ = isinstance(t, str) and t.startswith("s_cmp")
    return R

def setup3():
    L = []; e = L.append
    e(f"s_lshr_b32 s{S_T2}, s2, 3")
    e(f"s_lshl_b32 s{S_KVO}, s{S_T2}, 7")
    e(f"s_mul_i32 s{S_T2}, s{S_T2}, {64*1152}")
    e(f"s_and_b32 s{S_ONES}, s2, 7")
    e(f"s_mul_i32 s{S_N}, s{S_ONES}, 144")
    e(f"s_add_u32 s{S_T2}, s{S_T2}, s{S_N}")
    e(f"s_sub_u32 s{S_T2}, s{S_T2}, 9216")
    e(f"s_mul_i32 s{S_N}, s{S_ONES}, {72*4096}")
    e(f"s_add_u32 s{S_KVO}, s{S_KVO}, s{S_N}")
    e(f"s_add_u32 s{S_KVO}, s{S_KVO}, {KVT_OFF}")
    e(f"s_mul_i32 s{S_N}, s{S_W}, 77")
    e(f"s_lshl4_add_u32 s{S_KM}, s{S_N}, {KSTG}")
    for V, add in ((V_K1, 45), (V_K2, 64)):
        e(f"s_add_u32 s{S_N}, s{S_N}, {add}")
        e(f"v_add_u32 v{V_T}, s{S_N}, v{V_LANE}")
        e(f"v_mul_u32_u24 v{V_T2}, 898, v{V_T}")
        e(f"v_lshrrev_b32 v{V_T2}, 16, v{V_T2}")
        e(f"v_mul_u32_u24 v{V}, 73, v{V_T2}")
        e(f"v_sub_u32 v{V_T}, v{V_T}, v{V}")
        e(f"v_mul_u32_u24 v{V}, 9216, v{V_T2}")
        e(f"v_lshl_add_u32 v{V}, v{V_T}, 4, v{V}")
        e(f"v_mul_u32_u24 v{V_T}, 57, v{V_T}")
        e(f"v_lshrrev_b32 v{V_T}, 9, v{V_T}")
        e(f"v_mul_u32_u24 v{V_T}, 1008, v{V_T}")
        e(f"v_add3_u32 v{V}, v{V}, v{V_T}, s{S_T2}")
    e(f"s_min_u32 s{S_N}, s{S_W}, 4")
    e(f"s_lshl2_add_u32 s{S_N}, s{S_W}, s{S_N}")
    e(f"s_sub_u32 s{S_T2}, 4, s{S_MH}")
    e(f"v_lshrrev_b32 v{V_T}, 3, v{V_LANE}")
    e(f"v_sub_u32 v{V_KST}, s{S_T2}, v{V_T}")
    e(f"v_and_b32 v{V_KST}, 0x80000000, v{V_KST}")
    e(f"v_add_u32 v{V_T}, s{S_N}, v{V_T}")
    e(f"v_and_b32 v{V_T2}, 7, v{V_LANE}")
    e(f"v_lshl_or_b32 v{V_KST}, v{V_T}, 13, v{V_KST}")
    e(f"v_lshl_or_b32 v{V_KST}, v{V_T2}, 4, v{V_KST}")
    e(f"v_mul_u32_u24 v{V_KG}, 1168, v{V_T2}")
    e(f"v_lshl_add_u32 v{V_KG}, v{V_T}, 2, v{V_KG}")
    e(f"v_add_u32 v{V_KG}, {KSTG - 720}, v{V_KG}")
    e(f"s_lshl3_add_u32 s{S_N}, s{S_PART}, s{S_W}")
    e(f"s_mul_i32 s{S_N}, s{S_N}, 11")
    e(f"v_add_u32 v{V_KFT}, s{S_N}, v{V_LANE}")
    e(f"v_min_u32 v{V_KFT}, 255, v{V_KFT}")
    e(f"s_lshl_b32 s{S_N}, s{S_G}, 8")
    e(f"v_add_lshl_u32 v{V_KFT}, v{V_KFT}, s{S_N}, 7")
    e(f"s_lshr_b32 s{S_N}, s2, 3")
    e(f"s_lshl3_add_u32 s{S_N}, s{S_N}, s{S_W}")
    e(f"s_mul_i32 s{S_N}, s{S_N}, 72")
    e(f"s_add_u32 s{S_N}, s{S_N}, s{S_ONES}")
    e(f"v_bfe_u32 v{V_T}, v{V_LANE}, 1, 3")
    e(f"v_lshl_add_u32 v{V_T}, v{V_T}, 3, v{V_T}")
    e(f"v_and_b32 v{V_KT}, 1, v{V_LANE}")
    e(f"v_add3_u32 v{V_KT}, v{V_KT}, v{V_T}, s{S_N}")
    e(f"v_lshlrev_b32 v{V_KT}, 7, v{V_KT}")
    e(f"s_mov_b32 s{S_INFO}, 0")
    for p_, job in enumerate(JOBS):
        a0 = job[0][0]; l0 = job[0][1] - job[0][0]
        a1 = job[1][0] - l0 if len(job) > 1 else a0
        n = sum(b - a for a, b in job)
        e(f"s_cmp_eq_u32 s{S_PART}, {p_}")
        e(f"s_cselect_b32 s{S_INFO}, {a0 | (l0 << 8) | (a1 << 16) | (n << 24)}, s{S_INFO}")
    e(f"s_bfe_u32 s{S_N}, s{S_INFO}, {8 | (8 << 16)}")
    e(f"s_bfe_u32 s{S_T2}, s{S_INFO}, {16 | (8 << 16)}")
    e(f"s_and_b32 s{S_ONES}, s{S_INFO}, 255")
    e(f"s_add_u32 s{S_IB}, s{S_W}, 8")
    e(f"s_cmp_lt_u32 s{S_W}, s{S_N}")
    e(f"s_cselect_b32 s{S_TA}, s{S_ONES}, s{S_T2}")
    e(f"s_cmp_lt_u32 s{S_IB}, s{S_N}")
    e(f"s_cselect_b32 s{S_TB}, s{S_ONES}, s{S_T2}")
    e(f"s_add_u32 s{S_TA}, s{S_TA}, s{S_W}")
    e(f"s_add_u32 s{S_TB}, s{S_TB}, s{S_IB}")
    e(f"s_lshr_b32 s{S_INFO}, s{S_INFO}, 24")
    e(f"s_cmp_lt_u32 s{S_IB}, s{S_INFO}")
    e(f"s_cselect_b32 s{S_BM}, 0xffff0000, 0")
    e(f"s_cselect_b32 s{S_TB}, s{S_TB}, s{S_TA}")
    e(f"s_lshr_b32 s{S_N}, s{S_G}, 3")
    e(f"s_add_u32 s{S_N}, s{S_N}, 36")
    e(f"s_sub_u32 s{S_T2}, s{S_N}, s{S_TB}")
    e(f"s_sub_u32 s{S_N}, s{S_N}, s{S_TA}")
    for r in (S_N, S_T2):
        e(f"s_mul_i32 s{S_ONES}, s{r}, 57")
        e(f"s_lshr_b32 s{S_ONES}, s{S_ONES}, 9")
        e(f"s_mul_i32 s{S_ONES}, s{S_ONES}, 9")
        e(f"s_sub_u32 s{r}, s{r}, s{S_ONES}")
    e(f"s_cmp_lt_u32 s{S_N}, s{S_T2}")
    e(f"s_cselect_b32 s{S_ONES}, s{S_TB}, s{S_TA}")
    e(f"s_cselect_b32 s{S_TB}, s{S_TA}, s{S_TB}")
    e(f"s_mov_b32 s{S_TA}, s{S_ONES}")
    e(f"s_cselect_b32 s{S_IA}, s{S_IB}, s{S_W}")
    e(f"s_cselect_b32 s{S_IB}, s{S_W}, s{S_IB}")
    e(f"v_mul_u32_u24 v{V_T}, 1152, v{V_LANE}")
    e(f"s_mul_i32 s{S_N}, s{S_TA}, {64*1152}")
    e(f"s_lshl4_add_u32 s{S_N}, s{S_G}, s{S_N}")
    e(f"s_cmp_eq_u32 s{S_PART}, 3")
    e(f"s_cselect_b32 s{S_T2}, 0x80000000, 0")
    e(f"s_or_b32 s{S_N}, s{S_N}, s{S_T2}")
    e(f"v_add_u32 v{V_XA}, s{S_N}, v{V_T}")
    e(f"s_mul_i32 s{S_N}, s{S_TB}, {64*1152}")
    e(f"s_lshl4_add_u32 s{S_N}, s{S_G}, s{S_N}")
    e(f"s_andn2_b32 s{S_T2}, 0x80000000, s{S_BM}")
    e(f"s_or_b32 s{S_N}, s{S_N}, s{S_T2}")
    e(f"v_add_u32 v{V_XB}, s{S_N}, v{V_T}")
    e(f"s_lshr_b32 s{S_INFO}, s2, 3")
    e(f"s_mul_i32 s{S_N}, s{S_PART}, 9")
    e(f"s_sub_u32 s{S_INFO}, s{S_INFO}, s{S_N}")
    e(f"s_lshl_b32 s{S_N}, s{S_INFO}, 1")
    e(f"s_lshr_b32 s{S_ONES}, 0x24924, s{S_N}")
    e(f"s_and_b32 s{S_ONES}, s{S_ONES}, 3")
    return atoms(L)

def stage_items(sr, off, tag, touch=None):
    ld = lambda v: (f"buffer_load_dwordx4 v{v}, s[{sr}:{sr+3}], 0 offen lds", tag)
    tc = lambda v: [f"buffer_load_dword v{V_DUM}, v{v}, s[{touch}:{touch+3}], 0 offen"] if touch else []
    R = [[f"s_add_u32 m0, s{S_KM}, {off}", "s_nop 0", ld(V_K1)]]
    if touch: R.append(tc(V_K1))
    R.append([f"s_add_u32 m0, s{S_KM}, {off + 1024}", "s_mov_b64 exec, 0x1fff", ld(V_K2)] + tc(V_K2) + ["s_mov_b64 exec, -1"])
    return R

def cold_items(m=15):
    R = stage_items(S_K, 0, "kst", S_V if m & 2 else None) if m & 1 else []
    if m & 4: R.append([f"s_add_u32 s{S_N}, s{S_COL}, s{S_ROW[8]}",
              f"buffer_load_dword v{V_DUM}, v{V_O2}, s[{S_W2}:{S_W2+3}], s{S_N} offen"])
    if m & 8: R.append([f"s_lshl_b32 s{S_N}, s{S_G}, 15",
              f"buffer_load_dword v{V_DUM}, v{V_KFT}, s[{S_KF}:{S_KF+3}], s{S_N} offen"])
    return R

def touches(o, A=S_N, B=S_T2):
    m = o.get("em", 7)
    L = [f"s_lshr_b32 s{A}, s2, 3", f"s_lshl3_add_u32 s{A}, s{A}, s{S_W}", f"s_mul_i32 s{A}, s{A}, 72",
         f"s_and_b32 s{B}, s2, 7", f"s_add_u32 s{A}, s{A}, s{B}", f"s_lshl_b32 s{A}, s{A}, 7",
         f"v_bfe_u32 v{V_T}, v{V_LANE}, 1, 3", f"v_lshl_add_u32 v{V_T}, v{V_T}, 3, v{V_T}", f"v_and_b32 v{V_KFT}, 1, v{V_LANE}",
         f"v_add_lshl_u32 v{V_T}, v{V_T}, v{V_KFT}, 7",
         f"s_lshl3_add_u32 s{B}, s{S_PART}, s{S_W}", f"s_mul_i32 s{B}, s{B}, 11",
         f"v_add_u32 v{V_KFT}, s{B}, v{V_LANE}", f"v_min_u32 v{V_KFT}, 255, v{V_KFT}", f"v_lshlrev_b32 v{V_KFT}, 7, v{V_KFT}",
         f"s_lshl_b32 s{B}, s{S_G}, 15",
         "s_mov_b64 exec, 0xffff"]
    if m & 1: L.append(f"buffer_load_dword v{V_DUM}, v{V_T}, s[{S_K}:{S_K+3}], s{A} offen")
    if m & 2: L.append(f"buffer_load_dword v{V_DUM}, v{V_T}, s[{S_V}:{S_V+3}], s{A} offen")
    L.append("s_mov_b64 exec, 0x7ff")
    if m & 4: L.append(f"buffer_load_dword v{V_DUM}, v{V_KFT}, s[{S_KF}:{S_KF+3}], s{B} offen")
    L.append("s_mov_b64 exec, -1")
    return L

def early_items(o):
    m = o.get("em", 7)
    K = sum(stage_items(S_K, 0, None), []) if m & 1 else []
    if o.get("vt", 1):
        V = [f"s_lshr_b32 s{S_N}, s2, 3", f"s_lshl3_add_u32 s{S_N}, s{S_N}, s{S_W}", f"s_mul_i32 s{S_N}, s{S_N}, 72",
             f"s_and_b32 s{S_T2}, s2, 7", f"s_add_u32 s{S_N}, s{S_N}, s{S_T2}", f"s_lshl_b32 s{S_N}, s{S_N}, 7",
             f"v_bfe_u32 v{V_T}, v{V_LANE}, 1, 3", f"v_mul_u32_u24 v{V_T}, 9, v{V_T}", f"v_and_b32 v{V_T2}, 1, v{V_LANE}",
             f"v_add_lshl_u32 v{V_T}, v{V_T}, v{V_T2}, 7", "s_mov_b64 exec, 0xffff",
             f"buffer_load_dword v{V_DUM}, v{V_T}, s[{S_V}:{S_V+3}], s{S_N} offen", "s_mov_b64 exec, -1"]
    else:
        V = [f"buffer_load_dword v{V_DUM}, v{V_K1}, s[{S_V}:{S_V+3}], 0 offen", "s_mov_b64 exec, 0x1fff",
             f"buffer_load_dword v{V_DUM}, v{V_K2}, s[{S_V}:{S_V+3}], 0 offen", "s_mov_b64 exec, -1"]
    F = sum(cold_items(8), [])
    return [K, V if m & 2 else [], F if m & 4 else []]

def kv_compute(g):
    L = [lambda: g.wait(vm=["sh"])]; e = L.append
    up = lambda d, r, h: f"v_and_b32 v{d}, 0xffff0000, v{r}" if h else f"v_lshlrev_b32 v{d}, 16, v{r}"
    if g.o.get("kf", 1):
        U = [52, 53, 54, 55]
        for h in range(2):
            for j in range(4): e(up(KC + j, SH + 2*h + j//2, j % 2))
            e(up(U[0], KR, h))
            for i in range(11):
                if i < 10: e(up(U[(i + 1) % 2], KR + i + 1, h))
                for j in range(4):
                    t = i - 3 + j
                    if 0 <= t < 8: e(f"{'v_mul_f32' if j == 3 else 'v_fmac_f32'} v{KA+t}, v{KC+j}, v{U[i % 2]}")
            for t0 in (0, 4):
                for t in range(t0, t0 + 4): e(up(U[t % 4], VR + t, h))
                for t in range(t0, t0 + 4): e(f"v_mul_f32 v{KA+t}, v{KA+t}, v{U[t % 4]}")
            O = KA if h else PKR + 4
            for t in range(4): e(f"v_cvt_pk_bf16_f32 v{O+t}, v{KA+2*t}, v{KA+2*t+1}")
        return L
    for h in range(2):
        for j in range(4):
            w = SH + 2*h + j//2
            if h == 0: e(f"v_lshrrev_b32 v{KC+j}, 16, v{w}" if j % 2 else f"v_and_b32 v{KC+j}, 0xffff, v{w}")
            else: e(f"v_and_b32 v{KC+j}, 0xffff0000, v{w}" if j % 2 else f"v_lshlrev_b32 v{KC+j}, 16, v{w}")
        for j in (3, 2, 1, 0):
            for t in range(8):
                if j == 3: e(f"v_dot2_f32_bf16 v{KA+t}, v{KR+t+3-j}, v{KC+j}, 0")
                else: e(f"v_dot2c_f32_bf16 v{KA+t}, v{KR+t+3-j}, v{KC+j}")
        for t0 in (0, 4):
            for t in range(t0, t0 + 4):
                e(f"v_and_b32 v{KC+t%4}, 0xffff0000, v{VR+t}" if h else f"v_lshlrev_b32 v{KC+t%4}, 16, v{VR+t}")
            for t in range(t0, t0 + 4): e(f"v_mul_f32 v{KA+t}, v{KA+t}, v{KC+t%4}")
        O = KA if h else PKR + 4
        for t in range(4): e(f"v_cvt_pk_bf16_f32 v{O+t}, v{KA+2*t}, v{KA+2*t+1}")
    return L

def kv_store():
    return [[(f"buffer_store_dwordx4 v[{PKR+4}:{PKR+7}], v{V_KST}, s[{S_WS}:{S_WS+3}], s{S_KVO} offen sc1", "kv0"),
             f"s_add_u32 s{S_KVO}, s{S_KVO}, 4096"],
            [(f"buffer_store_dwordx4 v[{KA}:{KA+3}], v{V_KST}, s[{S_WS}:{S_WS+3}], s{S_KVO} offen sc1", "kv1")]]

def setup4():
    L = []; e = L.append
    A, B = S_GC, S_GC + 1
    e(f"v_bfrev_b32 v{V_OOB}, 1")
    e(f"s_and_b32 s{A}, s2, 7")
    e(f"v_and_b32 v{V_L4}, 31, v{V_LANE}")
    e(f"v_lshl_add_u32 v{V_L4}, v{V_L4}, 3, s{A}")
    e(f"s_cmp_eq_u32 s{S_W}, 0")
    e(f"s_cselect_b32 s{A}, {RDY_OFF}, s{S_LO}")
    e(f"s_cselect_b32 s{S_ONES}, s{S_TOK}, 0")
    e(f"v_lshl_add_u32 v{V_L4}, v{V_L4}, 7, s{A}")
    e(f"s_mul_i32 s{S_H2}, s{S_W}, {WSTR}")
    e(f"s_lshl3_add_u32 s{S_CH}, s{S_G}, s{S_W}")
    e(f"s_lshl_b32 s{S_CH}, s{S_CH}, 12")
    e(f"v_and_b32 v{V_CL}, v{V_OOB}, v{V_XA}")
    e(f"v_lshl_or_b32 v{V_CL}, v{V_LANE}, 4, v{V_CL}")
    e(f"v_lshl_add_u32 v{V_YW}, v{V_LANE}, 2, s{S_H2}")
    e(f"s_add_u32 s{A}, s{S_H2}, 4608")
    e(f"v_lshl_add_u32 v{V_KV}, v{V_LANE}, 1, s{A}")
    e(f"v_lshrrev_b32 v{V_T2}, 4, v{V_LANE}")
    e(f"v_bfe_u32 v{V_AF}, v{V_LANE}, 2, 2")
    e(f"v_lshl_add_u32 v{V_T2}, v{V_T2}, 3, v{V_AF}")
    e(f"v_and_b32 v{V_BF}, 3, v{V_LANE}")
    e(f"v_add_u32 v{V_AF}, v{V_T2}, v{V_BF}")
    e(f"s_add_u32 s{A}, s{S_H2}, {256 - 24}")
    e(f"v_lshl_add_u32 v{V_AF}, v{V_AF}, 3, s{A}")
    e(f"v_lshlrev_b32 v{V_BF}, 2, v{V_BF}")
    e(f"v_sub_u32 v{V_BF}, v{V_BF}, v{V_T2}")
    e(f"s_add_u32 s{A}, s{S_H2}, {4608 + 24 - 32}")
    e(f"v_lshl_add_u32 v{V_BF}, v{V_BF}, 3, s{A}")
    e(f"s_cmp_eq_u32 s{S_MH}, 0")
    e(f"s_cselect_b64 s[{S_DR}:{S_DR+1}], s[{S_DR}:{S_DR+1}], s[{S_DR+2}:{S_DR+3}]")
    e(f"s_lshl_b32 s{A}, s{S_QW}, 4")
    e(f"s_lshr_b64 s[{S_DR}:{S_DR+1}], s[{S_DR}:{S_DR+1}], s{A}")
    e(f"s_and_b32 s{S_D}, s{S_DR}, 0xffff")
    e(f"s_lshl_b32 s{A}, s{S_TA}, 10")
    e(f"v_lshl_add_u32 v{V_RA}, v{V_LANE}, 4, s{A}")
    e(f"s_lshl_b32 s{A}, s{S_TB}, 10")
    e(f"s_andn2_b32 s{B}, 0x80000000, s{S_BM}")
    e(f"s_or_b32 s{A}, s{A}, s{B}")
    e(f"v_lshl_add_u32 v{V_RB}, v{V_LANE}, 4, s{A}")
    e(f"s_sub_u32 s{A}, s{S_TB}, s{S_TA}")
    e(f"v_bfe_u32 v{V_FA}, v{V_LANE}, 4, 1")
    e(f"v_mul_i32_i24 v{V_FA}, s{A}, v{V_FA}")
    e(f"v_add_u32 v{V_FA}, s{S_TA}, v{V_FA}")
    e(f"v_mul_u32_u24 v{V_FA}, {9*128}, v{V_FA}")
    e(f"v_and_b32 v{V_T2}, 7, v{V_LANE}")
    e(f"v_lshl_add_u32 v{V_FA}, v{V_T2}, 2, v{V_FA}")
    e(f"s_lshr_b32 s{S_FB}, s{S_G}, 3")
    e(f"s_lshl_b32 s{S_FB}, s{S_FB}, 7")
    e(f"s_add_u32 s{S_FB}, s{S_FB}, {FLAG_OFF}")
    e(f"s_lshl_b32 s{S_GO}, s{S_G}, 15")
    for c in range(4):
        e(f"s_lshl_b32 s{S_BV+2*c}, s{S_B2+c}, 16")
        e(f"s_and_b32 s{S_BV+2*c+1}, s{S_B2+c}, 0xffff0000")
    e(f"s_movk_i32 s{S_LO}, 0x3f80")
    e(f"s_lshl_b32 s{S_HI}, s{S_LO}, 16")
    return [[f"s_brev_b32 s{S_LO}, 1"]] + atoms(L)

def conv_loads(g):
    fl = g.o.get("hotfl", "")
    R = []
    for c in (3, 2, 1, 0):
        R.append([f"buffer_load_dwordx4 v{V_CL}, s[{S_WS}:{S_WS+3}], s{S_T} offen offset:{1024*c} {fl} lds"])
    R[0] = [f"s_add_u32 m0, s{S_H2}, 4608", f"s_add_u32 s{S_T}, s{S_CH}, {KVT_OFF}"] + R[0]
    R[3].append(f"s_add_u32 m0, s{S_H2}, 256")
    for c in range(4):
        R.append([f"buffer_load_dwordx4 v{V_CL}, s[{S_KF}:{S_KF+3}], s{S_CH} offen offset:{1024*c} lds"])
    R[7].append(f"s_mov_b32 m0, s{S_H2}")
    z = f"buffer_load_dword v{V_OOB}, s[{S_KF}:{S_KF+3}], 0 offen lds"
    R.append([z, f"s_add_u32 m0, s{S_H2}, 4352"])
    R.append([z])
    return R

def tile_loads(g, LD, v):
    fl = g.o.get("ldflags", "sc1")
    e = g.e
    e(f"v_ashrrev_i32 v{V_T2}, 1, v{v}")
    e(f"s_mov_b32 s{S_T}, {STAT_OFF}")
    e(f"buffer_load_dwordx2 v[{LD+32}:{LD+33}], v{V_T2}, s[{S_WS}:{S_WS+3}], s{S_T} offen {fl}")
    for j in range(8):
        if j: e(f"s_add_u32 s{S_T}, s{S_GO}, {j*72*32768}")
        e(f"buffer_load_dwordx4 v[{LD+4*j}:{LD+4*j+3}], v{v}, s[{S_WS}:{S_WS+3}], s{S_T if j else S_GO} offen {fl}")

def poll(g):
    g.e(f"buffer_load_dword v{V_P}, v{V_FA}, s[{S_WS}:{S_WS+3}], s{S_FB} offen sc1")

def conv_job(g, job, name, ev):
    o = g.o
    tiles = []; allt = []
    for a, b in job:
        if a > 0: allt.append(a - 1)
        for t in range(a, b):
            tiles.append(t); allt.append(t)
    ai = {t: CACC + 4*i for i, t in enumerate(allt)}
    tmax = max(allt)
    M = []
    for n in range(tmax, -1, -1):
        ts = [t for t in allt if t >= n and (t - n) % 2 == 0]
        ts.sort()
        for t in ts: M.append((t, n, (t - n)//2))
    order = []
    for (t, n, be) in M:
        for f in (("B", n), ("A", be)):
            if f not in order: order.append(f)
    bslot = {}
    nb = 0
    for f in order:
        if f[0] == "B":
            bslot[f[1]] = BB + 4*(nb % NB); nb += 1
    lastuse = {}
    for i, (t, n, be) in enumerate(M): lastuse[n] = i
    bl = [f[1] for f in order if f[0] == "B"]
    def reads(f):
        if f[0] == "A":
            r = AF + 4*f[1]; off = 256*f[1]
            return [f"ds_read_b64_tr_b16 v[{r}:{r+1}], v{V_AF} offset:{off}",
                    f"ds_read_b64_tr_b16 v[{r+2}:{r+3}], v{V_AF} offset:{off+32}"]
        r = bslot[f[1]]; off = 128*f[1] + 32
        return [f"ds_read_b64_tr_b16 v[{r}:{r+1}], v{V_BF} offset:{off}",
                f"ds_read_b64_tr_b16 v[{r+2}:{r+3}], v{V_BF} offset:{off-32}"]
    issued = 0
    MAXF = o.get("ahead", 6)
    started = set()
    waited = -1
    for i, (t, n, be) in enumerate(M):
        need = max(order.index(("B", n)), order.index(("A", be)))
        while issued < len(order) and issued <= need + MAXF:
            f = order[issued]
            if f[0] == "B":
                k = bl.index(f[1])
                if k >= NB and lastuse[bl[k - NB]] >= i:
                    break
            for x in reads(f): g.e(x)
            issued += 1
        assert issued > need
        for k in (i, i - len(M)):
            if k in ev: ev[k]()
        if need > waited:
            g.e(f"s_waitcnt lgkmcnt({min(15, 2*(issued - 1 - need))})")
            waited = need
        a = ai[t]; bs = bslot[n]; af = AF + 4*be
        c = f"v[{a}:{a+3}]" if t in started else "0"
        started.add(t)
        g.e(f"v_mfma_f32_16x16x32_bf16 v[{a}:{a+3}], v[{bs}:{bs+3}], v[{af}:{af+3}], {c}")
    KVV = 50
    for i, t in enumerate(tiles):
        g.e(f"ds_read_u16 v{AF+40+i}, v{V_KV} offset:{128*t}")
    ev["end"](name)
    H2 = AF; H1 = AF + 12; Y = AF + 24
    idx = {t: i for i, t in enumerate(allt)}
    m = "row_mask:0xf bank_mask:0xf"
    def level(dst, src, zc, ts):
        for t in ts:
            if t in tiles and t > 0:
                g.e(f"v_add_f32 v{dst+idx[t]}, v{src(t-1)}, v{ai[t]+zc} wave_ror:1 row_mask:0x1 bank_mask:0x1")
        for t in ts:
            bc = "" if (t in tiles and t > 0) else " bound_ctrl:0"
            g.e(f"v_add_f32 v{dst+idx[t]}, v{src(t)}, v{ai[t]+zc} wave_shr:1 {m}{bc}")
    level(H2, lambda t: ai[t] + 3, 2, allt)
    g.e("s_waitcnt lgkmcnt(0)")
    for i, t in enumerate(tiles):
        g.e(f"v_dot2c_f32_bf16 v{ai[t]}, s{S_D}, v{AF+40+i}")
    level(H1, lambda t: H2 + idx[t], 1, allt)
    level(Y, lambda t: H1 + idx[t], 0, tiles)
    for i, t in enumerate(tiles):
        g.e(f"ds_write_b32 v{V_YW}, v{Y+idx[t]} offset:{256*i}")

def fin_a(g, X, si, R):
    e = g.e
    s = R; y = R + 16
    e(f"s_lshl_b32 s{S_T2}, s{si}, 8")
    e(f"v_lshl_add_u32 v{V_T}, v{V_LANE}, 2, s{S_T2}")
    for c in range(4):
        e(f"ds_read2st64_b32 v[{y+2*c}:{y+2*c+1}], v{V_T} offset0:{68*c} offset1:{68*c + 34}")
    for c in range(4):
        e(f"v_lshlrev_b32 v{R+8+2*c}, 16, v{X+c}")
        e(f"v_and_b32 v{R+8+2*c+1}, 0xffff0000, v{X+c}")
    for c in range(8): e(f"v_add_f32 v{s+c}, s{S_BV+c}, v{R+8+c}")

def fin_b(g, LD, X, vx, R, waits):
    e = g.e
    s = R; xn = R + 8; y = R + 16; st = LD + 32
    e("s_waitcnt vmcnt(8) lgkmcnt(0)" if waits else "s_waitcnt lgkmcnt(0)")
    for c in range(4):
        e(f"v_pk_fma_f32 v[{xn+2*c}:{xn+2*c+1}], v[{xn+2*c}:{xn+2*c+1}], v[{st}:{st+1}], v[{st}:{st+1}] op_sel:[0,0,1] op_sel_hi:[1,0,1]")
    for c in range(4):
        e(f"v_pk_fma_f32 v[{s+2*c}:{s+2*c+1}], v[{xn+2*c}:{xn+2*c+1}], v[{y+2*c}:{y+2*c+1}], v[{s+2*c}:{s+2*c+1}]")
    for j in range(8):
        if waits: e(f"s_waitcnt vmcnt({7 - j})")
        for c in range(4):
            e(f"v_dot2c_f32_bf16 v{s+2*c}, s{S_LO}, v{LD+4*j+c}")
            e(f"v_dot2c_f32_bf16 v{s+2*c+1}, s{S_HI}, v{LD+4*j+c}")
    e("s_nop 2")
    for c in range(4):
        e(f"v_cvt_pk_bf16_f32 v{X+c}, v{s+2*c}, v{s+2*c+1}")
    e(f"buffer_store_dwordx4 v[{X}:{X+3}], v{vx}, s[{S_OUT}:{S_OUT+3}], 0 offen")

def tail(g, name):
    o = g.o; e = g.e
    def flag(n):
        for x in flag_store(g, n): g.put(x)
    e(f"s_cmp_eq_u32 s{S_PART}, 3")
    e(f"s_cbranch_scc1 {name}_none")
    poll(g)
    g.stamp()
    e("s_waitcnt vmcnt(2)")
    g.stamp()
    def ev1():
        e("s_waitcnt vmcnt(0)")
        e(f"v_cmp_ne_u32 vcc, s{S_TOK}, v{V_P}")
        g.stamp()
        e("s_barrier")
        flag(8)
        flag(7)
        e(f"s_and_b32 s{S_PQ}, vcc_lo, s{S_BM}")
        e(f"s_cselect_b32 s{S_T2}, 0x80000000, 0")
        e(f"v_or_b32 v{V_T}, s{S_T2}, v{V_RB}")
        tile_loads(g, LDB, V_T)
    def ev2():
        e(f"s_and_b32 s{S_PA}, vcc_lo, 0xffff")
        e(f"s_cselect_b32 s{S_T2}, 0x80000000, 0")
        e(f"v_or_b32 v{V_T}, s{S_T2}, v{V_RA}")
        tile_loads(g, LDA, V_T)
    def evend(nm):
        g.stamp()
        e("s_waitcnt vmcnt(0)")
        e(f"v_cmp_ne_u32 vcc, s{S_TOK}, v{V_P}")
        e(f"s_cmp_eq_u32 s{S_PA}, 0")
        e(f"s_cbranch_scc1 {nm}_k")
        e(f"s_and_b32 s{S_PA}, vcc_lo, 0xffff")
        e(f"s_cbranch_scc1 {nm}_k")
        tile_loads(g, LDA, V_RA)
        g.lab(f"{nm}_k")
        g.stamp()
    m1 = o.get("m1", 14)
    ev = {m1: ev1, m1 + 2: ev2, -o.get("m2", 24): lambda: poll(g), "end": evend}
    e(f"s_cmp_eq_u32 s{S_PART}, 1")
    e(f"s_cbranch_scc1 {name}_j1")
    e(f"s_cmp_eq_u32 s{S_PART}, 2")
    e(f"s_cbranch_scc1 {name}_j2")
    for p in range(3):
        if p: g.lab(f"{name}_j{p}")
        conv_job(g, JOBS[p], f"{name}_c{p}", ev)
        if p < 2: e(f"s_branch {name}_cfin")
    g.lab(f"{name}_cfin")
    e(f"s_mov_b32 s{S_N}, {SPIN}")
    e(f"s_cmp_eq_u32 s{S_PA}, 0")
    e(f"s_cbranch_scc1 {name}_np")
    poll(g)
    g.lab(f"{name}_np")
    e("s_waitcnt lgkmcnt(0)")
    g.stamp()
    e("s_barrier")
    g.stamp()
    RA, RB = CACC, CACC + 24
    fin_a(g, XA, S_IA, RA)
    e(f"s_cmp_eq_u32 s{S_BM}, 0")
    e(f"s_cbranch_scc1 {name}_a0")
    fin_a(g, XB, S_IB, RB)
    e(f"s_cmp_lg_u32 s{S_PQ}, 0")
    e(f"s_cbranch_scc1 {name}_bslow")
    g.lab(f"{name}_bback")
    fin_b(g, LDB, XB, V_XB, RB, False)
    e(f"s_cmp_eq_u32 s{S_PA}, 0")
    e(f"s_cbranch_scc1 {name}_a2")
    e("s_waitcnt vmcnt(1)")
    e(f"s_branch {name}_a1")
    g.lab(f"{name}_a0")
    e(f"s_cmp_eq_u32 s{S_PA}, 0")
    e(f"s_cbranch_scc1 {name}_a2")
    g.lab(f"{name}_alp")
    e("s_waitcnt vmcnt(0)")
    g.lab(f"{name}_a1")
    e(f"v_cmp_ne_u32 vcc, s{S_TOK}, v{V_P}")
    e(f"s_sub_u32 s{S_N}, s{S_N}, 1")
    e(f"s_cbranch_scc1 {name}_ago")
    e(f"s_and_b32 s{S_PA}, vcc_lo, 0xffff")
    e(f"s_cbranch_scc0 {name}_ago")
    poll(g)
    e(f"s_branch {name}_alp")
    g.lab(f"{name}_ago")
    tile_loads(g, LDA, V_RA)
    g.lab(f"{name}_a2")
    g.stamp()
    fin_b(g, LDA, XA, V_XA, RA, True)
    finish(g)
    g.lab(f"{name}_bslow")
    poll(g)
    e(f"s_sub_u32 s{S_N}, s{S_N}, 1")
    e("s_waitcnt vmcnt(0)")
    e(f"s_cbranch_scc1 {name}_bgo")
    e(f"v_cmp_ne_u32 vcc, s{S_TOK}, v{V_P}")
    e(f"s_and_b32 s{S_PQ}, vcc_lo, s{S_BM}")
    e(f"s_cbranch_scc1 {name}_bslow")
    g.lab(f"{name}_bgo")
    e(f"s_mov_b32 s{S_N}, {SPIN}")
    tile_loads(g, LDB, V_RB)
    e("s_waitcnt vmcnt(0)")
    e(f"s_branch {name}_bback")
    g.lab(f"{name}_none")
    e("s_waitcnt vmcnt(0)")
    e("s_barrier")
    flag(8)
    flag(7)
    finish(g)

def boundary(g, sc, name):
    o = g.o; e = g.e
    for p in range(4):
        for t in range(2):
            r = HP + 8*p + 4*t
            e(f"ds_write_b128 v{V_HW}, v[{r}:{r+3}] offset:{8192*p + 1024*t}")
    if not o.get("core"):
        e(f"buffer_load_dword v{V_TOK}, off, s[{S_DBG}:{S_DBG+3}], 0 sc1", "tok")
        e(f"v_lshrrev_b32 v{V_T2}, 9, v{V_KST}")
        e(f"s_and_b32 s{S_T}, s2, 7")
        e(f"s_mul_i32 s{S_T}, s{S_T}, 576")
        e(f"buffer_load_dwordx4 v[{SH}:{SH+3}], v{V_T2}, s[{S_SH}:{S_SH+3}], s{S_T} offen", "sh")
        if not o.get("nox"):
            e(f"buffer_load_dwordx4 v[{XA}:{XA+3}], v{V_XA}, s[{S_Q}:{S_Q+3}], 0 offen", "xa")
            e(f"buffer_load_dwordx4 v[{XB}:{XB+3}], v{V_XB}, s[{S_Q}:{S_Q+3}], 0 offen", "xb")
        for r in range(11): e(f"ds_read_b32 v{KR+r}, v{V_KG} offset:{720 + 144*r + (16 if r > 2 else 0)}")
        for r in range(8): e(f"ds_read_b32 v{VR+r}, v{V_KG} offset:{9856 + 1168 + 144*r}")
    e(f"s_mul_i32 s{S_N}, s{S_MH}, 36864")
    e(f"v_lshl_add_u32 v{V_FR}, v{V_LANE}, 4, s{S_N}")
    e(f"s_lshr_b32 s{S_T}, s{S_QW}, 1")
    e(f"s_lshl_b32 s{S_T}, s{S_T}, 8")
    e(f"s_and_b32 s{S_T2}, s{S_QW}, 1")
    e(f"s_add_u32 s{S_T}, s{S_T}, s{S_T2}")
    e(f"s_lshl_b32 s{S_T}, s{S_T}, 3")
    e(f"v_add_u32 v{V_T}, s{S_T}, v{V_FR}")
    for x in gelu_list(o, 8): e(x)
    e(f"ds_write2st64_b64 v{V_T}, v[{HP+32}:{HP+33}], v[{HP+34}:{HP+35}] offset0:64 offset1:66")
    g.stamp()
    fb = o.get("fb", 8)
    g.wait(vm=[("u", 9, p[0]) for ks in range(fb) for p in parts(9, ks)], alllds=True)
    g.stamp()
    e("s_barrier")
    sc.rel.add("stg")

def gen(name, opt):
    g = G(opt); o = opt
    e = g.e
    g.LA = o.get("la", 4); g.NF = o.get("nf", g.LA + 1)
    SM[0] = o.get("sm", 1)
    g.ool = []
    g.L.append(f".globl {name}\n.p2align 8\n.type {name},@function\n{name}:")
    prologue(g, name)
    r1 = o.get("r1", "AAAAAAAAA"); r2 = o.get("r2", "AAAAAAAAA")
    g.role = lambda r: (r1 + r2)[min((r + o.get("rsh", 0)) // 18, 17)]
    split1 = set(r1) != {"A"}
    split2 = split1 or set(r2) != {"A"} or "sbX" in o or "ssX" in o
    def phase1():
        sc = Sched(g, 9)
        work = {}
        for x in bias_read(0): g.put(x)
        for n in range(9):
            if n < 8: work.setdefault(36*n + (1 if n == 7 and SM[0] else o.get("bslot", 20)), []).extend(bias_read(n + 1))
            if n: spread(gelu_list(o, n - 1), 36*n + o.get("g0", 3), 36*n + o.get("g1", 35), work)
        full = not o.get("core")
        if full: spread(atoms(setup2()) + setup3(), 8, 38, work)
        else: spread(setup2(), 12, 36, work)
        def b0():
            if full: g.wait(vm=["stg"])
            e("s_barrier")
        cv = o.get("cv", 4)
        post = {o.get("rcold", 134): cold_items(o.get("cm", 4))} if full else {}
        pre = {(134 if SM[0] else 152): (stage_items(S_K, 0, "kst") if cv else []) + stage_items(S_V, 9856, "stg")} if full and not o.get("nov") else {}
        if full and cv == 1:
            for p_, r_ in enumerate(o.get("ev", [44, 54, 62, 72, 80, 90, 98, 108, 116])):
                def tx(p_=p_):
                    nm = f"{name}_{g.grp}_e{p_}"
                    e(f"s_cmp_eq_u32 s{S_INFO}, {p_}")
                    e(f"s_cbranch_scc1 {nm}")
                    g.lab(nm + "b")
                    g.ool += [nm + ":"] + ["  " + x for x in touches(o)] + [f"  s_branch {nm}b"]
                pre[r_] = [[tx]]
        if full and cv == 2: pre[o["evr"]] = [touches(o)]
        if full and cv == 4:
            for r_, k_, m_ in o.get("tl", [[44, "K", 0xff], [62, "K", 0xff00], [80, "V", 0xff], [98, "V", 0xff00], [116, "F", 0x7ff]]):
                sr, v = {"K": (S_K, V_KT), "V": (S_V, V_KT), "F": (S_KF, V_KFT)}[k_]
                (post if o.get("tpost") else pre).setdefault(r_, []).append([f"s_mov_b64 exec, {m_}", f"buffer_load_dword v{V_DUM}, v{v}, s[{sr}:{sr+3}], 0 offen", "s_mov_b64 exec, -1"])
        if full and cv == 0:
            for p_, r_ in enumerate(o.get("ev", [44, 54, 62, 72, 80, 90, 98, 108, 116])):
                def tx(p_=p_):
                    nm = f"{name}_{g.grp}_e{p_}"
                    e(f"s_cmp_eq_u32 s{S_ONES}, {p_ % 3}")
                    e(f"s_cbranch_scc1 {nm}")
                    g.lab(nm + "b")
                    L = [nm + ":"]
                    for k, body in enumerate(early_items(o)):
                        if k < 2: L += [f"  s_cmp_lg_u32 s{S_INFO}, {(p_ + 3*k) % 9}", f"  s_cbranch_scc1 {nm}_{k}"]
                        L += ["  " + (x[0] if isinstance(x, tuple) else x) for x in body]
                        L.append(f"  s_branch {nm}b")
                        if k < 2: L.append(f"{nm}_{k}:")
                    g.ool += L
                pre[r_] = [[tx]]
        stream(g, sc, 0, work, endhook=b0, post=post, pre=pre)
        sc.release(161)
        g.stamp()
        boundary(g, sc, name)
        return sc
    def phase2(sc):
        work = {}
        pend = []
        full = not o.get("core")
        nm = name + "_" + g.grp
        told = set(); late = []
        def flags():
            for m in range(7):
                if ("p", m) in g.done and m not in told:
                    told.add(m)
                    if o.get("lateflag"): late.append(m)
                    else:
                        for x in flag_store(g, m): g.put(x)
            if "kv1" in g.done and "rdy" not in told:
                told.add("rdy")
                e(f"s_lshl_b32 s{S_N}, s2, 7")
                e(f"s_add_u32 s{S_N}, s{S_N}, {RDY_OFF}")
                e(f"buffer_store_dword v{V_TOK}, v{V_L0}, s[{S_WS}:{S_WS+3}], s{S_N} offen sc1")
        def tok():
            g.wait(vm=["tok"])
            e(f"v_readfirstlane_b32 s{S_TOK}, v{V_TOK}")
            e(f"s_cmp_eq_u32 s{S_TOK}, 0")
            e(f"s_cbranch_scc1 {nm}_tok_slow")
            g.lab(f"{nm}_tok_back")
        def rdy():
            assert "rdy" in told
            g.wait(vm=["rl"])
            e(f"v_cmp_ne_u32 vcc, s{S_ONES}, v{V_RDY}")
            e(f"s_cbranch_vccnz {nm}_rdy_slow")
            g.lab(f"{nm}_rdy_back")
        ss = o.get("ss" + g.grp, o.get("ss", 8))
        if full:
            if not o.get("nokc"): spread(kv_compute(g), o.get("kc0", 334), o.get("kc1", 398), work)
            spread(setup4(), 324 + 36*4 + 10, 324 + 36*5 + 2, work)
            work.setdefault(324 + 36*o.get("rlb", 7) + ss, []).append(
                (f"buffer_load_dword v{V_RDY}, v{V_L4}, s[{S_WS}:{S_WS+3}], 0 offen sc1", "rl"))
            spread(conv_loads(g), 612, 612 + o.get("cls", 10), work)
            work.setdefault(628, []).append(flags)
        for n in range(8):
            b = 324 + 36*(n + 1)
            spread(cvt(g, n), b + 3, b + 8, work)
            pend.append(n)
            if (n + 1 in o["sb" + g.grp]) if "sb" + g.grp in o else (n + 1 in o["sb"]) if "sb" in o else (g.role(162 + 18*(n + 1) + 4) != g.grp):
                s_ = o.get("ss7", 10) if full and n == 7 else ss
                for k, m in enumerate(pend): work.setdefault(b + s_ - o.get("sd", 1)*(len(pend) - 1 - k), []).extend(pstore(g, m))
                pend = []
                if full:
                    if n == o.get("kvb", 1): work[b + s_].extend(sum(kv_store(), []))
                    work[b + s_].append(flags)
            assert len(pend) < o.get("npk", 2)
        stream(g, sc, 1, work, hooks={162 + o.get("fb", 8): tok, 306 + g.LA: rdy} if full else None)
        for m in pend:
            for x in pstore(g, m): g.put(x)
        for m in late:
            for x in flag_store(g, m): g.put(x)
        e("s_nop 7")
        for x in cvt(g, 8) + pstore(g, 8): g.put(x)
        if not full:
            finish(g)
            return
        assert told == set(range(7)) | {"rdy"}, told
        tail(g, nm)
        g.lab(f"{nm}_rdy_slow")
        e(f"s_mov_b32 s{S_N}, {SPIN}")
        g.lab(f"{nm}_rdy_lp")
        e(f"buffer_load_dword v{V_RDY}, v{V_L4}, s[{S_WS}:{S_WS+3}], 0 offen sc1")
        e(f"s_sub_u32 s{S_N}, s{S_N}, 1")
        e("s_waitcnt vmcnt(0)")
        e(f"s_cbranch_scc1 {nm}_rdy_back")
        e(f"v_cmp_ne_u32 vcc, s{S_ONES}, v{V_RDY}")
        e(f"s_cbranch_vccnz {nm}_rdy_lp")
        e(f"s_branch {nm}_rdy_back")
        g.lab(f"{nm}_tok_slow")
        e(f"s_mov_b32 s{S_N}, {SPIN}")
        g.lab(f"{nm}_tok_lp")
        e(f"buffer_load_dword v{V_TOK}, off, s[{S_DBG}:{S_DBG+3}], 0 sc1")
        e(f"s_sub_u32 s{S_N}, s{S_N}, 1")
        e("s_waitcnt vmcnt(0)")
        e(f"s_cbranch_scc1 {nm}_tok_back")
        e(f"v_readfirstlane_b32 s{S_TOK}, v{V_TOK}")
        e(f"s_cmp_eq_u32 s{S_TOK}, 0")
        e(f"s_cbranch_scc1 {nm}_tok_lp")
        e(f"s_branch {nm}_tok_back")
    import copy
    def fork(f):
        if "fk" in o: e(f"s_bitcmp1_b32 s2, {o['fk']}")
        else: e(f"s_cmp_eq_u32 s{S_MH}, 1")
        e(f"s_cbranch_scc1 {name}_y")
        st = copy.deepcopy((g.lds, g.vm, g.done))
        g.grp = "X"; f()
        g.lds, g.vm, g.done = st
        g.lab(f"{name}_y")
        g.grp = "Y"; f()
    g.grp = "A"
    if split1: fork(lambda: phase2(phase1()))
    else:
        sc = phase1()
        if split2:
            def f():
                s2 = Sched(g, 0); s2.q = list(sc.q); s2.rel = set(sc.rel)
                phase2(s2)
            fork(f)
        else:
            g.grp = "Z"
            phase2(sc)
    g.L += g.ool
    g.lab(f"{name}_mk")
    e(f"s_mov_b32 s{S_T}, {EPO_OFF}")
    e(f"s_load_dword s{S_TOK}, s[{S_WS}:{S_WS+1}], s{S_T}")
    e(f"v_cmp_eq_u32 vcc, 0, v{V_LANE}")
    e(f"v_bfrev_b32 v{V_T}, 1")
    e(f"v_cndmask_b32 v{V_T}, v{V_T}, v{V_LANE}, vcc")
    e("s_waitcnt lgkmcnt(0)")
    e(f"s_add_u32 s{S_TOK}, s{S_TOK}, 1")
    e(f"s_addc_u32 s{S_TOK}, s{S_TOK}, 0")
    e(f"v_mov_b32 v{V_L0}, s{S_TOK}")
    e(f"buffer_store_dword v{V_L0}, v{V_T}, s[{S_DBG}:{S_DBG+3}], 0 offen sc1")
    e(f"buffer_store_dword v{V_L0}, v{V_T}, s[{S_WS}:{S_WS+3}], s{S_T} offen sc1")
    e(f"s_branch {name}_mkb")
    g.lab(f"{name}_exit")
    e("s_endpgm")
    desc = f""".amdhsa_kernel {name}
  .amdhsa_next_free_vgpr 256
  .amdhsa_next_free_sgpr 100
  .amdhsa_accum_offset 256
  .amdhsa_group_segment_fixed_size 0
  .amdhsa_kernarg_size 112
  .amdhsa_user_sgpr_count 2
  .amdhsa_user_sgpr_kernarg_segment_ptr 1
  .amdhsa_system_sgpr_workgroup_id_x 1
.end_amdhsa_kernel"""
    return "\n".join(g.L) + "\n", desc
```

```python
import sys, json
import k5
KN = "parallel_sum__ssm_conv_h3__dense_activation_gelu__prompt_kernel"
def full(opt):
    b1, d1 = k5.gen(KN, opt)
    return (f"; @launch grid=(256,1,1) block=(512,1,1) lds={k5.LDS_SZ}\n"
            '.amdgcn_target "amdgcn-amd-amdhsa--gfx950"\n.text\n' + b1 +
            '.section .rodata,"a"\n.p2align 6\n' + d1 + "\n")
if __name__ == "__main__":
    opt = json.loads(sys.argv[2]) if len(sys.argv) > 2 else {}
    open(sys.argv[1], "w").write(full(opt))
```

```python
import struct, math
def f32bits(x): return struct.unpack("<I", struct.pack("<f", x))[0]

LDS_SZ = 163840
ASTR = 1184
ACT = LDS_SZ - 64 * ASTR
KSTG = 73728
VSTG = KSTG + 9856
TBL = VSTG
STAMP_OFF = 32 << 20
KVT_OFF = 20 << 20
STAT_OFF = 24 << 20
FLAG_OFF = 25 << 20
RDY_OFF = 26 << 20
EPO_OFF = 27 << 20
JOBS = [[(0, 6), (27, 32)], [(6, 11), (22, 27)], [(11, 22)]]
WSTR = 8704
SPIN = 1 << 15

V_TID = 0; V_LANE = 1
V_TR = [2, 3, 4]
V_FR = 5; V_HW = 6; V_C1 = 7
V_O1 = 8; V_O2 = 9; V_BO = 10; V_ST = 11; V_L0 = 12
V_STAMP = 13; V_T = 14; V_T2 = 15
V_O1B = 52; V_O2B = 53; V_O1G = 54; V_O2G = 55
ACC = [16, 24]
WF = 32
GT = 56; BI = 64; SP = 68; HP = 76; BIG = 112
XR = 16; LT = 112; BR = 104
PKR = 56
V_K1 = 68; V_K2 = 69; V_DUM = 70; V_KFT = 71; V_XA = 72; V_XB = 73; V_KG = 74; V_KST = 75
XA = 64; XB = 68; V_KT = 53
KR = 76; KT = 87; VR = 88; SH = 96; KC = 100; KA = 104
V_TOK = 8; V_RDY = 76; V_L4 = 77
V_AF = 5; V_BF = 6; V_KV = 7; V_YW = 10; V_RA = 52; V_RB = 54; V_FA = 74; V_P = 75; V_CL = 110; V_OOB = 111
AF = 112; CACC = 176; BB = 224; NB = 6
LDA = 76; LDB = 16

S_TOK = 3
S_Q = 4; S_W1 = 8; S_W2 = 12; S_B1 = 16; S_DR = 20; S_WS = 24
S_J = 28; S_RB = 29; S_ROT = 30; S_W = 31; S_QW = 32; S_M0B = 33
S_GC = 34
S_N = 38; S_T = 39; S_T2 = 40
S_COL = 44
S_ROW = [16, 17, 18, 19, 36, 37, 41, 42, 43]
S_PB = 53; S_SI = 54; S_MH = 55
S_PC = 56; S_TM = 58; S_M0G = 56
S_FLG = 62; S_ONES = 63
S_K = 64; S_V = 68; S_SH = 72; S_KVO = 76
S_G = 77; S_PART = 78; S_INFO = 79
S_OUT = 80; S_KF = 84; S_DBG = 88; S_DP = 92; S_BP = 94; S_B2 = 96
S_TA = 92; S_TB = 93; S_IA = 94; S_IB = 95; S_BM = 57; S_KM = 30
S_BV = 64; S_LO = 72; S_HI = 73; S_D = 74; S_PA = 75; S_PQ = 76; S_H2 = 8; S_CH = 9; S_FB = 10; S_GO = 11

class G:
    def __init__(self, opt):
        self.L = []; self.o = opt
        self.lds = []; self.vm = []; self.done = set(); self.bdone = set()
    def e(self, s, tag=None):
        if s.endswith(" lds") and self.L[-1].split()[1:2] == ["m0,"]: self.L.append("  s_nop 0")
        self.L.append("  " + s)
        if s.startswith("ds_"): self.lds.append(tag)
        if s.startswith("buffer_") or s.startswith("global_"): self.vm.append(tag)
    def put(self, x):
        if callable(x): x()
        elif isinstance(x, tuple): self.e(x[0], x[1])
        else: self.e(x)
    def lab(self, s): self.L.append(s + ":")
    def _n(self, q, tags):
        idx = [i for i, t in enumerate(q) if t is not None and t in tags]
        if not idx: return None
        m = max(idx)
        for t in q[:m+1]:
            if t is not None: self.done.add(t)
        n = len(q) - 1 - m
        del q[:m+1]
        return n
    def wait(self, lds=(), vm=(), alllds=False, allvm=False):
        w = []
        if allvm:
            for t in self.vm: self.done.add(t)
            self.vm = []; w.append("vmcnt(0)")
        else:
            n = self._n(self.vm, set(vm))
            if n is not None: w.append(f"vmcnt({min(n, 63)})")
        if alllds:
            for t in self.lds: self.done.add(t)
            self.lds = []; w.append("lgkmcnt(0)")
        else:
            n = self._n(self.lds, set(lds))
            if n is not None: w.append(f"lgkmcnt({min(n, 15)})")
        if w: self.e("s_waitcnt " + " ".join(w))
    def stamp(self):
        if not self.o.get("stamps"): return
        self.e(f"s_memtime s[{S_TM}:{S_TM+1}]")
        self.e(f"s_memrealtime s[{S_TM+2}:{S_TM+3}]")
        self.e("s_mov_b32 s100, m0")
        self.e("s_waitcnt lgkmcnt(0)")
        self.e(f"s_mov_b32 m0, s{S_SI}")
        self.e(f"s_add_u32 s{S_SI}, s{S_SI}, 1")
        self.e(f"v_writelane_b32 v{V_STAMP}, s{S_TM}, m0")
        self.e(f"s_add_u32 m0, m0, 30")
        self.e(f"s_nop 0")
        self.e(f"v_writelane_b32 v{V_STAMP}, s{S_TM+2}, m0")
        self.e("s_mov_b32 m0, s100")
    def rstamp(self, lane):
        if not self.o.get("stamps"): return
        self.e(f"s_memrealtime s[{S_TM}:{S_TM+1}]")
        self.e("s_waitcnt lgkmcnt(0)")
        self.e(f"v_writelane_b32 v{V_STAMP}, s{S_TM}, {lane}")

def srd(g, s, nrec):
    g.e(f"s_mov_b32 s{s+2}, {nrec}")
    g.e(f"s_mov_b32 s{s+3}, 0x00020000")

SM = [0]
def slot(N, u):
    if N % 2 == 0: return u
    if N < 9 and SM[0]: return 11 + u
    return 12 + u if u < 8 else 11

def dma(g, N, u, grp=False):
    L = [f"s_add_u32 m0, s{S_M0G if grp else S_M0B}, {slot(N, u) * 8192}"]
    if N < 9:
        L.append(f"s_add_u32 s{S_T}, s{S_COL+N}, {u*64*9216}")
        v, s = (V_O1G if grp else V_O1), S_W1
        v2 = V_O1B
    else:
        L.append(f"s_add_u32 s{S_T}, s{S_COL+N-9}, s{S_ROW[u]}")
        v, s = (V_O2G if grp else V_O2), S_W2
        v2 = V_O2B
    if g.o.get("nodma") and N: return [L]
    L.append((f"buffer_load_dwordx4 v{v}, s[{s}:{s+3}], s{S_T} offen lds", ("u", N, u)))
    if not grp: return [L]
    d2 = (f"buffer_load_dwordx4 v{v2}, s[{s}:{s+3}], s{S_T} offen offset:1024 lds", ("u", N, u))
    if g.o.get("dpair"): return [L + [d2]]
    return [L, [d2]]

def parts(N, ks):
    if N < 9: return [(ks // 2, 2*(ks % 2)), (ks // 2, 2*(ks % 2) + 1)]
    if ks < 16: return [(2*(ks // 4), ks % 4), (2*(ks // 4) + 1, ks % 4)]
    return [(8, 2*(ks - 16)), (8, 2*(ks - 16) + 1)]

def wreads(g, r):
    N, ks = r // 18, r % 18
    b = WF + 4*(r % g.NF)
    L = []
    for h, (u, g16) in enumerate(parts(N, ks)):
        a = slot(N, u)*8192 + 2048*g16
        L.append((f"ds_read_b64_tr_b16 v[{b+2*h}:{b+2*h+1}], v{V_TR[a >> 16]} offset:{a & 0xffff}", ("w", r) if h else None))
    return L

def mfmas(g, i):
    N, ks = i // 18, i % 18
    b = WF + 4*(i % g.NF)
    L = []
    for t in range(2):
        c = ACC[N % 2] + 4*t
        f = BIG + 8*ks + 4*t
        src = f"v[{c}:{c+3}]" if ks else (f"v[{BI}:{BI+3}]" if N < 9 else "0")
        L.append(f"v_mfma_f32_16x16x32_bf16 v[{c}:{c+3}], v[{b}:{b+3}], v[{f}:{f+3}], {src}")
    return L

def sread(ph, k):
    off = (k//2)*64 + (k % 2)*16*ASTR if ph == 0 else 1024*k
    return (f"ds_read_b128 v[{BIG+4*k}:{BIG+4*k+3}], v{V_FR} offset:{off}", ("s", k))

def spread(items, s0, s1, work):
    n = len(items)
    for i, it in enumerate(items):
        s = s0 + (i * (s1 - s0)) // n
        work.setdefault(s, []).extend(it if isinstance(it, list) else [it])

def gelu_list(o, n):
    L = []
    A = ACC[n % 2]
    x = [A + i for i in range(8)]
    t = [GT + i for i in range(8)]
    def dst(i):
        if n == 8: return HP + 32 + i
        return HP + 8*(n // 2) + 4*(i // 2) + 2*(n % 2) + (i % 2)
    if o.get("nogelu"):
        return [f"v_cvt_pk_bf16_f32 v{dst(i)}, v{x[2*i]}, v{x[2*i+1]}" for i in range(4)]
    P = lambda r: f"v[{r}:{r+1}]"
    if o.get("pk", 1):
        sc = f"s[{S_GC}:{S_GC+1}]"
        for i in range(0, 8, 2): L.append(f"v_pk_mul_f32 {P(t[i])}, {P(x[i])}, {P(x[i])}")
        for i in range(0, 8, 2): L.append(f"v_pk_fma_f32 {P(t[i])}, {P(t[i])}, {sc}, {sc} op_sel:[0,0,1] op_sel_hi:[1,0,1]")
        for i in range(0, 8, 2): L.append(f"v_pk_mul_f32 {P(t[i])}, {P(t[i])}, {P(x[i])}")
        for i in range(8): L.append(f"v_exp_f32 v{t[i]}, v{t[i]}")
        for i in range(0, 8, 2): L.append(f"v_pk_add_f32 {P(t[i])}, {P(t[i])}, 1.0 op_sel_hi:[1,0]")
        for i in range(8): L.append(f"v_rcp_f32 v{t[i]}, v{t[i]}")
        for i in range(0, 8, 2): L.append(f"v_pk_mul_f32 {P(t[i])}, {P(t[i])}, {P(x[i])}")
    else:
        for i in range(8): L.append(f"v_mul_f32 v{t[i]}, v{x[i]}, v{x[i]}")
        for i in range(8): L.append(f"v_fma_f32 v{t[i]}, v{t[i]}, s{S_GC}, v{V_C1}")
        for i in range(8): L.append(f"v_mul_f32 v{t[i]}, v{t[i]}, v{x[i]}")
        for i in range(8): L.append(f"v_exp_f32 v{t[i]}, v{t[i]}")
        for i in range(8): L.append(f"v_add_f32 v{t[i]}, 1.0, v{t[i]}")
        for i in range(8): L.append(f"v_rcp_f32 v{t[i]}, v{t[i]}")
        for i in range(8): L.append(f"v_mul_f32 v{t[i]}, v{t[i]}, v{x[i]}")
    for i in range(4): L.append(f"v_cvt_pk_bf16_f32 v{dst(i)}, v{t[2*i]}, v{t[2*i+1]}")
    return L

def cvt(g, n):
    A = ACC[(n + 9) % 2]; P = PKR + 4*(n % g.o.get("npk", 2))
    L = [f"v_cvt_pk_bf16_f32 v{P+i}, v{A+2*i}, v{A+2*i+1}" for i in range(4)]
    L.append("s_nop 0")
    L.append(f"v_permlane16_swap_b32 v{P}, v{P+2}")
    L.append(f"v_permlane16_swap_b32 v{P+1}, v{P+3}")
    return L

def pstore(g, n):
    fl = g.o.get("stflags", "sc1")
    P = PKR + 4*(n % g.o.get("npk", 2))
    L = [f"s_lshl_b32 s{S_T2}, s{S_COL+n}, 11", f"s_add_u32 s{S_T2}, s{S_T2}, s{S_PB}"]
    if not (g.o.get("nostore") or g.o.get("nostore" + g.grp)): L.append((f"buffer_store_dwordx4 v[{P}:{P+3}], v{V_ST}, s[{S_WS}:{S_WS+3}], s{S_T2} offen {fl}", ("p", n)))
    return L

def flag_store(g, n):
    return [f"s_add_u32 s{S_N}, s{S_COL+n}, s{S_FLG}",
            (f"buffer_store_dword v{V_TOK}, v{V_L0}, s[{S_WS}:{S_WS+3}], s{S_N} offen sc1", ("f", n))]

class Sched:
    def __init__(self, g, first):
        self.g = g
        self.q = [(N, u) for N in range(18) for u in range(9)][first:]
        self.rel = set()
    def ok(self, N, u):
        if N == 0: return True
        if N == 1: return "act" in self.rel
        if N == 10: return "h" in self.rel
        if N == 9 and u == 8 and self.g.o.get("kv", 1): return "stg" in self.rel
        if N == 9 and SM[0]: return (7, (u + 1) % 9) in self.rel
        return (N - 2, u) in self.rel
    def release(self, i):
        for N in range(18):
            for u in range(9):
                last = max(ks for ks in range(18) if any(p[0] == u for p in parts(N, ks)))
                if 18*N + last <= i: self.rel.add((N, u))
    def take(self, cap):
        R = []
        while self.q and len(R) < cap and self.ok(*self.q[0]):
            R.append(self.q.pop(0))
        return R

def mfma(g, i, t):
    N, ks = i // 18, i % 18
    b = WF + 4*(i % g.NF)
    c = ACC[N % 2] + 4*t
    f = BIG + 8*ks + 4*t
    src = f"v[{c}:{c+3}]" if ks else (f"v[{BI}:{BI+3}]" if N < 9 else "0")
    return f"v_mfma_f32_16x16x32_bf16 v[{c}:{c+3}], v[{b}:{b+3}], v[{f}:{f+3}], {src}"

def isvalu(x):
    t = x[0] if isinstance(x, tuple) else x
    return isinstance(t, str) and t.startswith("v_")

def stream(g, sc, ph, work, endhook=None, hooks=None, pre=None, post=None, inb=None):
    o = g.o; D = g.NF - 2; E = D + D % 2 + 2
    inb = inb or {}
    i0 = 162*ph; i1 = i0 + 162; j0 = 81*ph
    bs = o.get("bs", [0, 8])
    bars = sorted(18*N + b for N in range(9*ph, 9*ph + 9) for b in (bs if N < 17 or o.get("core") else [E - 2, o.get("b17", 12)]))
    fb = o.get("fb", 8) + i0
    bars = sorted(set([b for b in bars if b > fb] + [fb]))
    first = lambda r: r - D % 2
    def need(r0):
        nx = min([first(b) for b in bars if b > r0] + [i1])
        return [("u", r // 18, p[0]) for r in range(first(r0), nx) for p in parts(r // 18, r % 18)]
    due = {}
    for b in bars:
        for t in need(b): due.setdefault(t[1:], (b - E) // 2)
    def seq(j):
        R = []
        for i in (2*j - 2, 2*j - 1):
            R.append((i, 1 - (i % 18) // 2 % 2) if i >= i0 else None)
        for i in (2*j, 2*j + 1):
            R.append((i, (i % 18) // 2 % 2) if i < i1 else None)
        return R
    so = [2*(m[0] - i0) + m[1] for j in range(j0, j0 + 10) for m in seq(j) if m and m[0] < i0 + 18]
    ns = 0
    for r in range(i0, i0 + D):
        for x in wreads(g, r): g.put(x)
        for _ in range(o.get("ls", [1, 1, 2, 0])[r - i0]):
            g.put(sread(ph, so[ns])); ns += 1
    pos = [(j, q) for j in range(j0, (fb - E) // 2 + 1) for q in range(4) if seq(j)[q]]
    pos = pos[:len(pos) - o.get("sq", 1)]
    for k in range(ns, 36): inb.setdefault(pos[((k - ns) * len(pos)) // (36 - ns)], []).append(sread(ph, so[k]))
    vq = []
    tgt = o.get("tgt", 7)
    for j in range(j0, j0 + 82):
        r = 2*j + E
        bar = r in bars
        if bar:
            sc.release(2*j + 1)
            if r == fb: sc.rel.add("act" if ph == 0 else "h")
            if pre: vq += pre.get(r, [])
        X = []
        if vq: X.append(vq.pop(0))
        us = sc.take(1) if j < j0 + 81 else []
        while us and len(us) < o.get("dmax", 2) and sc.q and due.get(sc.q[0], j0 + 81 + o.get("dend", 0)) - j < tgt and sc.ok(*sc.q[0]): us += sc.take(1)
        if bar and post: vq += post.get(r, [])
        dm = [dma(g, N, u)[0] for N, u in us]
        rr = [x for i in (2*j + D, 2*j + D + 1) if i < i1 and not o.get("noread") for x in wreads(g, i)]
        sl = dm[0][:2] if dm else []
        S = seq(j)
        for q, m in enumerate(S):
            tags = []
            if q == o.get("wq", 0) and j > j0 + 1: tags += [("w", 2*j), ("w", 2*j + 1)] + (["bias"] if j % 9 == 0 else [])
            if m:
                tags.append(("w", m[0]))
                if m[0] - i0 < 18: tags.append(("s", 2*(m[0] - i0) + m[1]))
                if m[0] % 18 == 0: tags.append("bias")
                g.wait(lds=tags)
                if not o.get("nomfma"): g.e(mfma(g, *m))
                for _ in range(2 if j == j0 else 1):
                    if rr: g.put(rr.pop(0))
                if sl: g.put(sl.pop(0))
                for x in inb.pop((j, q), []): g.put(x)
        assert not rr
        if j == j0 + 80 and endhook: endhook()
        if bar:
            nd = need(r)
            assert not [t for t in nd if t[1:] in sc.q or t[1:] in us], r
            g.wait(vm=nd, lds=[("s", k) for k in range(36)] if r == fb else ["bias"] if r == 134 else [])
            if hooks and r in hooks: hooks[r]()
            if r % 18 in (o.get("sst", 8), 12) and r // 18 in o.get("sblk", range(18) if o.get("core") else (0, 4, 8, 9, 11, 13, 15, 16, 17)): g.stamp()
            if not o.get("nobar") or r == fb: g.e("s_barrier")
            g.bdone = set(g.done)
        if dm:
            for x in dm[0][2:]: g.put(x)
        V = [x for s_ in range(4*j - 2, 4*j + 2) for x in work.pop(s_, [])]
        if j == j0 + 81: work[4*j - 2] = V; break
        for Y in dm[1:]:
            for x in Y[:2]: g.put(x)
            for _ in range(o.get("dgap", 2)):
                if V and isvalu(V[0]): g.put(V.pop(0))
            for x in Y[2:]: g.put(x)
        k = o.get("xgap", 2)
        while k and V and isvalu(V[0]) and X:
            g.put(V.pop(0)); k -= 1
        for Y in X:
            for x in Y: g.put(x)
        for x in V: g.put(x)
    assert not vq and not inb, (vq, inb)
    assert not [s_ for s_ in work if s_ < 2*i1 and work[s_]], sorted(work)

def deal(items, j0, n, work):
    cost = [2 if x.startswith("v_exp") or x.startswith("v_rcp") else 1 for x in items]
    tot = sum(cost); cum = 0
    for x, c in zip(items, cost):
        work.setdefault(4*(j0 + min(n - 1, int((cum + c / 2) * n / tot))), []).append(x); cum += c

def finish(g):
    if g.o.get("stamps"):
        g.stamp()
        g.e("s_waitcnt vmcnt(0)")
        g.stamp()
        g.rstamp(63)
        g.e(f"s_lshl_b32 s{S_T}, s2, 11")
        g.e(f"s_add_u32 s{S_T}, s{S_T}, {STAMP_OFF}")
        g.e(f"v_lshlrev_b32 v{V_T}, 2, v{V_TID}")
        g.e(f"buffer_store_dword v{V_STAMP}, v{V_T}, s[{S_WS}:{S_WS+3}], s{S_T} offen")
    g.e("s_endpgm")

def bf16round(g, v):
    g.e(f"v_cvt_pk_bf16_f32 v{v}, v{v}, v{v}")
    g.e(f"v_and_b32 v{v}, 0xffff0000, v{v}")

def prologue(g, name):
    o = g.o; e = g.e
    e("s_cmp_ge_u32 s2, 256")
    e(f"s_cbranch_scc1 {name}_exit")
    e(f"s_load_dwordx2 s[{S_Q}:{S_Q+1}], s[0:1], 0")
    if o.get("stamps"):
        e(f"s_mov_b32 s{S_SI}, 0"); e(f"v_mov_b32 v{V_STAMP}, 0")
        g.rstamp(62)
        g.stamp()
    e(f"s_lshr_b32 s{S_RB}, s2, 4")
    e(f"s_and_b32 s{S_T}, s2, 4")
    e(f"s_lshl2_add_u32 s{S_RB}, s{S_T}, s{S_RB}")
    e(f"v_lshrrev_b32 v{LT}, 3, v{V_TID}")
    if o.get("xpair", 1):
        e(f"s_and_b32 s{S_T}, s2, 8")
        e(f"s_lshl_b32 s{S_T}, s{S_T}, 2")
        e(f"v_xor_b32 v{LT}, s{S_T}, v{LT}")
    e(f"v_and_b32 v{LT+1}, 7, v{V_TID}")
    e(f"v_mul_u32_u24 v{LT+2}, 1152, v{LT}")
    e(f"v_lshl_add_u32 v{LT+2}, v{LT+1}, 4, v{LT+2}")
    e(f"s_mul_i32 s{S_T2}, s{S_RB}, {64*1152}")
    srd(g, S_Q, 2359296)
    e("s_waitcnt lgkmcnt(0)")
    if o.get("pst"): g.stamp()
    for i in range(9):
        e(f"buffer_load_dwordx4 v[{XR+4*i}:{XR+4*i+3}], v{LT+2}, s[{S_Q}:{S_Q+3}], s{S_T2} offen offset:{128*i}", ("x", i))
    for s, off in ((S_W1, 56), (S_B1, 64), (S_W2, 72), (S_WS, 104), (S_K, 8), (S_V, 16), (S_SH, 24), (S_KF, 32),
                   (S_DP, 40), (S_BP, 80), (S_OUT, 88), (S_DBG, 96)):
        e(f"s_load_dwordx2 s[{s}:{s+1}], s[0:1], {off}")
    if o.get("pst"): g.stamp()
    e(f"s_getpc_b64 s[{S_PC}:{S_PC+1}]")
    g.lab(f"{name}_pc")
    if o.get("codepf", 1):
        e(f"v_lshlrev_b32 v{V_T}, 7, v{V_TID}")
        e(f"v_min_u32 v{V_T}, {name}_exit-{name}_pc, v{V_T}")
        e(f"global_load_dword v{V_T2}, v{V_T}, s[{S_PC}:{S_PC+1}]")
    e(f"v_lshrrev_b32 v{V_T}, 6, v{V_TID}")
    e(f"v_and_b32 v{V_LANE}, 63, v{V_TID}")
    e(f"v_readfirstlane_b32 s{S_W}, v{V_T}")
    e(f"s_and_b32 s{S_J}, s2, 3")
    e(f"s_bfe_u32 s{S_T}, s2, {3 | (1 << 16)}")
    e(f"s_lshl1_add_u32 s{S_J}, s{S_J}, s{S_T}")
    srd(g, S_W1, 5308416); srd(g, S_W2, 5308416); srd(g, S_B1, 9216)
    srd(g, S_WS, 268435456)
    srd(g, S_K, 2359296); srd(g, S_V, 2359296); srd(g, S_SH, 4608)
    srd(g, S_KF, 2359296); srd(g, S_OUT, 2359296); srd(g, S_DBG, 256)
    e(f"s_and_b32 s{S_QW}, s{S_W}, 3")
    e(f"s_lshr_b32 s{S_MH}, s{S_W}, 2")
    e(f"s_lshl_b32 s{S_M0B}, s{S_W}, 10")
    e(f"s_mul_i32 s{S_T}, s{S_RB}, 57")
    e(f"s_lshr_b32 s{S_T}, s{S_T}, 9")
    e(f"s_mul_i32 s{S_T}, s{S_T}, 9")
    e(f"s_sub_u32 s{S_ROT}, s{S_RB}, s{S_T}")
    e(f"s_lshl_b32 s{S_COL}, s{S_ROT}, 7")
    for u in range(1, 9):
        e(f"s_add_u32 s{S_COL+u}, s{S_COL+u-1}, 128")
        e(f"s_cmp_eq_u32 s{S_COL+u}, 1152")
        e(f"s_cselect_b32 s{S_COL+u}, 0, s{S_COL+u}")
    e(f"v_lshrrev_b32 v{LT+3}, 3, v{V_TID}")
    e(f"v_and_b32 v{LT+4}, 6, v{LT+3}")
    e(f"v_xor_b32 v{LT+4}, v{LT+4}, v{LT+1}")
    e(f"v_lshlrev_b32 v{LT+4}, 4, v{LT+4}")
    e(f"s_mul_i32 s{S_N}, s{S_J}, 1152")
    e(f"v_mul_u32_u24 v{V_O1}, 9216, v{LT+3}")
    e(f"v_add3_u32 v{V_O1}, v{V_O1}, v{LT+4}, s{S_N}")
    e(f"s_mul_i32 s{S_T}, s{S_J}, {576*1152}")
    e(f"v_mul_u32_u24 v{V_O2}, 1152, v{LT+3}")
    e(f"v_add3_u32 v{V_O2}, v{V_O2}, v{LT+4}, s{S_T}")
    e(f"s_lshl_b32 s{S_T}, s{S_QW}, 1")
    e(f"s_sub_u32 s{S_T}, s{S_T}, s{S_W}")
    e(f"s_mul_i32 s{S_T2}, s{S_T}, {8*9216}")
    e(f"v_add_u32 v{V_O1G}, s{S_T2}, v{V_O1}")
    e(f"v_add_u32 v{V_O1B}, {8*9216-1024}, v{V_O1G}")
    e(f"s_mul_i32 s{S_T2}, s{S_T}, {8*1152}")
    e(f"v_add_u32 v{V_O2G}, s{S_T2}, v{V_O2}")
    e(f"v_add_u32 v{V_O2B}, {8*1152-1024}, v{V_O2G}")
    e(f"s_lshl_b32 s{S_M0G}, s{S_QW}, 11")
    e(f"v_lshl_add_u32 v{V_BO}, v{V_TID}, 2, s{S_COL}")
    e(f"v_subrev_u32 v{V_T}, 1152, v{V_BO}")
    e(f"v_min_u32 v{V_BO}, v{V_BO}, v{V_T}")
    e(f"v_lshrrev_b32 v{LT+8}, 4, v{V_LANE}")
    e(f"v_lshrrev_b32 v{LT+9}, 2, v{V_LANE}")
    e(f"v_lshlrev_b32 v{V_TR[0]}, 7, v{LT+9}")
    e(f"v_bfe_u32 v{LT+9}, v{V_LANE}, 3, 2")
    e(f"v_xor_b32 v{LT+9}, s{S_QW}, v{LT+9}")
    e(f"v_lshl_add_u32 v{V_TR[0]}, v{LT+9}, 5, v{V_TR[0]}")
    e(f"v_and_b32 v{LT+9}, 3, v{V_LANE}")
    e(f"v_lshl_add_u32 v{V_TR[0]}, v{LT+9}, 3, v{V_TR[0]}")
    e(f"v_add_u32 v{V_TR[1]}, 65536, v{V_TR[0]}")
    e(f"v_add_u32 v{V_TR[2]}, 131072, v{V_TR[0]}")
    e(f"s_mul_i32 s{S_T}, s{S_MH}, {32*ASTR}")
    e(f"s_add_u32 s{S_T}, s{S_T}, {ACT}")
    e(f"v_and_b32 v{LT+7}, 15, v{V_LANE}")
    e(f"v_mul_u32_u24 v{V_FR}, {ASTR}, v{LT+7}")
    e(f"v_lshl_add_u32 v{V_FR}, v{LT+8}, 4, v{V_FR}")
    e(f"v_add_u32 v{V_FR}, s{S_T}, v{V_FR}")
    e(f"v_mul_u32_u24 v{LT+2}, {ASTR}, v{LT}")
    e(f"v_bfe_u32 v{LT+9}, v{V_LANE}, 2, 1")
    e(f"v_lshl_add_u32 v{LT+2}, v{LT+9}, 6, v{LT+2}")
    e(f"v_and_b32 v{LT+9}, 1, v{V_LANE}")
    e(f"v_lshl_add_u32 v{LT+2}, v{LT+9}, 5, v{LT+2}")
    e(f"v_bfe_u32 v{LT+9}, v{V_LANE}, 1, 1")
    e(f"v_lshl_add_u32 v{LT+2}, v{LT+9}, 3, v{LT+2}")
    e(f"v_add_u32 v{LT+2}, {ACT}, v{LT+2}")
    c1 = 2.0 * math.sqrt(2.0 / math.pi) * math.log2(math.e)
    e(f"v_mov_b32 v{V_C1}, 0x{f32bits(-c1):08x}")
    e(f"s_mov_b32 s{S_GC}, 0x{f32bits(-c1*0.044715):08x}")
    e(f"s_mov_b32 s{S_GC+1}, 0x{f32bits(-c1):08x}")
    e(f"v_or_b32 v{LT+5}, s{S_J}, v{LT+1}")
    e(f"v_lshlrev_b32 v{LT+5}, 28, v{LT+5}")
    e(f"v_lshl_add_u32 v{LT+5}, v{LT}, 3, v{LT+5}")
    SA, SB, QA, QB, ONE = LT+10, LT+11, LT+12, LT+13, LT+14
    for r in (SA, SB, QA, QB): e(f"v_mov_b32 v{r}, 0")
    e(f"v_mov_b32 v{ONE}, 0x3f803f80")
    e(f"s_lshr_b32 s{S_T}, s2, 3")
    e(f"s_mul_i32 s{S_PART}, s{S_T}, 57")
    e(f"s_lshr_b32 s{S_PART}, s{S_PART}, 9")
    e(f"s_and_b32 s{S_G}, s2, 7")
    e(f"s_sub_u32 s{S_G}, s{S_G}, s{S_PART}")
    e(f"s_mul_i32 s{S_G}, s{S_G}, 9")
    e(f"s_add_u32 s{S_G}, s{S_G}, s{S_T}")
    e(f"s_lshl_b32 s{S_T}, s{S_G}, 4")
    e("s_waitcnt lgkmcnt(0)")
    e(f"s_load_dwordx4 s[{S_DR}:{S_DR+3}], s[{S_DP}:{S_DP+1}], s{S_T}")
    e(f"s_load_dwordx4 s[{S_B2}:{S_B2+3}], s[{S_BP}:{S_BP+1}], s{S_T}")
    e(f"s_or_b32 s{S_T}, s2, s{S_W}")
    e(f"s_cbranch_scc0 {name}_mk")
    g.lab(f"{name}_mkb")
    if o.get("pst"): g.stamp()
    if o.get("xbar", 1): e("s_barrier")
    e(f"buffer_load_dword v{BR}, v{V_BO}, s[{S_B1}:{S_B1+3}], s{S_N} offen", "b1")
    pl = o.get("pl", [-2, -2, -2, -2, -1, 3, 5, 7, 8])
    def pd(pos):
        for u in range(9):
            if pl[u] == pos:
                for x in dma(g, 0, u)[0]: g.put(x)
        if o.get("cv") == 3 and o["evp"] == pos:
            for x in touches(o, S_TM, S_TM + 1): g.put(x)
    pd(-3)
    pd(-2)
    if o.get("pst"): g.stamp()
    for i in range(9):
        g.wait(vm=[("x", i)])
        if i == 0: g.stamp()
        for c in range(4):
            x = XR + 4*i + c
            e(f"v_dot2c_f32_bf16 v{SA if c%2==0 else SB}, v{x}, v{ONE}")
            e(f"v_dot2c_f32_bf16 v{QA if c%2==0 else QB}, v{x}, v{x}")
    g.stamp()
    pd(-1)
    e("s_nop 2")
    e(f"v_add_f32 v{SA}, v{SA}, v{SB}")
    e(f"v_add_f32 v{QA}, v{QA}, v{QB}")
    for dpp in ("quad_perm:[1,0,3,2]", "quad_perm:[2,3,0,1]", "row_half_mirror"):
        e("s_nop 0")
        e(f"v_add_f32 v{SA}, v{SA}, v{SA} {dpp} row_mask:0xf bank_mask:0xf")
        e(f"v_add_f32 v{QA}, v{QA}, v{QA} {dpp} row_mask:0xf bank_mask:0xf")
    inv = f"0x{f32bits(1.0/576.0):08x}"
    e(f"v_mul_f32 v{SA}, {inv}, v{SA}")
    e(f"v_mul_f32 v{QA}, {inv}, v{QA}")
    e(f"v_fma_f32 v{QA}, -v{SA}, v{SA}, v{QA}")
    e(f"v_max_f32 v{QA}, 0, v{QA}")
    bf16round(g, SA)
    bf16round(g, QA)
    e(f"v_add_f32 v{QA}, 0x{f32bits(1e-5):08x}, v{QA}")
    bf16round(g, QA)
    e(f"v_sqrt_f32 v{QA}, v{QA}")
    e("s_nop 0")
    bf16round(g, QA)
    e(f"v_rcp_f32 v{QA}, v{QA}")
    e("s_nop 0")
    e(f"v_mul_f32 v{QB}, -v{SA}, v{QA}")
    assert QA % 2 == 0
    T0 = LT + 16
    for i in range(9):
        t = T0 + 8*(i % 2)
        for c in range(4):
            x = XR + 4*i + c
            e(f"v_lshlrev_b32 v{t+2*c}, 16, v{x}")
            e(f"v_and_b32 v{t+2*c+1}, 0xffff0000, v{x}")
        for c in range(4):
            e(f"v_pk_fma_f32 v[{t+2*c}:{t+2*c+1}], v[{t+2*c}:{t+2*c+1}], v[{QA}:{QA+1}], v[{QA}:{QA+1}] op_sel:[0,0,1] op_sel_hi:[1,0,1]")
        for c in range(4):
            x = XR + 4*i + c
            e(f"v_cvt_pk_bf16_f32 v{x}, v{t+2*c}, v{t+2*c+1}")
        x = XR + 4*i
        e(f"ds_write2_b64 v{LT+2}, v[{x}:{x+1}], v[{x+2}:{x+3}] offset0:{16*i} offset1:{16*i+2}")
        if i == 1:
            g.wait(vm=["b1"])
            e(f"v_lshlrev_b32 v{SA}, 16, v{BR}")
            e(f"v_and_b32 v{SB}, 0xffff0000, v{BR}")
            e(f"v_lshlrev_b32 v{V_BO}, 3, v{V_TID}")
            e(f"v_add_u32 v{V_BO}, {TBL}, v{V_BO}")
            e(f"ds_write_b64 v{V_BO}, v[{SA}:{SB}]")
        pd(i)
    g.stamp()
    e(f"s_lshl_b32 s{S_T}, s{S_RB}, 9")
    e(f"s_add_u32 s{S_T}, s{S_T}, {STAT_OFF}")
    e(f"buffer_store_dwordx2 v[{QA}:{QB}], v{LT+5}, s[{S_WS}:{S_WS+3}], s{S_T} offen sc1", "stat")
    e(f"s_lshl_b32 s{S_T}, s{S_QW}, 6")
    e(f"s_add_u32 s{S_T}, s{S_T}, {TBL}")
    e(f"v_lshl_add_u32 v{V_BO}, v{LT+8}, 4, s{S_T}")
    fb = o.get("fb", 8)
    g.wait(vm=[("u", 0, u) for u in range((fb + 1)//2)], alllds=True)
    g.stamp()
    e("s_barrier")

def bias_read(n):
    return [(f"ds_read_b128 v[{BI}:{BI+3}], v{V_BO} offset:{256*n}", "bias")]

def setup2():
    L = []; e = L.append
    for u in range(9): e(f"s_mul_i32 s{S_ROW[u]}, s{S_COL+u}, 576")
    e(f"v_and_b32 v{V_ST}, 31, v{V_LANE}")
    e(f"v_lshlrev_b32 v{V_ST}, 4, v{V_ST}")
    e(f"v_lshrrev_b32 v{V_T}, 5, v{V_LANE}")
    e(f"v_lshl_add_u32 v{V_ST}, v{V_T}, 15, v{V_ST}")
    e(f"s_mul_i32 s{S_PB}, s{S_J}, 36")
    e(f"s_add_u32 s{S_PB}, s{S_PB}, s{S_QW}")
    e(f"s_lshl_b32 s{S_PB}, s{S_PB}, 6")
    e(f"s_add_u32 s{S_PB}, s{S_PB}, s{S_RB}")
    e(f"s_lshl1_add_u32 s{S_PB}, s{S_PB}, s{S_MH}")
    e(f"s_lshl_b32 s{S_PB}, s{S_PB}, 9")
    e(f"s_mul_i32 s{S_N}, s{S_MH}, 18")
    e(f"s_add_u32 s{S_N}, s{S_N}, s{S_QW}")
    e(f"s_lshl_b32 s{S_N}, s{S_N}, 11")
    e(f"v_lshl_add_u32 v{V_HW}, v{V_LANE}, 4, s{S_N}")
    e(f"v_min_u32 v{V_L0}, 1, v{V_TID}")
    e(f"v_lshlrev_b32 v{V_L0}, 31, v{V_L0}")
    e(f"s_mul_i32 s{S_FLG}, s{S_RB}, 288")
    e(f"s_add_u32 s{S_FLG}, s{S_FLG}, s{S_J}")
    e(f"s_lshl2_add_u32 s{S_FLG}, s{S_FLG}, {FLAG_OFF}")
    return L

def atoms(L):
    R = []; open_ = False
    for x in L:
        t = x[0] if isinstance(x, tuple) else x
        if isinstance(t, str) and (t.startswith("s_cselect") or (open_ and t.startswith("s_mov"))): R[-1].append(x)
        else:
            R.append([x]); open_ = isinstance(t, str) and t.startswith("s_cmp")
    return R

def setup3():
    L = []; e = L.append
    e(f"s_lshr_b32 s{S_T2}, s2, 3")
    e(f"s_lshl_b32 s{S_KVO}, s{S_T2}, 7")
    e(f"s_mul_i32 s{S_T2}, s{S_T2}, {64*1152}")
    e(f"s_and_b32 s{S_ONES}, s2, 7")
    e(f"s_mul_i32 s{S_N}, s{S_ONES}, 144")
    e(f"s_add_u32 s{S_T2}, s{S_T2}, s{S_N}")
    e(f"s_sub_u32 s{S_T2}, s{S_T2}, 9216")
    e(f"s_mul_i32 s{S_N}, s{S_ONES}, {72*4096}")
    e(f"s_add_u32 s{S_KVO}, s{S_KVO}, s{S_N}")
    e(f"s_add_u32 s{S_KVO}, s{S_KVO}, {KVT_OFF}")
    e(f"s_mul_i32 s{S_N}, s{S_W}, 77")
    e(f"s_lshl4_add_u32 s{S_KM}, s{S_N}, {KSTG}")
    for V, add in ((V_K1, 45), (V_K2, 64)):
        e(f"s_add_u32 s{S_N}, s{S_N}, {add}")
        e(f"v_add_u32 v{V_T}, s{S_N}, v{V_LANE}")
        e(f"v_mul_u32_u24 v{V_T2}, 898, v{V_T}")
        e(f"v_lshrrev_b32 v{V_T2}, 16, v{V_T2}")
        e(f"v_mul_u32_u24 v{V}, 73, v{V_T2}")
        e(f"v_sub_u32 v{V_T}, v{V_T}, v{V}")
        e(f"v_mul_u32_u24 v{V}, 9216, v{V_T2}")
        e(f"v_lshl_add_u32 v{V}, v{V_T}, 4, v{V}")
        e(f"v_mul_u32_u24 v{V_T}, 57, v{V_T}")
        e(f"v_lshrrev_b32 v{V_T}, 9, v{V_T}")
        e(f"v_mul_u32_u24 v{V_T}, 1008, v{V_T}")
        e(f"v_add3_u32 v{V}, v{V}, v{V_T}, s{S_T2}")
    e(f"s_min_u32 s{S_N}, s{S_W}, 4")
    e(f"s_lshl2_add_u32 s{S_N}, s{S_W}, s{S_N}")
    e(f"s_sub_u32 s{S_T2}, 4, s{S_MH}")
    e(f"v_lshrrev_b32 v{V_T}, 3, v{V_LANE}")
    e(f"v_sub_u32 v{V_KST}, s{S_T2}, v{V_T}")
    e(f"v_and_b32 v{V_KST}, 0x80000000, v{V_KST}")
    e(f"v_add_u32 v{V_T}, s{S_N}, v{V_T}")
    e(f"v_and_b32 v{V_T2}, 7, v{V_LANE}")
    e(f"v_lshl_or_b32 v{V_KST}, v{V_T}, 13, v{V_KST}")
    e(f"v_lshl_or_b32 v{V_KST}, v{V_T2}, 4, v{V_KST}")
    e(f"v_mul_u32_u24 v{V_KG}, 1168, v{V_T2}")
    e(f"v_lshl_add_u32 v{V_KG}, v{V_T}, 2, v{V_KG}")
    e(f"v_add_u32 v{V_KG}, {KSTG - 720}, v{V_KG}")
    e(f"s_lshl3_add_u32 s{S_N}, s{S_PART}, s{S_W}")
    e(f"s_mul_i32 s{S_N}, s{S_N}, 11")
    e(f"v_add_u32 v{V_KFT}, s{S_N}, v{V_LANE}")
    e(f"v_min_u32 v{V_KFT}, 255, v{V_KFT}")
    e(f"s_lshl_b32 s{S_N}, s{S_G}, 8")
    e(f"v_add_lshl_u32 v{V_KFT}, v{V_KFT}, s{S_N}, 7")
    e(f"s_lshr_b32 s{S_N}, s2, 3")
    e(f"s_lshl3_add_u32 s{S_N}, s{S_N}, s{S_W}")
    e(f"s_mul_i32 s{S_N}, s{S_N}, 72")
    e(f"s_add_u32 s{S_N}, s{S_N}, s{S_ONES}")
    e(f"v_bfe_u32 v{V_T}, v{V_LANE}, 1, 3")
    e(f"v_lshl_add_u32 v{V_T}, v{V_T}, 3, v{V_T}")
    e(f"v_and_b32 v{V_KT}, 1, v{V_LANE}")
    e(f"v_add3_u32 v{V_KT}, v{V_KT}, v{V_T}, s{S_N}")
    e(f"v_lshlrev_b32 v{V_KT}, 7, v{V_KT}")
    e(f"s_mov_b32 s{S_INFO}, 0")
    for p_, job in enumerate(JOBS):
        a0 = job[0][0]; l0 = job[0][1] - job[0][0]
        a1 = job[1][0] - l0 if len(job) > 1 else a0
        n = sum(b - a for a, b in job)
        e(f"s_cmp_eq_u32 s{S_PART}, {p_}")
        e(f"s_cselect_b32 s{S_INFO}, {a0 | (l0 << 8) | (a1 << 16) | (n << 24)}, s{S_INFO}")
    e(f"s_bfe_u32 s{S_N}, s{S_INFO}, {8 | (8 << 16)}")
    e(f"s_bfe_u32 s{S_T2}, s{S_INFO}, {16 | (8 << 16)}")
    e(f"s_and_b32 s{S_ONES}, s{S_INFO}, 255")
    e(f"s_add_u32 s{S_IB}, s{S_W}, 8")
    e(f"s_cmp_lt_u32 s{S_W}, s{S_N}")
    e(f"s_cselect_b32 s{S_TA}, s{S_ONES}, s{S_T2}")
    e(f"s_cmp_lt_u32 s{S_IB}, s{S_N}")
    e(f"s_cselect_b32 s{S_TB}, s{S_ONES}, s{S_T2}")
    e(f"s_add_u32 s{S_TA}, s{S_TA}, s{S_W}")
    e(f"s_add_u32 s{S_TB}, s{S_TB}, s{S_IB}")
    e(f"s_lshr_b32 s{S_INFO}, s{S_INFO}, 24")
    e(f"s_cmp_lt_u32 s{S_IB}, s{S_INFO}")
    e(f"s_cselect_b32 s{S_BM}, 0xffff0000, 0")
    e(f"s_cselect_b32 s{S_TB}, s{S_TB}, s{S_TA}")
    e(f"s_lshr_b32 s{S_N}, s{S_G}, 3")
    e(f"s_add_u32 s{S_N}, s{S_N}, 36")
    e(f"s_sub_u32 s{S_T2}, s{S_N}, s{S_TB}")
    e(f"s_sub_u32 s{S_N}, s{S_N}, s{S_TA}")
    for r in (S_N, S_T2):
        e(f"s_mul_i32 s{S_ONES}, s{r}, 57")
        e(f"s_lshr_b32 s{S_ONES}, s{S_ONES}, 9")
        e(f"s_mul_i32 s{S_ONES}, s{S_ONES}, 9")
        e(f"s_sub_u32 s{r}, s{r}, s{S_ONES}")
    e(f"s_cmp_lt_u32 s{S_N}, s{S_T2}")
    e(f"s_cselect_b32 s{S_ONES}, s{S_TB}, s{S_TA}")
    e(f"s_cselect_b32 s{S_TB}, s{S_TA}, s{S_TB}")
    e(f"s_mov_b32 s{S_TA}, s{S_ONES}")
    e(f"s_cselect_b32 s{S_IA}, s{S_IB}, s{S_W}")
    e(f"s_cselect_b32 s{S_IB}, s{S_W}, s{S_IB}")
    e(f"v_mul_u32_u24 v{V_T}, 1152, v{V_LANE}")
    e(f"s_mul_i32 s{S_N}, s{S_TA}, {64*1152}")
    e(f"s_lshl4_add_u32 s{S_N}, s{S_G}, s{S_N}")
    e(f"s_cmp_eq_u32 s{S_PART}, 3")
    e(f"s_cselect_b32 s{S_T2}, 0x80000000, 0")
    e(f"s_or_b32 s{S_N}, s{S_N}, s{S_T2}")
    e(f"v_add_u32 v{V_XA}, s{S_N}, v{V_T}")
    e(f"s_mul_i32 s{S_N}, s{S_TB}, {64*1152}")
    e(f"s_lshl4_add_u32 s{S_N}, s{S_G}, s{S_N}")
    e(f"s_andn2_b32 s{S_T2}, 0x80000000, s{S_BM}")
    e(f"s_or_b32 s{S_N}, s{S_N}, s{S_T2}")
    e(f"v_add_u32 v{V_XB}, s{S_N}, v{V_T}")
    e(f"s_lshr_b32 s{S_INFO}, s2, 3")
    e(f"s_mul_i32 s{S_N}, s{S_PART}, 9")
    e(f"s_sub_u32 s{S_INFO}, s{S_INFO}, s{S_N}")
    e(f"s_lshl_b32 s{S_N}, s{S_INFO}, 1")
    e(f"s_lshr_b32 s{S_ONES}, 0x24924, s{S_N}")
    e(f"s_and_b32 s{S_ONES}, s{S_ONES}, 3")
    return atoms(L)

def stage_items(sr, off, tag, touch=None):
    ld = lambda v: (f"buffer_load_dwordx4 v{v}, s[{sr}:{sr+3}], 0 offen lds", tag)
    tc = lambda v: [f"buffer_load_dword v{V_DUM}, v{v}, s[{touch}:{touch+3}], 0 offen"] if touch else []
    R = [[f"s_add_u32 m0, s{S_KM}, {off}", "s_nop 0", ld(V_K1)]]
    if touch: R.append(tc(V_K1))
    R.append([f"s_add_u32 m0, s{S_KM}, {off + 1024}", "s_mov_b64 exec, 0x1fff", ld(V_K2)] + tc(V_K2) + ["s_mov_b64 exec, -1"])
    return R

def cold_items(m=15):
    R = stage_items(S_K, 0, "kst", S_V if m & 2 else None) if m & 1 else []
    if m & 4: R.append([f"s_add_u32 s{S_N}, s{S_COL}, s{S_ROW[8]}",
              f"buffer_load_dword v{V_DUM}, v{V_O2}, s[{S_W2}:{S_W2+3}], s{S_N} offen"])
    if m & 8: R.append([f"s_lshl_b32 s{S_N}, s{S_G}, 15",
              f"buffer_load_dword v{V_DUM}, v{V_KFT}, s[{S_KF}:{S_KF+3}], s{S_N} offen"])
    return R

def touches(o, A=S_N, B=S_T2):
    m = o.get("em", 7)
    L = [f"s_lshr_b32 s{A}, s2, 3", f"s_lshl3_add_u32 s{A}, s{A}, s{S_W}", f"s_mul_i32 s{A}, s{A}, 72",
         f"s_and_b32 s{B}, s2, 7", f"s_add_u32 s{A}, s{A}, s{B}", f"s_lshl_b32 s{A}, s{A}, 7",
         f"v_bfe_u32 v{V_T}, v{V_LANE}, 1, 3", f"v_lshl_add_u32 v{V_T}, v{V_T}, 3, v{V_T}", f"v_and_b32 v{V_KFT}, 1, v{V_LANE}",
         f"v_add_lshl_u32 v{V_T}, v{V_T}, v{V_KFT}, 7",
         f"s_lshl3_add_u32 s{B}, s{S_PART}, s{S_W}", f"s_mul_i32 s{B}, s{B}, 11",
         f"v_add_u32 v{V_KFT}, s{B}, v{V_LANE}", f"v_min_u32 v{V_KFT}, 255, v{V_KFT}", f"v_lshlrev_b32 v{V_KFT}, 7, v{V_KFT}",
         f"s_lshl_b32 s{B}, s{S_G}, 15",
         "s_mov_b64 exec, 0xffff"]
    if m & 1: L.append(f"buffer_load_dword v{V_DUM}, v{V_T}, s[{S_K}:{S_K+3}], s{A} offen")
    if m & 2: L.append(f"buffer_load_dword v{V_DUM}, v{V_T}, s[{S_V}:{S_V+3}], s{A} offen")
    L.append("s_mov_b64 exec, 0x7ff")
    if m & 4: L.append(f"buffer_load_dword v{V_DUM}, v{V_KFT}, s[{S_KF}:{S_KF+3}], s{B} offen")
    L.append("s_mov_b64 exec, -1")
    return L

def early_items(o):
    m = o.get("em", 7)
    K = sum(stage_items(S_K, 0, None), []) if m & 1 else []
    if o.get("vt", 1):
        V = [f"s_lshr_b32 s{S_N}, s2, 3", f"s_lshl3_add_u32 s{S_N}, s{S_N}, s{S_W}", f"s_mul_i32 s{S_N}, s{S_N}, 72",
             f"s_and_b32 s{S_T2}, s2, 7", f"s_add_u32 s{S_N}, s{S_N}, s{S_T2}", f"s_lshl_b32 s{S_N}, s{S_N}, 7",
             f"v_bfe_u32 v{V_T}, v{V_LANE}, 1, 3", f"v_mul_u32_u24 v{V_T}, 9, v{V_T}", f"v_and_b32 v{V_T2}, 1, v{V_LANE}",
             f"v_add_lshl_u32 v{V_T}, v{V_T}, v{V_T2}, 7", "s_mov_b64 exec, 0xffff",
             f"buffer_load_dword v{V_DUM}, v{V_T}, s[{S_V}:{S_V+3}], s{S_N} offen", "s_mov_b64 exec, -1"]
    else:
        V = [f"buffer_load_dword v{V_DUM}, v{V_K1}, s[{S_V}:{S_V+3}], 0 offen", "s_mov_b64 exec, 0x1fff",
             f"buffer_load_dword v{V_DUM}, v{V_K2}, s[{S_V}:{S_V+3}], 0 offen", "s_mov_b64 exec, -1"]
    F = sum(cold_items(8), [])
    return [K, V if m & 2 else [], F if m & 4 else []]

def kv_compute(g):
    L = [lambda: g.wait(vm=["sh"])]; e = L.append
    up = lambda d, r, h: f"v_and_b32 v{d}, 0xffff0000, v{r}" if h else f"v_lshlrev_b32 v{d}, 16, v{r}"
    if g.o.get("kf", 1):
        U = [52, 53, 54, 55]
        for h in range(2):
            for j in range(4): e(up(KC + j, SH + 2*h + j//2, j % 2))
            e(up(U[0], KR, h))
            for i in range(11):
                if i < 10: e(up(U[(i + 1) % 2], KR + i + 1, h))
                for j in range(4):
                    t = i - 3 + j
                    if 0 <= t < 8: e(f"{'v_mul_f32' if j == 3 else 'v_fmac_f32'} v{KA+t}, v{KC+j}, v{U[i % 2]}")
            for t0 in (0, 4):
                for t in range(t0, t0 + 4): e(up(U[t % 4], VR + t, h))
                for t in range(t0, t0 + 4): e(f"v_mul_f32 v{KA+t}, v{KA+t}, v{U[t % 4]}")
            O = KA if h else PKR + 4
            for t in range(4): e(f"v_cvt_pk_bf16_f32 v{O+t}, v{KA+2*t}, v{KA+2*t+1}")
        return L
    for h in range(2):
        for j in range(4):
            w = SH + 2*h + j//2
            if h == 0: e(f"v_lshrrev_b32 v{KC+j}, 16, v{w}" if j % 2 else f"v_and_b32 v{KC+j}, 0xffff, v{w}")
            else: e(f"v_and_b32 v{KC+j}, 0xffff0000, v{w}" if j % 2 else f"v_lshlrev_b32 v{KC+j}, 16, v{w}")
        for j in (3, 2, 1, 0):
            for t in range(8):
                if j == 3: e(f"v_dot2_f32_bf16 v{KA+t}, v{KR+t+3-j}, v{KC+j}, 0")
                else: e(f"v_dot2c_f32_bf16 v{KA+t}, v{KR+t+3-j}, v{KC+j}")
        for t0 in (0, 4):
            for t in range(t0, t0 + 4):
                e(f"v_and_b32 v{KC+t%4}, 0xffff0000, v{VR+t}" if h else f"v_lshlrev_b32 v{KC+t%4}, 16, v{VR+t}")
            for t in range(t0, t0 + 4): e(f"v_mul_f32 v{KA+t}, v{KA+t}, v{KC+t%4}")
        O = KA if h else PKR + 4
        for t in range(4): e(f"v_cvt_pk_bf16_f32 v{O+t}, v{KA+2*t}, v{KA+2*t+1}")
    return L

def kv_store():
    return [[(f"buffer_store_dwordx4 v[{PKR+4}:{PKR+7}], v{V_KST}, s[{S_WS}:{S_WS+3}], s{S_KVO} offen sc1", "kv0"),
             f"s_add_u32 s{S_KVO}, s{S_KVO}, 4096"],
            [(f"buffer_store_dwordx4 v[{KA}:{KA+3}], v{V_KST}, s[{S_WS}:{S_WS+3}], s{S_KVO} offen sc1", "kv1")]]

def setup4():
    L = []; e = L.append
    A, B = S_GC, S_GC + 1
    e(f"v_bfrev_b32 v{V_OOB}, 1")
    e(f"s_and_b32 s{A}, s2, 7")
    e(f"v_and_b32 v{V_L4}, 31, v{V_LANE}")
    e(f"v_lshl_add_u32 v{V_L4}, v{V_L4}, 3, s{A}")
    e(f"s_cmp_eq_u32 s{S_W}, 0")
    e(f"s_cselect_b32 s{A}, {RDY_OFF}, s{S_LO}")
    e(f"s_cselect_b32 s{S_ONES}, s{S_TOK}, 0")
    e(f"v_lshl_add_u32 v{V_L4}, v{V_L4}, 7, s{A}")
    e(f"s_mul_i32 s{S_H2}, s{S_W}, {WSTR}")
    e(f"s_lshl3_add_u32 s{S_CH}, s{S_G}, s{S_W}")
    e(f"s_lshl_b32 s{S_CH}, s{S_CH}, 12")
    e(f"v_and_b32 v{V_CL}, v{V_OOB}, v{V_XA}")
    e(f"v_lshl_or_b32 v{V_CL}, v{V_LANE}, 4, v{V_CL}")
    e(f"v_lshl_add_u32 v{V_YW}, v{V_LANE}, 2, s{S_H2}")
    e(f"s_add_u32 s{A}, s{S_H2}, 4608")
    e(f"v_lshl_add_u32 v{V_KV}, v{V_LANE}, 1, s{A}")
    e(f"v_lshrrev_b32 v{V_T2}, 4, v{V_LANE}")
    e(f"v_bfe_u32 v{V_AF}, v{V_LANE}, 2, 2")
    e(f"v_lshl_add_u32 v{V_T2}, v{V_T2}, 3, v{V_AF}")
    e(f"v_and_b32 v{V_BF}, 3, v{V_LANE}")
    e(f"v_add_u32 v{V_AF}, v{V_T2}, v{V_BF}")
    e(f"s_add_u32 s{A}, s{S_H2}, {256 - 24}")
    e(f"v_lshl_add_u32 v{V_AF}, v{V_AF}, 3, s{A}")
    e(f"v_lshlrev_b32 v{V_BF}, 2, v{V_BF}")
    e(f"v_sub_u32 v{V_BF}, v{V_BF}, v{V_T2}")
    e(f"s_add_u32 s{A}, s{S_H2}, {4608 + 24 - 32}")
    e(f"v_lshl_add_u32 v{V_BF}, v{V_BF}, 3, s{A}")
    e(f"s_cmp_eq_u32 s{S_MH}, 0")
    e(f"s_cselect_b64 s[{S_DR}:{S_DR+1}], s[{S_DR}:{S_DR+1}], s[{S_DR+2}:{S_DR+3}]")
    e(f"s_lshl_b32 s{A}, s{S_QW}, 4")
    e(f"s_lshr_b64 s[{S_DR}:{S_DR+1}], s[{S_DR}:{S_DR+1}], s{A}")
    e(f"s_and_b32 s{S_D}, s{S_DR}, 0xffff")
    e(f"s_lshl_b32 s{A}, s{S_TA}, 10")
    e(f"v_lshl_add_u32 v{V_RA}, v{V_LANE}, 4, s{A}")
    e(f"s_lshl_b32 s{A}, s{S_TB}, 10")
    e(f"s_andn2_b32 s{B}, 0x80000000, s{S_BM}")
    e(f"s_or_b32 s{A}, s{A}, s{B}")
    e(f"v_lshl_add_u32 v{V_RB}, v{V_LANE}, 4, s{A}")
    e(f"s_sub_u32 s{A}, s{S_TB}, s{S_TA}")
    e(f"v_bfe_u32 v{V_FA}, v{V_LANE}, 4, 1")
    e(f"v_mul_i32_i24 v{V_FA}, s{A}, v{V_FA}")
    e(f"v_add_u32 v{V_FA}, s{S_TA}, v{V_FA}")
    e(f"v_mul_u32_u24 v{V_FA}, {9*128}, v{V_FA}")
    e(f"v_and_b32 v{V_T2}, 7, v{V_LANE}")
    e(f"v_lshl_add_u32 v{V_FA}, v{V_T2}, 2, v{V_FA}")
    e(f"s_lshr_b32 s{S_FB}, s{S_G}, 3")
    e(f"s_lshl_b32 s{S_FB}, s{S_FB}, 7")
    e(f"s_add_u32 s{S_FB}, s{S_FB}, {FLAG_OFF}")
    e(f"s_lshl_b32 s{S_GO}, s{S_G}, 15")
    for c in range(4):
        e(f"s_lshl_b32 s{S_BV+2*c}, s{S_B2+c}, 16")
        e(f"s_and_b32 s{S_BV+2*c+1}, s{S_B2+c}, 0xffff0000")
    e(f"s_movk_i32 s{S_LO}, 0x3f80")
    e(f"s_lshl_b32 s{S_HI}, s{S_LO}, 16")
    return [[f"s_brev_b32 s{S_LO}, 1"]] + atoms(L)

def conv_loads(g):
    fl = g.o.get("hotfl", "")
    R = []
    for c in (3, 2, 1, 0):
        R.append([f"buffer_load_dwordx4 v{V_CL}, s[{S_WS}:{S_WS+3}], s{S_T} offen offset:{1024*c} {fl} lds"])
    R[0] = [f"s_add_u32 m0, s{S_H2}, 4608", f"s_add_u32 s{S_T}, s{S_CH}, {KVT_OFF}"] + R[0]
    R[3].append(f"s_add_u32 m0, s{S_H2}, 256")
    for c in range(4):
        R.append([f"buffer_load_dwordx4 v{V_CL}, s[{S_KF}:{S_KF+3}], s{S_CH} offen offset:{1024*c} lds"])
    R[7].append(f"s_mov_b32 m0, s{S_H2}")
    z = f"buffer_load_dword v{V_OOB}, s[{S_KF}:{S_KF+3}], 0 offen lds"
    R.append([z, f"s_add_u32 m0, s{S_H2}, 4352"])
    R.append([z])
    return R

def tile_loads(g, LD, v):
    fl = g.o.get("ldflags", "sc1")
    e = g.e
    e(f"v_ashrrev_i32 v{V_T2}, 1, v{v}")
    e(f"s_mov_b32 s{S_T}, {STAT_OFF}")
    e(f"buffer_load_dwordx2 v[{LD+32}:{LD+33}], v{V_T2}, s[{S_WS}:{S_WS+3}], s{S_T} offen {fl}")
    for j in range(8):
        if j: e(f"s_add_u32 s{S_T}, s{S_GO}, {j*72*32768}")
        e(f"buffer_load_dwordx4 v[{LD+4*j}:{LD+4*j+3}], v{v}, s[{S_WS}:{S_WS+3}], s{S_T if j else S_GO} offen {fl}")

def poll(g):
    g.e(f"buffer_load_dword v{V_P}, v{V_FA}, s[{S_WS}:{S_WS+3}], s{S_FB} offen sc1")

def conv_job(g, job, name, ev):
    o = g.o
    tiles = []; allt = []
    for a, b in job:
        if a > 0: allt.append(a - 1)
        for t in range(a, b):
            tiles.append(t); allt.append(t)
    ai = {t: CACC + 4*i for i, t in enumerate(allt)}
    tmax = max(allt)
    M = []
    for n in range(tmax, -1, -1):
        ts = [t for t in allt if t >= n and (t - n) % 2 == 0]
        ts.sort()
        for t in ts: M.append((t, n, (t - n)//2))
    order = []
    for (t, n, be) in M:
        for f in (("B", n), ("A", be)):
            if f not in order: order.append(f)
    bslot = {}
    nb = 0
    for f in order:
        if f[0] == "B":
            bslot[f[1]] = BB + 4*(nb % NB); nb += 1
    lastuse = {}
    for i, (t, n, be) in enumerate(M): lastuse[n] = i
    bl = [f[1] for f in order if f[0] == "B"]
    def reads(f):
        if f[0] == "A":
            r = AF + 4*f[1]; off = 256*f[1]
            return [f"ds_read_b64_tr_b16 v[{r}:{r+1}], v{V_AF} offset:{off}",
                    f"ds_read_b64_tr_b16 v[{r+2}:{r+3}], v{V_AF} offset:{off+32}"]
        r = bslot[f[1]]; off = 128*f[1] + 32
        return [f"ds_read_b64_tr_b16 v[{r}:{r+1}], v{V_BF} offset:{off}",
                f"ds_read_b64_tr_b16 v[{r+2}:{r+3}], v{V_BF} offset:{off-32}"]
    issued = 0
    MAXF = o.get("ahead", 6)
    started = set()
    waited = -1
    for i, (t, n, be) in enumerate(M):
        need = max(order.index(("B", n)), order.index(("A", be)))
        while issued < len(order) and issued <= need + MAXF:
            f = order[issued]
            if f[0] == "B":
                k = bl.index(f[1])
                if k >= NB and lastuse[bl[k - NB]] >= i:
                    break
            for x in reads(f): g.e(x)
            issued += 1
        assert issued > need
        for k in (i, i - len(M)):
            if k in ev: ev[k]()
        if need > waited:
            g.e(f"s_waitcnt lgkmcnt({min(15, 2*(issued - 1 - need))})")
            waited = need
        a = ai[t]; bs = bslot[n]; af = AF + 4*be
        c = f"v[{a}:{a+3}]" if t in started else "0"
        started.add(t)
        g.e(f"v_mfma_f32_16x16x32_bf16 v[{a}:{a+3}], v[{bs}:{bs+3}], v[{af}:{af+3}], {c}")
    KVV = 50
    for i, t in enumerate(tiles):
        g.e(f"ds_read_u16 v{AF+40+i}, v{V_KV} offset:{128*t}")
    ev["end"](name)
    H2 = AF; H1 = AF + 12; Y = AF + 24
    idx = {t: i for i, t in enumerate(allt)}
    m = "row_mask:0xf bank_mask:0xf"
    def level(dst, src, zc, ts):
        for t in ts:
            if t in tiles and t > 0:
                g.e(f"v_add_f32 v{dst+idx[t]}, v{src(t-1)}, v{ai[t]+zc} wave_ror:1 row_mask:0x1 bank_mask:0x1")
        for t in ts:
            bc = "" if (t in tiles and t > 0) else " bound_ctrl:0"
            g.e(f"v_add_f32 v{dst+idx[t]}, v{src(t)}, v{ai[t]+zc} wave_shr:1 {m}{bc}")
    level(H2, lambda t: ai[t] + 3, 2, allt)
    g.e("s_waitcnt lgkmcnt(0)")
    for i, t in enumerate(tiles):
        g.e(f"v_dot2c_f32_bf16 v{ai[t]}, s{S_D}, v{AF+40+i}")
    level(H1, lambda t: H2 + idx[t], 1, allt)
    level(Y, lambda t: H1 + idx[t], 0, tiles)
    for i, t in enumerate(tiles):
        g.e(f"ds_write_b32 v{V_YW}, v{Y+idx[t]} offset:{256*i}")

def fin_a(g, X, si, R):
    e = g.e
    s = R; y = R + 16
    e(f"s_lshl_b32 s{S_T2}, s{si}, 8")
    e(f"v_lshl_add_u32 v{V_T}, v{V_LANE}, 2, s{S_T2}")
    for c in range(4):
        e(f"ds_read2st64_b32 v[{y+2*c}:{y+2*c+1}], v{V_T} offset0:{68*c} offset1:{68*c + 34}")
    for c in range(4):
        e(f"v_lshlrev_b32 v{R+8+2*c}, 16, v{X+c}")
        e(f"v_and_b32 v{R+8+2*c+1}, 0xffff0000, v{X+c}")
    for c in range(8): e(f"v_add_f32 v{s+c}, s{S_BV+c}, v{R+8+c}")

def fin_b(g, LD, X, vx, R, waits):
    e = g.e
    s = R; xn = R + 8; y = R + 16; st = LD + 32
    e("s_waitcnt vmcnt(8) lgkmcnt(0)" if waits else "s_waitcnt lgkmcnt(0)")
    for c in range(4):
        e(f"v_pk_fma_f32 v[{xn+2*c}:{xn+2*c+1}], v[{xn+2*c}:{xn+2*c+1}], v[{st}:{st+1}], v[{st}:{st+1}] op_sel:[0,0,1] op_sel_hi:[1,0,1]")
    for c in range(4):
        e(f"v_pk_fma_f32 v[{s+2*c}:{s+2*c+1}], v[{xn+2*c}:{xn+2*c+1}], v[{y+2*c}:{y+2*c+1}], v[{s+2*c}:{s+2*c+1}]")
    for j in range(8):
        if waits: e(f"s_waitcnt vmcnt({7 - j})")
        for c in range(4):
            e(f"v_dot2c_f32_bf16 v{s+2*c}, s{S_LO}, v{LD+4*j+c}")
            e(f"v_dot2c_f32_bf16 v{s+2*c+1}, s{S_HI}, v{LD+4*j+c}")
    e("s_nop 2")
    for c in range(4):
        e(f"v_cvt_pk_bf16_f32 v{X+c}, v{s+2*c}, v{s+2*c+1}")
    e(f"buffer_store_dwordx4 v[{X}:{X+3}], v{vx}, s[{S_OUT}:{S_OUT+3}], 0 offen")

def tail(g, name):
    o = g.o; e = g.e
    def flag(n):
        for x in flag_store(g, n): g.put(x)
    e(f"s_cmp_eq_u32 s{S_PART}, 3")
    e(f"s_cbranch_scc1 {name}_none")
    poll(g)
    g.stamp()
    e("s_waitcnt vmcnt(2)")
    g.stamp()
    def ev1():
        e("s_waitcnt vmcnt(0)")
        e(f"v_cmp_ne_u32 vcc, s{S_TOK}, v{V_P}")
        g.stamp()
        e("s_barrier")
        flag(8)
        flag(7)
        e(f"s_and_b32 s{S_PQ}, vcc_lo, s{S_BM}")
        e(f"s_cselect_b32 s{S_T2}, 0x80000000, 0")
        e(f"v_or_b32 v{V_T}, s{S_T2}, v{V_RB}")
        tile_loads(g, LDB, V_T)
    def ev2():
        e(f"s_and_b32 s{S_PA}, vcc_lo, 0xffff")
        e(f"s_cselect_b32 s{S_T2}, 0x80000000, 0")
        e(f"v_or_b32 v{V_T}, s{S_T2}, v{V_RA}")
        tile_loads(g, LDA, V_T)
    def evend(nm):
        g.stamp()
        e("s_waitcnt vmcnt(0)")
        e(f"v_cmp_ne_u32 vcc, s{S_TOK}, v{V_P}")
        e(f"s_cmp_eq_u32 s{S_PA}, 0")
        e(f"s_cbranch_scc1 {nm}_k")
        e(f"s_and_b32 s{S_PA}, vcc_lo, 0xffff")
        e(f"s_cbranch_scc1 {nm}_k")
        tile_loads(g, LDA, V_RA)
        g.lab(f"{nm}_k")
        g.stamp()
    m1 = o.get("m1", 14)
    ev = {m1: ev1, m1 + 2: ev2, -o.get("m2", 24): lambda: poll(g), "end": evend}
    e(f"s_cmp_eq_u32 s{S_PART}, 1")
    e(f"s_cbranch_scc1 {name}_j1")
    e(f"s_cmp_eq_u32 s{S_PART}, 2")
    e(f"s_cbranch_scc1 {name}_j2")
    for p in range(3):
        if p: g.lab(f"{name}_j{p}")
        conv_job(g, JOBS[p], f"{name}_c{p}", ev)
        if p < 2: e(f"s_branch {name}_cfin")
    g.lab(f"{name}_cfin")
    e(f"s_mov_b32 s{S_N}, {SPIN}")
    e(f"s_cmp_eq_u32 s{S_PA}, 0")
    e(f"s_cbranch_scc1 {name}_np")
    poll(g)
    g.lab(f"{name}_np")
    e("s_waitcnt lgkmcnt(0)")
    g.stamp()
    e("s_barrier")
    g.stamp()
    RA, RB = CACC, CACC + 24
    fin_a(g, XA, S_IA, RA)
    e(f"s_cmp_eq_u32 s{S_BM}, 0")
    e(f"s_cbranch_scc1 {name}_a0")
    fin_a(g, XB, S_IB, RB)
    e(f"s_cmp_lg_u32 s{S_PQ}, 0")
    e(f"s_cbranch_scc1 {name}_bslow")
    g.lab(f"{name}_bback")
    fin_b(g, LDB, XB, V_XB, RB, False)
    e(f"s_cmp_eq_u32 s{S_PA}, 0")
    e(f"s_cbranch_scc1 {name}_a2")
    e("s_waitcnt vmcnt(1)")
    e(f"s_branch {name}_a1")
    g.lab(f"{name}_a0")
    e(f"s_cmp_eq_u32 s{S_PA}, 0")
    e(f"s_cbranch_scc1 {name}_a2")
    g.lab(f"{name}_alp")
    e("s_waitcnt vmcnt(0)")
    g.lab(f"{name}_a1")
    e(f"v_cmp_ne_u32 vcc, s{S_TOK}, v{V_P}")
    e(f"s_sub_u32 s{S_N}, s{S_N}, 1")
    e(f"s_cbranch_scc1 {name}_ago")
    e(f"s_and_b32 s{S_PA}, vcc_lo, 0xffff")
    e(f"s_cbranch_scc0 {name}_ago")
    poll(g)
    e(f"s_branch {name}_alp")
    g.lab(f"{name}_ago")
    tile_loads(g, LDA, V_RA)
    g.lab(f"{name}_a2")
    g.stamp()
    fin_b(g, LDA, XA, V_XA, RA, True)
    finish(g)
    g.lab(f"{name}_bslow")
    poll(g)
    e(f"s_sub_u32 s{S_N}, s{S_N}, 1")
    e("s_waitcnt vmcnt(0)")
    e(f"s_cbranch_scc1 {name}_bgo")
    e(f"v_cmp_ne_u32 vcc, s{S_TOK}, v{V_P}")
    e(f"s_and_b32 s{S_PQ}, vcc_lo, s{S_BM}")
    e(f"s_cbranch_scc1 {name}_bslow")
    g.lab(f"{name}_bgo")
    e(f"s_mov_b32 s{S_N}, {SPIN}")
    tile_loads(g, LDB, V_RB)
    e("s_waitcnt vmcnt(0)")
    e(f"s_branch {name}_bback")
    g.lab(f"{name}_none")
    e("s_waitcnt vmcnt(0)")
    e("s_barrier")
    flag(8)
    flag(7)
    finish(g)

def boundary(g, sc, name):
    o = g.o; e = g.e
    for p in range(4):
        for t in range(2):
            r = HP + 8*p + 4*t
            e(f"ds_write_b128 v{V_HW}, v[{r}:{r+3}] offset:{8192*p + 1024*t}")
    if not o.get("core"):
        e(f"buffer_load_dword v{V_TOK}, off, s[{S_DBG}:{S_DBG+3}], 0 sc1", "tok")
        e(f"v_lshrrev_b32 v{V_T2}, 9, v{V_KST}")
        e(f"s_and_b32 s{S_T}, s2, 7")
        e(f"s_mul_i32 s{S_T}, s{S_T}, 576")
        e(f"buffer_load_dwordx4 v[{SH}:{SH+3}], v{V_T2}, s[{S_SH}:{S_SH+3}], s{S_T} offen", "sh")
        if not o.get("nox"):
            e(f"buffer_load_dwordx4 v[{XA}:{XA+3}], v{V_XA}, s[{S_Q}:{S_Q+3}], 0 offen", "xa")
            e(f"buffer_load_dwordx4 v[{XB}:{XB+3}], v{V_XB}, s[{S_Q}:{S_Q+3}], 0 offen", "xb")
        for r in range(11): e(f"ds_read_b32 v{KR+r}, v{V_KG} offset:{720 + 144*r + (16 if r > 2 else 0)}")
        for r in range(8): e(f"ds_read_b32 v{VR+r}, v{V_KG} offset:{9856 + 1168 + 144*r}")
    e(f"s_mul_i32 s{S_N}, s{S_MH}, 36864")
    e(f"v_lshl_add_u32 v{V_FR}, v{V_LANE}, 4, s{S_N}")
    e(f"s_lshr_b32 s{S_T}, s{S_QW}, 1")
    e(f"s_lshl_b32 s{S_T}, s{S_T}, 8")
    e(f"s_and_b32 s{S_T2}, s{S_QW}, 1")
    e(f"s_add_u32 s{S_T}, s{S_T}, s{S_T2}")
    e(f"s_lshl_b32 s{S_T}, s{S_T}, 3")
    e(f"v_add_u32 v{V_T}, s{S_T}, v{V_FR}")
    for x in gelu_list(o, 8): e(x)
    e(f"ds_write2st64_b64 v{V_T}, v[{HP+32}:{HP+33}], v[{HP+34}:{HP+35}] offset0:64 offset1:66")
    g.stamp()
    fb = o.get("fb", 8)
    g.wait(vm=[("u", 9, p[0]) for ks in range(fb) for p in parts(9, ks)], alllds=True)
    g.stamp()
    e("s_barrier")
    sc.rel.add("stg")

def gen(name, opt):
    g = G(opt); o = opt
    e = g.e
    g.NF = o.get("nf", 5)
    SM[0] = o.get("sm", 1)
    g.ool = []
    g.L.append(f".globl {name}\n.p2align 8\n.type {name},@function\n{name}:")
    prologue(g, name)
    r1 = o.get("r1", "AAAAAAAAA"); r2 = o.get("r2", "AAAAAAAAA")
    g.role = lambda r: (r1 + r2)[min((r + o.get("rsh", 0)) // 18, 17)]
    split1 = set(r1) != {"A"}
    split2 = split1 or set(r2) != {"A"} or "sbX" in o or "ssX" in o
    def phase1():
        sc = Sched(g, 9)
        work = {}; inb = {}
        for x in bias_read(0): g.put(x)
        for n in range(9):
            if n < 8: inb[(9*n + 1, 0) if n == 7 else (9*n + o.get("bslot", 4), 2)] = bias_read(n + 1)
            if n: deal(gelu_list(o, n - 1), 9*n + o.get("g0", 0), o.get("gn", 9), work)
        full = not o.get("core")
        if full: spread(atoms(setup2()) + setup3(), 6, 34, work)
        else: spread(setup2(), 12, 34, work)
        def b0():
            if full: g.wait(vm=["stg"])
            e("s_barrier")
        cv = o.get("cv", 4)
        post = {o.get("rcold", 134): cold_items(o.get("cm", 4))} if full else {}
        pre = {(134 if SM[0] else 152): (stage_items(S_K, 0, "kst") if cv else []) + stage_items(S_V, 9856, "stg")} if full and not o.get("nov") else {}
        if full and cv == 1:
            for p_, r_ in enumerate(o.get("ev", [44, 54, 62, 72, 80, 90, 98, 108, 116])):
                def tx(p_=p_):
                    nm = f"{name}_{g.grp}_e{p_}"
                    e(f"s_cmp_eq_u32 s{S_INFO}, {p_}")
                    e(f"s_cbranch_scc1 {nm}")
                    g.lab(nm + "b")
                    g.ool += [nm + ":"] + ["  " + x for x in touches(o)] + [f"  s_branch {nm}b"]
                pre[r_] = [[tx]]
        if full and cv == 2: pre[o["evr"]] = [touches(o)]
        if full and cv == 4:
            for r_, k_, m_ in o.get("tl", [[44, "K", 0xff], [62, "K", 0xff00], [80, "V", 0xff], [98, "V", 0xff00], [116, "F", 0x7ff]]):
                sr, v = {"K": (S_K, V_KT), "V": (S_V, V_KT), "F": (S_KF, V_KFT)}[k_]
                (post if o.get("tpost") else pre).setdefault(r_, []).append([f"s_mov_b64 exec, {m_}", f"buffer_load_dword v{V_DUM}, v{v}, s[{sr}:{sr+3}], 0 offen", "s_mov_b64 exec, -1"])
        if full and cv == 0:
            for p_, r_ in enumerate(o.get("ev", [44, 54, 62, 72, 80, 90, 98, 108, 116])):
                def tx(p_=p_):
                    nm = f"{name}_{g.grp}_e{p_}"
                    e(f"s_cmp_eq_u32 s{S_ONES}, {p_ % 3}")
                    e(f"s_cbranch_scc1 {nm}")
                    g.lab(nm + "b")
                    L = [nm + ":"]
                    for k, body in enumerate(early_items(o)):
                        if k < 2: L += [f"  s_cmp_lg_u32 s{S_INFO}, {(p_ + 3*k) % 9}", f"  s_cbranch_scc1 {nm}_{k}"]
                        L += ["  " + (x[0] if isinstance(x, tuple) else x) for x in body]
                        L.append(f"  s_branch {nm}b")
                        if k < 2: L.append(f"{nm}_{k}:")
                    g.ool += L
                pre[r_] = [[tx]]
        stream(g, sc, 0, work, endhook=b0, post=post, pre=pre, inb=inb)
        sc.release(161)
        g.stamp()
        boundary(g, sc, name)
        return sc
    def phase2(sc):
        work = {}
        pend = []
        full = not o.get("core")
        nm = name + "_" + g.grp
        told = set(); late = []
        def flags():
            for m in range(7):
                if ("p", m) in g.bdone and m not in told:
                    told.add(m)
                    if o.get("lateflag"): late.append(m)
                    else:
                        for x in flag_store(g, m): g.put(x)
            if "kv1" in g.bdone and "rdy" not in told:
                told.add("rdy")
                e(f"s_lshl_b32 s{S_N}, s2, 7")
                e(f"s_add_u32 s{S_N}, s{S_N}, {RDY_OFF}")
                e(f"buffer_store_dword v{V_TOK}, v{V_L0}, s[{S_WS}:{S_WS+3}], s{S_N} offen sc1")
        def tok():
            g.wait(vm=["tok"])
            e(f"v_readfirstlane_b32 s{S_TOK}, v{V_TOK}")
            e(f"s_cmp_eq_u32 s{S_TOK}, 0")
            e(f"s_cbranch_scc1 {nm}_tok_slow")
            g.lab(f"{nm}_tok_back")
        def rdy():
            assert "rdy" in told
            g.wait(vm=["rl"])
            e(f"v_cmp_ne_u32 vcc, s{S_ONES}, v{V_RDY}")
            e(f"s_cbranch_vccnz {nm}_rdy_slow")
            g.lab(f"{nm}_rdy_back")
        ss = o.get("ss" + g.grp, o.get("ss", 8))
        if full:
            if not o.get("nokc"): spread(kv_compute(g), o.get("kc0", 334), o.get("kc1", 398), work)
            spread(setup4(), 324 + 36*4 + 10, 324 + 36*5 + 2, work)
            work.setdefault(324 + 36*o.get("rlb", 7) + ss, []).append(
                (f"buffer_load_dword v{V_RDY}, v{V_L4}, s[{S_WS}:{S_WS+3}], 0 offen sc1", "rl"))
            c0 = 606 + o.get("c0", 0)
            spread(conv_loads(g), c0, c0 + o.get("cls", 12), work)
            work.setdefault(628, []).append(flags)
        for n in range(8):
            b = 324 + 36*(n + 1)
            spread(cvt(g, n), b + 3, b + 8, work)
            pend.append(n)
            if (n + 1 in o["sb" + g.grp]) if "sb" + g.grp in o else (n + 1 in o["sb"]) if "sb" in o else (g.role(162 + 18*(n + 1) + 4) != g.grp):
                s_ = o.get("ss7", 10) if full and n == 7 else ss
                for k, m in enumerate(pend): work.setdefault(b + s_ - o.get("sd", 1)*(len(pend) - 1 - k), []).extend(pstore(g, m))
                pend = []
                if full:
                    if n == o.get("kvb", 1): work[b + s_].extend(sum(kv_store(), []))
                    work[b + s_].append(flags)
            assert len(pend) < o.get("npk", 2)
        stream(g, sc, 1, work, hooks={162 + o.get("fb", 8): tok, 306 + (g.NF - 1) // 2 * 2: rdy} if full else None)
        for m in pend:
            for x in pstore(g, m): g.put(x)
        for m in late:
            for x in flag_store(g, m): g.put(x)
        e("s_nop 7")
        for x in cvt(g, 8) + pstore(g, 8): g.put(x)
        if not full:
            finish(g)
            return
        assert told == set(range(7)) | {"rdy"}, told
        tail(g, nm)
        g.lab(f"{nm}_rdy_slow")
        e(f"s_mov_b32 s{S_N}, {SPIN}")
        g.lab(f"{nm}_rdy_lp")
        e(f"buffer_load_dword v{V_RDY}, v{V_L4}, s[{S_WS}:{S_WS+3}], 0 offen sc1")
        e(f"s_sub_u32 s{S_N}, s{S_N}, 1")
        e("s_waitcnt vmcnt(0)")
        e(f"s_cbranch_scc1 {nm}_rdy_back")
        e(f"v_cmp_ne_u32 vcc, s{S_ONES}, v{V_RDY}")
        e(f"s_cbranch_vccnz {nm}_rdy_lp")
        e(f"s_branch {nm}_rdy_back")
        g.lab(f"{nm}_tok_slow")
        e(f"s_mov_b32 s{S_N}, {SPIN}")
        g.lab(f"{nm}_tok_lp")
        e(f"buffer_load_dword v{V_TOK}, off, s[{S_DBG}:{S_DBG+3}], 0 sc1")
        e(f"s_sub_u32 s{S_N}, s{S_N}, 1")
        e("s_waitcnt vmcnt(0)")
        e(f"s_cbranch_scc1 {nm}_tok_back")
        e(f"v_readfirstlane_b32 s{S_TOK}, v{V_TOK}")
        e(f"s_cmp_eq_u32 s{S_TOK}, 0")
        e(f"s_cbranch_scc1 {nm}_tok_lp")
        e(f"s_branch {nm}_tok_back")
    import copy
    def fork(f):
        if "fk" in o: e(f"s_bitcmp1_b32 s2, {o['fk']}")
        else: e(f"s_cmp_eq_u32 s{S_MH}, 1")
        e(f"s_cbranch_scc1 {name}_y")
        st = copy.deepcopy((g.lds, g.vm, g.done))
        g.grp = "X"; f()
        g.lds, g.vm, g.done = st
        g.lab(f"{name}_y")
        g.grp = "Y"; f()
    g.grp = "A"
    if split1: fork(lambda: phase2(phase1()))
    else:
        sc = phase1()
        if split2:
            def f():
                s2 = Sched(g, 0); s2.q = list(sc.q); s2.rel = set(sc.rel)
                phase2(s2)
            fork(f)
        else:
            g.grp = "Z"
            phase2(sc)
    g.L += g.ool
    g.lab(f"{name}_mk")
    e(f"s_mov_b32 s{S_T}, {EPO_OFF}")
    e(f"s_load_dword s{S_TOK}, s[{S_WS}:{S_WS+1}], s{S_T}")
    e(f"v_cmp_eq_u32 vcc, 0, v{V_LANE}")
    e(f"v_bfrev_b32 v{V_T}, 1")
    e(f"v_cndmask_b32 v{V_T}, v{V_T}, v{V_LANE}, vcc")
    e("s_waitcnt lgkmcnt(0)")
    e(f"s_add_u32 s{S_TOK}, s{S_TOK}, 1")
    e(f"s_addc_u32 s{S_TOK}, s{S_TOK}, 0")
    e(f"v_mov_b32 v{V_L0}, s{S_TOK}")
    e(f"buffer_store_dword v{V_L0}, v{V_T}, s[{S_DBG}:{S_DBG+3}], 0 offen sc1")
    e(f"buffer_store_dword v{V_L0}, v{V_T}, s[{S_WS}:{S_WS+3}], s{S_T} offen sc1")
    e(f"s_branch {name}_mkb")
    g.lab(f"{name}_exit")
    e("s_endpgm")
    desc = f""".amdhsa_kernel {name}
  .amdhsa_next_free_vgpr 256
  .amdhsa_next_free_sgpr {102 if o.get('stamps') else 100}
  .amdhsa_accum_offset 256
  .amdhsa_group_segment_fixed_size 0
  .amdhsa_kernarg_size 112
  .amdhsa_user_sgpr_count 2
  .amdhsa_user_sgpr_kernarg_segment_ptr 1
  .amdhsa_system_sgpr_workgroup_id_x 1
.end_amdhsa_kernel"""
    return "\n".join(g.L) + "\n", desc
```

```python
import sys, json
import k8
KN = "parallel_sum__ssm_conv_h3__dense_activation_gelu__prompt_kernel"
def full(opt):
    b1, d1 = k8.gen(KN, opt)
    return (f"; @launch grid=(256,1,1) block=(512,1,1) lds={k8.LDS_SZ}\n"
            '.amdgcn_target "amdgcn-amd-amdhsa--gfx950"\n.text\n' + b1 +
            '.section .rodata,"a"\n.p2align 6\n' + d1 + "\n")
if __name__ == "__main__":
    opt = json.loads(sys.argv[2]) if len(sys.argv) > 2 else {}
    open(sys.argv[1], "w").write(full(opt))
```

```python
import struct, math
def f32bits(x): return struct.unpack("<I", struct.pack("<f", x))[0]

LDS_SZ = 163840
XL = 11 * 8192
KSTG = 73728
VSTG = KSTG + 9856
TBL = VSTG
STAMP_OFF = 32 << 20
KVT_OFF = 20 << 20
STAT_OFF = 24 << 20
FLAG_OFF = 25 << 20
RDY_OFF = 26 << 20
EPO_OFF = 27 << 20
XT_OFF = 28 << 20
JOBS = [[(0, 6), (27, 32)], [(6, 11), (22, 27)], [(11, 22)]]
WSTR = 8704
SPIN = 1 << 15

V_TID = 0; V_LANE = 1
V_TR = [2, 3, 4]
V_FR = 5; V_HW = 6; V_C1 = 7
V_O1 = 8; V_O2 = 9; V_BO = 10; V_ST = 11; V_L0 = 12
V_STAMP = 13; V_T = 14; V_T2 = 15
V_O1B = 52; V_O2B = 53; V_O1G = 54; V_O2G = 55
ACC = [16, 24]
WF = 32
WFS = [32, 36, 40, 44, 48, 52, 108]
S_KO = 35; S_FO = 1; S_DUM = 56
GT = 56; BI = 64; SP = 68; HP = 76; BIG = 112
XR = 76; LT = 112; BR = 63; V_QA = 60; V_SAD = 62; S_YT = 3; S_XO = 30
PKR = 56
V_K1 = 68; V_K2 = 69; V_DUM = 70; V_KFT = 71; V_XA = 72; V_XB = 73; V_KG = 74; V_KST = 75
XA = 64; XB = 68; V_KT = 53
VR = 76; KR = 84; SH = 96; KC = 100; KA = 104
V_FR2 = 56
V_TOK = 8; V_RDY = 60; V_L4 = 61; V_XO = 62; V_XS = 63; V_YO = 60; V_YS = 61; V_SA = 53; V_SB = 55
V_AF = 5; V_BF = 6; V_KV = 7; V_YW = 10; V_RA = 52; V_RB = 54; V_FA = 74; V_P = 75; V_CL = 110; V_OOB = 111
AF = 112; CACC = 176; BB = 224; NB = 6
LDA = 76; LDB = 16

S_TOK = 3
S_Q = 4; S_W1 = 8; S_W2 = 12; S_B1 = 16; S_DR = 20; S_WS = 24
S_J = 28; S_RB = 29; S_ROT = 30; S_W = 31; S_QW = 32; S_M0B = 33
S_GC = 34
S_N = 38; S_T = 39; S_T2 = 40
S_COL = 44
S_ROW = [16, 17, 18, 19, 36, 37, 41, 42, 43]
S_PB = 53; S_SI = 54; S_MH = 55
S_PC = 56; S_TM = 58; S_M0G = 56
S_FLG = 62; S_ONES = 63
S_K = 64; S_V = 68; S_SH = 72; S_KVO = 76
S_G = 77; S_PART = 78; S_INFO = 79
S_OUT = 80; S_KF = 84; S_DBG = 88; S_DP = 92; S_BP = 94; S_B2 = 96
S_TA = 92; S_TB = 93; S_IA = 94; S_IB = 95; S_BM = 57; S_KM = 30
S_BV = 64; S_LO = 72; S_HI = 73; S_D = 74; S_PX = 75; S_PY = 76; S_GX = 34; S_GY = 35; S_XM = 28; S_YM = 0; S_SO = 23; S_NX = 0; S_NY = 1; S_H2 = 8; S_CH = 9; S_FB = 10; S_GO = 11

S_PO = [11, 4, 5, 6, 7, 20, 21, 22]
S_WT = 35

class G:
    def __init__(self, opt):
        self.L = []; self.o = opt
        self.lds = []; self.vm = []; self.done = set(); self.bdone = set()
    def e(self, s, tag=None):
        if s.endswith(" lds") and self.L[-1].split()[1:2] == ["m0,"]: self.L.append("  s_nop 0")
        self.L.append("  " + s)
        if s.startswith("ds_"): self.lds.append(tag)
        if s.startswith("buffer_") or s.startswith("global_"): self.vm.append(tag)
    def put(self, x):
        if callable(x): x()
        elif isinstance(x, tuple): self.e(x[0], x[1])
        else: self.e(x)
    def lab(self, s): self.L.append(s + ":")
    def _n(self, q, tags):
        idx = [i for i, t in enumerate(q) if t is not None and t in tags]
        if not idx: return None
        m = max(idx)
        for t in q[:m+1]:
            if t is not None: self.done.add(t)
        n = len(q) - 1 - m
        del q[:m+1]
        return n
    def wait(self, lds=(), vm=(), alllds=False, allvm=False):
        w = []
        if allvm:
            for t in self.vm: self.done.add(t)
            self.vm = []; w.append("vmcnt(0)")
        else:
            n = self._n(self.vm, set(vm))
            if n is not None: w.append(f"vmcnt({min(n, 63)})")
        if alllds:
            for t in self.lds: self.done.add(t)
            self.lds = []; w.append("lgkmcnt(0)")
        else:
            n = self._n(self.lds, set(lds))
            if n is not None: w.append(f"lgkmcnt({min(n, 15)})")
        if w: self.e("s_waitcnt " + " ".join(w))
    def stamp(self):
        if not self.o.get("stamps"): return
        self.e(f"s_memtime s[{S_TM}:{S_TM+1}]")
        self.e(f"s_memrealtime s[{S_TM+2}:{S_TM+3}]")
        self.e("s_mov_b32 s100, m0")
        self.e("s_waitcnt lgkmcnt(0)")
        self.e(f"s_mov_b32 m0, s{S_SI}")
        self.e(f"s_add_u32 s{S_SI}, s{S_SI}, 1")
        self.e(f"v_writelane_b32 v{V_STAMP}, s{S_TM}, m0")
        self.e(f"s_add_u32 m0, m0, 30")
        self.e(f"s_nop 0")
        self.e(f"v_writelane_b32 v{V_STAMP}, s{S_TM+2}, m0")
        self.e("s_mov_b32 m0, s100")
    def rstamp(self, lane):
        if not self.o.get("stamps"): return
        self.e(f"s_memrealtime s[{S_TM}:{S_TM+1}]")
        self.e("s_waitcnt lgkmcnt(0)")
        self.e(f"v_writelane_b32 v{V_STAMP}, s{S_TM}, {lane}")

def srd(g, s, nrec):
    g.e(f"s_mov_b32 s{s+2}, {nrec}")
    g.e(f"s_mov_b32 s{s+3}, 0x00020000")

SM = [1]
def slot(N, u):
    if N == 10 and u == 8: return 9
    if N % 2 == 0: return u
    if N < 9:
        if not SM[0]: return 11 + u
        return 10 + u if u else (9 if N == 1 else 19)
    if u == 8: return 11
    if not SM[0]: return 12 + u
    return 11 + u if u else 19

def dma(g, N, u, grp=False):
    L = [f"s_add_u32 m0, s{S_M0G if grp else S_M0B}, {slot(N, u) * 8192}"]
    if N < 9:
        L.append(f"s_add_u32 s{S_T}, s{S_COL+N}, {u*64*9216}")
        v, s = (V_O1G if grp else V_O1), S_W1
        v2 = V_O1B
    else:
        L.append(f"s_add_u32 s{S_T}, s{S_COL+N-9}, s{S_ROW[u]}")
        v, s = (V_O2G if grp else V_O2), S_W2
        v2 = V_O2B
    if g.o.get("nodma") and N: return [L]
    L.append((f"buffer_load_dwordx4 v{v}, s[{s}:{s+3}], s{S_T} offen lds", ("u", N, u)))
    if not grp: return [L]
    d2 = (f"buffer_load_dwordx4 v{v2}, s[{s}:{s+3}], s{S_T} offen offset:1024 lds", ("u", N, u))
    if g.o.get("dpair"): return [L + [d2]]
    return [L, [d2]]

def parts(N, ks):
    if N < 9: return [(ks // 2, 2*(ks % 2)), (ks // 2, 2*(ks % 2) + 1)]
    if ks < 16: return [(2*(ks // 4), ks % 4), (2*(ks // 4) + 1, ks % 4)]
    return [(8, 2*(ks - 16)), (8, 2*(ks - 16) + 1)]

def wreads(g, r):
    N, ks = r // 18, r % 18
    b = WFS[r % g.NF]
    L = []
    for h, (u, g16) in enumerate(parts(N, ks)):
        a = slot(N, u)*8192 + 2048*g16
        L.append((f"ds_read_b64_tr_b16 v[{b+2*h}:{b+2*h+1}], v{V_TR[a >> 16]} offset:{a & 0xffff}", ("w", r) if h else None))
    return L

def mfmas(g, i):
    N, ks = i // 18, i % 18
    b = WF + 4*(i % g.NF)
    L = []
    for t in range(2):
        c = ACC[N % 2] + 4*t
        f = BIG + 8*ks + 4*t
        src = f"v[{c}:{c+3}]" if ks else (f"v[{BI}:{BI+3}]" if N < 9 else "0")
        L.append(f"v_mfma_f32_16x16x32_bf16 v[{c}:{c+3}], v[{b}:{b+3}], v[{f}:{f+3}], {src}")
    return L

def sread(ph, k):
    ks, t = k // 2, k % 2
    if ph == 0:
        off = 4096*ks + 1024*t
        v = [V_FR, V_FR2, V_FR2 + 1, V_FR2 + 2][(off >> 16) + 2*(ks % 2)]
        return (f"ds_read_b128 v[{BIG+4*k}:{BIG+4*k+3}], v{v} offset:{off & 0xffff}", ("s", k))
    if ks < 16: return (f"ds_read_b128 v[{BIG+4*k}:{BIG+4*k+3}], v{V_FR} offset:{16384*(ks//4) + 2048*(ks%4) + 1024*t}", ("s", 36 + k))
    return (f"ds_read_b128 v[{BIG+4*k}:{BIG+4*k+3}], v{V_HW} offset:{2048*(ks-16) + 1024*t}", ("s", 36 + k))

def spread(items, s0, s1, work):
    n = len(items)
    for i, it in enumerate(items):
        s = s0 + (i * (s1 - s0)) // n
        work.setdefault(s, []).extend(it if isinstance(it, list) else [it])

def gelu_list(o, n):
    L = []
    A = ACC[n % 2]
    x = [A + i for i in range(8)]
    t = [GT + i for i in range(8)]
    def dst(i):
        if n == 8: return HP + 32 + i
        return HP + 8*(n // 2) + 4*(i // 2) + 2*(n % 2) + (i % 2)
    if o.get("nogelu"):
        return [f"v_cvt_pk_bf16_f32 v{dst(i)}, v{x[2*i]}, v{x[2*i+1]}" for i in range(4)]
    P = lambda r: f"v[{r}:{r+1}]"
    if o.get("pk", 0):
        sc = f"s[{S_GC}:{S_GC+1}]"
        for i in range(0, 8, 2): L.append(f"v_pk_mul_f32 {P(t[i])}, {P(x[i])}, {P(x[i])}")
        for i in range(0, 8, 2): L.append(f"v_pk_fma_f32 {P(t[i])}, {P(t[i])}, {sc}, {sc} op_sel:[0,0,1] op_sel_hi:[1,0,1]")
        for i in range(0, 8, 2): L.append(f"v_pk_mul_f32 {P(t[i])}, {P(t[i])}, {P(x[i])}")
        for i in range(8): L.append(f"v_exp_f32 v{t[i]}, v{t[i]}")
        for i in range(0, 8, 2): L.append(f"v_pk_add_f32 {P(t[i])}, {P(t[i])}, 1.0 op_sel_hi:[1,0]")
        for i in range(8): L.append(f"v_rcp_f32 v{t[i]}, v{t[i]}")
        for i in range(0, 8, 2): L.append(f"v_pk_mul_f32 {P(t[i])}, {P(t[i])}, {P(x[i])}")
    else:
        for i in range(8): L.append(f"v_mul_f32 v{t[i]}, v{x[i]}, v{x[i]}")
        for i in range(8): L.append(f"v_fma_f32 v{t[i]}, v{t[i]}, s{S_GC}, v{V_C1}")
        for i in range(8): L.append(f"v_mul_f32 v{t[i]}, v{t[i]}, v{x[i]}")
        for i in range(8): L.append(f"v_exp_f32 v{t[i]}, v{t[i]}")
        for i in range(8): L.append(f"v_add_f32 v{t[i]}, 1.0, v{t[i]}")
        for i in range(8): L.append(f"v_rcp_f32 v{t[i]}, v{t[i]}")
        for i in range(8): L.append(f"v_mul_f32 v{t[i]}, v{t[i]}, v{x[i]}")
    for i in range(4): L.append(f"v_cvt_pk_bf16_f32 v{dst(i)}, v{t[2*i]}, v{t[2*i+1]}")
    return L

def cvt(g, n):
    A = ACC[(n + 9) % 2]; P = PKR + 4*(n % g.o.get("npk", 1))
    L = [f"v_cvt_pk_bf16_f32 v{P+i}, v{A+2*i}, v{A+2*i+1}" for i in range(4)]
    L.append("s_nop 0")
    L.append(f"v_permlane16_swap_b32 v{P}, v{P+2}")
    L.append(f"v_permlane16_swap_b32 v{P+1}, v{P+3}")
    return L

def pstore(g, n):
    fl = g.o.get("stflags", "sc1")
    P = PKR + 4*(n % g.o.get("npk", 1))
    L = [f"s_lshl_b32 s{S_T2}, s{S_COL+n}, 11", f"s_add_u32 s{S_T2}, s{S_T2}, s{S_PB}"]
    if not (g.o.get("nostore") or g.o.get("nostore" + g.grp)): L.append((f"buffer_store_dwordx4 v[{P}:{P+3}], v{V_ST}, s[{S_WS}:{S_WS+3}], s{S_T2} offen {fl}", ("p", n)))
    return L

def flag_store(g, n):
    return [f"s_lshl1_add_u32 s{S_N}, s{S_COL+n}, s{S_FLG}",
            (f"buffer_store_dword v{V_TOK}, v{V_L0}, s[{S_WS}:{S_WS+3}], s{S_N} offen sc1", ("f", n))]

class Sched:
    def __init__(self, g, first):
        self.g = g
        A = [(N, u) for N in range(18) for u in range(9)]
        self.q = A[first:]
        self.own = {}
        for N, u in A[:first]: self.own[slot(N, u)] = (N, u)
        self.hold = {}
    def ok(self, N, u):
        s_ = slot(N, u)
        return s_ not in self.own and not (s_ in self.hold and N >= self.hold[s_])
    def claim(self, slots, nm):
        for s_ in slots:
            assert s_ not in self.own, (s_, nm, self.own[s_])
            self.own[s_] = nm
    def free(self, slots):
        for s_ in slots:
            assert isinstance(self.own[s_], str), (s_, self.own[s_])
            del self.own[s_]; self.hold.pop(s_, None)
    def release(self, i):
        for s_, x in list(self.own.items()):
            if isinstance(x, tuple):
                N, u = x
                last = max(ks for ks in range(18) if any(p[0] == u for p in parts(N, ks)))
                if 18*N + last <= i: del self.own[s_]
    def take(self, cap):
        R = []
        while self.q and len(R) < cap and self.ok(*self.q[0]):
            x = self.q.pop(0); self.own[slot(*x)] = x
            R.append(x)
        return R

def mfma(g, i, t):
    N, ks = i // 18, i % 18
    b = WFS[i % g.NF]
    c = ACC[N % 2] + 4*t
    f = BIG + 8*ks + 4*t
    src = f"v[{c}:{c+3}]" if ks else (f"v[{BI}:{BI+3}]" if N < 9 else "0")
    return f"v_mfma_f32_16x16x32_bf16 v[{c}:{c+3}], v[{b}:{b+3}], v[{f}:{f+3}], {src}"

def isvalu(x):
    t = x[0] if isinstance(x, tuple) else x
    return isinstance(t, str) and t.startswith("v_")

def seq(j):
    R = []
    for i in (2*j - 2, 2*j - 1): R.append((i, 1 - (i % 18) // 2 % 2) if i >= 0 else None)
    for i in (2*j, 2*j + 1): R.append((i, (i % 18) // 2 % 2) if i < 324 else None)
    return R
SO = [2*m[0] + m[1] for j in range(10) for m in seq(j) if m and m[0] < 18]

def stream(g, sc, bars, work, hooks, pre, post, inb, bw, bv, act, aft):
    o = g.o; D = g.NF - 2; E = D + D % 2 + 2
    i1 = 324
    first = lambda r: r - D % 2
    def need(r0):
        nx = min([first(b) for b in bars if b > r0] + [i1])
        return [("u", r // 18, p[0]) for r in range(first(r0), nx) for p in parts(r // 18, r % 18)]
    due = {}
    for b in bars:
        for t in need(b): due.setdefault(t[1:], (b - E) // 2)
    for r in range(D):
        for x in wreads(g, r): g.put(x)
        for x in inb.pop((-1, r), []): g.put(x)
    vq = []
    log = []
    for j in range(163):
        r = 2*j + E
        bar = r in bars
        tgt = o.get("tgt%d" % (1 + j // 81), o.get("tgt", 7))
        if bar:
            sc.release(2*j + 1)
            for f in act.pop(r, []): f()
            vq += pre.pop(r, [])
        X = []
        if vq: X.append(vq.pop(0))
        us = sc.take(1) if j < 162 else []
        while us and len(us) < o.get("dmax", 2) and sc.q and due[sc.q[0]] - j < tgt and sc.ok(*sc.q[0]): us += sc.take(1)
        log += [(j, u, due[u] - j) for u in us]
        if bar: vq += post.pop(r, [])
        dm = [dma(g, N, u)[0] for N, u in us]
        rr = [x for i in (2*j + D, 2*j + D + 1) if i < i1 and not o.get("noread") for x in wreads(g, i)]
        sl = dm[0][:2] if dm else []
        S = seq(j)
        def stag(m): return [("s", 2*m[0] + m[1])] if m[0] < 18 else [("s", 36 + 2*(m[0] - 162) + m[1])] if 162 <= m[0] < 180 else []
        for q, m in enumerate(S):
            tags = []
            if q == o.get("wq", 0) and j > 1:
                tags += [("w", 2*j), ("w", 2*j + 1)] + (["bias"] if j % 9 == 0 else [])
                if o.get("sw", 1): tags += [t for m2 in S if m2 for t in stag(m2)]
            if m:
                tags.append(("w", m[0]))
                tags += stag(m)
                for t in stag(m): assert t in g.lds or t in g.done, (j, t)
                if m[0] % 18 == 0: tags.append("bias")
                if o.get("sp") == 2 and q == 0: g.e("s_setprio 1")
                g.wait(lds=tags)
                if o.get("sp") == 1 and q == 0: g.e("s_setprio 1")
                if o.get("sp") == 3 and q == 0: g.e("s_setprio 0")
                if not o.get("nomfma"): g.e(mfma(g, *m))
                if o.get("sp") in (1, 2) and q == 3: g.e("s_setprio 0")
                if o.get("sp") == 3 and q == 3: g.e("s_setprio 1")
                for _ in range(2 if j == 0 else 1):
                    if rr: g.put(rr.pop(0))
                if sl: g.put(sl.pop(0))
                for x in inb.pop((j, q), []): g.put(x)
        assert not rr
        if bar:
            nd = need(r)
            assert not [t for t in nd if t[1:] in sc.q or t[1:] in us], r
            for t in bw.get(r, []) + bv.get(r, []): assert t in g.lds or t in g.vm or t in g.done, (r, t)
            g.wait(vm=nd + bv.pop(r, []), lds=bw.pop(r, []))
            if r in hooks: hooks.pop(r)()
            if r in o.get("sl", [8, 18, 26, 80, 152, 164, 180, 188, 206, 242, 278, 296, 310, 318]): g.stamp()
            if not o.get("nobar"): g.e("s_barrier")
            g.bdone = set(g.done)
        if dm:
            for x in dm[0][2:]: g.put(x)
        if bar:
            for x in aft.pop(r, []): g.put(x)
        V = [x for s_ in range(4*j - 2, 4*j + 2) for x in work.pop(s_, [])]
        if j == 162: work[4*j - 2] = V; break
        for Y in dm[1:]:
            for x in Y[:2]: g.put(x)
            for _ in range(o.get("dgap", 2)):
                if V and isvalu(V[0]): g.put(V.pop(0))
            for x in Y[2:]: g.put(x)
        k = o.get("xgap", 2)
        while k and V and isvalu(V[0]) and X:
            g.put(V.pop(0)); k -= 1
        for Y in X:
            for x in Y: g.put(x)
        for x in V: g.put(x)
    if o.get("log"): print(log)
    assert not (vq or inb or pre or post or bw or bv or act or aft or hooks), (vq, inb, pre, post, bw, bv, act, aft, hooks)
    assert not [s_ for s_ in work if s_ < 2*i1 and work[s_]], sorted(work)

def deal(items, j0, n, work):
    cost = [2 if x.startswith("v_exp") or x.startswith("v_rcp") else 1 for x in items]
    tot = sum(cost); cum = 0
    for x, c in zip(items, cost):
        work.setdefault(4*(j0 + min(n - 1, int((cum + c / 2) * n / tot))), []).append(x); cum += c

def finish(g):
    if g.o.get("stamps"):
        g.stamp()
        g.e("s_waitcnt vmcnt(0)")
        g.stamp()
        g.rstamp(63)
        g.e(f"s_lshl_b32 s{S_T}, s2, 11")
        g.e(f"s_add_u32 s{S_T}, s{S_T}, {STAMP_OFF}")
        g.e(f"v_lshlrev_b32 v{V_T}, 2, v{V_TID}")
        g.e(f"buffer_store_dword v{V_STAMP}, v{V_T}, s[{S_WS}:{S_WS+3}], s{S_T} offen")
    g.e("s_endpgm")

def bf16round(g, v):
    g.e(f"v_cvt_pk_bf16_f32 v{v}, v{v}, v{v}")
    g.e(f"v_and_b32 v{v}, 0xffff0000, v{v}")

class H:
    def __init__(self): self.L = []; self.e = self.L.append

def prologue(g, name):
    o = g.o; e = g.e; raw = lambda s_: g.L.append("  " + s_)
    full = not o.get("core")
    e("s_cmp_ge_u32 s2, 256")
    e(f"s_cbranch_scc1 {name}_exit")
    e(f"s_load_dwordx2 s[{S_Q}:{S_Q+1}], s[0:1], 0")
    if o.get("stamps"):
        e(f"s_mov_b32 s{S_SI}, 0"); e(f"v_mov_b32 v{V_STAMP}, 0")
        g.rstamp(62)
        g.stamp()
    ep = o.get("ep", 0)
    if ep:
        e(f"s_getpc_b64 s[{S_PC}:{S_PC+1}]")
        e(f"v_lshrrev_b32 v{V_T}, {ep}, v{V_TID}")
        e(f"v_lshlrev_b32 v{V_T}, 7, v{V_T}")
        raw(f"global_load_dword v{V_DUM}, v{V_T}, s[{S_PC}:{S_PC+1}] offset:128")
    KA_ = [f"s_load_dwordx2 s[{s_}:{s_+1}], s[0:1], {off}" for s_, off in ((S_W1, 56), (S_B1, 64), (S_W2, 72), (S_WS, 104), (S_K, 8), (S_V, 16),
           (S_SH, 24), (S_KF, 32), (S_DP, 40), (S_BP, 80), (S_OUT, 88), (S_DBG, 96))]
    if o.get("kae", 1):
        for x in KA_: e(x)
    e(f"s_lshr_b32 s{S_RB}, s2, 4")
    e(f"s_and_b32 s{S_T}, s2, 4")
    e(f"s_lshl2_add_u32 s{S_RB}, s{S_T}, s{S_RB}")
    e(f"v_lshrrev_b32 v{LT}, 3, v{V_TID}")
    e(f"s_and_b32 s{S_T}, s2, 8")
    e(f"s_lshl_b32 s{S_T}, s{S_T}, 2")
    e(f"v_xor_b32 v{LT}, s{S_T}, v{LT}")
    e(f"v_and_b32 v{LT+1}, 7, v{V_TID}")
    e(f"s_mul_i32 s{S_T2}, s{S_RB}, {64*1152}")
    e(f"v_lshl_add_u32 v{LT+6}, v{LT+1}, 4, s{S_T2}")
    e(f"v_mul_u32_u24 v{LT+2}, 1152, v{LT}")
    e(f"v_add_u32 v{LT+6}, v{LT+6}, v{LT+2}")
    e(f"v_cmp_gt_u32 vcc, 256, v{V_TID}")
    srd(g, S_Q, 2359296)
    e("s_waitcnt lgkmcnt(0)")
    if o.get("pst"): g.stamp()
    xl = lambda i: f"buffer_load_dwordx4 v[{XR+4*i}:{XR+4*i+3}], v{LT+6}, s[{S_Q}:{S_Q+3}], 0 offen offset:{128*i}"
    y0 = o.get("y0", 1)
    for i in range(9):
        if i == y0: e(f"s_cbranch_vccz {name}_y0")
        raw(xl(i))
    e(f"s_getpc_b64 s[{S_PC}:{S_PC+1}]")
    g.lab(f"{name}_pc")
    e(f"s_lshr_b32 s{S_T}, s2, 3")
    e(f"v_lshl_add_u32 v{V_T}, v{V_TID}, 5, s{S_T}")
    e(f"v_lshlrev_b32 v{V_T}, 7, v{V_T}")
    e(f"v_min_u32 v{V_T}, {name}_exit-{name}_pc, v{V_T}")
    raw(f"global_load_dword v{V_DUM}, v{V_T}, s[{S_PC}:{S_PC+1}]")
    g.lab(f"{name}_y0")
    if not o.get("kae", 1):
        for x in KA_: e(x)
    if o.get("pst"): g.stamp()
    h = H(); e = h.e
    e(f"v_lshrrev_b32 v{V_T}, 6, v{V_TID}")
    e(f"v_and_b32 v{V_LANE}, 63, v{V_TID}")
    e(f"v_readfirstlane_b32 s{S_W}, v{V_T}")
    e(f"s_and_b32 s{S_J}, s2, 3")
    e(f"s_bfe_u32 s{S_T}, s2, {3 | (1 << 16)}")
    e(f"s_lshl1_add_u32 s{S_J}, s{S_J}, s{S_T}")
    srd(h, S_W1, 5308416); srd(h, S_W2, 5308416); srd(h, S_B1, 9216)
    srd(h, S_WS, 268435456)
    srd(h, S_K, 2359296); srd(h, S_V, 2359296); srd(h, S_SH, 4608)
    srd(h, S_KF, 2359296); srd(h, S_OUT, 2359296); srd(h, S_DBG, 256)
    e(f"s_and_b32 s{S_QW}, s{S_W}, 3")
    e(f"s_lshr_b32 s{S_MH}, s{S_W}, 2")
    e(f"s_lshl_b32 s{S_M0B}, s{S_W}, 10")
    e(f"s_mul_i32 s{S_T}, s{S_RB}, 57")
    e(f"s_lshr_b32 s{S_T}, s{S_T}, 9")
    e(f"s_mul_i32 s{S_T}, s{S_T}, 9")
    e(f"s_sub_u32 s{S_ROT}, s{S_RB}, s{S_T}")
    e(f"s_lshl_b32 s{S_COL}, s{S_ROT}, 7")
    for u in range(1, 9):
        e(f"s_add_u32 s{S_COL+u}, s{S_COL+u-1}, 128")
        e(f"s_cmp_eq_u32 s{S_COL+u}, 1152")
        e(f"s_cselect_b32 s{S_COL+u}, 0, s{S_COL+u}")
    e(f"v_lshrrev_b32 v{LT+3}, 3, v{V_TID}")
    e(f"v_and_b32 v{LT+4}, 6, v{LT+3}")
    e(f"v_xor_b32 v{LT+4}, v{LT+4}, v{LT+1}")
    e(f"v_lshlrev_b32 v{LT+4}, 4, v{LT+4}")
    e(f"s_mul_i32 s{S_N}, s{S_J}, 1152")
    e(f"v_mul_u32_u24 v{V_O1}, 9216, v{LT+3}")
    e(f"v_add3_u32 v{V_O1}, v{V_O1}, v{LT+4}, s{S_N}")
    e(f"s_mul_i32 s{S_T}, s{S_J}, {576*1152}")
    e(f"v_mul_u32_u24 v{V_O2}, 1152, v{LT+3}")
    e(f"v_add3_u32 v{V_O2}, v{V_O2}, v{LT+4}, s{S_T}")
    e(f"s_lshl_b32 s{S_T}, s{S_QW}, 1")
    e(f"s_sub_u32 s{S_T}, s{S_T}, s{S_W}")
    e(f"s_mul_i32 s{S_T2}, s{S_T}, {8*9216}")
    e(f"v_add_u32 v{V_O1G}, s{S_T2}, v{V_O1}")
    e(f"v_add_u32 v{V_O1B}, {8*9216-1024}, v{V_O1G}")
    e(f"s_lshl_b32 s{S_M0G}, s{S_QW}, 11")
    by = o.get("by", 1)
    if by:
        e(f"v_and_b32 v{V_BO}, 255, v{V_TID}")
        e(f"v_lshl_add_u32 v{V_BO}, v{V_BO}, 3, s{S_COL}")
    else: e(f"v_lshl_add_u32 v{V_BO}, v{V_TID}, 2, s{S_COL}")
    e(f"v_subrev_u32 v{V_T}, 1152, v{V_BO}")
    e(f"v_min_u32 v{V_BO}, v{V_BO}, v{V_T}")
    e(f"v_add_u32 v{V_BO}, s{S_N}, v{V_BO}")
    e(f"v_lshrrev_b32 v{LT+8}, 4, v{V_LANE}")
    e(f"v_lshrrev_b32 v{LT+9}, 2, v{V_LANE}")
    e(f"v_lshlrev_b32 v{V_TR[0]}, 7, v{LT+9}")
    e(f"v_bfe_u32 v{LT+9}, v{V_LANE}, 3, 2")
    e(f"v_xor_b32 v{LT+9}, s{S_QW}, v{LT+9}")
    e(f"v_lshl_add_u32 v{V_TR[0]}, v{LT+9}, 5, v{V_TR[0]}")
    e(f"v_and_b32 v{LT+9}, 3, v{V_LANE}")
    e(f"v_lshl_add_u32 v{V_TR[0]}, v{LT+9}, 3, v{V_TR[0]}")
    e(f"v_add_u32 v{V_TR[1]}, 65536, v{V_TR[0]}")
    e(f"v_add_u32 v{V_TR[2]}, 131072, v{V_TR[0]}")
    e(f"s_lshl_b32 s{S_T}, s{S_MH}, 11")
    e(f"s_add_u32 s{S_T}, s{S_T}, {XL}")
    e(f"v_lshrrev_b32 v{LT+7}, 5, v{V_LANE}")
    e(f"v_mul_u32_u24 v{LT+7}, 26, v{LT+7}")
    e(f"v_and_b32 v{V_FR}, 15, v{V_LANE}")
    e(f"v_xor_b32 v{V_FR}, v{V_FR}, v{LT+7}")
    e(f"v_and_b32 v{LT+7}, 16, v{V_LANE}")
    e(f"v_lshl_add_u32 v{V_FR}, v{LT+7}, 1, v{V_FR}")
    e(f"v_lshl_add_u32 v{V_FR}, v{V_FR}, 4, s{S_T}")
    e(f"v_add_u32 v{V_FR2}, 65536, v{V_FR}")
    e(f"v_xor_b32 v{V_FR2+1}, 64, v{V_FR}")
    e(f"v_xor_b32 v{V_FR2+2}, 64, v{V_FR2}")
    e(f"v_and_b32 v{LT+9}, 1, v{V_LANE}")
    e(f"v_mul_u32_u24 v{LT+9}, 26, v{LT+9}")
    e(f"v_and_b32 v{LT+2}, 15, v{LT}")
    e(f"v_xor_b32 v{LT+2}, v{LT+2}, v{LT+9}")
    e(f"v_and_b32 v{LT+9}, 48, v{LT}")
    e(f"v_lshl_add_u32 v{LT+2}, v{LT+9}, 2, v{LT+2}")
    e(f"v_and_b32 v{LT+9}, 4, v{V_LANE}")
    e(f"v_xor_b32 v{LT+2}, v{LT+2}, v{LT+9}")
    e(f"v_lshl_add_u32 v{LT+2}, v{LT+9}, 6, v{LT+2}")
    e(f"v_lshlrev_b32 v{LT+2}, 4, v{LT+2}")
    e(f"v_and_b32 v{LT+9}, 2, v{V_LANE}")
    e(f"v_lshl_add_u32 v{LT+2}, v{LT+9}, 2, v{LT+2}")
    e(f"v_add_u32 v{LT+2}, {XL}, v{LT+2}")
    c1 = 2.0 * math.sqrt(2.0 / math.pi) * math.log2(math.e)
    e(f"v_mov_b32 v{V_C1}, 0x{f32bits(-c1):08x}")
    e(f"s_mov_b32 s{S_GC}, 0x{f32bits(-c1*0.044715):08x}")
    e(f"v_or_b32 v{V_SAD}, s{S_J}, v{LT+1}")
    e(f"v_lshlrev_b32 v{V_SAD}, 28, v{V_SAD}")
    e(f"v_lshl_add_u32 v{V_SAD}, v{LT}, 3, v{V_SAD}")
    SA, SB, QA, QB, ONE = LT+10, LT+11, V_QA, V_QA+1, LT+14
    for r in (SA, SB, QA, QB): e(f"v_mov_b32 v{r}, 0")
    e(f"v_mov_b32 v{ONE}, 0x3f803f80")
    e(f"s_lshr_b32 s{S_T}, s2, 3")
    e(f"s_mul_i32 s{S_PART}, s{S_T}, 57")
    e(f"s_lshr_b32 s{S_PART}, s{S_PART}, 9")
    e(f"s_and_b32 s{S_G}, s2, 7")
    e(f"s_sub_u32 s{S_G}, s{S_G}, s{S_PART}")
    e(f"s_mul_i32 s{S_G}, s{S_G}, 9")
    e(f"s_add_u32 s{S_G}, s{S_G}, s{S_T}")
    e(f"s_lshl_b32 s{S_T}, s{S_G}, 4")
    S1 = atoms(h.L)
    DB = [f"s_load_dwordx4 s[{S_DR}:{S_DR+3}], s[{S_DP}:{S_DP+1}], s{S_T}", f"s_load_dwordx4 s[{S_B2}:{S_B2+3}], s[{S_BP}:{S_BP+1}], s{S_T}"]
    S1.append(([] if o.get("kae", 1) else ["s_waitcnt lgkmcnt(0)"]) + DB)
    S2 = (atoms(setup2()) + (setup3(o) if full else [])) if o.get("sup", 1) else []
    e = g.e
    cnt = [0]
    def hook(L):
        cnt[0] += 1
        e(f"s_cbranch_vccnz {name}_h{cnt[0]}")
        for x in L: raw(x)
        g.lab(f"{name}_h{cnt[0]}")
    def weave(S, Hs, f0, f1):
        at = [int(len(S) * (f0 + (f1 - f0) * k / max(1, len(Hs) - 1))) for k in range(len(Hs))]
        for k in range(len(S) + 1):
            for a_, L in zip(at, Hs):
                if a_ == k: hook(L)
            if k < len(S):
                for x in S[k]: e(x)
    def gdma(u, st):
        N, u = u // 9, u % 9
        return [[f"s_add_u32 m0, s{S_M0G}, {slot(N, u) * 8192}", f"s_add_u32 s{st}, s{S_COL+N}, {u*64*9216}",
                 f"buffer_load_dwordx4 v{V_O1G}, s[{S_W1}:{S_W1+3}], s{st} offen lds"],
                [f"buffer_load_dwordx4 v{V_O1B}, s[{S_W1}:{S_W1+3}], s{st} offen offset:1024 lds"]]
    weave(S1, [[xl(i)] for i in range(y0, 9)], *o.get("wv1", [0.1, 1.0]))
    e(f"s_or_b32 s{S_T}, s2, s{S_W}")
    e(f"s_cbranch_scc0 {name}_mk")
    g.lab(f"{name}_mkb")
    if o.get("pst"): g.stamp()
    ny = o.get("ny", 4)
    H2 = sum([gdma(u, S_YT) for u in range(ny)], [])
    if by: H2[0] = [f"buffer_load_dwordx2 v[{LT+32}:{LT+33}], v{V_BO}, s[{S_B1}:{S_B1+3}], 0 offen"] + H2[0]
    else: raw(f"buffer_load_dword v{BR}, v{V_BO}, s[{S_B1}:{S_B1+3}], 0 offen")
    weave(S2, H2, *o.get("wv2", [0.0, 1.0]))
    if o.get("pst"): g.stamp()
    def stats(later):
        for i in range(9):
            e(f"s_waitcnt vmcnt({8 - i + later})")
            if i == 0 and o.get("pst"): g.stamp()
            for c in range(4):
                x = XR + 4*i + c
                e(f"v_dot2c_f32_bf16 v{SA if c%2==0 else SB}, v{x}, v{ONE}")
                e(f"v_dot2c_f32_bf16 v{QA if c%2==0 else QB}, v{x}, v{x}")
    e(f"s_cbranch_vccz {name}_sy")
    stats(2 - by)
    if not by: e("s_waitcnt vmcnt(0)")
    e(f"s_branch {name}_sj")
    g.lab(f"{name}_sy")
    stats(1 + 2*ny)
    e(f"s_waitcnt vmcnt({2*ny})")
    g.lab(f"{name}_sj")
    if o.get("pst") or o.get("ps2"): g.stamp()
    pl = o.get("pl", [-1, 2, 4, 6, 8, 9])
    ool = []
    def pd(pos):
        us = [ny + k for k in range(len(pl)) if pl[k] == pos]
        if not us: return
        e(f"s_cbranch_vccnz {name}_p{pos + 1}")
        g.lab(f"{name}_p{pos + 1}b")
        ool.append(f"{name}_p{pos + 1}:")
        for u in us:
            for x in sum(gdma(u, S_T), []): ool.append("  " + x)
            g.vm.extend([("u", u // 9, u % 9)] * 2)
        ool.append(f"  s_branch {name}_p{pos + 1}b")
    pd(-1)
    e("s_nop 2")
    e(f"v_add_f32 v{SA}, v{SA}, v{SB}")
    e(f"v_add_f32 v{QA}, v{QA}, v{QB}")
    for dpp in ("quad_perm:[1,0,3,2]", "quad_perm:[2,3,0,1]", "row_half_mirror"):
        e("s_nop 0")
        e(f"v_add_f32 v{SA}, v{SA}, v{SA} {dpp} row_mask:0xf bank_mask:0xf")
        e(f"v_add_f32 v{QA}, v{QA}, v{QA} {dpp} row_mask:0xf bank_mask:0xf")
    inv = f"0x{f32bits(1.0/576.0):08x}"
    e(f"v_mul_f32 v{SA}, {inv}, v{SA}")
    e(f"v_mul_f32 v{QA}, {inv}, v{QA}")
    e(f"v_fma_f32 v{QA}, -v{SA}, v{SA}, v{QA}")
    e(f"v_max_f32 v{QA}, 0, v{QA}")
    bf16round(g, SA)
    bf16round(g, QA)
    e(f"v_add_f32 v{QA}, 0x{f32bits(1e-5):08x}, v{QA}")
    bf16round(g, QA)
    e(f"v_sqrt_f32 v{QA}, v{QA}")
    e("s_nop 0")
    bf16round(g, QA)
    e(f"v_rcp_f32 v{QA}, v{QA}")
    e("s_nop 0")
    e(f"v_mul_f32 v{QB}, -v{SA}, v{QA}")
    assert QA % 2 == 0
    T0 = LT + 16
    for i in range(9):
        t = T0 + 8*(i % 2)
        for c in range(4):
            x = XR + 4*i + c
            e(f"v_lshlrev_b32 v{t+2*c}, 16, v{x}")
            e(f"v_and_b32 v{t+2*c+1}, 0xffff0000, v{x}")
        for c in range(4):
            e(f"v_pk_fma_f32 v[{t+2*c}:{t+2*c+1}], v[{t+2*c}:{t+2*c+1}], v[{QA}:{QA+1}], v[{QA}:{QA+1}] op_sel:[0,0,1] op_sel_hi:[1,0,1]")
        x = 16 + 4*i
        for c in range(4): e(f"v_cvt_pk_bf16_f32 v{x+c}, v{t+2*c}, v{t+2*c+1}")
        e(f"ds_write2st64_b64 v{LT+2}, v[{x}:{x+1}], v[{x+2}:{x+3}] offset0:{16*i} offset1:{16*i+1}")
        if i == 1 and by:
            hook([f"v_lshlrev_b32 v{LT+36}, 16, v{LT+32}", f"v_and_b32 v{LT+37}, 0xffff0000, v{LT+32}", f"v_lshlrev_b32 v{LT+38}, 16, v{LT+33}",
                  f"v_and_b32 v{LT+39}, 0xffff0000, v{LT+33}", f"v_lshlrev_b32 v{V_BO}, 4, v{V_TID}", f"v_add_u32 v{V_BO}, {TBL - 4096}, v{V_BO}",
                  f"ds_write_b128 v{V_BO}, v[{LT+36}:{LT+39}]"])
        elif i == 1:
            e(f"v_lshlrev_b32 v{SA}, 16, v{BR}")
            e(f"v_and_b32 v{SB}, 0xffff0000, v{BR}")
            e(f"v_lshlrev_b32 v{V_BO}, 3, v{V_TID}")
            e(f"v_add_u32 v{V_BO}, {TBL}, v{V_BO}")
            e(f"ds_write_b64 v{V_BO}, v[{SA}:{SB}]")
        pd(i)
    if o.get("pst"): g.stamp()
    e(f"s_lshl_b32 s{S_T}, s{S_QW}, 6")
    e(f"s_add_u32 s{S_T}, s{S_T}, {TBL}")
    e(f"v_lshl_add_u32 v{V_BO}, v{LT+8}, 4, s{S_T}")
    pd(9)
    e(f"s_cbranch_vccnz {name}_pe")
    e("s_waitcnt vmcnt(0)")
    e(f"s_branch {name}_pe")
    g.L += ool
    g.lab(f"{name}_pe")
    for u in range(ny): g.done.add(("u", 0, u))
    fb = o.get("xr", [[8]])[0][0]
    g.wait(vm=[("u", 0, u) for u in range((fb + 1)//2)], alllds=True)
    g.stamp()
    e("s_barrier")
    return ny + len(pl)

def bias_read(n):
    return [(f"ds_read_b128 v[{BI}:{BI+3}], v{V_BO} offset:{256*n}", "bias")]

def setup2():
    L = []; e = L.append
    for u in range(9): e(f"s_mul_i32 s{S_ROW[u]}, s{S_COL+u}, 576")
    e(f"v_and_b32 v{V_ST}, 31, v{V_LANE}")
    e(f"v_lshlrev_b32 v{V_ST}, 4, v{V_ST}")
    e(f"v_lshrrev_b32 v{V_T}, 5, v{V_LANE}")
    e(f"v_lshl_add_u32 v{V_ST}, v{V_T}, 15, v{V_ST}")
    e(f"s_mul_i32 s{S_PB}, s{S_J}, 36")
    e(f"s_add_u32 s{S_PB}, s{S_PB}, s{S_QW}")
    e(f"s_lshl_b32 s{S_PB}, s{S_PB}, 6")
    e(f"s_add_u32 s{S_PB}, s{S_PB}, s{S_RB}")
    e(f"s_lshl1_add_u32 s{S_PB}, s{S_PB}, s{S_MH}")
    e(f"s_lshl_b32 s{S_PB}, s{S_PB}, 9")
    e(f"s_lshl_b32 s{S_N}, s{S_W}, 11")
    e(f"v_lshl_add_u32 v{V_HW}, v{V_LANE}, 4, s{S_N}")
    e(f"v_min_u32 v{V_L0}, 1, v{V_TID}")
    e(f"v_lshlrev_b32 v{V_L0}, 31, v{V_L0}")
    e(f"s_mul_i32 s{S_FLG}, s{S_RB}, 36")
    e(f"s_add_u32 s{S_FLG}, s{S_FLG}, s{S_QW}")
    e(f"s_lshl1_add_u32 s{S_FLG}, s{S_FLG}, s{S_MH}")
    e(f"s_lshl3_add_u32 s{S_FLG}, s{S_FLG}, s{S_J}")
    e(f"s_lshl2_add_u32 s{S_FLG}, s{S_FLG}, {FLAG_OFF}")
    return L

def atoms(L):
    R = []; open_ = False
    for x in L:
        t = x[0] if isinstance(x, tuple) else x
        if isinstance(t, str) and (t.startswith("s_cselect") or (open_ and t.startswith("s_mov"))): R[-1].append(x)
        else:
            R.append([x]); open_ = isinstance(t, str) and t.startswith("s_cmp")
    return R

def setup3(o):
    L = []; e = L.append
    e(f"s_lshr_b32 s{S_T2}, s2, 3")
    e(f"s_lshl_b32 s{S_KVO}, s{S_T2}, 7")
    e(f"s_mul_i32 s{S_T2}, s{S_T2}, {64*1152}")
    e(f"s_and_b32 s{S_ONES}, s2, 7")
    e(f"s_mul_i32 s{S_N}, s{S_ONES}, 144")
    e(f"s_add_u32 s{S_T2}, s{S_T2}, s{S_N}")
    e(f"s_sub_u32 s{S_T2}, s{S_T2}, 9216")
    e(f"s_mul_i32 s{S_N}, s{S_ONES}, {72*4096}")
    e(f"s_add_u32 s{S_KVO}, s{S_KVO}, s{S_N}")
    e(f"s_add_u32 s{S_KVO}, s{S_KVO}, {KVT_OFF}")
    e(f"s_mul_i32 s{S_N}, s{S_W}, 77")
    e(f"s_lshl4_add_u32 s{S_KM}, s{S_N}, {KSTG}")
    for V, add in ((V_K1, 45), (V_K2, 64)):
        e(f"s_add_u32 s{S_N}, s{S_N}, {add}")
        e(f"v_add_u32 v{V_T}, s{S_N}, v{V_LANE}")
        e(f"v_mul_u32_u24 v{V_T2}, 898, v{V_T}")
        e(f"v_lshrrev_b32 v{V_T2}, 16, v{V_T2}")
        e(f"v_mul_u32_u24 v{V}, 73, v{V_T2}")
        e(f"v_sub_u32 v{V_T}, v{V_T}, v{V}")
        e(f"v_mul_u32_u24 v{V}, 9216, v{V_T2}")
        e(f"v_lshl_add_u32 v{V}, v{V_T}, 4, v{V}")
        e(f"v_mul_u32_u24 v{V_T}, 57, v{V_T}")
        e(f"v_lshrrev_b32 v{V_T}, 9, v{V_T}")
        e(f"v_mul_u32_u24 v{V_T}, 1008, v{V_T}")
        e(f"v_add3_u32 v{V}, v{V}, v{V_T}, s{S_T2}")
    e(f"s_min_u32 s{S_N}, s{S_W}, 4")
    e(f"s_lshl2_add_u32 s{S_N}, s{S_W}, s{S_N}")
    e(f"s_sub_u32 s{S_T2}, 4, s{S_MH}")
    e(f"v_lshrrev_b32 v{V_T}, 3, v{V_LANE}")
    e(f"v_sub_u32 v{V_KST}, s{S_T2}, v{V_T}")
    e(f"v_and_b32 v{V_KST}, 0x80000000, v{V_KST}")
    e(f"v_add_u32 v{V_T}, s{S_N}, v{V_T}")
    e(f"v_and_b32 v{V_T2}, 7, v{V_LANE}")
    e(f"v_lshl_or_b32 v{V_KST}, v{V_T}, 13, v{V_KST}")
    e(f"v_lshl_or_b32 v{V_KST}, v{V_T2}, 4, v{V_KST}")
    e(f"v_mul_u32_u24 v{V_KG}, 1168, v{V_T2}")
    e(f"v_lshl_add_u32 v{V_KG}, v{V_T}, 2, v{V_KG}")
    e(f"v_add_u32 v{V_KG}, {KSTG - 720}, v{V_KG}")
    if "st" not in o: e(f"s_lshl3_add_u32 s{S_N}, s{S_PART}, s{S_W}")
    if "st" not in o: e(f"s_mul_i32 s{S_N}, s{S_N}, 11")
    if "st" not in o: e(f"v_add_u32 v{V_KFT}, s{S_N}, v{V_LANE}")
    if "st" not in o: e(f"v_min_u32 v{V_KFT}, 255, v{V_KFT}")
    if "st" not in o: e(f"s_lshl_b32 s{S_N}, s{S_G}, 8")
    if "st" not in o: e(f"v_add_lshl_u32 v{V_KFT}, v{V_KFT}, s{S_N}, 7")
    if "st" not in o: e(f"s_lshr_b32 s{S_N}, s2, 3")
    if "st" not in o: e(f"s_lshl3_add_u32 s{S_N}, s{S_N}, s{S_W}")
    if "st" not in o: e(f"s_mul_i32 s{S_N}, s{S_N}, 72")
    if "st" not in o: e(f"s_add_u32 s{S_N}, s{S_N}, s{S_ONES}")
    if "st" not in o: e(f"v_bfe_u32 v{V_T}, v{V_LANE}, 1, 3")
    if "st" not in o: e(f"v_lshl_add_u32 v{V_T}, v{V_T}, 3, v{V_T}")
    if "st" not in o: e(f"v_and_b32 v{V_KT}, 1, v{V_LANE}")
    if "st" not in o: e(f"v_add3_u32 v{V_KT}, v{V_KT}, v{V_T}, s{S_N}")
    if "st" not in o: e(f"v_lshlrev_b32 v{V_KT}, 7, v{V_KT}")
    e(f"s_mov_b32 s{S_INFO}, 0")
    for p_, job in enumerate(JOBS):
        a0 = job[0][0]; l0 = job[0][1] - job[0][0]
        a1 = job[1][0] - l0 if len(job) > 1 else a0
        n = sum(b - a for a, b in job)
        e(f"s_cmp_eq_u32 s{S_PART}, {p_}")
        e(f"s_cselect_b32 s{S_INFO}, {a0 | (l0 << 8) | (a1 << 16) | (n << 24)}, s{S_INFO}")
    e(f"s_bfe_u32 s{S_N}, s{S_INFO}, {8 | (8 << 16)}")
    e(f"s_bfe_u32 s{S_T2}, s{S_INFO}, {16 | (8 << 16)}")
    e(f"s_and_b32 s{S_ONES}, s{S_INFO}, 255")
    e(f"s_add_u32 s{S_IB}, s{S_W}, 8")
    e(f"s_cmp_lt_u32 s{S_W}, s{S_N}")
    e(f"s_cselect_b32 s{S_TA}, s{S_ONES}, s{S_T2}")
    e(f"s_cmp_lt_u32 s{S_IB}, s{S_N}")
    e(f"s_cselect_b32 s{S_TB}, s{S_ONES}, s{S_T2}")
    e(f"s_add_u32 s{S_TA}, s{S_TA}, s{S_W}")
    e(f"s_add_u32 s{S_TB}, s{S_TB}, s{S_IB}")
    e(f"s_lshr_b32 s{S_INFO}, s{S_INFO}, 24")
    e(f"s_cmp_lt_u32 s{S_IB}, s{S_INFO}")
    e(f"s_cselect_b32 s{S_BM}, 0xffff0000, 0")
    e(f"s_cselect_b32 s{S_TB}, s{S_TB}, s{S_TA}")
    e(f"s_lshr_b32 s{S_N}, s{S_G}, 3")
    e(f"s_add_u32 s{S_N}, s{S_N}, 36")
    e(f"s_sub_u32 s{S_T2}, s{S_N}, s{S_TB}")
    e(f"s_sub_u32 s{S_N}, s{S_N}, s{S_TA}")
    for r in (S_N, S_T2):
        e(f"s_mul_i32 s{S_ONES}, s{r}, 57")
        e(f"s_lshr_b32 s{S_ONES}, s{S_ONES}, 9")
        e(f"s_mul_i32 s{S_ONES}, s{S_ONES}, 9")
        e(f"s_sub_u32 s{r}, s{r}, s{S_ONES}")
    e(f"s_min_u32 s{S_NX}, s{S_N}, s{S_T2}")
    e(f"s_max_u32 s{S_NY}, s{S_N}, s{S_T2}")
    e(f"s_cmp_gt_u32 s{S_N}, s{S_T2}")
    e(f"s_cselect_b32 s{S_ONES}, s{S_TB}, s{S_TA}")
    e(f"s_cselect_b32 s{S_TB}, s{S_TA}, s{S_TB}")
    e(f"s_mov_b32 s{S_TA}, s{S_ONES}")
    e(f"s_cselect_b32 s{S_IA}, s{S_IB}, s{S_W}")
    e(f"s_cselect_b32 s{S_IB}, s{S_W}, s{S_IB}")
    e(f"v_mul_u32_u24 v{V_T}, 1152, v{V_LANE}")
    e(f"s_mul_i32 s{S_N}, s{S_TA}, {64*1152}")
    e(f"s_lshl4_add_u32 s{S_N}, s{S_G}, s{S_N}")
    e(f"s_cmp_eq_u32 s{S_PART}, 3")
    e(f"s_cselect_b32 s{S_T2}, 0x80000000, 0")
    e(f"s_or_b32 s{S_N}, s{S_N}, s{S_T2}")
    e(f"v_add_u32 v{V_XA}, s{S_N}, v{V_T}")
    e(f"s_mul_i32 s{S_N}, s{S_TB}, {64*1152}")
    e(f"s_lshl4_add_u32 s{S_N}, s{S_G}, s{S_N}")
    e(f"s_andn2_b32 s{S_T2}, 0x80000000, s{S_BM}")
    e(f"s_or_b32 s{S_N}, s{S_N}, s{S_T2}")
    e(f"v_add_u32 v{V_XB}, s{S_N}, v{V_T}")
    e(f"s_lshr_b32 s{S_INFO}, s2, 3")
    e(f"s_mul_i32 s{S_N}, s{S_PART}, 9")
    e(f"s_sub_u32 s{S_INFO}, s{S_INFO}, s{S_N}")
    e(f"s_lshl_b32 s{S_N}, s{S_INFO}, 1")
    e(f"s_lshr_b32 s{S_ONES}, 0x24924, s{S_N}")
    e(f"s_and_b32 s{S_ONES}, s{S_ONES}, 3")
    return atoms(L)

def stage_items(sr, off, tag, touch=None):
    ld = lambda v: (f"buffer_load_dwordx4 v{v}, s[{sr}:{sr+3}], 0 offen lds", tag)
    tc = lambda v: [f"buffer_load_dword v{V_DUM}, v{v}, s[{touch}:{touch+3}], 0 offen"] if touch else []
    R = [[f"s_add_u32 m0, s{S_KM}, {off}", "s_nop 0", ld(V_K1)]]
    if touch: R.append(tc(V_K1))
    R.append([f"s_add_u32 m0, s{S_KM}, {off + 1024}", "s_mov_b64 exec, 0x1fff", ld(V_K2)] + tc(V_K2) + ["s_mov_b64 exec, -1"])
    return R

def cold_items(m=15):
    R = stage_items(S_K, 0, "kst", S_V if m & 2 else None) if m & 1 else []
    if m & 4: R.append([f"s_add_u32 s{S_N}, s{S_COL}, s{S_ROW[8]}",
              f"buffer_load_dword v{V_DUM}, v{V_O2}, s[{S_W2}:{S_W2+3}], s{S_N} offen"])
    if m & 8: R.append([f"s_lshl_b32 s{S_N}, s{S_G}, 15",
              f"buffer_load_dword v{V_DUM}, v{V_KFT}, s[{S_KF}:{S_KF+3}], s{S_N} offen"])
    return R

def touches(o, A=S_N, B=S_T2):
    m = o.get("em", 7)
    L = [f"s_lshr_b32 s{A}, s2, 3", f"s_lshl3_add_u32 s{A}, s{A}, s{S_W}", f"s_mul_i32 s{A}, s{A}, 72",
         f"s_and_b32 s{B}, s2, 7", f"s_add_u32 s{A}, s{A}, s{B}", f"s_lshl_b32 s{A}, s{A}, 7",
         f"v_bfe_u32 v{V_T}, v{V_LANE}, 1, 3", f"v_lshl_add_u32 v{V_T}, v{V_T}, 3, v{V_T}", f"v_and_b32 v{V_KFT}, 1, v{V_LANE}",
         f"v_add_lshl_u32 v{V_T}, v{V_T}, v{V_KFT}, 7",
         f"s_lshl3_add_u32 s{B}, s{S_PART}, s{S_W}", f"s_mul_i32 s{B}, s{B}, 11",
         f"v_add_u32 v{V_KFT}, s{B}, v{V_LANE}", f"v_min_u32 v{V_KFT}, 255, v{V_KFT}", f"v_lshlrev_b32 v{V_KFT}, 7, v{V_KFT}",
         f"s_lshl_b32 s{B}, s{S_G}, 15",
         "s_mov_b64 exec, 0xffff"]
    if m & 1: L.append(f"buffer_load_dword v{V_DUM}, v{V_T}, s[{S_K}:{S_K+3}], s{A} offen")
    if m & 2: L.append(f"buffer_load_dword v{V_DUM}, v{V_T}, s[{S_V}:{S_V+3}], s{A} offen")
    L.append("s_mov_b64 exec, 0x7ff")
    if m & 4: L.append(f"buffer_load_dword v{V_DUM}, v{V_KFT}, s[{S_KF}:{S_KF+3}], s{B} offen")
    L.append("s_mov_b64 exec, -1")
    return L

def stouch_setup():
    return [f"s_lshr_b32 s{S_KO}, s2, 3", f"s_lshl3_add_u32 s{S_KO}, s{S_KO}, s{S_W}", f"s_mul_i32 s{S_KO}, s{S_KO}, 72",
            f"s_and_b32 s{S_FO}, s2, 7", f"s_add_u32 s{S_KO}, s{S_KO}, s{S_FO}", f"s_lshl_b32 s{S_KO}, s{S_KO}, 7",
            f"s_lshl3_add_u32 s{S_FO}, s{S_PART}, s{S_W}", f"s_mul_i32 s{S_FO}, s{S_FO}, 11", f"s_min_u32 s{S_FO}, s{S_FO}, 245",
            f"s_lshl_b32 s{S_DUM}, s{S_G}, 8", f"s_add_u32 s{S_FO}, s{S_FO}, s{S_DUM}", f"s_lshl_b32 s{S_FO}, s{S_FO}, 7"]

def stouch(o, k):
    ld = lambda sr, so, off: f"s_buffer_load_dword s{S_DUM}, s[{sr}:{sr+3}], s{so} offset:{off}"
    if k == "F": return [ld(S_KF, S_FO, 128*i) for i in range(11)]
    return [ld(sr, S_KO, 1152*r + 128*h) for r in range(8) for h in o.get("sth", (0, 1)) for sr in (S_K, S_V)]

def place(items, j0, j1, work):
    for i, x in enumerate(items): work.setdefault(4*(j0 + (i*(j1 - j0)) // len(items)) - 2, []).insert(0, x)

def early_items(o):
    m = o.get("em", 7)
    K = sum(stage_items(S_K, 0, None), []) if m & 1 else []
    if o.get("vt", 1):
        V = [f"s_lshr_b32 s{S_N}, s2, 3", f"s_lshl3_add_u32 s{S_N}, s{S_N}, s{S_W}", f"s_mul_i32 s{S_N}, s{S_N}, 72",
             f"s_and_b32 s{S_T2}, s2, 7", f"s_add_u32 s{S_N}, s{S_N}, s{S_T2}", f"s_lshl_b32 s{S_N}, s{S_N}, 7",
             f"v_bfe_u32 v{V_T}, v{V_LANE}, 1, 3", f"v_mul_u32_u24 v{V_T}, 9, v{V_T}", f"v_and_b32 v{V_T2}, 1, v{V_LANE}",
             f"v_add_lshl_u32 v{V_T}, v{V_T}, v{V_T2}, 7", "s_mov_b64 exec, 0xffff",
             f"buffer_load_dword v{V_DUM}, v{V_T}, s[{S_V}:{S_V+3}], s{S_N} offen", "s_mov_b64 exec, -1"]
    else:
        V = [f"buffer_load_dword v{V_DUM}, v{V_K1}, s[{S_V}:{S_V+3}], 0 offen", "s_mov_b64 exec, 0x1fff",
             f"buffer_load_dword v{V_DUM}, v{V_K2}, s[{S_V}:{S_V+3}], 0 offen", "s_mov_b64 exec, -1"]
    F = sum(cold_items(8), [])
    return [K, V if m & 2 else [], F if m & 4 else []]

def kv_compute(g):
    L = [lambda: g.wait(vm=["sh"])]; e = L.append
    up = lambda d, r, h: f"v_and_b32 v{d}, 0xffff0000, v{r}" if h else f"v_lshlrev_b32 v{d}, 16, v{r}"
    if g.o.get("kf", 1):
        U = [52, 53, 54, 55]
        for h in range(2):
            for j in range(4): e(up(KC + j, SH + 2*h + j//2, j % 2))
            e(up(U[0], KR, h))
            for i in range(11):
                if i < 10: e(up(U[(i + 1) % 2], KR + i + 1, h))
                for j in range(4):
                    t = i - 3 + j
                    if 0 <= t < 8: e(f"{'v_mul_f32' if j == 3 else 'v_fmac_f32'} v{KA+t}, v{KC+j}, v{U[i % 2]}")
            for t0 in (0, 4):
                for t in range(t0, t0 + 4): e(up(U[t % 4], VR + t, h))
                for t in range(t0, t0 + 4): e(f"v_mul_f32 v{KA+t}, v{KA+t}, v{U[t % 4]}")
            O = KA if h else PKR + 4
            for t in range(4): e(f"v_cvt_pk_bf16_f32 v{O+t}, v{KA+2*t}, v{KA+2*t+1}")
        return L
    for h in range(2):
        for j in range(4):
            w = SH + 2*h + j//2
            if h == 0: e(f"v_lshrrev_b32 v{KC+j}, 16, v{w}" if j % 2 else f"v_and_b32 v{KC+j}, 0xffff, v{w}")
            else: e(f"v_and_b32 v{KC+j}, 0xffff0000, v{w}" if j % 2 else f"v_lshlrev_b32 v{KC+j}, 16, v{w}")
        for j in (3, 2, 1, 0):
            for t in range(8):
                if j == 3: e(f"v_dot2_f32_bf16 v{KA+t}, v{KR+t+3-j}, v{KC+j}, 0")
                else: e(f"v_dot2c_f32_bf16 v{KA+t}, v{KR+t+3-j}, v{KC+j}")
        for t0 in (0, 4):
            for t in range(t0, t0 + 4):
                e(f"v_and_b32 v{KC+t%4}, 0xffff0000, v{VR+t}" if h else f"v_lshlrev_b32 v{KC+t%4}, 16, v{VR+t}")
            for t in range(t0, t0 + 4): e(f"v_mul_f32 v{KA+t}, v{KA+t}, v{KC+t%4}")
        O = KA if h else PKR + 4
        for t in range(4): e(f"v_cvt_pk_bf16_f32 v{O+t}, v{KA+2*t}, v{KA+2*t+1}")
    return L

def kv_store():
    return [[(f"buffer_store_dwordx4 v[{PKR+4}:{PKR+7}], v{V_KST}, s[{S_WS}:{S_WS+3}], s{S_KVO} offen sc1", "kv0"),
             f"s_add_u32 s{S_KVO}, s{S_KVO}, 4096"],
            [(f"buffer_store_dwordx4 v[{KA}:{KA+3}], v{V_KST}, s[{S_WS}:{S_WS+3}], s{S_KVO} offen sc1", "kv1")]]

def setup4():
    L = []; e = L.append
    A, B = S_GC, S_GC + 1
    e(f"v_bfrev_b32 v{V_OOB}, 1")
    e(f"s_and_b32 s{A}, s2, 7")
    e(f"v_and_b32 v{V_L4}, 31, v{V_LANE}")
    e(f"v_lshl_add_u32 v{V_L4}, v{V_L4}, 3, s{A}")
    e(f"s_cmp_eq_u32 s{S_W}, 0")
    e(f"s_cselect_b32 s{A}, {RDY_OFF}, s{S_LO}")
    e(f"s_cselect_b32 s{S_ONES}, s{S_TOK}, 0")
    e(f"v_lshl_add_u32 v{V_L4}, v{V_L4}, 7, s{A}")
    e(f"s_mul_i32 s{S_H2}, s{S_W}, {WSTR}")
    e(f"s_lshl3_add_u32 s{S_CH}, s{S_G}, s{S_W}")
    e(f"s_lshl_b32 s{S_CH}, s{S_CH}, 12")
    e(f"v_and_b32 v{V_CL}, v{V_OOB}, v{V_XA}")
    e(f"v_lshl_or_b32 v{V_CL}, v{V_LANE}, 4, v{V_CL}")
    e(f"v_lshl_add_u32 v{V_YW}, v{V_LANE}, 2, s{S_H2}")
    e(f"s_add_u32 s{A}, s{S_H2}, 4608")
    e(f"v_lshl_add_u32 v{V_KV}, v{V_LANE}, 1, s{A}")
    e(f"v_lshrrev_b32 v{V_T2}, 4, v{V_LANE}")
    e(f"v_bfe_u32 v{V_AF}, v{V_LANE}, 2, 2")
    e(f"v_lshl_add_u32 v{V_T2}, v{V_T2}, 3, v{V_AF}")
    e(f"v_and_b32 v{V_BF}, 3, v{V_LANE}")
    e(f"v_add_u32 v{V_AF}, v{V_T2}, v{V_BF}")
    e(f"s_add_u32 s{A}, s{S_H2}, {256 - 24}")
    e(f"v_lshl_add_u32 v{V_AF}, v{V_AF}, 3, s{A}")
    e(f"v_lshlrev_b32 v{V_BF}, 2, v{V_BF}")
    e(f"v_sub_u32 v{V_BF}, v{V_BF}, v{V_T2}")
    e(f"s_add_u32 s{A}, s{S_H2}, {4608 + 24 - 32}")
    e(f"v_lshl_add_u32 v{V_BF}, v{V_BF}, 3, s{A}")
    e(f"s_cmp_eq_u32 s{S_MH}, 0")
    e(f"s_cselect_b64 s[{S_DR}:{S_DR+1}], s[{S_DR}:{S_DR+1}], s[{S_DR+2}:{S_DR+3}]")
    e(f"s_lshl_b32 s{A}, s{S_QW}, 4")
    e(f"s_lshr_b64 s[{S_DR}:{S_DR+1}], s[{S_DR}:{S_DR+1}], s{A}")
    e(f"s_and_b32 s{S_D}, s{S_DR}, 0xffff")
    e(f"s_lshl_b32 s{A}, s{S_TA}, 10")
    e(f"v_add_u32 v{V_RA}, s{A}, v{V_CL}")
    e(f"v_ashrrev_i32 v{V_SA}, 1, v{V_RA}")
    e(f"s_lshl_b32 s{A}, s{S_TB}, 10")
    e(f"s_andn2_b32 s{B}, 0x80000000, s{S_BM}")
    e(f"s_or_b32 s{A}, s{A}, s{B}")
    e(f"v_lshl_add_u32 v{V_RB}, v{V_LANE}, 4, s{A}")
    e(f"v_ashrrev_i32 v{V_SB}, 1, v{V_RB}")
    e(f"s_sub_u32 s{A}, s{S_TB}, s{S_TA}")
    e(f"v_bfe_u32 v{V_P}, v{V_LANE}, 4, 1")
    e(f"v_mul_i32_i24 v{V_FA}, s{A}, v{V_P}")
    e(f"v_add_u32 v{V_FA}, s{S_TA}, v{V_FA}")
    e(f"v_mul_u32_u24 v{V_FA}, {9*256}, v{V_FA}")
    e(f"v_and_b32 v{V_T2}, 15, v{V_LANE}")
    e(f"s_bfe_u32 s{A}, s{S_G}, {1 | (2 << 16)}")
    e(f"s_lshl_b32 s{A}, s{A}, 6")
    e(f"v_lshl_add_u32 v{V_T2}, v{V_T2}, 2, s{A}")
    e(f"s_cmp_ge_u32 s{S_NX}, 7")
    e(f"s_cselect_b32 s{A}, 0xff, 31")
    e(f"s_cmp_ge_u32 s{S_NY}, 7")
    e(f"s_cselect_b32 s{B}, 0xff, 31")
    e(f"v_mul_u32_u24 v{V_P}, s{B}, v{V_P}")
    e(f"v_or_b32 v{V_P}, s{A}, v{V_P}")
    e(f"v_and_b32 v{V_T2}, v{V_T2}, v{V_P}")
    e(f"v_add_u32 v{V_FA}, v{V_FA}, v{V_T2}")
    e(f"s_lshr_b32 s{S_FB}, s{S_G}, 3")
    e(f"s_lshl_b32 s{S_FB}, s{S_FB}, 8")
    e(f"s_add_u32 s{S_FB}, s{S_FB}, {FLAG_OFF}")
    e(f"s_lshl_b32 s{S_GO}, s{S_G}, 15")
    for j in range(1, 8): e(f"s_add_u32 s{S_PO[j]}, s{S_GO}, {j*72*32768}")
    e(f"s_mov_b32 s{S_SO}, {STAT_OFF}")
    e(f"s_add_u32 s{S_XO}, s{S_GO}, {XT_OFF}")
    for c in range(4):
        e(f"s_lshl_b32 s{S_BV+2*c}, s{S_B2+c}, 16")
        e(f"s_and_b32 s{S_BV+2*c+1}, s{S_B2+c}, 0xffff0000")
    e(f"s_movk_i32 s{S_LO}, 0x3f80")
    e(f"s_lshl_b32 s{S_HI}, s{S_LO}, 16")
    return [[f"s_brev_b32 s{S_LO}, 1"]] + atoms(L)

def conv_loads(g):
    fl = g.o.get("hotfl", "")
    R = []
    for c in (3, 2, 1, 0):
        R.append([f"buffer_load_dwordx4 v{V_CL}, s[{S_WS}:{S_WS+3}], s{S_T} offen offset:{1024*c} {fl} lds"])
    R[0] = [f"s_add_u32 m0, s{S_H2}, 4608", f"s_add_u32 s{S_T}, s{S_CH}, {KVT_OFF}"] + R[0]
    R[3].append(f"s_add_u32 m0, s{S_H2}, 256")
    for c in range(4):
        R.append([f"buffer_load_dwordx4 v{V_CL}, s[{S_KF}:{S_KF+3}], s{S_CH} offen offset:{1024*c} lds"])
    R[7].append(f"s_mov_b32 m0, s{S_H2}")
    z = f"buffer_load_dword v{V_OOB}, s[{S_KF}:{S_KF+3}], 0 offen lds"
    R.append([z, f"s_add_u32 m0, s{S_H2}, 4352"])
    R.append([(z, "cl")])
    return R

def tile_list(g, LD, v, vs):
    fl = g.o.get("ldflags", "sc1")
    L = [f"buffer_load_dwordx2 v[{LD+32}:{LD+33}], v{vs}, s[{S_WS}:{S_WS+3}], s{S_SO} offen {fl}"]
    X = XA if LD == LDA else XB
    L.append(f"buffer_load_dwordx4 v[{X}:{X+3}], v{v}, s[{S_WS}:{S_WS+3}], s{S_XO} offen {fl}")
    for j in range(8): L.append(f"buffer_load_dwordx4 v[{LD+4*j}:{LD+4*j+3}], v{v}, s[{S_WS}:{S_WS+3}], s{S_PO[j]} offen {fl}")
    return L

def tile_loads(g, LD, v, vs):
    for x in tile_list(g, LD, v, vs): g.e(x)

def poll(g, tag=None):
    g.e(f"buffer_load_dword v{V_P}, v{V_FA}, s[{S_WS}:{S_WS+3}], s{S_FB} offen sc1", tag)

def conv_job(g, job, name, ev):
    o = g.o
    tiles = []; allt = []
    for a, b in job:
        if a > 0: allt.append(a - 1)
        for t in range(a, b):
            tiles.append(t); allt.append(t)
    ai = {t: CACC + 4*i for i, t in enumerate(allt)}
    tmax = max(allt)
    M = []
    ch = o.get("ch", 1); NB = o.get("nb", 6)
    for n0 in range(tmax, -1, -2*ch):
        for n1 in (n0, n0 - 1):
            ns = [n for n in range(n1, n1 - 2*ch, -2) if n >= 0]
            ts = sorted(t for t in allt if (t - n1) % 2 == 0)
            if o.get("trev"): ts.reverse()
            for t in ts:
                for n in ns:
                    if t >= n: M.append((t, n, (t - n)//2))
    order = []
    for (t, n, be) in M:
        for f in (("B", n), ("A", be)):
            if f not in order: order.append(f)
    bslot = {}
    nb = 0
    for f in order:
        if f[0] == "B":
            bslot[f[1]] = BB + 4*(nb % NB); nb += 1
    lastuse = {}
    for i, (t, n, be) in enumerate(M): lastuse[n] = i
    bl = [f[1] for f in order if f[0] == "B"]
    def reads(f):
        if f[0] == "A":
            r = AF + 4*f[1]; off = 256*f[1]
            return [f"ds_read_b64_tr_b16 v[{r}:{r+1}], v{V_AF} offset:{off}",
                    f"ds_read_b64_tr_b16 v[{r+2}:{r+3}], v{V_AF} offset:{off+32}"]
        r = bslot[f[1]]; off = 128*f[1] + 32
        return [f"ds_read_b64_tr_b16 v[{r}:{r+1}], v{V_BF} offset:{off}",
                f"ds_read_b64_tr_b16 v[{r+2}:{r+3}], v{V_BF} offset:{off-32}"]
    issued = 0
    fu = {}
    for i, (t, n, be) in enumerate(M):
        fu.setdefault(("B", n), i); fu.setdefault(("A", be), i)
    MAXF = o.get("ahead", 6)
    started = set()
    waited = -1
    for i, (t, n, be) in enumerate(M):
        need = max(order.index(("B", n)), order.index(("A", be)))
        nr = 0
        while issued < 2*len(order) and issued // 2 <= max(need, waited) + MAXF:
            f = order[issued // 2]
            if "la" in o and i and not (nr < 1 or fu[f] <= i or (nr < 2 and fu[f] <= i + o["la"])): break
            if f[0] == "B":
                k = bl.index(f[1])
                if k >= NB and lastuse[bl[k - NB]] >= i:
                    break
            g.e(reads(f)[issued % 2])
            issued += 1; nr += 1
        assert issued // 2 > need
        for k in (i, i - len(M)):
            for f in ev.get(k, []): f(name)
        if need > waited:
            g.e(f"s_waitcnt lgkmcnt({min(15, issued - 2 - 2*need)})")
            waited = need
        a = ai[t]; bs = bslot[n]; af = AF + 4*be
        c = f"v[{a}:{a+3}]" if t in started else "0"
        started.add(t)
        g.e(f"v_mfma_f32_16x16x32_bf16 v[{a}:{a+3}], v[{bs}:{bs+3}], v[{af}:{af+3}], {c}")
    KVV = 50
    for i, t in enumerate(tiles):
        g.e(f"ds_read_u16 v{AF+40+i}, v{V_KV} offset:{128*t}")
    ev["end"][0](name)
    H2 = AF; H1 = AF + 12; Y = AF + 24
    idx = {t: i for i, t in enumerate(allt)}
    m = "row_mask:0xf bank_mask:0xf"
    def level(dst, src, zc, ts):
        for t in ts:
            if t in tiles and t > 0:
                g.e(f"v_add_f32 v{dst+idx[t]}, v{src(t-1)}, v{ai[t]+zc} wave_ror:1 row_mask:0x1 bank_mask:0x1")
        for t in ts:
            bc = "" if (t in tiles and t > 0) else " bound_ctrl:0"
            g.e(f"v_add_f32 v{dst+idx[t]}, v{src(t)}, v{ai[t]+zc} wave_shr:1 {m}{bc}")
    level(H2, lambda t: ai[t] + 3, 2, allt)
    g.e("s_waitcnt lgkmcnt(0)")
    for i, t in enumerate(tiles):
        g.e(f"v_dot2c_f32_bf16 v{ai[t]}, s{S_D}, v{AF+40+i}")
    level(H1, lambda t: H2 + idx[t], 1, allt)
    level(Y, lambda t: H1 + idx[t], 0, tiles)
    for i, t in enumerate(tiles):
        g.e(f"ds_write_b32 v{V_YW}, v{Y+idx[t]} offset:{256*i}")

def fin_a(g, X, si, R):
    e = g.e
    s = R; y = R + 16
    e(f"s_lshl_b32 s{S_T2}, s{si}, 8")
    e(f"v_lshl_add_u32 v{V_T}, v{V_LANE}, 2, s{S_T2}")
    for c in range(4):
        e(f"ds_read2st64_b32 v[{y+2*c}:{y+2*c+1}], v{V_T} offset0:{68*c} offset1:{68*c + 34}")

def fin_b(g, LD, X, R, waits):
    e = g.e
    s = R; xn = R + 8; y = R + 16; st = LD + 32
    if waits: e("s_waitcnt vmcnt(8)")
    for c in range(4):
        e(f"v_lshlrev_b32 v{R+8+2*c}, 16, v{X+c}")
        e(f"v_and_b32 v{R+8+2*c+1}, 0xffff0000, v{X+c}")
    for c in range(8): e(f"v_add_f32 v{s+c}, s{S_BV+c}, v{R+8+c}")
    for c in range(4):
        e(f"v_pk_fma_f32 v[{xn+2*c}:{xn+2*c+1}], v[{xn+2*c}:{xn+2*c+1}], v[{st}:{st+1}], v[{st}:{st+1}] op_sel:[0,0,1] op_sel_hi:[1,0,1]")
    e("s_waitcnt lgkmcnt(0)")
    for c in range(4):
        e(f"v_pk_fma_f32 v[{s+2*c}:{s+2*c+1}], v[{xn+2*c}:{xn+2*c+1}], v[{y+2*c}:{y+2*c+1}], v[{s+2*c}:{s+2*c+1}]")
    for j in range(8):
        if waits: e(f"s_waitcnt vmcnt({7 - j})")
        for c in range(4):
            e(f"v_dot2c_f32_bf16 v{s+2*c}, s{S_LO}, v{LD+4*j+c}")
            e(f"v_dot2c_f32_bf16 v{s+2*c+1}, s{S_HI}, v{LD+4*j+c}")
    e("s_nop 2")
    for c in range(4):
        e(f"v_cvt_pk_bf16_f32 v{X+c}, v{s+2*c}, v{s+2*c+1}")

def tail(g, name):
    o = g.o; e = g.e
    def flag(n):
        for x in flag_store(g, n): g.put(x)
    out = lambda X, vx: e(f"buffer_store_dwordx4 v[{X}:{X+3}], v{vx}, s[{S_OUT}:{S_OUT+3}], 0 offen")
    TX = tile_list(g, LDA, V_RA, V_SA); TY = tile_list(g, LDB, V_RB, V_SB)
    e(f"s_cmp_eq_u32 s{S_PART}, 3")
    e(f"s_cbranch_scc1 {name}_none")
    n7 = len(g.vm) - 1 - g.vm.index(("p", 7))
    g.stamp()
    g.wait(vm=["cl"])
    g.stamp()
    def look():
        e(f"v_cmp_ne_u32 vcc, s{S_TOK}, v{V_P}")
        e(f"s_mov_b32 s{S_GX}, s{S_PX}")
        e(f"s_mov_b32 s{S_GY}, s{S_PY}")
        e(f"s_and_b32 s{S_PX}, vcc_lo, 0xffff")
        e(f"s_cselect_b32 s{S_GX}, 0, s{S_GX}")
        e(f"s_and_b32 s{S_PY}, vcc_lo, s{S_BM}")
        e(f"s_cselect_b32 s{S_GY}, 0, s{S_GY}")
    def look0(nm):
        g.wait(vm=["p0"])
        e(f"v_cmp_ne_u32 vcc, s{S_TOK}, v{V_P}")
        e(f"s_and_b32 s{S_PX}, vcc_lo, 0xffff")
        e(f"s_cselect_b32 s{S_N}, 0x80000000, 0")
        e(f"s_cselect_b64 s[{S_XM}:{S_XM+1}], 1, -1")
        e(f"v_or_b32 v{V_XO}, s{S_N}, v{V_RA}")
        e(f"v_or_b32 v{V_XS}, s{S_N}, v{V_SA}")
        e(f"s_and_b32 s{S_PY}, vcc_lo, s{S_BM}")
        e(f"s_cselect_b32 s{S_N}, 0x80000000, 0")
        e(f"s_cselect_b32 s{S_T}, 0, s{S_BM}")
        e(f"v_or_b32 v{V_YO}, s{S_N}, v{V_RB}")
        e(f"v_or_b32 v{V_YS}, s{S_N}, v{V_SB}")
        e(f"s_cmp_eq_u32 s{S_T}, 0")
        e(f"s_cselect_b64 s[{S_YM}:{S_YM+1}], 1, -1")
    cnt = [0]
    def cond(go, L):
        def f(nm):
            cnt[0] += 1
            e(f"s_cmp_eq_u32 s{go}, 0")
            e(f"s_cbranch_scc1 {nm}_k{cnt[0]}")
            for x in L: e(x)
            g.lab(f"{nm}_k{cnt[0]}")
        return f
    def masked(M, x):
        def f(nm):
            if o.get("xm", 1): e(f"s_mov_b64 exec, s[{M}:{M+1}]")
            e(x)
            if o.get("xm", 1): e("s_mov_b64 exec, -1")
        return f
    def ev0(nm):
        g.wait(vm=[("p", 7)])
        flag(7)
    def ev1(nm):
        g.wait(vm=[("p", 8)])
        g.stamp()
        flag(8)
    def ev2(nm):
        g.wait(vm=["p1"])
        g.stamp()
        look()
    def evend(nm):
        g.stamp()
        e("s_waitcnt vmcnt(0)")
        look()
        cond(S_GX, TX)(nm)
        cond(S_GY, TY)(nm)
        g.stamp()
    ev = {"end": [evend]}
    at = lambda k, f: ev.setdefault(k, []).append(f)
    l0 = o.get("l0", -999)
    if l0 < 0: look0(name)
    else: at(l0, look0)
    at(o.get("m0", 16), ev0); at(o.get("m1", 40), ev1); at(-o.get("m2", 16), lambda nm: poll(g))
    for k, x in zip(o.get("xs", [1, 2, 5, 10, 19, 28, 38, 48, 58, 68]), tile_list(g, LDA, V_XO, V_XS)): at(k, masked(S_XM, x))
    for k, x in zip(o.get("ys", [4, 7, 14, 23, 33, 43, 53, 63, 73, 83]), tile_list(g, LDB, V_YO, V_YS)): at(k, masked(S_YM, x))
    if o.get("q1", 0):
        at(o.get("q1", 0), lambda nm: poll(g, "p1"))
        k = o.get("l1", 60); gs = o.get("gs", 3)
        at(k, ev2)
        for go, T in ((S_GX, TX), (S_GY, TY)):
            for c in range(0, 9, gs):
                k += o.get("ms", 2)
                at(k, cond(go, T[c:c+gs]))
    e(f"s_cmp_eq_u32 s{S_PART}, 1")
    e(f"s_cbranch_scc1 {name}_j1")
    e(f"s_cmp_eq_u32 s{S_PART}, 2")
    e(f"s_cbranch_scc1 {name}_j2")
    vm0 = list(g.vm)
    for p in range(3):
        if p: g.lab(f"{name}_j{p}")
        g.vm = list(vm0)
        conv_job(g, JOBS[p], f"{name}_c{p}", ev)
        if p < 2: e(f"s_branch {name}_cfin")
    g.lab(f"{name}_cfin")
    e(f"s_or_b32 s{S_N}, s{S_PX}, s{S_PY}")
    e(f"s_mov_b32 s{S_N}, {SPIN}")
    e(f"s_cbranch_scc0 {name}_np")
    poll(g)
    g.lab(f"{name}_np")
    e("s_waitcnt lgkmcnt(0)")
    g.stamp()
    e("s_barrier")
    g.stamp()
    RA, RB = CACC, CACC + 24
    def last(nm, P, mask, T):
        e(f"s_cmp_eq_u32 s{P}, 0")
        e(f"s_cbranch_scc1 {nm}2")
        g.lab(f"{nm}lp")
        e("s_waitcnt vmcnt(0)")
        e(f"v_cmp_ne_u32 vcc, s{S_TOK}, v{V_P}")
        e(f"s_sub_u32 s{S_N}, s{S_N}, 1")
        e(f"s_cbranch_scc1 {nm}go")
        e(f"s_and_b32 s{P}, vcc_lo, {mask}")
        e(f"s_cbranch_scc0 {nm}go")
        poll(g)
        e(f"s_branch {nm}lp")
        g.lab(f"{nm}go")
        for x in T: e(x)
        g.lab(f"{nm}2")
    fin_a(g, XA, S_IA, RA)
    e(f"s_cmp_lg_u32 s{S_BM}, 0")
    e(f"s_cbranch_scc1 {name}_two")
    last(f"{name}_a", S_PX, "0xffff", TX)
    g.stamp()
    fin_b(g, LDA, XA, RA, True)
    out(XA, V_XA)
    finish(g)
    g.lab(f"{name}_two")
    fin_a(g, XB, S_IB, RB)
    e(f"s_or_b32 s{S_GX}, s{S_GX}, s{S_PX}")
    e(f"s_cbranch_scc1 {name}_xslow")
    g.lab(f"{name}_xback")
    fin_b(g, LDA, XA, RA, False)
    last(f"{name}_b", S_PY, "0xffff0000", TY)
    g.stamp()
    fin_b(g, LDB, XB, RB, True)
    out(XA, V_XA)
    out(XB, V_XB)
    finish(g)
    g.lab(f"{name}_xslow")
    last(f"{name}_x", S_PX, "0xffff", TX)
    e(f"s_mov_b32 s{S_N}, {SPIN}")
    e("s_waitcnt vmcnt(0)")
    e(f"s_branch {name}_xback")
    g.lab(f"{name}_none")
    e(f"s_waitcnt vmcnt({n7})")
    flag(7)
    e("s_waitcnt vmcnt(1)")
    flag(8)
    finish(g)

def gen(name, opt):
    g = G(opt); o = opt
    e = g.e
    g.NF = 5
    SM[0] = o.get("sm", 1)
    g.ool = []; g.grp = "Z"
    g.L.append(f".globl {name}\n.p2align 8\n.type {name},@function\n{name}:")
    npro = prologue(g, name)
    nm = name + "_Z"
    full = not o.get("core")
    sc = Sched(g, npro)
    sc.claim(range(11, 20), "x"); sc.claim([10], "tbl")
    for s_ in range(9): sc.hold[s_] = 10
    work = {}; inb = {}; pre = {}; post = {}; bw = {}; bv = {}; act = {}; aft = {}; hooks = {}
    add = lambda d, k, L: d.setdefault(k, []).extend(L)
    bj = lambda r: (r - 6) // 2
    xr = o.get("xr", [[8, 2], [12, 5], [16, 8], [18, 9]])
    h0 = o.get("h0", 152); hd = o.get("hd", 4); hl = o.get("hl", 2); hs = o.get("hs", 176)
    bars = set(18*N + b_ for N in range(18) for b_ in (o.get("bs", [0, 8]) if N < 17 or not full else [4, 12]))
    bars -= set(range(xr[0][0])) | set(range(h0, h0 + 4*hd + hl*hd))
    bars |= set(x[0] for x in xr) | set(o.get("xb2", [22])) | set(h0 + hd*i for i in range(5 + hl)) | set([hs]) | set(o.get("hb2", [184]))
    bars -= set(o.get("nb", []))
    bars = sorted(bars)
    nextb = lambda r, n=1: [b_ for b_ in bars if b_ > r][n - 1]
    def scatter(L, j0, nbu, lead=0):
        pos = [(j, q) for j in range(j0, j0 + nbu) for q in range(4) if seq(j)[q]]
        for k, x in enumerate(L): add(inb, pos[(k * len(pos)) // len(L)], [x])
    for x in bias_read(0): g.put(x)
    ns = 0
    for r_, c_ in enumerate(o.get("ls", [1, 1, 2])):
        add(inb, (-1, r_), [sread(0, k) for k in SO[ns:ns + c_]]); ns += c_
    scatter([sread(0, k) for k in SO[ns:]], 0, o.get("xn", 6))
    pc = 0
    for r_, c_ in xr:
        add(bw, r_, [("s", k) for k in range(4*c_)])
        add(act, r_, [lambda a_=pc, c_=c_: sc.free(range(11 + a_, 11 + c_))]); pc = c_
    stgl = o.get("stgl", 134)
    for n in range(9):
        if n < 8: add(inb, (9*n + 1, 0) if n == 7 and stgl == 134 else (9*n + o.get("bslot", 4), 2), bias_read(n + 1))
        if n: deal(gelu_list(o, n - 1), 9*n, o.get("gn", 9) if n < 8 else min(9, bj(h0 + 3*hd) - 72), work)
    if not o.get("sup", 1): spread(atoms(setup2()) + (setup3(o) if full else []), o.get("su0", 6), o.get("su1", 34), work)
    add(pre, o.get("stl", xr[1][0]), [[f"s_lshl_b32 s{S_YT}, s{S_RB}, 9", f"s_add_u32 s{S_YT}, s{S_YT}, {STAT_OFF}",
        f"buffer_store_dwordx2 v[{V_QA}:{V_QA+1}], v{V_SAD}, s[{S_WS}:{S_WS+3}], s{S_YT} offen sc1"]])
    if full:
        for k_, (r_, cs) in enumerate(o.get("xtl", [[26, [0, 1, 2]], [54, [3, 4, 5]], [90, [6, 7, 8]]])):
            assert all(bj(r_) + 2 < 18*(c_ // 2) + 16 for c_ in cs)
            def xt(k_=k_, cs=cs):
                e(f"s_cmp_eq_u32 s{S_W}, s{S_J}")
                e(f"s_cbranch_scc1 {nm}_xt{k_}")
                g.lab(f"{nm}_xt{k_}b")
                L = [f"s_and_b32 s{S_YT}, s2, 8", f"s_lshl_b32 s{S_YT}, s{S_YT}, 2", f"v_lshrrev_b32 v{V_T2}, 3, v{V_TID}", f"v_xor_b32 v{V_T2}, s{S_YT}, v{V_T2}",
                     f"v_lshl_or_b32 v{V_T2}, v{V_TID}, 11, v{V_T2}", f"v_and_b32 v{V_T2}, 0x3fff, v{V_T2}", f"v_lshlrev_b32 v{V_T2}, 4, v{V_T2}",
                     f"s_lshl_b32 s{S_YT}, s{S_RB}, 10", f"s_add_u32 s{S_YT}, s{S_YT}, {XT_OFF + 262144*cs[0]}"]
                for c_ in cs:
                    L.append(f"buffer_store_dwordx4 v[{XR+4*c_}:{XR+4*c_+3}], v{V_T2}, s[{S_WS}:{S_WS+3}], s{S_YT} offen sc1")
                    if c_ != cs[-1]: L.append(f"s_add_u32 s{S_YT}, s{S_YT}, 262144")
                g.ool += [f"{nm}_xt{k_}:"] + ["  " + x for x in L] + [f"  s_branch {nm}_xt{k_}b"]
            add(pre, r_, [[xt]])
    add(work, 60, [f"s_lshl_b32 s{S_N}, s{S_MH}, 13", f"v_lshl_add_u32 v{V_FR}, v{V_LANE}, 4, s{S_N}"])
    if full:
        if o.get("cm", 4): add(post, o.get("rcold", 134), cold_items(o.get("cm", 4)))
        add(pre, stgl, stage_items(S_K, 0, "kst") + stage_items(S_V, 9856, "stg"))
        add(bw, stgl, ["bias"])
        sc.hold[9] = 9; sc.hold[11] = 9
        add(act, stgl, [lambda: sc.claim([9, 11], "stg")])
        for r_, k_, m_ in o.get("tl", [[36, "K", 0xffff], [72, "V", 0xffff], [108, "F", 0x7ff]]):
            sr, v = {"K": (S_K, V_KT), "V": (S_V, V_KT), "F": (S_KF, V_KFT)}[k_]
            add(post if o.get("tpost") else pre, r_, [[f"s_mov_b64 exec, {m_}", f"buffer_load_dword v{V_DUM}, v{v}, s[{sr}:{sr+3}], 0 offen", "s_mov_b64 exec, -1"]])
    wt = o.get("wt", [])
    wn = -(-5184 // (128 * len(wt))) if wt else 0
    if wt: add(work, o.get("wts", 40), [f"s_and_b32 s{S_WT}, s{S_RB}, 15", f"s_lshl3_add_u32 s{S_WT}, s{S_WT}, s{S_W}", f"s_mul_i32 s{S_WT}, s{S_WT}, {wn*128}",
            f"s_mul_i32 s{S_N}, s{S_J}, {576*1152}", f"s_add_u32 s{S_WT}, s{S_WT}, s{S_N}", f"v_lshlrev_b32 v{V_T}, 7, v{V_LANE}"])
    for r_ in wt:
        it = [f"s_bfm_b64 exec, {wn}, 0", f"buffer_load_dword v{V_DUM}, v{V_T}, s[{S_W2}:{S_W2+3}], s{S_WT} offen", "s_mov_b64 exec, -1",
              f"s_add_u32 s{S_WT}, s{S_WT}, {128*wn*128}"]
        if r_ in pre and o.get("wtm", 1): pre[r_][0] = pre[r_][0][:-1] + it
        else: add(pre, r_, [it])
    for p in range(4):
        r_ = h0 + hd*p
        add(act, r_, [lambda p=p: sc.claim([2*p, 2*p + 1], "h")])
        add(aft, r_, [(f"ds_write_b128 v{V_HW}, v[{HP+8*p+4*t}:{HP+8*p+4*t+3}] offset:{16384*p + 1024*t}", ("hw", p)) for t in range(2)])
        add(bw, r_ + hd, [("hw", p)])
        ks = [k for k in SO if k // 8 == p]
        ha = o.get("ha", 0)
        add(aft, r_ + hd, [sread(1, k) for k in ks[:ha]])
        scatter([sread(1, k) for k in ks[ha:]], bj(r_ + hd) + 1, o.get("hn", hd // 2))
        add(bw, r_ + hd + hl*hd, [("s", 36 + k) for k in ks])
        add(act, r_ + hd + hl*hd, [lambda p=p: sc.free([2*p, 2*p + 1])])
    js = bj(hs)
    deal(gelu_list(o, 8), 81, js - 81, work)
    rc = min(b_ for b_ in bars if b_ >= 168 and b_ > h0 + 3*hd)
    assert bj(rc) < js
    add(act, rc, [lambda: sc.claim([8], "h")])
    add(aft, rc, [f"s_lshl_b32 s{S_N}, s{S_MH}, 12", f"s_add_u32 s{S_N}, s{S_N}, 65536", f"v_lshl_add_u32 v{V_HW}, v{V_LANE}, 4, s{S_N}",
                  f"s_lshr_b32 s{S_N}, s{S_QW}, 1", f"s_lshl_b32 s{S_N}, s{S_N}, 8", f"s_and_b32 s{S_T2}, s{S_QW}, 1", f"s_add_u32 s{S_N}, s{S_N}, s{S_T2}",
                  f"v_lshl_add_u32 v{V_T}, s{S_N}, 3, v{V_HW}"])
    add(work, 4*(js - 1) + 1, [(f"ds_write2st64_b64 v{V_T}, v[{HP+32}:{HP+33}], v[{HP+34}:{HP+35}] offset0:0 offset1:2", ("hw", 4))])
    add(bw, hs, [("hw", 4)])
    ks = [k for k in SO if k >= 32]
    scatter([sread(1, k) for k in ks], js + 1, 1)
    add(bw, nextb(hs, o.get("hl4", 2)), [("s", 36 + k) for k in ks])
    add(act, nextb(hs, o.get("hl4", 2)), [lambda: sc.free([8])])
    if full:
        rv = o.get("rv", h0); rk = o.get("rk", h0 + 2*hd)
        assert rv >= h0 and rk >= h0 + 2*hd
        add(bv, min(rv, rk), ["stg"])
        scatter([(f"ds_read_b32 v{VR+r}, v{V_KG} offset:{9856 + 1168 + 144*r}", "vr") for r in range(8)], bj(rv) + 1, o.get("vn", 1))
        scatter([(f"ds_read_b32 v{KR+r}, v{V_KG} offset:{720 + 144*r + (16 if r > 2 else 0)}", "kr") for r in range(11)], bj(rk) + 1, o.get("kn", 2))
        add(bw, nextb(rv, o.get("vl", 1)), ["vr"]); add(act, nextb(rv, o.get("vl", 1)), [lambda: sc.free([11])])
        add(bw, nextb(rk, o.get("kl", 2)), ["kr"]); add(act, nextb(rk, o.get("kl", 2)), [lambda: sc.free([9, 10])])
        add(pre, o.get("rx", h0 + hd), [[(f"buffer_load_dword v{V_TOK}, off, s[{S_DBG}:{S_DBG+3}], 0 sc1", "tok")]])
        add(pre, h0 + 3*hd, [[f"v_lshrrev_b32 v{V_T2}, 9, v{V_KST}", f"s_and_b32 s{S_T2}, s2, 7", f"s_mul_i32 s{S_T2}, s{S_T2}, 576",
            (f"buffer_load_dwordx4 v[{SH}:{SH+3}], v{V_T2}, s[{S_SH}:{S_SH+3}], s{S_T2} offen", "sh")]])
    told = set()
    def flags():
        for m in range(7):
            if ("p", m) in g.bdone and m not in told:
                told.add(m)
                for x in flag_store(g, m): g.put(x)
        if "kv1" in g.bdone and "rdy" not in told:
            told.add("rdy")
            e(f"s_lshl_b32 s{S_N}, s2, 7")
            e(f"s_add_u32 s{S_N}, s{S_N}, {RDY_OFF}")
            e(f"buffer_store_dword v{V_TOK}, v{V_L0}, s[{S_WS}:{S_WS+3}], s{S_N} offen sc1")
    def tok():
        g.wait(vm=["tok"])
        e(f"v_readfirstlane_b32 s{S_TOK}, v{V_TOK}")
        e(f"s_cmp_eq_u32 s{S_TOK}, 0")
        e(f"s_cbranch_scc1 {nm}_tok_slow")
        g.lab(f"{nm}_tok_back")
    def rdy():
        assert "rdy" in told
        g.wait(vm=["rl"])
        e(f"v_cmp_ne_u32 vcc, s{S_ONES}, v{V_RDY}")
        e(f"s_cbranch_vccnz {nm}_rdy_slow")
        g.lab(f"{nm}_rdy_back")
    ss = o.get("ss", 8)
    kvb = o.get("kvb", 1)
    def kvok(): assert "vr" in g.done and "kr" in g.done and ("hw", 4) in g.done
    if full:
        spread([kvok] + kv_compute(g), o.get("kc0", 4*js + 2), o.get("kc1", 362 + 36*kvb), work)
        spread(setup4(), 324 + 36*4 + 10, 324 + 36*5 + 2, work)
        add(work, 4*o.get("rlj", 146), [(f"buffer_load_dword v{V_RDY}, v{V_L4}, s[{S_WS}:{S_WS+3}], 0 offen sc1", "rl")])
        add(work, 4*o.get("p0j", 155) + 1, [lambda: poll(g, "p0")])
        add(work, 640, [f"v_min_u32 v{V_L0}, 1, v{V_LANE}", f"v_lshlrev_b32 v{V_L0}, 31, v{V_L0}"])
        c0 = 606 + o.get("c0", 0)
        add(act, 310, [lambda: sc.claim(range(9), "conv")])
        spread(conv_loads(g), c0, c0 + o.get("cls", 12), work)
        add(work, 628, [flags])
        hooks.update({o.get("rt", 180): tok, 310: rdy, 318: lambda: g.wait(vm=[("p", 6)])})
    for n in range(8):
        b = 324 + 36*(n + 1)
        spread(cvt(g, n), b + 3, b + 8, work)
        s_ = o.get("ss7", 10) if full and n == 7 else ss
        add(work, b + s_, pstore(g, n))
        if full:
            if n == kvb: add(work, b + s_, sum(kv_store(), []))
            add(work, b + s_, [flags])
    stream(g, sc, bars, work, hooks, pre, post, inb, bw, bv, act, aft)
    if o.get("sp"): e("s_setprio 0")
    e("s_nop 7")
    for x in cvt(g, 8) + pstore(g, 8): g.put(x)
    if not full: finish(g)
    else:
        assert told == set(range(7)) | {"rdy"}, told
        tail(g, nm)
        g.lab(f"{nm}_rdy_slow")
        e(f"s_mov_b32 s{S_N}, {SPIN}")
        g.lab(f"{nm}_rdy_lp")
        e(f"buffer_load_dword v{V_RDY}, v{V_L4}, s[{S_WS}:{S_WS+3}], 0 offen sc1")
        e(f"s_sub_u32 s{S_N}, s{S_N}, 1")
        e("s_waitcnt vmcnt(0)")
        e(f"s_cbranch_scc1 {nm}_rdy_back")
        e(f"v_cmp_ne_u32 vcc, s{S_ONES}, v{V_RDY}")
        e(f"s_cbranch_vccnz {nm}_rdy_lp")
        e(f"s_branch {nm}_rdy_back")
        g.lab(f"{nm}_tok_slow")
        e(f"s_mov_b32 s{S_N}, {SPIN}")
        g.lab(f"{nm}_tok_lp")
        e(f"buffer_load_dword v{V_TOK}, off, s[{S_DBG}:{S_DBG+3}], 0 sc1")
        e(f"s_sub_u32 s{S_N}, s{S_N}, 1")
        e("s_waitcnt vmcnt(0)")
        e(f"s_cbranch_scc1 {nm}_tok_back")
        e(f"v_readfirstlane_b32 s{S_TOK}, v{V_TOK}")
        e(f"s_cmp_eq_u32 s{S_TOK}, 0")
        e(f"s_cbranch_scc1 {nm}_tok_lp")
        e(f"s_branch {nm}_tok_back")
    g.L += g.ool
    g.lab(f"{name}_mk")
    e(f"s_mov_b32 s{S_T}, {EPO_OFF}")
    e(f"s_load_dword s{S_TOK}, s[{S_WS}:{S_WS+1}], s{S_T}")
    e(f"v_min_u32 v{V_T}, 1, v{V_LANE}")
    e(f"v_lshlrev_b32 v{V_T}, 31, v{V_T}")
    e("s_waitcnt lgkmcnt(0)")
    e(f"s_add_u32 s{S_TOK}, s{S_TOK}, 1")
    e(f"s_addc_u32 s{S_TOK}, s{S_TOK}, 0")
    e(f"v_mov_b32 v{V_L0}, s{S_TOK}")
    e(f"buffer_store_dword v{V_L0}, v{V_T}, s[{S_DBG}:{S_DBG+3}], 0 offen sc1")
    e(f"buffer_store_dword v{V_L0}, v{V_T}, s[{S_WS}:{S_WS+3}], s{S_T} offen sc1")
    e(f"s_branch {name}_mkb")
    g.lab(f"{name}_exit")
    e("s_endpgm")
    desc = f""".amdhsa_kernel {name}
  .amdhsa_next_free_vgpr 256
  .amdhsa_next_free_sgpr {102 if o.get('stamps') else 100}
  .amdhsa_accum_offset 256
  .amdhsa_group_segment_fixed_size 0
  .amdhsa_kernarg_size 112
  .amdhsa_user_sgpr_count 2
  .amdhsa_user_sgpr_kernarg_segment_ptr 1
  .amdhsa_system_sgpr_workgroup_id_x 1
.end_amdhsa_kernel"""
    return "\n".join(g.L) + "\n", desc
```

```python
import sys, json
import k11
KN = "parallel_sum__ssm_conv_h3__dense_activation_gelu__prompt_kernel"
def full(opt):
    b1, d1 = k11.gen(KN, opt)
    return (f"; @launch grid=(256,1,1) block=(512,1,1) lds={k11.LDS_SZ}\n"
            '.amdgcn_target "amdgcn-amd-amdhsa--gfx950"\n.text\n' + b1 +
            '.section .rodata,"a"\n.p2align 6\n' + d1 + "\n")
if __name__ == "__main__":
    opt = json.loads(sys.argv[2]) if len(sys.argv) > 2 else {}
    open(sys.argv[1], "w").write(full(opt))
```

```python
import struct, math
def f32bits(x): return struct.unpack("<I", struct.pack("<f", x))[0]

LDS_SZ = 163840
XL = 11 * 8192
KSTG = 73728
VSTG = KSTG + 9856
TBL = VSTG
STAMP_OFF = 32 << 20
KVT_OFF = 20 << 20
STAT_OFF = 24 << 20
FLAG_OFF = 25 << 20
RDY_OFF = 26 << 20
EPO_OFF = 27 << 20
XT_OFF = 28 << 20
JOBS = [[(0, 6), (27, 32)], [(6, 11), (22, 27)], [(11, 22)]]
WSTR = 8704
SPIN = 1 << 15

V_TID = 0; V_LANE = 1
V_TR = [2, 3, 4]
V_FR = 5; V_HW = 6; V_C1 = 7
V_O1 = 8; V_O2 = 9; V_BO = 10; V_ST = 11; V_L0 = 12
V_STAMP = 13; V_T = 14; V_T2 = 15
V_O1B = 52; V_O2B = 53; V_O1G = 54; V_O2G = 55
ACC = [16, 24]
WF = 32
WFS = [32, 36, 40, 44, 48, 52, 108]
S_KO = 35; S_FO = 1; S_DUM = 56
GT = 56; BI = 64; SP = 68; HP = 76; BIG = 112
XR = 76; LT = 112; BR = 63; V_QA = 60; V_SAD = 62; S_YT = 3; S_XO = 30
PKR = 56
V_K1 = 68; V_K2 = 69; V_DUM = 70; V_KFT = 71; V_XA = 72; V_XB = 73; V_KG = 74; V_KST = 75
XA = 64; XB = 68; V_KT = 53
VR = 76; KR = 84; SH = 96; KC = 100; KA = 104
V_FR2 = 56
V_TOK = 8; V_RDY = 60; V_L4 = 61; V_XO = 62; V_XS = 63; V_YO = 60; V_YS = 61; V_SA = 53; V_SB = 55
V_AF = 5; V_BF = 6; V_KV = 7; V_YW = 10; V_RA = 52; V_RB = 54; V_FA = 74; V_P = 75; V_CL = 110; V_OOB = 111
AF = 112; CACC = 176; BB = 224; NB = 6
LDA = 76; LDB = 16

S_TOK = 3
S_Q = 4; S_W1 = 8; S_W2 = 12; S_B1 = 16; S_DR = 20; S_WS = 24
S_J = 28; S_RB = 29; S_ROT = 30; S_W = 31; S_QW = 32; S_M0B = 33
S_GC = 34
S_N = 38; S_T = 39; S_T2 = 40
S_COL = 44
S_ROW = [16, 17, 18, 19, 36, 37, 41, 42, 43]
S_PB = 53; S_SI = 54; S_MH = 55
S_PC = 56; S_TM = 58; S_M0G = 56
S_FLG = 62; S_ONES = 63
S_K = 64; S_V = 68; S_SH = 72; S_KVO = 76
S_G = 77; S_PART = 78; S_INFO = 79
S_OUT = 80; S_KF = 84; S_DBG = 88; S_DP = 92; S_BP = 94; S_B2 = 96
S_TA = 92; S_TB = 93; S_IA = 94; S_IB = 95; S_BM = 57; S_KM = 30
S_BV = 64; S_LO = 72; S_HI = 73; S_D = 74; S_PX = 75; S_PY = 76; S_GX = 34; S_GY = 35; S_XM = 28; S_YM = 0; S_SO = 23; S_NX = 0; S_NY = 1; S_H2 = 8; S_CH = 9; S_FB = 10; S_GO = 11

S_PO = [11, 4, 5, 6, 7, 20, 21, 22]
S_WT = 35

class G:
    def __init__(self, opt):
        self.L = []; self.o = opt
        self.lds = []; self.vm = []; self.done = set(); self.bdone = set()
    def e(self, s, tag=None):
        if s.endswith(" lds") and self.L[-1].split()[1:2] == ["m0,"]: self.L.append("  s_nop 0")
        self.L.append("  " + s)
        if s.startswith("ds_"): self.lds.append(tag)
        if s.startswith("buffer_") or s.startswith("global_"): self.vm.append(tag)
    def put(self, x):
        if callable(x): x()
        elif isinstance(x, tuple): self.e(x[0], x[1])
        else: self.e(x)
    def lab(self, s): self.L.append(s + ":")
    def _n(self, q, tags):
        idx = [i for i, t in enumerate(q) if t is not None and t in tags]
        if not idx: return None
        m = max(idx)
        for t in q[:m+1]:
            if t is not None: self.done.add(t)
        n = len(q) - 1 - m
        del q[:m+1]
        return n
    def wait(self, lds=(), vm=(), alllds=False, allvm=False):
        w = []
        if allvm:
            for t in self.vm: self.done.add(t)
            self.vm = []; w.append("vmcnt(0)")
        else:
            n = self._n(self.vm, set(vm))
            if n is not None: w.append(f"vmcnt({min(n, 63)})")
        if alllds:
            for t in self.lds: self.done.add(t)
            self.lds = []; w.append("lgkmcnt(0)")
        else:
            n = self._n(self.lds, set(lds))
            if n is not None: w.append(f"lgkmcnt({min(n, 15)})")
        if w: self.e("s_waitcnt " + " ".join(w))
    def stamp(self):
        if not self.o.get("stamps"): return
        self.e(f"s_memtime s[{S_TM}:{S_TM+1}]")
        self.e(f"s_memrealtime s[{S_TM+2}:{S_TM+3}]")
        self.e("s_mov_b32 s100, m0")
        self.e("s_waitcnt lgkmcnt(0)")
        self.e(f"s_mov_b32 m0, s{S_SI}")
        self.e(f"s_add_u32 s{S_SI}, s{S_SI}, 1")
        self.e(f"v_writelane_b32 v{V_STAMP}, s{S_TM}, m0")
        self.e(f"s_add_u32 m0, m0, 30")
        self.e(f"s_nop 0")
        self.e(f"v_writelane_b32 v{V_STAMP}, s{S_TM+2}, m0")
        self.e("s_mov_b32 m0, s100")
    def rstamp(self, lane):
        if not self.o.get("stamps"): return
        self.e(f"s_memrealtime s[{S_TM}:{S_TM+1}]")
        self.e("s_waitcnt lgkmcnt(0)")
        self.e(f"v_writelane_b32 v{V_STAMP}, s{S_TM}, {lane}")

def srd(g, s, nrec):
    g.e(f"s_mov_b32 s{s+2}, {nrec}")
    g.e(f"s_mov_b32 s{s+3}, 0x00020000")

SM = [1]
def slot(N, u):
    if N == 10 and u == 8: return 9
    if N % 2 == 0: return u
    if N < 9:
        if not SM[0]: return 11 + u
        return 10 + u if u else (9 if N == 1 else 19)
    if u == 8: return 11
    if not SM[0]: return 12 + u
    return 11 + u if u else 19

def dma(g, N, u, grp=False):
    L = [f"s_add_u32 m0, s{S_M0G if grp else S_M0B}, {slot(N, u) * 8192}"]
    if N < 9:
        L.append(f"s_add_u32 s{S_T}, s{S_COL+N}, {u*64*9216}")
        v, s = (V_O1G if grp else V_O1), S_W1
        v2 = V_O1B
    else:
        L.append(f"s_add_u32 s{S_T}, s{S_COL+N-9}, s{S_ROW[u]}")
        v, s = (V_O2G if grp else V_O2), S_W2
        v2 = V_O2B
    if g.o.get("nodma") and N: return [L]
    L.append((f"buffer_load_dwordx4 v{v}, s[{s}:{s+3}], s{S_T} offen lds", ("u", N, u)))
    if not grp: return [L]
    d2 = (f"buffer_load_dwordx4 v{v2}, s[{s}:{s+3}], s{S_T} offen offset:1024 lds", ("u", N, u))
    if g.o.get("dpair"): return [L + [d2]]
    return [L, [d2]]

def parts(N, ks):
    if N < 9: return [(ks // 2, 2*(ks % 2)), (ks // 2, 2*(ks % 2) + 1)]
    if ks < 16: return [(2*(ks // 4), ks % 4), (2*(ks // 4) + 1, ks % 4)]
    return [(8, 2*(ks - 16)), (8, 2*(ks - 16) + 1)]

def wreads(g, r):
    N, ks = r // 18, r % 18
    b = WFS[r % g.NF]
    L = []
    for h, (u, g16) in enumerate(parts(N, ks)):
        a = slot(N, u)*8192 + 2048*g16
        L.append((f"ds_read_b64_tr_b16 v[{b+2*h}:{b+2*h+1}], v{V_TR[a >> 16]} offset:{a & 0xffff}", ("w", r) if h else None))
    return L

def mfmas(g, i):
    N, ks = i // 18, i % 18
    b = WF + 4*(i % g.NF)
    L = []
    for t in range(2):
        c = ACC[N % 2] + 4*t
        f = BIG + 8*ks + 4*t
        src = f"v[{c}:{c+3}]" if ks else (f"v[{BI}:{BI+3}]" if N < 9 else "0")
        L.append(f"v_mfma_f32_16x16x32_bf16 v[{c}:{c+3}], v[{b}:{b+3}], v[{f}:{f+3}], {src}")
    return L

def sread(ph, k):
    ks, t = k // 2, k % 2
    if ph == 0:
        off = 4096*ks + 1024*t
        v = [V_FR, V_FR2, V_FR2 + 1, V_FR2 + 2][(off >> 16) + 2*(ks % 2)]
        return (f"ds_read_b128 v[{BIG+4*k}:{BIG+4*k+3}], v{v} offset:{off & 0xffff}", ("s", k))
    if ks < 16: return (f"ds_read_b128 v[{BIG+4*k}:{BIG+4*k+3}], v{V_FR} offset:{16384*(ks//4) + 2048*(ks%4) + 1024*t}", ("s", 36 + k))
    return (f"ds_read_b128 v[{BIG+4*k}:{BIG+4*k+3}], v{V_HW} offset:{2048*(ks-16) + 1024*t}", ("s", 36 + k))

def spread(items, s0, s1, work):
    n = len(items)
    for i, it in enumerate(items):
        s = s0 + (i * (s1 - s0)) // n
        work.setdefault(s, []).extend(it if isinstance(it, list) else [it])

def gelu_list(o, n):
    L = []
    A = ACC[n % 2]
    x = [A + i for i in range(8)]
    t = [GT + i for i in range(8)]
    def dst(i):
        if n == 8: return HP + 32 + i
        return HP + 8*(n // 2) + 4*(i // 2) + 2*(n % 2) + (i % 2)
    if o.get("nogelu"):
        return [f"v_cvt_pk_bf16_f32 v{dst(i)}, v{x[2*i]}, v{x[2*i+1]}" for i in range(4)]
    P = lambda r: f"v[{r}:{r+1}]"
    if o.get("pk", 0):
        sc = f"s[{S_GC}:{S_GC+1}]"
        for i in range(0, 8, 2): L.append(f"v_pk_mul_f32 {P(t[i])}, {P(x[i])}, {P(x[i])}")
        for i in range(0, 8, 2): L.append(f"v_pk_fma_f32 {P(t[i])}, {P(t[i])}, {sc}, {sc} op_sel:[0,0,1] op_sel_hi:[1,0,1]")
        for i in range(0, 8, 2): L.append(f"v_pk_mul_f32 {P(t[i])}, {P(t[i])}, {P(x[i])}")
        for i in range(8): L.append(f"v_exp_f32 v{t[i]}, v{t[i]}")
        for i in range(0, 8, 2): L.append(f"v_pk_add_f32 {P(t[i])}, {P(t[i])}, 1.0 op_sel_hi:[1,0]")
        for i in range(8): L.append(f"v_rcp_f32 v{t[i]}, v{t[i]}")
        for i in range(0, 8, 2): L.append(f"v_pk_mul_f32 {P(t[i])}, {P(t[i])}, {P(x[i])}")
    else:
        for i in range(8): L.append(f"v_mul_f32 v{t[i]}, v{x[i]}, v{x[i]}")
        for i in range(8): L.append(f"v_fma_f32 v{t[i]}, v{t[i]}, s{S_GC}, v{V_C1}")
        for i in range(8): L.append(f"v_mul_f32 v{t[i]}, v{t[i]}, v{x[i]}")
        for i in range(8): L.append(f"v_exp_f32 v{t[i]}, v{t[i]}")
        for i in range(8): L.append(f"v_add_f32 v{t[i]}, 1.0, v{t[i]}")
        for i in range(8): L.append(f"v_rcp_f32 v{t[i]}, v{t[i]}")
        for i in range(8): L.append(f"v_mul_f32 v{t[i]}, v{t[i]}, v{x[i]}")
    for i in range(4): L.append(f"v_cvt_pk_bf16_f32 v{dst(i)}, v{t[2*i]}, v{t[2*i+1]}")
    return L

def cvt(g, n):
    A = ACC[(n + 9) % 2]; P = PKR + 4*(n % g.o.get("npk", 1))
    L = [f"v_cvt_pk_bf16_f32 v{P+i}, v{A+2*i}, v{A+2*i+1}" for i in range(4)]
    L.append("s_nop 0")
    L.append(f"v_permlane16_swap_b32 v{P}, v{P+2}")
    L.append(f"v_permlane16_swap_b32 v{P+1}, v{P+3}")
    return L

def pstore(g, n):
    fl = g.o.get("stflags", "sc1")
    P = PKR + 4*(n % g.o.get("npk", 1))
    L = [f"s_lshl_b32 s{S_T2}, s{S_COL+n}, 11", f"s_add_u32 s{S_T2}, s{S_T2}, s{S_PB}"]
    if not (g.o.get("nostore") or g.o.get("nostore" + g.grp)): L.append((f"buffer_store_dwordx4 v[{P}:{P+3}], v{V_ST}, s[{S_WS}:{S_WS+3}], s{S_T2} offen {fl}", ("p", n)))
    return L

def flag_store(g, n):
    return [f"s_lshl1_add_u32 s{S_N}, s{S_COL+n}, s{S_FLG}",
            (f"buffer_store_dword v{V_TOK}, v{V_L0}, s[{S_WS}:{S_WS+3}], s{S_N} offen sc1", ("f", n))]

class Sched:
    def __init__(self, g, first):
        self.g = g
        A = [(N, u) for N in range(18) for u in range(9)]
        self.q = A[first:]
        self.own = {}
        for N, u in A[:first]: self.own[slot(N, u)] = (N, u)
        self.hold = {}
    def ok(self, N, u):
        s_ = slot(N, u)
        return s_ not in self.own and not (s_ in self.hold and N >= self.hold[s_])
    def claim(self, slots, nm):
        for s_ in slots:
            assert s_ not in self.own, (s_, nm, self.own[s_])
            self.own[s_] = nm
    def free(self, slots):
        for s_ in slots:
            assert isinstance(self.own[s_], str), (s_, self.own[s_])
            del self.own[s_]; self.hold.pop(s_, None)
    def release(self, i):
        for s_, x in list(self.own.items()):
            if isinstance(x, tuple):
                N, u = x
                last = max(ks for ks in range(18) if any(p[0] == u for p in parts(N, ks)))
                if 18*N + last <= i: del self.own[s_]
    def take(self, cap):
        R = []
        while self.q and len(R) < cap and self.ok(*self.q[0]):
            x = self.q.pop(0); self.own[slot(*x)] = x
            R.append(x)
        return R

def mfma(g, i, t):
    N, ks = i // 18, i % 18
    b = WFS[i % g.NF]
    c = ACC[N % 2] + 4*t
    f = BIG + 8*ks + 4*t
    src = f"v[{c}:{c+3}]" if ks else (f"v[{BI}:{BI+3}]" if N < 9 else "0")
    return f"v_mfma_f32_16x16x32_bf16 v[{c}:{c+3}], v[{b}:{b+3}], v[{f}:{f+3}], {src}"

def isvalu(x):
    t = x[0] if isinstance(x, tuple) else x
    return isinstance(t, str) and t.startswith("v_")

def seq(j):
    R = []
    for i in (2*j - 2, 2*j - 1): R.append((i, 1 - (i % 18) // 2 % 2) if i >= 0 else None)
    for i in (2*j, 2*j + 1): R.append((i, (i % 18) // 2 % 2) if i < 324 else None)
    return R
SO = [2*m[0] + m[1] for j in range(10) for m in seq(j) if m and m[0] < 18]

def stream(g, sc, bars, work, hooks, pre, post, inb, bw, bv, act, aft):
    o = g.o; D = g.NF - 2; E = D + D % 2 + 2
    i1 = 324
    first = lambda r: r - D % 2
    def need(r0):
        nx = min([first(b) for b in bars if b > r0] + [i1])
        return [("u", r // 18, p[0]) for r in range(first(r0), nx) for p in parts(r // 18, r % 18)]
    due = {}
    for b in bars:
        for t in need(b): due.setdefault(t[1:], (b - E) // 2)
    for r in range(D):
        for x in wreads(g, r): g.put(x)
        for x in inb.pop((-1, r), []): g.put(x)
    vq = []
    log = []
    for j in range(163):
        r = 2*j + E
        bar = r in bars
        tgt = o.get("tgt%d" % (1 + j // 81), o.get("tgt", 7))
        if bar:
            sc.release(2*j + 1)
            for f in act.pop(r, []): f()
            vq += pre.pop(r, [])
        X = []
        if vq: X.append(vq.pop(0))
        us = sc.take(1) if j < 162 else []
        while us and len(us) < o.get("dmax", 2) and sc.q and due[sc.q[0]] - j < tgt and sc.ok(*sc.q[0]): us += sc.take(1)
        log += [(j, u, due[u] - j) for u in us]
        if bar: vq += post.pop(r, [])
        dm = [dma(g, N, u)[0] for N, u in us]
        rr = [x for i in (2*j + D, 2*j + D + 1) if i < i1 and not o.get("noread") for x in wreads(g, i)]
        sl = dm[0][:2] if dm else []
        S = seq(j)
        def stag(m): return [("s", 2*m[0] + m[1])] if m[0] < 18 else [("s", 36 + 2*(m[0] - 162) + m[1])] if 162 <= m[0] < 180 else []
        for q, m in enumerate(S):
            tags = []
            if q == o.get("wq", 0) and j > 1:
                tags += [("w", 2*j), ("w", 2*j + 1)] + (["bias"] if j % 9 == 0 else [])
                if o.get("sw", 1): tags += [t for m2 in S if m2 for t in stag(m2)]
            if m:
                tags.append(("w", m[0]))
                tags += stag(m)
                for t in stag(m): assert t in g.lds or t in g.done, (j, t)
                if m[0] % 18 == 0: tags.append("bias")
                if o.get("sp") == 2 and q == 0: g.e("s_setprio 1")
                g.wait(lds=tags)
                if o.get("sp") == 1 and q == 0: g.e("s_setprio 1")
                if o.get("sp") == 3 and q == 0: g.e("s_setprio 0")
                if not o.get("nomfma"): g.e(mfma(g, *m))
                if o.get("sp") in (1, 2) and q == 3: g.e("s_setprio 0")
                if o.get("sp") == 3 and q == 3: g.e("s_setprio 1")
                for _ in range(2 if j == 0 else 1):
                    if rr: g.put(rr.pop(0))
                if sl: g.put(sl.pop(0))
                for x in inb.pop((j, q), []): g.put(x)
        assert not rr
        if bar:
            nd = need(r)
            assert not [t for t in nd if t[1:] in sc.q or t[1:] in us], r
            for t in bw.get(r, []) + bv.get(r, []): assert t in g.lds or t in g.vm or t in g.done, (r, t)
            g.wait(vm=nd + bv.pop(r, []), lds=bw.pop(r, []))
            if r in hooks: hooks.pop(r)()
            if r in o.get("sl", [8, 18, 26, 80, 152, 164, 180, 188, 206, 242, 278, 296, 310, 318]): g.stamp()
            if not o.get("nobar"): g.e("s_barrier")
            g.bdone = set(g.done)
        if dm:
            for x in dm[0][2:]: g.put(x)
        if bar:
            for x in aft.pop(r, []): g.put(x)
        V = [x for s_ in range(4*j - 2, 4*j + 2) for x in work.pop(s_, [])]
        if j == 162: work[4*j - 2] = V; break
        for Y in dm[1:]:
            for x in Y[:2]: g.put(x)
            for _ in range(o.get("dgap", 2)):
                if V and isvalu(V[0]): g.put(V.pop(0))
            for x in Y[2:]: g.put(x)
        k = o.get("xgap", 2)
        while k and V and isvalu(V[0]) and X:
            g.put(V.pop(0)); k -= 1
        for Y in X:
            for x in Y: g.put(x)
        for x in V: g.put(x)
    if o.get("log"): print(log)
    assert not (vq or inb or pre or post or bw or bv or act or aft or hooks), (vq, inb, pre, post, bw, bv, act, aft, hooks)
    assert not [s_ for s_ in work if s_ < 2*i1 and work[s_]], sorted(work)

def deal(items, j0, n, work):
    cost = [2 if x.startswith("v_exp") or x.startswith("v_rcp") else 1 for x in items]
    tot = sum(cost); cum = 0
    for x, c in zip(items, cost):
        work.setdefault(4*(j0 + min(n - 1, int((cum + c / 2) * n / tot))), []).append(x); cum += c

def finish(g):
    if g.o.get("stamps"):
        g.stamp()
        g.e("s_waitcnt vmcnt(0)")
        g.stamp()
        g.rstamp(63)
        g.e(f"s_lshl_b32 s{S_T}, s2, 11")
        g.e(f"s_add_u32 s{S_T}, s{S_T}, {STAMP_OFF}")
        g.e(f"v_lshlrev_b32 v{V_T}, 2, v{V_TID}")
        g.e(f"buffer_store_dword v{V_STAMP}, v{V_T}, s[{S_WS}:{S_WS+3}], s{S_T} offen")
    g.e("s_endpgm")

def bf16round(g, v):
    g.e(f"v_cvt_pk_bf16_f32 v{v}, v{v}, v{v}")
    g.e(f"v_and_b32 v{v}, 0xffff0000, v{v}")

class H:
    def __init__(self): self.L = []; self.e = self.L.append

def prologue(g, name):
    o = g.o; e = g.e; raw = lambda s_: g.L.append("  " + s_)
    full = not o.get("core")
    e("s_cmp_ge_u32 s2, 256")
    e(f"s_cbranch_scc1 {name}_exit")
    e(f"s_load_dwordx2 s[{S_Q}:{S_Q+1}], s[0:1], 0")
    if o.get("stamps"):
        e(f"s_mov_b32 s{S_SI}, 0"); e(f"v_mov_b32 v{V_STAMP}, 0")
        g.rstamp(62)
        g.stamp()
    ep = o.get("ep", 0)
    if ep:
        e(f"s_getpc_b64 s[{S_PC}:{S_PC+1}]")
        e(f"v_lshrrev_b32 v{V_T}, {ep}, v{V_TID}")
        e(f"v_lshlrev_b32 v{V_T}, 7, v{V_T}")
        raw(f"global_load_dword v{V_DUM}, v{V_T}, s[{S_PC}:{S_PC+1}] offset:128")
    KA_ = [f"s_load_dwordx2 s[{s_}:{s_+1}], s[0:1], {off}" for s_, off in ((S_W1, 56), (S_B1, 64), (S_W2, 72), (S_WS, 104), (S_K, 8), (S_V, 16),
           (S_SH, 24), (S_KF, 32), (S_DP, 40), (S_BP, 80), (S_OUT, 88), (S_DBG, 96))]
    if o.get("kae", 0):
        for x in KA_: e(x)
    e(f"s_lshr_b32 s{S_RB}, s2, 4")
    e(f"s_and_b32 s{S_T}, s2, 4")
    e(f"s_lshl2_add_u32 s{S_RB}, s{S_T}, s{S_RB}")
    e(f"v_lshrrev_b32 v{LT}, 3, v{V_TID}")
    e(f"s_and_b32 s{S_T}, s2, 8")
    e(f"s_lshl_b32 s{S_T}, s{S_T}, 2")
    e(f"v_xor_b32 v{LT}, s{S_T}, v{LT}")
    e(f"v_and_b32 v{LT+1}, 7, v{V_TID}")
    e(f"s_mul_i32 s{S_T2}, s{S_RB}, {64*1152}")
    e(f"v_lshl_add_u32 v{LT+6}, v{LT+1}, 4, s{S_T2}")
    e(f"v_mul_u32_u24 v{LT+2}, 1152, v{LT}")
    e(f"v_add_u32 v{LT+6}, v{LT+6}, v{LT+2}")
    e(f"v_cmp_gt_u32 vcc, 256, v{V_TID}")
    srd(g, S_Q, 2359296)
    e("s_waitcnt lgkmcnt(0)")
    if o.get("pst"): g.stamp()
    xl = lambda i: f"buffer_load_dwordx4 v[{XR+4*i}:{XR+4*i+3}], v{LT+6}, s[{S_Q}:{S_Q+3}], 0 offen offset:{128*i}"
    y0 = o.get("y0", 1)
    for i in range(9):
        if i == y0: e(f"s_cbranch_vccz {name}_y0")
        raw(xl(i))
    e(f"s_getpc_b64 s[{S_PC}:{S_PC+1}]")
    g.lab(f"{name}_pc")
    e(f"s_lshr_b32 s{S_T}, s2, 3")
    e(f"v_lshl_add_u32 v{V_T}, v{V_TID}, 5, s{S_T}")
    e(f"v_lshlrev_b32 v{V_T}, 7, v{V_T}")
    e(f"v_min_u32 v{V_T}, {name}_exit-{name}_pc, v{V_T}")
    raw(f"global_load_dword v{V_DUM}, v{V_T}, s[{S_PC}:{S_PC+1}]")
    g.lab(f"{name}_y0")
    if not o.get("kae", 0):
        for x in KA_: e(x)
    if o.get("pst"): g.stamp()
    h = H(); e = h.e
    e(f"v_lshrrev_b32 v{V_T}, 6, v{V_TID}")
    e(f"v_and_b32 v{V_LANE}, 63, v{V_TID}")
    e(f"v_readfirstlane_b32 s{S_W}, v{V_T}")
    e(f"s_and_b32 s{S_J}, s2, 3")
    e(f"s_bfe_u32 s{S_T}, s2, {3 | (1 << 16)}")
    e(f"s_lshl1_add_u32 s{S_J}, s{S_J}, s{S_T}")
    srd(h, S_W1, 5308416); srd(h, S_W2, 5308416); srd(h, S_B1, 9216)
    srd(h, S_WS, 268435456)
    srd(h, S_K, 2359296); srd(h, S_V, 2359296); srd(h, S_SH, 4608)
    srd(h, S_KF, 2359296); srd(h, S_OUT, 2359296); srd(h, S_DBG, 256)
    e(f"s_and_b32 s{S_QW}, s{S_W}, 3")
    e(f"s_lshr_b32 s{S_MH}, s{S_W}, 2")
    e(f"s_lshl_b32 s{S_M0B}, s{S_W}, 10")
    e(f"s_mul_i32 s{S_T}, s{S_RB}, 57")
    e(f"s_lshr_b32 s{S_T}, s{S_T}, 9")
    e(f"s_mul_i32 s{S_T}, s{S_T}, 9")
    e(f"s_sub_u32 s{S_ROT}, s{S_RB}, s{S_T}")
    e(f"s_lshl_b32 s{S_COL}, s{S_ROT}, 7")
    for u in range(1, 9):
        e(f"s_add_u32 s{S_COL+u}, s{S_COL+u-1}, 128")
        e(f"s_cmp_eq_u32 s{S_COL+u}, 1152")
        e(f"s_cselect_b32 s{S_COL+u}, 0, s{S_COL+u}")
    e(f"v_lshrrev_b32 v{LT+3}, 3, v{V_TID}")
    e(f"v_and_b32 v{LT+4}, 6, v{LT+3}")
    e(f"v_xor_b32 v{LT+4}, v{LT+4}, v{LT+1}")
    e(f"v_lshlrev_b32 v{LT+4}, 4, v{LT+4}")
    e(f"s_mul_i32 s{S_N}, s{S_J}, 1152")
    e(f"v_mul_u32_u24 v{V_O1}, 9216, v{LT+3}")
    e(f"v_add3_u32 v{V_O1}, v{V_O1}, v{LT+4}, s{S_N}")
    e(f"s_mul_i32 s{S_T}, s{S_J}, {576*1152}")
    e(f"v_mul_u32_u24 v{V_O2}, 1152, v{LT+3}")
    e(f"v_add3_u32 v{V_O2}, v{V_O2}, v{LT+4}, s{S_T}")
    e(f"s_lshl_b32 s{S_T}, s{S_QW}, 1")
    e(f"s_sub_u32 s{S_T}, s{S_T}, s{S_W}")
    e(f"s_mul_i32 s{S_T2}, s{S_T}, {8*9216}")
    e(f"v_add_u32 v{V_O1G}, s{S_T2}, v{V_O1}")
    e(f"v_add_u32 v{V_O1B}, {8*9216-1024}, v{V_O1G}")
    e(f"s_lshl_b32 s{S_M0G}, s{S_QW}, 11")
    by = o.get("by", 1)
    if by:
        e(f"v_and_b32 v{V_BO}, 255, v{V_TID}")
        e(f"v_lshl_add_u32 v{V_BO}, v{V_BO}, 3, s{S_COL}")
    else: e(f"v_lshl_add_u32 v{V_BO}, v{V_TID}, 2, s{S_COL}")
    e(f"v_subrev_u32 v{V_T}, 1152, v{V_BO}")
    e(f"v_min_u32 v{V_BO}, v{V_BO}, v{V_T}")
    e(f"v_add_u32 v{V_BO}, s{S_N}, v{V_BO}")
    e(f"v_lshrrev_b32 v{LT+8}, 4, v{V_LANE}")
    e(f"v_lshrrev_b32 v{LT+9}, 2, v{V_LANE}")
    e(f"v_lshlrev_b32 v{V_TR[0]}, 7, v{LT+9}")
    e(f"v_bfe_u32 v{LT+9}, v{V_LANE}, 3, 2")
    e(f"v_xor_b32 v{LT+9}, s{S_QW}, v{LT+9}")
    e(f"v_lshl_add_u32 v{V_TR[0]}, v{LT+9}, 5, v{V_TR[0]}")
    e(f"v_and_b32 v{LT+9}, 3, v{V_LANE}")
    e(f"v_lshl_add_u32 v{V_TR[0]}, v{LT+9}, 3, v{V_TR[0]}")
    e(f"v_add_u32 v{V_TR[1]}, 65536, v{V_TR[0]}")
    e(f"v_add_u32 v{V_TR[2]}, 131072, v{V_TR[0]}")
    e(f"s_lshl_b32 s{S_T}, s{S_MH}, 11")
    e(f"s_add_u32 s{S_T}, s{S_T}, {XL}")
    e(f"v_lshrrev_b32 v{LT+7}, 5, v{V_LANE}")
    e(f"v_mul_u32_u24 v{LT+7}, 26, v{LT+7}")
    e(f"v_and_b32 v{V_FR}, 15, v{V_LANE}")
    e(f"v_xor_b32 v{V_FR}, v{V_FR}, v{LT+7}")
    e(f"v_and_b32 v{LT+7}, 16, v{V_LANE}")
    e(f"v_lshl_add_u32 v{V_FR}, v{LT+7}, 1, v{V_FR}")
    e(f"v_lshl_add_u32 v{V_FR}, v{V_FR}, 4, s{S_T}")
    e(f"v_add_u32 v{V_FR2}, 65536, v{V_FR}")
    e(f"v_xor_b32 v{V_FR2+1}, 64, v{V_FR}")
    e(f"v_xor_b32 v{V_FR2+2}, 64, v{V_FR2}")
    e(f"v_and_b32 v{LT+9}, 1, v{V_LANE}")
    e(f"v_mul_u32_u24 v{LT+9}, 26, v{LT+9}")
    e(f"v_and_b32 v{LT+2}, 15, v{LT}")
    e(f"v_xor_b32 v{LT+2}, v{LT+2}, v{LT+9}")
    e(f"v_and_b32 v{LT+9}, 48, v{LT}")
    e(f"v_lshl_add_u32 v{LT+2}, v{LT+9}, 2, v{LT+2}")
    e(f"v_and_b32 v{LT+9}, 4, v{V_LANE}")
    e(f"v_xor_b32 v{LT+2}, v{LT+2}, v{LT+9}")
    e(f"v_lshl_add_u32 v{LT+2}, v{LT+9}, 6, v{LT+2}")
    e(f"v_lshlrev_b32 v{LT+2}, 4, v{LT+2}")
    e(f"v_and_b32 v{LT+9}, 2, v{V_LANE}")
    e(f"v_lshl_add_u32 v{LT+2}, v{LT+9}, 2, v{LT+2}")
    e(f"v_add_u32 v{LT+2}, {XL}, v{LT+2}")
    c1 = 2.0 * math.sqrt(2.0 / math.pi) * math.log2(math.e)
    e(f"v_mov_b32 v{V_C1}, 0x{f32bits(-c1):08x}")
    e(f"s_mov_b32 s{S_GC}, 0x{f32bits(-c1*0.044715):08x}")
    e(f"v_or_b32 v{V_SAD}, s{S_J}, v{LT+1}")
    e(f"v_lshlrev_b32 v{V_SAD}, 28, v{V_SAD}")
    e(f"v_lshl_add_u32 v{V_SAD}, v{LT}, 3, v{V_SAD}")
    SA, SB, QA, QB, ONE = LT+10, LT+11, V_QA, V_QA+1, LT+14
    for r in (SA, SB, QA, QB): e(f"v_mov_b32 v{r}, 0")
    e(f"v_mov_b32 v{ONE}, 0x3f803f80")
    e(f"s_lshr_b32 s{S_T}, s2, 3")
    e(f"s_mul_i32 s{S_PART}, s{S_T}, 57")
    e(f"s_lshr_b32 s{S_PART}, s{S_PART}, 9")
    e(f"s_and_b32 s{S_G}, s2, 7")
    e(f"s_sub_u32 s{S_G}, s{S_G}, s{S_PART}")
    e(f"s_mul_i32 s{S_G}, s{S_G}, 9")
    e(f"s_add_u32 s{S_G}, s{S_G}, s{S_T}")
    e(f"s_lshl_b32 s{S_T}, s{S_G}, 4")
    S1 = atoms(h.L)
    DB = [f"s_load_dwordx4 s[{S_DR}:{S_DR+3}], s[{S_DP}:{S_DP+1}], s{S_T}", f"s_load_dwordx4 s[{S_B2}:{S_B2+3}], s[{S_BP}:{S_BP+1}], s{S_T}"]
    S1.append(([] if o.get("kae", 0) else ["s_waitcnt lgkmcnt(0)"]) + DB)
    S2 = (atoms(setup2()) + (setup3(o) if full else [])) if o.get("sup", 1) else []
    e = g.e
    cnt = [0]
    def hook(L):
        cnt[0] += 1
        e(f"s_cbranch_vccnz {name}_h{cnt[0]}")
        for x in L: raw(x)
        g.lab(f"{name}_h{cnt[0]}")
    def weave(S, Hs, f0, f1):
        at = [int(len(S) * (f0 + (f1 - f0) * k / max(1, len(Hs) - 1))) for k in range(len(Hs))]
        for k in range(len(S) + 1):
            for a_, L in zip(at, Hs):
                if a_ == k: hook(L)
            if k < len(S):
                for x in S[k]: e(x)
    def gdma(u, st):
        N, u = u // 9, u % 9
        return [[f"s_add_u32 m0, s{S_M0G}, {slot(N, u) * 8192}", f"s_add_u32 s{st}, s{S_COL+N}, {u*64*9216}",
                 f"buffer_load_dwordx4 v{V_O1G}, s[{S_W1}:{S_W1+3}], s{st} offen lds"],
                [f"buffer_load_dwordx4 v{V_O1B}, s[{S_W1}:{S_W1+3}], s{st} offen offset:1024 lds"]]
    weave(S1, [[xl(i)] for i in range(y0, 9)], *o.get("wv1", [0.1, 1.0]))
    e(f"s_or_b32 s{S_T}, s2, s{S_W}")
    e(f"s_cbranch_scc0 {name}_mk")
    g.lab(f"{name}_mkb")
    if o.get("pst"): g.stamp()
    ny = o.get("ny", 2)
    H2 = sum([gdma(u, S_YT) for u in range(ny)], [])
    if by: H2[0] = [f"buffer_load_dwordx2 v[{LT+32}:{LT+33}], v{V_BO}, s[{S_B1}:{S_B1+3}], 0 offen"] + H2[0]
    else: raw(f"buffer_load_dword v{BR}, v{V_BO}, s[{S_B1}:{S_B1+3}], 0 offen")
    weave(S2, H2, *o.get("wv2", [0.0, 1.0]))
    if o.get("pst"): g.stamp()
    def stats(later):
        for i in range(9):
            e(f"s_waitcnt vmcnt({8 - i + later})")
            if i == 0 and o.get("pst"): g.stamp()
            for c in range(4):
                x = XR + 4*i + c
                e(f"v_dot2c_f32_bf16 v{SA if c%2==0 else SB}, v{x}, v{ONE}")
                e(f"v_dot2c_f32_bf16 v{QA if c%2==0 else QB}, v{x}, v{x}")
    e(f"s_cbranch_vccz {name}_sy")
    stats(2 - by)
    if not by: e("s_waitcnt vmcnt(0)")
    e(f"s_branch {name}_sj")
    g.lab(f"{name}_sy")
    stats(1 + 2*ny)
    e(f"s_waitcnt vmcnt({2*ny})")
    g.lab(f"{name}_sj")
    if o.get("pst") or o.get("ps2"): g.stamp()
    pl = o.get("pl", [-1, -1, 2, 4, 6, 8, 9, 9])
    ool = []
    def pd(pos):
        us = [ny + k for k in range(len(pl)) if pl[k] == pos]
        if not us: return
        e(f"s_cbranch_vccnz {name}_p{pos + 1}")
        g.lab(f"{name}_p{pos + 1}b")
        ool.append(f"{name}_p{pos + 1}:")
        for u in us:
            for x in sum(gdma(u, S_T), []): ool.append("  " + x)
            g.vm.extend([("u", u // 9, u % 9)] * 2)
        ool.append(f"  s_branch {name}_p{pos + 1}b")
    pd(-1)
    e("s_nop 2")
    e(f"v_add_f32 v{SA}, v{SA}, v{SB}")
    e(f"v_add_f32 v{QA}, v{QA}, v{QB}")
    for dpp in ("quad_perm:[1,0,3,2]", "quad_perm:[2,3,0,1]", "row_half_mirror"):
        e("s_nop 0")
        e(f"v_add_f32 v{SA}, v{SA}, v{SA} {dpp} row_mask:0xf bank_mask:0xf")
        e(f"v_add_f32 v{QA}, v{QA}, v{QA} {dpp} row_mask:0xf bank_mask:0xf")
    inv = f"0x{f32bits(1.0/576.0):08x}"
    e(f"v_mul_f32 v{SA}, {inv}, v{SA}")
    e(f"v_mul_f32 v{QA}, {inv}, v{QA}")
    e(f"v_fma_f32 v{QA}, -v{SA}, v{SA}, v{QA}")
    e(f"v_max_f32 v{QA}, 0, v{QA}")
    bf16round(g, SA)
    bf16round(g, QA)
    e(f"v_add_f32 v{QA}, 0x{f32bits(1e-5):08x}, v{QA}")
    bf16round(g, QA)
    e(f"v_sqrt_f32 v{QA}, v{QA}")
    e("s_nop 0")
    bf16round(g, QA)
    e(f"v_rcp_f32 v{QA}, v{QA}")
    e("s_nop 0")
    e(f"v_mul_f32 v{QB}, -v{SA}, v{QA}")
    assert QA % 2 == 0
    T0 = LT + 16
    for i in range(9):
        t = T0 + 8*(i % 2)
        for c in range(4):
            x = XR + 4*i + c
            e(f"v_lshlrev_b32 v{t+2*c}, 16, v{x}")
            e(f"v_and_b32 v{t+2*c+1}, 0xffff0000, v{x}")
        for c in range(4):
            e(f"v_pk_fma_f32 v[{t+2*c}:{t+2*c+1}], v[{t+2*c}:{t+2*c+1}], v[{QA}:{QA+1}], v[{QA}:{QA+1}] op_sel:[0,0,1] op_sel_hi:[1,0,1]")
        x = 16 + 4*i
        for c in range(4): e(f"v_cvt_pk_bf16_f32 v{x+c}, v{t+2*c}, v{t+2*c+1}")
        e(f"ds_write2st64_b64 v{LT+2}, v[{x}:{x+1}], v[{x+2}:{x+3}] offset0:{16*i} offset1:{16*i+1}")
        if i == 1 and by:
            hook([f"v_lshlrev_b32 v{LT+36}, 16, v{LT+32}", f"v_and_b32 v{LT+37}, 0xffff0000, v{LT+32}", f"v_lshlrev_b32 v{LT+38}, 16, v{LT+33}",
                  f"v_and_b32 v{LT+39}, 0xffff0000, v{LT+33}", f"v_lshlrev_b32 v{V_BO}, 4, v{V_TID}", f"v_add_u32 v{V_BO}, {TBL - 4096}, v{V_BO}",
                  f"ds_write_b128 v{V_BO}, v[{LT+36}:{LT+39}]"])
        elif i == 1:
            e(f"v_lshlrev_b32 v{SA}, 16, v{BR}")
            e(f"v_and_b32 v{SB}, 0xffff0000, v{BR}")
            e(f"v_lshlrev_b32 v{V_BO}, 3, v{V_TID}")
            e(f"v_add_u32 v{V_BO}, {TBL}, v{V_BO}")
            e(f"ds_write_b64 v{V_BO}, v[{SA}:{SB}]")
        pd(i)
    if o.get("pst"): g.stamp()
    e(f"s_lshl_b32 s{S_T}, s{S_QW}, 6")
    e(f"s_add_u32 s{S_T}, s{S_T}, {TBL}")
    e(f"v_lshl_add_u32 v{V_BO}, v{LT+8}, 4, s{S_T}")
    pd(9)
    e(f"s_cbranch_vccnz {name}_pe")
    e("s_waitcnt vmcnt(0)")
    e(f"s_branch {name}_pe")
    g.L += ool
    g.lab(f"{name}_pe")
    for u in range(ny): g.done.add(("u", 0, u))
    fb = o.get("xr", [[8]])[0][0]
    g.wait(vm=[("u", 0, u) for u in range((fb + 1)//2)], alllds=True)
    g.stamp()
    e("s_barrier")
    return ny + len(pl)

def bias_read(n):
    return [(f"ds_read_b128 v[{BI}:{BI+3}], v{V_BO} offset:{256*n}", "bias")]

def setup2():
    L = []; e = L.append
    for u in range(9): e(f"s_mul_i32 s{S_ROW[u]}, s{S_COL+u}, 576")
    e(f"v_and_b32 v{V_ST}, 31, v{V_LANE}")
    e(f"v_lshlrev_b32 v{V_ST}, 4, v{V_ST}")
    e(f"v_lshrrev_b32 v{V_T}, 5, v{V_LANE}")
    e(f"v_lshl_add_u32 v{V_ST}, v{V_T}, 15, v{V_ST}")
    e(f"s_mul_i32 s{S_PB}, s{S_J}, 36")
    e(f"s_add_u32 s{S_PB}, s{S_PB}, s{S_QW}")
    e(f"s_lshl_b32 s{S_PB}, s{S_PB}, 6")
    e(f"s_add_u32 s{S_PB}, s{S_PB}, s{S_RB}")
    e(f"s_lshl1_add_u32 s{S_PB}, s{S_PB}, s{S_MH}")
    e(f"s_lshl_b32 s{S_PB}, s{S_PB}, 9")
    e(f"s_lshl_b32 s{S_N}, s{S_W}, 11")
    e(f"v_lshl_add_u32 v{V_HW}, v{V_LANE}, 4, s{S_N}")
    e(f"v_min_u32 v{V_L0}, 1, v{V_TID}")
    e(f"v_lshlrev_b32 v{V_L0}, 31, v{V_L0}")
    e(f"s_mul_i32 s{S_FLG}, s{S_RB}, 36")
    e(f"s_add_u32 s{S_FLG}, s{S_FLG}, s{S_QW}")
    e(f"s_lshl1_add_u32 s{S_FLG}, s{S_FLG}, s{S_MH}")
    e(f"s_lshl3_add_u32 s{S_FLG}, s{S_FLG}, s{S_J}")
    e(f"s_lshl2_add_u32 s{S_FLG}, s{S_FLG}, {FLAG_OFF}")
    return L

def atoms(L):
    R = []; open_ = False
    for x in L:
        t = x[0] if isinstance(x, tuple) else x
        if isinstance(t, str) and (t.startswith("s_cselect") or (open_ and t.startswith("s_mov"))): R[-1].append(x)
        else:
            R.append([x]); open_ = isinstance(t, str) and t.startswith("s_cmp")
    return R

def setup3(o):
    L = []; e = L.append
    e(f"s_lshr_b32 s{S_T2}, s2, 3")
    e(f"s_lshl_b32 s{S_KVO}, s{S_T2}, 7")
    e(f"s_mul_i32 s{S_T2}, s{S_T2}, {64*1152}")
    e(f"s_and_b32 s{S_ONES}, s2, 7")
    e(f"s_mul_i32 s{S_N}, s{S_ONES}, 144")
    e(f"s_add_u32 s{S_T2}, s{S_T2}, s{S_N}")
    e(f"s_sub_u32 s{S_T2}, s{S_T2}, 9216")
    e(f"s_mul_i32 s{S_N}, s{S_ONES}, {72*4096}")
    e(f"s_add_u32 s{S_KVO}, s{S_KVO}, s{S_N}")
    e(f"s_add_u32 s{S_KVO}, s{S_KVO}, {KVT_OFF}")
    e(f"s_mul_i32 s{S_N}, s{S_W}, 77")
    e(f"s_lshl4_add_u32 s{S_KM}, s{S_N}, {KSTG}")
    for V, add in ((V_K1, 45), (V_K2, 64)):
        e(f"s_add_u32 s{S_N}, s{S_N}, {add}")
        e(f"v_add_u32 v{V_T}, s{S_N}, v{V_LANE}")
        e(f"v_mul_u32_u24 v{V_T2}, 898, v{V_T}")
        e(f"v_lshrrev_b32 v{V_T2}, 16, v{V_T2}")
        e(f"v_mul_u32_u24 v{V}, 73, v{V_T2}")
        e(f"v_sub_u32 v{V_T}, v{V_T}, v{V}")
        e(f"v_mul_u32_u24 v{V}, 9216, v{V_T2}")
        e(f"v_lshl_add_u32 v{V}, v{V_T}, 4, v{V}")
        e(f"v_mul_u32_u24 v{V_T}, 57, v{V_T}")
        e(f"v_lshrrev_b32 v{V_T}, 9, v{V_T}")
        e(f"v_mul_u32_u24 v{V_T}, 1008, v{V_T}")
        e(f"v_add3_u32 v{V}, v{V}, v{V_T}, s{S_T2}")
    e(f"s_min_u32 s{S_N}, s{S_W}, 4")
    e(f"s_lshl2_add_u32 s{S_N}, s{S_W}, s{S_N}")
    e(f"s_sub_u32 s{S_T2}, 4, s{S_MH}")
    e(f"v_lshrrev_b32 v{V_T}, 3, v{V_LANE}")
    e(f"v_sub_u32 v{V_KST}, s{S_T2}, v{V_T}")
    e(f"v_and_b32 v{V_KST}, 0x80000000, v{V_KST}")
    e(f"v_add_u32 v{V_T}, s{S_N}, v{V_T}")
    e(f"v_and_b32 v{V_T2}, 7, v{V_LANE}")
    e(f"v_lshl_or_b32 v{V_KST}, v{V_T}, 13, v{V_KST}")
    e(f"v_lshl_or_b32 v{V_KST}, v{V_T2}, 4, v{V_KST}")
    e(f"v_mul_u32_u24 v{V_KG}, 1168, v{V_T2}")
    e(f"v_lshl_add_u32 v{V_KG}, v{V_T}, 2, v{V_KG}")
    e(f"v_add_u32 v{V_KG}, {KSTG - 720}, v{V_KG}")
    if "st" not in o: e(f"s_lshl3_add_u32 s{S_N}, s{S_PART}, s{S_W}")
    if "st" not in o: e(f"s_mul_i32 s{S_N}, s{S_N}, 11")
    if "st" not in o: e(f"v_add_u32 v{V_KFT}, s{S_N}, v{V_LANE}")
    if "st" not in o: e(f"v_min_u32 v{V_KFT}, 255, v{V_KFT}")
    if "st" not in o: e(f"s_lshl_b32 s{S_N}, s{S_G}, 8")
    if "st" not in o: e(f"v_add_lshl_u32 v{V_KFT}, v{V_KFT}, s{S_N}, 7")
    if "st" not in o: e(f"s_lshr_b32 s{S_N}, s2, 3")
    if "st" not in o: e(f"s_lshl3_add_u32 s{S_N}, s{S_N}, s{S_W}")
    if "st" not in o: e(f"s_mul_i32 s{S_N}, s{S_N}, 72")
    if "st" not in o: e(f"s_add_u32 s{S_N}, s{S_N}, s{S_ONES}")
    if "st" not in o: e(f"v_bfe_u32 v{V_T}, v{V_LANE}, 1, 3")
    if "st" not in o: e(f"v_lshl_add_u32 v{V_T}, v{V_T}, 3, v{V_T}")
    if "st" not in o: e(f"v_and_b32 v{V_KT}, 1, v{V_LANE}")
    if "st" not in o: e(f"v_add3_u32 v{V_KT}, v{V_KT}, v{V_T}, s{S_N}")
    if "st" not in o: e(f"v_lshlrev_b32 v{V_KT}, 7, v{V_KT}")
    e(f"s_mov_b32 s{S_INFO}, 0")
    for p_, job in enumerate(JOBS):
        a0 = job[0][0]; l0 = job[0][1] - job[0][0]
        a1 = job[1][0] - l0 if len(job) > 1 else a0
        n = sum(b - a for a, b in job)
        e(f"s_cmp_eq_u32 s{S_PART}, {p_}")
        e(f"s_cselect_b32 s{S_INFO}, {a0 | (l0 << 8) | (a1 << 16) | (n << 24)}, s{S_INFO}")
    e(f"s_bfe_u32 s{S_N}, s{S_INFO}, {8 | (8 << 16)}")
    e(f"s_bfe_u32 s{S_T2}, s{S_INFO}, {16 | (8 << 16)}")
    e(f"s_and_b32 s{S_ONES}, s{S_INFO}, 255")
    e(f"s_add_u32 s{S_IB}, s{S_W}, 8")
    e(f"s_cmp_lt_u32 s{S_W}, s{S_N}")
    e(f"s_cselect_b32 s{S_TA}, s{S_ONES}, s{S_T2}")
    e(f"s_cmp_lt_u32 s{S_IB}, s{S_N}")
    e(f"s_cselect_b32 s{S_TB}, s{S_ONES}, s{S_T2}")
    e(f"s_add_u32 s{S_TA}, s{S_TA}, s{S_W}")
    e(f"s_add_u32 s{S_TB}, s{S_TB}, s{S_IB}")
    e(f"s_lshr_b32 s{S_INFO}, s{S_INFO}, 24")
    e(f"s_cmp_lt_u32 s{S_IB}, s{S_INFO}")
    e(f"s_cselect_b32 s{S_BM}, 0xffff0000, 0")
    e(f"s_cselect_b32 s{S_TB}, s{S_TB}, s{S_TA}")
    e(f"s_lshr_b32 s{S_N}, s{S_G}, 3")
    e(f"s_add_u32 s{S_N}, s{S_N}, 36")
    e(f"s_sub_u32 s{S_T2}, s{S_N}, s{S_TB}")
    e(f"s_sub_u32 s{S_N}, s{S_N}, s{S_TA}")
    for r in (S_N, S_T2):
        e(f"s_mul_i32 s{S_ONES}, s{r}, 57")
        e(f"s_lshr_b32 s{S_ONES}, s{S_ONES}, 9")
        e(f"s_mul_i32 s{S_ONES}, s{S_ONES}, 9")
        e(f"s_sub_u32 s{r}, s{r}, s{S_ONES}")
    e(f"s_min_u32 s{S_NX}, s{S_N}, s{S_T2}")
    e(f"s_max_u32 s{S_NY}, s{S_N}, s{S_T2}")
    e(f"s_cmp_gt_u32 s{S_N}, s{S_T2}")
    e(f"s_cselect_b32 s{S_ONES}, s{S_TB}, s{S_TA}")
    e(f"s_cselect_b32 s{S_TB}, s{S_TA}, s{S_TB}")
    e(f"s_mov_b32 s{S_TA}, s{S_ONES}")
    e(f"s_cselect_b32 s{S_IA}, s{S_IB}, s{S_W}")
    e(f"s_cselect_b32 s{S_IB}, s{S_W}, s{S_IB}")
    e(f"v_mul_u32_u24 v{V_T}, 1152, v{V_LANE}")
    e(f"s_mul_i32 s{S_N}, s{S_TA}, {64*1152}")
    e(f"s_lshl4_add_u32 s{S_N}, s{S_G}, s{S_N}")
    e(f"s_cmp_eq_u32 s{S_PART}, 3")
    e(f"s_cselect_b32 s{S_T2}, 0x80000000, 0")
    e(f"s_or_b32 s{S_N}, s{S_N}, s{S_T2}")
    e(f"v_add_u32 v{V_XA}, s{S_N}, v{V_T}")
    e(f"s_mul_i32 s{S_N}, s{S_TB}, {64*1152}")
    e(f"s_lshl4_add_u32 s{S_N}, s{S_G}, s{S_N}")
    e(f"s_andn2_b32 s{S_T2}, 0x80000000, s{S_BM}")
    e(f"s_or_b32 s{S_N}, s{S_N}, s{S_T2}")
    e(f"v_add_u32 v{V_XB}, s{S_N}, v{V_T}")
    e(f"s_lshr_b32 s{S_INFO}, s2, 3")
    e(f"s_mul_i32 s{S_N}, s{S_PART}, 9")
    e(f"s_sub_u32 s{S_INFO}, s{S_INFO}, s{S_N}")
    e(f"s_lshl_b32 s{S_N}, s{S_INFO}, 1")
    e(f"s_lshr_b32 s{S_ONES}, 0x24924, s{S_N}")
    e(f"s_and_b32 s{S_ONES}, s{S_ONES}, 3")
    return atoms(L)

def stage_items(sr, off, tag, touch=None):
    ld = lambda v: (f"buffer_load_dwordx4 v{v}, s[{sr}:{sr+3}], 0 offen lds", tag)
    tc = lambda v: [f"buffer_load_dword v{V_DUM}, v{v}, s[{touch}:{touch+3}], 0 offen"] if touch else []
    R = [[f"s_add_u32 m0, s{S_KM}, {off}", "s_nop 0", ld(V_K1)]]
    if touch: R.append(tc(V_K1))
    R.append([f"s_add_u32 m0, s{S_KM}, {off + 1024}", "s_mov_b64 exec, 0x1fff", ld(V_K2)] + tc(V_K2) + ["s_mov_b64 exec, -1"])
    return R

def cold_items(m=15):
    R = stage_items(S_K, 0, "kst", S_V if m & 2 else None) if m & 1 else []
    if m & 4: R.append([f"s_add_u32 s{S_N}, s{S_COL}, s{S_ROW[8]}",
              f"buffer_load_dword v{V_DUM}, v{V_O2}, s[{S_W2}:{S_W2+3}], s{S_N} offen"])
    if m & 8: R.append([f"s_lshl_b32 s{S_N}, s{S_G}, 15",
              f"buffer_load_dword v{V_DUM}, v{V_KFT}, s[{S_KF}:{S_KF+3}], s{S_N} offen"])
    return R

def touches(o, A=S_N, B=S_T2):
    m = o.get("em", 7)
    L = [f"s_lshr_b32 s{A}, s2, 3", f"s_lshl3_add_u32 s{A}, s{A}, s{S_W}", f"s_mul_i32 s{A}, s{A}, 72",
         f"s_and_b32 s{B}, s2, 7", f"s_add_u32 s{A}, s{A}, s{B}", f"s_lshl_b32 s{A}, s{A}, 7",
         f"v_bfe_u32 v{V_T}, v{V_LANE}, 1, 3", f"v_lshl_add_u32 v{V_T}, v{V_T}, 3, v{V_T}", f"v_and_b32 v{V_KFT}, 1, v{V_LANE}",
         f"v_add_lshl_u32 v{V_T}, v{V_T}, v{V_KFT}, 7",
         f"s_lshl3_add_u32 s{B}, s{S_PART}, s{S_W}", f"s_mul_i32 s{B}, s{B}, 11",
         f"v_add_u32 v{V_KFT}, s{B}, v{V_LANE}", f"v_min_u32 v{V_KFT}, 255, v{V_KFT}", f"v_lshlrev_b32 v{V_KFT}, 7, v{V_KFT}",
         f"s_lshl_b32 s{B}, s{S_G}, 15",
         "s_mov_b64 exec, 0xffff"]
    if m & 1: L.append(f"buffer_load_dword v{V_DUM}, v{V_T}, s[{S_K}:{S_K+3}], s{A} offen")
    if m & 2: L.append(f"buffer_load_dword v{V_DUM}, v{V_T}, s[{S_V}:{S_V+3}], s{A} offen")
    L.append("s_mov_b64 exec, 0x7ff")
    if m & 4: L.append(f"buffer_load_dword v{V_DUM}, v{V_KFT}, s[{S_KF}:{S_KF+3}], s{B} offen")
    L.append("s_mov_b64 exec, -1")
    return L

def stouch_setup():
    return [f"s_lshr_b32 s{S_KO}, s2, 3", f"s_lshl3_add_u32 s{S_KO}, s{S_KO}, s{S_W}", f"s_mul_i32 s{S_KO}, s{S_KO}, 72",
            f"s_and_b32 s{S_FO}, s2, 7", f"s_add_u32 s{S_KO}, s{S_KO}, s{S_FO}", f"s_lshl_b32 s{S_KO}, s{S_KO}, 7",
            f"s_lshl3_add_u32 s{S_FO}, s{S_PART}, s{S_W}", f"s_mul_i32 s{S_FO}, s{S_FO}, 11", f"s_min_u32 s{S_FO}, s{S_FO}, 245",
            f"s_lshl_b32 s{S_DUM}, s{S_G}, 8", f"s_add_u32 s{S_FO}, s{S_FO}, s{S_DUM}", f"s_lshl_b32 s{S_FO}, s{S_FO}, 7"]

def stouch(o, k):
    ld = lambda sr, so, off: f"s_buffer_load_dword s{S_DUM}, s[{sr}:{sr+3}], s{so} offset:{off}"
    if k == "F": return [ld(S_KF, S_FO, 128*i) for i in range(11)]
    return [ld(sr, S_KO, 1152*r + 128*h) for r in range(8) for h in o.get("sth", (0, 1)) for sr in (S_K, S_V)]

def place(items, j0, j1, work):
    for i, x in enumerate(items): work.setdefault(4*(j0 + (i*(j1 - j0)) // len(items)) - 2, []).insert(0, x)

def early_items(o):
    m = o.get("em", 7)
    K = sum(stage_items(S_K, 0, None), []) if m & 1 else []
    if o.get("vt", 1):
        V = [f"s_lshr_b32 s{S_N}, s2, 3", f"s_lshl3_add_u32 s{S_N}, s{S_N}, s{S_W}", f"s_mul_i32 s{S_N}, s{S_N}, 72",
             f"s_and_b32 s{S_T2}, s2, 7", f"s_add_u32 s{S_N}, s{S_N}, s{S_T2}", f"s_lshl_b32 s{S_N}, s{S_N}, 7",
             f"v_bfe_u32 v{V_T}, v{V_LANE}, 1, 3", f"v_mul_u32_u24 v{V_T}, 9, v{V_T}", f"v_and_b32 v{V_T2}, 1, v{V_LANE}",
             f"v_add_lshl_u32 v{V_T}, v{V_T}, v{V_T2}, 7", "s_mov_b64 exec, 0xffff",
             f"buffer_load_dword v{V_DUM}, v{V_T}, s[{S_V}:{S_V+3}], s{S_N} offen", "s_mov_b64 exec, -1"]
    else:
        V = [f"buffer_load_dword v{V_DUM}, v{V_K1}, s[{S_V}:{S_V+3}], 0 offen", "s_mov_b64 exec, 0x1fff",
             f"buffer_load_dword v{V_DUM}, v{V_K2}, s[{S_V}:{S_V+3}], 0 offen", "s_mov_b64 exec, -1"]
    F = sum(cold_items(8), [])
    return [K, V if m & 2 else [], F if m & 4 else []]

def kv_compute(g):
    L = [lambda: g.wait(vm=["sh"])]; e = L.append
    up = lambda d, r, h: f"v_and_b32 v{d}, 0xffff0000, v{r}" if h else f"v_lshlrev_b32 v{d}, 16, v{r}"
    if g.o.get("kf", 1):
        U = [52, 53, 54, 55]
        for h in range(2):
            for j in range(4): e(up(KC + j, SH + 2*h + j//2, j % 2))
            e(up(U[0], KR, h))
            for i in range(11):
                if i < 10: e(up(U[(i + 1) % 2], KR + i + 1, h))
                for j in range(4):
                    t = i - 3 + j
                    if 0 <= t < 8: e(f"{'v_mul_f32' if j == 3 else 'v_fmac_f32'} v{KA+t}, v{KC+j}, v{U[i % 2]}")
            for t0 in (0, 4):
                for t in range(t0, t0 + 4): e(up(U[t % 4], VR + t, h))
                for t in range(t0, t0 + 4): e(f"v_mul_f32 v{KA+t}, v{KA+t}, v{U[t % 4]}")
            O = KA if h else PKR + 4
            for t in range(4): e(f"v_cvt_pk_bf16_f32 v{O+t}, v{KA+2*t}, v{KA+2*t+1}")
        return L
    for h in range(2):
        for j in range(4):
            w = SH + 2*h + j//2
            if h == 0: e(f"v_lshrrev_b32 v{KC+j}, 16, v{w}" if j % 2 else f"v_and_b32 v{KC+j}, 0xffff, v{w}")
            else: e(f"v_and_b32 v{KC+j}, 0xffff0000, v{w}" if j % 2 else f"v_lshlrev_b32 v{KC+j}, 16, v{w}")
        for j in (3, 2, 1, 0):
            for t in range(8):
                if j == 3: e(f"v_dot2_f32_bf16 v{KA+t}, v{KR+t+3-j}, v{KC+j}, 0")
                else: e(f"v_dot2c_f32_bf16 v{KA+t}, v{KR+t+3-j}, v{KC+j}")
        for t0 in (0, 4):
            for t in range(t0, t0 + 4):
                e(f"v_and_b32 v{KC+t%4}, 0xffff0000, v{VR+t}" if h else f"v_lshlrev_b32 v{KC+t%4}, 16, v{VR+t}")
            for t in range(t0, t0 + 4): e(f"v_mul_f32 v{KA+t}, v{KA+t}, v{KC+t%4}")
        O = KA if h else PKR + 4
        for t in range(4): e(f"v_cvt_pk_bf16_f32 v{O+t}, v{KA+2*t}, v{KA+2*t+1}")
    return L

def kv_store():
    return [[(f"buffer_store_dwordx4 v[{PKR+4}:{PKR+7}], v{V_KST}, s[{S_WS}:{S_WS+3}], s{S_KVO} offen sc1", "kv0"),
             f"s_add_u32 s{S_KVO}, s{S_KVO}, 4096"],
            [(f"buffer_store_dwordx4 v[{KA}:{KA+3}], v{V_KST}, s[{S_WS}:{S_WS+3}], s{S_KVO} offen sc1", "kv1")]]

def setup4(o):
    L = []; e = L.append
    A, B = S_GC, S_GC + 1
    e(f"v_bfrev_b32 v{V_OOB}, 1")
    e(f"s_and_b32 s{A}, s2, 7")
    e(f"v_and_b32 v{V_L4}, 31, v{V_LANE}")
    e(f"v_lshl_add_u32 v{V_L4}, v{V_L4}, 3, s{A}")
    e(f"s_cmp_eq_u32 s{S_W}, 0")
    e(f"s_cselect_b32 s{A}, {RDY_OFF}, s{S_LO}")
    e(f"s_cselect_b32 s{S_ONES}, " + ("32, 0" if o.get("xe", 0) else f"s{S_TOK}, 0"))
    e(f"v_lshl_add_u32 v{V_L4}, v{V_L4}, 7, s{A}")
    e(f"s_mul_i32 s{S_H2}, s{S_W}, {WSTR}")
    e(f"s_lshl3_add_u32 s{S_CH}, s{S_G}, s{S_W}")
    e(f"s_lshl_b32 s{S_CH}, s{S_CH}, 12")
    e(f"v_and_b32 v{V_CL}, v{V_OOB}, v{V_XA}")
    e(f"v_lshl_or_b32 v{V_CL}, v{V_LANE}, 4, v{V_CL}")
    e(f"v_lshl_add_u32 v{V_YW}, v{V_LANE}, 2, s{S_H2}")
    e(f"s_add_u32 s{A}, s{S_H2}, 4608")
    e(f"v_lshl_add_u32 v{V_KV}, v{V_LANE}, 1, s{A}")
    e(f"v_lshrrev_b32 v{V_T2}, 4, v{V_LANE}")
    e(f"v_bfe_u32 v{V_AF}, v{V_LANE}, 2, 2")
    e(f"v_lshl_add_u32 v{V_T2}, v{V_T2}, 3, v{V_AF}")
    e(f"v_and_b32 v{V_BF}, 3, v{V_LANE}")
    e(f"v_add_u32 v{V_AF}, v{V_T2}, v{V_BF}")
    e(f"s_add_u32 s{A}, s{S_H2}, {256 - 24}")
    e(f"v_lshl_add_u32 v{V_AF}, v{V_AF}, 3, s{A}")
    e(f"v_lshlrev_b32 v{V_BF}, 2, v{V_BF}")
    e(f"v_sub_u32 v{V_BF}, v{V_BF}, v{V_T2}")
    e(f"s_add_u32 s{A}, s{S_H2}, {4608 + 24 - 32}")
    e(f"v_lshl_add_u32 v{V_BF}, v{V_BF}, 3, s{A}")
    e(f"s_cmp_eq_u32 s{S_MH}, 0")
    e(f"s_cselect_b64 s[{S_DR}:{S_DR+1}], s[{S_DR}:{S_DR+1}], s[{S_DR+2}:{S_DR+3}]")
    e(f"s_lshl_b32 s{A}, s{S_QW}, 4")
    e(f"s_lshr_b64 s[{S_DR}:{S_DR+1}], s[{S_DR}:{S_DR+1}], s{A}")
    e(f"s_and_b32 s{S_D}, s{S_DR}, 0xffff")
    e(f"s_lshl_b32 s{A}, s{S_TA}, 10")
    e(f"v_add_u32 v{V_RA}, s{A}, v{V_CL}")
    e(f"v_ashrrev_i32 v{V_SA}, 1, v{V_RA}")
    e(f"s_lshl_b32 s{A}, s{S_TB}, 10")
    e(f"s_andn2_b32 s{B}, 0x80000000, s{S_BM}")
    e(f"s_or_b32 s{A}, s{A}, s{B}")
    e(f"v_lshl_add_u32 v{V_RB}, v{V_LANE}, 4, s{A}")
    e(f"v_ashrrev_i32 v{V_SB}, 1, v{V_RB}")
    e(f"s_sub_u32 s{A}, s{S_TB}, s{S_TA}")
    e(f"v_bfe_u32 v{V_P}, v{V_LANE}, 4, 1")
    e(f"v_mul_i32_i24 v{V_FA}, s{A}, v{V_P}")
    e(f"v_add_u32 v{V_FA}, s{S_TA}, v{V_FA}")
    if o.get("xe", 0):
        e(f"v_mul_u32_u24 v{V_RDY}, 57, v{V_FA}")
        e(f"v_lshrrev_b32 v{V_RDY}, 9, v{V_RDY}")
        e(f"v_mul_u32_u24 v{V_RDY}, 9, v{V_RDY}")
        e(f"v_sub_u32 v{V_RDY}, v{V_FA}, v{V_RDY}")
        e(f"v_cmp_gt_u32 vcc, s{S_ONES}, v{V_LANE}")
    e(f"v_mul_u32_u24 v{V_FA}, {9*256}, v{V_FA}")
    if o.get("xe", 0):
        e(f"v_lshl_add_u32 v{V_RDY}, v{V_RDY}, 8, v{V_FA}")
        e(f"v_and_b32 v{V_T2}, 7, v{V_LANE}")
        e(f"v_lshl_add_u32 v{V_RDY}, v{V_T2}, 2, v{V_RDY}")
        e(f"v_add_u32 v{V_RDY}, {FLAG_OFF}, v{V_RDY}")
        e(f"v_cndmask_b32 v{V_L4}, v{V_RDY}, v{V_L4}, vcc")
        e(f"s_mov_b32 s{S_ONES}, s{S_TOK}")
    e(f"v_and_b32 v{V_T2}, 15, v{V_LANE}")
    e(f"s_bfe_u32 s{A}, s{S_G}, {1 | (2 << 16)}")
    e(f"s_lshl_b32 s{A}, s{A}, 6")
    e(f"v_lshl_add_u32 v{V_T2}, v{V_T2}, 2, s{A}")
    e(f"s_cmp_ge_u32 s{S_NX}, 7")
    e(f"s_cselect_b32 s{A}, 0xff, 31")
    e(f"s_cmp_ge_u32 s{S_NY}, 7")
    e(f"s_cselect_b32 s{B}, 0xff, 31")
    e(f"v_mul_u32_u24 v{V_P}, s{B}, v{V_P}")
    e(f"v_or_b32 v{V_P}, s{A}, v{V_P}")
    e(f"v_and_b32 v{V_T2}, v{V_T2}, v{V_P}")
    e(f"v_add_u32 v{V_FA}, v{V_FA}, v{V_T2}")
    e(f"s_lshr_b32 s{S_FB}, s{S_G}, 3")
    e(f"s_lshl_b32 s{S_FB}, s{S_FB}, 8")
    e(f"s_add_u32 s{S_FB}, s{S_FB}, {FLAG_OFF}")
    e(f"s_lshl_b32 s{S_GO}, s{S_G}, 15")
    for j in range(1, 8): e(f"s_add_u32 s{S_PO[j]}, s{S_GO}, {j*72*32768}")
    e(f"s_mov_b32 s{S_SO}, {STAT_OFF}")
    e(f"s_add_u32 s{S_XO}, s{S_GO}, {XT_OFF}")
    for c in range(4):
        e(f"s_lshl_b32 s{S_BV+2*c}, s{S_B2+c}, 16")
        e(f"s_and_b32 s{S_BV+2*c+1}, s{S_B2+c}, 0xffff0000")
    e(f"s_movk_i32 s{S_LO}, 0x3f80")
    e(f"s_lshl_b32 s{S_HI}, s{S_LO}, 16")
    return [[f"s_brev_b32 s{S_LO}, 1"]] + atoms(L)

def conv_loads(g):
    fl = g.o.get("hotfl", "")
    R = []
    for c in (3, 2, 1, 0):
        R.append([f"buffer_load_dwordx4 v{V_CL}, s[{S_WS}:{S_WS+3}], s{S_T} offen offset:{1024*c} {fl} lds"])
    R[0] = [f"s_add_u32 m0, s{S_H2}, 4608", f"s_add_u32 s{S_T}, s{S_CH}, {KVT_OFF}"] + R[0]
    R[3].append(f"s_add_u32 m0, s{S_H2}, 256")
    for c in range(4):
        R.append([f"buffer_load_dwordx4 v{V_CL}, s[{S_KF}:{S_KF+3}], s{S_CH} offen offset:{1024*c} lds"])
    R[7].append(f"s_mov_b32 m0, s{S_H2}")
    z = f"buffer_load_dword v{V_OOB}, s[{S_KF}:{S_KF+3}], 0 offen lds"
    R.append([z, f"s_add_u32 m0, s{S_H2}, 4352"])
    R.append([(z, "cl")])
    return R

def tile_list(g, LD, v, vs):
    fl = g.o.get("ldflags", "sc1")
    L = [f"buffer_load_dwordx2 v[{LD+32}:{LD+33}], v{vs}, s[{S_WS}:{S_WS+3}], s{S_SO} offen {g.o.get('sfl', '')}"]
    X = XA if LD == LDA else XB
    if not g.o.get("xe", 0): L.append(f"buffer_load_dwordx4 v[{X}:{X+3}], v{v}, s[{S_WS}:{S_WS+3}], s{S_XO} offen {fl}")
    for j in range(8): L.append(f"buffer_load_dwordx4 v[{LD+4*j}:{LD+4*j+3}], v{v}, s[{S_WS}:{S_WS+3}], s{S_PO[j]} offen {fl}")
    for k in g.o.get("drop", []): L[k] = "s_nop 0"
    return L

def tile_loads(g, LD, v, vs):
    for x in tile_list(g, LD, v, vs): g.e(x)

def poll(g, tag=None):
    g.e(f"buffer_load_dword v{V_P}, v{V_FA}, s[{S_WS}:{S_WS+3}], s{S_FB} offen sc1", tag)

def conv_job(g, job, name, ev):
    o = g.o
    tiles = []; allt = []
    for a, b in job:
        if a > 0: allt.append(a - 1)
        for t in range(a, b):
            tiles.append(t); allt.append(t)
    ai = {t: CACC + 4*i for i, t in enumerate(allt)}
    tmax = max(allt)
    M = []
    ch = o.get("ch", 1); NB = o.get("nb", 6)
    for n0 in range(tmax, -1, -2*ch):
        for n1 in (n0, n0 - 1):
            ns = [n for n in range(n1, n1 - 2*ch, -2) if n >= 0]
            ts = sorted(t for t in allt if (t - n1) % 2 == 0)
            if o.get("trev"): ts.reverse()
            for t in ts:
                for n in ns:
                    if t >= n: M.append((t, n, (t - n)//2))
    order = []
    for (t, n, be) in M:
        for f in (("B", n), ("A", be)):
            if f not in order: order.append(f)
    bslot = {}
    nb = 0
    for f in order:
        if f[0] == "B":
            bslot[f[1]] = BB + 4*(nb % NB); nb += 1
    lastuse = {}
    for i, (t, n, be) in enumerate(M): lastuse[n] = i
    bl = [f[1] for f in order if f[0] == "B"]
    def reads(f):
        if f[0] == "A":
            r = AF + 4*f[1]; off = 256*f[1]
            return [f"ds_read_b64_tr_b16 v[{r}:{r+1}], v{V_AF} offset:{off}",
                    f"ds_read_b64_tr_b16 v[{r+2}:{r+3}], v{V_AF} offset:{off+32}"]
        r = bslot[f[1]]; off = 128*f[1] + 32
        return [f"ds_read_b64_tr_b16 v[{r}:{r+1}], v{V_BF} offset:{off}",
                f"ds_read_b64_tr_b16 v[{r+2}:{r+3}], v{V_BF} offset:{off-32}"]
    issued = 0
    fu = {}
    for i, (t, n, be) in enumerate(M):
        fu.setdefault(("B", n), i); fu.setdefault(("A", be), i)
    MAXF = o.get("ahead", 6)
    started = set()
    waited = -1
    for i, (t, n, be) in enumerate(M):
        need = max(order.index(("B", n)), order.index(("A", be)))
        nr = 0
        while issued < 2*len(order) and issued // 2 <= max(need, waited) + MAXF:
            f = order[issued // 2]
            if "la" in o and i and not (nr < 1 or fu[f] <= i or (nr < 2 and fu[f] <= i + o["la"])): break
            if f[0] == "B":
                k = bl.index(f[1])
                if k >= NB and lastuse[bl[k - NB]] >= i:
                    break
            g.e(reads(f)[issued % 2])
            issued += 1; nr += 1
        assert issued // 2 > need
        for k in (i, i - len(M)):
            for f in ev.get(k, []): f(name)
        if need > waited:
            g.e(f"s_waitcnt lgkmcnt({min(15, issued - 2 - 2*need)})")
            waited = need
        a = ai[t]; bs = bslot[n]; af = AF + 4*be
        c = f"v[{a}:{a+3}]" if t in started else "0"
        started.add(t)
        g.e(f"v_mfma_f32_16x16x32_bf16 v[{a}:{a+3}], v[{bs}:{bs+3}], v[{af}:{af+3}], {c}")
    KVV = 50
    for i, t in enumerate(tiles):
        g.e(f"ds_read_u16 v{AF+40+i}, v{V_KV} offset:{128*t}")
    eo = o.get("eo", 1)
    if not eo: ev["end"][0](name)
    else:
        for f in ev.get("e0", []): f(name)
        g.e("s_nop 2")
    H2 = AF; H1 = AF + 12; Y = AF + 24
    idx = {t: i for i, t in enumerate(allt)}
    m = "row_mask:0xf bank_mask:0xf"
    def level(dst, src, zc, ts):
        for t in ts:
            if t in tiles and t > 0:
                g.e(f"v_add_f32 v{dst+idx[t]}, v{src(t-1)}, v{ai[t]+zc} wave_ror:1 row_mask:0x1 bank_mask:0x1")
        for t in ts:
            bc = "" if (t in tiles and t > 0) else " bound_ctrl:0"
            g.e(f"v_add_f32 v{dst+idx[t]}, v{src(t)}, v{ai[t]+zc} wave_shr:1 {m}{bc}")
    level(H2, lambda t: ai[t] + 3, 2, allt)
    g.e("s_waitcnt lgkmcnt(0)")
    for i, t in enumerate(tiles):
        g.e(f"v_dot2c_f32_bf16 v{ai[t]}, s{S_D}, v{AF+40+i}")
    level(H1, lambda t: H2 + idx[t], 1, allt)
    level(Y, lambda t: H1 + idx[t], 0, tiles)
    for i, t in enumerate(tiles):
        g.e(f"ds_write_b32 v{V_YW}, v{Y+idx[t]} offset:{256*i}")

def fin_1(g, LD, X, R, waits):
    e = g.e
    s = R; xn = R + 8; st = LD + 32
    if waits: e("s_waitcnt vmcnt(8)")
    for c in range(4):
        e(f"v_lshlrev_b32 v{R+8+2*c}, 16, v{X+c}")
        e(f"v_and_b32 v{R+8+2*c+1}, 0xffff0000, v{X+c}")
    for c in range(8): e(f"v_add_f32 v{s+c}, s{S_BV+c}, v{R+8+c}")
    for c in range(8): e(f"v_fma_f32 v{xn+c}, v{xn+c}, v{st}, v{st+1}")
    for j in range(8):
        if waits: e(f"s_waitcnt vmcnt({7 - j})")
        for c in range(4):
            e(f"v_dot2c_f32_bf16 v{s+2*c}, s{S_LO}, v{LD+4*j+c}")
            e(f"v_dot2c_f32_bf16 v{s+2*c+1}, s{S_HI}, v{LD+4*j+c}")
    e("s_nop 2")

def fin_2(g, X, R):
    e = g.e
    s = R; xn = R + 8; y = R + 16
    for c in range(4):
        e(f"v_pk_fma_f32 v[{s+2*c}:{s+2*c+1}], v[{xn+2*c}:{xn+2*c+1}], v[{y+2*c}:{y+2*c+1}], v[{s+2*c}:{s+2*c+1}]")
    for c in range(4):
        e(f"v_cvt_pk_bf16_f32 v{X+c}, v{s+2*c}, v{s+2*c+1}")

def fin_a(g, X, si, R):
    e = g.e
    s = R; y = R + 16
    e(f"s_lshl_b32 s{S_T2}, s{si}, 8")
    e(f"v_lshl_add_u32 v{V_T}, v{V_LANE}, 2, s{S_T2}")
    for c in range(4):
        e(f"ds_read2st64_b32 v[{y+2*c}:{y+2*c+1}], v{V_T} offset0:{68*c} offset1:{68*c + 34}")

def fin_b(g, LD, X, R, waits):
    e = g.e
    s = R; xn = R + 8; y = R + 16; st = LD + 32
    if waits: e("s_waitcnt vmcnt(8)")
    for c in range(4):
        e(f"v_lshlrev_b32 v{R+8+2*c}, 16, v{X+c}")
        e(f"v_and_b32 v{R+8+2*c+1}, 0xffff0000, v{X+c}")
    for c in range(8): e(f"v_add_f32 v{s+c}, s{S_BV+c}, v{R+8+c}")
    for c in range(4):
        e(f"v_pk_fma_f32 v[{xn+2*c}:{xn+2*c+1}], v[{xn+2*c}:{xn+2*c+1}], v[{st}:{st+1}], v[{st}:{st+1}] op_sel:[0,0,1] op_sel_hi:[1,0,1]")
    e("s_waitcnt lgkmcnt(0)")
    for c in range(4):
        e(f"v_pk_fma_f32 v[{s+2*c}:{s+2*c+1}], v[{xn+2*c}:{xn+2*c+1}], v[{y+2*c}:{y+2*c+1}], v[{s+2*c}:{s+2*c+1}]")
    for j in range(8):
        if waits: e(f"s_waitcnt vmcnt({7 - j})")
        for c in range(4):
            e(f"v_dot2c_f32_bf16 v{s+2*c}, s{S_LO}, v{LD+4*j+c}")
            e(f"v_dot2c_f32_bf16 v{s+2*c+1}, s{S_HI}, v{LD+4*j+c}")
    e("s_nop 2")
    for c in range(4):
        e(f"v_cvt_pk_bf16_f32 v{X+c}, v{s+2*c}, v{s+2*c+1}")

def tail2(g, name, TX, TY, out):
    o = g.o; e = g.e
    RA, RB = CACC, CACC + 24
    e(f"s_or_b32 s{S_N}, s{S_PX}, s{S_PY}")
    e(f"s_cbranch_scc0 {name}_np")
    poll(g)
    g.lab(f"{name}_np")
    e(f"s_cmp_ge_u32 s{S_W}, {o.get('ps', 4)}")
    e(f"s_cselect_b32 s{S_T}, 1, 0")
    e(f"s_or_b32 s{S_GX}, s{S_GX}, s{S_PX}")
    e(f"s_or_b32 s{S_XM}, s{S_GX}, s{S_T}")
    e(f"s_cbranch_scc1 {name}_q1")
    fin_1(g, LDA, XA, RA, False)
    g.lab(f"{name}_q1")
    e(f"s_or_b32 s{S_GY}, s{S_GY}, s{S_PY}")
    e(f"s_cmp_eq_u32 s{S_BM}, 0")
    e(f"s_cselect_b32 s{S_T}, 1, s{S_GY}")
    e(f"s_cmp_lg_u32 s{S_T}, 0")
    e(f"s_cbranch_scc1 {name}_q2")
    fin_1(g, LDB, XB, RB, False)
    g.lab(f"{name}_q2")
    e(f"s_mov_b32 s{S_N}, {SPIN}")
    e("s_waitcnt lgkmcnt(0)")
    g.stamp()
    e("s_barrier")
    g.stamp()
    def last(nm, P, mask, T):
        e(f"s_cmp_eq_u32 s{P}, 0")
        e(f"s_cbranch_scc1 {nm}2")
        g.lab(f"{nm}lp")
        e("s_waitcnt vmcnt(0)")
        e(f"v_cmp_ne_u32 vcc, s{S_TOK}, v{V_P}")
        e(f"s_sub_u32 s{S_N}, s{S_N}, 1")
        e(f"s_cbranch_scc1 {nm}go")
        e(f"s_and_b32 s{P}, vcc_lo, {mask}")
        e(f"s_cbranch_scc0 {nm}go")
        poll(g)
        e(f"s_branch {nm}lp")
        g.lab(f"{nm}go")
        for x in T: e(x)
        g.lab(f"{nm}2")
    fin_a(g, XA, S_IA, RA)
    e(f"s_cmp_lg_u32 s{S_BM}, 0")
    e(f"s_cbranch_scc1 {name}_two")
    e(f"s_cmp_eq_u32 s{S_XM}, 0")
    e(f"s_cbranch_scc1 {name}_a3")
    last(f"{name}_a", S_PX, "0xffff", TX)
    fin_1(g, LDA, XA, RA, True)
    g.lab(f"{name}_a3")
    g.stamp()
    e("s_waitcnt lgkmcnt(0)")
    fin_2(g, XA, RA)
    out(XA, V_XA)
    finish(g)
    g.lab(f"{name}_two")
    fin_a(g, XB, S_IB, RB)
    e(f"s_cmp_lg_u32 s{S_XM}, 0")
    e(f"s_cbranch_scc1 {name}_xslow")
    g.lab(f"{name}_xback")
    e("s_waitcnt lgkmcnt(0)")
    fin_2(g, XA, RA)
    e(f"s_cmp_eq_u32 s{S_GY}, 0")
    e(f"s_cbranch_scc1 {name}_b3")
    last(f"{name}_b", S_PY, "0xffff0000", TY)
    fin_1(g, LDB, XB, RB, True)
    g.lab(f"{name}_b3")
    g.stamp()
    out(XA, V_XA)
    fin_2(g, XB, RB)
    out(XB, V_XB)
    finish(g)
    g.lab(f"{name}_xslow")
    last(f"{name}_x", S_PX, "0xffff", TX)
    e(f"s_mov_b32 s{S_N}, {SPIN}")
    e("s_waitcnt vmcnt(0)")
    fin_1(g, LDA, XA, RA, False)
    e(f"s_branch {name}_xback")

def tail(g, name):
    o = g.o; e = g.e
    def flag(n):
        for x in flag_store(g, n): g.put(x)
    out = lambda X, vx: e(f"buffer_store_dwordx4 v[{X}:{X+3}], v{vx}, s[{S_OUT}:{S_OUT+3}], 0 offen {o.get('ofl', '')}")
    TX = tile_list(g, LDA, V_RA, V_SA); TY = tile_list(g, LDB, V_RB, V_SB)
    e(f"s_cmp_eq_u32 s{S_PART}, 3")
    e(f"s_cbranch_scc1 {name}_none")
    n7 = len(g.vm) - 1 - g.vm.index(("p", 7))
    g.stamp()
    g.wait(vm=["cl"])
    g.stamp()
    def look():
        e(f"v_cmp_ne_u32 vcc, s{S_TOK}, v{V_P}")
        e(f"s_mov_b32 s{S_GX}, s{S_PX}")
        e(f"s_mov_b32 s{S_GY}, s{S_PY}")
        e(f"s_and_b32 s{S_PX}, vcc_lo, 0xffff")
        e(f"s_cselect_b32 s{S_GX}, 0, s{S_GX}")
        e(f"s_and_b32 s{S_PY}, vcc_lo, s{S_BM}")
        e(f"s_cselect_b32 s{S_GY}, 0, s{S_GY}")
    def look0(nm):
        g.wait(vm=["p0"])
        e(f"v_cmp_ne_u32 vcc, s{S_TOK}, v{V_P}")
        e(f"s_and_b32 s{S_PX}, vcc_lo, 0xffff")
        e(f"s_cselect_b32 s{S_N}, 0x80000000, 0")
        e(f"s_cselect_b64 s[{S_XM}:{S_XM+1}], 1, -1")
        e(f"v_or_b32 v{V_XO}, s{S_N}, v{V_RA}")
        e(f"v_or_b32 v{V_XS}, s{S_N}, v{V_SA}")
        e(f"s_and_b32 s{S_PY}, vcc_lo, s{S_BM}")
        e(f"s_cselect_b32 s{S_N}, 0x80000000, 0")
        e(f"s_cselect_b32 s{S_T}, 0, s{S_BM}")
        e(f"v_or_b32 v{V_YO}, s{S_N}, v{V_RB}")
        e(f"v_or_b32 v{V_YS}, s{S_N}, v{V_SB}")
        e(f"s_cmp_eq_u32 s{S_T}, 0")
        e(f"s_cselect_b64 s[{S_YM}:{S_YM+1}], 1, -1")
    cnt = [0]
    def cond(go, L):
        def f(nm):
            cnt[0] += 1
            e(f"s_cmp_eq_u32 s{go}, 0")
            e(f"s_cbranch_scc1 {nm}_k{cnt[0]}")
            for x in L: e(x)
            g.lab(f"{nm}_k{cnt[0]}")
        return f
    def masked(M, x):
        def f(nm):
            if o.get("xm", 1): e(f"s_mov_b64 exec, s[{M}:{M+1}]")
            e(x)
            if o.get("xm", 1): e("s_mov_b64 exec, -1")
        return f
    def ev0(nm):
        g.wait(vm=[("p", 7)])
        flag(7)
    def ev1(nm):
        g.wait(vm=[("p", 8)])
        g.stamp()
        flag(8)
    def ev2(nm):
        g.wait(vm=["p1"])
        g.stamp()
        look()
    def evend(nm):
        g.stamp()
        e("s_waitcnt vmcnt(0)")
        look()
        cond(S_GX, TX)(nm)
        cond(S_GY, TY)(nm)
        g.stamp()
    ev = {"end": [evend]}
    at = lambda k, f: ev.setdefault(k, []).append(f)
    l0 = o.get("l0", -999)
    if l0 < 0: look0(name)
    else: at(l0, look0)
    at(o.get("m0", 16), ev0); at(o.get("m1", 40), ev1); at(-o.get("m2", 16) or "e0", lambda nm: poll(g))
    for k, x in zip(o.get("xs", [1, 5, 10, 19, 28, 38, 48, 58, 68] if o.get("xe", 0) else [1, 2, 5, 10, 19, 28, 38, 48, 58, 68]), tile_list(g, LDA, V_XO, V_XS)): at(k, masked(S_XM, x))
    for k, x in zip(o.get("ys", [3, 14, 23, 33, 43, 53, 63, 73, 83] if o.get("xe", 0) else [4, 7, 14, 23, 33, 43, 53, 63, 73, 83]), tile_list(g, LDB, V_YO, V_YS)): at(k, masked(S_YM, x))
    if o.get("q1", 0):
        at(o.get("q1", 0), lambda nm: poll(g, "p1"))
        k = o.get("l1", 60); gs = o.get("gs", 3)
        at(k, ev2)
        for go, T in ((S_GX, TX), (S_GY, TY)):
            for c in range(0, 9, gs):
                k += o.get("ms", 2)
                at(k, cond(go, T[c:c+gs]))
    e(f"s_cmp_eq_u32 s{S_PART}, 1")
    e(f"s_cbranch_scc1 {name}_j1")
    e(f"s_cmp_eq_u32 s{S_PART}, 2")
    e(f"s_cbranch_scc1 {name}_j2")
    vm0 = list(g.vm)
    for p in range(3):
        if p: g.lab(f"{name}_j{p}")
        g.vm = list(vm0)
        conv_job(g, JOBS[p], f"{name}_c{p}", ev)
        if p < 2: e(f"s_branch {name}_cfin")
    g.lab(f"{name}_cfin")
    if o.get("eo", 1): evend(name)
    if o.get("ps", 4):
        tail2(g, name, TX, TY, out)
    else:
        e(f"s_or_b32 s{S_N}, s{S_PX}, s{S_PY}")
        e(f"s_mov_b32 s{S_N}, {SPIN}")
        e(f"s_cbranch_scc0 {name}_np")
        poll(g)
        g.lab(f"{name}_np")
        e("s_waitcnt lgkmcnt(0)")
        g.stamp()
        e("s_barrier")
        g.stamp()
        RA, RB = CACC, CACC + 24
        def last(nm, P, mask, T):
            e(f"s_cmp_eq_u32 s{P}, 0")
            e(f"s_cbranch_scc1 {nm}2")
            g.lab(f"{nm}lp")
            e("s_waitcnt vmcnt(0)")
            e(f"v_cmp_ne_u32 vcc, s{S_TOK}, v{V_P}")
            e(f"s_sub_u32 s{S_N}, s{S_N}, 1")
            e(f"s_cbranch_scc1 {nm}go")
            e(f"s_and_b32 s{P}, vcc_lo, {mask}")
            e(f"s_cbranch_scc0 {nm}go")
            poll(g)
            e(f"s_branch {nm}lp")
            g.lab(f"{nm}go")
            for x in T: e(x)
            g.lab(f"{nm}2")
        fin_a(g, XA, S_IA, RA)
        e(f"s_cmp_lg_u32 s{S_BM}, 0")
        e(f"s_cbranch_scc1 {name}_two")
        last(f"{name}_a", S_PX, "0xffff", TX)
        g.stamp()
        fin_b(g, LDA, XA, RA, True)
        out(XA, V_XA)
        finish(g)
        g.lab(f"{name}_two")
        fin_a(g, XB, S_IB, RB)
        e(f"s_or_b32 s{S_GX}, s{S_GX}, s{S_PX}")
        e(f"s_cbranch_scc1 {name}_xslow")
        g.lab(f"{name}_xback")
        fin_b(g, LDA, XA, RA, False)
        last(f"{name}_b", S_PY, "0xffff0000", TY)
        g.stamp()
        fin_b(g, LDB, XB, RB, True)
        out(XA, V_XA)
        out(XB, V_XB)
        finish(g)
        g.lab(f"{name}_xslow")
        last(f"{name}_x", S_PX, "0xffff", TX)
        e(f"s_mov_b32 s{S_N}, {SPIN}")
        e("s_waitcnt vmcnt(0)")
        e(f"s_branch {name}_xback")
    g.lab(f"{name}_none")
    e(f"s_waitcnt vmcnt({n7})")
    flag(7)
    e("s_waitcnt vmcnt(1)")
    flag(8)
    finish(g)

def gen(name, opt):
    g = G(opt); o = opt
    e = g.e
    g.NF = 5
    SM[0] = o.get("sm", 1)
    g.ool = []; g.grp = "Z"
    g.L.append(f".globl {name}\n.p2align 8\n.type {name},@function\n{name}:")
    npro = prologue(g, name)
    nm = name + "_Z"
    full = not o.get("core")
    sc = Sched(g, npro)
    sc.claim(range(11, 20), "x"); sc.claim([10], "tbl")
    for s_ in range(9): sc.hold[s_] = 10
    work = {}; inb = {}; pre = {}; post = {}; bw = {}; bv = {}; act = {}; aft = {}; hooks = {}
    add = lambda d, k, L: d.setdefault(k, []).extend(L)
    bj = lambda r: (r - 6) // 2
    xr = o.get("xr", [[8, 2], [12, 5], [16, 8], [18, 9]])
    h0 = o.get("h0", 152); hd = o.get("hd", 4); hl = o.get("hl", 2); hs = o.get("hs", 176)
    bars = set(18*N + b_ for N in range(18) for b_ in (o.get("bs", [0, 8]) if N < 17 or not full else [4, 12]))
    bars -= set(range(xr[0][0])) | set(range(h0, h0 + 4*hd + hl*hd))
    bars |= set(x[0] for x in xr) | set(o.get("xb2", [22])) | set(h0 + hd*i for i in range(5 + hl)) | set([hs]) | set(o.get("hb2", [184]))
    bars -= set(o.get("nb", []))
    bars = sorted(bars)
    nextb = lambda r, n=1: [b_ for b_ in bars if b_ > r][n - 1]
    def scatter(L, j0, nbu, lead=0):
        pos = [(j, q) for j in range(j0, j0 + nbu) for q in range(4) if seq(j)[q]]
        for k, x in enumerate(L): add(inb, pos[(k * len(pos)) // len(L)], [x])
    for x in bias_read(0): g.put(x)
    ns = 0
    for r_, c_ in enumerate(o.get("ls", [1, 1, 2])):
        add(inb, (-1, r_), [sread(0, k) for k in SO[ns:ns + c_]]); ns += c_
    scatter([sread(0, k) for k in SO[ns:]], 0, o.get("xn", 6))
    pc = 0
    for r_, c_ in xr:
        add(bw, r_, [("s", k) for k in range(4*c_)])
        add(act, r_, [lambda a_=pc, c_=c_: sc.free(range(11 + a_, 11 + c_))]); pc = c_
    stgl = o.get("stgl", 134)
    for n in range(9):
        if n < 8: add(inb, (9*n + 1, 0) if n == 7 and stgl == 134 else (9*n + o.get("bslot", 4), 2), bias_read(n + 1))
        if n: deal(gelu_list(o, n - 1), 9*n, o.get("gn", 9) if n < 8 else min(9, bj(h0 + 3*hd) - 72), work)
    if not o.get("sup", 1): spread(atoms(setup2()) + (setup3(o) if full else []), o.get("su0", 6), o.get("su1", 34), work)
    add(pre, o.get("stl", xr[1][0]), [[f"s_lshl_b32 s{S_YT}, s{S_RB}, 9", f"s_add_u32 s{S_YT}, s{S_YT}, {STAT_OFF}",
        f"buffer_store_dwordx2 v[{V_QA}:{V_QA+1}], v{V_SAD}, s[{S_WS}:{S_WS+3}], s{S_YT} offen sc1"]])
    if full:
        for k_, (r_, cs) in enumerate(o.get("xtl", [[26, [0, 1, 2]], [54, [3, 4, 5]], [90, [6, 7, 8]]])):
            assert all(bj(r_) + 2 < 18*(c_ // 2) + 16 for c_ in cs)
            def xt(k_=k_, cs=cs):
                e(f"s_cmp_eq_u32 s{S_W}, s{S_J}")
                e(f"s_cbranch_scc1 {nm}_xt{k_}")
                g.lab(f"{nm}_xt{k_}b")
                L = [f"s_and_b32 s{S_YT}, s2, 8", f"s_lshl_b32 s{S_YT}, s{S_YT}, 2", f"v_lshrrev_b32 v{V_T2}, 3, v{V_TID}", f"v_xor_b32 v{V_T2}, s{S_YT}, v{V_T2}",
                     f"v_lshl_or_b32 v{V_T2}, v{V_TID}, 11, v{V_T2}", f"v_and_b32 v{V_T2}, 0x3fff, v{V_T2}", f"v_lshlrev_b32 v{V_T2}, 4, v{V_T2}",
                     f"s_lshl_b32 s{S_YT}, s{S_RB}, 10", f"s_add_u32 s{S_YT}, s{S_YT}, {XT_OFF + 262144*cs[0]}"]
                for c_ in cs:
                    L.append(f"buffer_store_dwordx4 v[{XR+4*c_}:{XR+4*c_+3}], v{V_T2}, s[{S_WS}:{S_WS+3}], s{S_YT} offen sc1")
                    if c_ != cs[-1]: L.append(f"s_add_u32 s{S_YT}, s{S_YT}, 262144")
                g.ool += [f"{nm}_xt{k_}:"] + ["  " + x for x in L] + [f"  s_branch {nm}_xt{k_}b"]
            add(pre, r_, [[xt]])
    add(work, 60, [f"s_lshl_b32 s{S_N}, s{S_MH}, 13", f"v_lshl_add_u32 v{V_FR}, v{V_LANE}, 4, s{S_N}"])
    if full:
        if o.get("cm", 4): add(post, o.get("rcold", 134), cold_items(o.get("cm", 4)))
        add(pre, stgl, stage_items(S_K, 0, "kst") + stage_items(S_V, 9856, "stg"))
        add(bw, stgl, ["bias"])
        sc.hold[9] = 9; sc.hold[11] = 9
        add(act, stgl, [lambda: sc.claim([9, 11], "stg")])
        for r_, k_, m_ in o.get("tl", [[36, "K", 0xffff], [72, "V", 0xffff], [108, "F", 0x7ff]]):
            sr, v = {"K": (S_K, V_KT), "V": (S_V, V_KT), "F": (S_KF, V_KFT)}[k_]
            add(post if o.get("tpost") else pre, r_, [[f"s_mov_b64 exec, {m_}", f"buffer_load_dword v{V_DUM}, v{v}, s[{sr}:{sr+3}], 0 offen", "s_mov_b64 exec, -1"]])
    wt = o.get("wt", [])
    wn = -(-5184 // (128 * len(wt))) if wt else 0
    if wt: add(work, o.get("wts", 40), [f"s_and_b32 s{S_WT}, s{S_RB}, 15", f"s_lshl3_add_u32 s{S_WT}, s{S_WT}, s{S_W}", f"s_mul_i32 s{S_WT}, s{S_WT}, {wn*128}",
            f"s_mul_i32 s{S_N}, s{S_J}, {576*1152}", f"s_add_u32 s{S_WT}, s{S_WT}, s{S_N}", f"v_lshlrev_b32 v{V_T}, 7, v{V_LANE}"])
    for r_ in wt:
        it = [f"s_bfm_b64 exec, {wn}, 0", f"buffer_load_dword v{V_DUM}, v{V_T}, s[{S_W2}:{S_W2+3}], s{S_WT} offen", "s_mov_b64 exec, -1",
              f"s_add_u32 s{S_WT}, s{S_WT}, {128*wn*128}"]
        if r_ in pre and o.get("wtm", 1): pre[r_][0] = pre[r_][0][:-1] + it
        else: add(pre, r_, [it])
    for p in range(4):
        r_ = h0 + hd*p
        add(act, r_, [lambda p=p: sc.claim([2*p, 2*p + 1], "h")])
        add(aft, r_, [(f"ds_write_b128 v{V_HW}, v[{HP+8*p+4*t}:{HP+8*p+4*t+3}] offset:{16384*p + 1024*t}", ("hw", p)) for t in range(2)])
        add(bw, r_ + hd, [("hw", p)])
        ks = [k for k in SO if k // 8 == p]
        ha = o.get("ha", 0)
        add(aft, r_ + hd, [sread(1, k) for k in ks[:ha]])
        scatter([sread(1, k) for k in ks[ha:]], bj(r_ + hd) + 1, o.get("hn", hd // 2))
        add(bw, r_ + hd + hl*hd, [("s", 36 + k) for k in ks])
        add(act, r_ + hd + hl*hd, [lambda p=p: sc.free([2*p, 2*p + 1])])
    js = bj(hs)
    deal(gelu_list(o, 8), 81, js - 81, work)
    rc = min(b_ for b_ in bars if b_ >= 168 and b_ > h0 + 3*hd)
    assert bj(rc) < js
    add(act, rc, [lambda: sc.claim([8], "h")])
    add(aft, rc, [f"s_lshl_b32 s{S_N}, s{S_MH}, 12", f"s_add_u32 s{S_N}, s{S_N}, 65536", f"v_lshl_add_u32 v{V_HW}, v{V_LANE}, 4, s{S_N}",
                  f"s_lshr_b32 s{S_N}, s{S_QW}, 1", f"s_lshl_b32 s{S_N}, s{S_N}, 8", f"s_and_b32 s{S_T2}, s{S_QW}, 1", f"s_add_u32 s{S_N}, s{S_N}, s{S_T2}",
                  f"v_lshl_add_u32 v{V_T}, s{S_N}, 3, v{V_HW}"])
    add(work, 4*(js - 1) + 1, [(f"ds_write2st64_b64 v{V_T}, v[{HP+32}:{HP+33}], v[{HP+34}:{HP+35}] offset0:0 offset1:2", ("hw", 4))])
    add(bw, hs, [("hw", 4)])
    ks = [k for k in SO if k >= 32]
    scatter([sread(1, k) for k in ks], js + 1, 1)
    add(bw, nextb(hs, o.get("hl4", 2)), [("s", 36 + k) for k in ks])
    add(act, nextb(hs, o.get("hl4", 2)), [lambda: sc.free([8])])
    if full:
        rv = o.get("rv", h0); rk = o.get("rk", h0 + 2*hd)
        assert rv >= h0 and rk >= h0 + 2*hd
        add(bv, min(rv, rk), ["stg"])
        scatter([(f"ds_read_b32 v{VR+r}, v{V_KG} offset:{9856 + 1168 + 144*r}", "vr") for r in range(8)], bj(rv) + 1, o.get("vn", 1))
        scatter([(f"ds_read_b32 v{KR+r}, v{V_KG} offset:{720 + 144*r + (16 if r > 2 else 0)}", "kr") for r in range(11)], bj(rk) + 1, o.get("kn", 2))
        add(bw, nextb(rv, o.get("vl", 1)), ["vr"]); add(act, nextb(rv, o.get("vl", 1)), [lambda: sc.free([11])])
        add(bw, nextb(rk, o.get("kl", 2)), ["kr"]); add(act, nextb(rk, o.get("kl", 2)), [lambda: sc.free([9, 10])])
        add(pre, o.get("rx", h0 + hd), [[(f"buffer_load_dword v{V_TOK}, off, s[{S_DBG}:{S_DBG+3}], 0 sc1", "tok")]])
        add(pre, h0 + 3*hd, [[f"v_lshrrev_b32 v{V_T2}, 9, v{V_KST}", f"s_and_b32 s{S_T2}, s2, 7", f"s_mul_i32 s{S_T2}, s{S_T2}, 576",
            (f"buffer_load_dwordx4 v[{SH}:{SH+3}], v{V_T2}, s[{S_SH}:{S_SH+3}], s{S_T2} offen", "sh")]])
    told = set()
    def flags():
        for m in range(7):
            if ("p", m) in g.bdone and m not in told:
                told.add(m)
                for x in flag_store(g, m): g.put(x)
        if "kv1" in g.bdone and "rdy" not in told:
            told.add("rdy")
            e(f"s_lshl_b32 s{S_N}, s2, 7")
            e(f"s_add_u32 s{S_N}, s{S_N}, {RDY_OFF}")
            e(f"buffer_store_dword v{V_TOK}, v{V_L0}, s[{S_WS}:{S_WS+3}], s{S_N} offen sc1")
    def tok():
        g.wait(vm=["tok"])
        e(f"v_readfirstlane_b32 s{S_TOK}, v{V_TOK}")
        e(f"s_cmp_eq_u32 s{S_TOK}, 0")
        e(f"s_cbranch_scc1 {nm}_tok_slow")
        g.lab(f"{nm}_tok_back")
    def rdy():
        assert "rdy" in told
        g.wait(vm=["rl"])
        e(f"v_cmp_ne_u32 vcc, s{S_ONES}, v{V_RDY}")
        e(f"s_cbranch_vccnz {nm}_rdy_slow")
        g.lab(f"{nm}_rdy_back")
    ss = o.get("ss", 8)
    kvb = o.get("kvb", 1)
    def kvok(): assert "vr" in g.done and "kr" in g.done and ("hw", 4) in g.done
    if full:
        spread([kvok] + kv_compute(g), o.get("kc0", 4*js + 2), o.get("kc1", 362 + 36*kvb), work)
        spread(setup4(o), o.get("s40", 324 + 36*4 + 10), o.get("s40", 324 + 36*4 + 10) + 28, work)
        xe = o.get("xe", 0); rl = o.get("rl", 278 if xe else 310)
        if xe: add(pre, rl, [[f"buffer_load_dwordx4 v[{X}:{X+3}], v{v}, s[{S_WS}:{S_WS+3}], s{S_XO} offen sc1" for X, v in ((XA, V_RA), (XB, V_RB))]])
        add(work, 4*o.get("rlj", 128 if xe else 146), [(f"buffer_load_dword v{V_RDY}, v{V_L4}, s[{S_WS}:{S_WS+3}], 0 offen sc1", "rl")])
        add(work, 4*o.get("p0j", 155) + 1, [lambda: poll(g, "p0")])
        add(work, 640, [f"v_min_u32 v{V_L0}, 1, v{V_LANE}", f"v_lshlrev_b32 v{V_L0}, 31, v{V_L0}"])
        c0 = 606 + o.get("c0", 0)
        add(act, 310, [lambda: sc.claim(range(9), "conv")])
        spread(conv_loads(g), c0, c0 + o.get("cls", 12), work)
        add(work, 628, [flags])
        hooks.update({o.get("rt", 180): tok, rl: rdy, 318: lambda: g.wait(vm=[("p", 6)])})
    for n in range(8):
        b = 324 + 36*(n + 1)
        spread(cvt(g, n), b + 3, b + 8, work)
        s_ = o.get("ss7", 10) if full and n == 7 else ss
        add(work, b + s_, pstore(g, n))
        if full:
            if n == kvb: add(work, b + s_, sum(kv_store(), []))
            add(work, b + s_, [flags])
    stream(g, sc, bars, work, hooks, pre, post, inb, bw, bv, act, aft)
    if o.get("sp"): e("s_setprio 0")
    e("s_nop 7")
    for x in cvt(g, 8) + pstore(g, 8): g.put(x)
    if not full: finish(g)
    else:
        assert told == set(range(7)) | {"rdy"}, told
        tail(g, nm)
        g.lab(f"{nm}_rdy_slow")
        e(f"s_mov_b32 s{S_N}, {SPIN}")
        g.lab(f"{nm}_rdy_lp")
        e(f"buffer_load_dword v{V_RDY}, v{V_L4}, s[{S_WS}:{S_WS+3}], 0 offen sc1")
        e(f"s_sub_u32 s{S_N}, s{S_N}, 1")
        e("s_waitcnt vmcnt(0)")
        e(f"s_cbranch_scc1 {nm}_rdy_back")
        e(f"v_cmp_ne_u32 vcc, s{S_ONES}, v{V_RDY}")
        e(f"s_cbranch_vccnz {nm}_rdy_lp")
        e(f"s_branch {nm}_rdy_back")
        g.lab(f"{nm}_tok_slow")
        e(f"s_mov_b32 s{S_N}, {SPIN}")
        g.lab(f"{nm}_tok_lp")
        e(f"buffer_load_dword v{V_TOK}, off, s[{S_DBG}:{S_DBG+3}], 0 sc1")
        e(f"s_sub_u32 s{S_N}, s{S_N}, 1")
        e("s_waitcnt vmcnt(0)")
        e(f"s_cbranch_scc1 {nm}_tok_back")
        e(f"v_readfirstlane_b32 s{S_TOK}, v{V_TOK}")
        e(f"s_cmp_eq_u32 s{S_TOK}, 0")
        e(f"s_cbranch_scc1 {nm}_tok_lp")
        e(f"s_branch {nm}_tok_back")
    g.L += g.ool
    g.lab(f"{name}_mk")
    e(f"s_mov_b32 s{S_T}, {EPO_OFF}")
    e(f"s_load_dword s{S_TOK}, s[{S_WS}:{S_WS+1}], s{S_T}")
    e(f"v_min_u32 v{V_T}, 1, v{V_LANE}")
    e(f"v_lshlrev_b32 v{V_T}, 31, v{V_T}")
    e("s_waitcnt lgkmcnt(0)")
    e(f"s_add_u32 s{S_TOK}, s{S_TOK}, 1")
    e(f"s_addc_u32 s{S_TOK}, s{S_TOK}, 0")
    e(f"v_mov_b32 v{V_L0}, s{S_TOK}")
    e(f"buffer_store_dword v{V_L0}, v{V_T}, s[{S_DBG}:{S_DBG+3}], 0 offen sc1")
    e(f"buffer_store_dword v{V_L0}, v{V_T}, s[{S_WS}:{S_WS+3}], s{S_T} offen sc1")
    e(f"s_branch {name}_mkb")
    g.lab(f"{name}_exit")
    e("s_endpgm")
    desc = f""".amdhsa_kernel {name}
  .amdhsa_next_free_vgpr 256
  .amdhsa_next_free_sgpr {102 if o.get('stamps') else 100}
  .amdhsa_accum_offset 256
  .amdhsa_group_segment_fixed_size 0
  .amdhsa_kernarg_size 112
  .amdhsa_user_sgpr_count 2
  .amdhsa_user_sgpr_kernarg_segment_ptr 1
  .amdhsa_system_sgpr_workgroup_id_x 1
.end_amdhsa_kernel"""
    return "\n".join(g.L) + "\n", desc
```

```python
import struct, math
def f32bits(x): return struct.unpack("<I", struct.pack("<f", x))[0]

LDS_SZ = 163840
XL = 11 * 8192
KSTG = 73728
KSZ = 16384
TBL = 84128
STAMP_OFF = 32 << 20
KVT_OFF = 20 << 20
STAT_OFF = 24 << 20
FLAG_OFF = 25 << 20
RDY_OFF = 26 << 20
EPO_OFF = 27 << 20
XT_OFF = 28 << 20
JOBS = [[(0, 6), (27, 32)], [(6, 11), (22, 27)], [(11, 22)]]
WSTR = 8704
SPIN = 1 << 15

V_TID = 0; V_LANE = 1
V_TR = [2, 3, 4]
V_FR = 5; V_HW = 6; V_C1 = 7
V_O1 = 8; V_O2 = 9; V_BO = 10; V_ST = 11; V_L0 = 12
V_STAMP = 13; V_T = 14; V_T2 = 15
V_O1B = 52; V_O2B = 53; V_O1G = 54; V_O2G = 55
ACC = [16, 24]
WF = 32
WFS = [32, 36, 40, 44, 48, 52, 108]
S_KO = 35; S_FO = 1; S_DUM = 56
GT = 56; BI = 64; SP = 68; HP = 76; BIG = 112
XR = 76; LT = 112; BR = 63; V_QA = 60; V_SAD = 62; S_YT = 3; S_XO = 30
PKR = 56
V_K1 = 68; V_K2 = 69; V_KH = 69; V_HG = 55; V_DUM = 70; V_KFT = 71; V_XA = 72; V_XB = 73; V_KG = 74; V_KST = 75
XA = 64; XB = 68; V_KT = 53
VR = 76; KR = 84; SH = 96; KC = 100; KA = 104
V_FR2 = 56
V_TOK = 8; V_RDY = 60; V_L4 = 61; V_XO = 62; V_XS = 63; V_YO = 60; V_YS = 61; V_SA = 53; V_SB = 55
V_AF = 5; V_BF = 6; V_KV = 7; V_YW = 10; V_RA = 52; V_RB = 54; V_FA = 74; V_P = 75; V_CL = 110; V_OOB = 111
AF = 112; CACC = 176; BB = 224; NB = 6
LDA = 76; LDB = 16

S_TOK = 3
S_Q = 4; S_W1 = 8; S_W2 = 12; S_B1 = 16; S_DR = 20; S_WS = 24
S_J = 28; S_RB = 29; S_ROT = 30; S_W = 31; S_QW = 32; S_M0B = 33
S_GC = 34
S_N = 38; S_T = 39; S_T2 = 40
S_COL = 44
S_ROW = [16, 17, 18, 19, 36, 37, 41, 42, 43]
S_PB = 53; S_SI = 54; S_MH = 55
S_PC = 56; S_TM = 58; S_M0G = 56
S_FLG = 62; S_ONES = 63
S_K = 64; S_V = 68; S_SH = 72; S_KVO = 76
S_G = 77; S_PART = 78; S_INFO = 79
S_OUT = 80; S_KF = 84; S_DBG = 88; S_DP = 92; S_BP = 94; S_B2 = 96
S_TA = 92; S_TB = 93; S_IA = 94; S_IB = 95; S_BM = 57; S_KM = 30
S_BV = 64; S_LO = 72; S_HI = 73; S_D = 74; S_PX = 75; S_PY = 76; S_GX = 34; S_GY = 35; S_XM = 28; S_YM = 0; S_SO = 23; S_NX = 0; S_NY = 1; S_H2 = 8; S_CH = 9; S_FB = 10; S_GO = 11

S_PO = [11, 4, 5, 6, 7, 20, 21, 22]
S_WT = 35; S_KM2 = 35; S_PF = 56; V_PF = 68; TQ = 64; NP = 4

class G:
    def __init__(self, opt):
        self.L = []; self.o = opt
        self.lds = []; self.vm = []; self.done = set(); self.bdone = set()
    def e(self, s, tag=None):
        if s.endswith(" lds") and self.L[-1].split()[1:2] == ["m0,"]: self.L.append("  s_nop 0")
        self.L.append("  " + s)
        if s.startswith("ds_"): self.lds.append(tag)
        if s.startswith("buffer_") or s.startswith("global_"): self.vm.append(tag)
    def put(self, x):
        if isinstance(x, list):
            for y in x: self.put(y)
        elif callable(x): x()
        elif isinstance(x, tuple): self.e(x[0], x[1])
        else: self.e(x)
    def lab(self, s): self.L.append(s + ":")
    def _n(self, q, tags):
        idx = [i for i, t in enumerate(q) if t is not None and t in tags]
        if not idx: return None
        m = max(idx)
        for t in q[:m+1]:
            if t is not None: self.done.add(t)
        n = len(q) - 1 - m
        del q[:m+1]
        return n
    def wait(self, lds=(), vm=(), alllds=False, allvm=False):
        w = []
        if allvm:
            for t in self.vm: self.done.add(t)
            self.vm = []; w.append("vmcnt(0)")
        else:
            n = self._n(self.vm, set(vm))
            if n is not None: w.append(f"vmcnt({min(n, 63)})")
        if alllds:
            for t in self.lds: self.done.add(t)
            self.lds = []; w.append("lgkmcnt(0)")
        else:
            n = self._n(self.lds, set(lds))
            if n is not None: w.append(f"lgkmcnt({min(n, 15)})")
        if w: self.e("s_waitcnt " + " ".join(w))
    def stamp(self):
        if not self.o.get("stamps"): return
        self.e(f"s_memtime s[{S_TM}:{S_TM+1}]")
        self.e(f"s_memrealtime s[{S_TM+2}:{S_TM+3}]")
        self.e("s_mov_b32 s100, m0")
        self.e("s_waitcnt lgkmcnt(0)")
        self.e(f"s_mov_b32 m0, s{S_SI}")
        self.e(f"s_add_u32 s{S_SI}, s{S_SI}, 1")
        self.e(f"v_writelane_b32 v{V_STAMP}, s{S_TM}, m0")
        self.e(f"s_add_u32 m0, m0, 30")
        self.e(f"s_nop 0")
        self.e(f"v_writelane_b32 v{V_STAMP}, s{S_TM+2}, m0")
        self.e("s_mov_b32 m0, s100")
    def rstamp(self, lane):
        if not self.o.get("stamps"): return
        self.e(f"s_memrealtime s[{S_TM}:{S_TM+1}]")
        self.e("s_waitcnt lgkmcnt(0)")
        self.e(f"v_writelane_b32 v{V_STAMP}, s{S_TM}, {lane}")

def srd(g, s, nrec):
    g.e(f"s_mov_b32 s{s+2}, {nrec}")
    g.e(f"s_mov_b32 s{s+3}, 0x00020000")

SM = [1]
def slot(N, u):
    if N == 10 and u == 8: return 9
    if N % 2 == 0: return u
    if N == 7: return 11 + u
    if N > 8: return [13, 14, 15, 16, 17, 18, 19, 12, 11][u]
    if N < 9:
        if not SM[0]: return 11 + u
        return 10 + u if u else (9 if N == 1 else 19)
    if u == 8: return 11
    if not SM[0]: return 12 + u
    return 11 + u if u else 19

def dma(g, N, u, grp=False):
    L = [f"s_add_u32 m0, s{S_M0G if grp else S_M0B}, {slot(N, u) * 8192}"]
    if N < 9:
        L.append(f"s_add_u32 s{S_T}, s{S_COL+N}, {u*64*9216}")
        v, s = (V_O1G if grp else V_O1), S_W1
        v2 = V_O1B
    else:
        L.append(f"s_add_u32 s{S_T}, s{S_COL+N-9}, s{S_ROW[u]}")
        v, s = (V_O2G if grp else V_O2), S_W2
        v2 = V_O2B
    if g.o.get("nodma") and N: return [L]
    L.append((f"buffer_load_dwordx4 v{v}, s[{s}:{s+3}], s{S_T} offen lds", ("u", N, u)))
    if not grp: return [L]
    d2 = (f"buffer_load_dwordx4 v{v2}, s[{s}:{s+3}], s{S_T} offen offset:1024 lds", ("u", N, u))
    if g.o.get("dpair"): return [L + [d2]]
    return [L, [d2]]

def parts(N, ks):
    if N < 9: return [(ks // 2, 2*(ks % 2)), (ks // 2, 2*(ks % 2) + 1)]
    if ks < 16: return [(2*(ks // 4), ks % 4), (2*(ks // 4) + 1, ks % 4)]
    return [(8, 2*(ks - 16)), (8, 2*(ks - 16) + 1)]

def wreads(g, r):
    N, ks = r // 18, r % 18
    b = WFS[r % g.NF]
    L = []
    for h, (u, g16) in enumerate(parts(N, ks)):
        a = slot(N, u)*8192 + 2048*g16
        L.append((f"ds_read_b64_tr_b16 v[{b+2*h}:{b+2*h+1}], v{V_TR[a >> 16]} offset:{a & 0xffff}", ("w", r) if h else None))
    return L

def mfmas(g, i):
    N, ks = i // 18, i % 18
    b = WF + 4*(i % g.NF)
    L = []
    for t in range(2):
        c = ACC[N % 2] + 4*t
        f = BIG + 8*ks + 4*t
        src = f"v[{c}:{c+3}]" if ks else (f"v[{BI}:{BI+3}]" if N < 9 else "0")
        L.append(f"v_mfma_f32_16x16x32_bf16 v[{c}:{c+3}], v[{b}:{b+3}], v[{f}:{f+3}], {src}")
    return L

def sread(ph, k):
    ks, t = k // 2, k % 2
    if ph == 0:
        off = 4096*ks + 1024*t
        v = [V_FR, V_FR2, V_FR2 + 1, V_FR2 + 2][(off >> 16) + 2*(ks % 2)]
        return (f"ds_read_b128 v[{BIG+4*k}:{BIG+4*k+3}], v{v} offset:{off & 0xffff}", ("s", k))
    if ks < 16: return (f"ds_read_b128 v[{BIG+4*k}:{BIG+4*k+3}], v{V_FR} offset:{16384*(ks//4) + 2048*(ks%4) + 1024*t}", ("s", 36 + k))
    return (f"ds_read_b128 v[{BIG+4*k}:{BIG+4*k+3}], v{V_HW} offset:{2048*(ks-16) + 1024*t}", ("s", 36 + k))

def spread(items, s0, s1, work):
    n = len(items)
    for i, it in enumerate(items):
        s = s0 + (i * (s1 - s0)) // n
        work.setdefault(s, []).extend(it if isinstance(it, list) else [it])

def gelu_list(o, n):
    L = []
    A = ACC[n % 2]
    x = [A + i for i in range(8)]
    t = [GT + i for i in range(8)]
    def dst(i):
        if n == 8: return HP + 32 + i
        return HP + 8*(n // 2) + 4*(i // 2) + 2*(n % 2) + (i % 2)
    if o.get("nogelu"):
        return [f"v_cvt_pk_bf16_f32 v{dst(i)}, v{x[2*i]}, v{x[2*i+1]}" for i in range(4)]
    P = lambda r: f"v[{r}:{r+1}]"
    if o.get("pk", 0):
        sc = f"s[{S_GC}:{S_GC+1}]"
        for i in range(0, 8, 2): L.append(f"v_pk_mul_f32 {P(t[i])}, {P(x[i])}, {P(x[i])}")
        for i in range(0, 8, 2): L.append(f"v_pk_fma_f32 {P(t[i])}, {P(t[i])}, {sc}, {sc} op_sel:[0,0,1] op_sel_hi:[1,0,1]")
        for i in range(0, 8, 2): L.append(f"v_pk_mul_f32 {P(t[i])}, {P(t[i])}, {P(x[i])}")
        for i in range(8): L.append(f"v_exp_f32 v{t[i]}, v{t[i]}")
        for i in range(0, 8, 2): L.append(f"v_pk_add_f32 {P(t[i])}, {P(t[i])}, 1.0 op_sel_hi:[1,0]")
        for i in range(8): L.append(f"v_rcp_f32 v{t[i]}, v{t[i]}")
        for i in range(0, 8, 2): L.append(f"v_pk_mul_f32 {P(t[i])}, {P(t[i])}, {P(x[i])}")
    else:
        for i in range(8): L.append(f"v_mul_f32 v{t[i]}, v{x[i]}, v{x[i]}")
        for i in range(8): L.append(f"v_fma_f32 v{t[i]}, v{t[i]}, s{S_GC}, v{V_C1}")
        for i in range(8): L.append(f"v_mul_f32 v{t[i]}, v{t[i]}, v{x[i]}")
        for i in range(8): L.append(f"v_exp_f32 v{t[i]}, v{t[i]}")
        for i in range(8): L.append(f"v_add_f32 v{t[i]}, 1.0, v{t[i]}")
        for i in range(8): L.append(f"v_rcp_f32 v{t[i]}, v{t[i]}")
        for i in range(8): L.append(f"v_mul_f32 v{t[i]}, v{t[i]}, v{x[i]}")
    for i in range(4): L.append(f"v_cvt_pk_bf16_f32 v{dst(i)}, v{t[2*i]}, v{t[2*i+1]}")
    return L

def tload(g, n):
    L = [f"s_lshl_b32 s{S_T2}, s{S_COL+n}, 11", f"s_add_u32 s{S_T2}, s{S_T2}, s{S_PB}"]
    v = V_ST
    if n == 4:
        L = [f"s_lshl_b32 s{S_N}, s{S_J}, 31", f"v_or_b32 v{V_T}, s{S_N}, v{V_ST}"] + L; v = V_T
    L.append((f"buffer_load_dwordx4 v[{TQ}:{TQ+3}], v{v}, s[{S_WS}:{S_WS+3}], s{S_T2} offen {g.o.get('tfl', '')}", ("q", n)))
    return L

def fload(g, n):
    return [f"s_lshl1_add_u32 s{S_N}, s{S_COL+n}, s{S_PF}",
            (f"buffer_load_dword v{V_PF}, off, s[{S_WS}:{S_WS+3}], s{S_N} sc1", ("pf", n))]

def fcheck(g, n):
    def f():
        nm = f"{g.nm}_pf{n}"
        g.wait(vm=[("pf", n)])
        g.e(f"v_cmp_ne_u32 vcc, s{S_TOK}, v{V_PF}")
        g.e(f"s_cbranch_vccnz {nm}")
        g.lab(f"{nm}b")
        L = ([f"s_bitcmp1_b32 s{S_J}, 0", f"s_cbranch_scc1 {nm}b"] if n == 4 else []) + [
             f"s_lshl1_add_u32 s{S_N}, s{S_COL+n}, s{S_PF}", f"s_mov_b32 s{S_T2}, {SPIN}"]
        M = [f"buffer_load_dword v{V_PF}, off, s[{S_WS}:{S_WS+3}], s{S_N} sc1", f"s_sub_u32 s{S_T2}, s{S_T2}, 1", "s_waitcnt vmcnt(0)",
             f"s_cbranch_scc1 {nm}b", f"v_cmp_ne_u32 vcc, s{S_TOK}, v{V_PF}", f"s_cbranch_vccnz {nm}l", f"s_branch {nm}b"]
        g.ool += [f"{nm}:"] + ["  " + x for x in L] + [f"{nm}l:"] + ["  " + x for x in M]
    return f

def tswap(g, n):
    return [lambda: g.wait(vm=[("q", n)]), f"v_permlane16_swap_b32 v{TQ}, v{TQ+2}", f"v_permlane16_swap_b32 v{TQ+1}, v{TQ+3}"]

def cvt(g, n):
    A = ACC[(n + 9) % 2]; P = PKR + 4*(n % g.o.get("npk", 1))
    L = []
    if n >= 4:
        for i in range(4): L += [f"v_dot2c_f32_bf16 v{A+2*i}, s{S_LO}, v{TQ+i}", f"v_dot2c_f32_bf16 v{A+2*i+1}, s{S_HI}, v{TQ+i}"]
    L += [f"v_cvt_pk_bf16_f32 v{P+i}, v{A+2*i}, v{A+2*i+1}" for i in range(4)]
    L.append("s_nop 0")
    L.append(f"v_permlane16_swap_b32 v{P}, v{P+2}")
    L.append(f"v_permlane16_swap_b32 v{P+1}, v{P+3}")
    return L

def pstore(g, n):
    fl = g.o.get("stflags", "sc1")
    P = PKR + 4*(n % g.o.get("npk", 1))
    L = [f"s_lshl_b32 s{S_T2}, s{S_COL+n}, 11", f"s_add_u32 s{S_T2}, s{S_T2}, s{S_PB}"]
    st = f"buffer_store_dwordx4 v[{P}:{P+3}], v{V_ST}, s[{S_WS}:{S_WS+3}], s{S_T2} offen"
    if n > 4: L.append(f"s_add_u32 s{S_T2}, s{S_T2}, {4*72*32768}")
    if n == 4: L += [f"s_andn2_b32 s{S_N}, 1, s{S_J}", f"s_mul_i32 s{S_N}, s{S_N}, {4*72*32768}", f"s_add_u32 s{S_T2}, s{S_T2}, s{S_N}"]
    return L + [(f"{st} sc1", ("p", n))]

def flag_store(g, n):
    return [f"s_lshl1_add_u32 s{S_N}, s{S_COL+n}, s{S_FLG}",
            (f"buffer_store_dword v{V_TOK}, v{V_L0}, s[{S_WS}:{S_WS+3}], s{S_N} offen sc1", ("f", n))]

class Sched:
    def __init__(self, g, first):
        self.g = g
        A = [(N, u) for N in range(18) for u in range(9)]
        self.q = A[first:]
        self.own = {}
        for N, u in A[:first]: self.own[slot(N, u)] = (N, u)
        self.hold = {}
    def ok(self, N, u):
        s_ = slot(N, u)
        return s_ not in self.own and not (s_ in self.hold and N >= self.hold[s_])
    def claim(self, slots, nm):
        for s_ in slots:
            assert s_ not in self.own, (s_, nm, self.own[s_])
            self.own[s_] = nm
    def free(self, slots):
        for s_ in slots:
            assert isinstance(self.own[s_], str), (s_, self.own[s_])
            del self.own[s_]; self.hold.pop(s_, None)
    def release(self, i):
        for s_, x in list(self.own.items()):
            if isinstance(x, tuple):
                N, u = x
                last = max(ks for ks in range(18) if any(p[0] == u for p in parts(N, ks)))
                if 18*N + last <= i: del self.own[s_]
    def take(self, cap):
        R = []
        while self.q and len(R) < cap and self.ok(*self.q[0]):
            x = self.q.pop(0); self.own[slot(*x)] = x
            R.append(x)
        return R

def mfma(g, i, t):
    N, ks = i // 18, i % 18
    b = WFS[i % g.NF]
    c = ACC[N % 2] + 4*t
    f = BIG + 8*ks + 4*t
    src = f"v[{c}:{c+3}]" if ks else (f"v[{BI}:{BI+3}]" if N < 9 else "0")
    return f"v_mfma_f32_16x16x32_bf16 v[{c}:{c+3}], v[{b}:{b+3}], v[{f}:{f+3}], {src}"

def isvalu(x):
    t = x[0] if isinstance(x, tuple) else x
    return isinstance(t, str) and t.startswith("v_")

def seq(j):
    R = []
    for i in (2*j - 2, 2*j - 1): R.append((i, 1 - (i % 18) // 2 % 2) if i >= 0 else None)
    for i in (2*j, 2*j + 1): R.append((i, (i % 18) // 2 % 2) if i < 324 else None)
    return R
SO = [2*m[0] + m[1] for j in range(10) for m in seq(j) if m and m[0] < 18]

def stream(g, sc, bars, work, hooks, pre, post, inb, bw, bv, act, aft):
    o = g.o; D = g.NF - 2; E = D + D % 2 + 2
    i1 = 324
    first = lambda r: r - D % 2
    def need(r0):
        nx = min([first(b) for b in bars if b > r0] + [i1])
        return [("u", r // 18, p[0]) for r in range(first(r0), nx) for p in parts(r // 18, r % 18)]
    due = {}
    for b in bars:
        for t in need(b): due.setdefault(t[1:], (b - E) // 2)
    for r in range(D):
        for x in wreads(g, r): g.put(x)
        for x in inb.pop((-1, r), []): g.put(x)
    vq = []
    log = []
    for j in range(163):
        r = 2*j + E
        bar = r in bars
        tgt = o.get("tgt%d" % (1 + j // 81), o.get("tgt", 7))
        if bar:
            sc.release(2*j + 1)
            for f in act.pop(r, []): f()
            vq += pre.pop(r, [])
        X = []
        if vq: X.append(vq.pop(0))
        us = sc.take(1) if j < 162 else []
        while us and len(us) < o.get("dmax", 2) and sc.q and due[sc.q[0]] - j < tgt and sc.ok(*sc.q[0]): us += sc.take(1)
        log += [(j, u, due[u] - j) for u in us]
        if bar: vq += post.pop(r, [])
        dm = [dma(g, N, u)[0] for N, u in us]
        rr = [x for i in (2*j + D, 2*j + D + 1) if i < i1 and not o.get("noread") for x in wreads(g, i)]
        sl = dm[0][:2] if dm else []
        S = seq(j)
        def stag(m): return [("s", 2*m[0] + m[1])] if m[0] < 18 else [("s", 36 + 2*(m[0] - 162) + m[1])] if 162 <= m[0] < 180 else []
        for q, m in enumerate(S):
            tags = []
            if q == o.get("wq", 0) and j > 1:
                tags += [("w", 2*j), ("w", 2*j + 1)] + (["bias"] if j % 9 == 0 else [])
                if o.get("sw", 1): tags += [t for m2 in S if m2 for t in stag(m2)]
            if m:
                tags.append(("w", m[0]))
                tags += stag(m)
                for t in stag(m): assert t in g.lds or t in g.done, (j, t)
                if m[0] % 18 == 0: tags.append("bias")
                if o.get("sp") == 2 and q == 0: g.e("s_setprio 1")
                g.wait(lds=tags)
                if o.get("sp") == 1 and q == 0: g.e("s_setprio 1")
                if o.get("sp") == 3 and q == 0: g.e("s_setprio 0")
                if not o.get("nomfma"): g.e(mfma(g, *m))
                if o.get("sp") in (1, 2) and q == 3: g.e("s_setprio 0")
                if o.get("sp") == 3 and q == 3: g.e("s_setprio 1")
                for _ in range(2 if j == 0 else 1):
                    if rr: g.put(rr.pop(0))
                if sl: g.put(sl.pop(0))
                for x in inb.pop((j, q), []): g.put(x)
        assert not rr
        if bar:
            nd = need(r)
            assert not [t for t in nd if t[1:] in sc.q or t[1:] in us], r
            for t in bw.get(r, []) + bv.get(r, []): assert t in g.lds or t in g.vm or t in g.done, (r, t)
            g.wait(vm=nd + bv.pop(r, []), lds=bw.pop(r, []))
            if r in hooks: hooks.pop(r)()
            if r in o.get("sl", [8, 18, 26, 80, 152, 164, 180, 188, 206, 242, 278, 296, 310, 318]): g.stamp()
            if not o.get("nobar"): g.e("s_barrier")
            g.bdone = set(g.done)
        if dm:
            for x in dm[0][2:]: g.put(x)
        if bar:
            for x in aft.pop(r, []): g.put(x)
        V = [x for s_ in range(4*j - 2, 4*j + 2) for x in work.pop(s_, [])]
        if j == 162: work[4*j - 2] = V; break
        for Y in dm[1:]:
            for x in Y[:2]: g.put(x)
            for _ in range(o.get("dgap", 2)):
                if V and isvalu(V[0]): g.put(V.pop(0))
            for x in Y[2:]: g.put(x)
        k = o.get("xgap", 2)
        while k and V and isvalu(V[0]) and X:
            g.put(V.pop(0)); k -= 1
        for Y in X:
            for x in Y: g.put(x)
        for x in V: g.put(x)
    if o.get("log"): print(log)
    assert not (vq or inb or pre or post or bw or bv or act or aft or hooks), (vq, inb, pre, post, bw, bv, act, aft, hooks)
    assert not [s_ for s_ in work if s_ < 2*i1 and work[s_]], sorted(work)

def deal(items, j0, n, work):
    cost = [2 if x.startswith("v_exp") or x.startswith("v_rcp") else 1 for x in items]
    tot = sum(cost); cum = 0
    for x, c in zip(items, cost):
        work.setdefault(4*(j0 + min(n - 1, int((cum + c / 2) * n / tot))), []).append(x); cum += c

def finish(g):
    if g.o.get("stamps"):
        g.stamp()
        g.e("s_waitcnt vmcnt(0)")
        g.stamp()
        g.rstamp(63)
        g.e(f"s_lshl_b32 s{S_T}, s2, 11")
        g.e(f"s_add_u32 s{S_T}, s{S_T}, {STAMP_OFF}")
        g.e(f"v_lshlrev_b32 v{V_T}, 2, v{V_TID}")
        g.e(f"buffer_store_dword v{V_STAMP}, v{V_T}, s[{S_WS}:{S_WS+3}], s{S_T} offen")
    g.e("s_endpgm")

def bf16round(g, v):
    g.e(f"v_cvt_pk_bf16_f32 v{v}, v{v}, v{v}")
    g.e(f"v_and_b32 v{v}, 0xffff0000, v{v}")

class H:
    def __init__(self): self.L = []; self.e = self.L.append

def prologue(g, name):
    o = g.o; e = g.e; raw = lambda s_: g.L.append("  " + s_)
    full = not o.get("core")
    e("s_cmp_ge_u32 s2, 256")
    e(f"s_cbranch_scc1 {name}_exit")
    e(f"s_load_dwordx2 s[{S_Q}:{S_Q+1}], s[0:1], 0")
    if o.get("stamps"):
        e(f"s_mov_b32 s{S_SI}, 0"); e(f"v_mov_b32 v{V_STAMP}, 0")
        g.rstamp(62)
        g.stamp()
    ep = o.get("ep", 0)
    if ep:
        e(f"s_getpc_b64 s[{S_PC}:{S_PC+1}]")
        e(f"v_lshrrev_b32 v{V_T}, {ep}, v{V_TID}")
        e(f"v_lshlrev_b32 v{V_T}, 7, v{V_T}")
        raw(f"global_load_dword v{V_DUM}, v{V_T}, s[{S_PC}:{S_PC+1}] offset:128")
    KA_ = [f"s_load_dwordx2 s[{s_}:{s_+1}], s[0:1], {off}" for s_, off in ((S_W1, 56), (S_B1, 64), (S_W2, 72), (S_WS, 104), (S_K, 8), (S_V, 16),
           (S_SH, 24), (S_KF, 32), (S_DP, 40), (S_BP, 80), (S_OUT, 88), (S_DBG, 96))]
    if o.get("kae", 0):
        for x in KA_: e(x)
    e(f"s_lshr_b32 s{S_RB}, s2, 4")
    e(f"s_and_b32 s{S_T}, s2, 4")
    e(f"s_lshl2_add_u32 s{S_RB}, s{S_T}, s{S_RB}")
    e(f"v_lshrrev_b32 v{LT}, 3, v{V_TID}")
    e(f"s_and_b32 s{S_T}, s2, 8")
    e(f"s_lshl_b32 s{S_T}, s{S_T}, 2")
    e(f"v_xor_b32 v{LT}, s{S_T}, v{LT}")
    e(f"v_and_b32 v{LT+1}, 7, v{V_TID}")
    e(f"s_mul_i32 s{S_T2}, s{S_RB}, {64*1152}")
    e(f"v_lshl_add_u32 v{LT+6}, v{LT+1}, 4, s{S_T2}")
    e(f"v_mul_u32_u24 v{LT+2}, 1152, v{LT}")
    e(f"v_add_u32 v{LT+6}, v{LT+6}, v{LT+2}")
    e(f"v_cmp_gt_u32 vcc, 256, v{V_TID}")
    srd(g, S_Q, 2359296)
    e("s_waitcnt lgkmcnt(0)")
    if o.get("pst"): g.stamp()
    xl = lambda i: f"buffer_load_dwordx4 v[{XR+4*i}:{XR+4*i+3}], v{LT+6}, s[{S_Q}:{S_Q+3}], 0 offen offset:{128*i}"
    y0 = o.get("y0", 1)
    for i in range(9):
        if i == y0: e(f"s_cbranch_vccz {name}_y0")
        raw(xl(i))
    e(f"s_getpc_b64 s[{S_PC}:{S_PC+1}]")
    g.lab(f"{name}_pc")
    e(f"s_lshr_b32 s{S_T}, s2, 3")
    e(f"v_lshl_add_u32 v{V_T}, v{V_TID}, 5, s{S_T}")
    e(f"v_lshlrev_b32 v{V_T}, 7, v{V_T}")
    e(f"v_min_u32 v{V_T}, {name}_exit-{name}_pc, v{V_T}")
    raw(f"global_load_dword v{V_DUM}, v{V_T}, s[{S_PC}:{S_PC+1}]")
    g.lab(f"{name}_y0")
    if not o.get("kae", 0):
        for x in KA_: e(x)
    if o.get("pst"): g.stamp()
    h = H(); e = h.e
    e(f"v_lshrrev_b32 v{V_T}, 6, v{V_TID}")
    e(f"v_and_b32 v{V_LANE}, 63, v{V_TID}")
    e(f"v_readfirstlane_b32 s{S_W}, v{V_T}")
    e(f"s_and_b32 s{S_J}, s2, 3")
    e(f"s_bfe_u32 s{S_T}, s2, {3 | (1 << 16)}")
    e(f"s_lshl1_add_u32 s{S_J}, s{S_J}, s{S_T}")
    srd(h, S_W1, 5308416); srd(h, S_W2, 5308416); srd(h, S_B1, 9216)
    srd(h, S_WS, 268435456)
    srd(h, S_K, 2359296); srd(h, S_V, 2359296); srd(h, S_SH, 4608)
    srd(h, S_KF, 2359296); srd(h, S_OUT, 2359296); srd(h, S_DBG, 256)
    e(f"s_and_b32 s{S_QW}, s{S_W}, 3")
    e(f"s_lshr_b32 s{S_MH}, s{S_W}, 2")
    e(f"s_lshl_b32 s{S_M0B}, s{S_W}, 10")
    e(f"s_lshl2_add_u32 s{S_ROT}, s{S_T}, s{S_RB}")
    e(f"s_mul_i32 s{S_T}, s{S_ROT}, 57")
    e(f"s_lshr_b32 s{S_T}, s{S_T}, 9")
    e(f"s_mul_i32 s{S_T}, s{S_T}, 9")
    e(f"s_sub_u32 s{S_ROT}, s{S_ROT}, s{S_T}")
    e(f"s_lshl_b32 s{S_COL}, s{S_ROT}, 7")
    for u in range(1, 9):
        e(f"s_add_u32 s{S_COL+u}, s{S_COL+u-1}, 128")
        e(f"s_cmp_eq_u32 s{S_COL+u}, 1152")
        e(f"s_cselect_b32 s{S_COL+u}, 0, s{S_COL+u}")
    e(f"v_lshrrev_b32 v{LT+3}, 3, v{V_TID}")
    e(f"v_and_b32 v{LT+4}, 6, v{LT+3}")
    e(f"v_xor_b32 v{LT+4}, v{LT+4}, v{LT+1}")
    e(f"v_lshlrev_b32 v{LT+4}, 4, v{LT+4}")
    e(f"s_mul_i32 s{S_N}, s{S_J}, 1152")
    e(f"v_mul_u32_u24 v{V_O1}, 9216, v{LT+3}")
    e(f"v_add3_u32 v{V_O1}, v{V_O1}, v{LT+4}, s{S_N}")
    e(f"s_mul_i32 s{S_T}, s{S_J}, {576*1152}")
    e(f"v_mul_u32_u24 v{V_O2}, 1152, v{LT+3}")
    e(f"v_add3_u32 v{V_O2}, v{V_O2}, v{LT+4}, s{S_T}")
    e(f"s_lshl_b32 s{S_T}, s{S_QW}, 1")
    e(f"s_sub_u32 s{S_T}, s{S_T}, s{S_W}")
    e(f"s_mul_i32 s{S_T2}, s{S_T}, {8*9216}")
    e(f"v_add_u32 v{V_O1G}, s{S_T2}, v{V_O1}")
    e(f"v_add_u32 v{V_O1B}, {8*9216-1024}, v{V_O1G}")
    e(f"s_lshl_b32 s{S_M0G}, s{S_QW}, 11")
    by = o.get("by", 1)
    if by:
        e(f"v_and_b32 v{V_BO}, 255, v{V_TID}")
        e(f"v_lshl_add_u32 v{V_BO}, v{V_BO}, 3, s{S_COL}")
    else: e(f"v_lshl_add_u32 v{V_BO}, v{V_TID}, 2, s{S_COL}")
    e(f"v_subrev_u32 v{V_T}, 1152, v{V_BO}")
    e(f"v_min_u32 v{V_BO}, v{V_BO}, v{V_T}")
    e(f"v_add_u32 v{V_BO}, s{S_N}, v{V_BO}")
    e(f"v_lshrrev_b32 v{LT+8}, 4, v{V_LANE}")
    e(f"v_lshrrev_b32 v{LT+9}, 2, v{V_LANE}")
    e(f"v_lshlrev_b32 v{V_TR[0]}, 7, v{LT+9}")
    e(f"v_bfe_u32 v{LT+9}, v{V_LANE}, 3, 2")
    e(f"v_xor_b32 v{LT+9}, s{S_QW}, v{LT+9}")
    e(f"v_lshl_add_u32 v{V_TR[0]}, v{LT+9}, 5, v{V_TR[0]}")
    e(f"v_and_b32 v{LT+9}, 3, v{V_LANE}")
    e(f"v_lshl_add_u32 v{V_TR[0]}, v{LT+9}, 3, v{V_TR[0]}")
    e(f"v_add_u32 v{V_TR[1]}, 65536, v{V_TR[0]}")
    e(f"v_add_u32 v{V_TR[2]}, 131072, v{V_TR[0]}")
    e(f"s_lshl_b32 s{S_T}, s{S_MH}, 11")
    e(f"s_add_u32 s{S_T}, s{S_T}, {XL}")
    e(f"v_lshrrev_b32 v{LT+7}, 5, v{V_LANE}")
    e(f"v_mul_u32_u24 v{LT+7}, 26, v{LT+7}")
    e(f"v_and_b32 v{V_FR}, 15, v{V_LANE}")
    e(f"v_xor_b32 v{V_FR}, v{V_FR}, v{LT+7}")
    e(f"v_and_b32 v{LT+7}, 16, v{V_LANE}")
    e(f"v_lshl_add_u32 v{V_FR}, v{LT+7}, 1, v{V_FR}")
    e(f"v_lshl_add_u32 v{V_FR}, v{V_FR}, 4, s{S_T}")
    e(f"v_add_u32 v{V_FR2}, 65536, v{V_FR}")
    e(f"v_xor_b32 v{V_FR2+1}, 64, v{V_FR}")
    e(f"v_xor_b32 v{V_FR2+2}, 64, v{V_FR2}")
    e(f"v_and_b32 v{LT+9}, 1, v{V_LANE}")
    e(f"v_mul_u32_u24 v{LT+9}, 26, v{LT+9}")
    e(f"v_and_b32 v{LT+2}, 15, v{LT}")
    e(f"v_xor_b32 v{LT+2}, v{LT+2}, v{LT+9}")
    e(f"v_and_b32 v{LT+9}, 48, v{LT}")
    e(f"v_lshl_add_u32 v{LT+2}, v{LT+9}, 2, v{LT+2}")
    e(f"v_and_b32 v{LT+9}, 4, v{V_LANE}")
    e(f"v_xor_b32 v{LT+2}, v{LT+2}, v{LT+9}")
    e(f"v_lshl_add_u32 v{LT+2}, v{LT+9}, 6, v{LT+2}")
    e(f"v_lshlrev_b32 v{LT+2}, 4, v{LT+2}")
    e(f"v_and_b32 v{LT+9}, 2, v{V_LANE}")
    e(f"v_lshl_add_u32 v{LT+2}, v{LT+9}, 2, v{LT+2}")
    e(f"v_add_u32 v{LT+2}, {XL}, v{LT+2}")
    c1 = 2.0 * math.sqrt(2.0 / math.pi) * math.log2(math.e)
    e(f"v_mov_b32 v{V_C1}, 0x{f32bits(-c1):08x}")
    e(f"s_mov_b32 s{S_GC}, 0x{f32bits(-c1*0.044715):08x}")
    e(f"v_or_b32 v{V_SAD}, s{S_J}, v{LT+1}")
    e(f"v_lshlrev_b32 v{V_SAD}, 28, v{V_SAD}")
    e(f"v_lshl_add_u32 v{V_SAD}, v{LT}, 3, v{V_SAD}")
    SA, SB, QA, QB, ONE = LT+10, LT+11, V_QA, V_QA+1, LT+14
    for r in (SA, SB, QA, QB): e(f"v_mov_b32 v{r}, 0")
    e(f"v_mov_b32 v{ONE}, 0x3f803f80")
    e(f"s_lshr_b32 s{S_T}, s2, 3")
    e(f"s_mul_i32 s{S_PART}, s{S_T}, 57")
    e(f"s_lshr_b32 s{S_PART}, s{S_PART}, 9")
    e(f"s_and_b32 s{S_G}, s2, 7")
    e(f"s_sub_u32 s{S_G}, s{S_G}, s{S_PART}")
    e(f"s_mul_i32 s{S_G}, s{S_G}, 9")
    e(f"s_add_u32 s{S_G}, s{S_G}, s{S_T}")
    e(f"s_lshl_b32 s{S_T}, s{S_G}, 4")
    S1 = atoms(h.L)
    DB = [f"s_load_dwordx4 s[{S_DR}:{S_DR+3}], s[{S_DP}:{S_DP+1}], s{S_T}", f"s_load_dwordx4 s[{S_B2}:{S_B2+3}], s[{S_BP}:{S_BP+1}], s{S_T}"]
    S1.append(([] if o.get("kae", 0) else ["s_waitcnt lgkmcnt(0)"]) + DB)
    S2 = (atoms(setup2()) + (setup3(o) if full else [])) if o.get("sup", 1) else []
    e = g.e
    cnt = [0]
    def hook(L):
        cnt[0] += 1
        e(f"s_cbranch_vccnz {name}_h{cnt[0]}")
        for x in L: raw(x)
        g.lab(f"{name}_h{cnt[0]}")
    def weave(S, Hs, f0, f1):
        at = [int(len(S) * (f0 + (f1 - f0) * k / max(1, len(Hs) - 1))) for k in range(len(Hs))]
        for k in range(len(S) + 1):
            for a_, L in zip(at, Hs):
                if a_ == k: hook(L)
            if k < len(S):
                for x in S[k]: e(x)
    def gdma(u, st):
        N, u = u // 9, u % 9
        return [[f"s_add_u32 m0, s{S_M0G}, {slot(N, u) * 8192}", f"s_add_u32 s{st}, s{S_COL+N}, {u*64*9216}",
                 f"buffer_load_dwordx4 v{V_O1G}, s[{S_W1}:{S_W1+3}], s{st} offen lds"],
                [f"buffer_load_dwordx4 v{V_O1B}, s[{S_W1}:{S_W1+3}], s{st} offen offset:1024 lds"]]
    weave(S1, [[xl(i)] for i in range(y0, 9)], *o.get("wv1", [0.1, 1.0]))
    e(f"s_or_b32 s{S_T}, s2, s{S_W}")
    e(f"s_cbranch_scc0 {name}_mk")
    g.lab(f"{name}_mkb")
    if o.get("pst"): g.stamp()
    ny = o.get("ny", 1)
    H2 = sum([gdma(u, S_YT) for u in range(ny)], [])
    if by: H2[0] = [f"buffer_load_dwordx2 v[{LT+32}:{LT+33}], v{V_BO}, s[{S_B1}:{S_B1+3}], 0 offen"] + H2[0]
    else: raw(f"buffer_load_dword v{BR}, v{V_BO}, s[{S_B1}:{S_B1+3}], 0 offen")
    weave(S2, H2, *o.get("wv2", [0.0, 1.0]))
    if o.get("pst"): g.stamp()
    def stats(later):
        for i in range(9):
            e(f"s_waitcnt vmcnt({8 - i + later})")
            if i == 0 and o.get("pst"): g.stamp()
            for c in range(4):
                x = XR + 4*i + c
                e(f"v_dot2c_f32_bf16 v{SA if c%2==0 else SB}, v{x}, v{ONE}")
                e(f"v_dot2c_f32_bf16 v{QA if c%2==0 else QB}, v{x}, v{x}")
    e(f"s_cbranch_vccz {name}_sy")
    stats(2 - by)
    if not by: e("s_waitcnt vmcnt(0)")
    e(f"s_branch {name}_sj")
    g.lab(f"{name}_sy")
    stats(1 + 2*ny)
    e(f"s_waitcnt vmcnt({2*ny})")
    g.lab(f"{name}_sj")
    if o.get("pst") or o.get("ps2"): g.stamp()
    pl = o.get("pl", [-1, -1, -1, 2, 4, 6, 8, 9, 9])
    ool = []
    def pd(pos):
        us = [ny + k for k in range(len(pl)) if pl[k] == pos]
        if not us: return
        e(f"s_cbranch_vccnz {name}_p{pos + 1}")
        g.lab(f"{name}_p{pos + 1}b")
        ool.append(f"{name}_p{pos + 1}:")
        for u in us:
            for x in sum(gdma(u, S_T), []): ool.append("  " + x)
            g.vm.extend([("u", u // 9, u % 9)] * 2)
        ool.append(f"  s_branch {name}_p{pos + 1}b")
    pd(-1)
    e("s_nop 2")
    e(f"v_add_f32 v{SA}, v{SA}, v{SB}")
    e(f"v_add_f32 v{QA}, v{QA}, v{QB}")
    for dpp in ("quad_perm:[1,0,3,2]", "quad_perm:[2,3,0,1]", "row_half_mirror"):
        e("s_nop 0")
        e(f"v_add_f32 v{SA}, v{SA}, v{SA} {dpp} row_mask:0xf bank_mask:0xf")
        e(f"v_add_f32 v{QA}, v{QA}, v{QA} {dpp} row_mask:0xf bank_mask:0xf")
    inv = f"0x{f32bits(1.0/576.0):08x}"
    e(f"v_mul_f32 v{SA}, {inv}, v{SA}")
    e(f"v_mul_f32 v{QA}, {inv}, v{QA}")
    e(f"v_fma_f32 v{QA}, -v{SA}, v{SA}, v{QA}")
    e(f"v_max_f32 v{QA}, 0, v{QA}")
    bf16round(g, SA)
    bf16round(g, QA)
    e(f"v_add_f32 v{QA}, 0x{f32bits(1e-5):08x}, v{QA}")
    bf16round(g, QA)
    e(f"v_sqrt_f32 v{QA}, v{QA}")
    e("s_nop 0")
    bf16round(g, QA)
    e(f"v_rcp_f32 v{QA}, v{QA}")
    e("s_nop 0")
    e(f"v_mul_f32 v{QB}, -v{SA}, v{QA}")
    assert QA % 2 == 0
    T0 = LT + 16
    for i in range(9):
        t = T0 + 8*(i % 2)
        for c in range(4):
            x = XR + 4*i + c
            e(f"v_lshlrev_b32 v{t+2*c}, 16, v{x}")
            e(f"v_and_b32 v{t+2*c+1}, 0xffff0000, v{x}")
        for c in range(4):
            e(f"v_pk_fma_f32 v[{t+2*c}:{t+2*c+1}], v[{t+2*c}:{t+2*c+1}], v[{QA}:{QA+1}], v[{QA}:{QA+1}] op_sel:[0,0,1] op_sel_hi:[1,0,1]")
        x = 16 + 4*i
        for c in range(4): e(f"v_cvt_pk_bf16_f32 v{x+c}, v{t+2*c}, v{t+2*c+1}")
        e(f"ds_write2st64_b64 v{LT+2}, v[{x}:{x+1}], v[{x+2}:{x+3}] offset0:{16*i} offset1:{16*i+1}")
        if i == 1 and by:
            hook([f"v_lshlrev_b32 v{LT+36}, 16, v{LT+32}", f"v_and_b32 v{LT+37}, 0xffff0000, v{LT+32}", f"v_lshlrev_b32 v{LT+38}, 16, v{LT+33}",
                  f"v_and_b32 v{LT+39}, 0xffff0000, v{LT+33}", f"v_lshlrev_b32 v{V_BO}, 4, v{V_TID}", f"v_add_u32 v{V_BO}, {TBL - 4096}, v{V_BO}",
                  f"ds_write_b128 v{V_BO}, v[{LT+36}:{LT+39}]"])
        elif i == 1:
            e(f"v_lshlrev_b32 v{SA}, 16, v{BR}")
            e(f"v_and_b32 v{SB}, 0xffff0000, v{BR}")
            e(f"v_lshlrev_b32 v{V_BO}, 3, v{V_TID}")
            e(f"v_add_u32 v{V_BO}, {TBL}, v{V_BO}")
            e(f"ds_write_b64 v{V_BO}, v[{SA}:{SB}]")
        pd(i)
    if o.get("pst"): g.stamp()
    e(f"s_lshl_b32 s{S_T}, s{S_QW}, 6")
    e(f"s_add_u32 s{S_T}, s{S_T}, {TBL}")
    e(f"v_lshl_add_u32 v{V_BO}, v{LT+8}, 4, s{S_T}")
    pd(9)
    e(f"s_cbranch_vccnz {name}_pe")
    e("s_waitcnt vmcnt(0)")
    e(f"s_branch {name}_pe")
    g.L += ool
    g.lab(f"{name}_pe")
    for u in range(ny): g.done.add(("u", 0, u))
    fb = o.get("xr", [[8]])[0][0]
    g.wait(vm=[("u", 0, u) for u in range((fb + 1)//2)], alllds=True)
    g.stamp()
    e("s_barrier")
    return ny + len(pl)

def bias_read(n):
    return [(f"ds_read_b128 v[{BI}:{BI+3}], v{V_BO} offset:{256*n}", "bias")]

def setup2():
    L = []; e = L.append
    for u in range(9): e(f"s_mul_i32 s{S_ROW[u]}, s{S_COL+u}, 576")
    e(f"v_and_b32 v{V_ST}, 31, v{V_LANE}")
    e(f"v_lshlrev_b32 v{V_ST}, 4, v{V_ST}")
    e(f"v_lshrrev_b32 v{V_T}, 5, v{V_LANE}")
    e(f"v_lshl_add_u32 v{V_ST}, v{V_T}, 15, v{V_ST}")
    e(f"s_and_b32 s{S_PB}, s2, 3")
    e(f"s_mul_i32 s{S_PB}, s{S_PB}, 36")
    e(f"s_add_u32 s{S_PB}, s{S_PB}, s{S_QW}")
    e(f"s_lshl_b32 s{S_PB}, s{S_PB}, 6")
    e(f"s_add_u32 s{S_PB}, s{S_PB}, s{S_RB}")
    e(f"s_lshl1_add_u32 s{S_PB}, s{S_PB}, s{S_MH}")
    e(f"s_lshl_b32 s{S_PB}, s{S_PB}, 9")
    e(f"s_lshl_b32 s{S_N}, s{S_W}, 11")
    e(f"v_lshl_add_u32 v{V_HW}, v{V_LANE}, 4, s{S_N}")
    e(f"v_min_u32 v{V_L0}, 1, v{V_TID}")
    e(f"v_lshlrev_b32 v{V_L0}, 31, v{V_L0}")
    e(f"s_mul_i32 s{S_FLG}, s{S_RB}, 36")
    e(f"s_add_u32 s{S_FLG}, s{S_FLG}, s{S_QW}")
    e(f"s_lshl1_add_u32 s{S_FLG}, s{S_FLG}, s{S_MH}")
    e(f"s_lshl3_add_u32 s{S_FLG}, s{S_FLG}, s{S_J}")
    e(f"s_lshl2_add_u32 s{S_FLG}, s{S_FLG}, {FLAG_OFF}")
    return L

def atoms(L):
    R = []; open_ = False
    for x in L:
        t = x[0] if isinstance(x, tuple) else x
        if isinstance(t, str) and (t.startswith("s_cselect") or (open_ and t.startswith("s_mov"))): R[-1].append(x)
        else:
            R.append([x]); open_ = isinstance(t, str) and t.startswith("s_cmp")
    return R

def setup3(o):
    L = []; e = L.append
    e(f"s_lshr_b32 s{S_T2}, s2, 3")
    e(f"s_and_b32 s{S_ONES}, s2, 7")
    e(f"s_mul_i32 s{S_INFO}, s{S_T2}, 576")
    e(f"s_add_u32 s{S_INFO}, s{S_INFO}, s{S_ONES}")
    e(f"s_lshl_b32 s{S_INFO}, s{S_INFO}, 7")
    e(f"s_lshl_b32 s{S_N}, s{S_ONES}, 11")
    e(f"s_add_u32 s{S_N}, s{S_N}, s{S_T2}")
    e(f"s_lshl_b32 s{S_N}, s{S_N}, 7")
    e(f"s_and_b32 s{S_T2}, s2, 31")
    e(f"s_mul_i32 s{S_T}, s{S_T2}, {64*1152}")
    e(f"s_lshl_b32 s{S_T2}, s{S_T2}, 7")
    e(f"s_brev_b32 s{S_ONES}, 1")
    e(f"s_cmp_ge_u32 s2, 224")
    e(f"s_cselect_b32 s{S_KM2}, 1024, s{S_ONES}")
    e(f"s_cselect_b32 s{S_ONES}, {8 << 18}, s{S_ONES}")
    e(f"s_add_u32 s{S_T}, s{S_T}, s{S_KM2}")
    e(f"s_add_u32 s{S_T2}, s{S_T2}, s{S_ONES}")
    e(f"s_sub_u32 s{S_KM2}, s{S_T}, s{S_INFO}")
    e(f"s_sub_u32 s{S_T2}, s{S_T2}, s{S_N}")
    e(f"s_lshl_b32 s{S_KM}, s{S_W}, 10")
    e(f"s_mul_i32 s{S_T}, s{S_KM}, 9")
    e(f"s_add_u32 s{S_T}, s{S_T}, s{S_INFO}")
    e(f"s_add_u32 s{S_KM}, s{S_KM}, {KSTG}")
    e(f"s_mov_b32 s{S_KVO}, {KVT_OFF}")
    e(f"v_lshrrev_b32 v{V_T}, 3, v{V_LANE}")
    e(f"v_and_b32 v{V_T2}, 7, v{V_LANE}")
    e(f"v_mul_u32_u24 v{V_K1}, 1152, v{V_T}")
    e(f"v_xor_b32 v{V_KG}, s{S_W}, v{V_T2}")
    e(f"v_lshl_add_u32 v{V_K1}, v{V_KG}, 4, v{V_K1}")
    e(f"v_add_u32 v{V_K1}, s{S_T}, v{V_K1}")
    e(f"v_and_b32 v{V_T}, 3, v{V_T}")
    e(f"v_lshl_add_u32 v{V_KG}, v{V_KG}, 2, v{V_T}")
    e(f"v_lshl_add_u32 v{V_KG}, v{V_T2}, 8, v{V_KG}")
    e(f"v_bfe_i32 v{V_KFT}, v{V_LANE}, 5, 1")
    e(f"v_and_b32 v{V_KH}, 2048, v{V_KFT}")
    e(f"v_add_u32 v{V_KH}, {(KSTG - 1024) // 4}, v{V_KH}")
    e(f"v_add_lshl_u32 v{V_KG}, v{V_KG}, v{V_KH}, 2")
    e(f"v_add_u32 v{V_KH}, -1, v{V_T2}")
    e(f"v_xor_b32 v{V_KH}, v{V_KH}, v{V_T2}")
    e(f"v_and_b32 v{V_KH}, 7, v{V_KH}")
    e(f"v_lshlrev_b32 v{V_KH}, 4, v{V_KH}")
    e(f"v_xor_b32 v{V_KH}, v{V_KH}, v{V_KG}")
    e(f"v_lshl_add_u32 v{V_T}, s{S_W}, 2, v{V_T}")
    e(f"v_and_b32 v{V_KST}, s{S_T2}, v{V_KFT}")
    e(f"v_lshl_add_u32 v{V_KST}, v{V_T}, 13, v{V_KST}")
    e(f"v_lshl_add_u32 v{V_T2}, v{V_T2}, 4, s{S_N}")
    e(f"v_add_u32 v{V_KST}, v{V_KST}, v{V_T2}")
    e(f"v_and_b32 v{V_KT}, s{S_KM2}, v{V_KFT}")
    e(f"s_sub_u32 s{S_N}, s{S_INFO}, 3456")
    e(f"v_lshl_add_u32 v{V_T2}, v{V_T}, 2, s{S_N}")
    e(f"v_add_u32 v{V_KT}, v{V_KT}, v{V_T2}")
    e(f"v_lshl_add_u32 v{V_T}, v{V_T}, 1, -1")
    e(f"v_bfe_i32 v{V_T2}, v{V_LANE}, 2, 1")
    e(f"v_and_b32 v{V_T}, v{V_T}, v{V_T2}")
    e(f"v_and_b32 v{V_T2}, 7, v{V_LANE}")
    e(f"v_add_u32 v{V_T}, v{V_T}, v{V_T2}")
    e(f"v_mul_u32_u24 v{V_T}, 1152, v{V_T}")
    e(f"v_add_u32 v{V_KT}, v{V_KT}, v{V_T}")
    if "st" not in o: e(f"s_lshl3_add_u32 s{S_N}, s{S_PART}, s{S_W}")
    if "st" not in o: e(f"s_mul_i32 s{S_N}, s{S_N}, 11")
    if "st" not in o: e(f"v_add_u32 v{V_KFT}, s{S_N}, v{V_LANE}")
    if "st" not in o: e(f"v_min_u32 v{V_KFT}, 255, v{V_KFT}")
    if "st" not in o: e(f"s_lshl_b32 s{S_N}, s{S_G}, 8")
    if "st" not in o: e(f"v_add_lshl_u32 v{V_KFT}, v{V_KFT}, s{S_N}, 7")
    e(f"s_mov_b32 s{S_INFO}, 0")
    for p_, job in enumerate(JOBS):
        a0 = job[0][0]; l0 = job[0][1] - job[0][0]
        a1 = job[1][0] - l0 if len(job) > 1 else a0
        n = sum(b - a for a, b in job)
        e(f"s_cmp_eq_u32 s{S_PART}, {p_}")
        e(f"s_cselect_b32 s{S_INFO}, {a0 | (l0 << 8) | (a1 << 16) | (n << 24)}, s{S_INFO}")
    e(f"s_bfe_u32 s{S_N}, s{S_INFO}, {8 | (8 << 16)}")
    e(f"s_bfe_u32 s{S_T2}, s{S_INFO}, {16 | (8 << 16)}")
    e(f"s_and_b32 s{S_ONES}, s{S_INFO}, 255")
    e(f"s_add_u32 s{S_IB}, s{S_W}, 8")
    e(f"s_cmp_lt_u32 s{S_W}, s{S_N}")
    e(f"s_cselect_b32 s{S_TA}, s{S_ONES}, s{S_T2}")
    e(f"s_cmp_lt_u32 s{S_IB}, s{S_N}")
    e(f"s_cselect_b32 s{S_TB}, s{S_ONES}, s{S_T2}")
    e(f"s_add_u32 s{S_TA}, s{S_TA}, s{S_W}")
    e(f"s_add_u32 s{S_TB}, s{S_TB}, s{S_IB}")
    e(f"s_lshr_b32 s{S_INFO}, s{S_INFO}, 24")
    e(f"s_cmp_lt_u32 s{S_IB}, s{S_INFO}")
    e(f"s_cselect_b32 s{S_BM}, 0xffff0000, 0")
    e(f"s_cselect_b32 s{S_TB}, s{S_TB}, s{S_TA}")
    e(f"s_lshr_b32 s{S_N}, s{S_G}, 3")
    e(f"s_add_u32 s{S_N}, s{S_N}, 36")
    e(f"s_sub_u32 s{S_T2}, s{S_N}, s{S_TB}")
    e(f"s_sub_u32 s{S_N}, s{S_N}, s{S_TA}")
    for r in (S_N, S_T2):
        e(f"s_mul_i32 s{S_ONES}, s{r}, 57")
        e(f"s_lshr_b32 s{S_ONES}, s{S_ONES}, 9")
        e(f"s_mul_i32 s{S_ONES}, s{S_ONES}, 9")
        e(f"s_sub_u32 s{r}, s{r}, s{S_ONES}")
        e(f"s_cmp_lt_u32 s{r}, 4")
        e(f"s_cselect_b32 s{S_ONES}, 11, 0")
        e(f"s_lshl1_add_u32 s{r}, s{r}, s{S_ONES}")
    e(f"s_min_u32 s{S_NX}, s{S_N}, s{S_T2}")
    e(f"s_max_u32 s{S_NY}, s{S_N}, s{S_T2}")
    e(f"s_cmp_gt_u32 s{S_N}, s{S_T2}")
    e(f"s_cselect_b32 s{S_ONES}, s{S_TB}, s{S_TA}")
    e(f"s_cselect_b32 s{S_TB}, s{S_TA}, s{S_TB}")
    e(f"s_mov_b32 s{S_TA}, s{S_ONES}")
    e(f"s_cselect_b32 s{S_IA}, s{S_IB}, s{S_W}")
    e(f"s_cselect_b32 s{S_IB}, s{S_W}, s{S_IB}")
    e(f"v_mul_u32_u24 v{V_T}, 1152, v{V_LANE}")
    e(f"s_mul_i32 s{S_N}, s{S_TA}, {64*1152}")
    e(f"s_lshl4_add_u32 s{S_N}, s{S_G}, s{S_N}")
    e(f"s_cmp_eq_u32 s{S_PART}, 3")
    e(f"s_cselect_b32 s{S_T2}, 0x80000000, 0")
    e(f"s_or_b32 s{S_N}, s{S_N}, s{S_T2}")
    e(f"v_add_u32 v{V_XA}, s{S_N}, v{V_T}")
    e(f"s_mul_i32 s{S_N}, s{S_TB}, {64*1152}")
    e(f"s_lshl4_add_u32 s{S_N}, s{S_G}, s{S_N}")
    e(f"s_andn2_b32 s{S_T2}, 0x80000000, s{S_BM}")
    e(f"s_or_b32 s{S_N}, s{S_N}, s{S_T2}")
    e(f"v_add_u32 v{V_XB}, s{S_N}, v{V_T}")
    return atoms(L)

def stage_items(sr, off, tag, touch=None):
    ld = lambda v: (f"buffer_load_dwordx4 v{v}, s[{sr}:{sr+3}], 0 offen lds", tag)
    tc = lambda v: [f"buffer_load_dword v{V_DUM}, v{v}, s[{touch}:{touch+3}], 0 offen"] if touch else []
    R = [[f"s_add_u32 m0, s{S_KM}, {off}", "s_nop 0", ld(V_K1)]]
    if touch: R.append(tc(V_K1))
    R.append([f"s_add_u32 m0, s{S_KM2}, {off}", "s_mov_b64 exec, 0xffff", ld(V_K2), "s_mov_b64 exec, -1"])
    if off: R[0] += [f"s_sub_u32 s{S_N}, s{S_MH}, 1", f"v_lshl_or_b32 v{V_K2}, s{S_N}, 31, v{V_K2}"]
    return R

def cold_items(m=15):
    R = stage_items(S_K, 0, "kst", S_V if m & 2 else None) if m & 1 else []
    if m & 4: R.append([f"s_add_u32 s{S_N}, s{S_COL}, s{S_ROW[8]}",
              f"buffer_load_dword v{V_DUM}, v{V_O2}, s[{S_W2}:{S_W2+3}], s{S_N} offen"])
    if m & 8: R.append([f"s_lshl_b32 s{S_N}, s{S_G}, 15",
              f"buffer_load_dword v{V_DUM}, v{V_KFT}, s[{S_KF}:{S_KF+3}], s{S_N} offen"])
    return R

def touches(o, A=S_N, B=S_T2):
    m = o.get("em", 7)
    L = [f"s_lshr_b32 s{A}, s2, 3", f"s_lshl3_add_u32 s{A}, s{A}, s{S_W}", f"s_mul_i32 s{A}, s{A}, 72",
         f"s_and_b32 s{B}, s2, 7", f"s_add_u32 s{A}, s{A}, s{B}", f"s_lshl_b32 s{A}, s{A}, 7",
         f"v_bfe_u32 v{V_T}, v{V_LANE}, 1, 3", f"v_lshl_add_u32 v{V_T}, v{V_T}, 3, v{V_T}", f"v_and_b32 v{V_KFT}, 1, v{V_LANE}",
         f"v_add_lshl_u32 v{V_T}, v{V_T}, v{V_KFT}, 7",
         f"s_lshl3_add_u32 s{B}, s{S_PART}, s{S_W}", f"s_mul_i32 s{B}, s{B}, 11",
         f"v_add_u32 v{V_KFT}, s{B}, v{V_LANE}", f"v_min_u32 v{V_KFT}, 255, v{V_KFT}", f"v_lshlrev_b32 v{V_KFT}, 7, v{V_KFT}",
         f"s_lshl_b32 s{B}, s{S_G}, 15",
         "s_mov_b64 exec, 0xffff"]
    if m & 1: L.append(f"buffer_load_dword v{V_DUM}, v{V_T}, s[{S_K}:{S_K+3}], s{A} offen")
    if m & 2: L.append(f"buffer_load_dword v{V_DUM}, v{V_T}, s[{S_V}:{S_V+3}], s{A} offen")
    L.append("s_mov_b64 exec, 0x7ff")
    if m & 4: L.append(f"buffer_load_dword v{V_DUM}, v{V_KFT}, s[{S_KF}:{S_KF+3}], s{B} offen")
    L.append("s_mov_b64 exec, -1")
    return L

def stouch_setup():
    return [f"s_lshr_b32 s{S_KO}, s2, 3", f"s_lshl3_add_u32 s{S_KO}, s{S_KO}, s{S_W}", f"s_mul_i32 s{S_KO}, s{S_KO}, 72",
            f"s_and_b32 s{S_FO}, s2, 7", f"s_add_u32 s{S_KO}, s{S_KO}, s{S_FO}", f"s_lshl_b32 s{S_KO}, s{S_KO}, 7",
            f"s_lshl3_add_u32 s{S_FO}, s{S_PART}, s{S_W}", f"s_mul_i32 s{S_FO}, s{S_FO}, 11", f"s_min_u32 s{S_FO}, s{S_FO}, 245",
            f"s_lshl_b32 s{S_DUM}, s{S_G}, 8", f"s_add_u32 s{S_FO}, s{S_FO}, s{S_DUM}", f"s_lshl_b32 s{S_FO}, s{S_FO}, 7"]

def stouch(o, k):
    ld = lambda sr, so, off: f"s_buffer_load_dword s{S_DUM}, s[{sr}:{sr+3}], s{so} offset:{off}"
    if k == "F": return [ld(S_KF, S_FO, 128*i) for i in range(11)]
    return [ld(sr, S_KO, 1152*r + 128*h) for r in range(8) for h in o.get("sth", (0, 1)) for sr in (S_K, S_V)]

def place(items, j0, j1, work):
    for i, x in enumerate(items): work.setdefault(4*(j0 + (i*(j1 - j0)) // len(items)) - 2, []).insert(0, x)

def early_items(o):
    m = o.get("em", 7)
    K = sum(stage_items(S_K, 0, None), []) if m & 1 else []
    if o.get("vt", 1):
        V = [f"s_lshr_b32 s{S_N}, s2, 3", f"s_lshl3_add_u32 s{S_N}, s{S_N}, s{S_W}", f"s_mul_i32 s{S_N}, s{S_N}, 72",
             f"s_and_b32 s{S_T2}, s2, 7", f"s_add_u32 s{S_N}, s{S_N}, s{S_T2}", f"s_lshl_b32 s{S_N}, s{S_N}, 7",
             f"v_bfe_u32 v{V_T}, v{V_LANE}, 1, 3", f"v_mul_u32_u24 v{V_T}, 9, v{V_T}", f"v_and_b32 v{V_T2}, 1, v{V_LANE}",
             f"v_add_lshl_u32 v{V_T}, v{V_T}, v{V_T2}, 7", "s_mov_b64 exec, 0xffff",
             f"buffer_load_dword v{V_DUM}, v{V_T}, s[{S_V}:{S_V+3}], s{S_N} offen", "s_mov_b64 exec, -1"]
    else:
        V = [f"buffer_load_dword v{V_DUM}, v{V_K1}, s[{S_V}:{S_V+3}], 0 offen", "s_mov_b64 exec, 0x1fff",
             f"buffer_load_dword v{V_DUM}, v{V_K2}, s[{S_V}:{S_V+3}], 0 offen", "s_mov_b64 exec, -1"]
    F = sum(cold_items(8), [])
    return [K, V if m & 2 else [], F if m & 4 else []]

def kv_compute(g):
    def halo():
        g.wait(vm=["sh", "tK"])
        g.e("s_mov_b32 vcc_lo, 0xfefefefe"); g.e("s_mov_b32 vcc_hi, vcc_lo")
        g.e(f"v_cndmask_b32 v{KR}, v{V_HG}, v{KR}, vcc")
        for r in (1, 2): g.e(f"v_cndmask_b32_dpp v{KR+r}, v{V_HG}, v{KR+r}, vcc row_shl:{r} row_mask:0xf bank_mask:0xf")
    L = [halo]; e = L.append
    up = lambda d, r, h: f"v_and_b32 v{d}, 0xffff0000, v{r}" if h else f"v_lshlrev_b32 v{d}, 16, v{r}"
    if g.o.get("kf", 1):
        U = [52, 53, 54, 55]
        for h in range(2):
            for j in range(4): e(up(KC + j, SH + 2*h + j//2, j % 2))
            e(up(U[0], KR, h))
            for i in range(11):
                if i < 10: e(up(U[(i + 1) % 2], KR + i + 1, h))
                for j in range(4):
                    t = i - 3 + j
                    if 0 <= t < 8: e(f"{'v_mul_f32' if j == 3 else 'v_fmac_f32'} v{KA+t}, v{KC+j}, v{U[i % 2]}")
            for t0 in (0, 4):
                for t in range(t0, t0 + 4): e(up(U[t % 4], VR + t, h))
                for t in range(t0, t0 + 4): e(f"v_mul_f32 v{KA+t}, v{KA+t}, v{U[t % 4]}")
            O = KA if h else PKR + 4
            for t in range(4): e(f"v_cvt_pk_bf16_f32 v{O+t}, v{KA+2*t}, v{KA+2*t+1}")
        return L
    for h in range(2):
        for j in range(4):
            w = SH + 2*h + j//2
            if h == 0: e(f"v_lshrrev_b32 v{KC+j}, 16, v{w}" if j % 2 else f"v_and_b32 v{KC+j}, 0xffff, v{w}")
            else: e(f"v_and_b32 v{KC+j}, 0xffff0000, v{w}" if j % 2 else f"v_lshlrev_b32 v{KC+j}, 16, v{w}")
        for j in (3, 2, 1, 0):
            for t in range(8):
                if j == 3: e(f"v_dot2_f32_bf16 v{KA+t}, v{KR+t+3-j}, v{KC+j}, 0")
                else: e(f"v_dot2c_f32_bf16 v{KA+t}, v{KR+t+3-j}, v{KC+j}")
        for t0 in (0, 4):
            for t in range(t0, t0 + 4):
                e(f"v_and_b32 v{KC+t%4}, 0xffff0000, v{VR+t}" if h else f"v_lshlrev_b32 v{KC+t%4}, 16, v{VR+t}")
            for t in range(t0, t0 + 4): e(f"v_mul_f32 v{KA+t}, v{KA+t}, v{KC+t%4}")
        O = KA if h else PKR + 4
        for t in range(4): e(f"v_cvt_pk_bf16_f32 v{O+t}, v{KA+2*t}, v{KA+2*t+1}")
    return L

def kv_store():
    return [[(f"buffer_store_dwordx4 v[{PKR+4}:{PKR+7}], v{V_KST}, s[{S_WS}:{S_WS+3}], s{S_KVO} offen sc1", "kv0"),
             f"s_add_u32 s{S_KVO}, s{S_KVO}, 4096"],
            [(f"buffer_store_dwordx4 v[{KA}:{KA+3}], v{V_KST}, s[{S_WS}:{S_WS+3}], s{S_KVO} offen sc1", "kv1")]]

def setup4(o):
    L = []; e = L.append
    A, B = S_GC, S_GC + 1
    e(f"v_bfrev_b32 v{V_OOB}, 1")
    assert not o.get("xe")
    e(f"s_lshr_b32 s{A}, s{S_G}, 3")
    e(f"s_cmp_eq_u32 s{A}, 8")
    e(f"s_cselect_b32 s{A}, s{S_W}, s{A}")
    e(f"s_cselect_b32 s{B}, 0, s{S_W}")
    e(f"s_lshl_b32 s{A}, s{A}, 7")
    e(f"s_add_u32 s{A}, s{A}, {RDY_OFF}")
    e(f"v_and_b32 v{V_L4}, 31, v{V_LANE}")
    e(f"s_cmp_eq_u32 s{B}, 0")
    e(f"s_cselect_b32 s{A}, s{A}, 0x80000000")
    e(f"s_cselect_b32 s{S_ONES}, s{S_TOK}, 0")
    e(f"v_lshl_add_u32 v{V_L4}, v{V_L4}, 2, s{A}")
    e(f"s_mul_i32 s{S_H2}, s{S_W}, {WSTR}")
    e(f"s_lshl3_add_u32 s{S_CH}, s{S_G}, s{S_W}")
    e(f"s_lshl_b32 s{S_CH}, s{S_CH}, 12")
    e(f"v_and_b32 v{V_CL}, v{V_OOB}, v{V_XA}")
    e(f"v_lshl_or_b32 v{V_CL}, v{V_LANE}, 4, v{V_CL}")
    e(f"v_lshl_add_u32 v{V_YW}, v{V_LANE}, 2, s{S_H2}")
    e(f"s_add_u32 s{A}, s{S_H2}, 4608")
    e(f"v_lshl_add_u32 v{V_KV}, v{V_LANE}, 1, s{A}")
    e(f"v_lshrrev_b32 v{V_T2}, 4, v{V_LANE}")
    e(f"v_bfe_u32 v{V_AF}, v{V_LANE}, 2, 2")
    e(f"v_lshl_add_u32 v{V_T2}, v{V_T2}, 3, v{V_AF}")
    e(f"v_and_b32 v{V_BF}, 3, v{V_LANE}")
    e(f"v_add_u32 v{V_AF}, v{V_T2}, v{V_BF}")
    e(f"s_add_u32 s{A}, s{S_H2}, {256 - 24}")
    e(f"v_lshl_add_u32 v{V_AF}, v{V_AF}, 3, s{A}")
    e(f"v_lshlrev_b32 v{V_BF}, 2, v{V_BF}")
    e(f"v_sub_u32 v{V_BF}, v{V_BF}, v{V_T2}")
    e(f"s_add_u32 s{A}, s{S_H2}, {4608 + 24 - 32}")
    e(f"v_lshl_add_u32 v{V_BF}, v{V_BF}, 3, s{A}")
    e(f"s_cmp_eq_u32 s{S_MH}, 0")
    e(f"s_cselect_b64 s[{S_DR}:{S_DR+1}], s[{S_DR}:{S_DR+1}], s[{S_DR+2}:{S_DR+3}]")
    e(f"s_lshl_b32 s{A}, s{S_QW}, 4")
    e(f"s_lshr_b64 s[{S_DR}:{S_DR+1}], s[{S_DR}:{S_DR+1}], s{A}")
    e(f"s_and_b32 s{S_D}, s{S_DR}, 0xffff")
    e(f"s_lshl_b32 s{A}, s{S_TA}, 10")
    e(f"v_add_u32 v{V_RA}, s{A}, v{V_CL}")
    e(f"v_ashrrev_i32 v{V_SA}, 1, v{V_RA}")
    e(f"s_lshl_b32 s{A}, s{S_TB}, 10")
    e(f"s_andn2_b32 s{B}, 0x80000000, s{S_BM}")
    e(f"s_or_b32 s{A}, s{A}, s{B}")
    e(f"v_lshl_add_u32 v{V_RB}, v{V_LANE}, 4, s{A}")
    e(f"v_ashrrev_i32 v{V_SB}, 1, v{V_RB}")
    e(f"s_sub_u32 s{A}, s{S_TB}, s{S_TA}")
    e(f"v_bfe_u32 v{V_P}, v{V_LANE}, 4, 1")
    e(f"v_mul_i32_i24 v{V_FA}, s{A}, v{V_P}")
    e(f"v_add_u32 v{V_FA}, s{S_TA}, v{V_FA}")
    if o.get("xe", 0):
        e(f"v_mul_u32_u24 v{V_RDY}, 57, v{V_FA}")
        e(f"v_lshrrev_b32 v{V_RDY}, 9, v{V_RDY}")
        e(f"v_mul_u32_u24 v{V_RDY}, 9, v{V_RDY}")
        e(f"v_sub_u32 v{V_RDY}, v{V_FA}, v{V_RDY}")
        e(f"v_cmp_gt_u32 vcc, s{S_ONES}, v{V_LANE}")
    e(f"v_mul_u32_u24 v{V_FA}, {9*256}, v{V_FA}")
    if o.get("xe", 0):
        e(f"v_lshl_add_u32 v{V_RDY}, v{V_RDY}, 8, v{V_FA}")
        e(f"v_and_b32 v{V_T2}, 7, v{V_LANE}")
        e(f"v_lshl_add_u32 v{V_RDY}, v{V_T2}, 2, v{V_RDY}")
        e(f"v_add_u32 v{V_RDY}, {FLAG_OFF}, v{V_RDY}")
        e(f"v_cndmask_b32 v{V_L4}, v{V_RDY}, v{V_L4}, vcc")
        e(f"s_mov_b32 s{S_ONES}, s{S_TOK}")
    e(f"s_xor_b32 s{A}, s{S_NX}, s{S_NY}")
    e(f"v_and_b32 v{V_T2}, s{A}, v{V_P}")
    e(f"s_and_b32 s{A}, s{S_NX}, 1")
    e(f"v_xor_b32 v{V_T2}, s{A}, v{V_T2}")
    e(f"v_and_or_b32 v{V_T2}, v{V_LANE}, 14, v{V_T2}")
    e(f"s_bfe_u32 s{A}, s{S_G}, {1 | (2 << 16)}")
    e(f"s_lshl_b32 s{A}, s{A}, 6")
    e(f"v_lshl_add_u32 v{V_T2}, v{V_T2}, 2, s{A}")
    e(f"s_cmp_ge_u32 s{S_NX}, 14")
    e(f"s_cselect_b32 s{A}, 0xff, 31")
    e(f"s_cmp_ge_u32 s{S_NY}, 14")
    e(f"s_cselect_b32 s{B}, 0xff, 31")
    e(f"v_mul_u32_u24 v{V_P}, s{B}, v{V_P}")
    e(f"v_or_b32 v{V_P}, s{A}, v{V_P}")
    e(f"v_and_b32 v{V_T2}, v{V_T2}, v{V_P}")
    e(f"v_add_u32 v{V_FA}, v{V_FA}, v{V_T2}")
    e(f"s_lshr_b32 s{S_FB}, s{S_G}, 3")
    e(f"s_lshl_b32 s{S_FB}, s{S_FB}, 8")
    e(f"s_add_u32 s{S_FB}, s{S_FB}, {FLAG_OFF}")
    e(f"s_lshl_b32 s{S_GO}, s{S_G}, 15")
    e(f"s_mov_b32 s{S_SO}, {STAT_OFF}")
    e(f"s_add_u32 s{S_XO}, s{S_GO}, {XT_OFF}")
    for j in range(NP - 1, -1, -1): e(f"s_add_u32 s{S_PO[j]}, s{S_GO}, {(4 + j)*72*32768}")
    for c in range(4):
        e(f"s_lshl_b32 s{S_BV+2*c}, s{S_B2+c}, 16")
        e(f"s_and_b32 s{S_BV+2*c+1}, s{S_B2+c}, 0xffff0000")
    return [[f"s_movk_i32 s{S_LO}, 0x3f80", f"s_lshl_b32 s{S_HI}, s{S_LO}, 16"]] + atoms(L)

def conv_loads(g):
    fl = g.o.get("hotfl", "")
    R = []
    for c in (3, 2, 1, 0):
        R.append([f"buffer_load_dwordx4 v{V_CL}, s[{S_WS}:{S_WS+3}], s{S_T} offen offset:{1024*c} {fl} lds"])
    R[0] = [f"s_add_u32 m0, s{S_H2}, 4608", f"s_add_u32 s{S_T}, s{S_CH}, {KVT_OFF}"] + R[0]
    R[3].append(f"s_add_u32 m0, s{S_H2}, 256")
    for c in range(4):
        R.append([f"buffer_load_dwordx4 v{V_CL}, s[{S_KF}:{S_KF+3}], s{S_CH} offen offset:{1024*c} lds"])
    R[7].append(f"s_mov_b32 m0, s{S_H2}")
    z = f"buffer_load_dword v{V_OOB}, s[{S_KF}:{S_KF+3}], 0 offen lds"
    R.append([z, f"s_add_u32 m0, s{S_H2}, 4352"])
    R.append([(z, "cl")])
    return R

def tile_list(g, LD, v, vs):
    fl = g.o.get("ldflags", "sc1")
    L = [f"buffer_load_dwordx2 v[{LD+32}:{LD+33}], v{vs}, s[{S_WS}:{S_WS+3}], s{S_SO} offen {g.o.get('sfl', '')}"]
    X = XA if LD == LDA else XB
    if not g.o.get("xe", 0): L.append(f"buffer_load_dwordx4 v[{X}:{X+3}], v{v}, s[{S_WS}:{S_WS+3}], s{S_XO} offen {fl}")
    for j in range(NP): L.append(f"buffer_load_dwordx4 v[{LD+4*j}:{LD+4*j+3}], v{v}, s[{S_WS}:{S_WS+3}], s{S_PO[j]} offen {fl}")
    for k in g.o.get("drop", []): L[k] = "s_nop 0"
    return L

def tile_loads(g, LD, v, vs):
    for x in tile_list(g, LD, v, vs): g.e(x)

def poll(g, tag=None):
    g.e(f"buffer_load_dword v{V_P}, v{V_FA}, s[{S_WS}:{S_WS+3}], s{S_FB} offen sc1", tag)

def conv_job(g, job, name, ev):
    o = g.o
    tiles = []; allt = []
    for a, b in job:
        if a > 0: allt.append(a - 1)
        for t in range(a, b):
            tiles.append(t); allt.append(t)
    ai = {t: CACC + 4*i for i, t in enumerate(allt)}
    tmax = max(allt)
    M = []
    ch = o.get("ch", 1); NB = o.get("nb", 6)
    for n0 in range(tmax, -1, -2*ch):
        for n1 in (n0, n0 - 1):
            ns = [n for n in range(n1, n1 - 2*ch, -2) if n >= 0]
            ts = sorted(t for t in allt if (t - n1) % 2 == 0)
            if o.get("trev"): ts.reverse()
            for t in ts:
                for n in ns:
                    if t >= n: M.append((t, n, (t - n)//2))
    order = []
    for (t, n, be) in M:
        for f in (("B", n), ("A", be)):
            if f not in order: order.append(f)
    bslot = {}
    nb = 0
    for f in order:
        if f[0] == "B":
            bslot[f[1]] = BB + 4*(nb % NB); nb += 1
    lastuse = {}
    for i, (t, n, be) in enumerate(M): lastuse[n] = i
    bl = [f[1] for f in order if f[0] == "B"]
    def reads(f):
        if f[0] == "A":
            r = AF + 4*f[1]; off = 256*f[1]
            return [f"ds_read_b64_tr_b16 v[{r}:{r+1}], v{V_AF} offset:{off}",
                    f"ds_read_b64_tr_b16 v[{r+2}:{r+3}], v{V_AF} offset:{off+32}"]
        r = bslot[f[1]]; off = 128*f[1] + 32
        return [f"ds_read_b64_tr_b16 v[{r}:{r+1}], v{V_BF} offset:{off}",
                f"ds_read_b64_tr_b16 v[{r+2}:{r+3}], v{V_BF} offset:{off-32}"]
    issued = 0
    fu = {}
    for i, (t, n, be) in enumerate(M):
        fu.setdefault(("B", n), i); fu.setdefault(("A", be), i)
    MAXF = o.get("ahead", 6)
    started = set()
    waited = -1
    for i, (t, n, be) in enumerate(M):
        need = max(order.index(("B", n)), order.index(("A", be)))
        nr = 0
        while issued < 2*len(order) and issued // 2 <= max(need, waited) + MAXF:
            f = order[issued // 2]
            if "la" in o and i and not (nr < 1 or fu[f] <= i or (nr < 2 and fu[f] <= i + o["la"])): break
            if f[0] == "B":
                k = bl.index(f[1])
                if k >= NB and lastuse[bl[k - NB]] >= i:
                    break
            g.e(reads(f)[issued % 2])
            issued += 1; nr += 1
        assert issued // 2 > need
        for k in (i, i - len(M)):
            for f in ev.get(k, []): f(name)
        if need > waited:
            g.e(f"s_waitcnt lgkmcnt({min(15, issued - 2 - 2*need)})")
            waited = need
        a = ai[t]; bs = bslot[n]; af = AF + 4*be
        c = f"v[{a}:{a+3}]" if t in started else "0"
        started.add(t)
        g.e(f"v_mfma_f32_16x16x32_bf16 v[{a}:{a+3}], v[{bs}:{bs+3}], v[{af}:{af+3}], {c}")
    KVV = 50
    for i, t in enumerate(tiles):
        g.e(f"ds_read_u16 v{AF+40+i}, v{V_KV} offset:{128*t}")
    eo = o.get("eo", 1)
    if not eo: ev["end"][0](name)
    else:
        for f in ev.get("e0", []): f(name)
        g.e("s_nop 2")
    H2 = AF; H1 = AF + 12; Y = AF + 24
    idx = {t: i for i, t in enumerate(allt)}
    m = "row_mask:0xf bank_mask:0xf"
    def level(dst, src, zc, ts):
        for t in ts:
            if t in tiles and t > 0:
                g.e(f"v_add_f32 v{dst+idx[t]}, v{src(t-1)}, v{ai[t]+zc} wave_ror:1 row_mask:0x1 bank_mask:0x1")
        for t in ts:
            bc = "" if (t in tiles and t > 0) else " bound_ctrl:0"
            g.e(f"v_add_f32 v{dst+idx[t]}, v{src(t)}, v{ai[t]+zc} wave_shr:1 {m}{bc}")
    level(H2, lambda t: ai[t] + 3, 2, allt)
    g.e("s_waitcnt lgkmcnt(0)")
    for i, t in enumerate(tiles):
        g.e(f"v_dot2c_f32_bf16 v{ai[t]}, s{S_D}, v{AF+40+i}")
    level(H1, lambda t: H2 + idx[t], 1, allt)
    level(Y, lambda t: H1 + idx[t], 0, tiles)
    for i, t in enumerate(tiles):
        g.e(f"ds_write_b32 v{V_YW}, v{Y+idx[t]} offset:{256*i}")

def fin_1(g, LD, X, R, waits):
    e = g.e
    s = R; xn = R + 8; st = LD + 32
    if waits: e(f"s_waitcnt vmcnt({NP})")
    for c in range(4):
        e(f"v_lshlrev_b32 v{R+8+2*c}, 16, v{X+c}")
        e(f"v_and_b32 v{R+8+2*c+1}, 0xffff0000, v{X+c}")
    for c in range(8): e(f"v_add_f32 v{s+c}, s{S_BV+c}, v{R+8+c}")
    for c in range(8): e(f"v_fma_f32 v{xn+c}, v{xn+c}, v{st}, v{st+1}")
    for j in range(NP):
        if waits: e(f"s_waitcnt vmcnt({NP - 1 - j})")
        for c in range(4):
            e(f"v_dot2c_f32_bf16 v{s+2*c}, s{S_LO}, v{LD+4*j+c}")
            e(f"v_dot2c_f32_bf16 v{s+2*c+1}, s{S_HI}, v{LD+4*j+c}")
    e("s_nop 2")

def fin_2(g, X, R):
    e = g.e
    s = R; xn = R + 8; y = R + 16
    for c in range(4):
        e(f"v_pk_fma_f32 v[{s+2*c}:{s+2*c+1}], v[{xn+2*c}:{xn+2*c+1}], v[{y+2*c}:{y+2*c+1}], v[{s+2*c}:{s+2*c+1}]")
    for c in range(4):
        e(f"v_cvt_pk_bf16_f32 v{X+c}, v{s+2*c}, v{s+2*c+1}")

def fin_a(g, X, si, R):
    e = g.e
    s = R; y = R + 16
    e(f"s_lshl_b32 s{S_T2}, s{si}, 8")
    e(f"v_lshl_add_u32 v{V_T}, v{V_LANE}, 2, s{S_T2}")
    for c in range(4):
        e(f"ds_read2st64_b32 v[{y+2*c}:{y+2*c+1}], v{V_T} offset0:{68*c} offset1:{68*c + 34}")

def fin_b(g, LD, X, R, waits):
    e = g.e
    s = R; xn = R + 8; y = R + 16; st = LD + 32
    if waits: e(f"s_waitcnt vmcnt({NP})")
    for c in range(4):
        e(f"v_lshlrev_b32 v{R+8+2*c}, 16, v{X+c}")
        e(f"v_and_b32 v{R+8+2*c+1}, 0xffff0000, v{X+c}")
    for c in range(8): e(f"v_add_f32 v{s+c}, s{S_BV+c}, v{R+8+c}")
    for c in range(4):
        e(f"v_pk_fma_f32 v[{xn+2*c}:{xn+2*c+1}], v[{xn+2*c}:{xn+2*c+1}], v[{st}:{st+1}], v[{st}:{st+1}] op_sel:[0,0,1] op_sel_hi:[1,0,1]")
    e("s_waitcnt lgkmcnt(0)")
    for c in range(4):
        e(f"v_pk_fma_f32 v[{s+2*c}:{s+2*c+1}], v[{xn+2*c}:{xn+2*c+1}], v[{y+2*c}:{y+2*c+1}], v[{s+2*c}:{s+2*c+1}]")
    for j in range(NP):
        if waits: e(f"s_waitcnt vmcnt({NP - 1 - j})")
        for c in range(4):
            e(f"v_dot2c_f32_bf16 v{s+2*c}, s{S_LO}, v{LD+4*j+c}")
            e(f"v_dot2c_f32_bf16 v{s+2*c+1}, s{S_HI}, v{LD+4*j+c}")
    e("s_nop 2")
    for c in range(4):
        e(f"v_cvt_pk_bf16_f32 v{X+c}, v{s+2*c}, v{s+2*c+1}")

def tail2(g, name, TX, TY, out):
    o = g.o; e = g.e
    RA, RB = CACC, CACC + 24
    e(f"s_or_b32 s{S_N}, s{S_PX}, s{S_PY}")
    e(f"s_cbranch_scc0 {name}_np")
    poll(g)
    g.lab(f"{name}_np")
    e(f"s_cmp_ge_u32 s{S_W}, {o.get('ps', 4)}")
    e(f"s_cselect_b32 s{S_T}, 1, 0")
    e(f"s_or_b32 s{S_GX}, s{S_GX}, s{S_PX}")
    e(f"s_or_b32 s{S_XM}, s{S_GX}, s{S_T}")
    e(f"s_cbranch_scc1 {name}_q1")
    fin_1(g, LDA, XA, RA, False)
    g.lab(f"{name}_q1")
    e(f"s_or_b32 s{S_GY}, s{S_GY}, s{S_PY}")
    e(f"s_cmp_eq_u32 s{S_BM}, 0")
    e(f"s_cselect_b32 s{S_T}, 1, s{S_GY}")
    e(f"s_cmp_lg_u32 s{S_T}, 0")
    e(f"s_cbranch_scc1 {name}_q2")
    fin_1(g, LDB, XB, RB, False)
    g.lab(f"{name}_q2")
    e(f"s_mov_b32 s{S_N}, {SPIN}")
    e("s_waitcnt lgkmcnt(0)")
    g.stamp()
    e("s_barrier")
    g.stamp()
    def last(nm, P, mask, T):
        e(f"s_cmp_eq_u32 s{P}, 0")
        e(f"s_cbranch_scc1 {nm}2")
        g.lab(f"{nm}lp")
        e("s_waitcnt vmcnt(0)")
        e(f"v_cmp_ne_u32 vcc, s{S_TOK}, v{V_P}")
        e(f"s_sub_u32 s{S_N}, s{S_N}, 1")
        e(f"s_cbranch_scc1 {nm}go")
        e(f"s_and_b32 s{P}, vcc_lo, {mask}")
        e(f"s_cbranch_scc0 {nm}go")
        poll(g)
        e(f"s_branch {nm}lp")
        g.lab(f"{nm}go")
        for x in T: e(x)
        g.lab(f"{nm}2")
    fin_a(g, XA, S_IA, RA)
    e(f"s_cmp_lg_u32 s{S_BM}, 0")
    e(f"s_cbranch_scc1 {name}_two")
    e(f"s_cmp_eq_u32 s{S_XM}, 0")
    e(f"s_cbranch_scc1 {name}_a3")
    last(f"{name}_a", S_PX, "0xffff", TX)
    fin_1(g, LDA, XA, RA, True)
    g.lab(f"{name}_a3")
    g.stamp()
    e("s_waitcnt lgkmcnt(0)")
    fin_2(g, XA, RA)
    out(XA, V_XA)
    finish(g)
    g.lab(f"{name}_two")
    fin_a(g, XB, S_IB, RB)
    e(f"s_cmp_lg_u32 s{S_XM}, 0")
    e(f"s_cbranch_scc1 {name}_xslow")
    g.lab(f"{name}_xback")
    e("s_waitcnt lgkmcnt(0)")
    fin_2(g, XA, RA)
    e(f"s_cmp_eq_u32 s{S_GY}, 0")
    e(f"s_cbranch_scc1 {name}_b3")
    last(f"{name}_b", S_PY, "0xffff0000", TY)
    fin_1(g, LDB, XB, RB, True)
    g.lab(f"{name}_b3")
    g.stamp()
    out(XA, V_XA)
    fin_2(g, XB, RB)
    out(XB, V_XB)
    finish(g)
    g.lab(f"{name}_xslow")
    last(f"{name}_x", S_PX, "0xffff", TX)
    e(f"s_mov_b32 s{S_N}, {SPIN}")
    e("s_waitcnt vmcnt(0)")
    fin_1(g, LDA, XA, RA, False)
    e(f"s_branch {name}_xback")

def tail(g, name):
    o = g.o; e = g.e
    def flag(n):
        for x in flag_store(g, n): g.put(x)
    out = lambda X, vx: e(f"buffer_store_dwordx4 v[{X}:{X+3}], v{vx}, s[{S_OUT}:{S_OUT+3}], 0 offen {o.get('ofl', '')}")
    TX = tile_list(g, LDA, V_RA, V_SA); TY = tile_list(g, LDB, V_RB, V_SB)
    e(f"s_cmp_eq_u32 s{S_PART}, 3")
    e(f"s_cbranch_scc1 {name}_none")
    n7 = len(g.vm) - 1 - g.vm.index(("p", 7))
    g.stamp()
    g.wait(vm=["cl"])
    g.stamp()
    def look():
        e(f"v_cmp_ne_u32 vcc, s{S_TOK}, v{V_P}")
        e(f"s_mov_b32 s{S_GX}, s{S_PX}")
        e(f"s_mov_b32 s{S_GY}, s{S_PY}")
        e(f"s_and_b32 s{S_PX}, vcc_lo, 0xffff")
        e(f"s_cselect_b32 s{S_GX}, 0, s{S_GX}")
        e(f"s_and_b32 s{S_PY}, vcc_lo, s{S_BM}")
        e(f"s_cselect_b32 s{S_GY}, 0, s{S_GY}")
    def look0(nm):
        g.wait(vm=["p0"])
        e(f"v_cmp_ne_u32 vcc, s{S_TOK}, v{V_P}")
        e(f"s_and_b32 s{S_PX}, vcc_lo, 0xffff")
        e(f"s_cselect_b32 s{S_N}, 0x80000000, 0")
        e(f"s_cselect_b64 s[{S_XM}:{S_XM+1}], 1, -1")
        e(f"v_or_b32 v{V_XO}, s{S_N}, v{V_RA}")
        e(f"v_or_b32 v{V_XS}, s{S_N}, v{V_SA}")
        e(f"s_and_b32 s{S_PY}, vcc_lo, s{S_BM}")
        e(f"s_cselect_b32 s{S_N}, 0x80000000, 0")
        e(f"s_cselect_b32 s{S_T}, 0, s{S_BM}")
        e(f"v_or_b32 v{V_YO}, s{S_N}, v{V_RB}")
        e(f"v_or_b32 v{V_YS}, s{S_N}, v{V_SB}")
        e(f"s_cmp_eq_u32 s{S_T}, 0")
        e(f"s_cselect_b64 s[{S_YM}:{S_YM+1}], 1, -1")
    cnt = [0]
    def cond(go, L):
        def f(nm):
            cnt[0] += 1
            e(f"s_cmp_eq_u32 s{go}, 0")
            e(f"s_cbranch_scc1 {nm}_k{cnt[0]}")
            for x in L: e(x)
            g.lab(f"{nm}_k{cnt[0]}")
        return f
    def masked(M, x):
        def f(nm):
            if o.get("xm", 1): e(f"s_mov_b64 exec, s[{M}:{M+1}]")
            e(x)
            if o.get("xm", 1): e("s_mov_b64 exec, -1")
        return f
    def ev0(nm):
        g.wait(vm=[("p", 7)])
        flag(7)
    def ev1(nm):
        g.wait(vm=[("p", 8)])
        g.stamp()
        flag(8)
    def ev2(nm):
        g.wait(vm=["p1"])
        g.stamp()
        look()
    def evend(nm):
        g.stamp()
        e("s_waitcnt vmcnt(0)")
        look()
        cond(S_GX, TX)(nm)
        cond(S_GY, TY)(nm)
        g.stamp()
    ev = {"end": [evend]}
    at = lambda k, f: ev.setdefault(k, []).append(f)
    l0 = o.get("l0", -999)
    if l0 < 0: look0(name)
    else: at(l0, look0)
    at(o.get("m0", 16), ev0); at(o.get("m1", 40), ev1); at(-o.get("m2", 16) or "e0", lambda nm: poll(g))
    for k, x in zip(o.get("xs", [1, 5, 10, 19, 28, 38, 48, 58, 68] if o.get("xe", 0) else [1, 2, 5, 10, 19, 28, 38, 48, 58, 68]), tile_list(g, LDA, V_XO, V_XS)): at(k, masked(S_XM, x))
    for k, x in zip(o.get("ys", [3, 14, 23, 33, 43, 53, 63, 73, 83] if o.get("xe", 0) else [4, 7, 14, 23, 33, 43, 53, 63, 73, 83]), tile_list(g, LDB, V_YO, V_YS)): at(k, masked(S_YM, x))
    if o.get("q1", 0):
        at(o.get("q1", 0), lambda nm: poll(g, "p1"))
        k = o.get("l1", 60); gs = o.get("gs", 3)
        at(k, ev2)
        for go, T in ((S_GX, TX), (S_GY, TY)):
            for c in range(0, 9, gs):
                k += o.get("ms", 2)
                at(k, cond(go, T[c:c+gs]))
    e(f"s_cmp_eq_u32 s{S_PART}, 1")
    e(f"s_cbranch_scc1 {name}_j1")
    e(f"s_cmp_eq_u32 s{S_PART}, 2")
    e(f"s_cbranch_scc1 {name}_j2")
    vm0 = list(g.vm)
    for p in range(3):
        if p: g.lab(f"{name}_j{p}")
        g.vm = list(vm0)
        conv_job(g, JOBS[p], f"{name}_c{p}", ev)
        if p < 2: e(f"s_branch {name}_cfin")
    g.lab(f"{name}_cfin")
    if o.get("eo", 1): evend(name)
    if o.get("ps", 4):
        tail2(g, name, TX, TY, out)
    else:
        e(f"s_or_b32 s{S_N}, s{S_PX}, s{S_PY}")
        e(f"s_mov_b32 s{S_N}, {SPIN}")
        e(f"s_cbranch_scc0 {name}_np")
        poll(g)
        g.lab(f"{name}_np")
        e("s_waitcnt lgkmcnt(0)")
        g.stamp()
        e("s_barrier")
        g.stamp()
        RA, RB = CACC, CACC + 24
        def last(nm, P, mask, T):
            e(f"s_cmp_eq_u32 s{P}, 0")
            e(f"s_cbranch_scc1 {nm}2")
            g.lab(f"{nm}lp")
            e("s_waitcnt vmcnt(0)")
            e(f"v_cmp_ne_u32 vcc, s{S_TOK}, v{V_P}")
            e(f"s_sub_u32 s{S_N}, s{S_N}, 1")
            e(f"s_cbranch_scc1 {nm}go")
            e(f"s_and_b32 s{P}, vcc_lo, {mask}")
            e(f"s_cbranch_scc0 {nm}go")
            poll(g)
            e(f"s_branch {nm}lp")
            g.lab(f"{nm}go")
            for x in T: e(x)
            g.lab(f"{nm}2")
        fin_a(g, XA, S_IA, RA)
        e(f"s_cmp_lg_u32 s{S_BM}, 0")
        e(f"s_cbranch_scc1 {name}_two")
        last(f"{name}_a", S_PX, "0xffff", TX)
        g.stamp()
        fin_b(g, LDA, XA, RA, True)
        out(XA, V_XA)
        finish(g)
        g.lab(f"{name}_two")
        fin_a(g, XB, S_IB, RB)
        e(f"s_or_b32 s{S_GX}, s{S_GX}, s{S_PX}")
        e(f"s_cbranch_scc1 {name}_xslow")
        g.lab(f"{name}_xback")
        fin_b(g, LDA, XA, RA, False)
        last(f"{name}_b", S_PY, "0xffff0000", TY)
        g.stamp()
        fin_b(g, LDB, XB, RB, True)
        out(XA, V_XA)
        out(XB, V_XB)
        finish(g)
        g.lab(f"{name}_xslow")
        last(f"{name}_x", S_PX, "0xffff", TX)
        e(f"s_mov_b32 s{S_N}, {SPIN}")
        e("s_waitcnt vmcnt(0)")
        e(f"s_branch {name}_xback")
    g.lab(f"{name}_none")
    e(f"s_waitcnt vmcnt({n7})")
    flag(7)
    e("s_waitcnt vmcnt(1)")
    flag(8)
    finish(g)

def gen(name, opt):
    g = G(opt); o = opt
    e = g.e
    g.NF = 5
    SM[0] = o.get("sm", 1)
    g.ool = []; g.grp = "Z"
    g.L.append(f".globl {name}\n.p2align 8\n.type {name},@function\n{name}:")
    npro = prologue(g, name)
    nm = name + "_Z"; g.nm = nm
    full = not o.get("core")
    sc = Sched(g, npro)
    sc.claim(range(11, 20), "x"); sc.claim([10], "tbl")
    for s_ in range(9): sc.hold[s_] = 10
    work = {}; inb = {}; pre = {}; post = {}; bw = {}; bv = {}; act = {}; aft = {}; hooks = {}
    add = lambda d, k, L: d.setdefault(k, []).extend(L)
    bj = lambda r: (r - 6) // 2
    xr = o.get("xr", [[8, 2], [12, 5], [16, 8], [18, 9]])
    h0 = o.get("h0", 152); hd = o.get("hd", 4); hl = o.get("hl", 2); hs = o.get("hs", 176)
    bars = set(18*N + b_ for N in range(18) for b_ in (o.get("bs", [0, 8]) if N < 17 or not full else [4, 12]))
    bars -= set(range(xr[0][0])) | set(range(h0, h0 + 4*hd + hl*hd))
    bars |= set(x[0] for x in xr) | set(o.get("xb2", [22])) | set(h0 + hd*i for i in range(5 + hl)) | set([hs]) | set(o.get("hb2", [184]))
    bars -= set(o.get("nb", []))
    bars = sorted(bars)
    nextb = lambda r, n=1: [b_ for b_ in bars if b_ > r][n - 1]
    def scatter(L, j0, nbu, lead=0):
        pos = [(j, q) for j in range(j0, j0 + nbu) for q in range(4) if seq(j)[q]]
        for k, x in enumerate(L): add(inb, pos[(k * len(pos)) // len(L)], [x])
    for x in bias_read(0): g.put(x)
    ns = 0
    for r_, c_ in enumerate(o.get("ls", [1, 1, 2])):
        add(inb, (-1, r_), [sread(0, k) for k in SO[ns:ns + c_]]); ns += c_
    scatter([sread(0, k) for k in SO[ns:]], 0, o.get("xn", 6))
    pc = 0
    for r_, c_ in xr:
        add(bw, r_, [("s", k) for k in range(4*c_)])
        add(act, r_, [lambda a_=pc, c_=c_: sc.free(range(11 + a_, 11 + c_))]); pc = c_
    stgl = o.get("stgl", 134)
    for n in range(9):
        if n < 8: add(inb, (9*n + 1, 0) if n == 7 and stgl == 134 else (9*n + o.get("bslot", 4), 2), bias_read(n + 1))
        if n: deal(gelu_list(o, n - 1), 9*n, o.get("gn", 9) if n < 8 else min(9, bj(h0 + 3*hd) - 72), work)
    if not o.get("sup", 1): spread(atoms(setup2()) + (setup3(o) if full else []), o.get("su0", 6), o.get("su1", 34), work)
    add(pre, o.get("stl", xr[1][0]), [[f"s_lshl_b32 s{S_YT}, s{S_RB}, 9", f"s_add_u32 s{S_YT}, s{S_YT}, {STAT_OFF}",
        f"buffer_store_dwordx2 v[{V_QA}:{V_QA+1}], v{V_SAD}, s[{S_WS}:{S_WS+3}], s{S_YT} offen sc1"]])
    if full:
        for k_, (r_, cs) in enumerate(o.get("xtl", [[26, [0, 1, 2]], [54, [3, 4, 5]], [90, [6, 7, 8]]])):
            assert all(bj(r_) + 2 < 18*(c_ // 2) + 16 for c_ in cs)
            def xt(k_=k_, cs=cs):
                e(f"s_cmp_eq_u32 s{S_W}, s{S_J}")
                e(f"s_cbranch_scc1 {nm}_xt{k_}")
                g.lab(f"{nm}_xt{k_}b")
                L = [f"s_and_b32 s{S_YT}, s2, 8", f"s_lshl_b32 s{S_YT}, s{S_YT}, 2", f"v_lshrrev_b32 v{V_T2}, 3, v{V_TID}", f"v_xor_b32 v{V_T2}, s{S_YT}, v{V_T2}",
                     f"v_lshl_or_b32 v{V_T2}, v{V_TID}, 11, v{V_T2}", f"v_and_b32 v{V_T2}, 0x3fff, v{V_T2}", f"v_lshlrev_b32 v{V_T2}, 4, v{V_T2}",
                     f"s_lshl_b32 s{S_YT}, s{S_RB}, 10", f"s_add_u32 s{S_YT}, s{S_YT}, {XT_OFF + 262144*cs[0]}"]
                for c_ in cs:
                    L.append(f"buffer_store_dwordx4 v[{XR+4*c_}:{XR+4*c_+3}], v{V_T2}, s[{S_WS}:{S_WS+3}], s{S_YT} offen sc1")
                    if c_ != cs[-1]: L.append(f"s_add_u32 s{S_YT}, s{S_YT}, 262144")
                g.ool += [f"{nm}_xt{k_}:"] + ["  " + x for x in L] + [f"  s_branch {nm}_xt{k_}b"]
            add(pre, r_, [[xt]])
    add(work, 60, [f"s_lshl_b32 s{S_N}, s{S_MH}, 13", f"v_lshl_add_u32 v{V_FR}, v{V_LANE}, 4, s{S_N}"])
    if full:
        if o.get("cm", 4): add(post, o.get("rcold", 134), cold_items(o.get("cm", 4)))
        def second():
            e("s_cmp_ge_u32 s2, 224")
            e(f"s_cbranch_scc1 {nm}_u2")
            g.lab(f"{nm}_u2b")
            L = [f"s_add_u32 m0, s{S_KM}, 8192", f"v_add_u32 v{V_T2}, s{S_KM2}, v{V_K1}",
                 f"buffer_load_dwordx4 v{V_T2}, s[{S_K}:{S_K+3}], 0 offen lds",
                 f"s_add_u32 m0, s{S_KM}, {KSZ + 8192}", "s_nop 0",
                 f"buffer_load_dwordx4 v{V_T2}, s[{S_V}:{S_V+3}], 0 offen lds"]
            g.ool += [f"{nm}_u2:"] + ["  " + x for x in L] + [f"  s_branch {nm}_u2b"]
        add(pre, stgl, [[second, f"s_mov_b32 m0, s{S_KM}", (f"buffer_load_dwordx4 v{V_K1}, s[{S_K}:{S_K+3}], 0 offen lds", "kst")],
                        [f"s_add_u32 m0, s{S_KM}, {KSZ}", (f"buffer_load_dwordx4 v{V_K1}, s[{S_V}:{S_V+3}], 0 offen lds", "stg")]])
        add(bw, stgl, ["bias"])
        sc.hold[9] = 9; sc.hold[11] = 9; sc.hold[12] = 9
        add(act, stgl, [lambda: sc.claim([9, 11, 12], "stg")])
        for r_, k_ in o.get("tl", [[36, "K"], [72, "V"], [156, "F"]]):
            sr, v, d, m_ = {"K": (S_K, V_KT, V_HG, 0x37373737), "V": (S_V, V_KT, V_DUM, 0x30303030), "F": (S_KF, V_KFT, V_DUM, 0)}[k_]
            add(pre, r_, [([f"s_mov_b32 exec_lo, {m_}", "s_mov_b32 exec_hi, exec_lo"] if m_ else ["s_mov_b64 exec, 0x7ff"]) +
                          [(f"buffer_load_dword v{d}, v{v}, s[{sr}:{sr+3}], 0 offen", "t" + k_), "s_mov_b64 exec, -1"]])
    wt = o.get("wt", [])
    wn = -(-5184 // (128 * len(wt))) if wt else 0
    if wt: add(work, o.get("wts", 40), [f"s_and_b32 s{S_WT}, s{S_RB}, 15", f"s_lshl3_add_u32 s{S_WT}, s{S_WT}, s{S_W}", f"s_mul_i32 s{S_WT}, s{S_WT}, {wn*128}",
            f"s_mul_i32 s{S_N}, s{S_J}, {576*1152}", f"s_add_u32 s{S_WT}, s{S_WT}, s{S_N}", f"v_lshlrev_b32 v{V_T}, 7, v{V_LANE}"])
    for r_ in wt:
        it = [f"s_bfm_b64 exec, {wn}, 0", f"buffer_load_dword v{V_DUM}, v{V_T}, s[{S_W2}:{S_W2+3}], s{S_WT} offen", "s_mov_b64 exec, -1",
              f"s_add_u32 s{S_WT}, s{S_WT}, {128*wn*128}"]
        if r_ in pre and o.get("wtm", 1): pre[r_][0] = pre[r_][0][:-1] + it
        else: add(pre, r_, [it])
    for p in range(4):
        r_ = h0 + hd*p
        add(act, r_, [lambda p=p: sc.claim([2*p, 2*p + 1], "h")])
        add(aft, r_, [(f"ds_write_b128 v{V_HW}, v[{HP+8*p+4*t}:{HP+8*p+4*t+3}] offset:{16384*p + 1024*t}", ("hw", p)) for t in range(2)])
        add(bw, r_ + hd, [("hw", p)])
        ks = [k for k in SO if k // 8 == p]
        ha = o.get("ha", 0)
        add(aft, r_ + hd, [sread(1, k) for k in ks[:ha]])
        scatter([sread(1, k) for k in ks[ha:]], bj(r_ + hd) + 1, o.get("hn", hd // 2))
        add(bw, r_ + hd + hl*hd, [("s", 36 + k) for k in ks])
        add(act, r_ + hd + hl*hd, [lambda p=p: sc.free([2*p, 2*p + 1])])
    js = bj(hs)
    deal(gelu_list(o, 8), 81, js - 81, work)
    rc = min(b_ for b_ in bars if b_ >= 168 and b_ > h0 + 3*hd)
    assert bj(rc) < js
    add(act, rc, [lambda: sc.claim([8], "h")])
    add(aft, rc, [f"s_lshl_b32 s{S_N}, s{S_MH}, 12", f"s_add_u32 s{S_N}, s{S_N}, 65536", f"v_lshl_add_u32 v{V_HW}, v{V_LANE}, 4, s{S_N}",
                  f"s_lshr_b32 s{S_N}, s{S_QW}, 1", f"s_lshl_b32 s{S_N}, s{S_N}, 8", f"s_and_b32 s{S_T2}, s{S_QW}, 1", f"s_add_u32 s{S_N}, s{S_N}, s{S_T2}",
                  f"v_lshl_add_u32 v{V_T}, s{S_N}, 3, v{V_HW}"])
    add(work, 4*(js - 1) + 1, [(f"ds_write2st64_b64 v{V_T}, v[{HP+32}:{HP+33}], v[{HP+34}:{HP+35}] offset0:0 offset1:2", ("hw", 4))])
    add(bw, hs, [("hw", 4)])
    ks = [k for k in SO if k >= 32]
    scatter([sread(1, k) for k in ks], js + 1, 1)
    add(bw, nextb(hs, o.get("hl4", 2)), [("s", 36 + k) for k in ks])
    add(act, nextb(hs, o.get("hl4", 2)), [lambda: sc.free([8])])
    if full:
        rv = o.get("rv", h0); rk = o.get("rk", h0 + 2*hd)
        assert rv >= h0 and rk >= h0 + 2*hd
        add(bv, min(rv, rk), ["stg"])
        scatter([(f"ds_read_b32 v{VR+r}, v{V_KG} offset:{KSZ + 1024 + 128*r}", "vr") for r in range(8)], bj(rv) + 1, o.get("vn", 1))
        scatter([(f"ds_read_b32 v{KR+r}, v{V_KH} offset:{640 + 128*r}", "kr") for r in range(3)] +
                [(f"ds_read_b32 v{KR+3+r}, v{V_KG} offset:{1024 + 128*r}", "kr") for r in range(8)], bj(rk) + 1, o.get("kn", 2))
        add(bw, nextb(rv, o.get("vl", 1)), ["vr"]); add(act, nextb(rv, o.get("vl", 1)), [lambda: sc.free([11, 12])])
        add(bw, nextb(rk, o.get("kl", 2)), ["kr"]); add(act, nextb(rk, o.get("kl", 2)), [lambda: sc.free([9, 10])])
        add(pre, o.get("rx", h0 + hd), [[(f"buffer_load_dword v{V_TOK}, off, s[{S_DBG}:{S_DBG+3}], 0 sc1", "tok")]])
        add(pre, h0 + 3*hd, [[f"v_lshrrev_b32 v{V_T2}, 9, v{V_KST}", f"v_and_b32 v{V_T2}, -16, v{V_T2}",
            (f"buffer_load_dwordx4 v[{SH}:{SH+3}], v{V_T2}, s[{S_SH}:{S_SH+3}], 0 offen", "sh")]])
    told = set()
    def flags():
        for m in range(7):
            if ("p", m) in g.bdone and m not in told:
                told.add(m)
                for x in flag_store(g, m): g.put(x)
        if "kv1" in g.bdone and "rdy" not in told:
            told.add("rdy")
            e(f"s_mul_i32 s{S_N}, s2, 257")
            e(f"s_bfe_u32 s{S_N}, s{S_N}, {3 | (8 << 16)}")
            e(f"s_lshl2_add_u32 s{S_N}, s{S_N}, {RDY_OFF}")
            e(f"buffer_store_dword v{V_TOK}, v{V_L0}, s[{S_WS}:{S_WS+3}], s{S_N} offen sc1")
    def tok():
        g.wait(vm=["tok"])
        e(f"v_readfirstlane_b32 s{S_TOK}, v{V_TOK}")
        e(f"s_cmp_eq_u32 s{S_TOK}, 0")
        e(f"s_cbranch_scc1 {nm}_tok_slow")
        g.lab(f"{nm}_tok_back")
        e(f"s_andn2_b32 s{S_PF}, s{S_FLG}, 0xe0")
        e(f"s_xor_b32 s{S_PF}, s{S_PF}, 4")
    def rdy():
        assert "rdy" in told
        g.wait(vm=["rl"])
        e(f"v_cmp_ne_u32 vcc, s{S_ONES}, v{V_RDY}")
        e(f"s_cbranch_vccnz {nm}_rdy_slow")
        g.lab(f"{nm}_rdy_back")
    ss = o.get("ss", 8)
    kvb = o.get("kvb", 1)
    def kvok(): assert "vr" in g.done and "kr" in g.done and ("hw", 4) in g.done
    if full:
        spread([kvok] + kv_compute(g), o.get("kc0", 4*js + 2), o.get("kc1", 362 + 36*kvb), work)
        spread(setup4(o), o.get("s40", 324 + 36*4 + 10), o.get("s40", 324 + 36*4 + 10) + 28, work)
        xe = o.get("xe", 0); rl = o.get("rl", 278 if xe else 310)
        if xe: add(pre, rl, [[f"buffer_load_dwordx4 v[{X}:{X+3}], v{v}, s[{S_WS}:{S_WS+3}], s{S_XO} offen sc1" for X, v in ((XA, V_RA), (XB, V_RB))]])
        add(work, 4*o.get("rlj", 128 if xe else 146), [(f"buffer_load_dword v{V_RDY}, v{V_L4}, s[{S_WS}:{S_WS+3}], 0 offen sc1", "rl")])
        add(work, 4*o.get("p0j", 155) + 1, [lambda: poll(g, "p0")])
        add(work, 640, [f"v_min_u32 v{V_L0}, 1, v{V_LANE}", f"v_lshlrev_b32 v{V_L0}, 31, v{V_L0}"])
        c0 = 606 + o.get("c0", 0)
        add(act, 310, [lambda: sc.claim(range(9), "conv")])
        spread(conv_loads(g), c0, c0 + o.get("cls", 12), work)
        add(work, 628, [flags])
        hooks.update({o.get("rt", 180): tok, rl: rdy, 318: lambda: g.wait(vm=[("p", 6)])})
    for n in range(8):
        b = 324 + 36*(n + 1)
        if n >= 4: add(work, b + 2, tswap(g, n))
        spread(cvt(g, n), b + 3, b + 8, work)
        tq = o.get("tq", 7) if n < 7 else 7
        if n >= 3: add(work, b + tq, [([] if o.get("nopf") else [fcheck(g, n + 1)]) + tload(g, n + 1)])
        if 2 <= n < 7 and not o.get("nopf"): add(work, b + max(tq, o.get("fq", 20)), [fload(g, n + 2)])
        s_ = o.get("ss7", 10) if full and n == 7 else ss
        add(work, b + s_, pstore(g, n))
        if full:
            if n == kvb:
                for k_, x in enumerate(kv_store()): add(work, b + s_ + o.get("kvo", [0, 0])[k_], x)
            add(work, b + s_, [flags])
    stream(g, sc, bars, work, hooks, pre, post, inb, bw, bv, act, aft)
    if o.get("sp"): e("s_setprio 0")
    for x in tswap(g, 8): g.put(x)
    e("s_nop 5")
    for x in cvt(g, 8) + pstore(g, 8): g.put(x)
    if not full: finish(g)
    else:
        assert told == set(range(7)) | {"rdy"}, told
        tail(g, nm)
        g.lab(f"{nm}_rdy_slow")
        e(f"s_mov_b32 s{S_N}, {SPIN}")
        g.lab(f"{nm}_rdy_lp")
        e(f"buffer_load_dword v{V_RDY}, v{V_L4}, s[{S_WS}:{S_WS+3}], 0 offen sc1")
        e(f"s_sub_u32 s{S_N}, s{S_N}, 1")
        e("s_waitcnt vmcnt(0)")
        e(f"s_cbranch_scc1 {nm}_rdy_back")
        e(f"v_cmp_ne_u32 vcc, s{S_ONES}, v{V_RDY}")
        e(f"s_cbranch_vccnz {nm}_rdy_lp")
        e(f"s_branch {nm}_rdy_back")
        g.lab(f"{nm}_tok_slow")
        e(f"s_mov_b32 s{S_N}, {SPIN}")
        g.lab(f"{nm}_tok_lp")
        e(f"buffer_load_dword v{V_TOK}, off, s[{S_DBG}:{S_DBG+3}], 0 sc1")
        e(f"s_sub_u32 s{S_N}, s{S_N}, 1")
        e("s_waitcnt vmcnt(0)")
        e(f"s_cbranch_scc1 {nm}_tok_back")
        e(f"v_readfirstlane_b32 s{S_TOK}, v{V_TOK}")
        e(f"s_cmp_eq_u32 s{S_TOK}, 0")
        e(f"s_cbranch_scc1 {nm}_tok_lp")
        e(f"s_branch {nm}_tok_back")
    g.L += g.ool
    g.lab(f"{name}_mk")
    e(f"s_mov_b32 s{S_T}, {EPO_OFF}")
    e(f"s_load_dword s{S_TOK}, s[{S_WS}:{S_WS+1}], s{S_T}")
    e(f"v_min_u32 v{V_T}, 1, v{V_LANE}")
    e(f"v_lshlrev_b32 v{V_T}, 31, v{V_T}")
    e("s_waitcnt lgkmcnt(0)")
    e(f"s_add_u32 s{S_TOK}, s{S_TOK}, 1")
    e(f"s_addc_u32 s{S_TOK}, s{S_TOK}, 0")
    e(f"v_mov_b32 v{V_L0}, s{S_TOK}")
    e(f"buffer_store_dword v{V_L0}, v{V_T}, s[{S_DBG}:{S_DBG+3}], 0 offen sc1")
    e(f"buffer_store_dword v{V_L0}, v{V_T}, s[{S_WS}:{S_WS+3}], s{S_T} offen sc1")
    e(f"s_branch {name}_mkb")
    g.lab(f"{name}_exit")
    e("s_endpgm")
    desc = f""".amdhsa_kernel {name}
  .amdhsa_next_free_vgpr 256
  .amdhsa_next_free_sgpr {102 if o.get('stamps') else 100}
  .amdhsa_accum_offset 256
  .amdhsa_group_segment_fixed_size 0
  .amdhsa_kernarg_size 112
  .amdhsa_user_sgpr_count 2
  .amdhsa_user_sgpr_kernarg_segment_ptr 1
  .amdhsa_system_sgpr_workgroup_id_x 1
.end_amdhsa_kernel"""
    return "\n".join(g.L) + "\n", desc
```

```python
import sys, json
import k14
KN = "parallel_sum__ssm_conv_h3__dense_activation_gelu__prompt_kernel"
def full(opt):
    b1, d1 = k14.gen(KN, opt)
    return (f"; @launch grid=(256,1,1) block=(512,1,1) lds={k14.LDS_SZ}\n"
            '.amdgcn_target "amdgcn-amd-amdhsa--gfx950"\n.text\n' + b1 +
            '.section .rodata,"a"\n.p2align 6\n' + d1 + "\n")
if __name__ == "__main__":
    opt = json.loads(sys.argv[2]) if len(sys.argv) > 2 else {}
    open(sys.argv[1], "w").write(full(opt))
```

```python
import struct, math
def f32bits(x): return struct.unpack("<I", struct.pack("<f", x))[0]

LDS_SZ = 163840
XL = 11 * 8192
KSTG = 73728
KSZ = 16384
TBL = 84128
STAMP_OFF = 32 << 20
KVT_OFF = 20 << 20
STAT_OFF = 24 << 20
FLAG_OFF = 25 << 20
RDY_OFF = 26 << 20
EPO_OFF = 27 << 20
XT_OFF = 28 << 20
JOBS = [[(0, 6), (27, 32)], [(6, 11), (22, 27)], [(11, 22)]]
WSTR = 8704
SPIN = 1 << 15

V_TID = 0; V_LANE = 1
V_TR = [2, 3, 4]
V_FR = 5; V_HW = 6; V_C1 = 7
V_O1 = 8; V_O2 = 9; V_BO = 10; V_ST = 11; V_L0 = 12
V_STAMP = 13; V_T = 14; V_T2 = 15
V_O1B = 52; V_O2B = 53; V_O1G = 54; V_O2G = 55
ACC = [16, 24]
WF = 32
WFS = [32, 36, 40, 44, 48, 52, 108]
S_KO = 35; S_FO = 1; S_DUM = 56
GT = 56; BI = 64; SP = 68; HP = 76; BIG = 112
XR = 76; LT = 112; BR = 63; V_QA = 60; V_SAD = 62; S_YT = 3; S_XO = 30
PKR = 56
V_K1 = 68; V_K2 = 69; V_KH = 69; V_HG = 55; V_DUM = 70; V_KFT = 71; V_XA = 72; V_XB = 73; V_KG = 74; V_KST = 75
XA = 64; XB = 68; V_KT = 53
VR = 76; KR = 84; SH = 96; KC = 100; KA = 104
V_FR2 = 56
V_TOK = 8; V_RDY = 60; V_L4 = 61; V_XO = 62; V_XS = 63; V_YO = 60; V_YS = 61; V_SA = 53; V_SB = 55
V_AF = 5; V_BF = 6; V_KV = 7; V_YW = 10; V_RA = 52; V_RB = 54; V_FA = 74; V_P = 75; V_CL = 110; V_OOB = 111
AF = 112; CACC = 176; BB = 224; NB = 6
LDA = 76; LDB = 16

S_TOK = 3
S_Q = 4; S_W1 = 8; S_W2 = 12; S_B1 = 16; S_DR = 20; S_WS = 24
S_J = 28; S_RB = 29; S_ROT = 30; S_W = 31; S_QW = 32; S_M0B = 33
S_GC = 34
S_N = 38; S_T = 39; S_T2 = 40
S_COL = 44
S_ROW = [16, 17, 18, 19, 36, 37, 41, 42, 43]
S_PB = 53; S_SI = 54; S_MH = 55
S_PC = 56; S_TM = 58; S_M0G = 56
S_FLG = 62; S_ONES = 63
S_K = 64; S_V = 68; S_SH = 72; S_KVO = 76
S_G = 77; S_PART = 78; S_INFO = 79
S_OUT = 80; S_KF = 84; S_DBG = 88; S_DP = 92; S_BP = 94; S_B2 = 96
S_TA = 92; S_TB = 93; S_IA = 94; S_IB = 95; S_BM = 57; S_KM = 30
S_BV = 64; S_LO = 72; S_HI = 73; S_D = 74; S_PX = 75; S_PY = 76; S_GX = 34; S_GY = 35; S_XM = 28; S_YM = 0; S_SO = 23; S_NX = 0; S_NY = 1; S_H2 = 8; S_CH = 9; S_FB = 10; S_GO = 11

S_PO = [11, 4, 5, 6, 7, 20, 21, 22]
S_WT = 35; S_KM2 = 35; S_PF = 56; V_PF = 68; TQ = 64; NP = 4

class G:
    def __init__(self, opt):
        self.L = []; self.o = opt
        self.lds = []; self.vm = []; self.done = set(); self.bdone = set()
    def e(self, s, tag=None):
        if s.endswith(" lds") and self.L[-1].split()[1:2] == ["m0,"]: self.L.append("  s_nop 0")
        self.L.append("  " + s)
        if s.startswith("ds_"): self.lds.append(tag)
        if s.startswith("buffer_") or s.startswith("global_"): self.vm.append(tag)
    def put(self, x):
        if isinstance(x, list):
            for y in x: self.put(y)
        elif callable(x): x()
        elif isinstance(x, tuple): self.e(x[0], x[1])
        else: self.e(x)
    def lab(self, s): self.L.append(s + ":")
    def _n(self, q, tags):
        idx = [i for i, t in enumerate(q) if t is not None and t in tags]
        if not idx: return None
        m = max(idx)
        for t in q[:m+1]:
            if t is not None: self.done.add(t)
        n = len(q) - 1 - m
        del q[:m+1]
        return n
    def wait(self, lds=(), vm=(), alllds=False, allvm=False):
        w = []
        if allvm:
            for t in self.vm: self.done.add(t)
            self.vm = []; w.append("vmcnt(0)")
        else:
            n = self._n(self.vm, set(vm))
            if n is not None: w.append(f"vmcnt({min(n, 63)})")
        if alllds:
            for t in self.lds: self.done.add(t)
            self.lds = []; w.append("lgkmcnt(0)")
        else:
            n = self._n(self.lds, set(lds))
            if n is not None: w.append(f"lgkmcnt({min(n, 15)})")
        if w: self.e("s_waitcnt " + " ".join(w))
    def stamp(self):
        if not self.o.get("stamps"): return
        self.e(f"s_memtime s[{S_TM}:{S_TM+1}]")
        self.e(f"s_memrealtime s[{S_TM+2}:{S_TM+3}]")
        self.e("s_mov_b32 s100, m0")
        self.e("s_waitcnt lgkmcnt(0)")
        self.e(f"s_mov_b32 m0, s{S_SI}")
        self.e(f"s_add_u32 s{S_SI}, s{S_SI}, 1")
        self.e(f"v_writelane_b32 v{V_STAMP}, s{S_TM}, m0")
        self.e(f"s_add_u32 m0, m0, 30")
        self.e(f"s_nop 0")
        self.e(f"v_writelane_b32 v{V_STAMP}, s{S_TM+2}, m0")
        self.e("s_mov_b32 m0, s100")
    def rstamp(self, lane):
        if not self.o.get("stamps"): return
        self.e(f"s_memrealtime s[{S_TM}:{S_TM+1}]")
        self.e("s_waitcnt lgkmcnt(0)")
        self.e(f"v_writelane_b32 v{V_STAMP}, s{S_TM}, {lane}")

def srd(g, s, nrec):
    g.e(f"s_mov_b32 s{s+2}, {nrec}")
    g.e(f"s_mov_b32 s{s+3}, 0x00020000")

SM = [1]
def slot(N, u):
    if N == 10 and u == 8: return 9
    if N % 2 == 0: return u
    if N == 7: return 11 + u
    if N > 8: return [13, 14, 15, 16, 17, 18, 19, 12, 11][u]
    if N < 9:
        if not SM[0]: return 11 + u
        return 10 + u if u else (9 if N == 1 else 19)
    if u == 8: return 11
    if not SM[0]: return 12 + u
    return 11 + u if u else 19

def dma(g, N, u, grp=False):
    L = [f"s_add_u32 m0, s{S_M0G if grp else S_M0B}, {slot(N, u) * 8192}"]
    if N < 9:
        L.append(f"s_add_u32 s{S_T}, s{S_COL+N}, {u*64*9216}")
        v, s = (V_O1G if grp else V_O1), S_W1
        v2 = V_O1B
    else:
        L.append(f"s_add_u32 s{S_T}, s{S_COL+N-9}, s{S_ROW[u]}")
        v, s = (V_O2G if grp else V_O2), S_W2
        v2 = V_O2B
    if g.o.get("nodma") and N: return [L]
    L.append((f"buffer_load_dwordx4 v{v}, s[{s}:{s+3}], s{S_T} offen lds", ("u", N, u)))
    if not grp: return [L]
    d2 = (f"buffer_load_dwordx4 v{v2}, s[{s}:{s+3}], s{S_T} offen offset:1024 lds", ("u", N, u))
    if g.o.get("dpair"): return [L + [d2]]
    return [L, [d2]]

def parts(N, ks):
    if N < 9: return [(ks // 2, 2*(ks % 2)), (ks // 2, 2*(ks % 2) + 1)]
    if ks < 16: return [(2*(ks // 4), ks % 4), (2*(ks // 4) + 1, ks % 4)]
    return [(8, 2*(ks - 16)), (8, 2*(ks - 16) + 1)]

def wreads(g, r):
    N, ks = r // 18, r % 18
    b = WFS[r % g.NF]
    L = []
    for h, (u, g16) in enumerate(parts(N, ks)):
        a = slot(N, u)*8192 + 2048*g16
        L.append((f"ds_read_b64_tr_b16 v[{b+2*h}:{b+2*h+1}], v{V_TR[a >> 16]} offset:{a & 0xffff}", ("w", r) if h else None))
    return L

def mfmas(g, i):
    N, ks = i // 18, i % 18
    b = WF + 4*(i % g.NF)
    L = []
    for t in range(2):
        c = ACC[N % 2] + 4*t
        f = BIG + 8*ks + 4*t
        src = f"v[{c}:{c+3}]" if ks else (f"v[{BI}:{BI+3}]" if N < 9 else "0")
        L.append(f"v_mfma_f32_16x16x32_bf16 v[{c}:{c+3}], v[{b}:{b+3}], v[{f}:{f+3}], {src}")
    return L

def sread(ph, k):
    ks, t = k // 2, k % 2
    if ph == 0:
        off = 4096*ks + 1024*t
        v = [V_FR, V_FR2, V_FR2 + 1, V_FR2 + 2][(off >> 16) + 2*(ks % 2)]
        return (f"ds_read_b128 v[{BIG+4*k}:{BIG+4*k+3}], v{v} offset:{off & 0xffff}", ("s", k))
    if ks < 16: return (f"ds_read_b128 v[{BIG+4*k}:{BIG+4*k+3}], v{V_FR} offset:{16384*(ks//4) + 2048*(ks%4) + 1024*t}", ("s", 36 + k))
    return (f"ds_read_b128 v[{BIG+4*k}:{BIG+4*k+3}], v{V_HW} offset:{2048*(ks-16) + 1024*t}", ("s", 36 + k))

def spread(items, s0, s1, work):
    n = len(items)
    for i, it in enumerate(items):
        s = s0 + (i * (s1 - s0)) // n
        work.setdefault(s, []).extend(it if isinstance(it, list) else [it])

def gelu_list(o, n):
    L = []
    A = ACC[n % 2]
    x = [A + i for i in range(8)]
    t = [GT + i for i in range(8)]
    def dst(i):
        if n == 8: return HP + 32 + i
        return HP + 8*(n // 2) + 4*(i // 2) + 2*(n % 2) + (i % 2)
    if o.get("nogelu"):
        return [f"v_cvt_pk_bf16_f32 v{dst(i)}, v{x[2*i]}, v{x[2*i+1]}" for i in range(4)]
    P = lambda r: f"v[{r}:{r+1}]"
    if o.get("pk", 0):
        sc = f"s[{S_GC}:{S_GC+1}]"
        for i in range(0, 8, 2): L.append(f"v_pk_mul_f32 {P(t[i])}, {P(x[i])}, {P(x[i])}")
        for i in range(0, 8, 2): L.append(f"v_pk_fma_f32 {P(t[i])}, {P(t[i])}, {sc}, {sc} op_sel:[0,0,1] op_sel_hi:[1,0,1]")
        for i in range(0, 8, 2): L.append(f"v_pk_mul_f32 {P(t[i])}, {P(t[i])}, {P(x[i])}")
        for i in range(8): L.append(f"v_exp_f32 v{t[i]}, v{t[i]}")
        for i in range(0, 8, 2): L.append(f"v_pk_add_f32 {P(t[i])}, {P(t[i])}, 1.0 op_sel_hi:[1,0]")
        for i in range(8): L.append(f"v_rcp_f32 v{t[i]}, v{t[i]}")
        for i in range(0, 8, 2): L.append(f"v_pk_mul_f32 {P(t[i])}, {P(t[i])}, {P(x[i])}")
    else:
        for i in range(8): L.append(f"v_mul_f32 v{t[i]}, v{x[i]}, v{x[i]}")
        for i in range(8): L.append(f"v_fma_f32 v{t[i]}, v{t[i]}, s{S_GC}, v{V_C1}")
        for i in range(8): L.append(f"v_mul_f32 v{t[i]}, v{t[i]}, v{x[i]}")
        for i in range(8): L.append(f"v_exp_f32 v{t[i]}, v{t[i]}")
        for i in range(8): L.append(f"v_add_f32 v{t[i]}, 1.0, v{t[i]}")
        for i in range(8): L.append(f"v_rcp_f32 v{t[i]}, v{t[i]}")
        for i in range(8): L.append(f"v_mul_f32 v{t[i]}, v{t[i]}, v{x[i]}")
    for i in range(4): L.append(f"v_cvt_pk_bf16_f32 v{dst(i)}, v{t[2*i]}, v{t[2*i+1]}")
    return L

def tload(g, n):
    L = [f"s_lshl_b32 s{S_T2}, s{S_COL+n}, 11", f"s_add_u32 s{S_T2}, s{S_T2}, s{S_PB}"]
    v = V_ST
    if n == 4:
        L = [f"s_lshl_b32 s{S_N}, s{S_J}, 31", f"v_or_b32 v{V_T}, s{S_N}, v{V_ST}"] + L; v = V_T
    L.append((f"buffer_load_dwordx4 v[{TQ}:{TQ+3}], v{v}, s[{S_WS}:{S_WS+3}], s{S_T2} offen {g.o.get('tfl', '')}", ("q", n)))
    return L

def fload(g, n):
    return [f"s_lshl1_add_u32 s{S_N}, s{S_COL+n}, s{S_PF}",
            (f"buffer_load_dword v{V_PF}, off, s[{S_WS}:{S_WS+3}], s{S_N} sc1", ("pf", n))]

def fcheck(g, n):
    def f():
        nm = f"{g.nm}_pf{n}"
        g.wait(vm=[("pf", n)])
        g.e(f"v_cmp_ne_u32 vcc, s{S_TOK}, v{V_PF}")
        g.e(f"s_cbranch_vccnz {nm}")
        g.lab(f"{nm}b")
        L = ([f"s_bitcmp1_b32 s{S_J}, 0", f"s_cbranch_scc1 {nm}b"] if n == 4 else []) + [
             f"s_lshl1_add_u32 s{S_N}, s{S_COL+n}, s{S_PF}", f"s_mov_b32 s{S_T2}, {SPIN}"]
        M = [f"buffer_load_dword v{V_PF}, off, s[{S_WS}:{S_WS+3}], s{S_N} sc1", f"s_sub_u32 s{S_T2}, s{S_T2}, 1", "s_waitcnt vmcnt(0)",
             f"s_cbranch_scc1 {nm}b", f"v_cmp_ne_u32 vcc, s{S_TOK}, v{V_PF}", f"s_cbranch_vccnz {nm}l", f"s_branch {nm}b"]
        g.ool += [f"{nm}:"] + ["  " + x for x in L] + [f"{nm}l:"] + ["  " + x for x in M]
    return f

def tswap(g, n):
    return [lambda: g.wait(vm=[("q", n)]), f"v_permlane16_swap_b32 v{TQ}, v{TQ+2}", f"v_permlane16_swap_b32 v{TQ+1}, v{TQ+3}"]

def cvt(g, n):
    A = ACC[(n + 9) % 2]; P = PKR + 4*(n % g.o.get("npk", 1))
    L = []
    if n >= 4:
        for i in range(4): L += [f"v_dot2c_f32_bf16 v{A+2*i}, s{S_LO}, v{TQ+i}", f"v_dot2c_f32_bf16 v{A+2*i+1}, s{S_HI}, v{TQ+i}"]
    L += [f"v_cvt_pk_bf16_f32 v{P+i}, v{A+2*i}, v{A+2*i+1}" for i in range(4)]
    L.append("s_nop 0")
    L.append(f"v_permlane16_swap_b32 v{P}, v{P+2}")
    L.append(f"v_permlane16_swap_b32 v{P+1}, v{P+3}")
    return L

def pstore(g, n):
    fl = g.o.get("stflags", "sc1")
    P = PKR + 4*(n % g.o.get("npk", 1))
    L = [f"s_lshl_b32 s{S_T2}, s{S_COL+n}, 11", f"s_add_u32 s{S_T2}, s{S_T2}, s{S_PB}"]
    st = f"buffer_store_dwordx4 v[{P}:{P+3}], v{V_ST}, s[{S_WS}:{S_WS+3}], s{S_T2} offen"
    if n > 4: L.append(f"s_add_u32 s{S_T2}, s{S_T2}, {4*72*32768}")
    if n == 4: L += [f"s_andn2_b32 s{S_N}, 1, s{S_J}", f"s_mul_i32 s{S_N}, s{S_N}, {4*72*32768}", f"s_add_u32 s{S_T2}, s{S_T2}, s{S_N}"]
    return L + [(f"{st} {g.o.get('gfl', 'sc1') if n < 4 else g.o.get('ffl', 'sc1')}", ("p", n))]

def flag_store(g, n):
    return [f"s_lshl1_add_u32 s{S_N}, s{S_COL+n}, s{S_FLG}",
            (f"buffer_store_dword v{V_TOK}, v{V_L0}, s[{S_WS}:{S_WS+3}], s{S_N} offen sc1", ("f", n))]

class Sched:
    def __init__(self, g, first):
        self.g = g
        A = [(N, u) for N in range(18) for u in range(9)]
        self.q = A[first:]
        self.own = {}
        for N, u in A[:first]: self.own[slot(N, u)] = (N, u)
        self.hold = {}
    def ok(self, N, u):
        s_ = slot(N, u)
        return s_ not in self.own and not (s_ in self.hold and N >= self.hold[s_])
    def claim(self, slots, nm):
        for s_ in slots:
            assert s_ not in self.own, (s_, nm, self.own[s_])
            self.own[s_] = nm
    def free(self, slots):
        for s_ in slots:
            assert isinstance(self.own[s_], str), (s_, self.own[s_])
            del self.own[s_]; self.hold.pop(s_, None)
    def release(self, i):
        for s_, x in list(self.own.items()):
            if isinstance(x, tuple):
                N, u = x
                last = max(ks for ks in range(18) if any(p[0] == u for p in parts(N, ks)))
                if 18*N + last <= i: del self.own[s_]
    def take(self, cap):
        R = []
        while self.q and len(R) < cap and self.ok(*self.q[0]):
            x = self.q.pop(0); self.own[slot(*x)] = x
            R.append(x)
        return R

def mfma(g, i, t):
    N, ks = i // 18, i % 18
    b = WFS[i % g.NF]
    c = ACC[N % 2] + 4*t
    f = BIG + 8*ks + 4*t
    src = f"v[{c}:{c+3}]" if ks else (f"v[{BI}:{BI+3}]" if N < 9 else "0")
    return f"v_mfma_f32_16x16x32_bf16 v[{c}:{c+3}], v[{b}:{b+3}], v[{f}:{f+3}], {src}"

def isvalu(x):
    t = x[0] if isinstance(x, tuple) else x
    return isinstance(t, str) and t.startswith("v_")

def seq(j):
    R = []
    for i in (2*j - 2, 2*j - 1): R.append((i, 1 - (i % 18) // 2 % 2) if i >= 0 else None)
    for i in (2*j, 2*j + 1): R.append((i, (i % 18) // 2 % 2) if i < 324 else None)
    return R
SO = [2*m[0] + m[1] for j in range(10) for m in seq(j) if m and m[0] < 18]

def stream(g, sc, bars, work, hooks, pre, post, inb, bw, bv, act, aft):
    o = g.o; D = g.NF - 2; E = D + D % 2 + 2
    i1 = 324
    first = lambda r: r - D % 2
    def need(r0):
        nx = min([first(b) for b in bars if b > r0] + [i1])
        return [("u", r // 18, p[0]) for r in range(first(r0), nx) for p in parts(r // 18, r % 18)]
    due = {}
    for b in bars:
        for t in need(b): due.setdefault(t[1:], (b - E) // 2)
    for r in range(D):
        for x in wreads(g, r): g.put(x)
        for x in inb.pop((-1, r), []): g.put(x)
    vq = []
    log = []
    for j in range(163):
        r = 2*j + E
        bar = r in bars
        tgt = o.get("tgt%d" % (1 + j // 81), o.get("tgt", 7))
        if bar:
            sc.release(2*j + 1)
            for f in act.pop(r, []): f()
            vq += pre.pop(r, [])
        X = []
        if vq: X.append(vq.pop(0))
        us = sc.take(1) if j < 162 else []
        while us and len(us) < o.get("dmax", 2) and sc.q and due[sc.q[0]] - j < tgt and sc.ok(*sc.q[0]): us += sc.take(1)
        log += [(j, u, due[u] - j) for u in us]
        if bar: vq += post.pop(r, [])
        dm = [dma(g, N, u)[0] for N, u in us]
        rr = [x for i in (2*j + D, 2*j + D + 1) if i < i1 and not o.get("noread") for x in wreads(g, i)]
        sl = dm[0][:2] if dm else []
        S = seq(j)
        def stag(m): return [("s", 2*m[0] + m[1])] if m[0] < 18 else [("s", 36 + 2*(m[0] - 162) + m[1])] if 162 <= m[0] < 180 else []
        for q, m in enumerate(S):
            tags = []
            if q == o.get("wq", 0) and j > 1:
                tags += [("w", 2*j), ("w", 2*j + 1)] + (["bias"] if j % 9 == 0 else [])
                if o.get("sw", 1): tags += [t for m2 in S if m2 for t in stag(m2)]
            if m:
                tags.append(("w", m[0]))
                tags += stag(m)
                for t in stag(m): assert t in g.lds or t in g.done, (j, t)
                if m[0] % 18 == 0: tags.append("bias")
                if o.get("sp") == 2 and q == 0: g.e("s_setprio 1")
                g.wait(lds=tags)
                if o.get("sp") == 1 and q == 0: g.e("s_setprio 1")
                if o.get("sp") == 3 and q == 0: g.e("s_setprio 0")
                if not o.get("nomfma"): g.e(mfma(g, *m))
                if o.get("sp") in (1, 2) and q == 3: g.e("s_setprio 0")
                if o.get("sp") == 3 and q == 3: g.e("s_setprio 1")
                for _ in range(2 if j == 0 else 1):
                    if rr: g.put(rr.pop(0))
                if sl: g.put(sl.pop(0))
                for x in inb.pop((j, q), []): g.put(x)
        assert not rr
        if bar:
            nd = need(r)
            assert not [t for t in nd if t[1:] in sc.q or t[1:] in us], r
            for t in bw.get(r, []) + bv.get(r, []): assert t in g.lds or t in g.vm or t in g.done, (r, t)
            g.wait(vm=nd + bv.pop(r, []), lds=bw.pop(r, []))
            if r in hooks: hooks.pop(r)()
            if r in o.get("sl", [8, 18, 26, 80, 152, 164, 180, 188, 206, 242, 278, 296, 310, 318]): g.stamp()
            if not o.get("nobar"): g.e("s_barrier")
            g.bdone = set(g.done)
        if dm:
            for x in dm[0][2:]: g.put(x)
        if bar:
            for x in aft.pop(r, []): g.put(x)
        V = [x for s_ in range(4*j - 2, 4*j + 2) for x in work.pop(s_, [])]
        if j == 162: work[4*j - 2] = V; break
        for Y in dm[1:]:
            for x in Y[:2]: g.put(x)
            for _ in range(o.get("dgap", 2)):
                if V and isvalu(V[0]): g.put(V.pop(0))
            for x in Y[2:]: g.put(x)
        k = o.get("xgap", 2)
        while k and V and isvalu(V[0]) and X:
            g.put(V.pop(0)); k -= 1
        for Y in X:
            for x in Y: g.put(x)
        for x in V: g.put(x)
    if o.get("log"): print(log)
    assert not (vq or inb or pre or post or bw or bv or act or aft or hooks), (vq, inb, pre, post, bw, bv, act, aft, hooks)
    assert not [s_ for s_ in work if s_ < 2*i1 and work[s_]], sorted(work)

def deal(items, j0, n, work):
    cost = [2 if x.startswith("v_exp") or x.startswith("v_rcp") else 1 for x in items]
    tot = sum(cost); cum = 0
    for x, c in zip(items, cost):
        work.setdefault(4*(j0 + min(n - 1, int((cum + c / 2) * n / tot))), []).append(x); cum += c

def finish(g):
    if g.o.get("stamps"):
        g.stamp()
        g.e("s_waitcnt vmcnt(0)")
        g.stamp()
        g.rstamp(63)
        g.e(f"s_lshl_b32 s{S_T}, s2, 11")
        g.e(f"s_add_u32 s{S_T}, s{S_T}, {STAMP_OFF}")
        g.e(f"v_lshlrev_b32 v{V_T}, 2, v{V_TID}")
        g.e(f"buffer_store_dword v{V_STAMP}, v{V_T}, s[{S_WS}:{S_WS+3}], s{S_T} offen")
    g.e("s_endpgm")

def bf16round(g, v):
    g.e(f"v_cvt_pk_bf16_f32 v{v}, v{v}, v{v}")
    g.e(f"v_and_b32 v{v}, 0xffff0000, v{v}")

class H:
    def __init__(self): self.L = []; self.e = self.L.append

def prologue(g, name):
    o = g.o; e = g.e; raw = lambda s_: g.L.append("  " + s_)
    full = not o.get("core")
    e("s_cmp_ge_u32 s2, 256")
    e(f"s_cbranch_scc1 {name}_exit")
    e(f"s_load_dwordx2 s[{S_Q}:{S_Q+1}], s[0:1], 0")
    if o.get("stamps"):
        e(f"s_mov_b32 s{S_SI}, 0"); e(f"v_mov_b32 v{V_STAMP}, 0")
        g.rstamp(62)
        g.stamp()
    ep = o.get("ep", 0)
    if ep:
        e(f"s_getpc_b64 s[{S_PC}:{S_PC+1}]")
        e(f"v_lshrrev_b32 v{V_T}, {ep}, v{V_TID}")
        e(f"v_lshlrev_b32 v{V_T}, 7, v{V_T}")
        raw(f"global_load_dword v{V_DUM}, v{V_T}, s[{S_PC}:{S_PC+1}] offset:128")
    KA_ = [f"s_load_dwordx2 s[{s_}:{s_+1}], s[0:1], {off}" for s_, off in ((S_W1, 56), (S_B1, 64), (S_W2, 72), (S_WS, 104), (S_K, 8), (S_V, 16),
           (S_SH, 24), (S_KF, 32), (S_DP, 40), (S_BP, 80), (S_OUT, 88), (S_DBG, 96))]
    if o.get("kae", 0):
        for x in KA_: e(x)
    e(f"s_lshr_b32 s{S_RB}, s2, 4")
    e(f"s_and_b32 s{S_T}, s2, 4")
    e(f"s_lshl2_add_u32 s{S_RB}, s{S_T}, s{S_RB}")
    e(f"v_lshrrev_b32 v{LT}, 3, v{V_TID}")
    e(f"s_and_b32 s{S_T}, s2, 8")
    e(f"s_lshl_b32 s{S_T}, s{S_T}, 2")
    e(f"v_xor_b32 v{LT}, s{S_T}, v{LT}")
    e(f"v_and_b32 v{LT+1}, 7, v{V_TID}")
    e(f"s_mul_i32 s{S_T2}, s{S_RB}, {64*1152}")
    e(f"v_lshl_add_u32 v{LT+6}, v{LT+1}, 4, s{S_T2}")
    e(f"v_mul_u32_u24 v{LT+2}, 1152, v{LT}")
    e(f"v_add_u32 v{LT+6}, v{LT+6}, v{LT+2}")
    e(f"v_cmp_gt_u32 vcc, 256, v{V_TID}")
    srd(g, S_Q, 2359296)
    e("s_waitcnt lgkmcnt(0)")
    if o.get("pst"): g.stamp()
    xl = lambda i: f"buffer_load_dwordx4 v[{XR+4*i}:{XR+4*i+3}], v{LT+6}, s[{S_Q}:{S_Q+3}], 0 offen offset:{128*i}"
    y0 = o.get("y0", 1)
    for i in range(9):
        if i == y0: e(f"s_cbranch_vccz {name}_y0")
        raw(xl(i))
    e(f"s_getpc_b64 s[{S_PC}:{S_PC+1}]")
    g.lab(f"{name}_pc")
    e(f"s_lshr_b32 s{S_T}, s2, 3")
    e(f"v_lshl_add_u32 v{V_T}, v{V_TID}, 5, s{S_T}")
    e(f"v_lshlrev_b32 v{V_T}, 7, v{V_T}")
    e(f"v_min_u32 v{V_T}, {name}_exit-{name}_pc, v{V_T}")
    raw(f"global_load_dword v{V_DUM}, v{V_T}, s[{S_PC}:{S_PC+1}]")
    g.lab(f"{name}_y0")
    if not o.get("kae", 0):
        for x in KA_: e(x)
    if o.get("pst"): g.stamp()
    h = H(); e = h.e
    e(f"v_lshrrev_b32 v{V_T}, 6, v{V_TID}")
    e(f"v_and_b32 v{V_LANE}, 63, v{V_TID}")
    e(f"v_readfirstlane_b32 s{S_W}, v{V_T}")
    e(f"s_and_b32 s{S_J}, s2, 3")
    e(f"s_bfe_u32 s{S_T}, s2, {3 | (1 << 16)}")
    e(f"s_lshl1_add_u32 s{S_J}, s{S_J}, s{S_T}")
    srd(h, S_W1, 5308416); srd(h, S_W2, 5308416); srd(h, S_B1, 9216)
    srd(h, S_WS, 268435456)
    srd(h, S_K, 2359296); srd(h, S_V, 2359296); srd(h, S_SH, 4608)
    srd(h, S_KF, 2359296); srd(h, S_OUT, 2359296); srd(h, S_DBG, 256)
    e(f"s_and_b32 s{S_QW}, s{S_W}, 3")
    e(f"s_lshr_b32 s{S_MH}, s{S_W}, 2")
    e(f"s_lshl_b32 s{S_M0B}, s{S_W}, 10")
    e(f"s_lshl2_add_u32 s{S_ROT}, s{S_T}, s{S_RB}")
    e(f"s_mul_i32 s{S_T}, s{S_ROT}, 57")
    e(f"s_lshr_b32 s{S_T}, s{S_T}, 9")
    e(f"s_mul_i32 s{S_T}, s{S_T}, 9")
    e(f"s_sub_u32 s{S_ROT}, s{S_ROT}, s{S_T}")
    e(f"s_lshl_b32 s{S_COL}, s{S_ROT}, 7")
    for u in range(1, 9):
        e(f"s_add_u32 s{S_COL+u}, s{S_COL+u-1}, 128")
        e(f"s_cmp_eq_u32 s{S_COL+u}, 1152")
        e(f"s_cselect_b32 s{S_COL+u}, 0, s{S_COL+u}")
    e(f"v_lshrrev_b32 v{LT+3}, 3, v{V_TID}")
    e(f"v_and_b32 v{LT+4}, 6, v{LT+3}")
    e(f"v_xor_b32 v{LT+4}, v{LT+4}, v{LT+1}")
    e(f"v_lshlrev_b32 v{LT+4}, 4, v{LT+4}")
    e(f"s_mul_i32 s{S_N}, s{S_J}, 1152")
    e(f"v_mul_u32_u24 v{V_O1}, 9216, v{LT+3}")
    e(f"v_add3_u32 v{V_O1}, v{V_O1}, v{LT+4}, s{S_N}")
    e(f"s_mul_i32 s{S_T}, s{S_J}, {576*1152}")
    e(f"v_mul_u32_u24 v{V_O2}, 1152, v{LT+3}")
    e(f"v_add3_u32 v{V_O2}, v{V_O2}, v{LT+4}, s{S_T}")
    e(f"s_lshl_b32 s{S_T}, s{S_QW}, 1")
    e(f"s_sub_u32 s{S_T}, s{S_T}, s{S_W}")
    e(f"s_mul_i32 s{S_T2}, s{S_T}, {8*9216}")
    e(f"v_add_u32 v{V_O1G}, s{S_T2}, v{V_O1}")
    e(f"v_add_u32 v{V_O1B}, {8*9216-1024}, v{V_O1G}")
    e(f"s_lshl_b32 s{S_M0G}, s{S_QW}, 11")
    by = o.get("by", 1)
    if by:
        e(f"v_and_b32 v{V_BO}, 255, v{V_TID}")
        e(f"v_lshl_add_u32 v{V_BO}, v{V_BO}, 3, s{S_COL}")
    else: e(f"v_lshl_add_u32 v{V_BO}, v{V_TID}, 2, s{S_COL}")
    e(f"v_subrev_u32 v{V_T}, 1152, v{V_BO}")
    e(f"v_min_u32 v{V_BO}, v{V_BO}, v{V_T}")
    e(f"v_add_u32 v{V_BO}, s{S_N}, v{V_BO}")
    e(f"v_lshrrev_b32 v{LT+8}, 4, v{V_LANE}")
    e(f"v_lshrrev_b32 v{LT+9}, 2, v{V_LANE}")
    e(f"v_lshlrev_b32 v{V_TR[0]}, 7, v{LT+9}")
    e(f"v_bfe_u32 v{LT+9}, v{V_LANE}, 3, 2")
    e(f"v_xor_b32 v{LT+9}, s{S_QW}, v{LT+9}")
    e(f"v_lshl_add_u32 v{V_TR[0]}, v{LT+9}, 5, v{V_TR[0]}")
    e(f"v_and_b32 v{LT+9}, 3, v{V_LANE}")
    e(f"v_lshl_add_u32 v{V_TR[0]}, v{LT+9}, 3, v{V_TR[0]}")
    e(f"v_add_u32 v{V_TR[1]}, 65536, v{V_TR[0]}")
    e(f"v_add_u32 v{V_TR[2]}, 131072, v{V_TR[0]}")
    e(f"s_lshl_b32 s{S_T}, s{S_MH}, 11")
    e(f"s_add_u32 s{S_T}, s{S_T}, {XL}")
    e(f"v_lshrrev_b32 v{LT+7}, 5, v{V_LANE}")
    e(f"v_mul_u32_u24 v{LT+7}, 26, v{LT+7}")
    e(f"v_and_b32 v{V_FR}, 15, v{V_LANE}")
    e(f"v_xor_b32 v{V_FR}, v{V_FR}, v{LT+7}")
    e(f"v_and_b32 v{LT+7}, 16, v{V_LANE}")
    e(f"v_lshl_add_u32 v{V_FR}, v{LT+7}, 1, v{V_FR}")
    e(f"v_lshl_add_u32 v{V_FR}, v{V_FR}, 4, s{S_T}")
    e(f"v_add_u32 v{V_FR2}, 65536, v{V_FR}")
    e(f"v_xor_b32 v{V_FR2+1}, 64, v{V_FR}")
    e(f"v_xor_b32 v{V_FR2+2}, 64, v{V_FR2}")
    e(f"v_and_b32 v{LT+9}, 1, v{V_LANE}")
    e(f"v_mul_u32_u24 v{LT+9}, 26, v{LT+9}")
    e(f"v_and_b32 v{LT+2}, 15, v{LT}")
    e(f"v_xor_b32 v{LT+2}, v{LT+2}, v{LT+9}")
    e(f"v_and_b32 v{LT+9}, 48, v{LT}")
    e(f"v_lshl_add_u32 v{LT+2}, v{LT+9}, 2, v{LT+2}")
    e(f"v_and_b32 v{LT+9}, 4, v{V_LANE}")
    e(f"v_xor_b32 v{LT+2}, v{LT+2}, v{LT+9}")
    e(f"v_lshl_add_u32 v{LT+2}, v{LT+9}, 6, v{LT+2}")
    e(f"v_lshlrev_b32 v{LT+2}, 4, v{LT+2}")
    e(f"v_and_b32 v{LT+9}, 2, v{V_LANE}")
    e(f"v_lshl_add_u32 v{LT+2}, v{LT+9}, 2, v{LT+2}")
    e(f"v_add_u32 v{LT+2}, {XL}, v{LT+2}")
    c1 = 2.0 * math.sqrt(2.0 / math.pi) * math.log2(math.e)
    e(f"v_mov_b32 v{V_C1}, 0x{f32bits(-c1):08x}")
    e(f"s_mov_b32 s{S_GC}, 0x{f32bits(-c1*0.044715):08x}")
    e(f"v_or_b32 v{V_SAD}, s{S_J}, v{LT+1}")
    e(f"v_lshlrev_b32 v{V_SAD}, 28, v{V_SAD}")
    e(f"v_lshl_add_u32 v{V_SAD}, v{LT}, 3, v{V_SAD}")
    SA, SB, QA, QB, ONE = LT+10, LT+11, V_QA, V_QA+1, LT+14
    for r in (SA, SB, QA, QB): e(f"v_mov_b32 v{r}, 0")
    e(f"v_mov_b32 v{ONE}, 0x3f803f80")
    e(f"s_lshr_b32 s{S_T}, s2, 3")
    e(f"s_mul_i32 s{S_PART}, s{S_T}, 57")
    e(f"s_lshr_b32 s{S_PART}, s{S_PART}, 9")
    e(f"s_and_b32 s{S_G}, s2, 7")
    e(f"s_sub_u32 s{S_G}, s{S_G}, s{S_PART}")
    e(f"s_mul_i32 s{S_G}, s{S_G}, 9")
    e(f"s_add_u32 s{S_G}, s{S_G}, s{S_T}")
    e(f"s_lshl_b32 s{S_T}, s{S_G}, 4")
    S1 = atoms(h.L)
    DB = [f"s_load_dwordx4 s[{S_DR}:{S_DR+3}], s[{S_DP}:{S_DP+1}], s{S_T}", f"s_load_dwordx4 s[{S_B2}:{S_B2+3}], s[{S_BP}:{S_BP+1}], s{S_T}"]
    S1.append(([] if o.get("kae", 0) else ["s_waitcnt lgkmcnt(0)"]) + DB)
    S2 = (atoms(setup2()) + (setup3(o) if full else [])) if o.get("sup", 1) else []
    e = g.e
    cnt = [0]
    def hook(L):
        cnt[0] += 1
        e(f"s_cbranch_vccnz {name}_h{cnt[0]}")
        for x in L: raw(x)
        g.lab(f"{name}_h{cnt[0]}")
    def weave(S, Hs, f0, f1):
        at = [int(len(S) * (f0 + (f1 - f0) * k / max(1, len(Hs) - 1))) for k in range(len(Hs))]
        for k in range(len(S) + 1):
            for a_, L in zip(at, Hs):
                if a_ == k: hook(L)
            if k < len(S):
                for x in S[k]: e(x)
    def gdma(u, st):
        N, u = u // 9, u % 9
        return [[f"s_add_u32 m0, s{S_M0G}, {slot(N, u) * 8192}", f"s_add_u32 s{st}, s{S_COL+N}, {u*64*9216}",
                 f"buffer_load_dwordx4 v{V_O1G}, s[{S_W1}:{S_W1+3}], s{st} offen lds"],
                [f"buffer_load_dwordx4 v{V_O1B}, s[{S_W1}:{S_W1+3}], s{st} offen offset:1024 lds"]]
    weave(S1, [[xl(i)] for i in range(y0, 9)], *o.get("wv1", [0.1, 1.0]))
    e(f"s_or_b32 s{S_T}, s2, s{S_W}")
    e(f"s_cbranch_scc0 {name}_mk")
    g.lab(f"{name}_mkb")
    if o.get("pst"): g.stamp()
    ny = o.get("ny", 1)
    H2 = sum([gdma(u, S_YT) for u in range(ny)], [])
    if by: H2[0] = [f"buffer_load_dwordx2 v[{LT+32}:{LT+33}], v{V_BO}, s[{S_B1}:{S_B1+3}], 0 offen"] + H2[0]
    else: raw(f"buffer_load_dword v{BR}, v{V_BO}, s[{S_B1}:{S_B1+3}], 0 offen")
    weave(S2, H2, *o.get("wv2", [0.0, 1.0]))
    if o.get("pst"): g.stamp()
    def stats(later):
        for i in range(9):
            e(f"s_waitcnt vmcnt({8 - i + later})")
            if i == 0 and o.get("pst"): g.stamp()
            for c in range(4):
                x = XR + 4*i + c
                e(f"v_dot2c_f32_bf16 v{SA if c%2==0 else SB}, v{x}, v{ONE}")
                e(f"v_dot2c_f32_bf16 v{QA if c%2==0 else QB}, v{x}, v{x}")
    e(f"s_cbranch_vccz {name}_sy")
    stats(2 - by)
    if not by: e("s_waitcnt vmcnt(0)")
    e(f"s_branch {name}_sj")
    g.lab(f"{name}_sy")
    stats(1 + 2*ny)
    e(f"s_waitcnt vmcnt({2*ny})")
    g.lab(f"{name}_sj")
    if o.get("pst") or o.get("ps2"): g.stamp()
    pl = o.get("pl", [-1, -1, -1, 2, 4, 6, 8, 9, 9])
    ool = []
    def pd(pos):
        us = [ny + k for k in range(len(pl)) if pl[k] == pos]
        if not us: return
        e(f"s_cbranch_vccnz {name}_p{pos + 1}")
        g.lab(f"{name}_p{pos + 1}b")
        ool.append(f"{name}_p{pos + 1}:")
        for u in us:
            for x in sum(gdma(u, S_T), []): ool.append("  " + x)
            g.vm.extend([("u", u // 9, u % 9)] * 2)
        ool.append(f"  s_branch {name}_p{pos + 1}b")
    pd(-1)
    e("s_nop 2")
    e(f"v_add_f32 v{SA}, v{SA}, v{SB}")
    e(f"v_add_f32 v{QA}, v{QA}, v{QB}")
    for dpp in ("quad_perm:[1,0,3,2]", "quad_perm:[2,3,0,1]", "row_half_mirror"):
        e("s_nop 0")
        e(f"v_add_f32 v{SA}, v{SA}, v{SA} {dpp} row_mask:0xf bank_mask:0xf")
        e(f"v_add_f32 v{QA}, v{QA}, v{QA} {dpp} row_mask:0xf bank_mask:0xf")
    inv = f"0x{f32bits(1.0/576.0):08x}"
    e(f"v_mul_f32 v{SA}, {inv}, v{SA}")
    e(f"v_mul_f32 v{QA}, {inv}, v{QA}")
    e(f"v_fma_f32 v{QA}, -v{SA}, v{SA}, v{QA}")
    e(f"v_max_f32 v{QA}, 0, v{QA}")
    bf16round(g, SA)
    bf16round(g, QA)
    e(f"v_add_f32 v{QA}, 0x{f32bits(1e-5):08x}, v{QA}")
    bf16round(g, QA)
    e(f"v_sqrt_f32 v{QA}, v{QA}")
    e("s_nop 0")
    bf16round(g, QA)
    e(f"v_rcp_f32 v{QA}, v{QA}")
    e("s_nop 0")
    e(f"v_mul_f32 v{QB}, -v{SA}, v{QA}")
    assert QA % 2 == 0
    T0 = LT + 16
    for i in range(9):
        t = T0 + 8*(i % 2)
        for c in range(4):
            x = XR + 4*i + c
            e(f"v_lshlrev_b32 v{t+2*c}, 16, v{x}")
            e(f"v_and_b32 v{t+2*c+1}, 0xffff0000, v{x}")
        for c in range(4):
            e(f"v_pk_fma_f32 v[{t+2*c}:{t+2*c+1}], v[{t+2*c}:{t+2*c+1}], v[{QA}:{QA+1}], v[{QA}:{QA+1}] op_sel:[0,0,1] op_sel_hi:[1,0,1]")
        x = 16 + 4*i
        for c in range(4): e(f"v_cvt_pk_bf16_f32 v{x+c}, v{t+2*c}, v{t+2*c+1}")
        e(f"ds_write2st64_b64 v{LT+2}, v[{x}:{x+1}], v[{x+2}:{x+3}] offset0:{16*i} offset1:{16*i+1}")
        if i == 1 and by:
            hook([f"v_lshlrev_b32 v{LT+36}, 16, v{LT+32}", f"v_and_b32 v{LT+37}, 0xffff0000, v{LT+32}", f"v_lshlrev_b32 v{LT+38}, 16, v{LT+33}",
                  f"v_and_b32 v{LT+39}, 0xffff0000, v{LT+33}", f"v_lshlrev_b32 v{V_BO}, 4, v{V_TID}", f"v_add_u32 v{V_BO}, {TBL - 4096}, v{V_BO}",
                  f"ds_write_b128 v{V_BO}, v[{LT+36}:{LT+39}]"])
        elif i == 1:
            e(f"v_lshlrev_b32 v{SA}, 16, v{BR}")
            e(f"v_and_b32 v{SB}, 0xffff0000, v{BR}")
            e(f"v_lshlrev_b32 v{V_BO}, 3, v{V_TID}")
            e(f"v_add_u32 v{V_BO}, {TBL}, v{V_BO}")
            e(f"ds_write_b64 v{V_BO}, v[{SA}:{SB}]")
        pd(i)
    if o.get("pst"): g.stamp()
    e(f"s_lshl_b32 s{S_T}, s{S_QW}, 6")
    e(f"s_add_u32 s{S_T}, s{S_T}, {TBL}")
    e(f"v_lshl_add_u32 v{V_BO}, v{LT+8}, 4, s{S_T}")
    pd(9)
    e(f"s_cbranch_vccnz {name}_pe")
    e("s_waitcnt vmcnt(0)")
    e(f"s_branch {name}_pe")
    g.L += ool
    g.lab(f"{name}_pe")
    for u in range(ny): g.done.add(("u", 0, u))
    fb = o.get("xr", [[8]])[0][0]
    g.wait(vm=[("u", 0, u) for u in range((fb + 1)//2)], alllds=True)
    g.stamp()
    e("s_barrier")
    return ny + len(pl)

def bias_read(n):
    return [(f"ds_read_b128 v[{BI}:{BI+3}], v{V_BO} offset:{256*n}", "bias")]

def setup2():
    L = []; e = L.append
    for u in range(9): e(f"s_mul_i32 s{S_ROW[u]}, s{S_COL+u}, 576")
    e(f"v_and_b32 v{V_ST}, 31, v{V_LANE}")
    e(f"v_lshlrev_b32 v{V_ST}, 4, v{V_ST}")
    e(f"v_lshrrev_b32 v{V_T}, 5, v{V_LANE}")
    e(f"v_lshl_add_u32 v{V_ST}, v{V_T}, 15, v{V_ST}")
    e(f"s_and_b32 s{S_PB}, s2, 3")
    e(f"s_mul_i32 s{S_PB}, s{S_PB}, 36")
    e(f"s_add_u32 s{S_PB}, s{S_PB}, s{S_QW}")
    e(f"s_lshl_b32 s{S_PB}, s{S_PB}, 6")
    e(f"s_add_u32 s{S_PB}, s{S_PB}, s{S_RB}")
    e(f"s_lshl1_add_u32 s{S_PB}, s{S_PB}, s{S_MH}")
    e(f"s_lshl_b32 s{S_PB}, s{S_PB}, 9")
    e(f"s_lshl_b32 s{S_N}, s{S_W}, 11")
    e(f"v_lshl_add_u32 v{V_HW}, v{V_LANE}, 4, s{S_N}")
    e(f"v_min_u32 v{V_L0}, 1, v{V_TID}")
    e(f"v_lshlrev_b32 v{V_L0}, 31, v{V_L0}")
    e(f"s_mul_i32 s{S_FLG}, s{S_RB}, 36")
    e(f"s_add_u32 s{S_FLG}, s{S_FLG}, s{S_QW}")
    e(f"s_lshl1_add_u32 s{S_FLG}, s{S_FLG}, s{S_MH}")
    e(f"s_lshl3_add_u32 s{S_FLG}, s{S_FLG}, s{S_J}")
    e(f"s_lshl2_add_u32 s{S_FLG}, s{S_FLG}, {FLAG_OFF}")
    return L

def atoms(L):
    R = []; open_ = False
    for x in L:
        t = x[0] if isinstance(x, tuple) else x
        if isinstance(t, str) and (t.startswith("s_cselect") or (open_ and t.startswith("s_mov"))): R[-1].append(x)
        else:
            R.append([x]); open_ = isinstance(t, str) and t.startswith("s_cmp")
    return R

def setup3(o):
    L = []; e = L.append
    e(f"s_lshr_b32 s{S_T2}, s2, 3")
    e(f"s_and_b32 s{S_ONES}, s2, 7")
    e(f"s_mul_i32 s{S_INFO}, s{S_T2}, 576")
    e(f"s_add_u32 s{S_INFO}, s{S_INFO}, s{S_ONES}")
    e(f"s_lshl_b32 s{S_INFO}, s{S_INFO}, 7")
    e(f"s_lshl_b32 s{S_N}, s{S_ONES}, 11")
    e(f"s_add_u32 s{S_N}, s{S_N}, s{S_T2}")
    e(f"s_lshl_b32 s{S_N}, s{S_N}, 7")
    e(f"s_and_b32 s{S_T2}, s2, 31")
    e(f"s_mul_i32 s{S_T}, s{S_T2}, {64*1152}")
    e(f"s_lshl_b32 s{S_T2}, s{S_T2}, 7")
    e(f"s_brev_b32 s{S_ONES}, 1")
    e(f"s_cmp_ge_u32 s2, 224")
    e(f"s_cselect_b32 s{S_KM2}, 1024, s{S_ONES}")
    e(f"s_cselect_b32 s{S_ONES}, {8 << 18}, s{S_ONES}")
    e(f"s_add_u32 s{S_T}, s{S_T}, s{S_KM2}")
    e(f"s_add_u32 s{S_T2}, s{S_T2}, s{S_ONES}")
    e(f"s_sub_u32 s{S_KM2}, s{S_T}, s{S_INFO}")
    e(f"s_sub_u32 s{S_T2}, s{S_T2}, s{S_N}")
    e(f"s_lshl_b32 s{S_KM}, s{S_W}, 10")
    e(f"s_mul_i32 s{S_T}, s{S_KM}, 9")
    e(f"s_add_u32 s{S_T}, s{S_T}, s{S_INFO}")
    e(f"s_add_u32 s{S_KM}, s{S_KM}, {KSTG}")
    e(f"s_mov_b32 s{S_KVO}, {KVT_OFF}")
    e(f"v_lshrrev_b32 v{V_T}, 3, v{V_LANE}")
    e(f"v_and_b32 v{V_T2}, 7, v{V_LANE}")
    e(f"v_mul_u32_u24 v{V_K1}, 1152, v{V_T}")
    e(f"v_xor_b32 v{V_KG}, s{S_W}, v{V_T2}")
    e(f"v_lshl_add_u32 v{V_K1}, v{V_KG}, 4, v{V_K1}")
    e(f"v_add_u32 v{V_K1}, s{S_T}, v{V_K1}")
    e(f"v_and_b32 v{V_T}, 3, v{V_T}")
    e(f"v_lshl_add_u32 v{V_KG}, v{V_KG}, 2, v{V_T}")
    e(f"v_lshl_add_u32 v{V_KG}, v{V_T2}, 8, v{V_KG}")
    e(f"v_bfe_i32 v{V_KFT}, v{V_LANE}, 5, 1")
    e(f"v_and_b32 v{V_KH}, 2048, v{V_KFT}")
    e(f"v_add_u32 v{V_KH}, {(KSTG - 1024) // 4}, v{V_KH}")
    e(f"v_add_lshl_u32 v{V_KG}, v{V_KG}, v{V_KH}, 2")
    e(f"v_add_u32 v{V_KH}, -1, v{V_T2}")
    e(f"v_xor_b32 v{V_KH}, v{V_KH}, v{V_T2}")
    e(f"v_and_b32 v{V_KH}, 7, v{V_KH}")
    e(f"v_lshlrev_b32 v{V_KH}, 4, v{V_KH}")
    e(f"v_xor_b32 v{V_KH}, v{V_KH}, v{V_KG}")
    e(f"v_lshl_add_u32 v{V_T}, s{S_W}, 2, v{V_T}")
    e(f"v_and_b32 v{V_KST}, s{S_T2}, v{V_KFT}")
    e(f"v_lshl_add_u32 v{V_KST}, v{V_T}, 13, v{V_KST}")
    e(f"v_lshl_add_u32 v{V_T2}, v{V_T2}, 4, s{S_N}")
    e(f"v_add_u32 v{V_KST}, v{V_KST}, v{V_T2}")
    e(f"v_and_b32 v{V_KT}, s{S_KM2}, v{V_KFT}")
    e(f"s_sub_u32 s{S_N}, s{S_INFO}, 3456")
    e(f"v_lshl_add_u32 v{V_T2}, v{V_T}, 2, s{S_N}")
    e(f"v_add_u32 v{V_KT}, v{V_KT}, v{V_T2}")
    e(f"v_lshl_add_u32 v{V_T}, v{V_T}, 1, -1")
    e(f"v_bfe_i32 v{V_T2}, v{V_LANE}, 2, 1")
    e(f"v_and_b32 v{V_T}, v{V_T}, v{V_T2}")
    e(f"v_and_b32 v{V_T2}, 7, v{V_LANE}")
    e(f"v_add_u32 v{V_T}, v{V_T}, v{V_T2}")
    e(f"v_mul_u32_u24 v{V_T}, 1152, v{V_T}")
    e(f"v_add_u32 v{V_KT}, v{V_KT}, v{V_T}")
    if "st" not in o: e(f"s_lshl3_add_u32 s{S_N}, s{S_PART}, s{S_W}")
    if "st" not in o: e(f"s_mul_i32 s{S_N}, s{S_N}, 11")
    if "st" not in o: e(f"v_add_u32 v{V_KFT}, s{S_N}, v{V_LANE}")
    if "st" not in o: e(f"v_min_u32 v{V_KFT}, 255, v{V_KFT}")
    if "st" not in o: e(f"s_lshl_b32 s{S_N}, s{S_G}, 8")
    if "st" not in o: e(f"v_add_lshl_u32 v{V_KFT}, v{V_KFT}, s{S_N}, 7")
    e(f"s_mov_b32 s{S_INFO}, 0")
    for p_, job in enumerate(JOBS):
        a0 = job[0][0]; l0 = job[0][1] - job[0][0]
        a1 = job[1][0] - l0 if len(job) > 1 else a0
        n = sum(b - a for a, b in job)
        e(f"s_cmp_eq_u32 s{S_PART}, {p_}")
        e(f"s_cselect_b32 s{S_INFO}, {a0 | (l0 << 8) | (a1 << 16) | (n << 24)}, s{S_INFO}")
    e(f"s_bfe_u32 s{S_N}, s{S_INFO}, {8 | (8 << 16)}")
    e(f"s_bfe_u32 s{S_T2}, s{S_INFO}, {16 | (8 << 16)}")
    e(f"s_and_b32 s{S_ONES}, s{S_INFO}, 255")
    e(f"s_add_u32 s{S_IB}, s{S_W}, 8")
    e(f"s_cmp_lt_u32 s{S_W}, s{S_N}")
    e(f"s_cselect_b32 s{S_TA}, s{S_ONES}, s{S_T2}")
    e(f"s_cmp_lt_u32 s{S_IB}, s{S_N}")
    e(f"s_cselect_b32 s{S_TB}, s{S_ONES}, s{S_T2}")
    e(f"s_add_u32 s{S_TA}, s{S_TA}, s{S_W}")
    e(f"s_add_u32 s{S_TB}, s{S_TB}, s{S_IB}")
    e(f"s_lshr_b32 s{S_INFO}, s{S_INFO}, 24")
    e(f"s_cmp_lt_u32 s{S_IB}, s{S_INFO}")
    e(f"s_cselect_b32 s{S_BM}, 0xffff0000, 0")
    e(f"s_cselect_b32 s{S_TB}, s{S_TB}, s{S_TA}")
    e(f"s_lshr_b32 s{S_N}, s{S_G}, 3")
    e(f"s_add_u32 s{S_N}, s{S_N}, 36")
    e(f"s_sub_u32 s{S_T2}, s{S_N}, s{S_TB}")
    e(f"s_sub_u32 s{S_N}, s{S_N}, s{S_TA}")
    for r in (S_N, S_T2):
        e(f"s_mul_i32 s{S_ONES}, s{r}, 57")
        e(f"s_lshr_b32 s{S_ONES}, s{S_ONES}, 9")
        e(f"s_mul_i32 s{S_ONES}, s{S_ONES}, 9")
        e(f"s_sub_u32 s{r}, s{r}, s{S_ONES}")
        e(f"s_cmp_lt_u32 s{r}, 4")
        e(f"s_cselect_b32 s{S_ONES}, 11, 0")
        e(f"s_lshl1_add_u32 s{r}, s{r}, s{S_ONES}")
    e(f"s_min_u32 s{S_NX}, s{S_N}, s{S_T2}")
    e(f"s_max_u32 s{S_NY}, s{S_N}, s{S_T2}")
    e(f"s_cmp_gt_u32 s{S_N}, s{S_T2}")
    e(f"s_cselect_b32 s{S_ONES}, s{S_TB}, s{S_TA}")
    e(f"s_cselect_b32 s{S_TB}, s{S_TA}, s{S_TB}")
    e(f"s_mov_b32 s{S_TA}, s{S_ONES}")
    e(f"s_cselect_b32 s{S_IA}, s{S_IB}, s{S_W}")
    e(f"s_cselect_b32 s{S_IB}, s{S_W}, s{S_IB}")
    e(f"v_mul_u32_u24 v{V_T}, 1152, v{V_LANE}")
    e(f"s_mul_i32 s{S_N}, s{S_TA}, {64*1152}")
    e(f"s_lshl4_add_u32 s{S_N}, s{S_G}, s{S_N}")
    e(f"s_cmp_eq_u32 s{S_PART}, 3")
    e(f"s_cselect_b32 s{S_T2}, 0x80000000, 0")
    e(f"s_or_b32 s{S_N}, s{S_N}, s{S_T2}")
    e(f"v_add_u32 v{V_XA}, s{S_N}, v{V_T}")
    e(f"s_mul_i32 s{S_N}, s{S_TB}, {64*1152}")
    e(f"s_lshl4_add_u32 s{S_N}, s{S_G}, s{S_N}")
    e(f"s_andn2_b32 s{S_T2}, 0x80000000, s{S_BM}")
    e(f"s_or_b32 s{S_N}, s{S_N}, s{S_T2}")
    e(f"v_add_u32 v{V_XB}, s{S_N}, v{V_T}")
    return atoms(L)

def stage_items(sr, off, tag, touch=None):
    ld = lambda v: (f"buffer_load_dwordx4 v{v}, s[{sr}:{sr+3}], 0 offen lds", tag)
    tc = lambda v: [f"buffer_load_dword v{V_DUM}, v{v}, s[{touch}:{touch+3}], 0 offen"] if touch else []
    R = [[f"s_add_u32 m0, s{S_KM}, {off}", "s_nop 0", ld(V_K1)]]
    if touch: R.append(tc(V_K1))
    R.append([f"s_add_u32 m0, s{S_KM2}, {off}", "s_mov_b64 exec, 0xffff", ld(V_K2), "s_mov_b64 exec, -1"])
    if off: R[0] += [f"s_sub_u32 s{S_N}, s{S_MH}, 1", f"v_lshl_or_b32 v{V_K2}, s{S_N}, 31, v{V_K2}"]
    return R

def cold_items(m=15):
    R = stage_items(S_K, 0, "kst", S_V if m & 2 else None) if m & 1 else []
    if m & 4: R.append([f"s_add_u32 s{S_N}, s{S_COL}, s{S_ROW[8]}",
              f"buffer_load_dword v{V_DUM}, v{V_O2}, s[{S_W2}:{S_W2+3}], s{S_N} offen"])
    if m & 8: R.append([f"s_lshl_b32 s{S_N}, s{S_G}, 15",
              f"buffer_load_dword v{V_DUM}, v{V_KFT}, s[{S_KF}:{S_KF+3}], s{S_N} offen"])
    return R

def touches(o, A=S_N, B=S_T2):
    m = o.get("em", 7)
    L = [f"s_lshr_b32 s{A}, s2, 3", f"s_lshl3_add_u32 s{A}, s{A}, s{S_W}", f"s_mul_i32 s{A}, s{A}, 72",
         f"s_and_b32 s{B}, s2, 7", f"s_add_u32 s{A}, s{A}, s{B}", f"s_lshl_b32 s{A}, s{A}, 7",
         f"v_bfe_u32 v{V_T}, v{V_LANE}, 1, 3", f"v_lshl_add_u32 v{V_T}, v{V_T}, 3, v{V_T}", f"v_and_b32 v{V_KFT}, 1, v{V_LANE}",
         f"v_add_lshl_u32 v{V_T}, v{V_T}, v{V_KFT}, 7",
         f"s_lshl3_add_u32 s{B}, s{S_PART}, s{S_W}", f"s_mul_i32 s{B}, s{B}, 11",
         f"v_add_u32 v{V_KFT}, s{B}, v{V_LANE}", f"v_min_u32 v{V_KFT}, 255, v{V_KFT}", f"v_lshlrev_b32 v{V_KFT}, 7, v{V_KFT}",
         f"s_lshl_b32 s{B}, s{S_G}, 15",
         "s_mov_b64 exec, 0xffff"]
    if m & 1: L.append(f"buffer_load_dword v{V_DUM}, v{V_T}, s[{S_K}:{S_K+3}], s{A} offen")
    if m & 2: L.append(f"buffer_load_dword v{V_DUM}, v{V_T}, s[{S_V}:{S_V+3}], s{A} offen")
    L.append("s_mov_b64 exec, 0x7ff")
    if m & 4: L.append(f"buffer_load_dword v{V_DUM}, v{V_KFT}, s[{S_KF}:{S_KF+3}], s{B} offen")
    L.append("s_mov_b64 exec, -1")
    return L

def stouch_setup():
    return [f"s_lshr_b32 s{S_KO}, s2, 3", f"s_lshl3_add_u32 s{S_KO}, s{S_KO}, s{S_W}", f"s_mul_i32 s{S_KO}, s{S_KO}, 72",
            f"s_and_b32 s{S_FO}, s2, 7", f"s_add_u32 s{S_KO}, s{S_KO}, s{S_FO}", f"s_lshl_b32 s{S_KO}, s{S_KO}, 7",
            f"s_lshl3_add_u32 s{S_FO}, s{S_PART}, s{S_W}", f"s_mul_i32 s{S_FO}, s{S_FO}, 11", f"s_min_u32 s{S_FO}, s{S_FO}, 245",
            f"s_lshl_b32 s{S_DUM}, s{S_G}, 8", f"s_add_u32 s{S_FO}, s{S_FO}, s{S_DUM}", f"s_lshl_b32 s{S_FO}, s{S_FO}, 7"]

def stouch(o, k):
    ld = lambda sr, so, off: f"s_buffer_load_dword s{S_DUM}, s[{sr}:{sr+3}], s{so} offset:{off}"
    if k == "F": return [ld(S_KF, S_FO, 128*i) for i in range(11)]
    return [ld(sr, S_KO, 1152*r + 128*h) for r in range(8) for h in o.get("sth", (0, 1)) for sr in (S_K, S_V)]

def place(items, j0, j1, work):
    for i, x in enumerate(items): work.setdefault(4*(j0 + (i*(j1 - j0)) // len(items)) - 2, []).insert(0, x)

def early_items(o):
    m = o.get("em", 7)
    K = sum(stage_items(S_K, 0, None), []) if m & 1 else []
    if o.get("vt", 1):
        V = [f"s_lshr_b32 s{S_N}, s2, 3", f"s_lshl3_add_u32 s{S_N}, s{S_N}, s{S_W}", f"s_mul_i32 s{S_N}, s{S_N}, 72",
             f"s_and_b32 s{S_T2}, s2, 7", f"s_add_u32 s{S_N}, s{S_N}, s{S_T2}", f"s_lshl_b32 s{S_N}, s{S_N}, 7",
             f"v_bfe_u32 v{V_T}, v{V_LANE}, 1, 3", f"v_mul_u32_u24 v{V_T}, 9, v{V_T}", f"v_and_b32 v{V_T2}, 1, v{V_LANE}",
             f"v_add_lshl_u32 v{V_T}, v{V_T}, v{V_T2}, 7", "s_mov_b64 exec, 0xffff",
             f"buffer_load_dword v{V_DUM}, v{V_T}, s[{S_V}:{S_V+3}], s{S_N} offen", "s_mov_b64 exec, -1"]
    else:
        V = [f"buffer_load_dword v{V_DUM}, v{V_K1}, s[{S_V}:{S_V+3}], 0 offen", "s_mov_b64 exec, 0x1fff",
             f"buffer_load_dword v{V_DUM}, v{V_K2}, s[{S_V}:{S_V+3}], 0 offen", "s_mov_b64 exec, -1"]
    F = sum(cold_items(8), [])
    return [K, V if m & 2 else [], F if m & 4 else []]

def kv_compute(g):
    def halo():
        g.wait(vm=["sh", "tK"])
        g.e("s_mov_b32 vcc_lo, 0xfefefefe"); g.e("s_mov_b32 vcc_hi, vcc_lo")
        g.e(f"v_cndmask_b32 v{KR}, v{V_HG}, v{KR}, vcc")
        for r in (1, 2): g.e(f"v_cndmask_b32_dpp v{KR+r}, v{V_HG}, v{KR+r}, vcc row_shl:{r} row_mask:0xf bank_mask:0xf")
    L = [halo]; e = L.append
    up = lambda d, r, h: f"v_and_b32 v{d}, 0xffff0000, v{r}" if h else f"v_lshlrev_b32 v{d}, 16, v{r}"
    if g.o.get("kf", 1):
        U = [52, 53, 54, 55]
        for h in range(2):
            for j in range(4): e(up(KC + j, SH + 2*h + j//2, j % 2))
            e(up(U[0], KR, h))
            for i in range(11):
                if i < 10: e(up(U[(i + 1) % 2], KR + i + 1, h))
                for j in range(4):
                    t = i - 3 + j
                    if 0 <= t < 8: e(f"{'v_mul_f32' if j == 3 else 'v_fmac_f32'} v{KA+t}, v{KC+j}, v{U[i % 2]}")
            for t0 in (0, 4):
                for t in range(t0, t0 + 4): e(up(U[t % 4], VR + t, h))
                for t in range(t0, t0 + 4): e(f"v_mul_f32 v{KA+t}, v{KA+t}, v{U[t % 4]}")
            O = KA if h else PKR + 4
            for t in range(4): e(f"v_cvt_pk_bf16_f32 v{O+t}, v{KA+2*t}, v{KA+2*t+1}")
        return L
    for h in range(2):
        for j in range(4):
            w = SH + 2*h + j//2
            if h == 0: e(f"v_lshrrev_b32 v{KC+j}, 16, v{w}" if j % 2 else f"v_and_b32 v{KC+j}, 0xffff, v{w}")
            else: e(f"v_and_b32 v{KC+j}, 0xffff0000, v{w}" if j % 2 else f"v_lshlrev_b32 v{KC+j}, 16, v{w}")
        for j in (3, 2, 1, 0):
            for t in range(8):
                if j == 3: e(f"v_dot2_f32_bf16 v{KA+t}, v{KR+t+3-j}, v{KC+j}, 0")
                else: e(f"v_dot2c_f32_bf16 v{KA+t}, v{KR+t+3-j}, v{KC+j}")
        for t0 in (0, 4):
            for t in range(t0, t0 + 4):
                e(f"v_and_b32 v{KC+t%4}, 0xffff0000, v{VR+t}" if h else f"v_lshlrev_b32 v{KC+t%4}, 16, v{VR+t}")
            for t in range(t0, t0 + 4): e(f"v_mul_f32 v{KA+t}, v{KA+t}, v{KC+t%4}")
        O = KA if h else PKR + 4
        for t in range(4): e(f"v_cvt_pk_bf16_f32 v{O+t}, v{KA+2*t}, v{KA+2*t+1}")
    return L

def kv_store():
    return [[(f"buffer_store_dwordx4 v[{PKR+4}:{PKR+7}], v{V_KST}, s[{S_WS}:{S_WS+3}], s{S_KVO} offen sc1", "kv0"),
             f"s_add_u32 s{S_KVO}, s{S_KVO}, 4096"],
            [(f"buffer_store_dwordx4 v[{KA}:{KA+3}], v{V_KST}, s[{S_WS}:{S_WS+3}], s{S_KVO} offen sc1", "kv1")]]

def setup4(o):
    L = []; e = L.append
    A, B = S_GC, S_GC + 1
    e(f"v_bfrev_b32 v{V_OOB}, 1")
    assert not o.get("xe")
    e(f"s_lshr_b32 s{A}, s{S_G}, 3")
    e(f"s_cmp_eq_u32 s{A}, 8")
    e(f"s_cselect_b32 s{A}, s{S_W}, s{A}")
    e(f"s_cselect_b32 s{B}, 0, s{S_W}")
    e(f"s_lshl_b32 s{A}, s{A}, 7")
    e(f"s_add_u32 s{A}, s{A}, {RDY_OFF}")
    e(f"v_and_b32 v{V_L4}, 31, v{V_LANE}")
    e(f"s_cmp_eq_u32 s{B}, 0")
    e(f"s_cselect_b32 s{A}, s{A}, 0x80000000")
    e(f"s_cselect_b32 s{S_ONES}, s{S_TOK}, 0")
    e(f"v_lshl_add_u32 v{V_L4}, v{V_L4}, 2, s{A}")
    e(f"s_mul_i32 s{S_H2}, s{S_W}, {WSTR}")
    e(f"s_lshl3_add_u32 s{S_CH}, s{S_G}, s{S_W}")
    e(f"s_lshl_b32 s{S_CH}, s{S_CH}, 12")
    e(f"v_and_b32 v{V_CL}, v{V_OOB}, v{V_XA}")
    e(f"v_lshl_or_b32 v{V_CL}, v{V_LANE}, 4, v{V_CL}")
    e(f"v_lshl_add_u32 v{V_YW}, v{V_LANE}, 2, s{S_H2}")
    e(f"s_add_u32 s{A}, s{S_H2}, 4608")
    e(f"v_lshl_add_u32 v{V_KV}, v{V_LANE}, 1, s{A}")
    e(f"v_lshrrev_b32 v{V_T2}, 4, v{V_LANE}")
    e(f"v_bfe_u32 v{V_AF}, v{V_LANE}, 2, 2")
    e(f"v_lshl_add_u32 v{V_T2}, v{V_T2}, 3, v{V_AF}")
    e(f"v_and_b32 v{V_BF}, 3, v{V_LANE}")
    e(f"v_add_u32 v{V_AF}, v{V_T2}, v{V_BF}")
    e(f"s_add_u32 s{A}, s{S_H2}, {256 - 24}")
    e(f"v_lshl_add_u32 v{V_AF}, v{V_AF}, 3, s{A}")
    e(f"v_lshlrev_b32 v{V_BF}, 2, v{V_BF}")
    e(f"v_sub_u32 v{V_BF}, v{V_BF}, v{V_T2}")
    e(f"s_add_u32 s{A}, s{S_H2}, {4608 + 24 - 32}")
    e(f"v_lshl_add_u32 v{V_BF}, v{V_BF}, 3, s{A}")
    e(f"s_cmp_eq_u32 s{S_MH}, 0")
    e(f"s_cselect_b64 s[{S_DR}:{S_DR+1}], s[{S_DR}:{S_DR+1}], s[{S_DR+2}:{S_DR+3}]")
    e(f"s_lshl_b32 s{A}, s{S_QW}, 4")
    e(f"s_lshr_b64 s[{S_DR}:{S_DR+1}], s[{S_DR}:{S_DR+1}], s{A}")
    e(f"s_and_b32 s{S_D}, s{S_DR}, 0xffff")
    e(f"s_lshl_b32 s{A}, s{S_TA}, 10")
    e(f"v_add_u32 v{V_RA}, s{A}, v{V_CL}")
    e(f"v_ashrrev_i32 v{V_SA}, 1, v{V_RA}")
    e(f"s_lshl_b32 s{A}, s{S_TB}, 10")
    e(f"s_andn2_b32 s{B}, 0x80000000, s{S_BM}")
    e(f"s_or_b32 s{A}, s{A}, s{B}")
    e(f"v_lshl_add_u32 v{V_RB}, v{V_LANE}, 4, s{A}")
    e(f"v_ashrrev_i32 v{V_SB}, 1, v{V_RB}")
    e(f"s_sub_u32 s{A}, s{S_TB}, s{S_TA}")
    e(f"v_bfe_u32 v{V_P}, v{V_LANE}, 4, 1")
    e(f"v_mul_i32_i24 v{V_FA}, s{A}, v{V_P}")
    e(f"v_add_u32 v{V_FA}, s{S_TA}, v{V_FA}")
    if o.get("xe", 0):
        e(f"v_mul_u32_u24 v{V_RDY}, 57, v{V_FA}")
        e(f"v_lshrrev_b32 v{V_RDY}, 9, v{V_RDY}")
        e(f"v_mul_u32_u24 v{V_RDY}, 9, v{V_RDY}")
        e(f"v_sub_u32 v{V_RDY}, v{V_FA}, v{V_RDY}")
        e(f"v_cmp_gt_u32 vcc, s{S_ONES}, v{V_LANE}")
    e(f"v_mul_u32_u24 v{V_FA}, {9*256}, v{V_FA}")
    if o.get("xe", 0):
        e(f"v_lshl_add_u32 v{V_RDY}, v{V_RDY}, 8, v{V_FA}")
        e(f"v_and_b32 v{V_T2}, 7, v{V_LANE}")
        e(f"v_lshl_add_u32 v{V_RDY}, v{V_T2}, 2, v{V_RDY}")
        e(f"v_add_u32 v{V_RDY}, {FLAG_OFF}, v{V_RDY}")
        e(f"v_cndmask_b32 v{V_L4}, v{V_RDY}, v{V_L4}, vcc")
        e(f"s_mov_b32 s{S_ONES}, s{S_TOK}")
    e(f"s_xor_b32 s{A}, s{S_NX}, s{S_NY}")
    e(f"v_and_b32 v{V_T2}, s{A}, v{V_P}")
    e(f"s_and_b32 s{A}, s{S_NX}, 1")
    e(f"v_xor_b32 v{V_T2}, s{A}, v{V_T2}")
    e(f"v_and_or_b32 v{V_T2}, v{V_LANE}, 14, v{V_T2}")
    e(f"s_bfe_u32 s{A}, s{S_G}, {1 | (2 << 16)}")
    e(f"s_lshl_b32 s{A}, s{A}, 6")
    e(f"v_lshl_add_u32 v{V_T2}, v{V_T2}, 2, s{A}")
    e(f"s_cmp_ge_u32 s{S_NX}, 14")
    e(f"s_cselect_b32 s{A}, 0xff, 31")
    e(f"s_cmp_ge_u32 s{S_NY}, 14")
    e(f"s_cselect_b32 s{B}, 0xff, 31")
    e(f"v_mul_u32_u24 v{V_P}, s{B}, v{V_P}")
    e(f"v_or_b32 v{V_P}, s{A}, v{V_P}")
    e(f"v_and_b32 v{V_T2}, v{V_T2}, v{V_P}")
    e(f"v_add_u32 v{V_FA}, v{V_FA}, v{V_T2}")
    e(f"s_lshr_b32 s{S_FB}, s{S_G}, 3")
    e(f"s_lshl_b32 s{S_FB}, s{S_FB}, 8")
    e(f"s_add_u32 s{S_FB}, s{S_FB}, {FLAG_OFF}")
    e(f"s_lshl_b32 s{S_GO}, s{S_G}, 15")
    e(f"s_mov_b32 s{S_SO}, {STAT_OFF}")
    e(f"s_add_u32 s{S_XO}, s{S_GO}, {XT_OFF}")
    for j in range(NP - 1, -1, -1): e(f"s_add_u32 s{S_PO[j]}, s{S_GO}, {(4 + j)*72*32768}")
    for c in range(4):
        e(f"s_lshl_b32 s{S_BV+2*c}, s{S_B2+c}, 16")
        e(f"s_and_b32 s{S_BV+2*c+1}, s{S_B2+c}, 0xffff0000")
    return [[f"s_movk_i32 s{S_LO}, 0x3f80", f"s_lshl_b32 s{S_HI}, s{S_LO}, 16"]] + atoms(L)

def conv_loads(g):
    fl = g.o.get("hotfl", "")
    R = []
    for c in (3, 2, 1, 0):
        R.append([f"buffer_load_dwordx4 v{V_CL}, s[{S_WS}:{S_WS+3}], s{S_T} offen offset:{1024*c} {fl} lds"])
    R[0] = [f"s_add_u32 m0, s{S_H2}, 4608", f"s_add_u32 s{S_T}, s{S_CH}, {KVT_OFF}"] + R[0]
    R[3].append(f"s_add_u32 m0, s{S_H2}, 256")
    for c in range(4):
        R.append([f"buffer_load_dwordx4 v{V_CL}, s[{S_KF}:{S_KF+3}], s{S_CH} offen offset:{1024*c} lds"])
    R[7].append(f"s_mov_b32 m0, s{S_H2}")
    z = f"buffer_load_dword v{V_OOB}, s[{S_KF}:{S_KF+3}], 0 offen lds"
    R.append([z, f"s_add_u32 m0, s{S_H2}, 4352"])
    R.append([(z, "cl")])
    return R

def tile_list(g, LD, v, vs):
    fl = g.o.get("ldflags", "sc1")
    L = [f"buffer_load_dwordx2 v[{LD+32}:{LD+33}], v{vs}, s[{S_WS}:{S_WS+3}], s{S_SO} offen {g.o.get('sfl', '')}"]
    X = XA if LD == LDA else XB
    if not g.o.get("xe", 0): L.append(f"buffer_load_dwordx4 v[{X}:{X+3}], v{v}, s[{S_WS}:{S_WS+3}], s{S_XO} offen {fl}")
    for j in range(NP): L.append(f"buffer_load_dwordx4 v[{LD+4*j}:{LD+4*j+3}], v{v}, s[{S_WS}:{S_WS+3}], s{S_PO[j]} offen {fl}")
    for k in g.o.get("drop", []): L[k] = "s_nop 0"
    return L

def tile_loads(g, LD, v, vs):
    for x in tile_list(g, LD, v, vs): g.e(x)

def poll(g, tag=None):
    g.e(f"buffer_load_dword v{V_P}, v{V_FA}, s[{S_WS}:{S_WS+3}], s{S_FB} offen sc1", tag)

def conv_job(g, job, name, ev):
    o = g.o
    tiles = []; allt = []
    for a, b in job:
        if a > 0: allt.append(a - 1)
        for t in range(a, b):
            tiles.append(t); allt.append(t)
    ai = {t: CACC + 4*i for i, t in enumerate(allt)}
    tmax = max(allt)
    M = []
    ch = o.get("ch", 1); NB = o.get("nb", 6)
    for n0 in range(tmax, -1, -2*ch):
        for n1 in (n0, n0 - 1):
            ns = [n for n in range(n1, n1 - 2*ch, -2) if n >= 0]
            ts = sorted(t for t in allt if (t - n1) % 2 == 0)
            if o.get("trev"): ts.reverse()
            for t in ts:
                for n in ns:
                    if t >= n: M.append((t, n, (t - n)//2))
    order = []
    for (t, n, be) in M:
        for f in (("B", n), ("A", be)):
            if f not in order: order.append(f)
    bslot = {}
    nb = 0
    for f in order:
        if f[0] == "B":
            bslot[f[1]] = BB + 4*(nb % NB); nb += 1
    lastuse = {}
    for i, (t, n, be) in enumerate(M): lastuse[n] = i
    bl = [f[1] for f in order if f[0] == "B"]
    def reads(f):
        if f[0] == "A":
            r = AF + 4*f[1]; off = 256*f[1]
            return [f"ds_read_b64_tr_b16 v[{r}:{r+1}], v{V_AF} offset:{off}",
                    f"ds_read_b64_tr_b16 v[{r+2}:{r+3}], v{V_AF} offset:{off+32}"]
        r = bslot[f[1]]; off = 128*f[1] + 32
        return [f"ds_read_b64_tr_b16 v[{r}:{r+1}], v{V_BF} offset:{off}",
                f"ds_read_b64_tr_b16 v[{r+2}:{r+3}], v{V_BF} offset:{off-32}"]
    issued = 0
    fu = {}
    for i, (t, n, be) in enumerate(M):
        fu.setdefault(("B", n), i); fu.setdefault(("A", be), i)
    MAXF = o.get("ahead", 6)
    started = set()
    waited = -1
    for i, (t, n, be) in enumerate(M):
        need = max(order.index(("B", n)), order.index(("A", be)))
        nr = 0
        while issued < 2*len(order) and issued // 2 <= max(need, waited) + MAXF:
            f = order[issued // 2]
            if "la" in o and i and not (nr < 1 or fu[f] <= i or (nr < 2 and fu[f] <= i + o["la"])): break
            if f[0] == "B":
                k = bl.index(f[1])
                if k >= NB and lastuse[bl[k - NB]] >= i:
                    break
            g.e(reads(f)[issued % 2])
            issued += 1; nr += 1
        assert issued // 2 > need
        for k in (i, i - len(M)):
            for f in ev.get(k, []): f(name)
        if need > waited:
            g.e(f"s_waitcnt lgkmcnt({min(15, issued - 2 - 2*need)})")
            waited = need
        a = ai[t]; bs = bslot[n]; af = AF + 4*be
        c = f"v[{a}:{a+3}]" if t in started else "0"
        started.add(t)
        g.e(f"v_mfma_f32_16x16x32_bf16 v[{a}:{a+3}], v[{bs}:{bs+3}], v[{af}:{af+3}], {c}")
    KVV = 50
    for i, t in enumerate(tiles):
        g.e(f"ds_read_u16 v{AF+40+i}, v{V_KV} offset:{128*t}")
    eo = o.get("eo", 1)
    if not eo: ev["end"][0](name)
    else:
        for f in ev.get("e0", []): f(name)
        g.e("s_nop 2")
    H2 = AF; H1 = AF + 12; Y = AF + 24
    idx = {t: i for i, t in enumerate(allt)}
    m = "row_mask:0xf bank_mask:0xf"
    def level(dst, src, zc, ts):
        for t in ts:
            if t in tiles and t > 0:
                g.e(f"v_add_f32 v{dst+idx[t]}, v{src(t-1)}, v{ai[t]+zc} wave_ror:1 row_mask:0x1 bank_mask:0x1")
        for t in ts:
            bc = "" if (t in tiles and t > 0) else " bound_ctrl:0"
            g.e(f"v_add_f32 v{dst+idx[t]}, v{src(t)}, v{ai[t]+zc} wave_shr:1 {m}{bc}")
    level(H2, lambda t: ai[t] + 3, 2, allt)
    g.e("s_waitcnt lgkmcnt(0)")
    for i, t in enumerate(tiles):
        g.e(f"v_dot2c_f32_bf16 v{ai[t]}, s{S_D}, v{AF+40+i}")
    level(H1, lambda t: H2 + idx[t], 1, allt)
    level(Y, lambda t: H1 + idx[t], 0, tiles)
    for i, t in enumerate(tiles):
        g.e(f"ds_write_b32 v{V_YW}, v{Y+idx[t]} offset:{256*i}")

def fin_1(g, LD, X, R, waits):
    e = g.e
    s = R; xn = R + 8; st = LD + 32
    if waits: e(f"s_waitcnt vmcnt({NP})")
    for c in range(4):
        e(f"v_lshlrev_b32 v{R+8+2*c}, 16, v{X+c}")
        e(f"v_and_b32 v{R+8+2*c+1}, 0xffff0000, v{X+c}")
    for c in range(8): e(f"v_add_f32 v{s+c}, s{S_BV+c}, v{R+8+c}")
    for c in range(8): e(f"v_fma_f32 v{xn+c}, v{xn+c}, v{st}, v{st+1}")
    for j in range(NP):
        if waits: e(f"s_waitcnt vmcnt({NP - 1 - j})")
        for c in range(4):
            e(f"v_dot2c_f32_bf16 v{s+2*c}, s{S_LO}, v{LD+4*j+c}")
            e(f"v_dot2c_f32_bf16 v{s+2*c+1}, s{S_HI}, v{LD+4*j+c}")
    e("s_nop 2")

def fin_2(g, X, R):
    e = g.e
    s = R; xn = R + 8; y = R + 16
    for c in range(4):
        e(f"v_pk_fma_f32 v[{s+2*c}:{s+2*c+1}], v[{xn+2*c}:{xn+2*c+1}], v[{y+2*c}:{y+2*c+1}], v[{s+2*c}:{s+2*c+1}]")
    for c in range(4):
        e(f"v_cvt_pk_bf16_f32 v{X+c}, v{s+2*c}, v{s+2*c+1}")

def fin_a(g, X, si, R):
    e = g.e
    s = R; y = R + 16
    e(f"s_lshl_b32 s{S_T2}, s{si}, 8")
    e(f"v_lshl_add_u32 v{V_T}, v{V_LANE}, 2, s{S_T2}")
    for c in range(4):
        e(f"ds_read2st64_b32 v[{y+2*c}:{y+2*c+1}], v{V_T} offset0:{68*c} offset1:{68*c + 34}")

def fin_b(g, LD, X, R, waits):
    e = g.e
    s = R; xn = R + 8; y = R + 16; st = LD + 32
    if waits: e(f"s_waitcnt vmcnt({NP})")
    for c in range(4):
        e(f"v_lshlrev_b32 v{R+8+2*c}, 16, v{X+c}")
        e(f"v_and_b32 v{R+8+2*c+1}, 0xffff0000, v{X+c}")
    for c in range(8): e(f"v_add_f32 v{s+c}, s{S_BV+c}, v{R+8+c}")
    for c in range(4):
        e(f"v_pk_fma_f32 v[{xn+2*c}:{xn+2*c+1}], v[{xn+2*c}:{xn+2*c+1}], v[{st}:{st+1}], v[{st}:{st+1}] op_sel:[0,0,1] op_sel_hi:[1,0,1]")
    e("s_waitcnt lgkmcnt(0)")
    for c in range(4):
        e(f"v_pk_fma_f32 v[{s+2*c}:{s+2*c+1}], v[{xn+2*c}:{xn+2*c+1}], v[{y+2*c}:{y+2*c+1}], v[{s+2*c}:{s+2*c+1}]")
    for j in range(NP):
        if waits: e(f"s_waitcnt vmcnt({NP - 1 - j})")
        for c in range(4):
            e(f"v_dot2c_f32_bf16 v{s+2*c}, s{S_LO}, v{LD+4*j+c}")
            e(f"v_dot2c_f32_bf16 v{s+2*c+1}, s{S_HI}, v{LD+4*j+c}")
    e("s_nop 2")
    for c in range(4):
        e(f"v_cvt_pk_bf16_f32 v{X+c}, v{s+2*c}, v{s+2*c+1}")

def tail2(g, name, TX, TY, out):
    o = g.o; e = g.e
    RA, RB = CACC, CACC + 24
    e(f"s_or_b32 s{S_N}, s{S_PX}, s{S_PY}")
    e(f"s_cbranch_scc0 {name}_np")
    poll(g)
    g.lab(f"{name}_np")
    e(f"s_cmp_ge_u32 s{S_W}, {o.get('ps', 4)}")
    e(f"s_cselect_b32 s{S_T}, 1, 0")
    e(f"s_or_b32 s{S_GX}, s{S_GX}, s{S_PX}")
    e(f"s_or_b32 s{S_XM}, s{S_GX}, s{S_T}")
    e(f"s_cbranch_scc1 {name}_q1")
    fin_1(g, LDA, XA, RA, False)
    g.lab(f"{name}_q1")
    e(f"s_or_b32 s{S_GY}, s{S_GY}, s{S_PY}")
    e(f"s_cmp_eq_u32 s{S_BM}, 0")
    e(f"s_cselect_b32 s{S_T}, 1, s{S_GY}")
    e(f"s_cmp_lg_u32 s{S_T}, 0")
    e(f"s_cbranch_scc1 {name}_q2")
    fin_1(g, LDB, XB, RB, False)
    g.lab(f"{name}_q2")
    e(f"s_mov_b32 s{S_N}, {SPIN}")
    e("s_waitcnt lgkmcnt(0)")
    g.stamp()
    e("s_barrier")
    g.stamp()
    def last(nm, P, mask, T):
        e(f"s_cmp_eq_u32 s{P}, 0")
        e(f"s_cbranch_scc1 {nm}2")
        g.lab(f"{nm}lp")
        e("s_waitcnt vmcnt(0)")
        e(f"v_cmp_ne_u32 vcc, s{S_TOK}, v{V_P}")
        e(f"s_sub_u32 s{S_N}, s{S_N}, 1")
        e(f"s_cbranch_scc1 {nm}go")
        e(f"s_and_b32 s{P}, vcc_lo, {mask}")
        e(f"s_cbranch_scc0 {nm}go")
        poll(g)
        e(f"s_branch {nm}lp")
        g.lab(f"{nm}go")
        for x in T: e(x)
        g.lab(f"{nm}2")
    fin_a(g, XA, S_IA, RA)
    e(f"s_cmp_lg_u32 s{S_BM}, 0")
    e(f"s_cbranch_scc1 {name}_two")
    e(f"s_cmp_eq_u32 s{S_XM}, 0")
    e(f"s_cbranch_scc1 {name}_a3")
    last(f"{name}_a", S_PX, "0xffff", TX)
    fin_1(g, LDA, XA, RA, True)
    g.lab(f"{name}_a3")
    g.stamp()
    e("s_waitcnt lgkmcnt(0)")
    fin_2(g, XA, RA)
    out(XA, V_XA)
    finish(g)
    g.lab(f"{name}_two")
    fin_a(g, XB, S_IB, RB)
    e(f"s_cmp_lg_u32 s{S_XM}, 0")
    e(f"s_cbranch_scc1 {name}_xslow")
    g.lab(f"{name}_xback")
    e("s_waitcnt lgkmcnt(0)")
    fin_2(g, XA, RA)
    e(f"s_cmp_eq_u32 s{S_GY}, 0")
    e(f"s_cbranch_scc1 {name}_b3")
    last(f"{name}_b", S_PY, "0xffff0000", TY)
    fin_1(g, LDB, XB, RB, True)
    g.lab(f"{name}_b3")
    g.stamp()
    out(XA, V_XA)
    fin_2(g, XB, RB)
    out(XB, V_XB)
    finish(g)
    g.lab(f"{name}_xslow")
    last(f"{name}_x", S_PX, "0xffff", TX)
    e(f"s_mov_b32 s{S_N}, {SPIN}")
    e("s_waitcnt vmcnt(0)")
    fin_1(g, LDA, XA, RA, False)
    e(f"s_branch {name}_xback")

def tail(g, name):
    o = g.o; e = g.e
    def flag(n):
        for x in flag_store(g, n): g.put(x)
    out = lambda X, vx: e(f"buffer_store_dwordx4 v[{X}:{X+3}], v{vx}, s[{S_OUT}:{S_OUT+3}], 0 offen {o.get('ofl', '')}")
    TX = tile_list(g, LDA, V_RA, V_SA); TY = tile_list(g, LDB, V_RB, V_SB)
    e(f"s_cmp_eq_u32 s{S_PART}, 3")
    e(f"s_cbranch_scc1 {name}_none")
    n7 = len(g.vm) - 1 - g.vm.index(("p", 7))
    g.stamp()
    g.wait(vm=["cl"])
    g.stamp()
    def look():
        e(f"v_cmp_ne_u32 vcc, s{S_TOK}, v{V_P}")
        e(f"s_mov_b32 s{S_GX}, s{S_PX}")
        e(f"s_mov_b32 s{S_GY}, s{S_PY}")
        e(f"s_and_b32 s{S_PX}, vcc_lo, 0xffff")
        e(f"s_cselect_b32 s{S_GX}, 0, s{S_GX}")
        e(f"s_and_b32 s{S_PY}, vcc_lo, s{S_BM}")
        e(f"s_cselect_b32 s{S_GY}, 0, s{S_GY}")
    def look0(nm):
        g.wait(vm=["p0"])
        e(f"v_cmp_ne_u32 vcc, s{S_TOK}, v{V_P}")
        e(f"s_and_b32 s{S_PX}, vcc_lo, 0xffff")
        e(f"s_cselect_b32 s{S_N}, 0x80000000, 0")
        e(f"s_cselect_b64 s[{S_XM}:{S_XM+1}], 1, -1")
        e(f"v_or_b32 v{V_XO}, s{S_N}, v{V_RA}")
        e(f"v_or_b32 v{V_XS}, s{S_N}, v{V_SA}")
        e(f"s_and_b32 s{S_PY}, vcc_lo, s{S_BM}")
        e(f"s_cselect_b32 s{S_N}, 0x80000000, 0")
        e(f"s_cselect_b32 s{S_T}, 0, s{S_BM}")
        e(f"v_or_b32 v{V_YO}, s{S_N}, v{V_RB}")
        e(f"v_or_b32 v{V_YS}, s{S_N}, v{V_SB}")
        e(f"s_cmp_eq_u32 s{S_T}, 0")
        e(f"s_cselect_b64 s[{S_YM}:{S_YM+1}], 1, -1")
    cnt = [0]
    def cond(go, L):
        def f(nm):
            cnt[0] += 1
            e(f"s_cmp_eq_u32 s{go}, 0")
            e(f"s_cbranch_scc1 {nm}_k{cnt[0]}")
            for x in L: e(x)
            g.lab(f"{nm}_k{cnt[0]}")
        return f
    def masked(M, x):
        def f(nm):
            if o.get("xm", 1): e(f"s_mov_b64 exec, s[{M}:{M+1}]")
            e(x)
            if o.get("xm", 1): e("s_mov_b64 exec, -1")
        return f
    def ev0(nm):
        g.wait(vm=[("p", 7)])
        flag(7)
    def ev1(nm):
        g.wait(vm=[("p", 8)])
        g.stamp()
        flag(8)
    def ev2(nm):
        g.wait(vm=["p1"])
        g.stamp()
        look()
    def evend(nm):
        g.stamp()
        e("s_waitcnt vmcnt(0)")
        look()
        cond(S_GX, TX)(nm)
        cond(S_GY, TY)(nm)
        g.stamp()
    ev = {"end": [evend]}
    at = lambda k, f: ev.setdefault(k, []).append(f)
    l0 = o.get("l0", -999)
    if l0 < 0: look0(name)
    else: at(l0, look0)
    def evc(hi, n):
        def f(nm):
            cnt[0] += 1
            e(f"s_cmp_eq_u32 s{S_MH}, {hi}")
            e(f"s_cbranch_scc0 {nm}_k{cnt[0]}")
            if ("p", n) in g.vm: e(f"s_waitcnt vmcnt({len(g.vm) - 1 - g.vm.index(('p', n)) + n - 7})")
            if n == 8: g.stamp()
            flag(n); g.vm.pop()
            g.lab(f"{nm}_k{cnt[0]}")
        return f
    late = []
    if o.get("fa", 1):
        fa = o.get("fa", [12, 32, 4, 8])
        assert fa[0] <= fa[1] and fa[2] <= fa[3]
        late = [(fa[0], evc(0, 7)), (fa[1], evc(0, 8)), (fa[2], evc(1, 7)), (fa[3], evc(1, 8))]
    else:
        at(o.get("m0", 16), ev0); at(o.get("m1", 40), ev1)
    at(-o.get("m2", 16) or "e0", lambda nm: poll(g))
    for k, x in zip(o.get("xs", [1, 5, 10, 19, 28, 38, 48, 58, 68] if o.get("xe", 0) else [1, 2, 5, 10, 19, 28, 38, 48, 58, 68]), tile_list(g, LDA, V_XO, V_XS)): at(k, masked(S_XM, x))
    for k, x in zip(o.get("ys", [3, 14, 23, 33, 43, 53, 63, 73, 83] if o.get("xe", 0) else [4, 7, 14, 23, 33, 43, 53, 63, 73, 83]), tile_list(g, LDB, V_YO, V_YS)): at(k, masked(S_YM, x))
    for k, f in late: at(k, f)
    if o.get("q1", 0):
        at(o.get("q1", 0), lambda nm: poll(g, "p1"))
        k = o.get("l1", 60); gs = o.get("gs", 3)
        at(k, ev2)
        for go, T in ((S_GX, TX), (S_GY, TY)):
            for c in range(0, len(T), gs):
                k += o.get("ms", 2)
                at(k, cond(go, T[c:c+gs]))
    e(f"s_cmp_eq_u32 s{S_PART}, 1")
    e(f"s_cbranch_scc1 {name}_j1")
    e(f"s_cmp_eq_u32 s{S_PART}, 2")
    e(f"s_cbranch_scc1 {name}_j2")
    vm0 = list(g.vm)
    for p in range(3):
        if p: g.lab(f"{name}_j{p}")
        g.vm = list(vm0)
        conv_job(g, JOBS[p], f"{name}_c{p}", ev)
        if p < 2: e(f"s_branch {name}_cfin")
    g.lab(f"{name}_cfin")
    if o.get("eo", 1): evend(name)
    if o.get("ps", 4):
        tail2(g, name, TX, TY, out)
    else:
        e(f"s_or_b32 s{S_N}, s{S_PX}, s{S_PY}")
        e(f"s_mov_b32 s{S_N}, {SPIN}")
        e(f"s_cbranch_scc0 {name}_np")
        poll(g)
        g.lab(f"{name}_np")
        e("s_waitcnt lgkmcnt(0)")
        g.stamp()
        e("s_barrier")
        g.stamp()
        RA, RB = CACC, CACC + 24
        def last(nm, P, mask, T):
            e(f"s_cmp_eq_u32 s{P}, 0")
            e(f"s_cbranch_scc1 {nm}2")
            g.lab(f"{nm}lp")
            e("s_waitcnt vmcnt(0)")
            e(f"v_cmp_ne_u32 vcc, s{S_TOK}, v{V_P}")
            e(f"s_sub_u32 s{S_N}, s{S_N}, 1")
            e(f"s_cbranch_scc1 {nm}go")
            e(f"s_and_b32 s{P}, vcc_lo, {mask}")
            e(f"s_cbranch_scc0 {nm}go")
            poll(g)
            e(f"s_branch {nm}lp")
            g.lab(f"{nm}go")
            for x in T: e(x)
            g.lab(f"{nm}2")
        fin_a(g, XA, S_IA, RA)
        e(f"s_cmp_lg_u32 s{S_BM}, 0")
        e(f"s_cbranch_scc1 {name}_two")
        last(f"{name}_a", S_PX, "0xffff", TX)
        g.stamp()
        fin_b(g, LDA, XA, RA, True)
        out(XA, V_XA)
        finish(g)
        g.lab(f"{name}_two")
        fin_a(g, XB, S_IB, RB)
        e(f"s_or_b32 s{S_GX}, s{S_GX}, s{S_PX}")
        e(f"s_cbranch_scc1 {name}_xslow")
        g.lab(f"{name}_xback")
        fin_b(g, LDA, XA, RA, False)
        last(f"{name}_b", S_PY, "0xffff0000", TY)
        g.stamp()
        fin_b(g, LDB, XB, RB, True)
        out(XA, V_XA)
        out(XB, V_XB)
        finish(g)
        g.lab(f"{name}_xslow")
        last(f"{name}_x", S_PX, "0xffff", TX)
        e(f"s_mov_b32 s{S_N}, {SPIN}")
        e("s_waitcnt vmcnt(0)")
        e(f"s_branch {name}_xback")
    g.lab(f"{name}_none")
    e(f"s_waitcnt vmcnt({n7})")
    flag(7)
    e("s_waitcnt vmcnt(1)")
    flag(8)
    finish(g)

def gen(name, opt):
    g = G(opt); o = opt
    e = g.e
    g.NF = 5
    SM[0] = o.get("sm", 1)
    g.ool = []; g.grp = "Z"
    g.L.append(f".globl {name}\n.p2align 8\n.type {name},@function\n{name}:")
    npro = prologue(g, name)
    nm = name + "_Z"; g.nm = nm
    full = not o.get("core")
    sc = Sched(g, npro)
    sc.claim(range(11, 20), "x"); sc.claim([10], "tbl")
    for s_ in range(9): sc.hold[s_] = 10
    work = {}; inb = {}; pre = {}; post = {}; bw = {}; bv = {}; act = {}; aft = {}; hooks = {}
    add = lambda d, k, L: d.setdefault(k, []).extend(L)
    bj = lambda r: (r - 6) // 2
    xr = o.get("xr", [[8, 2], [12, 5], [16, 8], [18, 9]])
    h0 = o.get("h0", 152); hd = o.get("hd", 4); hl = o.get("hl", 2); hs = o.get("hs", 176)
    bars = set(18*N + b_ for N in range(18) for b_ in (o.get("bs", [0, 8]) if N < 17 or not full else [4, 12]))
    bars -= set(range(xr[0][0])) | set(range(h0, h0 + 4*hd + hl*hd))
    bars |= set(x[0] for x in xr) | set(o.get("xb2", [22])) | set(h0 + hd*i for i in range(5 + hl)) | set([hs]) | set(o.get("hb2", [184]))
    bars -= set(o.get("nb", []))
    bars = sorted(bars)
    nextb = lambda r, n=1: [b_ for b_ in bars if b_ > r][n - 1]
    def scatter(L, j0, nbu, lead=0):
        pos = [(j, q) for j in range(j0, j0 + nbu) for q in range(4) if seq(j)[q]]
        for k, x in enumerate(L): add(inb, pos[(k * len(pos)) // len(L)], [x])
    for x in bias_read(0): g.put(x)
    ns = 0
    for r_, c_ in enumerate(o.get("ls", [1, 1, 2])):
        add(inb, (-1, r_), [sread(0, k) for k in SO[ns:ns + c_]]); ns += c_
    scatter([sread(0, k) for k in SO[ns:]], 0, o.get("xn", 6))
    pc = 0
    for r_, c_ in xr:
        add(bw, r_, [("s", k) for k in range(4*c_)])
        add(act, r_, [lambda a_=pc, c_=c_: sc.free(range(11 + a_, 11 + c_))]); pc = c_
    stgl = o.get("stgl", 134)
    for n in range(9):
        if n < 8: add(inb, (9*n + 1, 0) if n == 7 and stgl == 134 else (9*n + o.get("bslot", 4), 2), bias_read(n + 1))
        if n: deal(gelu_list(o, n - 1), 9*n, o.get("gn", 9) if n < 8 else min(9, bj(h0 + 3*hd) - 72), work)
    if not o.get("sup", 1): spread(atoms(setup2()) + (setup3(o) if full else []), o.get("su0", 6), o.get("su1", 34), work)
    add(pre, o.get("stl", xr[1][0]), [[f"s_lshl_b32 s{S_YT}, s{S_RB}, 9", f"s_add_u32 s{S_YT}, s{S_YT}, {STAT_OFF}",
        f"buffer_store_dwordx2 v[{V_QA}:{V_QA+1}], v{V_SAD}, s[{S_WS}:{S_WS+3}], s{S_YT} offen sc1"]])
    if full:
        for k_, (r_, cs) in enumerate(o.get("xtl", [[26, [0, 1, 2]], [54, [3, 4, 5]], [90, [6, 7, 8]]])):
            assert all(bj(r_) + 2 < 18*(c_ // 2) + 16 for c_ in cs)
            def xt(k_=k_, cs=cs):
                e(f"s_cmp_eq_u32 s{S_W}, s{S_J}")
                e(f"s_cbranch_scc1 {nm}_xt{k_}")
                g.lab(f"{nm}_xt{k_}b")
                L = [f"s_and_b32 s{S_YT}, s2, 8", f"s_lshl_b32 s{S_YT}, s{S_YT}, 2", f"v_lshrrev_b32 v{V_T2}, 3, v{V_TID}", f"v_xor_b32 v{V_T2}, s{S_YT}, v{V_T2}",
                     f"v_lshl_or_b32 v{V_T2}, v{V_TID}, 11, v{V_T2}", f"v_and_b32 v{V_T2}, 0x3fff, v{V_T2}", f"v_lshlrev_b32 v{V_T2}, 4, v{V_T2}",
                     f"s_lshl_b32 s{S_YT}, s{S_RB}, 10", f"s_add_u32 s{S_YT}, s{S_YT}, {XT_OFF + 262144*cs[0]}"]
                for c_ in cs:
                    L.append(f"buffer_store_dwordx4 v[{XR+4*c_}:{XR+4*c_+3}], v{V_T2}, s[{S_WS}:{S_WS+3}], s{S_YT} offen sc1")
                    if c_ != cs[-1]: L.append(f"s_add_u32 s{S_YT}, s{S_YT}, 262144")
                g.ool += [f"{nm}_xt{k_}:"] + ["  " + x for x in L] + [f"  s_branch {nm}_xt{k_}b"]
            add(pre, r_, [[xt]])
    add(work, 60, [f"s_lshl_b32 s{S_N}, s{S_MH}, 13", f"v_lshl_add_u32 v{V_FR}, v{V_LANE}, 4, s{S_N}"])
    if full:
        if o.get("cm", 4): add(post, o.get("rcold", 134), cold_items(o.get("cm", 4)))
        def second():
            e("s_cmp_ge_u32 s2, 224")
            e(f"s_cbranch_scc1 {nm}_u2")
            g.lab(f"{nm}_u2b")
            L = [f"s_add_u32 m0, s{S_KM}, 8192", f"v_add_u32 v{V_T2}, s{S_KM2}, v{V_K1}",
                 f"buffer_load_dwordx4 v{V_T2}, s[{S_K}:{S_K+3}], 0 offen lds",
                 f"s_add_u32 m0, s{S_KM}, {KSZ + 8192}", "s_nop 0",
                 f"buffer_load_dwordx4 v{V_T2}, s[{S_V}:{S_V+3}], 0 offen lds"]
            g.ool += [f"{nm}_u2:"] + ["  " + x for x in L] + [f"  s_branch {nm}_u2b"]
        add(pre, stgl, [[second, f"s_mov_b32 m0, s{S_KM}", (f"buffer_load_dwordx4 v{V_K1}, s[{S_K}:{S_K+3}], 0 offen lds", "kst")],
                        [f"s_add_u32 m0, s{S_KM}, {KSZ}", (f"buffer_load_dwordx4 v{V_K1}, s[{S_V}:{S_V+3}], 0 offen lds", "stg")]])
        add(bw, stgl, ["bias"])
        sc.hold[9] = 9; sc.hold[11] = 9; sc.hold[12] = 9
        add(act, stgl, [lambda: sc.claim([9, 11, 12], "stg")])
        for r_, k_ in o.get("tl", [[36, "K"], [72, "V"], [156, "F"]]):
            sr, v, d, m_ = {"K": (S_K, V_KT, V_HG, 0x37373737), "V": (S_V, V_KT, V_DUM, 0x30303030), "F": (S_KF, V_KFT, V_DUM, 0)}[k_]
            add(pre, r_, [([f"s_mov_b32 exec_lo, {m_}", "s_mov_b32 exec_hi, exec_lo"] if m_ else ["s_mov_b64 exec, 0x7ff"]) +
                          [(f"buffer_load_dword v{d}, v{v}, s[{sr}:{sr+3}], 0 offen", "t" + k_), "s_mov_b64 exec, -1"]])
    wt = o.get("wt", [])
    wn = -(-5184 // (128 * len(wt))) if wt else 0
    if wt: add(work, o.get("wts", 40), [f"s_and_b32 s{S_WT}, s{S_RB}, 15", f"s_lshl3_add_u32 s{S_WT}, s{S_WT}, s{S_W}", f"s_mul_i32 s{S_WT}, s{S_WT}, {wn*128}",
            f"s_mul_i32 s{S_N}, s{S_J}, {576*1152}", f"s_add_u32 s{S_WT}, s{S_WT}, s{S_N}", f"v_lshlrev_b32 v{V_T}, 7, v{V_LANE}"])
    for r_ in wt:
        it = [f"s_bfm_b64 exec, {wn}, 0", f"buffer_load_dword v{V_DUM}, v{V_T}, s[{S_W2}:{S_W2+3}], s{S_WT} offen", "s_mov_b64 exec, -1",
              f"s_add_u32 s{S_WT}, s{S_WT}, {128*wn*128}"]
        if r_ in pre and o.get("wtm", 1): pre[r_][0] = pre[r_][0][:-1] + it
        else: add(pre, r_, [it])
    for p in range(4):
        r_ = h0 + hd*p
        add(act, r_, [lambda p=p: sc.claim([2*p, 2*p + 1], "h")])
        add(aft, r_, [(f"ds_write_b128 v{V_HW}, v[{HP+8*p+4*t}:{HP+8*p+4*t+3}] offset:{16384*p + 1024*t}", ("hw", p)) for t in range(2)])
        add(bw, r_ + hd, [("hw", p)])
        ks = [k for k in SO if k // 8 == p]
        ha = o.get("ha", 0)
        add(aft, r_ + hd, [sread(1, k) for k in ks[:ha]])
        scatter([sread(1, k) for k in ks[ha:]], bj(r_ + hd) + 1, o.get("hn", hd // 2))
        add(bw, r_ + hd + hl*hd, [("s", 36 + k) for k in ks])
        add(act, r_ + hd + hl*hd, [lambda p=p: sc.free([2*p, 2*p + 1])])
    js = bj(hs)
    deal(gelu_list(o, 8), 81, js - 81, work)
    rc = min(b_ for b_ in bars if b_ >= 168 and b_ > h0 + 3*hd)
    assert bj(rc) < js
    add(act, rc, [lambda: sc.claim([8], "h")])
    add(aft, rc, [f"s_lshl_b32 s{S_N}, s{S_MH}, 12", f"s_add_u32 s{S_N}, s{S_N}, 65536", f"v_lshl_add_u32 v{V_HW}, v{V_LANE}, 4, s{S_N}",
                  f"s_lshr_b32 s{S_N}, s{S_QW}, 1", f"s_lshl_b32 s{S_N}, s{S_N}, 8", f"s_and_b32 s{S_T2}, s{S_QW}, 1", f"s_add_u32 s{S_N}, s{S_N}, s{S_T2}",
                  f"v_lshl_add_u32 v{V_T}, s{S_N}, 3, v{V_HW}"])
    add(work, 4*(js - 1) + 1, [(f"ds_write2st64_b64 v{V_T}, v[{HP+32}:{HP+33}], v[{HP+34}:{HP+35}] offset0:0 offset1:2", ("hw", 4))])
    add(bw, hs, [("hw", 4)])
    ks = [k for k in SO if k >= 32]
    scatter([sread(1, k) for k in ks], js + 1, 1)
    add(bw, nextb(hs, o.get("hl4", 2)), [("s", 36 + k) for k in ks])
    add(act, nextb(hs, o.get("hl4", 2)), [lambda: sc.free([8])])
    if full:
        rv = o.get("rv", h0); rk = o.get("rk", h0 + 2*hd)
        assert rv >= h0 and rk >= h0 + 2*hd
        add(bv, min(rv, rk), ["stg"])
        scatter([(f"ds_read_b32 v{VR+r}, v{V_KG} offset:{KSZ + 1024 + 128*r}", "vr") for r in range(8)], bj(rv) + 1, o.get("vn", 1))
        scatter([(f"ds_read_b32 v{KR+r}, v{V_KH} offset:{640 + 128*r}", "kr") for r in range(3)] +
                [(f"ds_read_b32 v{KR+3+r}, v{V_KG} offset:{1024 + 128*r}", "kr") for r in range(8)], bj(rk) + 1, o.get("kn", 2))
        add(bw, nextb(rv, o.get("vl", 1)), ["vr"]); add(act, nextb(rv, o.get("vl", 1)), [lambda: sc.free([11, 12])])
        add(bw, nextb(rk, o.get("kl", 2)), ["kr"]); add(act, nextb(rk, o.get("kl", 2)), [lambda: sc.free([9, 10])])
        add(pre, o.get("rx", h0 + hd), [[(f"buffer_load_dword v{V_TOK}, off, s[{S_DBG}:{S_DBG+3}], 0 sc1", "tok")]])
        add(pre, h0 + 3*hd, [[f"v_lshrrev_b32 v{V_T2}, 9, v{V_KST}", f"v_and_b32 v{V_T2}, -16, v{V_T2}",
            (f"buffer_load_dwordx4 v[{SH}:{SH+3}], v{V_T2}, s[{S_SH}:{S_SH+3}], 0 offen", "sh")]])
    told = set()
    def flags():
        for m in range(7):
            if ("p", m) in g.bdone and m not in told:
                told.add(m)
                for x in flag_store(g, m): g.put(x)
        if "kv1" in g.bdone and "rdy" not in told:
            told.add("rdy")
            e(f"s_mul_i32 s{S_N}, s2, 257")
            e(f"s_bfe_u32 s{S_N}, s{S_N}, {3 | (8 << 16)}")
            e(f"s_lshl2_add_u32 s{S_N}, s{S_N}, {RDY_OFF}")
            e(f"buffer_store_dword v{V_TOK}, v{V_L0}, s[{S_WS}:{S_WS+3}], s{S_N} offen sc1")
    def tok():
        g.wait(vm=["tok"])
        e(f"v_readfirstlane_b32 s{S_TOK}, v{V_TOK}")
        e(f"s_cmp_eq_u32 s{S_TOK}, 0")
        e(f"s_cbranch_scc1 {nm}_tok_slow")
        g.lab(f"{nm}_tok_back")
        e(f"s_andn2_b32 s{S_PF}, s{S_FLG}, 0xe0")
        e(f"s_xor_b32 s{S_PF}, s{S_PF}, 4")
    def rdy():
        assert "rdy" in told
        g.wait(vm=["rl"])
        e(f"v_cmp_ne_u32 vcc, s{S_ONES}, v{V_RDY}")
        e(f"s_cbranch_vccnz {nm}_rdy_slow")
        g.lab(f"{nm}_rdy_back")
    ss = o.get("ss", 8)
    kvb = o.get("kvb", 1)
    def kvok(): assert "vr" in g.done and "kr" in g.done and ("hw", 4) in g.done
    if full:
        spread([kvok] + kv_compute(g), o.get("kc0", 4*js + 2), o.get("kc1", 362 + 36*kvb), work)
        spread(setup4(o), o.get("s40", 324 + 36*4 + 10), o.get("s40", 324 + 36*4 + 10) + 28, work)
        xe = o.get("xe", 0); rl = o.get("rl", 278 if xe else 310)
        if xe: add(pre, rl, [[f"buffer_load_dwordx4 v[{X}:{X+3}], v{v}, s[{S_WS}:{S_WS+3}], s{S_XO} offen sc1" for X, v in ((XA, V_RA), (XB, V_RB))]])
        add(work, 4*o.get("rlj", 128 if xe else 146), [(f"buffer_load_dword v{V_RDY}, v{V_L4}, s[{S_WS}:{S_WS+3}], 0 offen sc1", "rl")])
        add(work, 4*o.get("p0j", 155) + 1, [lambda: poll(g, "p0")])
        add(work, 640, [f"v_min_u32 v{V_L0}, 1, v{V_LANE}", f"v_lshlrev_b32 v{V_L0}, 31, v{V_L0}"])
        c0 = 606 + o.get("c0", 0)
        add(act, 310, [lambda: sc.claim(range(9), "conv")])
        spread(conv_loads(g), c0, c0 + o.get("cls", 12), work)
        add(work, 628, [flags])
        hooks.update({o.get("rt", 180): tok, rl: rdy, 318: lambda: g.wait(vm=[("p", 6)])})
    for n in range(8):
        b = 324 + 36*(n + 1)
        if n >= 4: add(work, b + 2, tswap(g, n))
        spread(cvt(g, n), b + 3, b + 8, work)
        tq = o.get("tq", 12) if n < 7 else 7
        if n >= 3: add(work, b + tq, [([] if o.get("nopf") else [fcheck(g, n + 1)]) + tload(g, n + 1)])
        if 2 <= n < 7 and not o.get("nopf"): add(work, b + max(tq, o.get("fq", 20)), [fload(g, n + 2)])
        s_ = o.get("ss7", 10) if full and n == 7 else ss
        add(work, b + s_, pstore(g, n))
        if full:
            if n == kvb:
                for k_, x in enumerate(kv_store()): add(work, b + s_ + o.get("kvo", [0, 0])[k_], x)
            add(work, b + s_, [flags])
    stream(g, sc, bars, work, hooks, pre, post, inb, bw, bv, act, aft)
    if o.get("sp"): e("s_setprio 0")
    for x in tswap(g, 8): g.put(x)
    e("s_nop 5")
    for x in cvt(g, 8) + pstore(g, 8): g.put(x)
    if not full: finish(g)
    else:
        assert told == set(range(7)) | {"rdy"}, told
        tail(g, nm)
        g.lab(f"{nm}_rdy_slow")
        e(f"s_mov_b32 s{S_N}, {SPIN}")
        g.lab(f"{nm}_rdy_lp")
        e(f"buffer_load_dword v{V_RDY}, v{V_L4}, s[{S_WS}:{S_WS+3}], 0 offen sc1")
        e(f"s_sub_u32 s{S_N}, s{S_N}, 1")
        e("s_waitcnt vmcnt(0)")
        e(f"s_cbranch_scc1 {nm}_rdy_back")
        e(f"v_cmp_ne_u32 vcc, s{S_ONES}, v{V_RDY}")
        e(f"s_cbranch_vccnz {nm}_rdy_lp")
        e(f"s_branch {nm}_rdy_back")
        g.lab(f"{nm}_tok_slow")
        e(f"s_mov_b32 s{S_N}, {SPIN}")
        g.lab(f"{nm}_tok_lp")
        e(f"buffer_load_dword v{V_TOK}, off, s[{S_DBG}:{S_DBG+3}], 0 sc1")
        e(f"s_sub_u32 s{S_N}, s{S_N}, 1")
        e("s_waitcnt vmcnt(0)")
        e(f"s_cbranch_scc1 {nm}_tok_back")
        e(f"v_readfirstlane_b32 s{S_TOK}, v{V_TOK}")
        e(f"s_cmp_eq_u32 s{S_TOK}, 0")
        e(f"s_cbranch_scc1 {nm}_tok_lp")
        e(f"s_branch {nm}_tok_back")
    g.L += g.ool
    g.lab(f"{name}_mk")
    e(f"s_mov_b32 s{S_T}, {EPO_OFF}")
    e(f"s_load_dword s{S_TOK}, s[{S_WS}:{S_WS+1}], s{S_T}")
    e(f"v_min_u32 v{V_T}, 1, v{V_LANE}")
    e(f"v_lshlrev_b32 v{V_T}, 31, v{V_T}")
    e("s_waitcnt lgkmcnt(0)")
    e(f"s_add_u32 s{S_TOK}, s{S_TOK}, 1")
    e(f"s_addc_u32 s{S_TOK}, s{S_TOK}, 0")
    e(f"v_mov_b32 v{V_L0}, s{S_TOK}")
    e(f"buffer_store_dword v{V_L0}, v{V_T}, s[{S_DBG}:{S_DBG+3}], 0 offen sc1")
    e(f"buffer_store_dword v{V_L0}, v{V_T}, s[{S_WS}:{S_WS+3}], s{S_T} offen sc1")
    e(f"s_branch {name}_mkb")
    g.lab(f"{name}_exit")
    e("s_endpgm")
    desc = f""".amdhsa_kernel {name}
  .amdhsa_next_free_vgpr 256
  .amdhsa_next_free_sgpr {102 if o.get('stamps') else 100}
  .amdhsa_accum_offset 256
  .amdhsa_group_segment_fixed_size 0
  .amdhsa_kernarg_size 112
  .amdhsa_user_sgpr_count 2
  .amdhsa_user_sgpr_kernarg_segment_ptr 1
  .amdhsa_system_sgpr_workgroup_id_x 1
.end_amdhsa_kernel"""
    return "\n".join(g.L) + "\n", desc
```

```python
import struct, math
def f32bits(x): return struct.unpack("<I", struct.pack("<f", x))[0]

LDS_SZ = 163840
XL = 11 * 8192
KSTG = 73728
KSZ = 16384
TBL = 84128
STAMP_OFF = 32 << 20
KVT_OFF = 20 << 20
STAT_OFF = 24 << 20
FLAG_OFF = 25 << 20
RDY_OFF = 26 << 20
EPO_OFF = 27 << 20
XT_OFF = 28 << 20
JOBS = [[(0, 6), (27, 32)], [(6, 11), (22, 27)], [(11, 22)]]
WSTR = 8704
SPIN = 1 << 15
SPB = 3584

V_TID = 0; V_LANE = 1
V_TR = [2, 3, 4]
V_FR = 5; V_HW = 6; V_C1 = 7
V_O1 = 8; V_O2 = 9; V_BO = 10; V_ST = 11; V_L0 = 12
V_STAMP = 13; V_T = 14; V_T2 = 15
V_O1B = 52; V_O2B = 53; V_O1G = 54; V_O2G = 55
ACC = [16, 24]
WF = 32
WFS = [32, 36, 40, 44, 48, 52, 108]
S_KO = 35; S_FO = 1; S_DUM = 56
GT = 56; BI = 64; SP = 68; HP = 76; BIG = 112
XR = 76; LT = 112; BR = 63; V_QA = 60; V_SAD = 62; S_YT = 3; S_XO = 30
PKR = 56
V_K1 = 68; V_K2 = 69; V_KH = 69; V_HG = 55; V_DUM = 70; V_KFT = 71; V_XA = 72; V_XB = 73; V_KG = 74; V_KST = 75
XA = 64; XB = 68; V_KT = 53
VR = 76; KR = 84; SH = 96; KC = 100; KA = 104
V_FR2 = 56
V_TOK = 8; V_RDY = 60; V_L4 = 61; V_XO = 62; V_XS = 63; V_YO = 60; V_YS = 61; V_SA = 53; V_SB = 55
V_AF = 5; V_BF = 6; V_KV = 7; V_YW = 10; V_RA = 52; V_RB = 54; V_FA = 74; V_P = 75; V_CL = 110; V_OOB = 111
AF = 112; CACC = 176; BB = 224; NB = 6
LDA = 76; LDB = 16

S_TOK = 3
S_Q = 4; S_W1 = 8; S_W2 = 12; S_B1 = 16; S_DR = 20; S_WS = 24
S_J = 28; S_RB = 29; S_ROT = 30; S_W = 31; S_QW = 32; S_M0B = 33
S_GC = 34
S_N = 38; S_T = 39; S_T2 = 40
S_COL = 44
S_ROW = [16, 17, 18, 19, 36, 37, 41, 42, 43]
S_PB = 53; S_SI = 54; S_MH = 55
S_PC = 56; S_TM = 58; S_M0G = 56
S_FLG = 62; S_ONES = 63
S_K = 64; S_V = 68; S_SH = 72; S_KVO = 76
S_G = 77; S_PART = 78; S_INFO = 79
S_OUT = 80; S_KF = 84; S_DBG = 88; S_DP = 92; S_BP = 94; S_B2 = 96
S_TA = 92; S_TB = 93; S_IA = 94; S_IB = 95; S_BM = 57; S_KM = 30
S_BV = 64; S_LO = 72; S_HI = 73; S_D = 74; S_PX = 75; S_PY = 76; S_GX = 34; S_GY = 35; S_XM = 28; S_YM = 0; S_SO = 23; S_NX = 0; S_NY = 1; S_H2 = 8; S_CH = 9; S_FB = 10; S_GO = 11

S_PO = [11, 4, 5, 6, 7, 20, 21, 22]
S_WT = 35; S_KM2 = 35; S_PF = 56; V_PF = 68; TQ = 64; NP = 4

class G:
    def __init__(self, opt):
        self.L = []; self.o = opt
        self.lds = []; self.vm = []; self.done = set(); self.bdone = set()
    def e(self, s, tag=None):
        if s.endswith(" lds") and self.L[-1].split()[1:2] == ["m0,"]: self.L.append("  s_nop 0")
        self.L.append("  " + s)
        if s.startswith("ds_"): self.lds.append(tag)
        if s.startswith("buffer_") or s.startswith("global_"): self.vm.append(tag)
    def put(self, x):
        if isinstance(x, list):
            for y in x: self.put(y)
        elif callable(x): x()
        elif isinstance(x, tuple): self.e(x[0], x[1])
        else: self.e(x)
    def lab(self, s): self.L.append(s + ":")
    def _n(self, q, tags):
        idx = [i for i, t in enumerate(q) if t is not None and t in tags]
        if not idx: return None
        m = max(idx)
        for t in q[:m+1]:
            if t is not None: self.done.add(t)
        n = len(q) - 1 - m
        del q[:m+1]
        return n
    def wait(self, lds=(), vm=(), alllds=False, allvm=False):
        w = []
        if allvm:
            for t in self.vm: self.done.add(t)
            self.vm = []; w.append("vmcnt(0)")
        else:
            n = self._n(self.vm, set(vm))
            if n is not None: w.append(f"vmcnt({min(n, 63)})")
        if alllds:
            for t in self.lds: self.done.add(t)
            self.lds = []; w.append("lgkmcnt(0)")
        else:
            n = self._n(self.lds, set(lds))
            if n is not None: w.append(f"lgkmcnt({min(n, 15)})")
        if w: self.e("s_waitcnt " + " ".join(w))
    def stamp(self):
        if not self.o.get("stamps"): return
        self.e(f"s_memtime s[{S_TM}:{S_TM+1}]")
        self.e(f"s_memrealtime s[{S_TM+2}:{S_TM+3}]")
        self.e("s_mov_b32 s100, m0")
        self.e("s_waitcnt lgkmcnt(0)")
        self.e(f"s_mov_b32 m0, s{S_SI}")
        self.e(f"s_add_u32 s{S_SI}, s{S_SI}, 1")
        self.e(f"v_writelane_b32 v{V_STAMP}, s{S_TM}, m0")
        self.e(f"s_add_u32 m0, m0, 30")
        self.e(f"s_nop 0")
        self.e(f"v_writelane_b32 v{V_STAMP}, s{S_TM+2}, m0")
        self.e("s_mov_b32 m0, s100")
    def rstamp(self, lane):
        if not self.o.get("stamps"): return
        self.e(f"s_memrealtime s[{S_TM}:{S_TM+1}]")
        self.e("s_waitcnt lgkmcnt(0)")
        self.e(f"v_writelane_b32 v{V_STAMP}, s{S_TM}, {lane}")

def srd(g, s, nrec):
    g.e(f"s_mov_b32 s{s+2}, {nrec}")
    g.e(f"s_mov_b32 s{s+3}, 0x00020000")

SM = [1]
def slot(N, u):
    if N == 10 and u == 8: return 9
    if N % 2 == 0: return u
    if N == 7: return 11 + u
    if N > 8: return [13, 14, 15, 16, 17, 18, 19, 12, 11][u]
    if N < 9:
        if not SM[0]: return 11 + u
        return 10 + u if u else (9 if N == 1 else 19)
    if u == 8: return 11
    if not SM[0]: return 12 + u
    return 11 + u if u else 19

def dma(g, N, u, grp=False):
    L = [f"s_add_u32 m0, s{S_M0G if grp else S_M0B}, {slot(N, u) * 8192}"]
    if N < 9:
        L.append(f"s_add_u32 s{S_T}, s{S_COL+N}, {u*64*9216}")
        v, s = (V_O1G if grp else V_O1), S_W1
        v2 = V_O1B
    else:
        L.append(f"s_add_u32 s{S_T}, s{S_COL+N-9}, s{S_ROW[u]}")
        v, s = (V_O2G if grp else V_O2), S_W2
        v2 = V_O2B
    if g.o.get("nodma") and N: return [L]
    L.append((f"buffer_load_dwordx4 v{v}, s[{s}:{s+3}], s{S_T} offen lds", ("u", N, u)))
    if not grp: return [L]
    d2 = (f"buffer_load_dwordx4 v{v2}, s[{s}:{s+3}], s{S_T} offen offset:1024 lds", ("u", N, u))
    if g.o.get("dpair"): return [L + [d2]]
    return [L, [d2]]

def parts(N, ks):
    if N < 9: return [(ks // 2, 2*(ks % 2)), (ks // 2, 2*(ks % 2) + 1)]
    if ks < 16: return [(2*(ks // 4), ks % 4), (2*(ks // 4) + 1, ks % 4)]
    return [(8, 2*(ks - 16)), (8, 2*(ks - 16) + 1)]

def wreads(g, r):
    N, ks = r // 18, r % 18
    b = WFS[r % g.NF]
    L = []
    for h, (u, g16) in enumerate(parts(N, ks)):
        a = slot(N, u)*8192 + 2048*g16
        L.append((f"ds_read_b64_tr_b16 v[{b+2*h}:{b+2*h+1}], v{V_TR[a >> 16]} offset:{a & 0xffff}", ("w", r) if h else None))
    return L

def mfmas(g, i):
    N, ks = i // 18, i % 18
    b = WF + 4*(i % g.NF)
    L = []
    for t in range(2):
        c = ACC[N % 2] + 4*t
        f = BIG + 8*ks + 4*t
        src = f"v[{c}:{c+3}]" if ks else (f"v[{BI}:{BI+3}]" if N < 9 else "0")
        L.append(f"v_mfma_f32_16x16x32_bf16 v[{c}:{c+3}], v[{b}:{b+3}], v[{f}:{f+3}], {src}")
    return L

def sread(ph, k):
    ks, t = k // 2, k % 2
    if ph == 0:
        off = 4096*ks + 1024*t
        v = [V_FR, V_FR2, V_FR2 + 1, V_FR2 + 2][(off >> 16) + 2*(ks % 2)]
        return (f"ds_read_b128 v[{BIG+4*k}:{BIG+4*k+3}], v{v} offset:{off & 0xffff}", ("s", k))
    if ks < 16: return (f"ds_read_b128 v[{BIG+4*k}:{BIG+4*k+3}], v{V_FR} offset:{16384*(ks//4) + 2048*(ks%4) + 1024*t}", ("s", 36 + k))
    return (f"ds_read_b128 v[{BIG+4*k}:{BIG+4*k+3}], v{V_HW} offset:{2048*(ks-16) + 1024*t}", ("s", 36 + k))

def spread(items, s0, s1, work):
    n = len(items)
    for i, it in enumerate(items):
        s = s0 + (i * (s1 - s0)) // n
        work.setdefault(s, []).extend(it if isinstance(it, list) else [it])

def gelu_list(o, n):
    L = []
    A = ACC[n % 2]
    x = [A + i for i in range(8)]
    t = [GT + i for i in range(8)]
    def dst(i):
        if n == 8: return HP + 32 + i
        return HP + 8*(n // 2) + 4*(i // 2) + 2*(n % 2) + (i % 2)
    if o.get("nogelu"):
        return [f"v_cvt_pk_bf16_f32 v{dst(i)}, v{x[2*i]}, v{x[2*i+1]}" for i in range(4)]
    P = lambda r: f"v[{r}:{r+1}]"
    if o.get("pk", 0):
        sc = f"s[{S_GC}:{S_GC+1}]"
        for i in range(0, 8, 2): L.append(f"v_pk_mul_f32 {P(t[i])}, {P(x[i])}, {P(x[i])}")
        for i in range(0, 8, 2): L.append(f"v_pk_fma_f32 {P(t[i])}, {P(t[i])}, {sc}, {sc} op_sel:[0,0,1] op_sel_hi:[1,0,1]")
        for i in range(0, 8, 2): L.append(f"v_pk_mul_f32 {P(t[i])}, {P(t[i])}, {P(x[i])}")
        for i in range(8): L.append(f"v_exp_f32 v{t[i]}, v{t[i]}")
        for i in range(0, 8, 2): L.append(f"v_pk_add_f32 {P(t[i])}, {P(t[i])}, 1.0 op_sel_hi:[1,0]")
        for i in range(8): L.append(f"v_rcp_f32 v{t[i]}, v{t[i]}")
        for i in range(0, 8, 2): L.append(f"v_pk_mul_f32 {P(t[i])}, {P(t[i])}, {P(x[i])}")
    else:
        for i in range(8): L.append(f"v_mul_f32 v{t[i]}, v{x[i]}, v{x[i]}")
        for i in range(8): L.append(f"v_fma_f32 v{t[i]}, v{t[i]}, s{S_GC}, v{V_C1}")
        for i in range(8): L.append(f"v_mul_f32 v{t[i]}, v{t[i]}, v{x[i]}")
        for i in range(8): L.append(f"v_exp_f32 v{t[i]}, v{t[i]}")
        for i in range(8): L.append(f"v_add_f32 v{t[i]}, 1.0, v{t[i]}")
        for i in range(8): L.append(f"v_rcp_f32 v{t[i]}, v{t[i]}")
        for i in range(8): L.append(f"v_mul_f32 v{t[i]}, v{t[i]}, v{x[i]}")
    for i in range(4): L.append(f"v_cvt_pk_bf16_f32 v{dst(i)}, v{t[2*i]}, v{t[2*i+1]}")
    return L

def tload(g, n):
    L = [f"s_lshl_b32 s{S_T2}, s{S_COL+n}, 11", f"s_add_u32 s{S_T2}, s{S_T2}, s{S_PB}"]
    v = V_ST
    if n == 4:
        L = [f"s_lshl_b32 s{S_N}, s{S_J}, 31", f"v_or_b32 v{V_T}, s{S_N}, v{V_ST}"] + L; v = V_T
    L.append((f"buffer_load_dwordx4 v[{TQ}:{TQ+3}], v{v}, s[{S_WS}:{S_WS+3}], s{S_T2} offen {g.o.get('tfl', '')}", ("q", n)))
    return L

def fload(g, n):
    return [f"s_lshl1_add_u32 s{S_N}, s{S_COL+n}, s{S_PF}",
            (f"buffer_load_dword v{V_PF}, off, s[{S_WS}:{S_WS+3}], s{S_N} sc1", ("pf", n))]

def fcheck(g, n):
    def f():
        nm = f"{g.nm}_pf{n}"
        g.wait(vm=[("pf", n)])
        g.e(f"v_cmp_ne_u32 vcc, s{S_TOK}, v{V_PF}")
        g.e(f"s_cbranch_vccnz {nm}")
        g.lab(f"{nm}b")
        L = ([f"s_bitcmp1_b32 s{S_J}, 0", f"s_cbranch_scc1 {nm}b"] if n == 4 else []) + [
             f"s_lshl1_add_u32 s{S_N}, s{S_COL+n}, s{S_PF}", f"s_mov_b32 s{S_T2}, {SPIN}"]
        M = [f"buffer_load_dword v{V_PF}, off, s[{S_WS}:{S_WS+3}], s{S_N} sc1", f"s_sub_u32 s{S_T2}, s{S_T2}, 1", "s_waitcnt vmcnt(0)",
             f"s_cbranch_scc1 {nm}b", f"v_cmp_ne_u32 vcc, s{S_TOK}, v{V_PF}", f"s_cbranch_vccnz {nm}l", f"s_branch {nm}b"]
        g.ool += [f"{nm}:"] + ["  " + x for x in L] + [f"{nm}l:"] + ["  " + x for x in M]
    return f

def tswap(g, n):
    return [lambda: g.wait(vm=[("q", n)]), f"v_permlane16_swap_b32 v{TQ}, v{TQ+2}", f"v_permlane16_swap_b32 v{TQ+1}, v{TQ+3}"]

def cvt(g, n):
    A = ACC[(n + 9) % 2]; P = PKR + 4*(n % g.o.get("npk", 1))
    L = []
    if n >= 4:
        tc = g.o.get("tc", 0)
        if tc == 2 and n < 8:
            ex = lambda d, i: [f"v_lshlrev_b32 v{d}, 16, v{TQ+i}", f"v_and_b32 v{d+1}, 0xffff0000, v{TQ+i}"]
            ad = lambda d, i: [f"v_pk_add_f32 v[{A+2*i}:{A+2*i+1}], v[{A+2*i}:{A+2*i+1}], v[{d}:{d+1}]"]
            L += ex(P, 0) + ex(P + 2, 1) + ex(TQ, 2) + ad(P, 0) + ad(P + 2, 1) + ex(P, 3) + ad(TQ, 2) + ad(P, 3)
        else:
            for i in range(4): L += [f"v_dot2c_f32_bf16 v{A+2*i}, s{S_LO}, v{TQ+i}", f"v_dot2c_f32_bf16 v{A+2*i+1}, s{S_HI}, v{TQ+i}"]
        if tc == 1: L = [x.replace("v_dot2c_f32_bf16", "v_add_f32") for x in L]
        if tc == 3: L = []
    L += [f"v_cvt_pk_bf16_f32 v{P+i}, v{A+2*i}, v{A+2*i+1}" for i in range(4)]
    L.append("s_nop 0")
    L.append(f"v_permlane16_swap_b32 v{P}, v{P+2}")
    L.append(f"v_permlane16_swap_b32 v{P+1}, v{P+3}")
    return L

def pstore(g, n):
    P = PKR + 4*(n % g.o.get("npk", 1))
    L = [f"s_lshl_b32 s{S_T2}, s{S_COL+n}, 11", f"s_add_u32 s{S_T2}, s{S_T2}, s{S_PB}"]
    st = f"buffer_store_dwordx4 v[{P}:{P+3}], v{V_ST}, s[{S_WS}:{S_WS+3}], s{S_T2} offen"
    if n < 4: L.append(f"v_and_b32 v{P}, -2, v{P}")
    if n > 4: L.append(f"v_or_b32 v{P}, 1, v{P}")
    if n == 4: L += [[f"s_andn2_b32 s{S_N}, 1, s{S_J}", f"v_and_or_b32 v{P}, v{P}, -2, s{S_N}"]]
    return L + [(f"{st} {g.o.get('gfl', 'sc1') if n < 4 else g.o.get('ffl', 'sc1')}", ("p", n))]

def flag_store(g, n):
    return [f"s_lshl1_add_u32 s{S_N}, s{S_COL+n}, s{S_FLG}",
            (f"buffer_store_dword v{V_TOK}, v{V_L0}, s[{S_WS}:{S_WS+3}], s{S_N} offen sc1", ("f", n))]

class Sched:
    def __init__(self, g, first):
        self.g = g
        A = [(N, u) for N in range(18) for u in range(9)]
        self.q = A[first:]
        self.own = {}
        for N, u in A[:first]: self.own[slot(N, u)] = (N, u)
        self.hold = {}
    def ok(self, N, u):
        s_ = slot(N, u)
        return s_ not in self.own and not (s_ in self.hold and N >= self.hold[s_])
    def claim(self, slots, nm):
        for s_ in slots:
            assert s_ not in self.own, (s_, nm, self.own[s_])
            self.own[s_] = nm
    def free(self, slots):
        for s_ in slots:
            assert isinstance(self.own[s_], str), (s_, self.own[s_])
            del self.own[s_]; self.hold.pop(s_, None)
    def release(self, i):
        for s_, x in list(self.own.items()):
            if isinstance(x, tuple):
                N, u = x
                last = max(ks for ks in range(18) if any(p[0] == u for p in parts(N, ks)))
                if 18*N + last <= i: del self.own[s_]
    def take(self, cap):
        R = []
        while self.q and len(R) < cap and self.ok(*self.q[0]):
            x = self.q.pop(0); self.own[slot(*x)] = x
            R.append(x)
        return R

def mfma(g, i, t):
    N, ks = i // 18, i % 18
    b = WFS[i % g.NF]
    c = ACC[N % 2] + 4*t
    f = BIG + 8*ks + 4*t
    src = f"v[{c}:{c+3}]" if ks else (f"v[{BI}:{BI+3}]" if N < 9 else "0")
    return f"v_mfma_f32_16x16x32_bf16 v[{c}:{c+3}], v[{b}:{b+3}], v[{f}:{f+3}], {src}"

def isvalu(x):
    t = x[0] if isinstance(x, tuple) else x
    return isinstance(t, str) and t.startswith("v_")

def seq(j):
    R = []
    for i in (2*j - 2, 2*j - 1): R.append((i, 1 - (i % 18) // 2 % 2) if i >= 0 else None)
    for i in (2*j, 2*j + 1): R.append((i, (i % 18) // 2 % 2) if i < 324 else None)
    return R
SO = [2*m[0] + m[1] for j in range(10) for m in seq(j) if m and m[0] < 18]

def stream(g, sc, bars, work, hooks, pre, post, inb, bw, bv, act, aft):
    o = g.o; D = g.NF - 2; E = D + D % 2 + 2
    i1 = 324
    first = lambda r: r - D % 2
    def need(r0):
        nx = min([first(b) for b in bars if b > r0] + [i1])
        return [("u", r // 18, p[0]) for r in range(first(r0), nx) for p in parts(r // 18, r % 18)]
    due = {}
    for b in bars:
        for t in need(b): due.setdefault(t[1:], (b - E) // 2)
    for r in range(D):
        for x in wreads(g, r): g.put(x)
        for x in inb.pop((-1, r), []): g.put(x)
    vq = []
    log = []
    for j in range(163):
        r = 2*j + E
        bar = r in bars
        tgt = o.get("tgt%d" % (1 + j // 81), o.get("tgt", 7))
        if bar:
            sc.release(2*j + 1)
            for f in act.pop(r, []): f()
            vq += pre.pop(r, [])
        X = []
        if vq: X.append(vq.pop(0))
        us = sc.take(1) if j < 162 else []
        while us and len(us) < o.get("dmax", 2) and sc.q and due[sc.q[0]] - j < tgt and sc.ok(*sc.q[0]): us += sc.take(1)
        log += [(j, u, due[u] - j) for u in us]
        if bar: vq += post.pop(r, [])
        dm = [dma(g, N, u)[0] for N, u in us]
        rr = [x for i in (2*j + D, 2*j + D + 1) if i < i1 and not o.get("noread") for x in wreads(g, i)]
        sl = dm[0][:2] if dm else []
        S = seq(j)
        def stag(m): return [("s", 2*m[0] + m[1])] if m[0] < 18 else [("s", 36 + 2*(m[0] - 162) + m[1])] if 162 <= m[0] < 180 else []
        for q, m in enumerate(S):
            tags = []
            if q == o.get("wq", 0) and j > 1:
                tags += [("w", 2*j), ("w", 2*j + 1)] + (["bias"] if j % 9 == 0 else [])
                if o.get("sw", 1): tags += [t for m2 in S if m2 for t in stag(m2)]
            if m:
                tags.append(("w", m[0]))
                tags += stag(m)
                for t in stag(m): assert t in g.lds or t in g.done, (j, t)
                if m[0] % 18 == 0: tags.append("bias")
                if o.get("sp") == 2 and q == 0: g.e("s_setprio 1")
                g.wait(lds=tags)
                if o.get("sp") == 1 and q == 0: g.e("s_setprio 1")
                if o.get("sp") == 3 and q == 0: g.e("s_setprio 0")
                if not o.get("nomfma"): g.e(mfma(g, *m))
                if o.get("sp") in (1, 2) and q == 3: g.e("s_setprio 0")
                if o.get("sp") == 3 and q == 3: g.e("s_setprio 1")
                for _ in range(2 if j == 0 else 1):
                    if rr: g.put(rr.pop(0))
                if sl: g.put(sl.pop(0))
                for x in inb.pop((j, q), []): g.put(x)
        assert not rr
        if bar:
            nd = need(r)
            assert not [t for t in nd if t[1:] in sc.q or t[1:] in us], r
            for t in bw.get(r, []) + bv.get(r, []): assert t in g.lds or t in g.vm or t in g.done, (r, t)
            g.wait(vm=nd + bv.pop(r, []), lds=bw.pop(r, []))
            if r in hooks: hooks.pop(r)()
            if r in o.get("sl", [8, 18, 26, 80, 152, 164, 180, 188, 206, 242, 278, 296, 310, 318]): g.stamp()
            if not o.get("nobar"): g.e("s_barrier")
            g.bdone = set(g.done)
        if dm:
            for x in dm[0][2:]: g.put(x)
        if bar:
            for x in aft.pop(r, []): g.put(x)
        V = [x for s_ in range(4*j - 2, 4*j + 2) for x in work.pop(s_, [])]
        if j == 162: work[4*j - 2] = V; break
        for Y in dm[1:]:
            for x in Y[:2]: g.put(x)
            for _ in range(o.get("dgap", 2)):
                if V and isvalu(V[0]): g.put(V.pop(0))
            for x in Y[2:]: g.put(x)
        k = o.get("xgap", 2)
        while k and V and isvalu(V[0]) and X:
            g.put(V.pop(0)); k -= 1
        for Y in X:
            for x in Y: g.put(x)
        for x in V: g.put(x)
    if o.get("log"): print(log)
    assert not (vq or inb or pre or post or bw or bv or act or aft or hooks), (vq, inb, pre, post, bw, bv, act, aft, hooks)
    assert not [s_ for s_ in work if s_ < 2*i1 and work[s_]], sorted(work)

def deal(items, j0, n, work):
    cost = [2 if x.startswith("v_exp") or x.startswith("v_rcp") else 1 for x in items]
    tot = sum(cost); cum = 0
    for x, c in zip(items, cost):
        work.setdefault(4*(j0 + min(n - 1, int((cum + c / 2) * n / tot))), []).append(x); cum += c

def finish(g):
    if g.o.get("stamps"):
        g.stamp()
        g.e("s_waitcnt vmcnt(0)")
        g.stamp()
        g.rstamp(63)
        g.e(f"s_lshl_b32 s{S_T}, s2, 11")
        g.e(f"s_add_u32 s{S_T}, s{S_T}, {STAMP_OFF}")
        g.e(f"v_lshlrev_b32 v{V_T}, 2, v{V_TID}")
        g.e(f"buffer_store_dword v{V_STAMP}, v{V_T}, s[{S_WS}:{S_WS+3}], s{S_T} offen")
    g.e("s_endpgm")

def bf16round(g, v):
    g.e(f"v_cvt_pk_bf16_f32 v{v}, v{v}, v{v}")
    g.e(f"v_and_b32 v{v}, 0xffff0000, v{v}")

class H:
    def __init__(self): self.L = []; self.e = self.L.append

def prologue(g, name):
    o = g.o; e = g.e; raw = lambda s_: g.L.append("  " + s_)
    full = not o.get("core")
    e("s_cmp_ge_u32 s2, 256")
    e(f"s_cbranch_scc1 {name}_exit")
    e(f"s_load_dwordx2 s[{S_Q}:{S_Q+1}], s[0:1], 0")
    if o.get("stamps"):
        e(f"s_mov_b32 s{S_SI}, 0"); e(f"v_mov_b32 v{V_STAMP}, 0")
        g.rstamp(62)
        g.stamp()
    ep = o.get("ep", 0)
    if ep:
        e(f"s_getpc_b64 s[{S_PC}:{S_PC+1}]")
        e(f"v_lshrrev_b32 v{V_T}, {ep}, v{V_TID}")
        e(f"v_lshlrev_b32 v{V_T}, 7, v{V_T}")
        raw(f"global_load_dword v{V_DUM}, v{V_T}, s[{S_PC}:{S_PC+1}] offset:128")
    KA_ = [f"s_load_dwordx2 s[{s_}:{s_+1}], s[0:1], {off}" for s_, off in ((S_W1, 56), (S_B1, 64), (S_W2, 72), (S_WS, 104), (S_K, 8), (S_V, 16),
           (S_SH, 24), (S_KF, 32), (S_DP, 40), (S_BP, 80), (S_OUT, 88), (S_DBG, 96))]
    if o.get("kae", 0):
        for x in KA_: e(x)
    e(f"s_lshr_b32 s{S_RB}, s2, 4")
    e(f"s_and_b32 s{S_T}, s2, 4")
    e(f"s_lshl2_add_u32 s{S_RB}, s{S_T}, s{S_RB}")
    e(f"v_lshrrev_b32 v{LT}, 3, v{V_TID}")
    e(f"s_and_b32 s{S_T}, s2, 8")
    e(f"s_lshl_b32 s{S_T}, s{S_T}, 2")
    e(f"v_xor_b32 v{LT}, s{S_T}, v{LT}")
    e(f"v_and_b32 v{LT+1}, 7, v{V_TID}")
    e(f"s_mul_i32 s{S_T2}, s{S_RB}, {64*1152}")
    e(f"v_lshl_add_u32 v{LT+6}, v{LT+1}, 4, s{S_T2}")
    e(f"v_mul_u32_u24 v{LT+2}, 1152, v{LT}")
    e(f"v_add_u32 v{LT+6}, v{LT+6}, v{LT+2}")
    e(f"v_cmp_gt_u32 vcc, 256, v{V_TID}")
    srd(g, S_Q, 2359296)
    e("s_waitcnt lgkmcnt(0)")
    if o.get("pst"): g.stamp()
    xl = lambda i: f"buffer_load_dwordx4 v[{XR+4*i}:{XR+4*i+3}], v{LT+6}, s[{S_Q}:{S_Q+3}], 0 offen offset:{128*i}"
    y0 = o.get("y0", 1)
    for i in range(9):
        if i == y0: e(f"s_cbranch_vccz {name}_y0")
        raw(xl(i))
    e(f"s_getpc_b64 s[{S_PC}:{S_PC+1}]")
    g.lab(f"{name}_pc")
    e(f"s_lshr_b32 s{S_T}, s2, 3")
    e(f"v_lshl_add_u32 v{V_T}, v{V_TID}, 5, s{S_T}")
    e(f"v_lshlrev_b32 v{V_T}, 7, v{V_T}")
    e(f"v_min_u32 v{V_T}, {name}_exit-{name}_pc, v{V_T}")
    raw(f"global_load_dword v{V_DUM}, v{V_T}, s[{S_PC}:{S_PC+1}]")
    g.lab(f"{name}_y0")
    if not o.get("kae", 0):
        for x in KA_: e(x)
    if o.get("pst"): g.stamp()
    h = H(); e = h.e
    e(f"v_lshrrev_b32 v{V_T}, 6, v{V_TID}")
    e(f"v_and_b32 v{V_LANE}, 63, v{V_TID}")
    e(f"v_readfirstlane_b32 s{S_W}, v{V_T}")
    e(f"s_and_b32 s{S_J}, s2, 3")
    e(f"s_bfe_u32 s{S_T}, s2, {3 | (1 << 16)}")
    e(f"s_lshl1_add_u32 s{S_J}, s{S_J}, s{S_T}")
    srd(h, S_W1, 5308416); srd(h, S_W2, 5308416); srd(h, S_B1, 9216)
    srd(h, S_WS, 268435456)
    srd(h, S_K, 2359296); srd(h, S_V, 2359296); srd(h, S_SH, 4608)
    srd(h, S_KF, 2359296); srd(h, S_OUT, 2359296); srd(h, S_DBG, 256)
    e(f"s_and_b32 s{S_QW}, s{S_W}, 3")
    e(f"s_lshr_b32 s{S_MH}, s{S_W}, 2")
    e(f"s_lshl_b32 s{S_M0B}, s{S_W}, 10")
    e(f"s_lshl2_add_u32 s{S_ROT}, s{S_T}, s{S_RB}")
    e(f"s_mul_i32 s{S_T}, s{S_ROT}, 57")
    e(f"s_lshr_b32 s{S_T}, s{S_T}, 9")
    e(f"s_mul_i32 s{S_T}, s{S_T}, 9")
    e(f"s_sub_u32 s{S_ROT}, s{S_ROT}, s{S_T}")
    e(f"s_lshl_b32 s{S_COL}, s{S_ROT}, 7")
    for u in range(1, 9):
        e(f"s_add_u32 s{S_COL+u}, s{S_COL+u-1}, 128")
        e(f"s_cmp_eq_u32 s{S_COL+u}, 1152")
        e(f"s_cselect_b32 s{S_COL+u}, 0, s{S_COL+u}")
    e(f"v_lshrrev_b32 v{LT+3}, 3, v{V_TID}")
    e(f"v_and_b32 v{LT+4}, 6, v{LT+3}")
    e(f"v_xor_b32 v{LT+4}, v{LT+4}, v{LT+1}")
    e(f"v_lshlrev_b32 v{LT+4}, 4, v{LT+4}")
    e(f"s_mul_i32 s{S_N}, s{S_J}, 1152")
    e(f"v_mul_u32_u24 v{V_O1}, 9216, v{LT+3}")
    e(f"v_add3_u32 v{V_O1}, v{V_O1}, v{LT+4}, s{S_N}")
    e(f"s_mul_i32 s{S_T}, s{S_J}, {576*1152}")
    e(f"v_mul_u32_u24 v{V_O2}, 1152, v{LT+3}")
    e(f"v_add3_u32 v{V_O2}, v{V_O2}, v{LT+4}, s{S_T}")
    e(f"s_lshl_b32 s{S_T}, s{S_QW}, 1")
    e(f"s_sub_u32 s{S_T}, s{S_T}, s{S_W}")
    e(f"s_mul_i32 s{S_T2}, s{S_T}, {8*9216}")
    e(f"v_add_u32 v{V_O1G}, s{S_T2}, v{V_O1}")
    e(f"v_add_u32 v{V_O1B}, {8*9216-1024}, v{V_O1G}")
    e(f"s_lshl_b32 s{S_M0G}, s{S_QW}, 11")
    by = o.get("by", 1)
    if by:
        e(f"v_and_b32 v{V_BO}, 255, v{V_TID}")
        e(f"v_lshl_add_u32 v{V_BO}, v{V_BO}, 3, s{S_COL}")
    else: e(f"v_lshl_add_u32 v{V_BO}, v{V_TID}, 2, s{S_COL}")
    e(f"v_subrev_u32 v{V_T}, 1152, v{V_BO}")
    e(f"v_min_u32 v{V_BO}, v{V_BO}, v{V_T}")
    e(f"v_add_u32 v{V_BO}, s{S_N}, v{V_BO}")
    e(f"v_lshrrev_b32 v{LT+8}, 4, v{V_LANE}")
    e(f"v_lshrrev_b32 v{LT+9}, 2, v{V_LANE}")
    e(f"v_lshlrev_b32 v{V_TR[0]}, 7, v{LT+9}")
    e(f"v_bfe_u32 v{LT+9}, v{V_LANE}, 3, 2")
    e(f"v_xor_b32 v{LT+9}, s{S_QW}, v{LT+9}")
    e(f"v_lshl_add_u32 v{V_TR[0]}, v{LT+9}, 5, v{V_TR[0]}")
    e(f"v_and_b32 v{LT+9}, 3, v{V_LANE}")
    e(f"v_lshl_add_u32 v{V_TR[0]}, v{LT+9}, 3, v{V_TR[0]}")
    e(f"v_add_u32 v{V_TR[1]}, 65536, v{V_TR[0]}")
    e(f"v_add_u32 v{V_TR[2]}, 131072, v{V_TR[0]}")
    e(f"s_lshl_b32 s{S_T}, s{S_MH}, 11")
    e(f"s_add_u32 s{S_T}, s{S_T}, {XL}")
    e(f"v_lshrrev_b32 v{LT+7}, 5, v{V_LANE}")
    e(f"v_mul_u32_u24 v{LT+7}, 26, v{LT+7}")
    e(f"v_and_b32 v{V_FR}, 15, v{V_LANE}")
    e(f"v_xor_b32 v{V_FR}, v{V_FR}, v{LT+7}")
    e(f"v_and_b32 v{LT+7}, 16, v{V_LANE}")
    e(f"v_lshl_add_u32 v{V_FR}, v{LT+7}, 1, v{V_FR}")
    e(f"v_lshl_add_u32 v{V_FR}, v{V_FR}, 4, s{S_T}")
    e(f"v_add_u32 v{V_FR2}, 65536, v{V_FR}")
    e(f"v_xor_b32 v{V_FR2+1}, 64, v{V_FR}")
    e(f"v_xor_b32 v{V_FR2+2}, 64, v{V_FR2}")
    e(f"v_and_b32 v{LT+9}, 1, v{V_LANE}")
    e(f"v_mul_u32_u24 v{LT+9}, 26, v{LT+9}")
    e(f"v_and_b32 v{LT+2}, 15, v{LT}")
    e(f"v_xor_b32 v{LT+2}, v{LT+2}, v{LT+9}")
    e(f"v_and_b32 v{LT+9}, 48, v{LT}")
    e(f"v_lshl_add_u32 v{LT+2}, v{LT+9}, 2, v{LT+2}")
    e(f"v_and_b32 v{LT+9}, 4, v{V_LANE}")
    e(f"v_xor_b32 v{LT+2}, v{LT+2}, v{LT+9}")
    e(f"v_lshl_add_u32 v{LT+2}, v{LT+9}, 6, v{LT+2}")
    e(f"v_lshlrev_b32 v{LT+2}, 4, v{LT+2}")
    e(f"v_and_b32 v{LT+9}, 2, v{V_LANE}")
    e(f"v_lshl_add_u32 v{LT+2}, v{LT+9}, 2, v{LT+2}")
    e(f"v_add_u32 v{LT+2}, {XL}, v{LT+2}")
    c1 = 2.0 * math.sqrt(2.0 / math.pi) * math.log2(math.e)
    e(f"v_mov_b32 v{V_C1}, 0x{f32bits(-c1):08x}")
    e(f"s_mov_b32 s{S_GC}, 0x{f32bits(-c1*0.044715):08x}")
    e(f"v_or_b32 v{V_SAD}, s{S_J}, v{LT+1}")
    e(f"v_lshlrev_b32 v{V_SAD}, 28, v{V_SAD}")
    e(f"v_lshl_add_u32 v{V_SAD}, v{LT}, 3, v{V_SAD}")
    SA, SB, QA, QB, ONE = LT+10, LT+11, V_QA, V_QA+1, LT+14
    for r in (SA, SB, QA, QB): e(f"v_mov_b32 v{r}, 0")
    e(f"v_mov_b32 v{ONE}, 0x3f803f80")
    e(f"s_lshr_b32 s{S_T}, s2, 3")
    e(f"s_mul_i32 s{S_PART}, s{S_T}, 57")
    e(f"s_lshr_b32 s{S_PART}, s{S_PART}, 9")
    e(f"s_and_b32 s{S_G}, s2, 7")
    e(f"s_sub_u32 s{S_G}, s{S_G}, s{S_PART}")
    e(f"s_mul_i32 s{S_G}, s{S_G}, 9")
    e(f"s_add_u32 s{S_G}, s{S_G}, s{S_T}")
    e(f"s_lshl_b32 s{S_T}, s{S_G}, 4")
    S1 = atoms(h.L)
    DB = [f"s_load_dwordx4 s[{S_DR}:{S_DR+3}], s[{S_DP}:{S_DP+1}], s{S_T}", f"s_load_dwordx4 s[{S_B2}:{S_B2+3}], s[{S_BP}:{S_BP+1}], s{S_T}"]
    S1.append(([] if o.get("kae", 0) else ["s_waitcnt lgkmcnt(0)"]) + DB)
    S2 = (atoms(setup2()) + (setup3(o) if full else [])) if o.get("sup", 1) else []
    e = g.e
    cnt = [0]
    def hook(L):
        cnt[0] += 1
        e(f"s_cbranch_vccnz {name}_h{cnt[0]}")
        for x in L: raw(x)
        g.lab(f"{name}_h{cnt[0]}")
    def weave(S, Hs, f0, f1):
        at = [int(len(S) * (f0 + (f1 - f0) * k / max(1, len(Hs) - 1))) for k in range(len(Hs))]
        for k in range(len(S) + 1):
            for a_, L in zip(at, Hs):
                if a_ == k: hook(L)
            if k < len(S):
                for x in S[k]: e(x)
    def gdma(u, st):
        N, u = u // 9, u % 9
        return [[f"s_add_u32 m0, s{S_M0G}, {slot(N, u) * 8192}", f"s_add_u32 s{st}, s{S_COL+N}, {u*64*9216}",
                 f"buffer_load_dwordx4 v{V_O1G}, s[{S_W1}:{S_W1+3}], s{st} offen lds"],
                [f"buffer_load_dwordx4 v{V_O1B}, s[{S_W1}:{S_W1+3}], s{st} offen offset:1024 lds"]]
    weave(S1, [[xl(i)] for i in range(y0, 9)], *o.get("wv1", [0.1, 1.0]))
    e(f"s_or_b32 s{S_T}, s2, s{S_W}")
    e(f"s_cbranch_scc0 {name}_mk")
    g.lab(f"{name}_mkb")
    if o.get("pst"): g.stamp()
    ny = o.get("ny", 1)
    H2 = sum([gdma(u, S_YT) for u in range(ny)], [])
    if by: H2[0] = [f"buffer_load_dwordx2 v[{LT+32}:{LT+33}], v{V_BO}, s[{S_B1}:{S_B1+3}], 0 offen"] + H2[0]
    else: raw(f"buffer_load_dword v{BR}, v{V_BO}, s[{S_B1}:{S_B1+3}], 0 offen")
    weave(S2, H2, *o.get("wv2", [0.0, 1.0]))
    if o.get("pst"): g.stamp()
    def stats(later):
        for i in range(9):
            e(f"s_waitcnt vmcnt({8 - i + later})")
            if i == 0 and o.get("pst"): g.stamp()
            for c in range(4):
                x = XR + 4*i + c
                e(f"v_dot2c_f32_bf16 v{SA if c%2==0 else SB}, v{x}, v{ONE}")
                e(f"v_dot2c_f32_bf16 v{QA if c%2==0 else QB}, v{x}, v{x}")
    e(f"s_cbranch_vccz {name}_sy")
    stats(2 - by)
    if not by: e("s_waitcnt vmcnt(0)")
    e(f"s_branch {name}_sj")
    g.lab(f"{name}_sy")
    stats(1 + 2*ny)
    e(f"s_waitcnt vmcnt({2*ny})")
    g.lab(f"{name}_sj")
    if o.get("pst") or o.get("ps2"): g.stamp()
    pl = o.get("pl", [-1, -1, -1, 2, 4, 6, 8, 9, 9])
    ool = []
    def pd(pos):
        us = [ny + k for k in range(len(pl)) if pl[k] == pos]
        if not us: return
        e(f"s_cbranch_vccnz {name}_p{pos + 1}")
        g.lab(f"{name}_p{pos + 1}b")
        ool.append(f"{name}_p{pos + 1}:")
        for u in us:
            for x in sum(gdma(u, S_T), []): ool.append("  " + x)
            g.vm.extend([("u", u // 9, u % 9)] * 2)
        ool.append(f"  s_branch {name}_p{pos + 1}b")
    pd(-1)
    e("s_nop 2")
    e(f"v_add_f32 v{SA}, v{SA}, v{SB}")
    e(f"v_add_f32 v{QA}, v{QA}, v{QB}")
    for dpp in ("quad_perm:[1,0,3,2]", "quad_perm:[2,3,0,1]", "row_half_mirror"):
        e("s_nop 0")
        e(f"v_add_f32 v{SA}, v{SA}, v{SA} {dpp} row_mask:0xf bank_mask:0xf")
        e(f"v_add_f32 v{QA}, v{QA}, v{QA} {dpp} row_mask:0xf bank_mask:0xf")
    inv = f"0x{f32bits(1.0/576.0):08x}"
    e(f"v_mul_f32 v{SA}, {inv}, v{SA}")
    e(f"v_mul_f32 v{QA}, {inv}, v{QA}")
    e(f"v_fma_f32 v{QA}, -v{SA}, v{SA}, v{QA}")
    e(f"v_max_f32 v{QA}, 0, v{QA}")
    bf16round(g, SA)
    bf16round(g, QA)
    e(f"v_add_f32 v{QA}, 0x{f32bits(1e-5):08x}, v{QA}")
    bf16round(g, QA)
    e(f"v_sqrt_f32 v{QA}, v{QA}")
    e("s_nop 0")
    bf16round(g, QA)
    e(f"v_rcp_f32 v{QA}, v{QA}")
    e("s_nop 0")
    e(f"v_mul_f32 v{QB}, -v{SA}, v{QA}")
    assert QA % 2 == 0
    T0 = LT + 16
    for i in range(9):
        t = T0 + 8*(i % 2)
        for c in range(4):
            x = XR + 4*i + c
            e(f"v_lshlrev_b32 v{t+2*c}, 16, v{x}")
            e(f"v_and_b32 v{t+2*c+1}, 0xffff0000, v{x}")
        for c in range(4):
            e(f"v_pk_fma_f32 v[{t+2*c}:{t+2*c+1}], v[{t+2*c}:{t+2*c+1}], v[{QA}:{QA+1}], v[{QA}:{QA+1}] op_sel:[0,0,1] op_sel_hi:[1,0,1]")
        x = 16 + 4*i
        for c in range(4): e(f"v_cvt_pk_bf16_f32 v{x+c}, v{t+2*c}, v{t+2*c+1}")
        e(f"ds_write2st64_b64 v{LT+2}, v[{x}:{x+1}], v[{x+2}:{x+3}] offset0:{16*i} offset1:{16*i+1}")
        if i == 1 and by:
            hook([f"v_lshlrev_b32 v{LT+36}, 16, v{LT+32}", f"v_and_b32 v{LT+37}, 0xffff0000, v{LT+32}", f"v_lshlrev_b32 v{LT+38}, 16, v{LT+33}",
                  f"v_and_b32 v{LT+39}, 0xffff0000, v{LT+33}", f"v_lshlrev_b32 v{V_BO}, 4, v{V_TID}", f"v_add_u32 v{V_BO}, {TBL - 4096}, v{V_BO}",
                  f"ds_write_b128 v{V_BO}, v[{LT+36}:{LT+39}]"])
        elif i == 1:
            e(f"v_lshlrev_b32 v{SA}, 16, v{BR}")
            e(f"v_and_b32 v{SB}, 0xffff0000, v{BR}")
            e(f"v_lshlrev_b32 v{V_BO}, 3, v{V_TID}")
            e(f"v_add_u32 v{V_BO}, {TBL}, v{V_BO}")
            e(f"ds_write_b64 v{V_BO}, v[{SA}:{SB}]")
        pd(i)
    if o.get("pst"): g.stamp()
    e(f"s_lshl_b32 s{S_T}, s{S_QW}, 6")
    e(f"s_add_u32 s{S_T}, s{S_T}, {TBL}")
    e(f"v_lshl_add_u32 v{V_BO}, v{LT+8}, 4, s{S_T}")
    pd(9)
    e(f"s_cbranch_vccnz {name}_pe")
    e("s_waitcnt vmcnt(0)")
    e(f"s_branch {name}_pe")
    g.L += ool
    g.lab(f"{name}_pe")
    for u in range(ny): g.done.add(("u", 0, u))
    fb = o.get("xr", [[8]])[0][0]
    g.wait(vm=[("u", 0, u) for u in range((fb + 1)//2)], alllds=True)
    g.stamp()
    e("s_barrier")
    return ny + len(pl)

def bias_read(n):
    return [(f"ds_read_b128 v[{BI}:{BI+3}], v{V_BO} offset:{256*n}", "bias")]

def setup2():
    L = []; e = L.append
    for u in range(9): e(f"s_mul_i32 s{S_ROW[u]}, s{S_COL+u}, 576")
    e(f"v_and_b32 v{V_ST}, 31, v{V_LANE}")
    e(f"v_lshlrev_b32 v{V_ST}, 4, v{V_ST}")
    e(f"v_lshrrev_b32 v{V_T}, 5, v{V_LANE}")
    e(f"v_lshl_add_u32 v{V_ST}, v{V_T}, 15, v{V_ST}")
    e(f"s_and_b32 s{S_PB}, s2, 3")
    e(f"s_mul_i32 s{S_PB}, s{S_PB}, 36")
    e(f"s_add_u32 s{S_PB}, s{S_PB}, s{S_QW}")
    e(f"s_lshl_b32 s{S_PB}, s{S_PB}, 6")
    e(f"s_add_u32 s{S_PB}, s{S_PB}, s{S_RB}")
    e(f"s_lshl1_add_u32 s{S_PB}, s{S_PB}, s{S_MH}")
    e(f"s_lshl_b32 s{S_PB}, s{S_PB}, 9")
    e(f"s_lshl_b32 s{S_N}, s{S_W}, 11")
    e(f"v_lshl_add_u32 v{V_HW}, v{V_LANE}, 4, s{S_N}")
    e(f"v_min_u32 v{V_L0}, 1, v{V_TID}")
    e(f"v_lshlrev_b32 v{V_L0}, 31, v{V_L0}")
    e(f"s_mul_i32 s{S_FLG}, s{S_RB}, 36")
    e(f"s_add_u32 s{S_FLG}, s{S_FLG}, s{S_QW}")
    e(f"s_lshl1_add_u32 s{S_FLG}, s{S_FLG}, s{S_MH}")
    e(f"s_lshl3_add_u32 s{S_FLG}, s{S_FLG}, s{S_J}")
    e(f"s_lshl2_add_u32 s{S_FLG}, s{S_FLG}, {FLAG_OFF}")
    return L

def atoms(L):
    R = []; open_ = False
    for x in L:
        t = x[0] if isinstance(x, tuple) else x
        if isinstance(t, str) and (t.startswith("s_cselect") or t.startswith("s_addc") or (open_ and t.startswith("s_mov"))): R[-1].append(x)
        else:
            R.append([x]); open_ = isinstance(t, str) and t.startswith("s_cmp")
    return R

def setup3(o):
    L = []; e = L.append
    e(f"s_lshr_b32 s{S_T2}, s2, 3")
    e(f"s_and_b32 s{S_ONES}, s2, 7")
    e(f"s_mul_i32 s{S_INFO}, s{S_T2}, 576")
    e(f"s_add_u32 s{S_INFO}, s{S_INFO}, s{S_ONES}")
    e(f"s_lshl_b32 s{S_INFO}, s{S_INFO}, 7")
    e(f"s_lshl_b32 s{S_N}, s{S_ONES}, 11")
    e(f"s_add_u32 s{S_N}, s{S_N}, s{S_T2}")
    e(f"s_lshl_b32 s{S_N}, s{S_N}, 7")
    e(f"s_and_b32 s{S_T2}, s2, 31")
    e(f"s_mul_i32 s{S_T}, s{S_T2}, {64*1152}")
    e(f"s_lshl_b32 s{S_T2}, s{S_T2}, 7")
    e(f"s_brev_b32 s{S_ONES}, 1")
    e(f"s_cmp_ge_u32 s2, 224")
    e(f"s_cselect_b32 s{S_KM2}, 1024, s{S_ONES}")
    e(f"s_cselect_b32 s{S_ONES}, {8 << 18}, s{S_ONES}")
    e(f"s_add_u32 s{S_T}, s{S_T}, s{S_KM2}")
    e(f"s_add_u32 s{S_T2}, s{S_T2}, s{S_ONES}")
    e(f"s_sub_u32 s{S_KM2}, s{S_T}, s{S_INFO}")
    e(f"s_sub_u32 s{S_T2}, s{S_T2}, s{S_N}")
    e(f"s_lshl_b32 s{S_KM}, s{S_W}, 10")
    e(f"s_mul_i32 s{S_T}, s{S_KM}, 9")
    e(f"s_add_u32 s{S_T}, s{S_T}, s{S_INFO}")
    e(f"s_add_u32 s{S_KM}, s{S_KM}, {KSTG}")
    e(f"s_mov_b32 s{S_KVO}, {KVT_OFF}")
    e(f"v_lshrrev_b32 v{V_T}, 3, v{V_LANE}")
    e(f"v_and_b32 v{V_T2}, 7, v{V_LANE}")
    e(f"v_mul_u32_u24 v{V_K1}, 1152, v{V_T}")
    e(f"v_xor_b32 v{V_KG}, s{S_W}, v{V_T2}")
    e(f"v_lshl_add_u32 v{V_K1}, v{V_KG}, 4, v{V_K1}")
    e(f"v_add_u32 v{V_K1}, s{S_T}, v{V_K1}")
    e(f"v_and_b32 v{V_T}, 3, v{V_T}")
    e(f"v_lshl_add_u32 v{V_KG}, v{V_KG}, 2, v{V_T}")
    e(f"v_lshl_add_u32 v{V_KG}, v{V_T2}, 8, v{V_KG}")
    e(f"v_bfe_i32 v{V_KFT}, v{V_LANE}, 5, 1")
    e(f"v_and_b32 v{V_KH}, 2048, v{V_KFT}")
    e(f"v_add_u32 v{V_KH}, {(KSTG - 1024) // 4}, v{V_KH}")
    e(f"v_add_lshl_u32 v{V_KG}, v{V_KG}, v{V_KH}, 2")
    e(f"v_add_u32 v{V_KH}, -1, v{V_T2}")
    e(f"v_xor_b32 v{V_KH}, v{V_KH}, v{V_T2}")
    e(f"v_and_b32 v{V_KH}, 7, v{V_KH}")
    e(f"v_lshlrev_b32 v{V_KH}, 4, v{V_KH}")
    e(f"v_xor_b32 v{V_KH}, v{V_KH}, v{V_KG}")
    e(f"v_lshl_add_u32 v{V_T}, s{S_W}, 2, v{V_T}")
    e(f"v_and_b32 v{V_KST}, s{S_T2}, v{V_KFT}")
    e(f"v_lshl_add_u32 v{V_KST}, v{V_T}, 13, v{V_KST}")
    e(f"v_lshl_add_u32 v{V_T2}, v{V_T2}, 4, s{S_N}")
    e(f"v_add_u32 v{V_KST}, v{V_KST}, v{V_T2}")
    e(f"v_and_b32 v{V_KT}, s{S_KM2}, v{V_KFT}")
    e(f"s_sub_u32 s{S_N}, s{S_INFO}, 3456")
    e(f"v_lshl_add_u32 v{V_T2}, v{V_T}, 2, s{S_N}")
    e(f"v_add_u32 v{V_KT}, v{V_KT}, v{V_T2}")
    e(f"v_lshl_add_u32 v{V_T}, v{V_T}, 1, -1")
    e(f"v_bfe_i32 v{V_T2}, v{V_LANE}, 2, 1")
    e(f"v_and_b32 v{V_T}, v{V_T}, v{V_T2}")
    e(f"v_and_b32 v{V_T2}, 7, v{V_LANE}")
    e(f"v_add_u32 v{V_T}, v{V_T}, v{V_T2}")
    e(f"v_mul_u32_u24 v{V_T}, 1152, v{V_T}")
    e(f"v_add_u32 v{V_KT}, v{V_KT}, v{V_T}")
    if "st" not in o: e(f"s_lshl3_add_u32 s{S_N}, s{S_PART}, s{S_W}")
    if "st" not in o: e(f"s_mul_i32 s{S_N}, s{S_N}, 11")
    if "st" not in o: e(f"v_add_u32 v{V_KFT}, s{S_N}, v{V_LANE}")
    if "st" not in o: e(f"v_min_u32 v{V_KFT}, 255, v{V_KFT}")
    if "st" not in o: e(f"s_lshl_b32 s{S_N}, s{S_G}, 8")
    if "st" not in o: e(f"v_add_lshl_u32 v{V_KFT}, v{V_KFT}, s{S_N}, 7")
    e(f"s_mov_b32 s{S_INFO}, 0")
    for p_, job in enumerate(JOBS):
        a0 = job[0][0]; l0 = job[0][1] - job[0][0]
        a1 = job[1][0] - l0 if len(job) > 1 else a0
        n = sum(b - a for a, b in job)
        e(f"s_cmp_eq_u32 s{S_PART}, {p_}")
        e(f"s_cselect_b32 s{S_INFO}, {a0 | (l0 << 8) | (a1 << 16) | (n << 24)}, s{S_INFO}")
    e(f"s_bfe_u32 s{S_N}, s{S_INFO}, {8 | (8 << 16)}")
    e(f"s_bfe_u32 s{S_T2}, s{S_INFO}, {16 | (8 << 16)}")
    e(f"s_and_b32 s{S_ONES}, s{S_INFO}, 255")
    e(f"s_add_u32 s{S_IB}, s{S_W}, 8")
    e(f"s_cmp_lt_u32 s{S_W}, s{S_N}")
    e(f"s_cselect_b32 s{S_TA}, s{S_ONES}, s{S_T2}")
    e(f"s_cmp_lt_u32 s{S_IB}, s{S_N}")
    e(f"s_cselect_b32 s{S_TB}, s{S_ONES}, s{S_T2}")
    e(f"s_add_u32 s{S_TA}, s{S_TA}, s{S_W}")
    e(f"s_add_u32 s{S_TB}, s{S_TB}, s{S_IB}")
    e(f"s_lshr_b32 s{S_INFO}, s{S_INFO}, 24")
    e(f"s_cmp_lt_u32 s{S_IB}, s{S_INFO}")
    e(f"s_cselect_b32 s{S_BM}, 0xffff0000, 0")
    e(f"s_cselect_b32 s{S_TB}, s{S_TB}, s{S_TA}")
    e(f"s_lshr_b32 s{S_N}, s{S_G}, 3")
    e(f"s_add_u32 s{S_N}, s{S_N}, 36")
    e(f"s_sub_u32 s{S_T2}, s{S_N}, s{S_TB}")
    e(f"s_sub_u32 s{S_N}, s{S_N}, s{S_TA}")
    for r in (S_N, S_T2):
        e(f"s_mul_i32 s{S_ONES}, s{r}, 57")
        e(f"s_lshr_b32 s{S_ONES}, s{S_ONES}, 9")
        e(f"s_mul_i32 s{S_ONES}, s{S_ONES}, 9")
        e(f"s_sub_u32 s{r}, s{r}, s{S_ONES}")
        e(f"s_cmp_lt_u32 s{r}, 4")
        e(f"s_cselect_b32 s{S_ONES}, 11, 0")
        e(f"s_lshl1_add_u32 s{r}, s{r}, s{S_ONES}")
    e(f"s_min_u32 s{S_NX}, s{S_N}, s{S_T2}")
    e(f"s_max_u32 s{S_NY}, s{S_N}, s{S_T2}")
    e(f"s_cmp_gt_u32 s{S_N}, s{S_T2}")
    e(f"s_cselect_b32 s{S_ONES}, s{S_TB}, s{S_TA}")
    e(f"s_cselect_b32 s{S_TB}, s{S_TA}, s{S_TB}")
    e(f"s_mov_b32 s{S_TA}, s{S_ONES}")
    e(f"s_cselect_b32 s{S_IA}, s{S_IB}, s{S_W}")
    e(f"s_cselect_b32 s{S_IB}, s{S_W}, s{S_IB}")
    if o.get("la2", 0) == 1:
        assert [j[0][0] > 0 for j in JOBS] == [False, True, True]
        for p_, job in enumerate(JOBS):
            e(f"s_cmp_eq_u32 s{S_PART}, {p_}")
            e(f"s_cselect_b32 s{S_N}, {job[0][1] - job[0][0]}, s{S_N}")
        e(f"s_min_u32 s{S_T2}, s{S_PART}, 1")
        for r in (S_IA, S_IB):
            e(f"s_cmp_ge_u32 s{r}, s{S_N}"); e(f"s_addc_u32 s{r}, s{r}, s{S_T2}")
    e(f"v_mul_u32_u24 v{V_T}, 1152, v{V_LANE}")
    e(f"s_mul_i32 s{S_N}, s{S_TA}, {64*1152}")
    e(f"s_lshl4_add_u32 s{S_N}, s{S_G}, s{S_N}")
    e(f"s_cmp_eq_u32 s{S_PART}, 3")
    e(f"s_cselect_b32 s{S_T2}, 0x80000000, 0")
    e(f"s_or_b32 s{S_N}, s{S_N}, s{S_T2}")
    e(f"v_add_u32 v{V_XA}, s{S_N}, v{V_T}")
    e(f"s_mul_i32 s{S_N}, s{S_TB}, {64*1152}")
    e(f"s_lshl4_add_u32 s{S_N}, s{S_G}, s{S_N}")
    e(f"s_andn2_b32 s{S_T2}, 0x80000000, s{S_BM}")
    e(f"s_or_b32 s{S_N}, s{S_N}, s{S_T2}")
    e(f"v_add_u32 v{V_XB}, s{S_N}, v{V_T}")
    return atoms(L)

def stage_items(sr, off, tag, touch=None):
    ld = lambda v: (f"buffer_load_dwordx4 v{v}, s[{sr}:{sr+3}], 0 offen lds", tag)
    tc = lambda v: [f"buffer_load_dword v{V_DUM}, v{v}, s[{touch}:{touch+3}], 0 offen"] if touch else []
    R = [[f"s_add_u32 m0, s{S_KM}, {off}", "s_nop 0", ld(V_K1)]]
    if touch: R.append(tc(V_K1))
    R.append([f"s_add_u32 m0, s{S_KM2}, {off}", "s_mov_b64 exec, 0xffff", ld(V_K2), "s_mov_b64 exec, -1"])
    if off: R[0] += [f"s_sub_u32 s{S_N}, s{S_MH}, 1", f"v_lshl_or_b32 v{V_K2}, s{S_N}, 31, v{V_K2}"]
    return R

def cold_items(m=15):
    R = stage_items(S_K, 0, "kst", S_V if m & 2 else None) if m & 1 else []
    if m & 4: R.append([f"s_add_u32 s{S_N}, s{S_COL}, s{S_ROW[8]}",
              f"buffer_load_dword v{V_DUM}, v{V_O2}, s[{S_W2}:{S_W2+3}], s{S_N} offen"])
    if m & 8: R.append([f"s_lshl_b32 s{S_N}, s{S_G}, 15",
              f"buffer_load_dword v{V_DUM}, v{V_KFT}, s[{S_KF}:{S_KF+3}], s{S_N} offen"])
    return R

def touches(o, A=S_N, B=S_T2):
    m = o.get("em", 7)
    L = [f"s_lshr_b32 s{A}, s2, 3", f"s_lshl3_add_u32 s{A}, s{A}, s{S_W}", f"s_mul_i32 s{A}, s{A}, 72",
         f"s_and_b32 s{B}, s2, 7", f"s_add_u32 s{A}, s{A}, s{B}", f"s_lshl_b32 s{A}, s{A}, 7",
         f"v_bfe_u32 v{V_T}, v{V_LANE}, 1, 3", f"v_lshl_add_u32 v{V_T}, v{V_T}, 3, v{V_T}", f"v_and_b32 v{V_KFT}, 1, v{V_LANE}",
         f"v_add_lshl_u32 v{V_T}, v{V_T}, v{V_KFT}, 7",
         f"s_lshl3_add_u32 s{B}, s{S_PART}, s{S_W}", f"s_mul_i32 s{B}, s{B}, 11",
         f"v_add_u32 v{V_KFT}, s{B}, v{V_LANE}", f"v_min_u32 v{V_KFT}, 255, v{V_KFT}", f"v_lshlrev_b32 v{V_KFT}, 7, v{V_KFT}",
         f"s_lshl_b32 s{B}, s{S_G}, 15",
         "s_mov_b64 exec, 0xffff"]
    if m & 1: L.append(f"buffer_load_dword v{V_DUM}, v{V_T}, s[{S_K}:{S_K+3}], s{A} offen")
    if m & 2: L.append(f"buffer_load_dword v{V_DUM}, v{V_T}, s[{S_V}:{S_V+3}], s{A} offen")
    L.append("s_mov_b64 exec, 0x7ff")
    if m & 4: L.append(f"buffer_load_dword v{V_DUM}, v{V_KFT}, s[{S_KF}:{S_KF+3}], s{B} offen")
    L.append("s_mov_b64 exec, -1")
    return L

def stouch_setup():
    return [f"s_lshr_b32 s{S_KO}, s2, 3", f"s_lshl3_add_u32 s{S_KO}, s{S_KO}, s{S_W}", f"s_mul_i32 s{S_KO}, s{S_KO}, 72",
            f"s_and_b32 s{S_FO}, s2, 7", f"s_add_u32 s{S_KO}, s{S_KO}, s{S_FO}", f"s_lshl_b32 s{S_KO}, s{S_KO}, 7",
            f"s_lshl3_add_u32 s{S_FO}, s{S_PART}, s{S_W}", f"s_mul_i32 s{S_FO}, s{S_FO}, 11", f"s_min_u32 s{S_FO}, s{S_FO}, 245",
            f"s_lshl_b32 s{S_DUM}, s{S_G}, 8", f"s_add_u32 s{S_FO}, s{S_FO}, s{S_DUM}", f"s_lshl_b32 s{S_FO}, s{S_FO}, 7"]

def stouch(o, k):
    ld = lambda sr, so, off: f"s_buffer_load_dword s{S_DUM}, s[{sr}:{sr+3}], s{so} offset:{off}"
    if k == "F": return [ld(S_KF, S_FO, 128*i) for i in range(11)]
    return [ld(sr, S_KO, 1152*r + 128*h) for r in range(8) for h in o.get("sth", (0, 1)) for sr in (S_K, S_V)]

def place(items, j0, j1, work):
    for i, x in enumerate(items): work.setdefault(4*(j0 + (i*(j1 - j0)) // len(items)) - 2, []).insert(0, x)

def early_items(o):
    m = o.get("em", 7)
    K = sum(stage_items(S_K, 0, None), []) if m & 1 else []
    if o.get("vt", 1):
        V = [f"s_lshr_b32 s{S_N}, s2, 3", f"s_lshl3_add_u32 s{S_N}, s{S_N}, s{S_W}", f"s_mul_i32 s{S_N}, s{S_N}, 72",
             f"s_and_b32 s{S_T2}, s2, 7", f"s_add_u32 s{S_N}, s{S_N}, s{S_T2}", f"s_lshl_b32 s{S_N}, s{S_N}, 7",
             f"v_bfe_u32 v{V_T}, v{V_LANE}, 1, 3", f"v_mul_u32_u24 v{V_T}, 9, v{V_T}", f"v_and_b32 v{V_T2}, 1, v{V_LANE}",
             f"v_add_lshl_u32 v{V_T}, v{V_T}, v{V_T2}, 7", "s_mov_b64 exec, 0xffff",
             f"buffer_load_dword v{V_DUM}, v{V_T}, s[{S_V}:{S_V+3}], s{S_N} offen", "s_mov_b64 exec, -1"]
    else:
        V = [f"buffer_load_dword v{V_DUM}, v{V_K1}, s[{S_V}:{S_V+3}], 0 offen", "s_mov_b64 exec, 0x1fff",
             f"buffer_load_dword v{V_DUM}, v{V_K2}, s[{S_V}:{S_V+3}], 0 offen", "s_mov_b64 exec, -1"]
    F = sum(cold_items(8), [])
    return [K, V if m & 2 else [], F if m & 4 else []]

def kv_compute(g):
    def halo():
        g.wait(vm=["sh", "tK"])
        g.e("s_mov_b32 vcc_lo, 0xfefefefe"); g.e("s_mov_b32 vcc_hi, vcc_lo")
        g.e(f"v_cndmask_b32 v{KR}, v{V_HG}, v{KR}, vcc")
        for r in (1, 2): g.e(f"v_cndmask_b32_dpp v{KR+r}, v{V_HG}, v{KR+r}, vcc row_shl:{r} row_mask:0xf bank_mask:0xf")
    L = [halo]; e = L.append
    up = lambda d, r, h: f"v_and_b32 v{d}, 0xffff0000, v{r}" if h else f"v_lshlrev_b32 v{d}, 16, v{r}"
    if g.o.get("kf", 1):
        U = [52, 53, 54, 55]
        for h in range(2):
            for j in range(4): e(up(KC + j, SH + 2*h + j//2, j % 2))
            e(up(U[0], KR, h))
            for i in range(11):
                if i < 10: e(up(U[(i + 1) % 2], KR + i + 1, h))
                for j in range(4):
                    t = i - 3 + j
                    if 0 <= t < 8: e(f"{'v_mul_f32' if j == 3 else 'v_fmac_f32'} v{KA+t}, v{KC+j}, v{U[i % 2]}")
            for t0 in (0, 4):
                for t in range(t0, t0 + 4): e(up(U[t % 4], VR + t, h))
                for t in range(t0, t0 + 4): e(f"v_mul_f32 v{KA+t}, v{KA+t}, v{U[t % 4]}")
            O = KA if h else PKR + 4
            for t in range(4): e(f"v_cvt_pk_bf16_f32 v{O+t}, v{KA+2*t}, v{KA+2*t+1}")
        return L
    for h in range(2):
        for j in range(4):
            w = SH + 2*h + j//2
            if h == 0: e(f"v_lshrrev_b32 v{KC+j}, 16, v{w}" if j % 2 else f"v_and_b32 v{KC+j}, 0xffff, v{w}")
            else: e(f"v_and_b32 v{KC+j}, 0xffff0000, v{w}" if j % 2 else f"v_lshlrev_b32 v{KC+j}, 16, v{w}")
        for j in (3, 2, 1, 0):
            for t in range(8):
                if j == 3: e(f"v_dot2_f32_bf16 v{KA+t}, v{KR+t+3-j}, v{KC+j}, 0")
                else: e(f"v_dot2c_f32_bf16 v{KA+t}, v{KR+t+3-j}, v{KC+j}")
        for t0 in (0, 4):
            for t in range(t0, t0 + 4):
                e(f"v_and_b32 v{KC+t%4}, 0xffff0000, v{VR+t}" if h else f"v_lshlrev_b32 v{KC+t%4}, 16, v{VR+t}")
            for t in range(t0, t0 + 4): e(f"v_mul_f32 v{KA+t}, v{KA+t}, v{KC+t%4}")
        O = KA if h else PKR + 4
        for t in range(4): e(f"v_cvt_pk_bf16_f32 v{O+t}, v{KA+2*t}, v{KA+2*t+1}")
    return L

def kv_store():
    return [[(f"buffer_store_dwordx4 v[{PKR+4}:{PKR+7}], v{V_KST}, s[{S_WS}:{S_WS+3}], s{S_KVO} offen sc1", "kv0"),
             f"s_add_u32 s{S_KVO}, s{S_KVO}, 4096"],
            [(f"buffer_store_dwordx4 v[{KA}:{KA+3}], v{V_KST}, s[{S_WS}:{S_WS+3}], s{S_KVO} offen sc1", "kv1")]]

def setup4(o):
    L = []; e = L.append
    A, B = S_GC, S_GC + 1
    e(f"v_bfrev_b32 v{V_OOB}, 1")
    assert not o.get("xe")
    e(f"s_lshr_b32 s{A}, s{S_G}, 3")
    e(f"s_cmp_eq_u32 s{A}, 8")
    e(f"s_cselect_b32 s{A}, s{S_W}, s{A}")
    e(f"s_cselect_b32 s{B}, 0, s{S_W}")
    e(f"s_lshl_b32 s{A}, s{A}, 7")
    e(f"s_add_u32 s{A}, s{A}, {RDY_OFF}")
    e(f"v_and_b32 v{V_L4}, 31, v{V_LANE}")
    e(f"s_cmp_eq_u32 s{B}, 0")
    e(f"s_cselect_b32 s{A}, s{A}, 0x80000000")
    e(f"s_cselect_b32 s{S_ONES}, s{S_TOK}, 0")
    e(f"v_lshl_add_u32 v{V_L4}, v{V_L4}, 2, s{A}")
    e(f"s_mul_i32 s{S_H2}, s{S_W}, {WSTR}")
    e(f"s_lshl3_add_u32 s{S_CH}, s{S_G}, s{S_W}")
    e(f"s_lshl_b32 s{S_CH}, s{S_CH}, 12")
    e(f"v_and_b32 v{V_CL}, v{V_OOB}, v{V_XA}")
    e(f"v_lshl_or_b32 v{V_CL}, v{V_LANE}, 4, v{V_CL}")
    e(f"v_lshl_add_u32 v{V_YW}, v{V_LANE}, 2, s{S_H2}")
    e(f"s_add_u32 s{A}, s{S_H2}, 4608")
    e(f"v_lshl_add_u32 v{V_KV}, v{V_LANE}, 1, s{A}")
    e(f"v_lshrrev_b32 v{V_T2}, 4, v{V_LANE}")
    e(f"v_bfe_u32 v{V_AF}, v{V_LANE}, 2, 2")
    e(f"v_lshl_add_u32 v{V_T2}, v{V_T2}, 3, v{V_AF}")
    e(f"v_and_b32 v{V_BF}, 3, v{V_LANE}")
    e(f"v_add_u32 v{V_AF}, v{V_T2}, v{V_BF}")
    e(f"s_add_u32 s{A}, s{S_H2}, {256 - 24}")
    e(f"v_lshl_add_u32 v{V_AF}, v{V_AF}, 3, s{A}")
    e(f"v_lshlrev_b32 v{V_BF}, 2, v{V_BF}")
    e(f"v_sub_u32 v{V_BF}, v{V_BF}, v{V_T2}")
    e(f"s_add_u32 s{A}, s{S_H2}, {4608 + 24 - 32}")
    e(f"v_lshl_add_u32 v{V_BF}, v{V_BF}, 3, s{A}")
    e(f"s_cmp_eq_u32 s{S_MH}, 0")
    e(f"s_cselect_b64 s[{S_DR}:{S_DR+1}], s[{S_DR}:{S_DR+1}], s[{S_DR+2}:{S_DR+3}]")
    e(f"s_lshl_b32 s{A}, s{S_QW}, 4")
    e(f"s_lshr_b64 s[{S_DR}:{S_DR+1}], s[{S_DR}:{S_DR+1}], s{A}")
    e(f"s_and_b32 s{S_D}, s{S_DR}, 0xffff")
    e(f"s_lshl_b32 s{A}, s{S_TA}, 10")
    e(f"v_add_u32 v{V_RA}, s{A}, v{V_CL}")
    e(f"v_ashrrev_i32 v{V_SA}, 1, v{V_RA}")
    e(f"s_lshl_b32 s{A}, s{S_TB}, 10")
    e(f"s_andn2_b32 s{B}, 0x80000000, s{S_BM}")
    e(f"s_or_b32 s{A}, s{A}, s{B}")
    e(f"v_lshl_add_u32 v{V_RB}, v{V_LANE}, 4, s{A}")
    e(f"v_ashrrev_i32 v{V_SB}, 1, v{V_RB}")
    e(f"s_sub_u32 s{A}, s{S_TB}, s{S_TA}")
    e(f"v_bfe_u32 v{V_P}, v{V_LANE}, 4, 1")
    e(f"v_mul_i32_i24 v{V_FA}, s{A}, v{V_P}")
    e(f"v_add_u32 v{V_FA}, s{S_TA}, v{V_FA}")
    if o.get("xe", 0):
        e(f"v_mul_u32_u24 v{V_RDY}, 57, v{V_FA}")
        e(f"v_lshrrev_b32 v{V_RDY}, 9, v{V_RDY}")
        e(f"v_mul_u32_u24 v{V_RDY}, 9, v{V_RDY}")
        e(f"v_sub_u32 v{V_RDY}, v{V_FA}, v{V_RDY}")
        e(f"v_cmp_gt_u32 vcc, s{S_ONES}, v{V_LANE}")
    e(f"v_mul_u32_u24 v{V_FA}, {9*256}, v{V_FA}")
    if o.get("xe", 0):
        e(f"v_lshl_add_u32 v{V_RDY}, v{V_RDY}, 8, v{V_FA}")
        e(f"v_and_b32 v{V_T2}, 7, v{V_LANE}")
        e(f"v_lshl_add_u32 v{V_RDY}, v{V_T2}, 2, v{V_RDY}")
        e(f"v_add_u32 v{V_RDY}, {FLAG_OFF}, v{V_RDY}")
        e(f"v_cndmask_b32 v{V_L4}, v{V_RDY}, v{V_L4}, vcc")
        e(f"s_mov_b32 s{S_ONES}, s{S_TOK}")
    e(f"s_lshr_b32 s{S_FB}, s{S_G}, 3")
    for r, N in ((A, S_NX), (B, S_NY)):
        e(f"s_lshr_b32 s{r}, s{N}, 1")
        e(f"s_cmp_lt_u32 s{S_FB}, s{r}")
        e(f"s_cselect_b32 s{S_SO}, 9, 0")
        e(f"s_sub_u32 s{r}, s{S_SO}, s{r}")
    e(f"s_sub_u32 s{B}, s{B}, s{A}")
    e(f"s_xor_b32 s{S_SO}, s{S_NX}, s{S_NY}")
    e(f"v_and_b32 v{V_T2}, s{S_SO}, v{V_P}")
    e(f"v_mul_i32_i24 v{V_P}, s{B}, v{V_P}")
    e(f"v_add_u32 v{V_P}, s{A}, v{V_P}")
    e(f"v_xor_b32 v{V_T2}, s{S_NX}, v{V_T2}")
    e(f"v_xnor_b32 v{V_T2}, v{V_LANE}, v{V_T2}")
    e(f"v_bfe_i32 v{V_T2}, v{V_T2}, 0, 1")
    e(f"v_and_b32 v{V_P}, v{V_T2}, v{V_P}")
    e(f"v_add_u32 v{V_P}, s{S_FB}, v{V_P}")
    e(f"v_lshl_add_u32 v{V_FA}, v{V_P}, 8, v{V_FA}")
    e(f"v_and_b32 v{V_T2}, 7, v{V_LANE}")
    e(f"v_lshl_add_u32 v{V_FA}, v{V_T2}, 2, v{V_FA}")
    e(f"s_mov_b32 s{S_FB}, {FLAG_OFF}")
    if o.get("la2", 0):
        for V, T, I in ((V_XO, S_TA, S_IA), (V_XS, S_TB, S_IB)):
            e(f"s_min_u32 s{A}, s{T}, 1")
            e(f"s_mul_i32 s{A}, s{A}, 3")
            e(f"s_lshl4_add_u32 s{B}, s{I}, {SPB + 4 - 4352}")
            e(f"v_subrev_u32 v{V_T2}, s{A}, v{V_LANE}")
            e(f"v_lshl_add_u32 v{V}, v{V_LANE}, 2, s{B}")
            e(f"v_ashrrev_i32 v{V_T2}, 31, v{V_T2}")
            e(f"v_and_b32 v{V}, v{V}, v{V_T2}")
            e(f"v_add_u32 v{V}, 4352, v{V}")
    e(f"s_lshl_b32 s{S_GO}, s{S_G}, 15")
    e(f"s_mov_b32 s{S_SO}, {STAT_OFF}")
    e(f"s_add_u32 s{S_XO}, s{S_GO}, {XT_OFF}")
    for j in range(NP - 1, 0, -1): e(f"s_add_u32 s{S_PO[j]}, s{S_GO}, {j*72*32768}")
    for c in range(4):
        e(f"s_lshl_b32 s{S_BV+2*c}, s{S_B2+c}, 16")
        e(f"s_and_b32 s{S_BV+2*c+1}, s{S_B2+c}, 0xffff0000")
    return [[f"s_movk_i32 s{S_LO}, 0x3f80", f"s_lshl_b32 s{S_HI}, s{S_LO}, 16"]] + atoms(L)

def conv_loads(g):
    fl = g.o.get("hotfl", "")
    R = []
    for c in (3, 2, 1, 0):
        R.append([f"buffer_load_dwordx4 v{V_CL}, s[{S_WS}:{S_WS+3}], s{S_T} offen offset:{1024*c} {fl} lds"])
    R[0] = [f"s_add_u32 m0, s{S_H2}, 4608", f"s_add_u32 s{S_T}, s{S_CH}, {KVT_OFF}"] + R[0]
    R[3].append(f"s_add_u32 m0, s{S_H2}, 256")
    for c in range(4):
        R.append([f"buffer_load_dwordx4 v{V_CL}, s[{S_KF}:{S_KF+3}], s{S_CH} offen offset:{1024*c} lds"])
    R[7].append(f"s_mov_b32 m0, s{S_H2}")
    z = f"buffer_load_dword v{V_OOB}, s[{S_KF}:{S_KF+3}], 0 offen lds"
    R.append([z, f"s_add_u32 m0, s{S_H2}, 4352"])
    R.append([(z, "cl")])
    return R

def tile_list(g, LD, v, vs):
    fl = g.o.get("ldflags", "sc1")
    L = [f"buffer_load_dwordx2 v[{LD+32}:{LD+33}], v{vs}, s[{S_WS}:{S_WS+3}], s{S_SO} offen {g.o.get('sfl', '')}"]
    X = XA if LD == LDA else XB
    if not g.o.get("xe", 0): L.append(f"buffer_load_dwordx4 v[{X}:{X+3}], v{v}, s[{S_WS}:{S_WS+3}], s{S_XO} offen {fl}")
    for j in range(NP): L.append(f"buffer_load_dwordx4 v[{LD+4*j}:{LD+4*j+3}], v{v}, s[{S_WS}:{S_WS+3}], s{S_PO[j]} offen {fl}")
    for k in g.o.get("drop", []): L[k] = "s_nop 0"
    return L

def tile_loads(g, LD, v, vs):
    for x in tile_list(g, LD, v, vs): g.e(x)

def poll(g, tag=None):
    g.e(f"buffer_load_dword v{V_P}, v{V_FA}, s[{S_WS}:{S_WS+3}], s{S_FB} offen sc1", tag)

def conv_job(g, job, name, ev):
    o = g.o
    tiles = []; allt = []
    for a, b in job:
        if a > 0: allt.append(a - 1)
        for t in range(a, b):
            tiles.append(t); allt.append(t)
    ai = {t: CACC + 4*i for i, t in enumerate(allt)}
    tmax = max(allt)
    M = []
    ch = o.get("ch", 1); NB = o.get("nb", 6)
    for n0 in range(tmax, -1, -2*ch):
        for n1 in (n0, n0 - 1):
            ns = [n for n in range(n1, n1 - 2*ch, -2) if n >= 0]
            ts = sorted(t for t in allt if (t - n1) % 2 == 0)
            if o.get("trev"): ts.reverse()
            for t in ts:
                for n in ns:
                    if t >= n: M.append((t, n, (t - n)//2))
    order = []
    for (t, n, be) in M:
        for f in (("B", n), ("A", be)):
            if f not in order: order.append(f)
    bslot = {}
    nb = 0
    for f in order:
        if f[0] == "B":
            bslot[f[1]] = BB + 4*(nb % NB); nb += 1
    lastuse = {}
    for i, (t, n, be) in enumerate(M): lastuse[n] = i
    bl = [f[1] for f in order if f[0] == "B"]
    def reads(f):
        if f[0] == "A":
            r = AF + 4*f[1]; off = 256*f[1]
            return [f"ds_read_b64_tr_b16 v[{r}:{r+1}], v{V_AF} offset:{off}",
                    f"ds_read_b64_tr_b16 v[{r+2}:{r+3}], v{V_AF} offset:{off+32}"]
        r = bslot[f[1]]; off = 128*f[1] + 32
        return [f"ds_read_b64_tr_b16 v[{r}:{r+1}], v{V_BF} offset:{off}",
                f"ds_read_b64_tr_b16 v[{r+2}:{r+3}], v{V_BF} offset:{off-32}"]
    issued = 0
    fu = {}
    for i, (t, n, be) in enumerate(M):
        fu.setdefault(("B", n), i); fu.setdefault(("A", be), i)
    MAXF = o.get("ahead", 6)
    started = set()
    waited = -1; kvr = 0
    for i, (t, n, be) in enumerate(M):
        need = max(order.index(("B", n)), order.index(("A", be)))
        nr = 0
        while issued < 2*len(order) and issued // 2 <= max(need, waited) + MAXF:
            f = order[issued // 2]
            if "la" in o and i and not (nr < 1 or fu[f] <= i or (nr < 2 and fu[f] <= i + o["la"])): break
            if f[0] == "B":
                k = bl.index(f[1])
                if k >= NB and lastuse[bl[k - NB]] >= i:
                    break
            if not o.get("nocr"): g.e(reads(f)[issued % 2])
            issued += 1; nr += 1
        assert issued // 2 > need
        for k in (i, i - len(M)):
            for f in ev.get(k, []): f(name)
        if need > waited:
            g.e(f"s_waitcnt lgkmcnt({min(15, issued - 2 - 2*need)})")
            waited = need
        a = ai[t]; bs = bslot[n]; af = AF + 4*be
        c = f"v[{a}:{a+3}]" if t in started else "0"
        started.add(t)
        if not o.get("nocm"): g.e(f"v_mfma_f32_16x16x32_bf16 v[{a}:{a+3}], v[{bs}:{bs+3}], v[{af}:{af+3}], {c}")
        if (o.get("la2", 0) or o.get("e2", 2) & 1) and need == len(order) - 1 and not kvr:
            kvr = 1
            for k, t_ in enumerate(tiles): g.e(f"ds_read_u16 v{LDB+16+k}, v{V_KV} offset:{128*t_}")
    if o.get("stamps"): g.stamp()
    if o.get("la2", 0):
        fin = sorted(allt, key=lambda t: max(i for i, m_ in enumerate(M) if m_[0] == t))
        g.e("s_waitcnt lgkmcnt(0)")
        g.e(f"s_bfm_b64 s[{S_GX}:{S_GX+1}], 1, 63")
        ft = [t for t in fin if t in tiles]
        sh = lambda t, z: g.e(f"v_add_f32 v{ai[t]+z}, v{ai[t]+z+1}, v{ai[t]+z} wave_shr:1 row_mask:0xf bank_mask:0xf bound_ctrl:0")
        for t in ft: g.e(f"v_dot2c_f32_bf16 v{ai[t]}, s{S_D}, v{LDB+16+tiles.index(t)}")
        for t in fin: sh(t, 2)
        for t in fin: sh(t, 1)
        g.e(f"s_mov_b64 exec, s[{S_GX}:{S_GX+1}]")
        for t in fin:
            if t + 1 in tiles: g.e(f"ds_write_b128 v{V_YW}, v[{ai[t]}:{ai[t]+3}] offset:{SPB + 16*tiles.index(t + 1) - 252}")
        g.e("s_mov_b64 exec, -1")
        for k, t in enumerate(ft):
            sh(t, 0)
            if k % 2: g.e(f"ds_write2st64_b32 v{V_YW}, v{ai[ft[k-1]]}, v{ai[t]} offset0:{tiles.index(ft[k-1])} offset1:{tiles.index(t)}")
        if len(ft) % 2: g.e(f"ds_write_b32 v{V_YW}, v{ai[ft[-1]]} offset:{256*tiles.index(ft[-1])}")
        return
    KVV = 50
    KX = LDB + 16 if kvr else AF + 40
    for i, t in enumerate(tiles):
        if not kvr: g.e(f"ds_read_u16 v{AF+40+i}, v{V_KV} offset:{128*t}")
    if kvr:
        fin = sorted(tiles, key=lambda t: max(i for i, m_ in enumerate(M) if m_[0] == t))
        g.e("s_waitcnt lgkmcnt(0)")
        for t in fin: g.e(f"v_dot2c_f32_bf16 v{ai[t]}, s{S_D}, v{KX+tiles.index(t)}")
    eo = o.get("eo", 1)
    if not eo: ev["end"][0](name)
    else:
        for f in ev.get("e0", []): f(name)
        if not kvr: g.e("s_nop 2")
    H2 = AF; H1 = AF + 12; Y = AF + 24
    idx = {t: i for i, t in enumerate(allt)}
    m = "row_mask:0xf bank_mask:0xf"
    def level(dst, src, zc, ts):
        for t in ts:
            if t in tiles and t > 0:
                g.e(f"v_add_f32 v{dst+idx[t]}, v{src(t-1)}, v{ai[t]+zc} wave_ror:1 row_mask:0x1 bank_mask:0x1")
        for t in ts:
            bc = "" if (t in tiles and t > 0) else " bound_ctrl:0"
            g.e(f"v_add_f32 v{dst+idx[t]}, v{src(t)}, v{ai[t]+zc} wave_shr:1 {m}{bc}")
    level(H2, lambda t: ai[t] + 3, 2, allt)
    if not kvr:
        g.e("s_waitcnt lgkmcnt(0)")
        for i, t in enumerate(tiles): g.e(f"v_dot2c_f32_bf16 v{ai[t]}, s{S_D}, v{AF+40+i}")
    level(H1, lambda t: H2 + idx[t], 1, allt)
    level(Y, lambda t: H1 + idx[t], 0, tiles)
    for i, t in enumerate(tiles):
        if not o.get("e2", 2) & 2 or (i == len(tiles) - 1 and i % 2 == 0): g.e(f"ds_write_b32 v{V_YW}, v{Y+idx[t]} offset:{256*i}")
        elif i % 2: g.e(f"ds_write2st64_b32 v{V_YW}, v{Y+idx[tiles[i-1]]}, v{Y+idx[t]} offset0:{i-1} offset1:{i}")

def fin_l(LD, X):
    L = []; e = L.append
    s = LD + 16; xn = s + 8; st = LD + 32
    for c in range(4):
        e(f"v_lshlrev_b32 v{xn+2*c}, 16, v{X+c}")
        e(f"v_and_b32 v{xn+2*c+1}, 0xffff0000, v{X+c}")
    for c in range(8): e(f"v_add_f32 v{s+c}, s{S_BV+c}, v{xn+c}")
    for c in range(8): e(f"v_fma_f32 v{xn+c}, v{xn+c}, v{st}, v{st+1}")
    for j in range(NP):
        for c in range(4):
            e(f"v_dot2c_f32_bf16 v{s+2*c}, s{S_LO}, v{LD+4*j+c}")
            e(f"v_dot2c_f32_bf16 v{s+2*c+1}, s{S_HI}, v{LD+4*j+c}")
    return L

def fin_1(g, LD, X, R, waits):
    for x in fin_l(LD, X): g.e(x)
    g.e("s_nop 2")

def fin_2(g, X, R):
    e = g.e
    s = (LDA if X == XA else LDB) + 16; xn = s + 8; y = R + 16
    if g.o.get("la2", 0):
        for c in range(4): e(f"v_pk_add_f32 v[{y+2*c}:{y+2*c+1}], v[{y+2*c}:{y+2*c+1}], v[{R+2*c}:{R+2*c+1}]")
    for c in range(4):
        e(f"v_pk_fma_f32 v[{s+2*c}:{s+2*c+1}], v[{xn+2*c}:{xn+2*c+1}], v[{y+2*c}:{y+2*c+1}], v[{s+2*c}:{s+2*c+1}]")
    for c in range(4):
        e(f"v_cvt_pk_bf16_f32 v{X+c}, v{s+2*c}, v{s+2*c+1}")

def fin_a(g, X, si, R):
    e = g.e
    s = R; y = R + 16
    e(f"s_lshl_b32 s{S_T2}, s{si}, 8")
    e(f"v_lshl_add_u32 v{V_T}, v{V_LANE}, 2, s{S_T2}")
    for c in range(4):
        e(f"ds_read2st64_b32 v[{y+2*c}:{y+2*c+1}], v{V_T} offset0:{68*c} offset1:{68*c + 34}")
    if g.o.get("la2", 0):
        for c in range(4):
            e(f"ds_read2st64_b32 v[{R+2*c}:{R+2*c+1}], v{V_XO if X == XA else V_XS} offset0:{68*c} offset1:{68*c + 34}")

def fin_b(g, LD, X, R, waits):
    e = g.e
    s = R; xn = R + 8; y = R + 16; st = LD + 32
    if waits: e(f"s_waitcnt vmcnt({NP})")
    for c in range(4):
        e(f"v_lshlrev_b32 v{R+8+2*c}, 16, v{X+c}")
        e(f"v_and_b32 v{R+8+2*c+1}, 0xffff0000, v{X+c}")
    for c in range(8): e(f"v_add_f32 v{s+c}, s{S_BV+c}, v{R+8+c}")
    for c in range(4):
        e(f"v_pk_fma_f32 v[{xn+2*c}:{xn+2*c+1}], v[{xn+2*c}:{xn+2*c+1}], v[{st}:{st+1}], v[{st}:{st+1}] op_sel:[0,0,1] op_sel_hi:[1,0,1]")
    e("s_waitcnt lgkmcnt(0)")
    for c in range(4):
        e(f"v_pk_fma_f32 v[{s+2*c}:{s+2*c+1}], v[{xn+2*c}:{xn+2*c+1}], v[{y+2*c}:{y+2*c+1}], v[{s+2*c}:{s+2*c+1}]")
    for j in range(NP):
        if waits: e(f"s_waitcnt vmcnt({NP - 1 - j})")
        for c in range(4):
            e(f"v_dot2c_f32_bf16 v{s+2*c}, s{S_LO}, v{LD+4*j+c}")
            e(f"v_dot2c_f32_bf16 v{s+2*c+1}, s{S_HI}, v{LD+4*j+c}")
    e("s_nop 2")
    for c in range(4):
        e(f"v_cvt_pk_bf16_f32 v{X+c}, v{s+2*c}, v{s+2*c+1}")

def tail(g, name):
    o = g.o; e = g.e
    out = lambda X, vx: e(f"buffer_store_dwordx4 v[{X}:{X+3}], v{vx}, s[{S_OUT}:{S_OUT+3}], 0 offen {o.get('ofl', '')}")
    TX = tile_list(g, LDA, V_RA, V_SA); TY = tile_list(g, LDB, V_RB, V_SB)
    e(f"s_cmp_eq_u32 s{S_PART}, 3")
    e(f"s_cbranch_scc1 {name}_none")
    g.stamp()
    g.wait(vm=["cl", "p0"])
    g.stamp()
    e(f"v_cmp_ne_u32 vcc, s{S_TOK}, v{V_P}")
    e(f"s_cmp_eq_u32 s{S_BM}, 0")
    e(f"s_cselect_b64 s[{S_YM}:{S_YM+1}], 1, -1")
    e(f"s_cbranch_vccnz {name}_fs")
    g.lab(f"{name}_fb")
    g.ool += [f"{name}_fs:", f"  s_mov_b32 s{S_N}, {SPIN}", f"{name}_fl:",
              f"  buffer_load_dword v{V_P}, v{V_FA}, s[{S_WS}:{S_WS+3}], s{S_FB} offen sc1", f"  s_sub_u32 s{S_N}, s{S_N}, 1", "  s_waitcnt vmcnt(0)",
              f"  s_cbranch_scc1 {name}_fb", f"  v_cmp_ne_u32 vcc, s{S_TOK}, v{V_P}", f"  s_cbranch_vccnz {name}_fl", f"  s_branch {name}_fb"]
    def masked(M, x):
        def f(nm):
            e(f"s_mov_b64 exec, s[{M}:{M+1}]")
            e(x)
            e("s_mov_b64 exec, -1")
        return f
    def chk(LD):
        e(f"v_bitop3_b32 v{V_P}, v{LD}, v{LD+4}, v{LD+8} bitop3:0x80")
        e(f"v_bitop3_b32 v{V_P}, v{V_P}, v{LD+12}, 1 bitop3:0x80")
        e(f"v_cmp_eq_u32 vcc, 0, v{V_P}")
    mid = o.get("mid", 0)
    def chx(nm):
        chk(LDA)
        e(f"s_or_b32 s{S_PX}, vcc_lo, vcc_hi")
        e(f"s_cbranch_scc0 {nm}")
        for x in TX[2:]: e(x)
        g.lab(nm)
    def evend(nm):
        g.stamp()
        e("s_waitcnt vmcnt(0)")
        if mid:
            e(f"s_mov_b32 s{S_GX}, s{S_PX}")
            e(f"s_cmp_eq_u32 s{S_PX}, 0")
            e(f"s_cbranch_scc1 {nm}_kx")
        chx(f"{nm}_kx")
        e(f"s_cmp_eq_u32 s{S_BM}, 0")
        e(f"s_cbranch_scc1 {nm}_ky")
        chk(LDB)
        e(f"s_or_b32 s{S_PY}, vcc_lo, vcc_hi")
        e(f"s_cbranch_scc0 {nm}_ky")
        for x in TY[2:]: e(x)
        g.lab(f"{nm}_ky")
        g.stamp()
    ev = {"end": [evend]}
    at = lambda k, f: ev.setdefault(k, []).append(f)
    xs = o.get("xs", [2, 4, 6, 8, 10, 12] if mid else [2, 6, -64, -62, -60, -58])
    xh = o.get("xh")
    cnt = [0]
    def half(hi, x):
        def f(nm):
            cnt[0] += 1
            e(f"s_cmp_eq_u32 s{S_MH}, {hi}")
            e(f"s_cbranch_scc0 {nm}_h{cnt[0]}")
            for y in x: e(y, "lx")
            if not hi:
                for y in x: g.vm.pop()
            g.lab(f"{nm}_h{cnt[0]}")
        return f
    for k, x in list(zip(xs, TX))[:2 if xh else 6]: at(k, lambda nm, x=x: e(x, "lx"))
    if xh:
        assert xh[0] < xh[1]
        at(xh[0], half(0, TX[2:])); at(xh[1], half(1, TX[2:]))
    for k, x in zip(o.get("ys", [1, 3, -56, -54, -52, -50] if mid else [10, 14, -56, -54, -52, -50]), TY): at(k, masked(S_YM, x))
    if mid:
        def evmid(nm):
            assert "lx" in g.vm
            g.wait(vm=["lx"])
            chx(f"{nm}_km")
        at(mid, evmid)
        F = fin_l(LDA, XA); fn = o.get("fn", 2)
        if o.get("tv") == 1: F = [x.replace("v_dot2c_f32_bf16", "v_add_f32") for x in F]
        if o.get("tv") == 2: F = F[:24]
        if o.get("tv") == 3: F = F[24:]
        if o.get("tv") == 4: F = []
        for i in range(0, len(F), fn):
            assert mid + 1 + i // fn < 0
            at(mid + 1 + i // fn, lambda nm, i=i: [e(x) for x in F[i:i+fn]])
    if o.get("stamps"): at(32, lambda nm: g.stamp())
    e(f"s_cmp_eq_u32 s{S_PART}, 1")
    e(f"s_cbranch_scc1 {name}_j1")
    e(f"s_cmp_eq_u32 s{S_PART}, 2")
    e(f"s_cbranch_scc1 {name}_j2")
    vm0 = list(g.vm)
    for p in range(3):
        if p: g.lab(f"{name}_j{p}")
        g.vm = list(vm0)
        conv_job(g, JOBS[p], f"{name}_c{p}", ev)
        if p < 2: e(f"s_branch {name}_cfin")
    g.lab(f"{name}_cfin")
    if o.get("eo", 1): evend(name)
    RA, RB = CACC, CACC + 24
    if mid:
        e(f"s_mov_b32 s{S_XM}, 0")
        e(f"s_cmp_eq_u32 s{S_GX}, 0")
        e(f"s_cbranch_scc1 {name}_q1")
    e(f"s_cmp_ge_u32 s{S_W}, {o.get('ps', 4)}")
    e(f"s_cselect_b32 s{S_T}, 1, 0")
    e(f"s_or_b32 s{S_XM}, s{S_PX}, s{S_T}")
    e(f"s_cbranch_scc1 {name}_q1")
    fin_1(g, LDA, XA, RA, False)
    g.lab(f"{name}_q1")
    e(f"s_cmp_eq_u32 s{S_BM}, 0")
    e(f"s_cselect_b32 s{S_T}, 1, s{S_PY}")
    e(f"s_cmp_lg_u32 s{S_T}, 0")
    e(f"s_cbranch_scc1 {name}_q2")
    fin_1(g, LDB, XB, RB, False)
    g.lab(f"{name}_q2")
    e("s_waitcnt lgkmcnt(0)")
    g.stamp()
    e("s_barrier")
    g.stamp()
    def last(nm, P, LD, T):
        if P:
            e(f"s_cmp_eq_u32 s{P}, 0")
            e(f"s_cbranch_scc1 {nm}2")
        e(f"s_mov_b32 s{S_N}, {SPIN}")
        g.lab(f"{nm}lp")
        e("s_waitcnt vmcnt(0)")
        chk(LD)
        e(f"s_sub_u32 s{S_N}, s{S_N}, 1")
        e(f"s_cbranch_scc1 {nm}2")
        e(f"s_cbranch_vccz {nm}2")
        for x in T[2:]: e(x)
        e(f"s_branch {nm}lp")
        g.lab(f"{nm}2")
    fin_a(g, XA, S_IA, RA)
    e(f"s_cmp_lg_u32 s{S_BM}, 0")
    e(f"s_cbranch_scc1 {name}_two")
    e(f"s_cmp_eq_u32 s{S_XM}, 0")
    e(f"s_cbranch_scc1 {name}_a3")
    last(f"{name}_a", S_PX, LDA, TX)
    fin_1(g, LDA, XA, RA, False)
    g.lab(f"{name}_a3")
    g.stamp()
    e("s_waitcnt lgkmcnt(0)")
    fin_2(g, XA, RA)
    out(XA, V_XA)
    finish(g)
    g.lab(f"{name}_two")
    fin_a(g, XB, S_IB, RB)
    e(f"s_cmp_lg_u32 s{S_XM}, 0")
    e(f"s_cbranch_scc1 {name}_xslow")
    g.lab(f"{name}_xback")
    e("s_waitcnt lgkmcnt(0)")
    fin_2(g, XA, RA)
    e(f"s_cmp_eq_u32 s{S_PY}, 0")
    e(f"s_cbranch_scc1 {name}_b3")
    last(f"{name}_b", None, LDB, TY)
    fin_1(g, LDB, XB, RB, False)
    g.lab(f"{name}_b3")
    g.stamp()
    out(XA, V_XA)
    fin_2(g, XB, RB)
    out(XB, V_XB)
    finish(g)
    g.lab(f"{name}_xslow")
    last(f"{name}_x", S_PX, LDA, TX)
    fin_1(g, LDA, XA, RA, False)
    e(f"s_branch {name}_xback")
    g.lab(f"{name}_none")
    finish(g)

def gen(name, opt):
    g = G(opt); o = opt
    e = g.e
    g.NF = 5
    SM[0] = o.get("sm", 1)
    g.ool = []; g.grp = "Z"
    g.L.append(f".globl {name}\n.p2align 8\n.type {name},@function\n{name}:")
    npro = prologue(g, name)
    nm = name + "_Z"; g.nm = nm
    full = not o.get("core")
    sc = Sched(g, npro)
    sc.claim(range(11, 20), "x"); sc.claim([10], "tbl")
    for s_ in range(9): sc.hold[s_] = 10
    work = {}; inb = {}; pre = {}; post = {}; bw = {}; bv = {}; act = {}; aft = {}; hooks = {}
    add = lambda d, k, L: d.setdefault(k, []).extend(L)
    bj = lambda r: (r - 6) // 2
    xr = o.get("xr", [[8, 2], [12, 5], [16, 8], [18, 9]])
    h0 = o.get("h0", 152); hd = o.get("hd", 4); hl = o.get("hl", 2); hs = o.get("hs", 176)
    bars = set(18*N + b_ for N in range(18) for b_ in (o.get("bs", [0, 8]) if N < 17 or not full else [4, 12]))
    bars -= set(range(xr[0][0])) | set(range(h0, h0 + 4*hd + hl*hd))
    bars |= set(x[0] for x in xr) | set(o.get("xb2", [22])) | set(h0 + hd*i for i in range(5 + hl)) | set([hs]) | set(o.get("hb2", [184]))
    bars -= set(o.get("nb", []))
    bars = sorted(bars)
    nextb = lambda r, n=1: [b_ for b_ in bars if b_ > r][n - 1]
    def scatter(L, j0, nbu, lead=0):
        pos = [(j, q) for j in range(j0, j0 + nbu) for q in range(4) if seq(j)[q]]
        for k, x in enumerate(L): add(inb, pos[(k * len(pos)) // len(L)], [x])
    for x in bias_read(0): g.put(x)
    ns = 0
    for r_, c_ in enumerate(o.get("ls", [1, 1, 2])):
        add(inb, (-1, r_), [sread(0, k) for k in SO[ns:ns + c_]]); ns += c_
    scatter([sread(0, k) for k in SO[ns:]], 0, o.get("xn", 6))
    pc = 0
    for r_, c_ in xr:
        add(bw, r_, [("s", k) for k in range(4*c_)])
        add(act, r_, [lambda a_=pc, c_=c_: sc.free(range(11 + a_, 11 + c_))]); pc = c_
    stgl = o.get("stgl", 134)
    for n in range(9):
        if n < 8: add(inb, (9*n + 1, 0) if n == 7 and stgl == 134 else (9*n + o.get("bslot", 4), 2), bias_read(n + 1))
        if n: deal(gelu_list(o, n - 1), 9*n, o.get("gn", 9) if n < 8 else min(9, bj(h0 + 3*hd) - 72), work)
    if not o.get("sup", 1): spread(atoms(setup2()) + (setup3(o) if full else []), o.get("su0", 6), o.get("su1", 34), work)
    add(pre, o.get("stl", xr[1][0]), [[f"s_lshl_b32 s{S_YT}, s{S_RB}, 9", f"s_add_u32 s{S_YT}, s{S_YT}, {STAT_OFF}",
        f"buffer_store_dwordx2 v[{V_QA}:{V_QA+1}], v{V_SAD}, s[{S_WS}:{S_WS+3}], s{S_YT} offen sc1"]])
    if full:
        for k_, (r_, cs) in enumerate(o.get("xtl", [[26, [0, 1, 2]], [54, [3, 4, 5]], [90, [6, 7, 8]]])):
            assert all(bj(r_) + 2 < 18*(c_ // 2) + 16 for c_ in cs)
            def xt(k_=k_, cs=cs):
                e(f"s_cmp_eq_u32 s{S_W}, s{S_J}")
                e(f"s_cbranch_scc1 {nm}_xt{k_}")
                g.lab(f"{nm}_xt{k_}b")
                L = [f"s_and_b32 s{S_YT}, s2, 8", f"s_lshl_b32 s{S_YT}, s{S_YT}, 2", f"v_lshrrev_b32 v{V_T2}, 3, v{V_TID}", f"v_xor_b32 v{V_T2}, s{S_YT}, v{V_T2}",
                     f"v_lshl_or_b32 v{V_T2}, v{V_TID}, 11, v{V_T2}", f"v_and_b32 v{V_T2}, 0x3fff, v{V_T2}", f"v_lshlrev_b32 v{V_T2}, 4, v{V_T2}",
                     f"s_lshl_b32 s{S_YT}, s{S_RB}, 10", f"s_add_u32 s{S_YT}, s{S_YT}, {XT_OFF + 262144*cs[0]}"]
                for c_ in cs:
                    L.append(f"buffer_store_dwordx4 v[{XR+4*c_}:{XR+4*c_+3}], v{V_T2}, s[{S_WS}:{S_WS+3}], s{S_YT} offen sc1")
                    if c_ != cs[-1]: L.append(f"s_add_u32 s{S_YT}, s{S_YT}, 262144")
                g.ool += [f"{nm}_xt{k_}:"] + ["  " + x for x in L] + [f"  s_branch {nm}_xt{k_}b"]
            add(pre, r_, [[xt]])
    add(work, 60, [f"s_lshl_b32 s{S_N}, s{S_MH}, 13", f"v_lshl_add_u32 v{V_FR}, v{V_LANE}, 4, s{S_N}"])
    if full:
        if o.get("cm", 4): add(post, o.get("rcold", 134), cold_items(o.get("cm", 4)))
        def second():
            e("s_cmp_ge_u32 s2, 224")
            e(f"s_cbranch_scc1 {nm}_u2")
            g.lab(f"{nm}_u2b")
            L = [f"s_add_u32 m0, s{S_KM}, 8192", f"v_add_u32 v{V_T2}, s{S_KM2}, v{V_K1}",
                 f"buffer_load_dwordx4 v{V_T2}, s[{S_K}:{S_K+3}], 0 offen lds",
                 f"s_add_u32 m0, s{S_KM}, {KSZ + 8192}", "s_nop 0",
                 f"buffer_load_dwordx4 v{V_T2}, s[{S_V}:{S_V+3}], 0 offen lds"]
            g.ool += [f"{nm}_u2:"] + ["  " + x for x in L] + [f"  s_branch {nm}_u2b"]
        add(pre, stgl, [[second, f"s_mov_b32 m0, s{S_KM}", (f"buffer_load_dwordx4 v{V_K1}, s[{S_K}:{S_K+3}], 0 offen lds", "kst")],
                        [f"s_add_u32 m0, s{S_KM}, {KSZ}", (f"buffer_load_dwordx4 v{V_K1}, s[{S_V}:{S_V+3}], 0 offen lds", "stg")]])
        add(bw, stgl, ["bias"])
        sc.hold[9] = 9; sc.hold[11] = 9; sc.hold[12] = 9
        add(act, stgl, [lambda: sc.claim([9, 11, 12], "stg")])
        for r_, k_ in o.get("tl", [[36, "K"], [72, "V"], [156, "F"]]):
            sr, v, d, m_ = {"K": (S_K, V_KT, V_HG, 0x37373737), "V": (S_V, V_KT, V_DUM, 0x30303030), "F": (S_KF, V_KFT, V_DUM, 0)}[k_]
            add(pre, r_, [([f"s_mov_b32 exec_lo, {m_}", "s_mov_b32 exec_hi, exec_lo"] if m_ else ["s_mov_b64 exec, 0x7ff"]) +
                          [(f"buffer_load_dword v{d}, v{v}, s[{sr}:{sr+3}], 0 offen", "t" + k_), "s_mov_b64 exec, -1"]])
    wt = o.get("wt", [])
    wn = -(-5184 // (128 * len(wt))) if wt else 0
    if wt: add(work, o.get("wts", 40), [f"s_and_b32 s{S_WT}, s{S_RB}, 15", f"s_lshl3_add_u32 s{S_WT}, s{S_WT}, s{S_W}", f"s_mul_i32 s{S_WT}, s{S_WT}, {wn*128}",
            f"s_mul_i32 s{S_N}, s{S_J}, {576*1152}", f"s_add_u32 s{S_WT}, s{S_WT}, s{S_N}", f"v_lshlrev_b32 v{V_T}, 7, v{V_LANE}"])
    for r_ in wt:
        it = [f"s_bfm_b64 exec, {wn}, 0", f"buffer_load_dword v{V_DUM}, v{V_T}, s[{S_W2}:{S_W2+3}], s{S_WT} offen", "s_mov_b64 exec, -1",
              f"s_add_u32 s{S_WT}, s{S_WT}, {128*wn*128}"]
        if r_ in pre and o.get("wtm", 1): pre[r_][0] = pre[r_][0][:-1] + it
        else: add(pre, r_, [it])
    for p in range(4):
        r_ = h0 + hd*p
        add(act, r_, [lambda p=p: sc.claim([2*p, 2*p + 1], "h")])
        add(aft, r_, [(f"ds_write_b128 v{V_HW}, v[{HP+8*p+4*t}:{HP+8*p+4*t+3}] offset:{16384*p + 1024*t}", ("hw", p)) for t in range(2)])
        add(bw, r_ + hd, [("hw", p)])
        ks = [k for k in SO if k // 8 == p]
        ha = o.get("ha", 0)
        add(aft, r_ + hd, [sread(1, k) for k in ks[:ha]])
        scatter([sread(1, k) for k in ks[ha:]], bj(r_ + hd) + 1, o.get("hn", hd // 2))
        add(bw, r_ + hd + hl*hd, [("s", 36 + k) for k in ks])
        add(act, r_ + hd + hl*hd, [lambda p=p: sc.free([2*p, 2*p + 1])])
    js = bj(hs)
    deal(gelu_list(o, 8), 81, js - 81, work)
    rc = min(b_ for b_ in bars if b_ >= 168 and b_ > h0 + 3*hd)
    assert bj(rc) < js
    add(act, rc, [lambda: sc.claim([8], "h")])
    add(aft, rc, [f"s_lshl_b32 s{S_N}, s{S_MH}, 12", f"s_add_u32 s{S_N}, s{S_N}, 65536", f"v_lshl_add_u32 v{V_HW}, v{V_LANE}, 4, s{S_N}",
                  f"s_lshr_b32 s{S_N}, s{S_QW}, 1", f"s_lshl_b32 s{S_N}, s{S_N}, 8", f"s_and_b32 s{S_T2}, s{S_QW}, 1", f"s_add_u32 s{S_N}, s{S_N}, s{S_T2}",
                  f"v_lshl_add_u32 v{V_T}, s{S_N}, 3, v{V_HW}"])
    add(work, 4*(js - 1) + 1, [(f"ds_write2st64_b64 v{V_T}, v[{HP+32}:{HP+33}], v[{HP+34}:{HP+35}] offset0:0 offset1:2", ("hw", 4))])
    add(bw, hs, [("hw", 4)])
    ks = [k for k in SO if k >= 32]
    scatter([sread(1, k) for k in ks], js + 1, 1)
    add(bw, nextb(hs, o.get("hl4", 2)), [("s", 36 + k) for k in ks])
    add(act, nextb(hs, o.get("hl4", 2)), [lambda: sc.free([8])])
    if full:
        rv = o.get("rv", h0); rk = o.get("rk", h0 + 2*hd)
        assert rv >= h0 and rk >= h0 + 2*hd
        add(bv, min(rv, rk), ["stg"])
        scatter([(f"ds_read_b32 v{VR+r}, v{V_KG} offset:{KSZ + 1024 + 128*r}", "vr") for r in range(8)], bj(rv) + 1, o.get("vn", 1))
        scatter([(f"ds_read_b32 v{KR+r}, v{V_KH} offset:{640 + 128*r}", "kr") for r in range(3)] +
                [(f"ds_read_b32 v{KR+3+r}, v{V_KG} offset:{1024 + 128*r}", "kr") for r in range(8)], bj(rk) + 1, o.get("kn", 2))
        add(bw, nextb(rv, o.get("vl", 1)), ["vr"]); add(act, nextb(rv, o.get("vl", 1)), [lambda: sc.free([11, 12])])
        add(bw, nextb(rk, o.get("kl", 2)), ["kr"]); add(act, nextb(rk, o.get("kl", 2)), [lambda: sc.free([9, 10])])
        add(pre, o.get("rx", h0 + hd), [[(f"buffer_load_dword v{V_TOK}, off, s[{S_DBG}:{S_DBG+3}], 0 sc1", "tok")]])
        add(pre, h0 + 3*hd, [[f"v_lshrrev_b32 v{V_T2}, 9, v{V_KST}", f"v_and_b32 v{V_T2}, -16, v{V_T2}",
            (f"buffer_load_dwordx4 v[{SH}:{SH+3}], v{V_T2}, s[{S_SH}:{S_SH+3}], 0 offen", "sh")]])
    told = set()
    def flags():
        for m in range(5):
            if ("p", m) in g.bdone and m not in told:
                told.add(m)
                for x in flag_store(g, m): g.put(x)
        if "kv1" in g.bdone and "rdy" not in told:
            told.add("rdy")
            e(f"s_mul_i32 s{S_N}, s2, 257")
            e(f"s_bfe_u32 s{S_N}, s{S_N}, {3 | (8 << 16)}")
            e(f"s_lshl2_add_u32 s{S_N}, s{S_N}, {RDY_OFF}")
            e(f"buffer_store_dword v{V_TOK}, v{V_L0}, s[{S_WS}:{S_WS+3}], s{S_N} offen sc1")
    def tok():
        g.wait(vm=["tok"])
        e(f"v_readfirstlane_b32 s{S_TOK}, v{V_TOK}")
        e(f"s_cmp_eq_u32 s{S_TOK}, 0")
        e(f"s_cbranch_scc1 {nm}_tok_slow")
        g.lab(f"{nm}_tok_back")
        e(f"s_andn2_b32 s{S_PF}, s{S_FLG}, 0xe0")
        e(f"s_xor_b32 s{S_PF}, s{S_PF}, 4")
    def rdy():
        assert "rdy" in told
        g.wait(vm=["rl"])
        e(f"v_cmp_ne_u32 vcc, s{S_ONES}, v{V_RDY}")
        e(f"s_cbranch_vccnz {nm}_rdy_slow")
        g.lab(f"{nm}_rdy_back")
    ss = o.get("ss", 8)
    kvb = o.get("kvb", 1)
    def kvok(): assert "vr" in g.done and "kr" in g.done and ("hw", 4) in g.done
    if full:
        spread([kvok] + kv_compute(g), o.get("kc0", 4*js + 2), o.get("kc1", 362 + 36*kvb), work)
        spread(setup4(o), o.get("s40", 324 + 36*4 + 10), o.get("s40", 324 + 36*4 + 10) + 28, work)
        xe = o.get("xe", 0); rl = o.get("rl", 278 if xe else 310)
        if xe: add(pre, rl, [[f"buffer_load_dwordx4 v[{X}:{X+3}], v{v}, s[{S_WS}:{S_WS+3}], s{S_XO} offen sc1" for X, v in ((XA, V_RA), (XB, V_RB))]])
        add(work, 4*o.get("rlj", 128 if xe else 146), [(f"buffer_load_dword v{V_RDY}, v{V_L4}, s[{S_WS}:{S_WS+3}], 0 offen sc1", "rl")])
        add(work, 4*o.get("p0j", 155) + 1, [lambda: poll(g, "p0")])
        c0 = 606 + o.get("c0", 0)
        add(act, 310, [lambda: sc.claim(range(9), "conv")])
        spread(conv_loads(g), c0, c0 + o.get("cls", 12), work)
        hooks.update({o.get("rt", 180): tok, rl: rdy})
    for n in range(8):
        b = 324 + 36*(n + 1)
        if n >= 4: add(work, b + 2, tswap(g, n))
        spread(cvt(g, n), b + 3, b + 8, work)
        tq = o.get("tq", 12) if n < 7 else 7
        if n >= 3: add(work, b + tq, [([] if o.get("nopf") else [fcheck(g, n + 1)]) + tload(g, n + 1)])
        if 2 <= n < 7 and not o.get("nopf"): add(work, b + max(tq, o.get("fq", 20)), [fload(g, n + 2)])
        s_ = o.get("ss7", 10) if full and n == 7 else ss
        add(work, b + s_, pstore(g, n))
        if full:
            if n == kvb:
                for k_, x in enumerate(kv_store()): add(work, b + s_ + o.get("kvo", [0, 0])[k_], x)
            add(work, b + s_, [flags])
    stream(g, sc, bars, work, hooks, pre, post, inb, bw, bv, act, aft)
    if o.get("sp"): e("s_setprio 0")
    for x in tswap(g, 8): g.put(x)
    e("s_nop 5")
    for x in cvt(g, 8) + pstore(g, 8): g.put(x)
    if not full: finish(g)
    else:
        assert told == set(range(5)) | {"rdy"}, told
        tail(g, nm)
        g.lab(f"{nm}_rdy_slow")
        e(f"s_mov_b32 s{S_N}, {SPIN}")
        g.lab(f"{nm}_rdy_lp")
        e(f"buffer_load_dword v{V_RDY}, v{V_L4}, s[{S_WS}:{S_WS+3}], 0 offen sc1")
        e(f"s_sub_u32 s{S_N}, s{S_N}, 1")
        e("s_waitcnt vmcnt(0)")
        e(f"s_cbranch_scc1 {nm}_rdy_back")
        e(f"v_cmp_ne_u32 vcc, s{S_ONES}, v{V_RDY}")
        e(f"s_cbranch_vccnz {nm}_rdy_lp")
        e(f"s_branch {nm}_rdy_back")
        g.lab(f"{nm}_tok_slow")
        e(f"s_mov_b32 s{S_N}, {SPIN}")
        g.lab(f"{nm}_tok_lp")
        e(f"buffer_load_dword v{V_TOK}, off, s[{S_DBG}:{S_DBG+3}], 0 sc1")
        e(f"s_sub_u32 s{S_N}, s{S_N}, 1")
        e("s_waitcnt vmcnt(0)")
        e(f"s_cbranch_scc1 {nm}_tok_back")
        e(f"v_readfirstlane_b32 s{S_TOK}, v{V_TOK}")
        e(f"s_cmp_eq_u32 s{S_TOK}, 0")
        e(f"s_cbranch_scc1 {nm}_tok_lp")
        e(f"s_branch {nm}_tok_back")
    g.L += g.ool
    g.lab(f"{name}_mk")
    e(f"s_mov_b32 s{S_T}, {EPO_OFF}")
    e(f"s_load_dword s{S_TOK}, s[{S_WS}:{S_WS+1}], s{S_T}")
    e(f"v_min_u32 v{V_T}, 1, v{V_LANE}")
    e(f"v_lshlrev_b32 v{V_T}, 31, v{V_T}")
    e("s_waitcnt lgkmcnt(0)")
    e(f"s_add_u32 s{S_TOK}, s{S_TOK}, 1")
    e(f"s_addc_u32 s{S_TOK}, s{S_TOK}, 0")
    e(f"v_mov_b32 v{V_L0}, s{S_TOK}")
    e(f"buffer_store_dword v{V_L0}, v{V_T}, s[{S_DBG}:{S_DBG+3}], 0 offen sc1")
    e(f"buffer_store_dword v{V_L0}, v{V_T}, s[{S_WS}:{S_WS+3}], s{S_T} offen sc1")
    e(f"s_branch {name}_mkb")
    g.lab(f"{name}_exit")
    e("s_endpgm")
    desc = f""".amdhsa_kernel {name}
  .amdhsa_next_free_vgpr 256
  .amdhsa_next_free_sgpr {102 if o.get('stamps') else 100}
  .amdhsa_accum_offset 256
  .amdhsa_group_segment_fixed_size 0
  .amdhsa_kernarg_size 112
  .amdhsa_user_sgpr_count 2
  .amdhsa_user_sgpr_kernarg_segment_ptr 1
  .amdhsa_system_sgpr_workgroup_id_x 1
.end_amdhsa_kernel"""
    return "\n".join(g.L) + "\n", desc
```

```python
import sys, json
import k15
KN = "parallel_sum__ssm_conv_h3__dense_activation_gelu__prompt_kernel"
def full(opt):
    b1, d1 = k15.gen(KN, opt)
    return (f"; @launch grid=(256,1,1) block=(512,1,1) lds={k15.LDS_SZ}\n"
            '.amdgcn_target "amdgcn-amd-amdhsa--gfx950"\n.text\n' + b1 +
            '.section .rodata,"a"\n.p2align 6\n' + d1 + "\n")
if __name__ == "__main__":
    opt = json.loads(sys.argv[2]) if len(sys.argv) > 2 else {}
    open(sys.argv[1], "w").write(full(opt))
```

```python
import struct, math
def f32bits(x): return struct.unpack("<I", struct.pack("<f", x))[0]

LDS_SZ = 163840
XL = 11 * 8192
KSTG = 73728
KSZ = 16384
TBL = 84128
STAMP_OFF = 32 << 20
KVT_OFF = 20 << 20
STAT_OFF = 24 << 20
FLAG_OFF = 25 << 20
RDY_OFF = 26 << 20
EPO_OFF = 27 << 20
XT_OFF = 28 << 20
JOBS = [[(8, 12), (28, 32)], [(12, 16), (24, 28)], [(16, 24)]]
WSTR = 8704
SPIN = 1 << 15
SPB = 3584

V_TID = 0; V_LANE = 1
V_TR = [2, 3, 4]
V_FR = 5; V_HW = 6; V_C1 = 7
V_O1 = 8; V_O2 = 9; V_BO = 10; V_ST = 11; V_L0 = 12
V_STAMP = 13; V_T = 14; V_T2 = 15
V_O1B = 52; V_O2B = 53; V_O1G = 54; V_O2G = 55
ACC = [16, 24]
WF = 32
WFS = [32, 36, 40, 44, 48, 52, 108]
S_KO = 35; S_FO = 1; S_DUM = 56
GT = 56; BI = 64; SP = 68; HP = 76; BIG = 112
XR = 76; LT = 112; BR = 63; V_QA = 60; V_SAD = 62; S_YT = 3; S_XO = 30
PKR = 56
V_K1 = 68; V_K2 = 69; V_KH = 69; V_HG = 55; V_DUM = 70; V_KFT = 71; V_XA = 72; V_XB = 73; V_KG = 74; V_KST = 75
XA = 64; XB = 68; V_KT = 53
VR = 76; KR = 84; SH = 96; KC = 100; KA = 104
V_FR2 = 56
V_TOK = 8; V_RDY = 60; V_L4 = 61; V_XO = 62; V_XS = 63; V_TM = 62; V_TC = 63; V_YO = 60; V_YS = 61; V_SA = 53; V_SB = 55
V_AF = 5; V_BF = 6; V_KV = 7; V_YW = 10; V_RA = 52; V_RB = 54; V_FA = 74; V_P = 75; V_CL = 110; V_OOB = 111
AF = 112; CACC = 176; BB = 224; NB = 6
LDA = 76; LDB = 16

S_TOK = 3
S_Q = 4; S_W1 = 8; S_W2 = 12; S_B1 = 16; S_DR = 20; S_WS = 24
S_J = 28; S_RB = 29; S_ROT = 30; S_W = 31; S_QW = 32; S_M0B = 33
S_GC = 34
S_N = 38; S_T = 39; S_T2 = 40
S_COL = 44
S_ROW = [16, 17, 18, 19, 36, 37, 41, 42, 43]
S_PB = 53; S_SI = 54; S_MH = 55
S_PC = 56; S_TM = 58; S_M0G = 56
S_FLG = 62; S_ONES = 63
S_K = 64; S_V = 68; S_SH = 72; S_KVO = 76
S_G = 77; S_PART = 78; S_INFO = 79
S_OUT = 80; S_KF = 84; S_DBG = 88; S_DP = 92; S_BP = 94; S_B2 = 96
S_TA = 92; S_TB = 93; S_IA = 94; S_IB = 95; S_BM = 57; S_KM = 30
S_BV = 64; S_LO = 72; S_HI = 73; S_D = 74; S_PX = 75; S_PY = 76; S_GX = 34; S_GY = 35; S_XM = 28; S_YM = 0; S_SO = 23; S_NX = 0; S_NY = 1; S_H2 = 8; S_CH = 9; S_FB = 10; S_GO = 11

S_PO = [11, 20, 21, 22]; S_D2 = 79; S_BW = 44; S_B3 = 4
S_WT = 35; S_KM2 = 35; S_PF = 56; V_PF = 68; TQ = 64; NP = 4

class G:
    def __init__(self, opt):
        self.L = []; self.o = opt
        self.lds = []; self.vm = []; self.done = set(); self.bdone = set()
    def e(self, s, tag=None):
        if s.endswith(" lds") and self.L[-1].split()[1:2] == ["m0,"]: self.L.append("  s_nop 0")
        self.L.append("  " + s)
        if s.startswith("ds_"): self.lds.append(tag)
        if s.startswith("buffer_") or s.startswith("global_"): self.vm.append(tag)
    def put(self, x):
        if isinstance(x, list):
            for y in x: self.put(y)
        elif callable(x): x()
        elif isinstance(x, tuple): self.e(x[0], x[1])
        else: self.e(x)
    def lab(self, s): self.L.append(s + ":")
    def _n(self, q, tags):
        idx = [i for i, t in enumerate(q) if t is not None and t in tags]
        if not idx: return None
        m = max(idx)
        for t in q[:m+1]:
            if t is not None: self.done.add(t)
        n = len(q) - 1 - m
        del q[:m+1]
        return n
    def wait(self, lds=(), vm=(), alllds=False, allvm=False):
        w = []
        if allvm:
            for t in self.vm: self.done.add(t)
            self.vm = []; w.append("vmcnt(0)")
        else:
            n = self._n(self.vm, set(vm))
            if n is not None: w.append(f"vmcnt({min(n, 63)})")
        if alllds:
            for t in self.lds: self.done.add(t)
            self.lds = []; w.append("lgkmcnt(0)")
        else:
            n = self._n(self.lds, set(lds))
            if n is not None: w.append(f"lgkmcnt({min(n, 15)})")
        if w: self.e("s_waitcnt " + " ".join(w))
    def stamp(self):
        if not self.o.get("stamps"): return
        self.e(f"s_memtime s[{S_TM}:{S_TM+1}]")
        self.e(f"s_memrealtime s[{S_TM+2}:{S_TM+3}]")
        self.e("s_mov_b32 s100, m0")
        self.e("s_waitcnt lgkmcnt(0)")
        self.e(f"s_mov_b32 m0, s{S_SI}")
        self.e(f"s_add_u32 s{S_SI}, s{S_SI}, 1")
        self.e(f"v_writelane_b32 v{V_STAMP}, s{S_TM}, m0")
        self.e(f"s_add_u32 m0, m0, 30")
        self.e(f"s_nop 0")
        self.e(f"v_writelane_b32 v{V_STAMP}, s{S_TM+2}, m0")
        self.e("s_mov_b32 m0, s100")
    def rstamp(self, lane):
        if not self.o.get("stamps"): return
        self.e(f"s_memrealtime s[{S_TM}:{S_TM+1}]")
        self.e("s_waitcnt lgkmcnt(0)")
        self.e(f"v_writelane_b32 v{V_STAMP}, s{S_TM}, {lane}")

def srd(g, s, nrec):
    g.e(f"s_mov_b32 s{s+2}, {nrec}")
    g.e(f"s_mov_b32 s{s+3}, 0x00020000")

SM = [1]
def slot(N, u):
    if N == 10 and u == 8: return 9
    if N % 2 == 0: return u
    if N == 7: return 11 + u
    if N > 8: return [13, 14, 15, 16, 17, 18, 19, 12, 11][u]
    if N < 9:
        if not SM[0]: return 11 + u
        return 10 + u if u else (9 if N == 1 else 19)
    if u == 8: return 11
    if not SM[0]: return 12 + u
    return 11 + u if u else 19

def dma(g, N, u, grp=False):
    L = [f"s_add_u32 m0, s{S_M0G if grp else S_M0B}, {slot(N, u) * 8192}"]
    if N < 9:
        L.append(f"s_add_u32 s{S_T}, s{S_COL+N}, {u*64*9216}")
        v, s = (V_O1G if grp else V_O1), S_W1
        v2 = V_O1B
    else:
        L.append(f"s_add_u32 s{S_T}, s{S_COL+N-9}, s{S_ROW[u]}")
        v, s = (V_O2G if grp else V_O2), S_W2
        v2 = V_O2B
    if g.o.get("nodma") and N: return [L]
    L.append((f"buffer_load_dwordx4 v{v}, s[{s}:{s+3}], s{S_T} offen lds", ("u", N, u)))
    if not grp: return [L]
    d2 = (f"buffer_load_dwordx4 v{v2}, s[{s}:{s+3}], s{S_T} offen offset:1024 lds", ("u", N, u))
    if g.o.get("dpair"): return [L + [d2]]
    return [L, [d2]]

def parts(N, ks):
    if N < 9: return [(ks // 2, 2*(ks % 2)), (ks // 2, 2*(ks % 2) + 1)]
    if ks < 16: return [(2*(ks // 4), ks % 4), (2*(ks // 4) + 1, ks % 4)]
    return [(8, 2*(ks - 16)), (8, 2*(ks - 16) + 1)]

def wreads(g, r):
    N, ks = r // 18, r % 18
    b = WFS[r % g.NF]
    L = []
    for h, (u, g16) in enumerate(parts(N, ks)):
        a = slot(N, u)*8192 + 2048*g16
        L.append((f"ds_read_b64_tr_b16 v[{b+2*h}:{b+2*h+1}], v{V_TR[a >> 16]} offset:{a & 0xffff}", ("w", r) if h else None))
    return L

def mfmas(g, i):
    N, ks = i // 18, i % 18
    b = WF + 4*(i % g.NF)
    L = []
    for t in range(2):
        c = ACC[N % 2] + 4*t
        f = BIG + 8*ks + 4*t
        src = f"v[{c}:{c+3}]" if ks else (f"v[{BI}:{BI+3}]" if N < 9 else "0")
        L.append(f"v_mfma_f32_16x16x32_bf16 v[{c}:{c+3}], v[{b}:{b+3}], v[{f}:{f+3}], {src}")
    return L

def sread(ph, k):
    ks, t = k // 2, k % 2
    if ph == 0:
        off = 4096*ks + 1024*t
        v = [V_FR, V_FR2, V_FR2 + 1, V_FR2 + 2][(off >> 16) + 2*(ks % 2)]
        return (f"ds_read_b128 v[{BIG+4*k}:{BIG+4*k+3}], v{v} offset:{off & 0xffff}", ("s", k))
    if ks < 16: return (f"ds_read_b128 v[{BIG+4*k}:{BIG+4*k+3}], v{V_FR} offset:{16384*(ks//4) + 2048*(ks%4) + 1024*t}", ("s", 36 + k))
    return (f"ds_read_b128 v[{BIG+4*k}:{BIG+4*k+3}], v{V_HW} offset:{2048*(ks-16) + 1024*t}", ("s", 36 + k))

def spread(items, s0, s1, work):
    n = len(items)
    for i, it in enumerate(items):
        s = s0 + (i * (s1 - s0)) // n
        work.setdefault(s, []).extend(it if isinstance(it, list) else [it])

def gelu_list(o, n):
    L = []
    A = ACC[n % 2]
    x = [A + i for i in range(8)]
    t = [GT + i for i in range(8)]
    def dst(i):
        if n == 8: return HP + 32 + i
        return HP + 8*(n // 2) + 4*(i // 2) + 2*(n % 2) + (i % 2)
    if o.get("nogelu"):
        return [f"v_cvt_pk_bf16_f32 v{dst(i)}, v{x[2*i]}, v{x[2*i+1]}" for i in range(4)]
    P = lambda r: f"v[{r}:{r+1}]"
    if o.get("pk", 0):
        sc = f"s[{S_GC}:{S_GC+1}]"
        for i in range(0, 8, 2): L.append(f"v_pk_mul_f32 {P(t[i])}, {P(x[i])}, {P(x[i])}")
        for i in range(0, 8, 2): L.append(f"v_pk_fma_f32 {P(t[i])}, {P(t[i])}, {sc}, {sc} op_sel:[0,0,1] op_sel_hi:[1,0,1]")
        for i in range(0, 8, 2): L.append(f"v_pk_mul_f32 {P(t[i])}, {P(t[i])}, {P(x[i])}")
        for i in range(8): L.append(f"v_exp_f32 v{t[i]}, v{t[i]}")
        for i in range(0, 8, 2): L.append(f"v_pk_add_f32 {P(t[i])}, {P(t[i])}, 1.0 op_sel_hi:[1,0]")
        for i in range(8): L.append(f"v_rcp_f32 v{t[i]}, v{t[i]}")
        for i in range(0, 8, 2): L.append(f"v_pk_mul_f32 {P(t[i])}, {P(t[i])}, {P(x[i])}")
    else:
        for i in range(8): L.append(f"v_mul_f32 v{t[i]}, v{x[i]}, v{x[i]}")
        for i in range(8): L.append(f"v_fma_f32 v{t[i]}, v{t[i]}, s{S_GC}, v{V_C1}")
        for i in range(8): L.append(f"v_mul_f32 v{t[i]}, v{t[i]}, v{x[i]}")
        for i in range(8): L.append(f"v_exp_f32 v{t[i]}, v{t[i]}")
        for i in range(8): L.append(f"v_add_f32 v{t[i]}, 1.0, v{t[i]}")
        for i in range(8): L.append(f"v_rcp_f32 v{t[i]}, v{t[i]}")
        for i in range(8): L.append(f"v_mul_f32 v{t[i]}, v{t[i]}, v{x[i]}")
    for i in range(4): L.append(f"v_cvt_pk_bf16_f32 v{dst(i)}, v{t[2*i]}, v{t[2*i+1]}")
    return L

def tload(g, n):
    L = [f"s_lshl_b32 s{S_T2}, s{S_COL+n}, 11", f"s_add_u32 s{S_T2}, s{S_T2}, s{S_PB}"]
    v = V_ST
    if n == 4:
        L = [f"s_lshl_b32 s{S_N}, s{S_J}, 31", f"v_or_b32 v{V_T}, s{S_N}, v{V_ST}"] + L; v = V_T
    L.append((f"buffer_load_dwordx4 v[{TQ}:{TQ+3}], v{v}, s[{S_WS}:{S_WS+3}], s{S_T2} offen {g.o.get('tfl', '')}", ("q", n)))
    return L

def fload(g, n):
    return [f"s_lshl1_add_u32 s{S_N}, s{S_COL+n}, s{S_PF}",
            (f"buffer_load_dword v{V_PF}, off, s[{S_WS}:{S_WS+3}], s{S_N} sc1", ("pf", n))]

def fcheck(g, n):
    def f():
        nm = f"{g.nm}_pf{n}"
        g.wait(vm=[("pf", n)])
        g.e(f"v_cmp_ne_u32 vcc, s{S_TOK}, v{V_PF}")
        g.e(f"s_cbranch_vccnz {nm}")
        g.lab(f"{nm}b")
        L = ([f"s_bitcmp1_b32 s{S_J}, 0", f"s_cbranch_scc1 {nm}b"] if n == 4 else []) + [
             f"s_lshl1_add_u32 s{S_N}, s{S_COL+n}, s{S_PF}", f"s_mov_b32 s{S_T2}, {SPIN}"]
        M = [f"buffer_load_dword v{V_PF}, off, s[{S_WS}:{S_WS+3}], s{S_N} sc1", f"s_sub_u32 s{S_T2}, s{S_T2}, 1", "s_waitcnt vmcnt(0)",
             f"s_cbranch_scc1 {nm}b", f"v_cmp_ne_u32 vcc, s{S_TOK}, v{V_PF}", f"s_cbranch_vccnz {nm}l", f"s_branch {nm}b"]
        g.ool += [f"{nm}:"] + ["  " + x for x in L] + [f"{nm}l:"] + ["  " + x for x in M]
    return f

def tswap(g, n):
    return [lambda: g.wait(vm=[("q", n)]), f"v_permlane16_swap_b32 v{TQ}, v{TQ+2}", f"v_permlane16_swap_b32 v{TQ+1}, v{TQ+3}"]

def cvt(g, n):
    A = ACC[(n + 9) % 2]; P = PKR + 4*(n % g.o.get("npk", 1))
    L = []
    if n >= 4:
        tc = g.o.get("tc", 0)
        if tc == 2 and n < 8:
            ex = lambda d, i: [f"v_lshlrev_b32 v{d}, 16, v{TQ+i}", f"v_and_b32 v{d+1}, 0xffff0000, v{TQ+i}"]
            ad = lambda d, i: [f"v_pk_add_f32 v[{A+2*i}:{A+2*i+1}], v[{A+2*i}:{A+2*i+1}], v[{d}:{d+1}]"]
            L += ex(P, 0) + ex(P + 2, 1) + ex(TQ, 2) + ad(P, 0) + ad(P + 2, 1) + ex(P, 3) + ad(TQ, 2) + ad(P, 3)
        else:
            for i in (0, 2, 1, 3): L += [f"v_dot2c_f32_bf16 v{A+2*i}, s{S_LO}, v{TQ+i}", f"v_dot2c_f32_bf16 v{A+2*i+1}, s{S_HI}, v{TQ+i}"]
        if tc == 1: L = [x.replace("v_dot2c_f32_bf16", "v_add_f32") for x in L]
        if tc == 3: L = []
    TM, TC = (P + 2, P + 3) if n < 2 else (V_TM, V_TC)
    if n < 3: L += [f"v_bfe_i32 v{TM}, v{V_LANE}, 4, 1", f"v_and_b32 v{TC}, 0x10000, v{TM}", f"v_or_b32 v{TM}, 0xfffe0000, v{TM}", f"v_xor_b32 v{TC}, 0x10000, v{TC}"]
    if n < 4: L += [f"v_add_u32 v{r}, v{r}, v{TC}" for r in (A, A + 4)] + [f"v_and_b32 v{r}, v{r}, v{TM}" for r in (A, A + 4)]
    if n > 4: L += [f"v_and_or_b32 v{r}, v{r}, v{V_TM}, v{V_TC}" for r in (A, A + 4)]
    if n == 4:
        L += [[f"s_lshl_b32 s{S_N}, s{S_J}, 16", f"v_and_b32 v{P}, s{S_N}, v{V_TC}"]] + [f"v_add_u32 v{r}, v{r}, v{P}" for r in (A, A + 4)]
        L += [f"v_xor_b32 v{P}, v{P}, v{V_TC}"] + [f"v_and_or_b32 v{r}, v{r}, v{V_TM}, v{P}" for r in (A, A + 4)]
    L += [f"v_cvt_pk_bf16_f32 v{P+i}, v{A+2*i}, v{A+2*i+1}" for i in range(4)]
    L.append("s_nop 0")
    L.append(f"v_permlane16_swap_b32 v{P}, v{P+2}")
    L.append(f"v_permlane16_swap_b32 v{P+1}, v{P+3}")
    return L

def pstore(g, n):
    P = PKR + 4*(n % g.o.get("npk", 1))
    L = [f"s_lshl_b32 s{S_T2}, s{S_COL+n}, 11", f"s_add_u32 s{S_T2}, s{S_T2}, s{S_PB}"]
    st = f"buffer_store_dwordx4 v[{P}:{P+3}], v{V_ST}, s[{S_WS}:{S_WS+3}], s{S_T2} offen"
    if n < 4: L.append(f"v_and_b32 v{P}, -2, v{P}")
    if n > 4: L.append(f"v_or_b32 v{P}, 1, v{P}")
    if n == 4: L += [[f"s_andn2_b32 s{S_N}, 1, s{S_J}", f"v_and_or_b32 v{P}, v{P}, -2, s{S_N}"]]
    return L + [(f"{st} {g.o.get('gfl', 'sc1') if n < 4 else g.o.get('ffl', 'sc1')}", ("p", n))]

def flag_store(g, n):
    return [f"s_lshl1_add_u32 s{S_N}, s{S_COL+n}, s{S_FLG}",
            (f"buffer_store_dword v{V_TOK}, v{V_L0}, s[{S_WS}:{S_WS+3}], s{S_N} offen sc1", ("f", n))]

class Sched:
    def __init__(self, g, first):
        self.g = g
        A = [(N, u) for N in range(18) for u in range(9)]
        self.q = A[first:]
        self.own = {}
        for N, u in A[:first]: self.own[slot(N, u)] = (N, u)
        self.hold = {}
    def ok(self, N, u):
        s_ = slot(N, u)
        return s_ not in self.own and not (s_ in self.hold and N >= self.hold[s_])
    def claim(self, slots, nm):
        for s_ in slots:
            assert s_ not in self.own, (s_, nm, self.own[s_])
            self.own[s_] = nm
    def free(self, slots):
        for s_ in slots:
            assert isinstance(self.own[s_], str), (s_, self.own[s_])
            del self.own[s_]; self.hold.pop(s_, None)
    def release(self, i):
        for s_, x in list(self.own.items()):
            if isinstance(x, tuple):
                N, u = x
                last = max(ks for ks in range(18) if any(p[0] == u for p in parts(N, ks)))
                if 18*N + last <= i: del self.own[s_]
    def take(self, cap):
        R = []
        while self.q and len(R) < cap and self.ok(*self.q[0]):
            x = self.q.pop(0); self.own[slot(*x)] = x
            R.append(x)
        return R

def mfma(g, i, t):
    N, ks = i // 18, i % 18
    b = WFS[i % g.NF]
    c = ACC[N % 2] + 4*t
    f = BIG + 8*ks + 4*t
    src = f"v[{c}:{c+3}]" if ks else (f"v[{BI}:{BI+3}]" if N < 9 else "0")
    return f"v_mfma_f32_16x16x32_bf16 v[{c}:{c+3}], v[{b}:{b+3}], v[{f}:{f+3}], {src}"

def isvalu(x):
    t = x[0] if isinstance(x, tuple) else x
    return isinstance(t, str) and t.startswith("v_")

def seq(j):
    R = []
    for i in (2*j - 2, 2*j - 1): R.append((i, 1 - (i % 18) // 2 % 2) if i >= 0 else None)
    for i in (2*j, 2*j + 1): R.append((i, (i % 18) // 2 % 2) if i < 324 else None)
    return R
SO = [2*m[0] + m[1] for j in range(10) for m in seq(j) if m and m[0] < 18]

def stream(g, sc, bars, work, hooks, pre, post, inb, bw, bv, act, aft):
    o = g.o; D = g.NF - 2; E = D + D % 2 + 2
    i1 = 324
    first = lambda r: r - D % 2
    def need(r0):
        nx = min([first(b) for b in bars if b > r0] + [i1])
        return [("u", r // 18, p[0]) for r in range(first(r0), nx) for p in parts(r // 18, r % 18)]
    due = {}
    for b in bars:
        for t in need(b): due.setdefault(t[1:], (b - E) // 2)
    for r in range(D):
        for x in wreads(g, r): g.put(x)
        for x in inb.pop((-1, r), []): g.put(x)
    vq = []
    log = []
    for j in range(163):
        r = 2*j + E
        bar = r in bars
        tgt = o.get("tgt%d" % (1 + j // 81), o.get("tgt", 7))
        if bar:
            sc.release(2*j + 1)
            for f in act.pop(r, []): f()
            vq += pre.pop(r, [])
        X = []
        if vq: X.append(vq.pop(0))
        us = sc.take(1) if j < 162 else []
        while us and len(us) < o.get("dmax", 2) and sc.q and due[sc.q[0]] - j < tgt and sc.ok(*sc.q[0]): us += sc.take(1)
        log += [(j, u, due[u] - j) for u in us]
        if bar: vq += post.pop(r, [])
        dm = [dma(g, N, u)[0] for N, u in us]
        rr = [x for i in (2*j + D, 2*j + D + 1) if i < i1 and not o.get("noread") for x in wreads(g, i)]
        sl = dm[0][:2] if dm else []
        S = seq(j)
        def stag(m): return [("s", 2*m[0] + m[1])] if m[0] < 18 else [("s", 36 + 2*(m[0] - 162) + m[1])] if 162 <= m[0] < 180 else []
        for q, m in enumerate(S):
            tags = []
            if q == o.get("wq", 0) and j > 1:
                tags += [("w", 2*j), ("w", 2*j + 1)] + (["bias"] if j % 9 == 0 else [])
                if o.get("sw", 1): tags += [t for m2 in S if m2 for t in stag(m2)]
            if m:
                tags.append(("w", m[0]))
                tags += stag(m)
                for t in stag(m): assert t in g.lds or t in g.done, (j, t)
                if m[0] % 18 == 0: tags.append("bias")
                if o.get("sp") == 2 and q == 0: g.e("s_setprio 1")
                g.wait(lds=tags)
                if o.get("sp") == 1 and q == 0: g.e("s_setprio 1")
                if o.get("sp") == 3 and q == 0: g.e("s_setprio 0")
                if not o.get("nomfma"): g.e(mfma(g, *m))
                if o.get("sp") in (1, 2) and q == 3: g.e("s_setprio 0")
                if o.get("sp") == 3 and q == 3: g.e("s_setprio 1")
                for _ in range(2 if j == 0 else 1):
                    if rr: g.put(rr.pop(0))
                if sl: g.put(sl.pop(0))
                for x in inb.pop((j, q), []): g.put(x)
        assert not rr
        if bar:
            nd = need(r)
            assert not [t for t in nd if t[1:] in sc.q or t[1:] in us], r
            for t in bw.get(r, []) + bv.get(r, []): assert t in g.lds or t in g.vm or t in g.done, (r, t)
            g.wait(vm=nd + bv.pop(r, []), lds=bw.pop(r, []))
            if r in hooks: hooks.pop(r)()
            if r in o.get("sl", [8, 18, 26, 80, 152, 164, 180, 188, 206, 242, 278, 296, 310, 318]): g.stamp()
            if not o.get("nobar"): g.e("s_barrier")
            g.bdone = set(g.done)
        if dm:
            for x in dm[0][2:]: g.put(x)
        if bar:
            for x in aft.pop(r, []): g.put(x)
        V = [x for s_ in range(4*j - 2, 4*j + 2) for x in work.pop(s_, [])]
        if j == 162: work[4*j - 2] = V; break
        for Y in dm[1:]:
            for x in Y[:2]: g.put(x)
            for _ in range(o.get("dgap", 2)):
                if V and isvalu(V[0]): g.put(V.pop(0))
            for x in Y[2:]: g.put(x)
        k = o.get("xgap", 2)
        while k and V and isvalu(V[0]) and X:
            g.put(V.pop(0)); k -= 1
        for Y in X:
            for x in Y: g.put(x)
        for x in V: g.put(x)
    if o.get("log"): print(log)
    assert not (vq or inb or pre or post or bw or bv or act or aft or hooks), (vq, inb, pre, post, bw, bv, act, aft, hooks)
    assert not [s_ for s_ in work if s_ < 2*i1 and work[s_]], sorted(work)

def deal(items, j0, n, work):
    cost = [2 if x.startswith("v_exp") or x.startswith("v_rcp") else 1 for x in items]
    tot = sum(cost); cum = 0
    for x, c in zip(items, cost):
        work.setdefault(4*(j0 + min(n - 1, int((cum + c / 2) * n / tot))), []).append(x); cum += c

def finish(g):
    if g.o.get("stamps"):
        g.stamp()
        g.e("s_waitcnt vmcnt(0)")
        g.stamp()
        g.rstamp(63)
        g.e(f"s_lshl_b32 s{S_T}, s2, 11")
        g.e(f"s_add_u32 s{S_T}, s{S_T}, {STAMP_OFF}")
        g.e(f"v_lshlrev_b32 v{V_T}, 2, v{V_TID}")
        g.e(f"buffer_store_dword v{V_STAMP}, v{V_T}, s[{S_WS}:{S_WS+3}], s{S_T} offen")
    g.e("s_endpgm")

def bf16round(g, v):
    g.e(f"v_cvt_pk_bf16_f32 v{v}, v{v}, v{v}")
    g.e(f"v_and_b32 v{v}, 0xffff0000, v{v}")

class H:
    def __init__(self): self.L = []; self.e = self.L.append

def prologue(g, name):
    o = g.o; e = g.e; raw = lambda s_: g.L.append("  " + s_)
    full = not o.get("core")
    e("s_cmp_ge_u32 s2, 256")
    e(f"s_cbranch_scc1 {name}_exit")
    e(f"s_load_dwordx2 s[{S_Q}:{S_Q+1}], s[0:1], 0")
    if o.get("stamps"):
        e(f"s_mov_b32 s{S_SI}, 0"); e(f"v_mov_b32 v{V_STAMP}, 0")
        g.rstamp(62)
        g.stamp()
    ep = o.get("ep", 0)
    if ep:
        e(f"s_getpc_b64 s[{S_PC}:{S_PC+1}]")
        e(f"v_lshrrev_b32 v{V_T}, {ep}, v{V_TID}")
        e(f"v_lshlrev_b32 v{V_T}, 7, v{V_T}")
        raw(f"global_load_dword v{V_DUM}, v{V_T}, s[{S_PC}:{S_PC+1}] offset:128")
    KA_ = [f"s_load_dwordx2 s[{s_}:{s_+1}], s[0:1], {off}" for s_, off in ((S_W1, 56), (S_B1, 64), (S_W2, 72), (S_WS, 104), (S_K, 8), (S_V, 16),
           (S_SH, 24), (S_KF, 32), (S_DP, 40), (S_BP, 80), (S_OUT, 88), (S_DBG, 96))]
    if o.get("kae", 0):
        for x in KA_: e(x)
    e(f"s_lshr_b32 s{S_RB}, s2, 4")
    e(f"s_and_b32 s{S_T}, s2, 4")
    e(f"s_lshl2_add_u32 s{S_RB}, s{S_T}, s{S_RB}")
    e(f"v_lshrrev_b32 v{LT}, 3, v{V_TID}")
    e(f"s_and_b32 s{S_T}, s2, 8")
    e(f"s_lshl_b32 s{S_T}, s{S_T}, 2")
    e(f"v_xor_b32 v{LT}, s{S_T}, v{LT}")
    e(f"v_and_b32 v{LT+1}, 7, v{V_TID}")
    e(f"s_mul_i32 s{S_T2}, s{S_RB}, {64*1152}")
    e(f"v_lshl_add_u32 v{LT+6}, v{LT+1}, 4, s{S_T2}")
    e(f"v_mul_u32_u24 v{LT+2}, 1152, v{LT}")
    e(f"v_add_u32 v{LT+6}, v{LT+6}, v{LT+2}")
    e(f"v_cmp_gt_u32 vcc, 256, v{V_TID}")
    srd(g, S_Q, 2359296)
    e("s_waitcnt lgkmcnt(0)")
    if o.get("pst"): g.stamp()
    xl = lambda i: f"buffer_load_dwordx4 v[{XR+4*i}:{XR+4*i+3}], v{LT+6}, s[{S_Q}:{S_Q+3}], 0 offen offset:{128*i}"
    y0 = o.get("y0", 1)
    for i in range(9):
        if i == y0: e(f"s_cbranch_vccz {name}_y0")
        raw(xl(i))
    e(f"s_getpc_b64 s[{S_PC}:{S_PC+1}]")
    g.lab(f"{name}_pc")
    e(f"s_lshr_b32 s{S_T}, s2, 3")
    e(f"v_lshl_add_u32 v{V_T}, v{V_TID}, 5, s{S_T}")
    e(f"v_lshlrev_b32 v{V_T}, 7, v{V_T}")
    e(f"v_min_u32 v{V_T}, {name}_exit-{name}_pc, v{V_T}")
    raw(f"global_load_dword v{V_DUM}, v{V_T}, s[{S_PC}:{S_PC+1}]")
    g.lab(f"{name}_y0")
    if not o.get("kae", 0):
        for x in KA_: e(x)
    if o.get("pst"): g.stamp()
    h = H(); e = h.e
    e(f"v_lshrrev_b32 v{V_T}, 6, v{V_TID}")
    e(f"v_and_b32 v{V_LANE}, 63, v{V_TID}")
    e(f"v_readfirstlane_b32 s{S_W}, v{V_T}")
    e(f"s_and_b32 s{S_J}, s2, 3")
    e(f"s_bfe_u32 s{S_T}, s2, {3 | (1 << 16)}")
    e(f"s_lshl1_add_u32 s{S_J}, s{S_J}, s{S_T}")
    srd(h, S_W1, 5308416); srd(h, S_W2, 5308416); srd(h, S_B1, 9216)
    srd(h, S_WS, 268435456)
    srd(h, S_K, 2359296); srd(h, S_V, 2359296); srd(h, S_SH, 4608)
    srd(h, S_KF, 2359296); srd(h, S_OUT, 2359296); srd(h, S_DBG, 256)
    e(f"s_and_b32 s{S_QW}, s{S_W}, 3")
    e(f"s_lshr_b32 s{S_MH}, s{S_W}, 2")
    e(f"s_lshl_b32 s{S_M0B}, s{S_W}, 10")
    e(f"s_lshl2_add_u32 s{S_ROT}, s{S_T}, s{S_RB}")
    e(f"s_mul_i32 s{S_T}, s{S_ROT}, 57")
    e(f"s_lshr_b32 s{S_T}, s{S_T}, 9")
    e(f"s_mul_i32 s{S_T}, s{S_T}, 9")
    e(f"s_sub_u32 s{S_ROT}, s{S_ROT}, s{S_T}")
    e(f"s_lshl_b32 s{S_COL}, s{S_ROT}, 7")
    for u in range(1, 9):
        e(f"s_add_u32 s{S_COL+u}, s{S_COL+u-1}, 128")
        e(f"s_cmp_eq_u32 s{S_COL+u}, 1152")
        e(f"s_cselect_b32 s{S_COL+u}, 0, s{S_COL+u}")
    e(f"v_lshrrev_b32 v{LT+3}, 3, v{V_TID}")
    e(f"v_and_b32 v{LT+4}, 6, v{LT+3}")
    e(f"v_xor_b32 v{LT+4}, v{LT+4}, v{LT+1}")
    e(f"v_lshlrev_b32 v{LT+4}, 4, v{LT+4}")
    e(f"s_mul_i32 s{S_N}, s{S_J}, 1152")
    e(f"v_mul_u32_u24 v{V_O1}, 9216, v{LT+3}")
    e(f"v_add3_u32 v{V_O1}, v{V_O1}, v{LT+4}, s{S_N}")
    e(f"s_mul_i32 s{S_T}, s{S_J}, {576*1152}")
    e(f"v_mul_u32_u24 v{V_O2}, 1152, v{LT+3}")
    e(f"v_add3_u32 v{V_O2}, v{V_O2}, v{LT+4}, s{S_T}")
    e(f"s_lshl_b32 s{S_T}, s{S_QW}, 1")
    e(f"s_sub_u32 s{S_T}, s{S_T}, s{S_W}")
    e(f"s_mul_i32 s{S_T2}, s{S_T}, {8*9216}")
    e(f"v_add_u32 v{V_O1G}, s{S_T2}, v{V_O1}")
    e(f"v_add_u32 v{V_O1B}, {8*9216-1024}, v{V_O1G}")
    e(f"s_lshl_b32 s{S_M0G}, s{S_QW}, 11")
    by = o.get("by", 1)
    if by:
        e(f"v_and_b32 v{V_BO}, 255, v{V_TID}")
        e(f"v_lshl_add_u32 v{V_BO}, v{V_BO}, 3, s{S_COL}")
    else: e(f"v_lshl_add_u32 v{V_BO}, v{V_TID}, 2, s{S_COL}")
    e(f"v_subrev_u32 v{V_T}, 1152, v{V_BO}")
    e(f"v_min_u32 v{V_BO}, v{V_BO}, v{V_T}")
    e(f"v_add_u32 v{V_BO}, s{S_N}, v{V_BO}")
    e(f"v_lshrrev_b32 v{LT+8}, 4, v{V_LANE}")
    e(f"v_lshrrev_b32 v{LT+9}, 2, v{V_LANE}")
    e(f"v_lshlrev_b32 v{V_TR[0]}, 7, v{LT+9}")
    e(f"v_bfe_u32 v{LT+9}, v{V_LANE}, 3, 2")
    e(f"v_xor_b32 v{LT+9}, s{S_QW}, v{LT+9}")
    e(f"v_lshl_add_u32 v{V_TR[0]}, v{LT+9}, 5, v{V_TR[0]}")
    e(f"v_and_b32 v{LT+9}, 3, v{V_LANE}")
    e(f"v_lshl_add_u32 v{V_TR[0]}, v{LT+9}, 3, v{V_TR[0]}")
    e(f"v_add_u32 v{V_TR[1]}, 65536, v{V_TR[0]}")
    e(f"v_add_u32 v{V_TR[2]}, 131072, v{V_TR[0]}")
    e(f"s_lshl_b32 s{S_T}, s{S_MH}, 11")
    e(f"s_add_u32 s{S_T}, s{S_T}, {XL}")
    e(f"v_lshrrev_b32 v{LT+7}, 5, v{V_LANE}")
    e(f"v_mul_u32_u24 v{LT+7}, 26, v{LT+7}")
    e(f"v_and_b32 v{V_FR}, 15, v{V_LANE}")
    e(f"v_xor_b32 v{V_FR}, v{V_FR}, v{LT+7}")
    e(f"v_and_b32 v{LT+7}, 16, v{V_LANE}")
    e(f"v_lshl_add_u32 v{V_FR}, v{LT+7}, 1, v{V_FR}")
    e(f"v_lshl_add_u32 v{V_FR}, v{V_FR}, 4, s{S_T}")
    e(f"v_add_u32 v{V_FR2}, 65536, v{V_FR}")
    e(f"v_xor_b32 v{V_FR2+1}, 64, v{V_FR}")
    e(f"v_xor_b32 v{V_FR2+2}, 64, v{V_FR2}")
    e(f"v_and_b32 v{LT+9}, 1, v{V_LANE}")
    e(f"v_mul_u32_u24 v{LT+9}, 26, v{LT+9}")
    e(f"v_and_b32 v{LT+2}, 15, v{LT}")
    e(f"v_xor_b32 v{LT+2}, v{LT+2}, v{LT+9}")
    e(f"v_and_b32 v{LT+9}, 48, v{LT}")
    e(f"v_lshl_add_u32 v{LT+2}, v{LT+9}, 2, v{LT+2}")
    e(f"v_and_b32 v{LT+9}, 4, v{V_LANE}")
    e(f"v_xor_b32 v{LT+2}, v{LT+2}, v{LT+9}")
    e(f"v_lshl_add_u32 v{LT+2}, v{LT+9}, 6, v{LT+2}")
    e(f"v_lshlrev_b32 v{LT+2}, 4, v{LT+2}")
    e(f"v_and_b32 v{LT+9}, 2, v{V_LANE}")
    e(f"v_lshl_add_u32 v{LT+2}, v{LT+9}, 2, v{LT+2}")
    e(f"v_add_u32 v{LT+2}, {XL}, v{LT+2}")
    c1 = 2.0 * math.sqrt(2.0 / math.pi) * math.log2(math.e)
    e(f"v_mov_b32 v{V_C1}, 0x{f32bits(-c1):08x}")
    e(f"s_mov_b32 s{S_GC}, 0x{f32bits(-c1*0.044715):08x}")
    e(f"v_or_b32 v{V_SAD}, s{S_J}, v{LT+1}")
    e(f"v_lshlrev_b32 v{V_SAD}, 28, v{V_SAD}")
    e(f"v_lshl_add_u32 v{V_SAD}, v{LT}, 3, v{V_SAD}")
    SA, SB, QA, QB, ONE = LT+10, LT+11, V_QA, V_QA+1, LT+14
    for r in (SA, SB, QA, QB): e(f"v_mov_b32 v{r}, 0")
    e(f"v_mov_b32 v{ONE}, 0x3f803f80")
    e(f"s_lshr_b32 s{S_T}, s2, 3")
    e(f"s_mul_i32 s{S_PART}, s{S_T}, 57")
    e(f"s_lshr_b32 s{S_PART}, s{S_PART}, 9")
    e(f"s_and_b32 s{S_G}, s2, 7")
    e(f"s_sub_u32 s{S_G}, s{S_G}, s{S_PART}")
    e(f"s_mul_i32 s{S_G}, s{S_G}, 9")
    e(f"s_add_u32 s{S_G}, s{S_G}, s{S_T}")
    e(f"s_lshl1_add_u32 s{S_T}, s2, -432")
    e(f"s_min_u32 s{S_T}, s{S_T}, 70")
    e(f"s_cmp_eq_u32 s{S_PART}, 3")
    e(f"s_cselect_b32 s{S_G}, s{S_T}, s{S_G}")
    e(f"s_cselect_b32 s{S_INFO}, 16, 0")
    e("s_cmp_ge_u32 s2, 252")
    e(f"s_cselect_b32 s{S_PART}, 4, s{S_PART}")
    e(f"s_lshl_b32 s{S_T}, s{S_G}, 4")
    e(f"s_add_u32 s{S_INFO}, s{S_INFO}, s{S_T}")
    S1 = atoms(h.L)
    DB = [f"s_load_dwordx4 s[{S_B2}:{S_B2+3}], s[{S_BP}:{S_BP+1}], s{S_T}",
          f"s_lshl3_add_u32 s{S_T}, s{S_MH}, s{S_T}", f"s_load_dwordx2 s[{S_DR}:{S_DR+1}], s[{S_DP}:{S_DP+1}], s{S_T}",
          f"s_lshl3_add_u32 s{S_T}, s{S_MH}, s{S_INFO}", f"s_load_dwordx2 s[{S_DR+2}:{S_DR+3}], s[{S_DP}:{S_DP+1}], s{S_T}"]
    S1.append(([] if o.get("kae", 0) else ["s_waitcnt lgkmcnt(0)"]) + DB)
    S2 = (atoms(setup2()) + (setup3(o) if full else [])) if o.get("sup", 1) else []
    S2 = [[f"s_load_dwordx4 s[{S_B3}:{S_B3+3}], s[{S_BP}:{S_BP+1}], s{S_INFO}"]] + S2
    e = g.e
    cnt = [0]
    def hook(L):
        cnt[0] += 1
        e(f"s_cbranch_vccnz {name}_h{cnt[0]}")
        for x in L: raw(x)
        g.lab(f"{name}_h{cnt[0]}")
    def weave(S, Hs, f0, f1):
        at = [int(len(S) * (f0 + (f1 - f0) * k / max(1, len(Hs) - 1))) for k in range(len(Hs))]
        for k in range(len(S) + 1):
            for a_, L in zip(at, Hs):
                if a_ == k: hook(L)
            if k < len(S):
                for x in S[k]: e(x)
    def gdma(u, st):
        N, u = u // 9, u % 9
        return [[f"s_add_u32 m0, s{S_M0G}, {slot(N, u) * 8192}", f"s_add_u32 s{st}, s{S_COL+N}, {u*64*9216}",
                 f"buffer_load_dwordx4 v{V_O1G}, s[{S_W1}:{S_W1+3}], s{st} offen lds"],
                [f"buffer_load_dwordx4 v{V_O1B}, s[{S_W1}:{S_W1+3}], s{st} offen offset:1024 lds"]]
    weave(S1, [[xl(i)] for i in range(y0, 9)], *o.get("wv1", [0.1, 1.0]))
    e(f"s_or_b32 s{S_T}, s2, s{S_W}")
    e(f"s_cbranch_scc0 {name}_mk")
    g.lab(f"{name}_mkb")
    if o.get("pst"): g.stamp()
    ny = o.get("ny", 1)
    H2 = sum([gdma(u, S_YT) for u in range(ny)], [])
    if by: H2[0] = [f"buffer_load_dwordx2 v[{LT+32}:{LT+33}], v{V_BO}, s[{S_B1}:{S_B1+3}], 0 offen"] + H2[0]
    else: raw(f"buffer_load_dword v{BR}, v{V_BO}, s[{S_B1}:{S_B1+3}], 0 offen")
    weave(S2, H2, *o.get("wv2", [0.0, 1.0]))
    if o.get("pst"): g.stamp()
    def stats(later):
        for i in range(9):
            e(f"s_waitcnt vmcnt({8 - i + later})")
            if i == 0 and o.get("pst"): g.stamp()
            for c in range(4):
                x = XR + 4*i + c
                e(f"v_dot2c_f32_bf16 v{SA if c%2==0 else SB}, v{x}, v{ONE}")
                e(f"v_dot2c_f32_bf16 v{QA if c%2==0 else QB}, v{x}, v{x}")
    e(f"s_cbranch_vccz {name}_sy")
    stats(2 - by)
    if not by: e("s_waitcnt vmcnt(0)")
    e(f"s_branch {name}_sj")
    g.lab(f"{name}_sy")
    stats(1 + 2*ny)
    e(f"s_waitcnt vmcnt({2*ny})")
    g.lab(f"{name}_sj")
    if o.get("pst") or o.get("ps2"): g.stamp()
    pl = o.get("pl", [-1, -1, -1, 2, 4, 6, 8, 9, 9])
    ool = []
    def pd(pos):
        us = [ny + k for k in range(len(pl)) if pl[k] == pos]
        if not us: return
        e(f"s_cbranch_vccnz {name}_p{pos + 1}")
        g.lab(f"{name}_p{pos + 1}b")
        ool.append(f"{name}_p{pos + 1}:")
        for u in us:
            for x in sum(gdma(u, S_T), []): ool.append("  " + x)
            g.vm.extend([("u", u // 9, u % 9)] * 2)
        ool.append(f"  s_branch {name}_p{pos + 1}b")
    pd(-1)
    e("s_nop 2")
    e(f"v_add_f32 v{SA}, v{SA}, v{SB}")
    e(f"v_add_f32 v{QA}, v{QA}, v{QB}")
    for dpp in ("quad_perm:[1,0,3,2]", "quad_perm:[2,3,0,1]", "row_half_mirror"):
        e("s_nop 0")
        e(f"v_add_f32 v{SA}, v{SA}, v{SA} {dpp} row_mask:0xf bank_mask:0xf")
        e(f"v_add_f32 v{QA}, v{QA}, v{QA} {dpp} row_mask:0xf bank_mask:0xf")
    inv = f"0x{f32bits(1.0/576.0):08x}"
    e(f"v_mul_f32 v{SA}, {inv}, v{SA}")
    e(f"v_mul_f32 v{QA}, {inv}, v{QA}")
    e(f"v_fma_f32 v{QA}, -v{SA}, v{SA}, v{QA}")
    e(f"v_max_f32 v{QA}, 0, v{QA}")
    bf16round(g, SA)
    bf16round(g, QA)
    e(f"v_add_f32 v{QA}, 0x{f32bits(1e-5):08x}, v{QA}")
    bf16round(g, QA)
    e(f"v_sqrt_f32 v{QA}, v{QA}")
    e("s_nop 0")
    bf16round(g, QA)
    e(f"v_rcp_f32 v{QA}, v{QA}")
    e("s_nop 0")
    e(f"v_mul_f32 v{QB}, -v{SA}, v{QA}")
    assert QA % 2 == 0
    T0 = LT + 16
    for i in range(9):
        t = T0 + 8*(i % 2)
        for c in range(4):
            x = XR + 4*i + c
            e(f"v_lshlrev_b32 v{t+2*c}, 16, v{x}")
            e(f"v_and_b32 v{t+2*c+1}, 0xffff0000, v{x}")
        for c in range(4):
            e(f"v_pk_fma_f32 v[{t+2*c}:{t+2*c+1}], v[{t+2*c}:{t+2*c+1}], v[{QA}:{QA+1}], v[{QA}:{QA+1}] op_sel:[0,0,1] op_sel_hi:[1,0,1]")
        x = 16 + 4*i
        for c in range(4): e(f"v_cvt_pk_bf16_f32 v{x+c}, v{t+2*c}, v{t+2*c+1}")
        e(f"ds_write2st64_b64 v{LT+2}, v[{x}:{x+1}], v[{x+2}:{x+3}] offset0:{16*i} offset1:{16*i+1}")
        if i == 1 and by:
            hook([f"v_lshlrev_b32 v{LT+36}, 16, v{LT+32}", f"v_and_b32 v{LT+37}, 0xffff0000, v{LT+32}", f"v_lshlrev_b32 v{LT+38}, 16, v{LT+33}",
                  f"v_and_b32 v{LT+39}, 0xffff0000, v{LT+33}", f"v_lshlrev_b32 v{V_BO}, 4, v{V_TID}", f"v_add_u32 v{V_BO}, {TBL - 4096}, v{V_BO}",
                  f"ds_write_b128 v{V_BO}, v[{LT+36}:{LT+39}]"])
        elif i == 1:
            e(f"v_lshlrev_b32 v{SA}, 16, v{BR}")
            e(f"v_and_b32 v{SB}, 0xffff0000, v{BR}")
            e(f"v_lshlrev_b32 v{V_BO}, 3, v{V_TID}")
            e(f"v_add_u32 v{V_BO}, {TBL}, v{V_BO}")
            e(f"ds_write_b64 v{V_BO}, v[{SA}:{SB}]")
        pd(i)
    if o.get("pst"): g.stamp()
    e(f"s_lshl_b32 s{S_T}, s{S_QW}, 6")
    e(f"s_add_u32 s{S_T}, s{S_T}, {TBL}")
    e(f"v_lshl_add_u32 v{V_BO}, v{LT+8}, 4, s{S_T}")
    pd(9)
    e(f"s_cbranch_vccnz {name}_pe")
    e("s_waitcnt vmcnt(0)")
    e(f"s_branch {name}_pe")
    g.L += ool
    g.lab(f"{name}_pe")
    for u in range(ny): g.done.add(("u", 0, u))
    fb = o.get("xr", [[8]])[0][0]
    g.wait(vm=[("u", 0, u) for u in range((fb + 1)//2)], alllds=True)
    g.stamp()
    e("s_barrier")
    return ny + len(pl)

def bias_read(n):
    return [(f"ds_read_b128 v[{BI}:{BI+3}], v{V_BO} offset:{256*n}", "bias")]

def setup2():
    L = []; e = L.append
    for u in range(9): e(f"s_mul_i32 s{S_ROW[u]}, s{S_COL+u}, 576")
    e(f"v_and_b32 v{V_ST}, 31, v{V_LANE}")
    e(f"v_lshlrev_b32 v{V_ST}, 4, v{V_ST}")
    e(f"v_lshrrev_b32 v{V_T}, 5, v{V_LANE}")
    e(f"v_lshl_add_u32 v{V_ST}, v{V_T}, 15, v{V_ST}")
    e(f"s_and_b32 s{S_PB}, s2, 3")
    e(f"s_mul_i32 s{S_PB}, s{S_PB}, 36")
    e(f"s_add_u32 s{S_PB}, s{S_PB}, s{S_QW}")
    e(f"s_lshl_b32 s{S_PB}, s{S_PB}, 6")
    e(f"s_add_u32 s{S_PB}, s{S_PB}, s{S_RB}")
    e(f"s_lshl1_add_u32 s{S_PB}, s{S_PB}, s{S_MH}")
    e(f"s_lshl_b32 s{S_PB}, s{S_PB}, 9")
    e(f"s_lshl_b32 s{S_N}, s{S_W}, 11")
    e(f"v_lshl_add_u32 v{V_HW}, v{V_LANE}, 4, s{S_N}")
    e(f"v_min_u32 v{V_L0}, 1, v{V_TID}")
    e(f"v_lshlrev_b32 v{V_L0}, 31, v{V_L0}")
    e(f"s_mul_i32 s{S_FLG}, s{S_RB}, 36")
    e(f"s_add_u32 s{S_FLG}, s{S_FLG}, s{S_QW}")
    e(f"s_lshl1_add_u32 s{S_FLG}, s{S_FLG}, s{S_MH}")
    e(f"s_lshl3_add_u32 s{S_FLG}, s{S_FLG}, s{S_J}")
    e(f"s_lshl2_add_u32 s{S_FLG}, s{S_FLG}, {FLAG_OFF}")
    return L

def atoms(L):
    R = []; open_ = False
    for x in L:
        t = x[0] if isinstance(x, tuple) else x
        if isinstance(t, str) and (t.startswith("s_cselect") or t.startswith("s_addc") or (open_ and t.startswith("s_mov"))): R[-1].append(x)
        else:
            R.append([x]); open_ = isinstance(t, str) and t.startswith("s_cmp")
    return R

def setup3(o):
    L = []; e = L.append
    e(f"s_lshr_b32 s{S_T2}, s2, 3")
    e(f"s_and_b32 s{S_ONES}, s2, 7")
    e(f"s_mul_i32 s{S_INFO}, s{S_T2}, 576")
    e(f"s_add_u32 s{S_INFO}, s{S_INFO}, s{S_ONES}")
    e(f"s_lshl_b32 s{S_INFO}, s{S_INFO}, 7")
    e(f"s_lshl_b32 s{S_N}, s{S_ONES}, 11")
    e(f"s_add_u32 s{S_N}, s{S_N}, s{S_T2}")
    e(f"s_lshl_b32 s{S_N}, s{S_N}, 7")
    e(f"s_and_b32 s{S_T2}, s2, 31")
    e(f"s_mul_i32 s{S_T}, s{S_T2}, {64*1152}")
    e(f"s_lshl_b32 s{S_T2}, s{S_T2}, 7")
    e(f"s_brev_b32 s{S_ONES}, 1")
    e(f"s_lshr_b32 s{S_KM}, s2, 5")
    e(f"s_cmp_eq_u32 s{S_KM}, {o.get('u2', 7)}")
    e(f"s_cselect_b32 s{S_KM2}, 1024, s{S_ONES}")
    e(f"s_cselect_b32 s{S_ONES}, {8 << 18}, s{S_ONES}")
    e(f"s_add_u32 s{S_T}, s{S_T}, s{S_KM2}")
    e(f"s_add_u32 s{S_T2}, s{S_T2}, s{S_ONES}")
    e(f"s_sub_u32 s{S_KM2}, s{S_T}, s{S_INFO}")
    e(f"s_sub_u32 s{S_T2}, s{S_T2}, s{S_N}")
    e(f"s_lshl_b32 s{S_KM}, s{S_W}, 10")
    e(f"s_mul_i32 s{S_T}, s{S_KM}, 9")
    e(f"s_add_u32 s{S_T}, s{S_T}, s{S_INFO}")
    e(f"s_add_u32 s{S_KM}, s{S_KM}, {KSTG}")
    e(f"s_mov_b32 s{S_KVO}, {KVT_OFF}")
    e(f"v_lshrrev_b32 v{V_T}, 3, v{V_LANE}")
    e(f"v_and_b32 v{V_T2}, 7, v{V_LANE}")
    e(f"v_mul_u32_u24 v{V_K1}, 1152, v{V_T}")
    e(f"v_xor_b32 v{V_KG}, s{S_W}, v{V_T2}")
    e(f"v_lshl_add_u32 v{V_K1}, v{V_KG}, 4, v{V_K1}")
    e(f"v_add_u32 v{V_K1}, s{S_T}, v{V_K1}")
    e(f"v_and_b32 v{V_T}, 3, v{V_T}")
    e(f"v_lshl_add_u32 v{V_KG}, v{V_KG}, 2, v{V_T}")
    e(f"v_lshl_add_u32 v{V_KG}, v{V_T2}, 8, v{V_KG}")
    e(f"v_bfe_i32 v{V_KFT}, v{V_LANE}, 5, 1")
    e(f"v_and_b32 v{V_KH}, 2048, v{V_KFT}")
    e(f"v_add_u32 v{V_KH}, {(KSTG - 1024) // 4}, v{V_KH}")
    e(f"v_add_lshl_u32 v{V_KG}, v{V_KG}, v{V_KH}, 2")
    e(f"v_add_u32 v{V_KH}, -1, v{V_T2}")
    e(f"v_xor_b32 v{V_KH}, v{V_KH}, v{V_T2}")
    e(f"v_and_b32 v{V_KH}, 7, v{V_KH}")
    e(f"v_lshlrev_b32 v{V_KH}, 4, v{V_KH}")
    e(f"v_xor_b32 v{V_KH}, v{V_KH}, v{V_KG}")
    e(f"v_lshl_add_u32 v{V_T}, s{S_W}, 2, v{V_T}")
    e(f"v_and_b32 v{V_KST}, s{S_T2}, v{V_KFT}")
    e(f"v_lshl_add_u32 v{V_KST}, v{V_T}, 13, v{V_KST}")
    e(f"v_lshl_add_u32 v{V_T2}, v{V_T2}, 4, s{S_N}")
    e(f"v_add_u32 v{V_KST}, v{V_KST}, v{V_T2}")
    e(f"v_and_b32 v{V_KT}, s{S_KM2}, v{V_KFT}")
    e(f"s_sub_u32 s{S_N}, s{S_INFO}, 3456")
    e(f"v_lshl_add_u32 v{V_T2}, v{V_T}, 2, s{S_N}")
    e(f"v_add_u32 v{V_KT}, v{V_KT}, v{V_T2}")
    e(f"v_lshl_add_u32 v{V_T}, v{V_T}, 1, -1")
    e(f"v_bfe_i32 v{V_T2}, v{V_LANE}, 2, 1")
    e(f"v_and_b32 v{V_T}, v{V_T}, v{V_T2}")
    e(f"v_and_b32 v{V_T2}, 7, v{V_LANE}")
    e(f"v_add_u32 v{V_T}, v{V_T}, v{V_T2}")
    e(f"v_mul_u32_u24 v{V_T}, 1152, v{V_T}")
    e(f"v_add_u32 v{V_KT}, v{V_KT}, v{V_T}")
    if "st" not in o: e(f"s_lshl3_add_u32 s{S_N}, s{S_PART}, s{S_W}")
    if "st" not in o: e(f"s_mul_i32 s{S_N}, s{S_N}, 11")
    if "st" not in o: e(f"v_add_u32 v{V_KFT}, s{S_N}, v{V_LANE}")
    if "st" not in o: e(f"v_min_u32 v{V_KFT}, 255, v{V_KFT}")
    if "st" not in o: e(f"s_lshl_b32 s{S_N}, s{S_G}, 8")
    if "st" not in o: e(f"v_add_lshl_u32 v{V_KFT}, v{V_KFT}, s{S_N}, 7")
    e(f"s_mov_b32 s{S_INFO}, 0")
    for p_, job in enumerate(JOBS):
        a0 = job[0][0]; l0 = job[0][1] - job[0][0]
        a1 = job[1][0] - l0 if len(job) > 1 else a0
        n = sum(b - a for a, b in job)
        e(f"s_cmp_eq_u32 s{S_PART}, {p_}")
        e(f"s_cselect_b32 s{S_INFO}, {a0 | (l0 << 8) | (a1 << 16) | (n << 24)}, s{S_INFO}")
    assert all(sum(b - a for a, b in job) == 8 for job in JOBS)
    e(f"s_cmp_eq_u32 s{S_PART}, 3")
    e(f"s_cselect_b32 s{S_INFO}, {(8 << 8) | (248 << 16) | (16 << 24)}, s{S_INFO}")
    e(f"s_bfe_u32 s{S_N}, s{S_INFO}, {8 | (8 << 16)}")
    e(f"s_bfe_i32 s{S_T2}, s{S_INFO}, {16 | (8 << 16)}")
    e(f"s_and_b32 s{S_ONES}, s{S_INFO}, 255")
    e(f"s_add_u32 s{S_IB}, s{S_W}, 8")
    e(f"s_cmp_lt_u32 s{S_W}, s{S_N}")
    e(f"s_cselect_b32 s{S_TA}, s{S_ONES}, s{S_T2}")
    e(f"s_cmp_lt_u32 s{S_IB}, s{S_N}")
    e(f"s_cselect_b32 s{S_TB}, s{S_ONES}, s{S_T2}")
    e(f"s_add_u32 s{S_TA}, s{S_TA}, s{S_W}")
    e(f"s_add_u32 s{S_TB}, s{S_TB}, s{S_IB}")
    e(f"s_lshr_b32 s{S_INFO}, s{S_INFO}, 24")
    e(f"s_cmp_lt_u32 s{S_IB}, s{S_INFO}")
    e(f"s_cselect_b32 s{S_BM}, 0xffff0000, 0")
    e(f"s_cselect_b32 s{S_TB}, s{S_TB}, s{S_TA}")
    e(f"s_lshr_b32 s{S_N}, s{S_G}, 3")
    e(f"s_add_u32 s{S_N}, s{S_N}, 36")
    e(f"s_sub_u32 s{S_T2}, s{S_N}, s{S_TB}")
    e(f"s_sub_u32 s{S_N}, s{S_N}, s{S_TA}")
    for r in (S_N, S_T2):
        e(f"s_mul_i32 s{S_ONES}, s{r}, 57")
        e(f"s_lshr_b32 s{S_ONES}, s{S_ONES}, 9")
        e(f"s_mul_i32 s{S_ONES}, s{S_ONES}, 9")
        e(f"s_sub_u32 s{r}, s{r}, s{S_ONES}")
        e(f"s_cmp_lt_u32 s{r}, 4")
        e(f"s_cselect_b32 s{S_ONES}, 11, 0")
        e(f"s_lshl1_add_u32 s{r}, s{r}, s{S_ONES}")
    e(f"s_min_u32 s{S_NX}, s{S_N}, s{S_T2}")
    e(f"s_max_u32 s{S_NY}, s{S_N}, s{S_T2}")
    e(f"s_cmp_gt_u32 s{S_N}, s{S_T2}")
    e(f"s_cselect_b32 s{S_ONES}, s{S_TB}, s{S_TA}")
    e(f"s_cselect_b32 s{S_TB}, s{S_TA}, s{S_TB}")
    e(f"s_mov_b32 s{S_TA}, s{S_ONES}")
    e(f"s_cselect_b32 s{S_IA}, s{S_IB}, s{S_W}")
    e(f"s_cselect_b32 s{S_IB}, s{S_W}, s{S_IB}")
    if o.get("la2", 0) == 1:
        assert [j[0][0] > 0 for j in JOBS] == [False, True, True]
        for p_, job in enumerate(JOBS):
            e(f"s_cmp_eq_u32 s{S_PART}, {p_}")
            e(f"s_cselect_b32 s{S_N}, {job[0][1] - job[0][0]}, s{S_N}")
        e(f"s_min_u32 s{S_T2}, s{S_PART}, 1")
        for r in (S_IA, S_IB):
            e(f"s_cmp_ge_u32 s{r}, s{S_N}"); e(f"s_addc_u32 s{r}, s{r}, s{S_T2}")
    e(f"v_mul_u32_u24 v{V_T}, 1152, v{V_LANE}")
    e(f"s_mul_i32 s{S_N}, s{S_TA}, {64*1152}")
    e(f"s_lshl4_add_u32 s{S_N}, s{S_G}, s{S_N}")
    e(f"s_cmp_eq_u32 s{S_PART}, 4")
    e(f"s_cselect_b32 s{S_T2}, 0x80000000, 0")
    e(f"s_or_b32 s{S_N}, s{S_N}, s{S_T2}")
    e(f"v_add_u32 v{V_XA}, s{S_N}, v{V_T}")
    e(f"s_mul_i32 s{S_N}, s{S_TB}, {64*1152}")
    e(f"s_lshl4_add_u32 s{S_N}, s{S_G}, s{S_N}")
    e(f"s_andn2_b32 s{S_T2}, 0x80000000, s{S_BM}")
    e(f"s_or_b32 s{S_N}, s{S_N}, s{S_T2}")
    e(f"s_add_u32 s{S_N}, s{S_N}, 16")
    e(f"v_add_u32 v{V_XB}, s{S_N}, v{V_T}")
    return atoms(L)

def stage_items(sr, off, tag, touch=None):
    ld = lambda v: (f"buffer_load_dwordx4 v{v}, s[{sr}:{sr+3}], 0 offen lds", tag)
    tc = lambda v: [f"buffer_load_dword v{V_DUM}, v{v}, s[{touch}:{touch+3}], 0 offen"] if touch else []
    R = [[f"s_add_u32 m0, s{S_KM}, {off}", "s_nop 0", ld(V_K1)]]
    if touch: R.append(tc(V_K1))
    R.append([f"s_add_u32 m0, s{S_KM2}, {off}", "s_mov_b64 exec, 0xffff", ld(V_K2), "s_mov_b64 exec, -1"])
    if off: R[0] += [f"s_sub_u32 s{S_N}, s{S_MH}, 1", f"v_lshl_or_b32 v{V_K2}, s{S_N}, 31, v{V_K2}"]
    return R

def cold_items(m=15):
    R = stage_items(S_K, 0, "kst", S_V if m & 2 else None) if m & 1 else []
    if m & 4: R.append([f"s_add_u32 s{S_N}, s{S_COL}, s{S_ROW[8]}",
              f"buffer_load_dword v{V_DUM}, v{V_O2}, s[{S_W2}:{S_W2+3}], s{S_N} offen"])
    if m & 8: R.append([f"s_lshl_b32 s{S_N}, s{S_G}, 15",
              f"buffer_load_dword v{V_DUM}, v{V_KFT}, s[{S_KF}:{S_KF+3}], s{S_N} offen"])
    return R

def touches(o, A=S_N, B=S_T2):
    m = o.get("em", 7)
    L = [f"s_lshr_b32 s{A}, s2, 3", f"s_lshl3_add_u32 s{A}, s{A}, s{S_W}", f"s_mul_i32 s{A}, s{A}, 72",
         f"s_and_b32 s{B}, s2, 7", f"s_add_u32 s{A}, s{A}, s{B}", f"s_lshl_b32 s{A}, s{A}, 7",
         f"v_bfe_u32 v{V_T}, v{V_LANE}, 1, 3", f"v_lshl_add_u32 v{V_T}, v{V_T}, 3, v{V_T}", f"v_and_b32 v{V_KFT}, 1, v{V_LANE}",
         f"v_add_lshl_u32 v{V_T}, v{V_T}, v{V_KFT}, 7",
         f"s_lshl3_add_u32 s{B}, s{S_PART}, s{S_W}", f"s_mul_i32 s{B}, s{B}, 11",
         f"v_add_u32 v{V_KFT}, s{B}, v{V_LANE}", f"v_min_u32 v{V_KFT}, 255, v{V_KFT}", f"v_lshlrev_b32 v{V_KFT}, 7, v{V_KFT}",
         f"s_lshl_b32 s{B}, s{S_G}, 15",
         "s_mov_b64 exec, 0xffff"]
    if m & 1: L.append(f"buffer_load_dword v{V_DUM}, v{V_T}, s[{S_K}:{S_K+3}], s{A} offen")
    if m & 2: L.append(f"buffer_load_dword v{V_DUM}, v{V_T}, s[{S_V}:{S_V+3}], s{A} offen")
    L.append("s_mov_b64 exec, 0x7ff")
    if m & 4: L.append(f"buffer_load_dword v{V_DUM}, v{V_KFT}, s[{S_KF}:{S_KF+3}], s{B} offen")
    L.append("s_mov_b64 exec, -1")
    return L

def stouch_setup():
    return [f"s_lshr_b32 s{S_KO}, s2, 3", f"s_lshl3_add_u32 s{S_KO}, s{S_KO}, s{S_W}", f"s_mul_i32 s{S_KO}, s{S_KO}, 72",
            f"s_and_b32 s{S_FO}, s2, 7", f"s_add_u32 s{S_KO}, s{S_KO}, s{S_FO}", f"s_lshl_b32 s{S_KO}, s{S_KO}, 7",
            f"s_lshl3_add_u32 s{S_FO}, s{S_PART}, s{S_W}", f"s_mul_i32 s{S_FO}, s{S_FO}, 11", f"s_min_u32 s{S_FO}, s{S_FO}, 245",
            f"s_lshl_b32 s{S_DUM}, s{S_G}, 8", f"s_add_u32 s{S_FO}, s{S_FO}, s{S_DUM}", f"s_lshl_b32 s{S_FO}, s{S_FO}, 7"]

def stouch(o, k):
    ld = lambda sr, so, off: f"s_buffer_load_dword s{S_DUM}, s[{sr}:{sr+3}], s{so} offset:{off}"
    if k == "F": return [ld(S_KF, S_FO, 128*i) for i in range(11)]
    return [ld(sr, S_KO, 1152*r + 128*h) for r in range(8) for h in o.get("sth", (0, 1)) for sr in (S_K, S_V)]

def place(items, j0, j1, work):
    for i, x in enumerate(items): work.setdefault(4*(j0 + (i*(j1 - j0)) // len(items)) - 2, []).insert(0, x)

def early_items(o):
    m = o.get("em", 7)
    K = sum(stage_items(S_K, 0, None), []) if m & 1 else []
    if o.get("vt", 1):
        V = [f"s_lshr_b32 s{S_N}, s2, 3", f"s_lshl3_add_u32 s{S_N}, s{S_N}, s{S_W}", f"s_mul_i32 s{S_N}, s{S_N}, 72",
             f"s_and_b32 s{S_T2}, s2, 7", f"s_add_u32 s{S_N}, s{S_N}, s{S_T2}", f"s_lshl_b32 s{S_N}, s{S_N}, 7",
             f"v_bfe_u32 v{V_T}, v{V_LANE}, 1, 3", f"v_mul_u32_u24 v{V_T}, 9, v{V_T}", f"v_and_b32 v{V_T2}, 1, v{V_LANE}",
             f"v_add_lshl_u32 v{V_T}, v{V_T}, v{V_T2}, 7", "s_mov_b64 exec, 0xffff",
             f"buffer_load_dword v{V_DUM}, v{V_T}, s[{S_V}:{S_V+3}], s{S_N} offen", "s_mov_b64 exec, -1"]
    else:
        V = [f"buffer_load_dword v{V_DUM}, v{V_K1}, s[{S_V}:{S_V+3}], 0 offen", "s_mov_b64 exec, 0x1fff",
             f"buffer_load_dword v{V_DUM}, v{V_K2}, s[{S_V}:{S_V+3}], 0 offen", "s_mov_b64 exec, -1"]
    F = sum(cold_items(8), [])
    return [K, V if m & 2 else [], F if m & 4 else []]

def kv_compute(g):
    def halo():
        g.wait(vm=["sh", "tK"])
        g.e("s_mov_b32 vcc_lo, 0xfefefefe"); g.e("s_mov_b32 vcc_hi, vcc_lo")
        g.e(f"v_cndmask_b32 v{KR}, v{V_HG}, v{KR}, vcc")
        for r in (1, 2): g.e(f"v_cndmask_b32_dpp v{KR+r}, v{V_HG}, v{KR+r}, vcc row_shl:{r} row_mask:0xf bank_mask:0xf")
    L = [halo]; e = L.append
    up = lambda d, r, h: f"v_and_b32 v{d}, 0xffff0000, v{r}" if h else f"v_lshlrev_b32 v{d}, 16, v{r}"
    if g.o.get("kf", 1):
        U = [52, 53, 54, 55]
        for h in range(2):
            for j in range(4): e(up(KC + j, SH + 2*h + j//2, j % 2))
            e(up(U[0], KR, h))
            for i in range(11):
                if i < 10: e(up(U[(i + 1) % 2], KR + i + 1, h))
                for j in range(4):
                    t = i - 3 + j
                    if 0 <= t < 8: e(f"{'v_mul_f32' if j == 3 else 'v_fmac_f32'} v{KA+t}, v{KC+j}, v{U[i % 2]}")
            for t0 in (0, 4):
                for t in range(t0, t0 + 4): e(up(U[t % 4], VR + t, h))
                for t in range(t0, t0 + 4): e(f"v_mul_f32 v{KA+t}, v{KA+t}, v{U[t % 4]}")
            O = KA if h else PKR + 4
            for t in range(4): e(f"v_cvt_pk_bf16_f32 v{O+t}, v{KA+2*t}, v{KA+2*t+1}")
        return L
    for h in range(2):
        for j in range(4):
            w = SH + 2*h + j//2
            if h == 0: e(f"v_lshrrev_b32 v{KC+j}, 16, v{w}" if j % 2 else f"v_and_b32 v{KC+j}, 0xffff, v{w}")
            else: e(f"v_and_b32 v{KC+j}, 0xffff0000, v{w}" if j % 2 else f"v_lshlrev_b32 v{KC+j}, 16, v{w}")
        for j in (3, 2, 1, 0):
            for t in range(8):
                if j == 3: e(f"v_dot2_f32_bf16 v{KA+t}, v{KR+t+3-j}, v{KC+j}, 0")
                else: e(f"v_dot2c_f32_bf16 v{KA+t}, v{KR+t+3-j}, v{KC+j}")
        for t0 in (0, 4):
            for t in range(t0, t0 + 4):
                e(f"v_and_b32 v{KC+t%4}, 0xffff0000, v{VR+t}" if h else f"v_lshlrev_b32 v{KC+t%4}, 16, v{VR+t}")
            for t in range(t0, t0 + 4): e(f"v_mul_f32 v{KA+t}, v{KA+t}, v{KC+t%4}")
        O = KA if h else PKR + 4
        for t in range(4): e(f"v_cvt_pk_bf16_f32 v{O+t}, v{KA+2*t}, v{KA+2*t+1}")
    return L

def kv_store():
    return [[(f"buffer_store_dwordx4 v[{PKR+4}:{PKR+7}], v{V_KST}, s[{S_WS}:{S_WS+3}], s{S_KVO} offen sc1", "kv0"),
             f"s_add_u32 s{S_KVO}, s{S_KVO}, 4096"],
            [(f"buffer_store_dwordx4 v[{KA}:{KA+3}], v{V_KST}, s[{S_WS}:{S_WS+3}], s{S_KVO} offen sc1", "kv1")]]

def setup4(o):
    L = []; e = L.append
    A, B = S_GC, S_GC + 1
    e(f"v_bfrev_b32 v{V_OOB}, 1")
    assert not o.get("xe")
    e(f"s_lshr_b32 s{A}, s{S_G}, 3")
    e(f"s_cmp_eq_u32 s{A}, 8")
    e(f"s_cselect_b32 s{A}, s{S_W}, s{A}")
    e(f"s_cselect_b32 s{B}, 0, s{S_W}")
    e(f"s_lshl_b32 s{A}, s{A}, 7")
    e(f"s_add_u32 s{A}, s{A}, {RDY_OFF}")
    e(f"v_and_b32 v{V_L4}, 31, v{V_LANE}")
    e(f"s_cmp_eq_u32 s{B}, 0")
    e(f"s_cselect_b32 s{A}, s{A}, 0x80000000")
    e(f"s_cselect_b32 s{S_ONES}, s{S_TOK}, 0")
    e(f"v_lshl_add_u32 v{V_L4}, v{V_L4}, 2, s{A}")
    e(f"s_mul_i32 s{S_H2}, s{S_W}, {WSTR}")
    e(f"s_lshl3_add_u32 s{S_CH}, s{S_G}, s{S_W}")
    e(f"s_lshl_b32 s{S_CH}, s{S_CH}, 12")
    e(f"v_and_b32 v{V_CL}, v{V_OOB}, v{V_XA}")
    e(f"v_lshl_or_b32 v{V_CL}, v{V_LANE}, 4, v{V_CL}")
    e(f"v_lshl_add_u32 v{V_YW}, v{V_LANE}, 2, s{S_H2}")
    e(f"s_add_u32 s{A}, s{S_H2}, 4608")
    e(f"v_lshl_add_u32 v{V_KV}, v{V_LANE}, 1, s{A}")
    e(f"v_lshrrev_b32 v{V_T2}, 4, v{V_LANE}")
    e(f"v_bfe_u32 v{V_AF}, v{V_LANE}, 2, 2")
    e(f"v_lshl_add_u32 v{V_T2}, v{V_T2}, 3, v{V_AF}")
    e(f"v_and_b32 v{V_BF}, 3, v{V_LANE}")
    e(f"v_add_u32 v{V_AF}, v{V_T2}, v{V_BF}")
    e(f"s_add_u32 s{A}, s{S_H2}, {256 - 24}")
    e(f"v_lshl_add_u32 v{V_AF}, v{V_AF}, 3, s{A}")
    e(f"v_lshlrev_b32 v{V_BF}, 2, v{V_BF}")
    e(f"v_sub_u32 v{V_BF}, v{V_BF}, v{V_T2}")
    e(f"s_add_u32 s{A}, s{S_H2}, {4608 + 24 - 32}")
    e(f"v_lshl_add_u32 v{V_BF}, v{V_BF}, 3, s{A}")
    e(f"s_lshl_b32 s{A}, s{S_QW}, 4")
    e(f"s_lshr_b64 s[{S_DR}:{S_DR+1}], s[{S_DR}:{S_DR+1}], s{A}")
    e(f"s_lshr_b64 s[{S_DR+2}:{S_DR+3}], s[{S_DR+2}:{S_DR+3}], s{A}")
    e(f"s_and_b32 s{S_D}, s{S_DR}, 0xffff")
    e(f"s_and_b32 s{S_D2}, s{S_DR+2}, 0xffff")
    e(f"s_lshl_b32 s{A}, s{S_TA}, 10")
    e(f"v_add_u32 v{V_RA}, s{A}, v{V_CL}")
    e(f"v_ashrrev_i32 v{V_SA}, 1, v{V_RA}")
    e(f"s_lshl_b32 s{A}, s{S_TB}, 10")
    e(f"s_andn2_b32 s{B}, 0x80000000, s{S_BM}")
    e(f"s_or_b32 s{A}, s{A}, s{B}")
    e(f"v_lshl_add_u32 v{V_RB}, v{V_LANE}, 4, s{A}")
    e(f"v_ashrrev_i32 v{V_SB}, 1, v{V_RB}")
    e(f"v_add_u32 v{V_RB}, 0x8000, v{V_RB}")
    e(f"s_sub_u32 s{A}, s{S_TB}, s{S_TA}")
    e(f"v_bfe_u32 v{V_P}, v{V_LANE}, 4, 1")
    e(f"v_mul_i32_i24 v{V_FA}, s{A}, v{V_P}")
    e(f"v_add_u32 v{V_FA}, s{S_TA}, v{V_FA}")
    if o.get("xe", 0):
        e(f"v_mul_u32_u24 v{V_RDY}, 57, v{V_FA}")
        e(f"v_lshrrev_b32 v{V_RDY}, 9, v{V_RDY}")
        e(f"v_mul_u32_u24 v{V_RDY}, 9, v{V_RDY}")
        e(f"v_sub_u32 v{V_RDY}, v{V_FA}, v{V_RDY}")
        e(f"v_cmp_gt_u32 vcc, s{S_ONES}, v{V_LANE}")
    e(f"v_mul_u32_u24 v{V_FA}, {9*256}, v{V_FA}")
    if o.get("xe", 0):
        e(f"v_lshl_add_u32 v{V_RDY}, v{V_RDY}, 8, v{V_FA}")
        e(f"v_and_b32 v{V_T2}, 7, v{V_LANE}")
        e(f"v_lshl_add_u32 v{V_RDY}, v{V_T2}, 2, v{V_RDY}")
        e(f"v_add_u32 v{V_RDY}, {FLAG_OFF}, v{V_RDY}")
        e(f"v_cndmask_b32 v{V_L4}, v{V_RDY}, v{V_L4}, vcc")
        e(f"s_mov_b32 s{S_ONES}, s{S_TOK}")
    e(f"s_lshr_b32 s{S_FB}, s{S_G}, 3")
    for r, N in ((A, S_NX), (B, S_NY)):
        e(f"s_lshr_b32 s{r}, s{N}, 1")
        e(f"s_cmp_lt_u32 s{S_FB}, s{r}")
        e(f"s_cselect_b32 s{S_SO}, 9, 0")
        e(f"s_sub_u32 s{r}, s{S_SO}, s{r}")
    e(f"s_sub_u32 s{B}, s{B}, s{A}")
    e(f"s_xor_b32 s{S_SO}, s{S_NX}, s{S_NY}")
    e(f"v_and_b32 v{V_T2}, s{S_SO}, v{V_P}")
    e(f"v_mul_i32_i24 v{V_P}, s{B}, v{V_P}")
    e(f"v_add_u32 v{V_P}, s{A}, v{V_P}")
    e(f"v_xor_b32 v{V_T2}, s{S_NX}, v{V_T2}")
    e(f"v_xnor_b32 v{V_T2}, v{V_LANE}, v{V_T2}")
    e(f"v_bfe_i32 v{V_T2}, v{V_T2}, 0, 1")
    e(f"v_and_b32 v{V_P}, v{V_T2}, v{V_P}")
    e(f"v_add_u32 v{V_P}, s{S_FB}, v{V_P}")
    e(f"v_lshl_add_u32 v{V_FA}, v{V_P}, 8, v{V_FA}")
    e(f"v_and_b32 v{V_T2}, 7, v{V_LANE}")
    e(f"v_lshl_add_u32 v{V_FA}, v{V_T2}, 2, v{V_FA}")
    e(f"s_mov_b32 s{S_FB}, {FLAG_OFF}")
    if o.get("la2", 0):
        for V, T, I in ((V_XO, S_TA, S_IA), (V_XS, S_TB, S_IB)):
            e(f"s_min_u32 s{A}, s{T}, 1")
            e(f"s_mul_i32 s{A}, s{A}, 3")
            e(f"s_lshl4_add_u32 s{B}, s{I}, {SPB + 4 - 4352}")
            e(f"v_subrev_u32 v{V_T2}, s{A}, v{V_LANE}")
            e(f"v_lshl_add_u32 v{V}, v{V_LANE}, 2, s{B}")
            e(f"v_ashrrev_i32 v{V_T2}, 31, v{V_T2}")
            e(f"v_and_b32 v{V}, v{V}, v{V_T2}")
            e(f"v_add_u32 v{V}, 4352, v{V}")
    e(f"s_lshl_b32 s{S_GO}, s{S_G}, 15")
    e(f"s_mov_b32 s{S_SO}, {STAT_OFF}")
    e(f"s_add_u32 s{S_XO}, s{S_GO}, {XT_OFF}")
    for j in range(NP - 1, 0, -1): e(f"s_add_u32 s{S_PO[j]}, s{S_GO}, {j*72*32768}")
    for c in range(4):
        e(f"s_lshl_b32 s{S_BV+2*c}, s{S_B2+c}, 16")
        e(f"s_and_b32 s{S_BV+2*c+1}, s{S_B2+c}, 0xffff0000")
    return [[f"s_movk_i32 s{S_LO}, 0x3f80", f"s_lshl_b32 s{S_HI}, s{S_LO}, 16"]] + atoms(L)

def conv_loads(g):
    fl = g.o.get("hotfl", "")
    R = []
    vc = [V_CL, V_T, V_T2, V_T]
    for c in (3, 2, 1, 0):
        R.append([f"buffer_load_dwordx4 v{vc[c]}, s[{S_WS}:{S_WS+3}], s{S_T} offen offset:{1024*c} {fl} lds"])
    R[0] = [f"s_cmp_eq_u32 s{S_PART}, 3", f"s_cselect_b32 s{S_T}, 0x80000000, 0", f"v_or_b32 v{V_T}, s{S_T}, v{V_CL}",
            f"s_cselect_b32 s{S_T}, {32768 - 2048}, 0", f"v_add_u32 v{V_T2}, s{S_T}, v{V_CL}", f"s_add_u32 m0, s{S_H2}, 4608", f"s_add_u32 s{S_T}, s{S_CH}, {KVT_OFF}"] + R[0]
    R[3].append(f"s_add_u32 m0, s{S_H2}, 256")
    for c in range(4):
        R.append([f"buffer_load_dwordx4 v{vc[c]}, s[{S_KF}:{S_KF+3}], s{S_CH} offen offset:{1024*c} lds"])
    R[7].append(f"s_mov_b32 m0, s{S_H2}")
    z = f"buffer_load_dword v{V_OOB}, s[{S_KF}:{S_KF+3}], 0 offen lds"
    R.append([z, f"s_add_u32 m0, s{S_H2}, 4352"])
    R.append([(z, "cl")])
    return R

def tile_list(g, LD, v, vs):
    fl = g.o.get("ldflags", "sc1")
    L = [f"buffer_load_dwordx2 v[{LD+32}:{LD+33}], v{vs}, s[{S_WS}:{S_WS+3}], s{S_SO} offen {g.o.get('sfl', '')}"]
    X = XA if LD == LDA else XB
    if not g.o.get("xe", 0): L.append(f"buffer_load_dwordx4 v[{X}:{X+3}], v{v}, s[{S_WS}:{S_WS+3}], s{S_XO} offen {fl}")
    for j in range(NP): L.append(f"buffer_load_dwordx4 v[{LD+4*j}:{LD+4*j+3}], v{v}, s[{S_WS}:{S_WS+3}], s{S_PO[j]} offen {fl}")
    for k in g.o.get("drop", []): L[k] = "s_nop 0"
    return L

def tile_loads(g, LD, v, vs):
    for x in tile_list(g, LD, v, vs): g.e(x)

def poll(g, tag=None):
    g.e(f"buffer_load_dword v{V_P}, v{V_FA}, s[{S_WS}:{S_WS+3}], s{S_FB} offen sc1", tag)

def conv_job(g, job, name, ev):
    o = g.o
    tiles = []; allt = []
    two = job == [(0, 8), (16, 24)]
    BB = 144 if two else 224
    ar = lambda be: AF + 4*(be - 4 if two and be >= 8 else be)
    for a, b in job:
        if a > 0 and not two: allt.append(a - 1)
        for t in range(a, b):
            tiles.append(t); allt.append(t)
    ai = {t: CACC + 4*i for i, t in enumerate(allt)}
    tmax = max(allt)
    M = []
    ch = o.get("ch", 1); NB = o.get("nb", 6)
    for n0 in range(tmax, -1, -2*ch):
        for n1 in (n0, n0 - 1):
            ns = [n for n in range(n1, n1 - 2*ch, -2) if n >= 0]
            ts = sorted(t for t in allt if (t - n1) % 2 == 0)
            if o.get("trev"): ts.reverse()
            for t in ts:
                for n in ns:
                    if t >= n: M.append((t, n, (t - n)//2))
    if two:
        M0 = [m_ for m_ in M if m_[0] < 8]
        M = [x for (t, n, be) in M0 for x in ((t, n, be), (t + 16, n + 16, be + 8))]
    order = []
    for (t, n, be) in M:
        for f in (("B", n), ("A", be)):
            if f not in order: order.append(f)
    bslot = {}
    nb = 0
    for f in order:
        if f[0] == "B":
            bslot[f[1]] = BB + 4*(nb % NB); nb += 1
    lastuse = {}
    for i, (t, n, be) in enumerate(M): lastuse[n] = i
    bl = [f[1] for f in order if f[0] == "B"]
    def reads(f):
        if f[0] == "A":
            r = ar(f[1]); off = 256*f[1]
            return [f"ds_read_b64_tr_b16 v[{r}:{r+1}], v{V_AF} offset:{off}",
                    f"ds_read_b64_tr_b16 v[{r+2}:{r+3}], v{V_AF} offset:{off+32}"]
        r = bslot[f[1]]; off = 128*f[1] + 32
        return [f"ds_read_b64_tr_b16 v[{r}:{r+1}], v{V_BF} offset:{off}",
                f"ds_read_b64_tr_b16 v[{r+2}:{r+3}], v{V_BF} offset:{off-32}"]
    issued = 0
    fu = {}
    for i, (t, n, be) in enumerate(M):
        fu.setdefault(("B", n), i); fu.setdefault(("A", be), i)
    MAXF = o.get("ahead", 6)
    started = set()
    waited = -1; kvr = 0
    for i, (t, n, be) in enumerate(M):
        need = max(order.index(("B", n)), order.index(("A", be)))
        nr = 0
        while issued < 2*len(order) and issued // 2 <= max(need, waited) + MAXF:
            f = order[issued // 2]
            if "la" in o and i and not (nr < 1 or fu[f] <= i or (nr < 2 and fu[f] <= i + o["la"])): break
            if f[0] == "B":
                k = bl.index(f[1])
                if k >= NB and lastuse[bl[k - NB]] >= i:
                    break
            if not o.get("nocr"): g.e(reads(f)[issued % 2])
            issued += 1; nr += 1
        assert issued // 2 > need
        for k in (i, i - len(M)):
            for f in ev.get(k, []): f(name)
        if need > waited:
            g.e(f"s_waitcnt lgkmcnt({min(15, issued - 2 - 2*need)})")
            waited = need
        a = ai[t]; bs = bslot[n]; af = ar(be)
        c = f"v[{a}:{a+3}]" if t in started else "0"
        started.add(t)
        if not o.get("nocm"): g.e(f"v_mfma_f32_16x16x32_bf16 v[{a}:{a+3}], v[{bs}:{bs+3}], v[{af}:{af+3}], {c}")
        if (o.get("la2", 0) or o.get("e2", 2) & 1) and need == len(order) - 1 and not kvr:
            kvr = 1
            for k, t_ in enumerate(tiles): g.e(f"ds_read_u16 v{LDB+16+k}, v{V_KV} offset:{128*t_}")
    if o.get("stamps"): g.stamp()
    if o.get("la2", 0):
        fin = sorted(allt, key=lambda t: max(i for i, m_ in enumerate(M) if m_[0] == t))
        g.e("s_waitcnt lgkmcnt(0)")
        g.e(f"s_bfm_b64 s[{S_GX}:{S_GX+1}], 1, 63")
        ft = [t for t in fin if t in tiles]
        sh = lambda t, z: g.e(f"v_add_f32 v{ai[t]+z}, v{ai[t]+z+1}, v{ai[t]+z} wave_shr:1 row_mask:0xf bank_mask:0xf bound_ctrl:0")
        for t in ft: g.e(f"v_dot2c_f32_bf16 v{ai[t]}, s{S_D}, v{LDB+16+tiles.index(t)}")
        for t in fin: sh(t, 2)
        for t in fin: sh(t, 1)
        g.e(f"s_mov_b64 exec, s[{S_GX}:{S_GX+1}]")
        for t in fin:
            if t + 1 in tiles: g.e(f"ds_write_b128 v{V_YW}, v[{ai[t]}:{ai[t]+3}] offset:{SPB + 16*tiles.index(t + 1) - 252}")
        g.e("s_mov_b64 exec, -1")
        for k, t in enumerate(ft):
            sh(t, 0)
            if k % 2: g.e(f"ds_write2st64_b32 v{V_YW}, v{ai[ft[k-1]]}, v{ai[t]} offset0:{tiles.index(ft[k-1])} offset1:{tiles.index(t)}")
        if len(ft) % 2: g.e(f"ds_write_b32 v{V_YW}, v{ai[ft[-1]]} offset:{256*tiles.index(ft[-1])}")
        return
    KVV = 50
    KX = LDB + 16 if kvr else AF + 40
    for i, t in enumerate(tiles):
        if not kvr: g.e(f"ds_read_u16 v{LDB+16+i}, v{V_KV} offset:{128*t}")
    if kvr:
        fin = sorted(tiles, key=lambda t: max(i for i, m_ in enumerate(M) if m_[0] == t))
        g.e("s_waitcnt lgkmcnt(0)")
        for t in fin: g.e(f"v_dot2c_f32_bf16 v{ai[t]}, s{S_D}, v{KX+tiles.index(t)}")
    eo = o.get("eo", 1)
    if not eo: ev["end"][0](name)
    else:
        for f in ev.get("e0", []): f(name)
        if not kvr: g.e("s_nop 2")
    H2 = AF; H1 = AF + 16; Y = AF + 32
    idx = {t: i for i, t in enumerate(allt)}
    m = "row_mask:0xf bank_mask:0xf"
    def level(dst, src, zc, ts):
        for t in ts:
            if t in tiles and t - 1 in allt:
                g.e(f"v_add_f32 v{dst+idx[t]}, v{src(t-1)}, v{ai[t]+zc} wave_ror:1 row_mask:0x1 bank_mask:0x1")
        for t in ts:
            bc = "" if (t in tiles and t - 1 in allt) else " bound_ctrl:0"
            g.e(f"v_add_f32 v{dst+idx[t]}, v{src(t)}, v{ai[t]+zc} wave_shr:1 {m}{bc}")
    level(H2, lambda t: ai[t] + 3, 2, allt)
    if not kvr:
        g.e("s_waitcnt lgkmcnt(0)")
        for i, t in enumerate(tiles): g.e(f"v_dot2c_f32_bf16 v{ai[t]}, s{S_D2 if two and t >= 16 else S_D}, v{LDB+16+i}")
    level(H1, lambda t: H2 + idx[t], 1, allt)
    level(Y, lambda t: H1 + idx[t], 0, tiles)
    for i, t in enumerate(tiles):
        if not o.get("e2", 2) & 2 or (i == len(tiles) - 1 and i % 2 == 0): g.e(f"ds_write_b32 v{V_YW}, v{Y+idx[t]} offset:{256*i}")
        elif i % 2: g.e(f"ds_write2st64_b32 v{V_YW}, v{Y+idx[tiles[i-1]]}, v{Y+idx[t]} offset0:{i-1} offset1:{i}")

def fin_l(LD, X):
    L = []; e = L.append
    s = LD + 16; xn = s + 8; st = LDA + 32
    for c in range(4):
        e(f"v_lshlrev_b32 v{xn+2*c}, 16, v{X+c}")
        e(f"v_and_b32 v{xn+2*c+1}, 0xffff0000, v{X+c}")
    for c in range(8): e(f"v_add_f32 v{s+c}, s{(S_BV if LD == LDA else S_BW)+c}, v{xn+c}")
    for c in range(8): e(f"v_fma_f32 v{xn+c}, v{xn+c}, v{st}, v{st+1}")
    for j in range(NP):
        for c in range(4):
            e(f"v_dot2c_f32_bf16 v{s+2*c}, s{S_LO}, v{LD+4*j+c}")
            e(f"v_dot2c_f32_bf16 v{s+2*c+1}, s{S_HI}, v{LD+4*j+c}")
    return L

def fin_1(g, LD, X, R, waits):
    for x in fin_l(LD, X): g.e(x)
    g.e("s_nop 2")

def fin_2(g, X, R):
    e = g.e
    s = (LDA if X == XA else LDB) + 16; xn = s + 8; y = R + 16
    if g.o.get("la2", 0):
        for c in range(4): e(f"v_pk_add_f32 v[{y+2*c}:{y+2*c+1}], v[{y+2*c}:{y+2*c+1}], v[{R+2*c}:{R+2*c+1}]")
    for c in range(4):
        e(f"v_pk_fma_f32 v[{s+2*c}:{s+2*c+1}], v[{xn+2*c}:{xn+2*c+1}], v[{y+2*c}:{y+2*c+1}], v[{s+2*c}:{s+2*c+1}]")
    for c in range(4):
        e(f"v_cvt_pk_bf16_f32 v{X+c}, v{s+2*c}, v{s+2*c+1}")

def fin_a(g, X, si, R):
    e = g.e
    s = R; y = R + 16
    e(f"s_lshl_b32 s{S_T2}, s{si}, 8")
    e(f"v_lshl_add_u32 v{V_T}, v{V_LANE}, 2, s{S_T2}")
    for c in range(4):
        e(f"ds_read2st64_b32 v[{y+2*c}:{y+2*c+1}], v{V_T} offset0:{68*c} offset1:{68*c + 34}")
    if g.o.get("la2", 0):
        for c in range(4):
            e(f"ds_read2st64_b32 v[{R+2*c}:{R+2*c+1}], v{V_XO if X == XA else V_XS} offset0:{68*c} offset1:{68*c + 34}")

def fin_b(g, LD, X, R, waits):
    e = g.e
    s = R; xn = R + 8; y = R + 16; st = LD + 32
    if waits: e(f"s_waitcnt vmcnt({NP})")
    for c in range(4):
        e(f"v_lshlrev_b32 v{R+8+2*c}, 16, v{X+c}")
        e(f"v_and_b32 v{R+8+2*c+1}, 0xffff0000, v{X+c}")
    for c in range(8): e(f"v_add_f32 v{s+c}, s{S_BV+c}, v{R+8+c}")
    for c in range(4):
        e(f"v_pk_fma_f32 v[{xn+2*c}:{xn+2*c+1}], v[{xn+2*c}:{xn+2*c+1}], v[{st}:{st+1}], v[{st}:{st+1}] op_sel:[0,0,1] op_sel_hi:[1,0,1]")
    e("s_waitcnt lgkmcnt(0)")
    for c in range(4):
        e(f"v_pk_fma_f32 v[{s+2*c}:{s+2*c+1}], v[{xn+2*c}:{xn+2*c+1}], v[{y+2*c}:{y+2*c+1}], v[{s+2*c}:{s+2*c+1}]")
    for j in range(NP):
        if waits: e(f"s_waitcnt vmcnt({NP - 1 - j})")
        for c in range(4):
            e(f"v_dot2c_f32_bf16 v{s+2*c}, s{S_LO}, v{LD+4*j+c}")
            e(f"v_dot2c_f32_bf16 v{s+2*c+1}, s{S_HI}, v{LD+4*j+c}")
    e("s_nop 2")
    for c in range(4):
        e(f"v_cvt_pk_bf16_f32 v{X+c}, v{s+2*c}, v{s+2*c+1}")

def tail(g, name):
    o = g.o; e = g.e
    out = lambda X, vx: e(f"buffer_store_dwordx4 v[{X}:{X+3}], v{vx}, s[{S_OUT}:{S_OUT+3}], 0 offen {o.get('ofl', '')}")
    TX = tile_list(g, LDA, V_RA, V_SA); TY = tile_list(g, LDB, V_RB, V_SB)
    e(f"s_cmp_eq_u32 s{S_PART}, 4")
    e(f"s_cbranch_scc1 {name}_none")
    g.stamp()
    g.wait(vm=["cl", "p0"])
    g.stamp()
    e(f"v_cmp_ne_u32 vcc, s{S_TOK}, v{V_P}")
    e(f"s_cbranch_vccnz {name}_fs")
    g.lab(f"{name}_fb")
    g.ool += [f"{name}_fs:", f"  s_mov_b32 s{S_N}, {SPIN}", f"{name}_fl:",
              f"  buffer_load_dword v{V_P}, v{V_FA}, s[{S_WS}:{S_WS+3}], s{S_FB} offen sc1", f"  s_sub_u32 s{S_N}, s{S_N}, 1", "  s_waitcnt vmcnt(0)",
              f"  s_cbranch_scc1 {name}_fb", f"  v_cmp_ne_u32 vcc, s{S_TOK}, v{V_P}", f"  s_cbranch_vccnz {name}_fl", f"  s_branch {name}_fb"]
    def masked(M, x):
        def f(nm):
            e(f"s_mov_b64 exec, s[{M}:{M+1}]")
            e(x)
            e("s_mov_b64 exec, -1")
        return f
    def chk(LD):
        e(f"v_bitop3_b32 v{V_P}, v{LD}, v{LD+4}, v{LD+8} bitop3:0x80")
        e(f"v_bitop3_b32 v{V_P}, v{V_P}, v{LD+12}, 1 bitop3:0x80")
        e(f"v_cmp_eq_u32 vcc, 0, v{V_P}")
    mid = o.get("mid", 0)
    def chx(nm):
        chk(LDA)
        e(f"s_or_b32 s{S_PX}, vcc_lo, vcc_hi")
        e(f"s_cbranch_scc0 {nm}")
        for x in TX[2:]: e(x)
        g.lab(nm)
    def evend(nm):
        g.stamp()
        e("s_waitcnt vmcnt(0)")
        if mid:
            e(f"s_mov_b32 s{S_GX}, s{S_PX}")
            e(f"s_cmp_eq_u32 s{S_PX}, 0")
            e(f"s_cbranch_scc1 {nm}_kx")
        chx(f"{nm}_kx")
        e(f"s_cmp_eq_u32 s{S_BM}, 0")
        e(f"s_cbranch_scc1 {nm}_ky")
        chk(LDB)
        e(f"s_or_b32 s{S_PY}, vcc_lo, vcc_hi")
        e(f"s_cbranch_scc0 {nm}_ky")
        for x in TY[2:]: e(x)
        g.lab(f"{nm}_ky")
        g.stamp()
    ev = {"end": [evend]}
    at = lambda k, f: ev.setdefault(k, []).append(f)
    xs = o.get("xs", [2, 4, 6, 8, 10, 12] if mid else [2, 6, -64, -62, -60, -58])
    xh = o.get("xh")
    cnt = [0]
    def half(hi, x):
        def f(nm):
            cnt[0] += 1
            e(f"s_cmp_eq_u32 s{S_MH}, {hi}")
            e(f"s_cbranch_scc0 {nm}_h{cnt[0]}")
            for y in x: e(y, "lx")
            if not hi:
                for y in x: g.vm.pop()
            g.lab(f"{nm}_h{cnt[0]}")
        return f
    for k, x in list(zip(xs, TX))[:2 if xh else 6]: at(k, lambda nm, x=x: e(x, "lx"))
    if xh:
        assert xh[0] < xh[1]
        at(xh[0], half(0, TX[2:])); at(xh[1], half(1, TX[2:]))
    ev3 = {"end": [evend]}
    for k, x in zip(o.get("x3", [0, 0, 8, 11, 14, 17]) + o.get("y3", [1, 20, 23, 26, 29]), TX + TY[1:]): ev3.setdefault(k, []).append(lambda nm, x=x: e(x))
    ev3[0] = ev3.get(0, []) + [lambda nm: [e(f"s_lshl_b32 s{S_BW+2*c}, s{S_B3+c}, 16") or e(f"s_and_b32 s{S_BW+2*c+1}, s{S_B3+c}, 0xffff0000") for c in range(4)]]
    if o.get("stamps"): ev3.setdefault(32, []).append(lambda nm: g.stamp())
    if mid:
        def evmid(nm):
            assert "lx" in g.vm
            g.wait(vm=["lx"])
            chx(f"{nm}_km")
        at(mid, evmid)
        F = fin_l(LDA, XA); fn = o.get("fn", 2)
        if o.get("tv") == 1: F = [x.replace("v_dot2c_f32_bf16", "v_add_f32") for x in F]
        if o.get("tv") == 2: F = F[:24]
        if o.get("tv") == 3: F = F[24:]
        if o.get("tv") == 4: F = []
        for i in range(0, len(F), fn):
            assert mid + 1 + i // fn < 0
            at(mid + 1 + i // fn, lambda nm, i=i: [e(x) for x in F[i:i+fn]])
    if o.get("stamps"): at(32, lambda nm: g.stamp())
    e(f"s_cmp_eq_u32 s{S_PART}, 1")
    e(f"s_cbranch_scc1 {name}_j1")
    e(f"s_cmp_eq_u32 s{S_PART}, 2")
    e(f"s_cbranch_scc1 {name}_j2")
    e(f"s_cmp_eq_u32 s{S_PART}, 3")
    e(f"s_cbranch_scc1 {name}_j3")
    vm0 = list(g.vm)
    for p in (0, 1, 3, 2):
        if p: g.lab(f"{name}_j{p}")
        g.vm = list(vm0)
        conv_job(g, (JOBS + [[(0, 8), (16, 24)]])[p], f"{name}_c{p}", ev if p < 3 else ev3)
        if p != 2: e(f"s_branch {name}_cfin")
    g.lab(f"{name}_cfin")
    if o.get("eo", 1): evend(name)
    RA, RB = CACC, CACC + 24
    if mid:
        e(f"s_mov_b32 s{S_XM}, 0")
        e(f"s_cmp_eq_u32 s{S_GX}, 0")
        e(f"s_cbranch_scc1 {name}_q1")
    e(f"s_cmp_ge_u32 s{S_W}, {o.get('ps', 4)}")
    e(f"s_cselect_b32 s{S_T}, 0x10000, 0")
    hp = o.get("hp", 0)
    if hp == 1: e(f"s_andn2_b32 s{S_T}, s{S_T}, s{S_BM}")
    if hp == 2: e(f"s_or_b32 s{S_GY}, s{S_PY}, s{S_T}")
    e(f"s_or_b32 s{S_XM}, s{S_PX}, s{S_T}")
    e(f"s_cbranch_scc1 {name}_q1")
    fin_1(g, LDA, XA, RA, False)
    g.lab(f"{name}_q1")
    e(f"s_cmp_eq_u32 s{S_BM}, 0")
    e(f"s_cselect_b32 s{S_T}, 1, s{S_GY if hp == 2 else S_PY}")
    e(f"s_cmp_lg_u32 s{S_T}, 0")
    e(f"s_cbranch_scc1 {name}_q2")
    fin_1(g, LDB, XB, RB, False)
    g.lab(f"{name}_q2")
    e("s_waitcnt lgkmcnt(0)")
    g.stamp()
    e("s_barrier")
    g.stamp()
    def last(nm, P, LD, T):
        if P:
            e(f"s_cmp_eq_u32 s{P}, 0")
            e(f"s_cbranch_scc1 {nm}2")
        e(f"s_mov_b32 s{S_N}, {SPIN}")
        g.lab(f"{nm}lp")
        e("s_waitcnt vmcnt(0)")
        chk(LD)
        e(f"s_sub_u32 s{S_N}, s{S_N}, 1")
        e(f"s_cbranch_scc1 {nm}2")
        e(f"s_cbranch_vccz {nm}2")
        for x in T[2:]: e(x)
        e(f"s_branch {nm}lp")
        g.lab(f"{nm}2")
    fin_a(g, XA, S_IA, RA)
    e(f"s_cmp_lg_u32 s{S_BM}, 0")
    e(f"s_cbranch_scc1 {name}_two")
    e(f"s_cmp_eq_u32 s{S_XM}, 0")
    e(f"s_cbranch_scc1 {name}_a3")
    last(f"{name}_a", S_PX, LDA, TX)
    fin_1(g, LDA, XA, RA, False)
    g.lab(f"{name}_a3")
    g.stamp()
    e("s_waitcnt lgkmcnt(0)")
    fin_2(g, XA, RA)
    out(XA, V_XA)
    finish(g)
    g.lab(f"{name}_two")
    fin_a(g, XB, S_IB, RB)
    e(f"s_cmp_lg_u32 s{S_XM}, 0")
    e(f"s_cbranch_scc1 {name}_xslow")
    g.lab(f"{name}_xback")
    e("s_waitcnt lgkmcnt(0)")
    fin_2(g, XA, RA)
    e(f"s_cmp_eq_u32 s{S_GY if hp == 2 else S_PY}, 0")
    e(f"s_cbranch_scc1 {name}_b3")
    last(f"{name}_b", S_PY if hp == 2 else None, LDB, TY)
    fin_1(g, LDB, XB, RB, False)
    g.lab(f"{name}_b3")
    g.stamp()
    out(XA, V_XA)
    fin_2(g, XB, RB)
    out(XB, V_XB)
    finish(g)
    g.lab(f"{name}_xslow")
    last(f"{name}_x", S_PX, LDA, TX)
    fin_1(g, LDA, XA, RA, False)
    e(f"s_branch {name}_xback")
    g.lab(f"{name}_none")
    finish(g)

def gen(name, opt):
    g = G(opt); o = opt
    if "jobs" in o: JOBS[:] = [[tuple(x) for x in j] for j in o["jobs"]]
    e = g.e
    g.NF = 5
    SM[0] = o.get("sm", 1)
    g.ool = []; g.grp = "Z"
    g.L.append(f".globl {name}\n.p2align 8\n.type {name},@function\n{name}:")
    npro = prologue(g, name)
    nm = name + "_Z"; g.nm = nm
    full = not o.get("core")
    sc = Sched(g, npro)
    sc.claim(range(11, 20), "x"); sc.claim([10], "tbl")
    for s_ in range(9): sc.hold[s_] = 10
    work = {}; inb = {}; pre = {}; post = {}; bw = {}; bv = {}; act = {}; aft = {}; hooks = {}
    add = lambda d, k, L: d.setdefault(k, []).extend(L)
    bj = lambda r: (r - 6) // 2
    xr = o.get("xr", [[8, 2], [12, 5], [16, 8], [18, 9]])
    h0 = o.get("h0", 152); hd = o.get("hd", 4); hl = o.get("hl", 2); hs = o.get("hs", 176)
    bars = set(18*N + b_ for N in range(18) for b_ in (o.get("bs", [0, 8]) if N < 17 or not full else [4, 12]))
    bars -= set(range(xr[0][0])) | set(range(h0, h0 + 4*hd + hl*hd))
    bars |= set(x[0] for x in xr) | set(o.get("xb2", [22])) | set(h0 + hd*i for i in range(5 + hl)) | set([hs]) | set(o.get("hb2", [184]))
    bars -= set(o.get("nb", []))
    bars = sorted(bars)
    nextb = lambda r, n=1: [b_ for b_ in bars if b_ > r][n - 1]
    def scatter(L, j0, nbu, lead=0):
        pos = [(j, q) for j in range(j0, j0 + nbu) for q in range(4) if seq(j)[q]]
        for k, x in enumerate(L): add(inb, pos[(k * len(pos)) // len(L)], [x])
    for x in bias_read(0): g.put(x)
    ns = 0
    for r_, c_ in enumerate(o.get("ls", [1, 1, 2])):
        add(inb, (-1, r_), [sread(0, k) for k in SO[ns:ns + c_]]); ns += c_
    scatter([sread(0, k) for k in SO[ns:]], 0, o.get("xn", 6))
    pc = 0
    for r_, c_ in xr:
        add(bw, r_, [("s", k) for k in range(4*c_)])
        add(act, r_, [lambda a_=pc, c_=c_: sc.free(range(11 + a_, 11 + c_))]); pc = c_
    stgl = o.get("stgl", 134)
    for n in range(9):
        if n < 8: add(inb, (9*n + 1, 0) if n == 7 and stgl == 134 else (9*n + o.get("bslot", 4), 2), bias_read(n + 1))
        if n: deal(gelu_list(o, n - 1), 9*n, o.get("gn", 9) if n < 8 else min(9, bj(h0 + 3*hd) - 72), work)
    if not o.get("sup", 1): spread(atoms(setup2()) + (setup3(o) if full else []), o.get("su0", 6), o.get("su1", 34), work)
    add(pre, o.get("stl", xr[1][0]), [[f"s_lshl_b32 s{S_YT}, s{S_RB}, 9", f"s_add_u32 s{S_YT}, s{S_YT}, {STAT_OFF}",
        f"buffer_store_dwordx2 v[{V_QA}:{V_QA+1}], v{V_SAD}, s[{S_WS}:{S_WS+3}], s{S_YT} offen sc1"]])
    if full:
        for k_, (r_, cs) in enumerate(o.get("xtl", [[26, [0, 1, 2]], [54, [3, 4, 5]], [90, [6, 7, 8]]])):
            assert all(bj(r_) + 2 < 18*(c_ // 2) + 16 for c_ in cs)
            def xt(k_=k_, cs=cs):
                e(f"s_cmp_eq_u32 s{S_W}, s{S_J}")
                e(f"s_cbranch_scc1 {nm}_xt{k_}")
                g.lab(f"{nm}_xt{k_}b")
                L = [f"s_and_b32 s{S_YT}, s2, 8", f"s_lshl_b32 s{S_YT}, s{S_YT}, 2", f"v_lshrrev_b32 v{V_T2}, 3, v{V_TID}", f"v_xor_b32 v{V_T2}, s{S_YT}, v{V_T2}",
                     f"v_lshl_or_b32 v{V_T2}, v{V_TID}, 11, v{V_T2}", f"v_and_b32 v{V_T2}, 0x3fff, v{V_T2}", f"v_lshlrev_b32 v{V_T2}, 4, v{V_T2}",
                     f"s_lshl_b32 s{S_YT}, s{S_RB}, 10", f"s_add_u32 s{S_YT}, s{S_YT}, {XT_OFF + 262144*cs[0]}"]
                for c_ in cs:
                    L.append(f"buffer_store_dwordx4 v[{XR+4*c_}:{XR+4*c_+3}], v{V_T2}, s[{S_WS}:{S_WS+3}], s{S_YT} offen sc1")
                    if c_ != cs[-1]: L.append(f"s_add_u32 s{S_YT}, s{S_YT}, 262144")
                g.ool += [f"{nm}_xt{k_}:"] + ["  " + x for x in L] + [f"  s_branch {nm}_xt{k_}b"]
            add(pre, r_, [[xt]])
    add(work, 60, [f"s_lshl_b32 s{S_N}, s{S_MH}, 13", f"v_lshl_add_u32 v{V_FR}, v{V_LANE}, 4, s{S_N}"])
    if full:
        if o.get("cm", 4): add(post, o.get("rcold", 134), cold_items(o.get("cm", 4)))
        def second():
            e(f"s_lshr_b32 s{S_N}, s2, 5")
            e(f"s_cmp_eq_u32 s{S_N}, {o.get('u2', 7)}")
            e(f"s_cbranch_scc1 {nm}_u2")
            g.lab(f"{nm}_u2b")
            L = [f"s_add_u32 m0, s{S_KM}, 8192", f"v_add_u32 v{V_T2}, s{S_KM2}, v{V_K1}",
                 f"buffer_load_dwordx4 v{V_T2}, s[{S_K}:{S_K+3}], 0 offen lds",
                 f"s_add_u32 m0, s{S_KM}, {KSZ + 8192}", "s_nop 0",
                 f"buffer_load_dwordx4 v{V_T2}, s[{S_V}:{S_V+3}], 0 offen lds"]
            g.ool += [f"{nm}_u2:"] + ["  " + x for x in L] + [f"  s_branch {nm}_u2b"]
        add(pre, stgl, [[second, f"s_mov_b32 m0, s{S_KM}", (f"buffer_load_dwordx4 v{V_K1}, s[{S_K}:{S_K+3}], 0 offen lds", "kst")],
                        [f"s_add_u32 m0, s{S_KM}, {KSZ}", (f"buffer_load_dwordx4 v{V_K1}, s[{S_V}:{S_V+3}], 0 offen lds", "stg")]])
        add(bw, stgl, ["bias"])
        sc.hold[9] = 9; sc.hold[11] = 9; sc.hold[12] = 9
        add(act, stgl, [lambda: sc.claim([9, 11, 12], "stg")])
        for r_, k_ in o.get("tl", [[36, "K"], [72, "V"], [156, "F"]]):
            sr, v, d, m_ = {"K": (S_K, V_KT, V_HG, 0x37373737), "V": (S_V, V_KT, V_DUM, 0x30303030), "F": (S_KF, V_KFT, V_DUM, 0)}[k_]
            add(pre, r_, [([f"s_mov_b32 exec_lo, {m_}", "s_mov_b32 exec_hi, exec_lo"] if m_ else ["s_mov_b64 exec, 0x7ff"]) +
                          [(f"buffer_load_dword v{d}, v{v}, s[{sr}:{sr+3}], 0 offen", "t" + k_), "s_mov_b64 exec, -1"]])
    wt = o.get("wt", [])
    wn = -(-5184 // (128 * len(wt))) if wt else 0
    if wt: add(work, o.get("wts", 40), [f"s_and_b32 s{S_WT}, s{S_RB}, 15", f"s_lshl3_add_u32 s{S_WT}, s{S_WT}, s{S_W}", f"s_mul_i32 s{S_WT}, s{S_WT}, {wn*128}",
            f"s_mul_i32 s{S_N}, s{S_J}, {576*1152}", f"s_add_u32 s{S_WT}, s{S_WT}, s{S_N}", f"v_lshlrev_b32 v{V_T}, 7, v{V_LANE}"])
    for r_ in wt:
        it = [f"s_bfm_b64 exec, {wn}, 0", f"buffer_load_dword v{V_DUM}, v{V_T}, s[{S_W2}:{S_W2+3}], s{S_WT} offen", "s_mov_b64 exec, -1",
              f"s_add_u32 s{S_WT}, s{S_WT}, {128*wn*128}"]
        if r_ in pre and o.get("wtm", 1): pre[r_][0] = pre[r_][0][:-1] + it
        else: add(pre, r_, [it])
    for p in range(4):
        r_ = h0 + hd*p
        add(act, r_, [lambda p=p: sc.claim([2*p, 2*p + 1], "h")])
        add(aft, r_, [(f"ds_write_b128 v{V_HW}, v[{HP+8*p+4*t}:{HP+8*p+4*t+3}] offset:{16384*p + 1024*t}", ("hw", p)) for t in range(2)])
        add(bw, r_ + hd, [("hw", p)])
        ks = [k for k in SO if k // 8 == p]
        ha = o.get("ha", 0)
        add(aft, r_ + hd, [sread(1, k) for k in ks[:ha]])
        scatter([sread(1, k) for k in ks[ha:]], bj(r_ + hd) + 1, o.get("hn", hd // 2))
        add(bw, r_ + hd + hl*hd, [("s", 36 + k) for k in ks])
        add(act, r_ + hd + hl*hd, [lambda p=p: sc.free([2*p, 2*p + 1])])
    js = bj(hs)
    deal(gelu_list(o, 8), 81, js - 81, work)
    rc = min(b_ for b_ in bars if b_ >= 168 and b_ > h0 + 3*hd)
    assert bj(rc) < js
    add(act, rc, [lambda: sc.claim([8], "h")])
    add(aft, rc, [f"s_lshl_b32 s{S_N}, s{S_MH}, 12", f"s_add_u32 s{S_N}, s{S_N}, 65536", f"v_lshl_add_u32 v{V_HW}, v{V_LANE}, 4, s{S_N}",
                  f"s_lshr_b32 s{S_N}, s{S_QW}, 1", f"s_lshl_b32 s{S_N}, s{S_N}, 8", f"s_and_b32 s{S_T2}, s{S_QW}, 1", f"s_add_u32 s{S_N}, s{S_N}, s{S_T2}",
                  f"v_lshl_add_u32 v{V_T}, s{S_N}, 3, v{V_HW}"])
    add(work, 4*(js - 1) + 1, [(f"ds_write2st64_b64 v{V_T}, v[{HP+32}:{HP+33}], v[{HP+34}:{HP+35}] offset0:0 offset1:2", ("hw", 4))])
    add(bw, hs, [("hw", 4)])
    ks = [k for k in SO if k >= 32]
    scatter([sread(1, k) for k in ks], js + 1, 1)
    add(bw, nextb(hs, o.get("hl4", 2)), [("s", 36 + k) for k in ks])
    add(act, nextb(hs, o.get("hl4", 2)), [lambda: sc.free([8])])
    if full:
        rv = o.get("rv", h0); rk = o.get("rk", h0 + 2*hd)
        assert rv >= h0 and rk >= h0 + 2*hd
        add(bv, min(rv, rk), ["stg"])
        scatter([(f"ds_read_b32 v{VR+r}, v{V_KG} offset:{KSZ + 1024 + 128*r}", "vr") for r in range(8)], bj(rv) + 1, o.get("vn", 1))
        scatter([(f"ds_read_b32 v{KR+r}, v{V_KH} offset:{640 + 128*r}", "kr") for r in range(3)] +
                [(f"ds_read_b32 v{KR+3+r}, v{V_KG} offset:{1024 + 128*r}", "kr") for r in range(8)], bj(rk) + 1, o.get("kn", 2))
        add(bw, nextb(rv, o.get("vl", 1)), ["vr"]); add(act, nextb(rv, o.get("vl", 1)), [lambda: sc.free([11, 12])])
        add(bw, nextb(rk, o.get("kl", 2)), ["kr"]); add(act, nextb(rk, o.get("kl", 2)), [lambda: sc.free([9, 10])])
        add(pre, o.get("rx", h0 + hd), [[(f"buffer_load_dword v{V_TOK}, off, s[{S_DBG}:{S_DBG+3}], 0 sc1", "tok")]])
        add(pre, h0 + 3*hd, [[f"v_lshrrev_b32 v{V_T2}, 9, v{V_KST}", f"v_and_b32 v{V_T2}, -16, v{V_T2}",
            (f"buffer_load_dwordx4 v[{SH}:{SH+3}], v{V_T2}, s[{S_SH}:{S_SH+3}], 0 offen", "sh")]])
    told = set()
    def flags():
        for m in range(5):
            if ("p", m) in g.bdone and m not in told:
                told.add(m)
                for x in flag_store(g, m): g.put(x)
        if "kv1" in g.bdone and "rdy" not in told:
            told.add("rdy")
            e(f"s_mul_i32 s{S_N}, s2, 257")
            e(f"s_bfe_u32 s{S_N}, s{S_N}, {3 | (8 << 16)}")
            e(f"s_lshl2_add_u32 s{S_N}, s{S_N}, {RDY_OFF}")
            e(f"buffer_store_dword v{V_TOK}, v{V_L0}, s[{S_WS}:{S_WS+3}], s{S_N} offen sc1")
    def tok():
        g.wait(vm=["tok"])
        e(f"v_readfirstlane_b32 s{S_TOK}, v{V_TOK}")
        e(f"s_cmp_eq_u32 s{S_TOK}, 0")
        e(f"s_cbranch_scc1 {nm}_tok_slow")
        g.lab(f"{nm}_tok_back")
        e(f"s_andn2_b32 s{S_PF}, s{S_FLG}, 0xe0")
        e(f"s_xor_b32 s{S_PF}, s{S_PF}, 4")
    def rdy():
        assert "rdy" in told
        g.wait(vm=["rl"])
        e(f"v_cmp_ne_u32 vcc, s{S_ONES}, v{V_RDY}")
        e(f"s_cbranch_vccnz {nm}_rdy_slow")
        g.lab(f"{nm}_rdy_back")
    ss = o.get("ss", 8)
    kvb = o.get("kvb", 1)
    def kvok(): assert "vr" in g.done and "kr" in g.done and ("hw", 4) in g.done
    if full:
        spread([kvok] + kv_compute(g), o.get("kc0", 4*js + 2), o.get("kc1", 362 + 36*kvb), work)
        spread(setup4(o), o.get("s40", 324 + 36*4 + 10), o.get("s40", 324 + 36*4 + 10) + 28, work)
        xe = o.get("xe", 0); rl = o.get("rl", 278 if xe else 310)
        if xe: add(pre, rl, [[f"buffer_load_dwordx4 v[{X}:{X+3}], v{v}, s[{S_WS}:{S_WS+3}], s{S_XO} offen sc1" for X, v in ((XA, V_RA), (XB, V_RB))]])
        add(work, 4*o.get("rlj", 128 if xe else 146), [(f"buffer_load_dword v{V_RDY}, v{V_L4}, s[{S_WS}:{S_WS+3}], 0 offen sc1", "rl")])
        add(work, 4*o.get("p0j", 155) + 1, [lambda: poll(g, "p0")])
        c0 = 606 + o.get("c0", 0)
        add(act, 310, [lambda: sc.claim(range(9), "conv")])
        spread(conv_loads(g), c0, c0 + o.get("cls", 12), work)
        hooks.update({o.get("rt", 180): tok, rl: rdy})
    assert not o.get("la2")
    assert kvb == 1
    for n in range(8):
        b = 324 + 36*(n + 1)
        if n >= 4: add(work, b + 2, tswap(g, n))
        spread(cvt(g, n), b + 3, b + 8, work)
        tq = o.get("tq", 12) if n < 7 else 7
        if n >= 3: add(work, b + tq, [([] if o.get("nopf") else [fcheck(g, n + 1)]) + tload(g, n + 1)])
        if 2 <= n < 7 and not o.get("nopf"): add(work, b + max(tq, o.get("fq", 20)), [fload(g, n + 2)])
        s_ = o.get("ss7", 10) if full and n == 7 else ss
        add(work, b + s_, pstore(g, n))
        if full:
            if n == kvb:
                for k_, x in enumerate(kv_store()): add(work, b + s_ + o.get("kvo", [0, 0])[k_], x)
            add(work, b + s_, [flags])
    stream(g, sc, bars, work, hooks, pre, post, inb, bw, bv, act, aft)
    if o.get("sp"): e("s_setprio 0")
    for x in tswap(g, 8): g.put(x)
    e("s_nop 5")
    for x in cvt(g, 8) + pstore(g, 8): g.put(x)
    if not full: finish(g)
    else:
        assert told == set(range(5)) | {"rdy"}, told
        tail(g, nm)
        g.lab(f"{nm}_rdy_slow")
        e(f"s_mov_b32 s{S_N}, {SPIN}")
        g.lab(f"{nm}_rdy_lp")
        e(f"buffer_load_dword v{V_RDY}, v{V_L4}, s[{S_WS}:{S_WS+3}], 0 offen sc1")
        e(f"s_sub_u32 s{S_N}, s{S_N}, 1")
        e("s_waitcnt vmcnt(0)")
        e(f"s_cbranch_scc1 {nm}_rdy_back")
        e(f"v_cmp_ne_u32 vcc, s{S_ONES}, v{V_RDY}")
        e(f"s_cbranch_vccnz {nm}_rdy_lp")
        e(f"s_branch {nm}_rdy_back")
        g.lab(f"{nm}_tok_slow")
        e(f"s_mov_b32 s{S_N}, {SPIN}")
        g.lab(f"{nm}_tok_lp")
        e(f"buffer_load_dword v{V_TOK}, off, s[{S_DBG}:{S_DBG+3}], 0 sc1")
        e(f"s_sub_u32 s{S_N}, s{S_N}, 1")
        e("s_waitcnt vmcnt(0)")
        e(f"s_cbranch_scc1 {nm}_tok_back")
        e(f"v_readfirstlane_b32 s{S_TOK}, v{V_TOK}")
        e(f"s_cmp_eq_u32 s{S_TOK}, 0")
        e(f"s_cbranch_scc1 {nm}_tok_lp")
        e(f"s_branch {nm}_tok_back")
    g.L += g.ool
    g.lab(f"{name}_mk")
    e(f"s_mov_b32 s{S_T}, {EPO_OFF}")
    e(f"s_load_dword s{S_TOK}, s[{S_WS}:{S_WS+1}], s{S_T}")
    e(f"v_min_u32 v{V_T}, 1, v{V_LANE}")
    e(f"v_lshlrev_b32 v{V_T}, 31, v{V_T}")
    e("s_waitcnt lgkmcnt(0)")
    e(f"s_add_u32 s{S_TOK}, s{S_TOK}, 1")
    e(f"s_addc_u32 s{S_TOK}, s{S_TOK}, 0")
    e(f"v_mov_b32 v{V_L0}, s{S_TOK}")
    e(f"buffer_store_dword v{V_L0}, v{V_T}, s[{S_DBG}:{S_DBG+3}], 0 offen sc1")
    e(f"buffer_store_dword v{V_L0}, v{V_T}, s[{S_WS}:{S_WS+3}], s{S_T} offen sc1")
    e(f"s_branch {name}_mkb")
    g.lab(f"{name}_exit")
    e("s_endpgm")
    desc = f""".amdhsa_kernel {name}
  .amdhsa_next_free_vgpr 256
  .amdhsa_next_free_sgpr {102 if o.get('stamps') else 100}
  .amdhsa_accum_offset 256
  .amdhsa_group_segment_fixed_size 0
  .amdhsa_kernarg_size 112
  .amdhsa_user_sgpr_count 2
  .amdhsa_user_sgpr_kernarg_segment_ptr 1
  .amdhsa_system_sgpr_workgroup_id_x 1
.end_amdhsa_kernel"""
    return "\n".join(g.L) + "\n", desc
```

```python
import sys, json
import k16
KN = "parallel_sum__ssm_conv_h3__dense_activation_gelu__prompt_kernel"
def full(opt):
    b1, d1 = k16.gen(KN, opt)
    return (f"; @launch grid=(256,1,1) block=(512,1,1) lds={k16.LDS_SZ}\n"
            '.amdgcn_target "amdgcn-amd-amdhsa--gfx950"\n.text\n' + b1 +
            '.section .rodata,"a"\n.p2align 6\n' + d1 + "\n")
if __name__ == "__main__":
    opt = json.loads(sys.argv[2]) if len(sys.argv) > 2 else {}
    open(sys.argv[1], "w").write(full(opt))
```

```python
import struct, math
def f32bits(x): return struct.unpack("<I", struct.pack("<f", x))[0]

LDS_SZ = 163840
XL = 11 * 8192
KSTG = 73728
KSZ = 16384
TBL = 84128
STAMP_OFF = 32 << 20
KVT_OFF = 20 << 20
STAT_OFF = 24 << 20
FLAG_OFF = 25 << 20
RDY_OFF = 26 << 20
EPO_OFF = 27 << 20
XT_OFF = 28 << 20
JOBS = [[(8, 12), (28, 32)], [(12, 16), (24, 28)], [(16, 24)]]
WSTR = 8704
SPIN = 1 << 15
SPB = 3584

V_TID = 0; V_LANE = 1
V_TR = [2, 3, 4]
V_FR = 5; V_HW = 6; V_C1 = 7
V_O1 = 8; V_O2 = 9; V_BO = 10; V_ST = 11; V_L0 = 12
V_STAMP = 13; V_T = 14; V_T2 = 15
V_O1B = 52; V_O2B = 53; V_O1G = 54; V_O2G = 55
ACC = [16, 24]
WF = 32
WFS = [32, 36, 40, 44, 48, 52, 108]
S_KO = 35; S_FO = 1; S_DUM = 56
GT = 56; BI = 64; SP = 68; HP = 76; BIG = 112
XR = 76; LT = 112; BR = 63; V_QA = 60; V_SAD = 62; S_YT = 3; S_XO = 30
PKR = 56
V_K1 = 68; V_K2 = 69; V_KH = 69; V_HG = 55; V_DUM = 70; V_KFT = 71; V_XA = 72; V_XB = 73; V_KG = 74; V_KST = 75
XA = 64; XB = 68; V_KT = 53
VR = 76; KR = 84; SH = 96; KC = 100; KA = 104
V_FR2 = 56
V_TOK = 8; V_RDY = 60; V_L4 = 61; V_XO = 62; V_XS = 63; V_TM = 62; V_TC = 63; V_YO = 60; V_YS = 61; V_SA = 53; V_SB = 55
V_AF = 5; V_BF = 6; V_KV = 7; V_YW = 10; V_RA = 52; V_RB = 54; V_FA = 74; V_P = 75; V_CL = 110; V_OOB = 111
AF = 112; CACC = 176; BB = 224; NB = 6
LDA = 76; LDB = 16

S_TOK = 3
S_Q = 4; S_W1 = 8; S_W2 = 12; S_B1 = 16; S_DR = 20; S_WS = 24
S_J = 28; S_RB = 29; S_ROT = 30; S_W = 31; S_QW = 32; S_M0B = 33
S_GC = 34
S_N = 38; S_T = 39; S_T2 = 40
S_COL = 44
S_ROW = [16, 17, 18, 19, 36, 37, 41, 42, 43]
S_PB = 53; S_SI = 54; S_MH = 55
S_PC = 56; S_TM = 58; S_M0G = 56
S_FLG = 62; S_ONES = 63
S_K = 64; S_V = 68; S_SH = 72; S_KVO = 76
S_G = 77; S_PART = 78; S_INFO = 79
S_OUT = 80; S_KF = 84; S_DBG = 88; S_DP = 92; S_BP = 94; S_B2 = 96
S_TA = 92; S_TB = 93; S_IA = 94; S_IB = 95; S_BM = 57; S_KM = 30
S_BV = 64; S_LO = 72; S_HI = 73; S_D = 74; S_PX = 75; S_PY = 76; S_GX = 34; S_GY = 35; S_XM = 28; S_YM = 0; S_SO = 23; S_NX = 0; S_NY = 1; S_H2 = 8; S_CH = 9; S_FB = 10; S_GO = 11

S_PO = [11, 20, 21, 22]; S_D2 = 79; S_BW = 44; S_B3 = 4
S_WT = 35; S_KM2 = 35; S_PF = 56; V_PF = 68; TQ = 64; NP = 4

class G:
    def __init__(self, opt):
        self.L = []; self.o = opt
        self.lds = []; self.vm = []; self.done = set(); self.bdone = set()
    def e(self, s, tag=None):
        if s.endswith(" lds") and self.L[-1].split()[1:2] == ["m0,"]: self.L.append("  s_nop 0")
        self.L.append("  " + s)
        if s.startswith("ds_"): self.lds.append(tag)
        if s.startswith("buffer_") or s.startswith("global_"): self.vm.append(tag)
    def put(self, x):
        if isinstance(x, list):
            for y in x: self.put(y)
        elif callable(x): x()
        elif isinstance(x, tuple): self.e(x[0], x[1])
        else: self.e(x)
    def lab(self, s): self.L.append(s + ":")
    def _n(self, q, tags):
        idx = [i for i, t in enumerate(q) if t is not None and t in tags]
        if not idx: return None
        m = max(idx)
        for t in q[:m+1]:
            if t is not None: self.done.add(t)
        n = len(q) - 1 - m
        del q[:m+1]
        return n
    def wait(self, lds=(), vm=(), alllds=False, allvm=False):
        w = []
        if allvm:
            for t in self.vm: self.done.add(t)
            self.vm = []; w.append("vmcnt(0)")
        else:
            n = self._n(self.vm, set(vm))
            if n is not None: w.append(f"vmcnt({min(n, 63)})")
        if alllds:
            for t in self.lds: self.done.add(t)
            self.lds = []; w.append("lgkmcnt(0)")
        else:
            n = self._n(self.lds, set(lds))
            if n is not None: w.append(f"lgkmcnt({min(n, 15)})")
        if w: self.e("s_waitcnt " + " ".join(w))
    def stamp(self):
        if not self.o.get("stamps"): return
        self.e(f"s_memtime s[{S_TM}:{S_TM+1}]")
        self.e(f"s_memrealtime s[{S_TM+2}:{S_TM+3}]")
        self.e("s_mov_b32 s100, m0")
        self.e("s_waitcnt lgkmcnt(0)")
        self.e(f"s_mov_b32 m0, s{S_SI}")
        self.e(f"s_add_u32 s{S_SI}, s{S_SI}, 1")
        self.e(f"v_writelane_b32 v{V_STAMP}, s{S_TM}, m0")
        self.e(f"s_add_u32 m0, m0, 30")
        self.e(f"s_nop 0")
        self.e(f"v_writelane_b32 v{V_STAMP}, s{S_TM+2}, m0")
        self.e("s_mov_b32 m0, s100")
    def rstamp(self, lane):
        if not self.o.get("stamps"): return
        self.e(f"s_memrealtime s[{S_TM}:{S_TM+1}]")
        self.e("s_waitcnt lgkmcnt(0)")
        self.e(f"v_writelane_b32 v{V_STAMP}, s{S_TM}, {lane}")

def srd(g, s, nrec):
    g.e(f"s_mov_b32 s{s+2}, {nrec}")
    g.e(f"s_mov_b32 s{s+3}, 0x00020000")

SM = [1]
def slot(N, u):
    if N == 10 and u == 8: return 9
    if N % 2 == 0: return u
    if N == 7: return 11 + u
    if N > 8: return [13, 14, 15, 16, 17, 18, 19, 12, 11][u]
    if N < 9:
        if not SM[0]: return 11 + u
        return 10 + u if u else (9 if N == 1 else 19)
    if u == 8: return 11
    if not SM[0]: return 12 + u
    return 11 + u if u else 19

def dma(g, N, u, grp=False):
    L = [f"s_add_u32 m0, s{S_M0G if grp else S_M0B}, {slot(N, u) * 8192}"]
    if N < 9:
        L.append(f"s_add_u32 s{S_T}, s{S_COL+N}, {u*64*9216}")
        v, s = (V_O1G if grp else V_O1), S_W1
        v2 = V_O1B
    else:
        L.append(f"s_add_u32 s{S_T}, s{S_COL+N-9}, s{S_ROW[u]}")
        v, s = (V_O2G if grp else V_O2), S_W2
        v2 = V_O2B
    if g.o.get("nodma") and N: return [L]
    L.append((f"buffer_load_dwordx4 v{v}, s[{s}:{s+3}], s{S_T} offen lds", ("u", N, u)))
    if not grp: return [L]
    d2 = (f"buffer_load_dwordx4 v{v2}, s[{s}:{s+3}], s{S_T} offen offset:1024 lds", ("u", N, u))
    if g.o.get("dpair"): return [L + [d2]]
    return [L, [d2]]

def parts(N, ks):
    if N < 9: return [(ks // 2, 2*(ks % 2)), (ks // 2, 2*(ks % 2) + 1)]
    if ks < 16: return [(2*(ks // 4), ks % 4), (2*(ks // 4) + 1, ks % 4)]
    return [(8, 2*(ks - 16)), (8, 2*(ks - 16) + 1)]

def wreads(g, r):
    N, ks = r // 18, r % 18
    b = WFS[r % g.NF]
    L = []
    for h, (u, g16) in enumerate(parts(N, ks)):
        a = slot(N, u)*8192 + 2048*g16
        L.append((f"ds_read_b64_tr_b16 v[{b+2*h}:{b+2*h+1}], v{V_TR[a >> 16]} offset:{a & 0xffff}", ("w", r) if h else None))
    return L

def mfmas(g, i):
    N, ks = i // 18, i % 18
    b = WF + 4*(i % g.NF)
    L = []
    for t in range(2):
        c = ACC[N % 2] + 4*t
        f = BIG + 8*ks + 4*t
        src = f"v[{c}:{c+3}]" if ks else (f"v[{BI}:{BI+3}]" if N < 9 else "0")
        L.append(f"v_mfma_f32_16x16x32_bf16 v[{c}:{c+3}], v[{b}:{b+3}], v[{f}:{f+3}], {src}")
    return L

def sread(ph, k):
    ks, t = k // 2, k % 2
    if ph == 0:
        off = 4096*ks + 1024*t
        v = [V_FR, V_FR2, V_FR2 + 1, V_FR2 + 2][(off >> 16) + 2*(ks % 2)]
        return (f"ds_read_b128 v[{BIG+4*k}:{BIG+4*k+3}], v{v} offset:{off & 0xffff}", ("s", k))
    if ks < 16: return (f"ds_read_b128 v[{BIG+4*k}:{BIG+4*k+3}], v{V_FR} offset:{16384*(ks//4) + 2048*(ks%4) + 1024*t}", ("s", 36 + k))
    return (f"ds_read_b128 v[{BIG+4*k}:{BIG+4*k+3}], v{V_HW} offset:{2048*(ks-16) + 1024*t}", ("s", 36 + k))

def spread(items, s0, s1, work):
    n = len(items)
    for i, it in enumerate(items):
        s = s0 + (i * (s1 - s0)) // n
        work.setdefault(s, []).extend(it if isinstance(it, list) else [it])

def gelu_list(o, n):
    L = []
    A = ACC[n % 2]
    x = [A + i for i in range(8)]
    t = [GT + i for i in range(8)]
    def dst(i):
        if n == 8: return HP + 32 + i
        return HP + 8*(n // 2) + 4*(i // 2) + 2*(n % 2) + (i % 2)
    if o.get("nogelu"):
        return [f"v_cvt_pk_bf16_f32 v{dst(i)}, v{x[2*i]}, v{x[2*i+1]}" for i in range(4)]
    P = lambda r: f"v[{r}:{r+1}]"
    if o.get("pk", 0):
        sc = f"s[{S_GC}:{S_GC+1}]"
        for i in range(0, 8, 2): L.append(f"v_pk_mul_f32 {P(t[i])}, {P(x[i])}, {P(x[i])}")
        for i in range(0, 8, 2): L.append(f"v_pk_fma_f32 {P(t[i])}, {P(t[i])}, {sc}, {sc} op_sel:[0,0,1] op_sel_hi:[1,0,1]")
        for i in range(0, 8, 2): L.append(f"v_pk_mul_f32 {P(t[i])}, {P(t[i])}, {P(x[i])}")
        for i in range(8): L.append(f"v_exp_f32 v{t[i]}, v{t[i]}")
        for i in range(0, 8, 2): L.append(f"v_pk_add_f32 {P(t[i])}, {P(t[i])}, 1.0 op_sel_hi:[1,0]")
        for i in range(8): L.append(f"v_rcp_f32 v{t[i]}, v{t[i]}")
        for i in range(0, 8, 2): L.append(f"v_pk_mul_f32 {P(t[i])}, {P(t[i])}, {P(x[i])}")
    else:
        for i in range(8): L.append(f"v_mul_f32 v{t[i]}, v{x[i]}, v{x[i]}")
        for i in range(8): L.append(f"v_fma_f32 v{t[i]}, v{t[i]}, s{S_GC}, v{V_C1}")
        for i in range(8): L.append(f"v_mul_f32 v{t[i]}, v{t[i]}, v{x[i]}")
        for i in range(8): L.append(f"v_exp_f32 v{t[i]}, v{t[i]}")
        for i in range(8): L.append(f"v_add_f32 v{t[i]}, 1.0, v{t[i]}")
        for i in range(8): L.append(f"v_rcp_f32 v{t[i]}, v{t[i]}")
        for i in range(8): L.append(f"v_mul_f32 v{t[i]}, v{t[i]}, v{x[i]}")
    for i in range(4): L.append(f"v_cvt_pk_bf16_f32 v{dst(i)}, v{t[2*i]}, v{t[2*i+1]}")
    return L

def tload(g, n):
    L = [f"s_lshl_b32 s{S_T2}, s{S_COL+n}, 11", f"s_add_u32 s{S_T2}, s{S_T2}, s{S_PB}"]
    v = V_ST
    if n == 4:
        L = [f"s_lshl_b32 s{S_N}, s{S_J}, 31", f"v_or_b32 v{V_T}, s{S_N}, v{V_ST}"] + L; v = V_T
    L.append((f"buffer_load_dwordx4 v[{TQ}:{TQ+3}], v{v}, s[{S_WS}:{S_WS+3}], s{S_T2} offen {g.o.get('tfl', '')}", ("q", n)))
    return L

def fload(g, n):
    return [f"s_lshl1_add_u32 s{S_N}, s{S_COL+n}, s{S_PF}",
            (f"buffer_load_dword v{V_PF}, off, s[{S_WS}:{S_WS+3}], s{S_N} sc1", ("pf", n))]

def fcheck(g, n):
    def f():
        nm = f"{g.nm}_pf{n}"
        g.wait(vm=[("pf", n)])
        g.e(f"v_cmp_ne_u32 vcc, s{S_TOK}, v{V_PF}")
        g.e(f"s_cbranch_vccnz {nm}")
        g.lab(f"{nm}b")
        L = ([f"s_bitcmp1_b32 s{S_J}, 0", f"s_cbranch_scc1 {nm}b"] if n == 4 else []) + [
             f"s_lshl1_add_u32 s{S_N}, s{S_COL+n}, s{S_PF}", f"s_mov_b32 s{S_T2}, {SPIN}"]
        M = [f"buffer_load_dword v{V_PF}, off, s[{S_WS}:{S_WS+3}], s{S_N} sc1", f"s_sub_u32 s{S_T2}, s{S_T2}, 1", "s_waitcnt vmcnt(0)",
             f"s_cbranch_scc1 {nm}b", f"v_cmp_ne_u32 vcc, s{S_TOK}, v{V_PF}", f"s_cbranch_vccnz {nm}l", f"s_branch {nm}b"]
        g.ool += [f"{nm}:"] + ["  " + x for x in L] + [f"{nm}l:"] + ["  " + x for x in M]
    return f

def tswap(g, n):
    return [lambda: g.wait(vm=[("q", n)]), f"v_permlane16_swap_b32 v{TQ}, v{TQ+2}", f"v_permlane16_swap_b32 v{TQ+1}, v{TQ+3}"]

def cvt(g, n):
    A = ACC[(n + 9) % 2]; P = PKR + 4*(n % g.o.get("npk", 1))
    L = []
    if n >= 4:
        tc = g.o.get("tc", 0)
        if tc == 2 and n < 8:
            ex = lambda d, i: [f"v_lshlrev_b32 v{d}, 16, v{TQ+i}", f"v_and_b32 v{d+1}, 0xffff0000, v{TQ+i}"]
            ad = lambda d, i: [f"v_pk_add_f32 v[{A+2*i}:{A+2*i+1}], v[{A+2*i}:{A+2*i+1}], v[{d}:{d+1}]"]
            L += ex(P, 0) + ex(P + 2, 1) + ex(TQ, 2) + ad(P, 0) + ad(P + 2, 1) + ex(P, 3) + ad(TQ, 2) + ad(P, 3)
        else:
            for i in (0, 2, 1, 3): L += [f"v_dot2c_f32_bf16 v{A+2*i}, s{S_LO}, v{TQ+i}", f"v_dot2c_f32_bf16 v{A+2*i+1}, s{S_HI}, v{TQ+i}"]
        if tc == 1: L = [x.replace("v_dot2c_f32_bf16", "v_add_f32") for x in L]
        if tc == 3: L = []
    TM, TC = (P + 2, P + 3) if n < 2 else (V_TM, V_TC)
    if n < 3: L += [f"v_bfe_i32 v{TM}, v{V_LANE}, 4, 1", f"v_and_b32 v{TC}, 0x10000, v{TM}", f"v_or_b32 v{TM}, 0xfffe0000, v{TM}", f"v_xor_b32 v{TC}, 0x10000, v{TC}"]
    if n < 4: L += [f"v_add_u32 v{r}, v{r}, v{TC}" for r in (A, A + 4)] + [f"v_and_b32 v{r}, v{r}, v{TM}" for r in (A, A + 4)]
    if n > 4: L += [f"v_and_or_b32 v{r}, v{r}, v{V_TM}, v{V_TC}" for r in (A, A + 4)]
    if n == 4:
        L += [[f"s_lshl_b32 s{S_N}, s{S_J}, 16", f"v_and_b32 v{P}, s{S_N}, v{V_TC}"]] + [f"v_add_u32 v{r}, v{r}, v{P}" for r in (A, A + 4)]
        L += [f"v_xor_b32 v{P}, v{P}, v{V_TC}"] + [f"v_and_or_b32 v{r}, v{r}, v{V_TM}, v{P}" for r in (A, A + 4)]
    L += [f"v_cvt_pk_bf16_f32 v{P+i}, v{A+2*i}, v{A+2*i+1}" for i in range(4)]
    L.append("s_nop 0")
    L.append(f"v_permlane16_swap_b32 v{P}, v{P+2}")
    L.append(f"v_permlane16_swap_b32 v{P+1}, v{P+3}")
    return L

def pstore(g, n):
    P = PKR + 4*(n % g.o.get("npk", 1))
    L = [f"s_lshl_b32 s{S_T2}, s{S_COL+n}, 11", f"s_add_u32 s{S_T2}, s{S_T2}, s{S_PB}"]
    st = f"buffer_store_dwordx4 v[{P}:{P+3}], v{V_ST}, s[{S_WS}:{S_WS+3}], s{S_T2} offen"
    if n < 4: L.append(f"v_and_b32 v{P}, -2, v{P}")
    if n > 4: L.append(f"v_or_b32 v{P}, 1, v{P}")
    if n == 4: L += [[f"s_andn2_b32 s{S_N}, 1, s{S_J}", f"v_and_or_b32 v{P}, v{P}, -2, s{S_N}"]]
    return L + [(f"{st} {g.o.get('gfl', 'sc1') if n < 4 else g.o.get('ffl', 'sc1')}", ("p", n))]

def flag_store(g, n):
    return [f"s_lshl1_add_u32 s{S_N}, s{S_COL+n}, s{S_FLG}",
            (f"buffer_store_dword v{V_TOK}, v{V_L0}, s[{S_WS}:{S_WS+3}], s{S_N} offen sc1", ("f", n))]

class Sched:
    def __init__(self, g, first):
        self.g = g
        A = [(N, u) for N in range(18) for u in range(9)]
        self.q = A[first:]
        self.own = {}
        for N, u in A[:first]: self.own[slot(N, u)] = (N, u)
        self.hold = {}
    def ok(self, N, u):
        s_ = slot(N, u)
        return s_ not in self.own and not (s_ in self.hold and N >= self.hold[s_])
    def claim(self, slots, nm):
        for s_ in slots:
            assert s_ not in self.own, (s_, nm, self.own[s_])
            self.own[s_] = nm
    def free(self, slots):
        for s_ in slots:
            assert isinstance(self.own[s_], str), (s_, self.own[s_])
            del self.own[s_]; self.hold.pop(s_, None)
    def release(self, i):
        for s_, x in list(self.own.items()):
            if isinstance(x, tuple):
                N, u = x
                last = max(ks for ks in range(18) if any(p[0] == u for p in parts(N, ks)))
                if 18*N + last <= i: del self.own[s_]
    def take(self, cap):
        R = []
        while self.q and len(R) < cap and self.ok(*self.q[0]):
            x = self.q.pop(0); self.own[slot(*x)] = x
            R.append(x)
        return R

def mfma(g, i, t):
    N, ks = i // 18, i % 18
    b = WFS[i % g.NF]
    c = ACC[N % 2] + 4*t
    f = BIG + 8*ks + 4*t
    src = f"v[{c}:{c+3}]" if ks else (f"v[{BI}:{BI+3}]" if N < 9 else "0")
    return f"v_mfma_f32_16x16x32_bf16 v[{c}:{c+3}], v[{b}:{b+3}], v[{f}:{f+3}], {src}"

def isvalu(x):
    t = x[0] if isinstance(x, tuple) else x
    return isinstance(t, str) and t.startswith("v_")

def seq(j):
    R = []
    for i in (2*j - 2, 2*j - 1): R.append((i, 1 - (i % 18) // 2 % 2) if i >= 0 else None)
    for i in (2*j, 2*j + 1): R.append((i, (i % 18) // 2 % 2) if i < 324 else None)
    return R
SO = [2*m[0] + m[1] for j in range(10) for m in seq(j) if m and m[0] < 18]

def stream(g, sc, bars, work, hooks, pre, post, inb, bw, bv, act, aft):
    o = g.o; D = g.NF - 2; E = D + D % 2 + 2
    i1 = 324
    first = lambda r: r - D % 2
    def need(r0):
        nx = min([first(b) for b in bars if b > r0] + [i1])
        return [("u", r // 18, p[0]) for r in range(first(r0), nx) for p in parts(r // 18, r % 18)]
    due = {}
    for b in bars:
        for t in need(b): due.setdefault(t[1:], (b - E) // 2)
    for r in range(D):
        for x in wreads(g, r): g.put(x)
        for x in inb.pop((-1, r), []): g.put(x)
    vq = []
    log = []
    for j in range(163):
        r = 2*j + E
        bar = r in bars
        tgt = o.get("tgt%d" % (1 + j // 81), o.get("tgt", 7))
        if bar:
            sc.release(2*j + 1)
            for f in act.pop(r, []): f()
            vq += pre.pop(r, [])
        X = []
        if vq: X.append(vq.pop(0))
        us = sc.take(1) if j < 162 else []
        while us and len(us) < o.get("dmax", 2) and sc.q and due[sc.q[0]] - j < tgt and sc.ok(*sc.q[0]): us += sc.take(1)
        log += [(j, u, due[u] - j) for u in us]
        if bar: vq += post.pop(r, [])
        dm = [dma(g, N, u)[0] for N, u in us]
        rr = [x for i in (2*j + D, 2*j + D + 1) if i < i1 and not o.get("noread") for x in wreads(g, i)]
        sl = dm[0][:2] if dm else []
        S = seq(j)
        def stag(m): return [("s", 2*m[0] + m[1])] if m[0] < 18 else [("s", 36 + 2*(m[0] - 162) + m[1])] if 162 <= m[0] < 180 else []
        for q, m in enumerate(S):
            tags = []
            if q == o.get("wq", 0) and j > 1:
                tags += [("w", 2*j), ("w", 2*j + 1)] + (["bias"] if j % 9 == 0 else [])
                if o.get("sw", 1): tags += [t for m2 in S if m2 for t in stag(m2)]
            if m:
                tags.append(("w", m[0]))
                tags += stag(m)
                for t in stag(m): assert t in g.lds or t in g.done, (j, t)
                if m[0] % 18 == 0: tags.append("bias")
                if o.get("sp") == 2 and q == 0: g.e("s_setprio 1")
                g.wait(lds=tags)
                if o.get("sp") == 1 and q == 0: g.e("s_setprio 1")
                if o.get("sp") == 3 and q == 0: g.e("s_setprio 0")
                if not o.get("nomfma"): g.e(mfma(g, *m))
                if o.get("sp") in (1, 2) and q == 3: g.e("s_setprio 0")
                if o.get("sp") == 3 and q == 3: g.e("s_setprio 1")
                for _ in range(2 if j == 0 else 1):
                    if rr: g.put(rr.pop(0))
                if sl: g.put(sl.pop(0))
                for x in inb.pop((j, q), []): g.put(x)
        assert not rr
        if bar:
            nd = need(r)
            assert not [t for t in nd if t[1:] in sc.q or t[1:] in us], r
            for t in bw.get(r, []) + bv.get(r, []): assert t in g.lds or t in g.vm or t in g.done, (r, t)
            g.wait(vm=nd + bv.pop(r, []), lds=bw.pop(r, []))
            if r in hooks: hooks.pop(r)()
            if r in o.get("sl", [8, 18, 26, 80, 152, 164, 180, 188, 206, 242, 278, 296, 310, 318]): g.stamp()
            if not o.get("nobar"): g.e("s_barrier")
            g.bdone = set(g.done)
        if dm:
            for x in dm[0][2:]: g.put(x)
        if bar:
            for x in aft.pop(r, []): g.put(x)
        V = [x for s_ in range(4*j - 2, 4*j + 2) for x in work.pop(s_, [])]
        if j == 162: work[4*j - 2] = V; break
        for Y in dm[1:]:
            for x in Y[:2]: g.put(x)
            for _ in range(o.get("dgap", 2)):
                if V and isvalu(V[0]): g.put(V.pop(0))
            for x in Y[2:]: g.put(x)
        k = o.get("xgap", 2)
        while k and V and isvalu(V[0]) and X:
            g.put(V.pop(0)); k -= 1
        for Y in X:
            for x in Y: g.put(x)
        for x in V: g.put(x)
    if o.get("log"): print(log)
    assert not (vq or inb or pre or post or bw or bv or act or aft or hooks), (vq, inb, pre, post, bw, bv, act, aft, hooks)
    assert not [s_ for s_ in work if s_ < 2*i1 and work[s_]], sorted(work)

def deal(items, j0, n, work):
    cost = [2 if x.startswith("v_exp") or x.startswith("v_rcp") else 1 for x in items]
    tot = sum(cost); cum = 0
    for x, c in zip(items, cost):
        work.setdefault(4*(j0 + min(n - 1, int((cum + c / 2) * n / tot))), []).append(x); cum += c

def finish(g):
    if g.o.get("stamps"):
        g.stamp()
        g.e("s_waitcnt vmcnt(0)")
        g.stamp()
        g.rstamp(63)
        g.e(f"s_lshl_b32 s{S_T}, s2, 11")
        g.e(f"s_add_u32 s{S_T}, s{S_T}, {STAMP_OFF}")
        g.e(f"v_lshlrev_b32 v{V_T}, 2, v{V_TID}")
        g.e(f"buffer_store_dword v{V_STAMP}, v{V_T}, s[{S_WS}:{S_WS+3}], s{S_T} offen")
    g.e("s_endpgm")

def bf16round(g, v):
    g.e(f"v_cvt_pk_bf16_f32 v{v}, v{v}, v{v}")
    g.e(f"v_and_b32 v{v}, 0xffff0000, v{v}")

class H:
    def __init__(self): self.L = []; self.e = self.L.append

def prologue(g, name):
    o = g.o; e = g.e; raw = lambda s_: g.L.append("  " + s_)
    full = not o.get("core")
    e("s_cmp_ge_u32 s2, 256")
    e(f"s_cbranch_scc1 {name}_exit")
    e(f"s_load_dwordx2 s[{S_Q}:{S_Q+1}], s[0:1], 0")
    if o.get("stamps"):
        e(f"s_mov_b32 s{S_SI}, 0"); e(f"v_mov_b32 v{V_STAMP}, 0")
        g.rstamp(62)
        g.stamp()
    ep = o.get("ep", 0)
    if ep:
        e(f"s_getpc_b64 s[{S_PC}:{S_PC+1}]")
        e(f"v_lshrrev_b32 v{V_T}, {ep}, v{V_TID}")
        e(f"v_lshlrev_b32 v{V_T}, 7, v{V_T}")
        raw(f"global_load_dword v{V_DUM}, v{V_T}, s[{S_PC}:{S_PC+1}] offset:128")
    KA_ = [f"s_load_dwordx2 s[{s_}:{s_+1}], s[0:1], {off}" for s_, off in ((S_W1, 56), (S_B1, 64), (S_W2, 72), (S_WS, 104), (S_K, 8), (S_V, 16),
           (S_SH, 24), (S_KF, 32), (S_DP, 40), (S_BP, 80), (S_OUT, 88), (S_DBG, 96))]
    if o.get("kae", 0):
        for x in KA_: e(x)
    e(f"s_lshr_b32 s{S_RB}, s2, 4")
    e(f"s_and_b32 s{S_T}, s2, 4")
    e(f"s_lshl2_add_u32 s{S_RB}, s{S_T}, s{S_RB}")
    e(f"v_lshrrev_b32 v{LT}, 3, v{V_TID}")
    e(f"s_and_b32 s{S_T}, s2, 8")
    e(f"s_lshl_b32 s{S_T}, s{S_T}, 2")
    e(f"v_xor_b32 v{LT}, s{S_T}, v{LT}")
    e(f"v_and_b32 v{LT+1}, 7, v{V_TID}")
    e(f"s_mul_i32 s{S_T2}, s{S_RB}, {64*1152}")
    e(f"v_lshl_add_u32 v{LT+6}, v{LT+1}, 4, s{S_T2}")
    e(f"v_mul_u32_u24 v{LT+2}, 1152, v{LT}")
    e(f"v_add_u32 v{LT+6}, v{LT+6}, v{LT+2}")
    e(f"v_cmp_gt_u32 vcc, 256, v{V_TID}")
    srd(g, S_Q, 2359296)
    e("s_waitcnt lgkmcnt(0)")
    if o.get("pst"): g.stamp()
    xl = lambda i: f"buffer_load_dwordx4 v[{XR+4*i}:{XR+4*i+3}], v{LT+6}, s[{S_Q}:{S_Q+3}], 0 offen offset:{128*i}"
    y0 = o.get("y0", 1)
    for i in range(9):
        if i == y0: e(f"s_cbranch_vccz {name}_y0")
        raw(xl(i))
    e(f"s_getpc_b64 s[{S_PC}:{S_PC+1}]")
    g.lab(f"{name}_pc")
    e(f"s_lshr_b32 s{S_T}, s2, 3")
    e(f"v_lshl_add_u32 v{V_T}, v{V_TID}, 5, s{S_T}")
    e(f"v_lshlrev_b32 v{V_T}, 7, v{V_T}")
    e(f"v_min_u32 v{V_T}, {name}_exit-{name}_pc, v{V_T}")
    raw(f"global_load_dword v{V_DUM}, v{V_T}, s[{S_PC}:{S_PC+1}]")
    g.lab(f"{name}_y0")
    if not o.get("kae", 0):
        for x in KA_: e(x)
    if o.get("pst"): g.stamp()
    h = H(); e = h.e
    e(f"v_lshrrev_b32 v{V_T}, 6, v{V_TID}")
    e(f"v_and_b32 v{V_LANE}, 63, v{V_TID}")
    e(f"v_readfirstlane_b32 s{S_W}, v{V_T}")
    e(f"s_and_b32 s{S_J}, s2, 3")
    e(f"s_bfe_u32 s{S_T}, s2, {3 | (1 << 16)}")
    e(f"s_lshl1_add_u32 s{S_J}, s{S_J}, s{S_T}")
    srd(h, S_W1, 5308416); srd(h, S_W2, 5308416); srd(h, S_B1, 9216)
    srd(h, S_WS, 268435456)
    srd(h, S_K, 2359296); srd(h, S_V, 2359296); srd(h, S_SH, 4608)
    srd(h, S_KF, 2359296); srd(h, S_OUT, 2359296); srd(h, S_DBG, 256)
    e(f"s_and_b32 s{S_QW}, s{S_W}, 3")
    e(f"s_lshr_b32 s{S_MH}, s{S_W}, 2")
    e(f"s_lshl_b32 s{S_M0B}, s{S_W}, 10")
    e(f"s_lshl2_add_u32 s{S_ROT}, s{S_T}, s{S_RB}")
    e(f"s_mul_i32 s{S_T}, s{S_ROT}, 57")
    e(f"s_lshr_b32 s{S_T}, s{S_T}, 9")
    e(f"s_mul_i32 s{S_T}, s{S_T}, 9")
    e(f"s_sub_u32 s{S_ROT}, s{S_ROT}, s{S_T}")
    e(f"s_lshl_b32 s{S_COL}, s{S_ROT}, 7")
    for u in range(1, 9):
        e(f"s_add_u32 s{S_COL+u}, s{S_COL+u-1}, 128")
        e(f"s_cmp_eq_u32 s{S_COL+u}, 1152")
        e(f"s_cselect_b32 s{S_COL+u}, 0, s{S_COL+u}")
    e(f"v_lshrrev_b32 v{LT+3}, 3, v{V_TID}")
    e(f"v_and_b32 v{LT+4}, 6, v{LT+3}")
    e(f"v_xor_b32 v{LT+4}, v{LT+4}, v{LT+1}")
    e(f"v_lshlrev_b32 v{LT+4}, 4, v{LT+4}")
    e(f"s_mul_i32 s{S_N}, s{S_J}, 1152")
    e(f"v_mul_u32_u24 v{V_O1}, 9216, v{LT+3}")
    e(f"v_add3_u32 v{V_O1}, v{V_O1}, v{LT+4}, s{S_N}")
    e(f"s_mul_i32 s{S_T}, s{S_J}, {576*1152}")
    e(f"v_mul_u32_u24 v{V_O2}, 1152, v{LT+3}")
    e(f"v_add3_u32 v{V_O2}, v{V_O2}, v{LT+4}, s{S_T}")
    e(f"s_lshl_b32 s{S_T}, s{S_QW}, 1")
    e(f"s_sub_u32 s{S_T}, s{S_T}, s{S_W}")
    e(f"s_mul_i32 s{S_T2}, s{S_T}, {8*9216}")
    e(f"v_add_u32 v{V_O1G}, s{S_T2}, v{V_O1}")
    e(f"v_add_u32 v{V_O1B}, {8*9216-1024}, v{V_O1G}")
    e(f"s_lshl_b32 s{S_M0G}, s{S_QW}, 11")
    by = o.get("by", 1)
    if by:
        e(f"v_and_b32 v{V_BO}, 255, v{V_TID}")
        e(f"v_lshl_add_u32 v{V_BO}, v{V_BO}, 3, s{S_COL}")
    else: e(f"v_lshl_add_u32 v{V_BO}, v{V_TID}, 2, s{S_COL}")
    e(f"v_subrev_u32 v{V_T}, 1152, v{V_BO}")
    e(f"v_min_u32 v{V_BO}, v{V_BO}, v{V_T}")
    e(f"v_add_u32 v{V_BO}, s{S_N}, v{V_BO}")
    e(f"v_lshrrev_b32 v{LT+8}, 4, v{V_LANE}")
    e(f"v_lshrrev_b32 v{LT+9}, 2, v{V_LANE}")
    e(f"v_lshlrev_b32 v{V_TR[0]}, 7, v{LT+9}")
    e(f"v_bfe_u32 v{LT+9}, v{V_LANE}, 3, 2")
    e(f"v_xor_b32 v{LT+9}, s{S_QW}, v{LT+9}")
    e(f"v_lshl_add_u32 v{V_TR[0]}, v{LT+9}, 5, v{V_TR[0]}")
    e(f"v_and_b32 v{LT+9}, 3, v{V_LANE}")
    e(f"v_lshl_add_u32 v{V_TR[0]}, v{LT+9}, 3, v{V_TR[0]}")
    e(f"v_add_u32 v{V_TR[1]}, 65536, v{V_TR[0]}")
    e(f"v_add_u32 v{V_TR[2]}, 131072, v{V_TR[0]}")
    e(f"s_lshl_b32 s{S_T}, s{S_MH}, 11")
    e(f"s_add_u32 s{S_T}, s{S_T}, {XL}")
    e(f"v_lshrrev_b32 v{LT+7}, 5, v{V_LANE}")
    e(f"v_mul_u32_u24 v{LT+7}, 26, v{LT+7}")
    e(f"v_and_b32 v{V_FR}, 15, v{V_LANE}")
    e(f"v_xor_b32 v{V_FR}, v{V_FR}, v{LT+7}")
    e(f"v_and_b32 v{LT+7}, 16, v{V_LANE}")
    e(f"v_lshl_add_u32 v{V_FR}, v{LT+7}, 1, v{V_FR}")
    e(f"v_lshl_add_u32 v{V_FR}, v{V_FR}, 4, s{S_T}")
    e(f"v_add_u32 v{V_FR2}, 65536, v{V_FR}")
    e(f"v_xor_b32 v{V_FR2+1}, 64, v{V_FR}")
    e(f"v_xor_b32 v{V_FR2+2}, 64, v{V_FR2}")
    e(f"v_and_b32 v{LT+9}, 1, v{V_LANE}")
    e(f"v_mul_u32_u24 v{LT+9}, 26, v{LT+9}")
    e(f"v_and_b32 v{LT+2}, 15, v{LT}")
    e(f"v_xor_b32 v{LT+2}, v{LT+2}, v{LT+9}")
    e(f"v_and_b32 v{LT+9}, 48, v{LT}")
    e(f"v_lshl_add_u32 v{LT+2}, v{LT+9}, 2, v{LT+2}")
    e(f"v_and_b32 v{LT+9}, 4, v{V_LANE}")
    e(f"v_xor_b32 v{LT+2}, v{LT+2}, v{LT+9}")
    e(f"v_lshl_add_u32 v{LT+2}, v{LT+9}, 6, v{LT+2}")
    e(f"v_lshlrev_b32 v{LT+2}, 4, v{LT+2}")
    e(f"v_and_b32 v{LT+9}, 2, v{V_LANE}")
    e(f"v_lshl_add_u32 v{LT+2}, v{LT+9}, 2, v{LT+2}")
    e(f"v_add_u32 v{LT+2}, {XL}, v{LT+2}")
    c1 = 2.0 * math.sqrt(2.0 / math.pi) * math.log2(math.e)
    e(f"v_mov_b32 v{V_C1}, 0x{f32bits(-c1):08x}")
    e(f"s_mov_b32 s{S_GC}, 0x{f32bits(-c1*0.044715):08x}")
    e(f"v_or_b32 v{V_SAD}, s{S_J}, v{LT+1}")
    e(f"v_lshlrev_b32 v{V_SAD}, 28, v{V_SAD}")
    e(f"v_lshl_add_u32 v{V_SAD}, v{LT}, 3, v{V_SAD}")
    SA, SB, QA, QB, ONE = LT+10, LT+11, V_QA, V_QA+1, LT+14
    for r in (SA, SB, QA, QB): e(f"v_mov_b32 v{r}, 0")
    e(f"v_mov_b32 v{ONE}, 0x3f803f80")
    e(f"s_lshr_b32 s{S_T}, s2, 3")
    e(f"s_mul_i32 s{S_PART}, s{S_T}, 57")
    e(f"s_lshr_b32 s{S_PART}, s{S_PART}, 9")
    e(f"s_and_b32 s{S_G}, s2, 7")
    e(f"s_sub_u32 s{S_G}, s{S_G}, s{S_PART}")
    e(f"s_mul_i32 s{S_G}, s{S_G}, 9")
    e(f"s_add_u32 s{S_G}, s{S_G}, s{S_T}")
    e(f"s_lshl1_add_u32 s{S_T}, s2, -432")
    e(f"s_min_u32 s{S_T}, s{S_T}, 70")
    e(f"s_cmp_eq_u32 s{S_PART}, 3")
    e(f"s_cselect_b32 s{S_G}, s{S_T}, s{S_G}")
    e(f"s_cselect_b32 s{S_INFO}, 16, 0")
    e("s_cmp_ge_u32 s2, 252")
    e(f"s_cselect_b32 s{S_PART}, 4, s{S_PART}")
    e(f"s_lshl_b32 s{S_T}, s{S_G}, 4")
    e(f"s_add_u32 s{S_INFO}, s{S_INFO}, s{S_T}")
    S1 = atoms(h.L)
    DB = [f"s_load_dwordx4 s[{S_B2}:{S_B2+3}], s[{S_BP}:{S_BP+1}], s{S_T}",
          f"s_lshl3_add_u32 s{S_T}, s{S_MH}, s{S_T}", f"s_load_dwordx2 s[{S_DR}:{S_DR+1}], s[{S_DP}:{S_DP+1}], s{S_T}",
          f"s_lshl3_add_u32 s{S_T}, s{S_MH}, s{S_INFO}", f"s_load_dwordx2 s[{S_DR+2}:{S_DR+3}], s[{S_DP}:{S_DP+1}], s{S_T}"]
    S1.append(([] if o.get("kae", 0) else ["s_waitcnt lgkmcnt(0)"]) + DB)
    S2 = (atoms(setup2()) + (setup3(o) if full else [])) if o.get("sup", 1) else []
    S2 = [[f"s_load_dwordx4 s[{S_B3}:{S_B3+3}], s[{S_BP}:{S_BP+1}], s{S_INFO}"]] + S2
    e = g.e
    cnt = [0]
    def hook(L):
        cnt[0] += 1
        e(f"s_cbranch_vccnz {name}_h{cnt[0]}")
        for x in L: raw(x)
        g.lab(f"{name}_h{cnt[0]}")
    def weave(S, Hs, f0, f1):
        at = [int(len(S) * (f0 + (f1 - f0) * k / max(1, len(Hs) - 1))) for k in range(len(Hs))]
        for k in range(len(S) + 1):
            for a_, L in zip(at, Hs):
                if a_ == k: hook(L)
            if k < len(S):
                for x in S[k]: e(x)
    def gdma(u, st):
        N, u = u // 9, u % 9
        return [[f"s_add_u32 m0, s{S_M0G}, {slot(N, u) * 8192}", f"s_add_u32 s{st}, s{S_COL+N}, {u*64*9216}",
                 f"buffer_load_dwordx4 v{V_O1G}, s[{S_W1}:{S_W1+3}], s{st} offen lds"],
                [f"buffer_load_dwordx4 v{V_O1B}, s[{S_W1}:{S_W1+3}], s{st} offen offset:1024 lds"]]
    weave(S1, [[xl(i)] for i in range(y0, 9)], *o.get("wv1", [0.1, 1.0]))
    e(f"s_or_b32 s{S_T}, s2, s{S_W}")
    e(f"s_cbranch_scc0 {name}_mk")
    g.lab(f"{name}_mkb")
    if o.get("pst"): g.stamp()
    ny = o.get("ny", 1)
    H2 = sum([gdma(u, S_YT) for u in range(ny)], [])
    if by: H2[0] = [f"buffer_load_dwordx2 v[{LT+32}:{LT+33}], v{V_BO}, s[{S_B1}:{S_B1+3}], 0 offen"] + H2[0]
    else: raw(f"buffer_load_dword v{BR}, v{V_BO}, s[{S_B1}:{S_B1+3}], 0 offen")
    weave(S2, H2, *o.get("wv2", [0.0, 1.0]))
    if o.get("pst"): g.stamp()
    def stats(later):
        for i in range(9):
            e(f"s_waitcnt vmcnt({8 - i + later})")
            if i == 0 and o.get("pst"): g.stamp()
            for c in range(4):
                x = XR + 4*i + c
                e(f"v_dot2c_f32_bf16 v{SA if c%2==0 else SB}, v{x}, v{ONE}")
                e(f"v_dot2c_f32_bf16 v{QA if c%2==0 else QB}, v{x}, v{x}")
    e(f"s_cbranch_vccz {name}_sy")
    stats(2 - by)
    if not by: e("s_waitcnt vmcnt(0)")
    e(f"s_branch {name}_sj")
    g.lab(f"{name}_sy")
    stats(1 + 2*ny)
    e(f"s_waitcnt vmcnt({2*ny})")
    g.lab(f"{name}_sj")
    if o.get("pst") or o.get("ps2"): g.stamp()
    pl = o.get("pl", [-1, -1, -1, 2, 4, 6, 8, 9, 9])
    ool = []
    def pd(pos):
        us = [ny + k for k in range(len(pl)) if pl[k] == pos]
        if not us: return
        e(f"s_cbranch_vccnz {name}_p{pos + 1}")
        g.lab(f"{name}_p{pos + 1}b")
        ool.append(f"{name}_p{pos + 1}:")
        for u in us:
            for x in sum(gdma(u, S_T), []): ool.append("  " + x)
            g.vm.extend([("u", u // 9, u % 9)] * 2)
        ool.append(f"  s_branch {name}_p{pos + 1}b")
    pd(-1)
    e("s_nop 2")
    e(f"v_add_f32 v{SA}, v{SA}, v{SB}")
    e(f"v_add_f32 v{QA}, v{QA}, v{QB}")
    for dpp in ("quad_perm:[1,0,3,2]", "quad_perm:[2,3,0,1]", "row_half_mirror"):
        e("s_nop 0")
        e(f"v_add_f32 v{SA}, v{SA}, v{SA} {dpp} row_mask:0xf bank_mask:0xf")
        e(f"v_add_f32 v{QA}, v{QA}, v{QA} {dpp} row_mask:0xf bank_mask:0xf")
    inv = f"0x{f32bits(1.0/576.0):08x}"
    e(f"v_mul_f32 v{SA}, {inv}, v{SA}")
    e(f"v_mul_f32 v{QA}, {inv}, v{QA}")
    e(f"v_fma_f32 v{QA}, -v{SA}, v{SA}, v{QA}")
    e(f"v_max_f32 v{QA}, 0, v{QA}")
    bf16round(g, SA)
    bf16round(g, QA)
    e(f"v_add_f32 v{QA}, 0x{f32bits(1e-5):08x}, v{QA}")
    bf16round(g, QA)
    e(f"v_sqrt_f32 v{QA}, v{QA}")
    e("s_nop 0")
    bf16round(g, QA)
    e(f"v_rcp_f32 v{QA}, v{QA}")
    e("s_nop 0")
    e(f"v_mul_f32 v{QB}, -v{SA}, v{QA}")
    assert QA % 2 == 0
    T0 = LT + 16
    for i in range(9):
        t = T0 + 8*(i % 2)
        for c in range(4):
            x = XR + 4*i + c
            e(f"v_lshlrev_b32 v{t+2*c}, 16, v{x}")
            e(f"v_and_b32 v{t+2*c+1}, 0xffff0000, v{x}")
        for c in range(4):
            e(f"v_pk_fma_f32 v[{t+2*c}:{t+2*c+1}], v[{t+2*c}:{t+2*c+1}], v[{QA}:{QA+1}], v[{QA}:{QA+1}] op_sel:[0,0,1] op_sel_hi:[1,0,1]")
        x = 16 + 4*i
        for c in range(4): e(f"v_cvt_pk_bf16_f32 v{x+c}, v{t+2*c}, v{t+2*c+1}")
        e(f"ds_write2st64_b64 v{LT+2}, v[{x}:{x+1}], v[{x+2}:{x+3}] offset0:{16*i} offset1:{16*i+1}")
        if i == 1 and by:
            hook([f"v_lshlrev_b32 v{LT+36}, 16, v{LT+32}", f"v_and_b32 v{LT+37}, 0xffff0000, v{LT+32}", f"v_lshlrev_b32 v{LT+38}, 16, v{LT+33}",
                  f"v_and_b32 v{LT+39}, 0xffff0000, v{LT+33}", f"v_lshlrev_b32 v{V_BO}, 4, v{V_TID}", f"v_add_u32 v{V_BO}, {TBL - 4096}, v{V_BO}",
                  f"ds_write_b128 v{V_BO}, v[{LT+36}:{LT+39}]"])
        elif i == 1:
            e(f"v_lshlrev_b32 v{SA}, 16, v{BR}")
            e(f"v_and_b32 v{SB}, 0xffff0000, v{BR}")
            e(f"v_lshlrev_b32 v{V_BO}, 3, v{V_TID}")
            e(f"v_add_u32 v{V_BO}, {TBL}, v{V_BO}")
            e(f"ds_write_b64 v{V_BO}, v[{SA}:{SB}]")
        pd(i)
    if o.get("pst"): g.stamp()
    e(f"s_lshl_b32 s{S_T}, s{S_QW}, 6")
    e(f"s_add_u32 s{S_T}, s{S_T}, {TBL}")
    e(f"v_lshl_add_u32 v{V_BO}, v{LT+8}, 4, s{S_T}")
    pd(9)
    e(f"s_cbranch_vccnz {name}_pe")
    e("s_waitcnt vmcnt(0)")
    e(f"s_branch {name}_pe")
    g.L += ool
    g.lab(f"{name}_pe")
    for u in range(ny): g.done.add(("u", 0, u))
    fb = o.get("xr", [[8]])[0][0]
    g.wait(vm=[("u", 0, u) for u in range((fb + 1)//2)], alllds=True)
    g.stamp()
    e("s_barrier")
    return ny + len(pl)

def bias_read(n):
    return [(f"ds_read_b128 v[{BI}:{BI+3}], v{V_BO} offset:{256*n}", "bias")]

def setup2():
    L = []; e = L.append
    for u in range(9): e(f"s_mul_i32 s{S_ROW[u]}, s{S_COL+u}, 576")
    e(f"v_and_b32 v{V_ST}, 31, v{V_LANE}")
    e(f"v_lshlrev_b32 v{V_ST}, 4, v{V_ST}")
    e(f"v_lshrrev_b32 v{V_T}, 5, v{V_LANE}")
    e(f"v_lshl_add_u32 v{V_ST}, v{V_T}, 15, v{V_ST}")
    e(f"s_and_b32 s{S_PB}, s2, 3")
    e(f"s_mul_i32 s{S_PB}, s{S_PB}, 36")
    e(f"s_add_u32 s{S_PB}, s{S_PB}, s{S_QW}")
    e(f"s_lshl_b32 s{S_PB}, s{S_PB}, 6")
    e(f"s_add_u32 s{S_PB}, s{S_PB}, s{S_RB}")
    e(f"s_lshl1_add_u32 s{S_PB}, s{S_PB}, s{S_MH}")
    e(f"s_lshl_b32 s{S_PB}, s{S_PB}, 9")
    e(f"s_lshl_b32 s{S_N}, s{S_W}, 11")
    e(f"v_lshl_add_u32 v{V_HW}, v{V_LANE}, 4, s{S_N}")
    e(f"v_min_u32 v{V_L0}, 1, v{V_TID}")
    e(f"v_lshlrev_b32 v{V_L0}, 31, v{V_L0}")
    e(f"s_mul_i32 s{S_FLG}, s{S_RB}, 36")
    e(f"s_add_u32 s{S_FLG}, s{S_FLG}, s{S_QW}")
    e(f"s_lshl1_add_u32 s{S_FLG}, s{S_FLG}, s{S_MH}")
    e(f"s_lshl3_add_u32 s{S_FLG}, s{S_FLG}, s{S_J}")
    e(f"s_lshl2_add_u32 s{S_FLG}, s{S_FLG}, {FLAG_OFF}")
    return L

def atoms(L):
    R = []; open_ = False
    for x in L:
        t = x[0] if isinstance(x, tuple) else x
        if isinstance(t, str) and (t.startswith("s_cselect") or t.startswith("s_addc") or (open_ and t.startswith("s_mov"))): R[-1].append(x)
        else:
            R.append([x]); open_ = isinstance(t, str) and t.startswith("s_cmp")
    return R

def setup3(o):
    L = []; e = L.append
    e(f"s_lshr_b32 s{S_T2}, s2, 3")
    e(f"s_and_b32 s{S_ONES}, s2, 7")
    e(f"s_mul_i32 s{S_INFO}, s{S_T2}, 576")
    e(f"s_add_u32 s{S_INFO}, s{S_INFO}, s{S_ONES}")
    e(f"s_lshl_b32 s{S_INFO}, s{S_INFO}, 7")
    e(f"s_lshl_b32 s{S_N}, s{S_ONES}, 11")
    e(f"s_add_u32 s{S_N}, s{S_N}, s{S_T2}")
    e(f"s_lshl_b32 s{S_N}, s{S_N}, 7")
    e(f"s_and_b32 s{S_T2}, s2, 31")
    e(f"s_mul_i32 s{S_T}, s{S_T2}, {64*1152}")
    e(f"s_lshl_b32 s{S_T2}, s{S_T2}, 7")
    e(f"s_brev_b32 s{S_ONES}, 1")
    e(f"s_lshr_b32 s{S_KM}, s2, 5")
    e(f"s_cmp_eq_u32 s{S_KM}, {o.get('u2', 7)}")
    e(f"s_cselect_b32 s{S_KM2}, 1024, s{S_ONES}")
    e(f"s_cselect_b32 s{S_ONES}, {8 << 18}, s{S_ONES}")
    e(f"s_add_u32 s{S_T}, s{S_T}, s{S_KM2}")
    e(f"s_add_u32 s{S_T2}, s{S_T2}, s{S_ONES}")
    e(f"s_sub_u32 s{S_KM2}, s{S_T}, s{S_INFO}")
    e(f"s_sub_u32 s{S_T2}, s{S_T2}, s{S_N}")
    e(f"s_lshl_b32 s{S_KM}, s{S_W}, 10")
    e(f"s_mul_i32 s{S_T}, s{S_KM}, 9")
    e(f"s_add_u32 s{S_T}, s{S_T}, s{S_INFO}")
    e(f"s_add_u32 s{S_KM}, s{S_KM}, {KSTG}")
    e(f"s_mov_b32 s{S_KVO}, {KVT_OFF}")
    e(f"v_lshrrev_b32 v{V_T}, 3, v{V_LANE}")
    e(f"v_and_b32 v{V_T2}, 7, v{V_LANE}")
    e(f"v_mul_u32_u24 v{V_K1}, 1152, v{V_T}")
    e(f"v_xor_b32 v{V_KG}, s{S_W}, v{V_T2}")
    e(f"v_lshl_add_u32 v{V_K1}, v{V_KG}, 4, v{V_K1}")
    e(f"v_add_u32 v{V_K1}, s{S_T}, v{V_K1}")
    e(f"v_and_b32 v{V_T}, 3, v{V_T}")
    e(f"v_lshl_add_u32 v{V_KG}, v{V_KG}, 2, v{V_T}")
    e(f"v_lshl_add_u32 v{V_KG}, v{V_T2}, 8, v{V_KG}")
    e(f"v_bfe_i32 v{V_KFT}, v{V_LANE}, 5, 1")
    e(f"v_and_b32 v{V_KH}, 2048, v{V_KFT}")
    e(f"v_add_u32 v{V_KH}, {(KSTG - 1024) // 4}, v{V_KH}")
    e(f"v_add_lshl_u32 v{V_KG}, v{V_KG}, v{V_KH}, 2")
    e(f"v_add_u32 v{V_KH}, -1, v{V_T2}")
    e(f"v_xor_b32 v{V_KH}, v{V_KH}, v{V_T2}")
    e(f"v_and_b32 v{V_KH}, 7, v{V_KH}")
    e(f"v_lshlrev_b32 v{V_KH}, 4, v{V_KH}")
    e(f"v_xor_b32 v{V_KH}, v{V_KH}, v{V_KG}")
    e(f"v_lshl_add_u32 v{V_T}, s{S_W}, 2, v{V_T}")
    e(f"v_and_b32 v{V_KST}, s{S_T2}, v{V_KFT}")
    e(f"v_lshl_add_u32 v{V_KST}, v{V_T}, 13, v{V_KST}")
    e(f"v_lshl_add_u32 v{V_T2}, v{V_T2}, 4, s{S_N}")
    e(f"v_add_u32 v{V_KST}, v{V_KST}, v{V_T2}")
    e(f"v_and_b32 v{V_KT}, s{S_KM2}, v{V_KFT}")
    e(f"s_sub_u32 s{S_N}, s{S_INFO}, 3456")
    e(f"v_lshl_add_u32 v{V_T2}, v{V_T}, 2, s{S_N}")
    e(f"v_add_u32 v{V_KT}, v{V_KT}, v{V_T2}")
    e(f"v_lshl_add_u32 v{V_T}, v{V_T}, 1, -1")
    e(f"v_bfe_i32 v{V_T2}, v{V_LANE}, 2, 1")
    e(f"v_and_b32 v{V_T}, v{V_T}, v{V_T2}")
    e(f"v_and_b32 v{V_T2}, 7, v{V_LANE}")
    e(f"v_add_u32 v{V_T}, v{V_T}, v{V_T2}")
    e(f"v_mul_u32_u24 v{V_T}, 1152, v{V_T}")
    e(f"v_add_u32 v{V_KT}, v{V_KT}, v{V_T}")
    if "st" not in o: e(f"s_lshl3_add_u32 s{S_N}, s{S_PART}, s{S_W}")
    if "st" not in o: e(f"s_mul_i32 s{S_N}, s{S_N}, 11")
    if "st" not in o: e(f"v_add_u32 v{V_KFT}, s{S_N}, v{V_LANE}")
    if "st" not in o: e(f"v_min_u32 v{V_KFT}, 255, v{V_KFT}")
    if "st" not in o: e(f"s_lshl_b32 s{S_N}, s{S_G}, 8")
    if "st" not in o: e(f"v_add_lshl_u32 v{V_KFT}, v{V_KFT}, s{S_N}, 7")
    e(f"s_mov_b32 s{S_INFO}, 0")
    for p_, job in enumerate(JOBS):
        a0 = job[0][0]; l0 = job[0][1] - job[0][0]
        a1 = job[1][0] - l0 if len(job) > 1 else a0
        n = sum(b - a for a, b in job)
        e(f"s_cmp_eq_u32 s{S_PART}, {p_}")
        e(f"s_cselect_b32 s{S_INFO}, {a0 | (l0 << 8) | (a1 << 16) | (n << 24)}, s{S_INFO}")
    assert all(sum(b - a for a, b in job) == 8 for job in JOBS)
    e(f"s_cmp_eq_u32 s{S_PART}, 3")
    e(f"s_cselect_b32 s{S_INFO}, {(8 << 8) | (248 << 16) | (16 << 24)}, s{S_INFO}")
    e(f"s_cselect_b32 s{S_IB}, 8, 4")
    e(f"s_bfe_u32 s{S_N}, s{S_INFO}, {8 | (8 << 16)}")
    e(f"s_bfe_i32 s{S_T2}, s{S_INFO}, {16 | (8 << 16)}")
    e(f"s_and_b32 s{S_ONES}, s{S_INFO}, 255")
    e(f"s_add_u32 s{S_IB}, s{S_W}, s{S_IB}")
    e(f"s_cmp_lt_u32 s{S_W}, s{S_N}")
    e(f"s_cselect_b32 s{S_TA}, s{S_ONES}, s{S_T2}")
    e(f"s_cmp_lt_u32 s{S_IB}, s{S_N}")
    e(f"s_cselect_b32 s{S_TB}, s{S_ONES}, s{S_T2}")
    e(f"s_add_u32 s{S_TA}, s{S_TA}, s{S_W}")
    e(f"s_add_u32 s{S_TB}, s{S_TB}, s{S_IB}")
    e(f"s_lshr_b32 s{S_INFO}, s{S_INFO}, 24")
    e(f"s_cmp_lt_u32 s{S_IB}, s{S_INFO}")
    e(f"s_cselect_b32 s{S_BM}, 0xffff0000, 0")
    e(f"s_cselect_b32 s{S_TB}, s{S_TB}, s{S_TA}")
    e(f"s_lshr_b32 s{S_N}, s{S_G}, 3")
    e(f"s_add_u32 s{S_N}, s{S_N}, 36")
    e(f"s_sub_u32 s{S_T2}, s{S_N}, s{S_TB}")
    e(f"s_sub_u32 s{S_N}, s{S_N}, s{S_TA}")
    for r in (S_N, S_T2):
        e(f"s_mul_i32 s{S_ONES}, s{r}, 57")
        e(f"s_lshr_b32 s{S_ONES}, s{S_ONES}, 9")
        e(f"s_mul_i32 s{S_ONES}, s{S_ONES}, 9")
        e(f"s_sub_u32 s{r}, s{r}, s{S_ONES}")
        e(f"s_cmp_lt_u32 s{r}, 4")
        e(f"s_cselect_b32 s{S_ONES}, 11, 0")
        e(f"s_lshl1_add_u32 s{r}, s{r}, s{S_ONES}")
    e(f"s_min_u32 s{S_NX}, s{S_N}, s{S_T2}")
    e(f"s_max_u32 s{S_NY}, s{S_N}, s{S_T2}")
    e(f"s_cmp_gt_u32 s{S_N}, s{S_T2}")
    e(f"s_cselect_b32 s{S_ONES}, s{S_TB}, s{S_TA}")
    e(f"s_cselect_b32 s{S_TB}, s{S_TA}, s{S_TB}")
    e(f"s_mov_b32 s{S_TA}, s{S_ONES}")
    e(f"s_cselect_b32 s{S_IA}, s{S_IB}, s{S_W}")
    e(f"s_cselect_b32 s{S_IB}, s{S_W}, s{S_IB}")
    if o.get("la2", 0) == 1:
        assert [j[0][0] > 0 for j in JOBS] == [False, True, True]
        for p_, job in enumerate(JOBS):
            e(f"s_cmp_eq_u32 s{S_PART}, {p_}")
            e(f"s_cselect_b32 s{S_N}, {job[0][1] - job[0][0]}, s{S_N}")
        e(f"s_min_u32 s{S_T2}, s{S_PART}, 1")
        for r in (S_IA, S_IB):
            e(f"s_cmp_ge_u32 s{r}, s{S_N}"); e(f"s_addc_u32 s{r}, s{r}, s{S_T2}")
    e(f"v_mul_u32_u24 v{V_T}, 1152, v{V_LANE}")
    e(f"s_mul_i32 s{S_N}, s{S_TA}, {64*1152}")
    e(f"s_lshl4_add_u32 s{S_N}, s{S_G}, s{S_N}")
    e(f"s_cmp_eq_u32 s{S_PART}, 4")
    e(f"s_cselect_b32 s{S_T2}, 0x80000000, 0")
    e(f"s_or_b32 s{S_N}, s{S_N}, s{S_T2}")
    e(f"v_add_u32 v{V_XA}, s{S_N}, v{V_T}")
    e(f"s_mul_i32 s{S_N}, s{S_TB}, {64*1152}")
    e(f"s_lshl4_add_u32 s{S_N}, s{S_G}, s{S_N}")
    e(f"s_andn2_b32 s{S_T2}, 0x80000000, s{S_BM}")
    e(f"s_or_b32 s{S_N}, s{S_N}, s{S_T2}")
    e(f"s_cmp_eq_u32 s{S_PART}, 3")
    e(f"s_cselect_b32 s{S_T2}, 16, 0")
    e(f"s_add_u32 s{S_N}, s{S_N}, s{S_T2}")
    e(f"v_add_u32 v{V_XB}, s{S_N}, v{V_T}")
    return atoms(L)

def stage_items(sr, off, tag, touch=None):
    ld = lambda v: (f"buffer_load_dwordx4 v{v}, s[{sr}:{sr+3}], 0 offen lds", tag)
    tc = lambda v: [f"buffer_load_dword v{V_DUM}, v{v}, s[{touch}:{touch+3}], 0 offen"] if touch else []
    R = [[f"s_add_u32 m0, s{S_KM}, {off}", "s_nop 0", ld(V_K1)]]
    if touch: R.append(tc(V_K1))
    R.append([f"s_add_u32 m0, s{S_KM2}, {off}", "s_mov_b64 exec, 0xffff", ld(V_K2), "s_mov_b64 exec, -1"])
    if off: R[0] += [f"s_sub_u32 s{S_N}, s{S_MH}, 1", f"v_lshl_or_b32 v{V_K2}, s{S_N}, 31, v{V_K2}"]
    return R

def cold_items(m=15):
    R = stage_items(S_K, 0, "kst", S_V if m & 2 else None) if m & 1 else []
    if m & 4: R.append([f"s_add_u32 s{S_N}, s{S_COL}, s{S_ROW[8]}",
              f"buffer_load_dword v{V_DUM}, v{V_O2}, s[{S_W2}:{S_W2+3}], s{S_N} offen"])
    if m & 8: R.append([f"s_lshl_b32 s{S_N}, s{S_G}, 15",
              f"buffer_load_dword v{V_DUM}, v{V_KFT}, s[{S_KF}:{S_KF+3}], s{S_N} offen"])
    return R

def touches(o, A=S_N, B=S_T2):
    m = o.get("em", 7)
    L = [f"s_lshr_b32 s{A}, s2, 3", f"s_lshl3_add_u32 s{A}, s{A}, s{S_W}", f"s_mul_i32 s{A}, s{A}, 72",
         f"s_and_b32 s{B}, s2, 7", f"s_add_u32 s{A}, s{A}, s{B}", f"s_lshl_b32 s{A}, s{A}, 7",
         f"v_bfe_u32 v{V_T}, v{V_LANE}, 1, 3", f"v_lshl_add_u32 v{V_T}, v{V_T}, 3, v{V_T}", f"v_and_b32 v{V_KFT}, 1, v{V_LANE}",
         f"v_add_lshl_u32 v{V_T}, v{V_T}, v{V_KFT}, 7",
         f"s_lshl3_add_u32 s{B}, s{S_PART}, s{S_W}", f"s_mul_i32 s{B}, s{B}, 11",
         f"v_add_u32 v{V_KFT}, s{B}, v{V_LANE}", f"v_min_u32 v{V_KFT}, 255, v{V_KFT}", f"v_lshlrev_b32 v{V_KFT}, 7, v{V_KFT}",
         f"s_lshl_b32 s{B}, s{S_G}, 15",
         "s_mov_b64 exec, 0xffff"]
    if m & 1: L.append(f"buffer_load_dword v{V_DUM}, v{V_T}, s[{S_K}:{S_K+3}], s{A} offen")
    if m & 2: L.append(f"buffer_load_dword v{V_DUM}, v{V_T}, s[{S_V}:{S_V+3}], s{A} offen")
    L.append("s_mov_b64 exec, 0x7ff")
    if m & 4: L.append(f"buffer_load_dword v{V_DUM}, v{V_KFT}, s[{S_KF}:{S_KF+3}], s{B} offen")
    L.append("s_mov_b64 exec, -1")
    return L

def stouch_setup():
    return [f"s_lshr_b32 s{S_KO}, s2, 3", f"s_lshl3_add_u32 s{S_KO}, s{S_KO}, s{S_W}", f"s_mul_i32 s{S_KO}, s{S_KO}, 72",
            f"s_and_b32 s{S_FO}, s2, 7", f"s_add_u32 s{S_KO}, s{S_KO}, s{S_FO}", f"s_lshl_b32 s{S_KO}, s{S_KO}, 7",
            f"s_lshl3_add_u32 s{S_FO}, s{S_PART}, s{S_W}", f"s_mul_i32 s{S_FO}, s{S_FO}, 11", f"s_min_u32 s{S_FO}, s{S_FO}, 245",
            f"s_lshl_b32 s{S_DUM}, s{S_G}, 8", f"s_add_u32 s{S_FO}, s{S_FO}, s{S_DUM}", f"s_lshl_b32 s{S_FO}, s{S_FO}, 7"]

def stouch(o, k):
    ld = lambda sr, so, off: f"s_buffer_load_dword s{S_DUM}, s[{sr}:{sr+3}], s{so} offset:{off}"
    if k == "F": return [ld(S_KF, S_FO, 128*i) for i in range(11)]
    return [ld(sr, S_KO, 1152*r + 128*h) for r in range(8) for h in o.get("sth", (0, 1)) for sr in (S_K, S_V)]

def place(items, j0, j1, work):
    for i, x in enumerate(items): work.setdefault(4*(j0 + (i*(j1 - j0)) // len(items)) - 2, []).insert(0, x)

def early_items(o):
    m = o.get("em", 7)
    K = sum(stage_items(S_K, 0, None), []) if m & 1 else []
    if o.get("vt", 1):
        V = [f"s_lshr_b32 s{S_N}, s2, 3", f"s_lshl3_add_u32 s{S_N}, s{S_N}, s{S_W}", f"s_mul_i32 s{S_N}, s{S_N}, 72",
             f"s_and_b32 s{S_T2}, s2, 7", f"s_add_u32 s{S_N}, s{S_N}, s{S_T2}", f"s_lshl_b32 s{S_N}, s{S_N}, 7",
             f"v_bfe_u32 v{V_T}, v{V_LANE}, 1, 3", f"v_mul_u32_u24 v{V_T}, 9, v{V_T}", f"v_and_b32 v{V_T2}, 1, v{V_LANE}",
             f"v_add_lshl_u32 v{V_T}, v{V_T}, v{V_T2}, 7", "s_mov_b64 exec, 0xffff",
             f"buffer_load_dword v{V_DUM}, v{V_T}, s[{S_V}:{S_V+3}], s{S_N} offen", "s_mov_b64 exec, -1"]
    else:
        V = [f"buffer_load_dword v{V_DUM}, v{V_K1}, s[{S_V}:{S_V+3}], 0 offen", "s_mov_b64 exec, 0x1fff",
             f"buffer_load_dword v{V_DUM}, v{V_K2}, s[{S_V}:{S_V+3}], 0 offen", "s_mov_b64 exec, -1"]
    F = sum(cold_items(8), [])
    return [K, V if m & 2 else [], F if m & 4 else []]

def kv_compute(g):
    def halo():
        g.wait(vm=["sh", "tK"])
        g.e("s_mov_b32 vcc_lo, 0xfefefefe"); g.e("s_mov_b32 vcc_hi, vcc_lo")
        g.e(f"v_cndmask_b32 v{KR}, v{V_HG}, v{KR}, vcc")
        for r in (1, 2): g.e(f"v_cndmask_b32_dpp v{KR+r}, v{V_HG}, v{KR+r}, vcc row_shl:{r} row_mask:0xf bank_mask:0xf")
    L = [halo]; e = L.append
    up = lambda d, r, h: f"v_and_b32 v{d}, 0xffff0000, v{r}" if h else f"v_lshlrev_b32 v{d}, 16, v{r}"
    if g.o.get("kf", 1):
        U = [52, 53, 54, 55]
        for h in range(2):
            for j in range(4): e(up(KC + j, SH + 2*h + j//2, j % 2))
            e(up(U[0], KR, h))
            for i in range(11):
                if i < 10: e(up(U[(i + 1) % 2], KR + i + 1, h))
                for j in range(4):
                    t = i - 3 + j
                    if 0 <= t < 8: e(f"{'v_mul_f32' if j == 3 else 'v_fmac_f32'} v{KA+t}, v{KC+j}, v{U[i % 2]}")
            for t0 in (0, 4):
                for t in range(t0, t0 + 4): e(up(U[t % 4], VR + t, h))
                for t in range(t0, t0 + 4): e(f"v_mul_f32 v{KA+t}, v{KA+t}, v{U[t % 4]}")
            O = KA if h else PKR + 4
            for t in range(4): e(f"v_cvt_pk_bf16_f32 v{O+t}, v{KA+2*t}, v{KA+2*t+1}")
        return L
    for h in range(2):
        for j in range(4):
            w = SH + 2*h + j//2
            if h == 0: e(f"v_lshrrev_b32 v{KC+j}, 16, v{w}" if j % 2 else f"v_and_b32 v{KC+j}, 0xffff, v{w}")
            else: e(f"v_and_b32 v{KC+j}, 0xffff0000, v{w}" if j % 2 else f"v_lshlrev_b32 v{KC+j}, 16, v{w}")
        for j in (3, 2, 1, 0):
            for t in range(8):
                if j == 3: e(f"v_dot2_f32_bf16 v{KA+t}, v{KR+t+3-j}, v{KC+j}, 0")
                else: e(f"v_dot2c_f32_bf16 v{KA+t}, v{KR+t+3-j}, v{KC+j}")
        for t0 in (0, 4):
            for t in range(t0, t0 + 4):
                e(f"v_and_b32 v{KC+t%4}, 0xffff0000, v{VR+t}" if h else f"v_lshlrev_b32 v{KC+t%4}, 16, v{VR+t}")
            for t in range(t0, t0 + 4): e(f"v_mul_f32 v{KA+t}, v{KA+t}, v{KC+t%4}")
        O = KA if h else PKR + 4
        for t in range(4): e(f"v_cvt_pk_bf16_f32 v{O+t}, v{KA+2*t}, v{KA+2*t+1}")
    return L

def kv_store():
    return [[(f"buffer_store_dwordx4 v[{PKR+4}:{PKR+7}], v{V_KST}, s[{S_WS}:{S_WS+3}], s{S_KVO} offen sc1", "kv0"),
             f"s_add_u32 s{S_KVO}, s{S_KVO}, 4096"],
            [(f"buffer_store_dwordx4 v[{KA}:{KA+3}], v{V_KST}, s[{S_WS}:{S_WS+3}], s{S_KVO} offen sc1", "kv1")]]

def setup4(o):
    L = []; e = L.append
    A, B = S_GC, S_GC + 1
    e(f"v_bfrev_b32 v{V_OOB}, 1")
    assert not o.get("xe")
    e(f"s_lshr_b32 s{A}, s{S_G}, 3")
    e(f"s_cmp_eq_u32 s{A}, 8")
    e(f"s_cselect_b32 s{A}, s{S_W}, s{A}")
    e(f"s_cselect_b32 s{B}, 0, s{S_W}")
    e(f"s_lshl_b32 s{A}, s{A}, 7")
    e(f"s_add_u32 s{A}, s{A}, {RDY_OFF}")
    e(f"v_and_b32 v{V_L4}, 31, v{V_LANE}")
    e(f"s_cmp_eq_u32 s{B}, 0")
    e(f"s_cselect_b32 s{A}, s{A}, 0x80000000")
    e(f"s_cselect_b32 s{S_ONES}, s{S_TOK}, 0")
    e(f"v_lshl_add_u32 v{V_L4}, v{V_L4}, 2, s{A}")
    e(f"s_mul_i32 s{S_H2}, s{S_W}, {WSTR}")
    e(f"s_lshl3_add_u32 s{S_CH}, s{S_G}, s{S_W}")
    e(f"s_lshl_b32 s{S_CH}, s{S_CH}, 12")
    e(f"v_and_b32 v{V_CL}, v{V_OOB}, v{V_XA}")
    e(f"v_lshl_or_b32 v{V_CL}, v{V_LANE}, 4, v{V_CL}")
    e(f"v_lshl_add_u32 v{V_YW}, v{V_LANE}, 2, s{S_H2}")
    e(f"s_add_u32 s{A}, s{S_H2}, 4608")
    e(f"v_lshl_add_u32 v{V_KV}, v{V_LANE}, 1, s{A}")
    e(f"v_lshrrev_b32 v{V_T2}, 4, v{V_LANE}")
    e(f"v_bfe_u32 v{V_AF}, v{V_LANE}, 2, 2")
    e(f"v_lshl_add_u32 v{V_T2}, v{V_T2}, 3, v{V_AF}")
    e(f"v_and_b32 v{V_BF}, 3, v{V_LANE}")
    e(f"v_add_u32 v{V_AF}, v{V_T2}, v{V_BF}")
    e(f"s_add_u32 s{A}, s{S_H2}, {256 - 24}")
    e(f"v_lshl_add_u32 v{V_AF}, v{V_AF}, 3, s{A}")
    e(f"v_lshlrev_b32 v{V_BF}, 2, v{V_BF}")
    e(f"v_sub_u32 v{V_BF}, v{V_BF}, v{V_T2}")
    e(f"s_add_u32 s{A}, s{S_H2}, {4608 + 24 - 32}")
    e(f"v_lshl_add_u32 v{V_BF}, v{V_BF}, 3, s{A}")
    e(f"s_lshl_b32 s{A}, s{S_QW}, 4")
    e(f"s_lshr_b64 s[{S_DR}:{S_DR+1}], s[{S_DR}:{S_DR+1}], s{A}")
    e(f"s_lshr_b64 s[{S_DR+2}:{S_DR+3}], s[{S_DR+2}:{S_DR+3}], s{A}")
    e(f"s_and_b32 s{S_D}, s{S_DR}, 0xffff")
    e(f"s_and_b32 s{S_D2}, s{S_DR+2}, 0xffff")
    e(f"s_lshl_b32 s{A}, s{S_TA}, 10")
    e(f"v_add_u32 v{V_RA}, s{A}, v{V_CL}")
    e(f"v_ashrrev_i32 v{V_SA}, 1, v{V_RA}")
    e(f"s_lshl_b32 s{A}, s{S_TB}, 10")
    e(f"s_andn2_b32 s{B}, 0x80000000, s{S_BM}")
    e(f"s_or_b32 s{A}, s{A}, s{B}")
    e(f"v_lshl_add_u32 v{V_RB}, v{V_LANE}, 4, s{A}")
    e(f"v_ashrrev_i32 v{V_SB}, 1, v{V_RB}")
    e(f"s_cmp_eq_u32 s{S_PART}, 3")
    e(f"s_cselect_b32 s{A}, 0x8000, 0")
    e(f"v_add_u32 v{V_RB}, s{A}, v{V_RB}")
    e(f"s_sub_u32 s{A}, s{S_TB}, s{S_TA}")
    e(f"v_bfe_u32 v{V_P}, v{V_LANE}, 4, 1")
    e(f"v_mul_i32_i24 v{V_FA}, s{A}, v{V_P}")
    e(f"v_add_u32 v{V_FA}, s{S_TA}, v{V_FA}")
    if o.get("xe", 0):
        e(f"v_mul_u32_u24 v{V_RDY}, 57, v{V_FA}")
        e(f"v_lshrrev_b32 v{V_RDY}, 9, v{V_RDY}")
        e(f"v_mul_u32_u24 v{V_RDY}, 9, v{V_RDY}")
        e(f"v_sub_u32 v{V_RDY}, v{V_FA}, v{V_RDY}")
        e(f"v_cmp_gt_u32 vcc, s{S_ONES}, v{V_LANE}")
    e(f"v_mul_u32_u24 v{V_FA}, {9*256}, v{V_FA}")
    if o.get("xe", 0):
        e(f"v_lshl_add_u32 v{V_RDY}, v{V_RDY}, 8, v{V_FA}")
        e(f"v_and_b32 v{V_T2}, 7, v{V_LANE}")
        e(f"v_lshl_add_u32 v{V_RDY}, v{V_T2}, 2, v{V_RDY}")
        e(f"v_add_u32 v{V_RDY}, {FLAG_OFF}, v{V_RDY}")
        e(f"v_cndmask_b32 v{V_L4}, v{V_RDY}, v{V_L4}, vcc")
        e(f"s_mov_b32 s{S_ONES}, s{S_TOK}")
    e(f"s_lshr_b32 s{S_FB}, s{S_G}, 3")
    for r, N in ((A, S_NX), (B, S_NY)):
        e(f"s_lshr_b32 s{r}, s{N}, 1")
        e(f"s_cmp_lt_u32 s{S_FB}, s{r}")
        e(f"s_cselect_b32 s{S_SO}, 9, 0")
        e(f"s_sub_u32 s{r}, s{S_SO}, s{r}")
    e(f"s_sub_u32 s{B}, s{B}, s{A}")
    e(f"s_xor_b32 s{S_SO}, s{S_NX}, s{S_NY}")
    e(f"v_and_b32 v{V_T2}, s{S_SO}, v{V_P}")
    e(f"v_mul_i32_i24 v{V_P}, s{B}, v{V_P}")
    e(f"v_add_u32 v{V_P}, s{A}, v{V_P}")
    e(f"v_xor_b32 v{V_T2}, s{S_NX}, v{V_T2}")
    e(f"v_xnor_b32 v{V_T2}, v{V_LANE}, v{V_T2}")
    e(f"v_bfe_i32 v{V_T2}, v{V_T2}, 0, 1")
    e(f"v_and_b32 v{V_P}, v{V_T2}, v{V_P}")
    e(f"v_add_u32 v{V_P}, s{S_FB}, v{V_P}")
    e(f"v_lshl_add_u32 v{V_FA}, v{V_P}, 8, v{V_FA}")
    e(f"v_and_b32 v{V_T2}, 7, v{V_LANE}")
    e(f"v_lshl_add_u32 v{V_FA}, v{V_T2}, 2, v{V_FA}")
    e(f"s_mov_b32 s{S_FB}, {FLAG_OFF}")
    if o.get("la2", 0):
        for V, T, I in ((V_XO, S_TA, S_IA), (V_XS, S_TB, S_IB)):
            e(f"s_min_u32 s{A}, s{T}, 1")
            e(f"s_mul_i32 s{A}, s{A}, 3")
            e(f"s_lshl4_add_u32 s{B}, s{I}, {SPB + 4 - 4352}")
            e(f"v_subrev_u32 v{V_T2}, s{A}, v{V_LANE}")
            e(f"v_lshl_add_u32 v{V}, v{V_LANE}, 2, s{B}")
            e(f"v_ashrrev_i32 v{V_T2}, 31, v{V_T2}")
            e(f"v_and_b32 v{V}, v{V}, v{V_T2}")
            e(f"v_add_u32 v{V}, 4352, v{V}")
    e(f"s_lshl_b32 s{S_GO}, s{S_G}, 15")
    e(f"s_mov_b32 s{S_SO}, {STAT_OFF}")
    e(f"s_add_u32 s{S_XO}, s{S_GO}, {XT_OFF}")
    for j in range(NP - 1, 0, -1): e(f"s_add_u32 s{S_PO[j]}, s{S_GO}, {j*72*32768}")
    for c in range(4):
        e(f"s_lshl_b32 s{S_BV+2*c}, s{S_B2+c}, 16")
        e(f"s_and_b32 s{S_BV+2*c+1}, s{S_B2+c}, 0xffff0000")
    return [[f"s_movk_i32 s{S_LO}, 0x3f80", f"s_lshl_b32 s{S_HI}, s{S_LO}, 16"]] + atoms(L)

def conv_loads(g):
    fl = g.o.get("hotfl", "")
    R = []
    vc = [V_CL, V_T, V_T2, V_T]
    for c in (3, 2, 1, 0):
        R.append([f"buffer_load_dwordx4 v{vc[c]}, s[{S_WS}:{S_WS+3}], s{S_T} offen offset:{1024*c} {fl} lds"])
    R[0] = [f"s_cmp_eq_u32 s{S_PART}, 3", f"s_cselect_b32 s{S_T}, 0x80000000, 0", f"v_or_b32 v{V_T}, s{S_T}, v{V_CL}",
            f"s_cselect_b32 s{S_T}, {32768 - 2048}, 0", f"v_add_u32 v{V_T2}, s{S_T}, v{V_CL}", f"s_add_u32 m0, s{S_H2}, 4608", f"s_add_u32 s{S_T}, s{S_CH}, {KVT_OFF}"] + R[0]
    R[3].append(f"s_add_u32 m0, s{S_H2}, 256")
    for c in range(4):
        R.append([f"buffer_load_dwordx4 v{vc[c]}, s[{S_KF}:{S_KF+3}], s{S_CH} offen offset:{1024*c} lds"])
    R[7].append(f"s_mov_b32 m0, s{S_H2}")
    z = f"buffer_load_dword v{V_OOB}, s[{S_KF}:{S_KF+3}], 0 offen lds"
    R.append([z, f"s_add_u32 m0, s{S_H2}, 4352"])
    R.append([(z, "cl")])
    return R

def tile_list(g, LD, v, vs):
    fl = g.o.get("ldflags", "sc1")
    L = [f"buffer_load_dwordx2 v[{LD+32}:{LD+33}], v{vs}, s[{S_WS}:{S_WS+3}], s{S_SO} offen {g.o.get('sfl', '')}"]
    X = XA if LD == LDA else XB
    if not g.o.get("xe", 0): L.append(f"buffer_load_dwordx4 v[{X}:{X+3}], v{v}, s[{S_WS}:{S_WS+3}], s{S_XO} offen {fl}")
    for j in range(NP): L.append(f"buffer_load_dwordx4 v[{LD+4*j}:{LD+4*j+3}], v{v}, s[{S_WS}:{S_WS+3}], s{S_PO[j]} offen {fl}")
    for k in g.o.get("drop", []): L[k] = "s_nop 0"
    return L

def tile_loads(g, LD, v, vs):
    for x in tile_list(g, LD, v, vs): g.e(x)

def poll(g, tag=None):
    g.e(f"buffer_load_dword v{V_P}, v{V_FA}, s[{S_WS}:{S_WS+3}], s{S_FB} offen sc1", tag)

def conv_job(g, job, name, ev):
    o = g.o
    tiles = []; allt = []
    two = job == [(0, 8), (16, 24)]
    BB = 144 if two else 224
    ar = lambda be: AF + 4*(be - 4 if two and be >= 8 else be)
    for a, b in job:
        if a > 0 and not two: allt.append(a - 1)
        for t in range(a, b):
            tiles.append(t); allt.append(t)
    ai = {t: CACC + 4*i for i, t in enumerate(allt)}
    tmax = max(allt)
    M = []
    ch = o.get("ch", 1); NB = o.get("nb", 6)
    for n0 in range(tmax, -1, -2*ch):
        for n1 in (n0, n0 - 1):
            ns = [n for n in range(n1, n1 - 2*ch, -2) if n >= 0]
            ts = sorted(t for t in allt if (t - n1) % 2 == 0)
            if o.get("trev"): ts.reverse()
            for t in ts:
                for n in ns:
                    if t >= n: M.append((t, n, (t - n)//2))
    if two:
        M0 = [m_ for m_ in M if m_[0] < 8]
        M = [x for (t, n, be) in M0 for x in ((t, n, be), (t + 16, n + 16, be + 8))]
    order = []
    for (t, n, be) in M:
        for f in (("B", n), ("A", be)):
            if f not in order: order.append(f)
    bslot = {}
    nb = 0
    for f in order:
        if f[0] == "B":
            bslot[f[1]] = BB + 4*(nb % NB); nb += 1
    lastuse = {}
    for i, (t, n, be) in enumerate(M): lastuse[n] = i
    bl = [f[1] for f in order if f[0] == "B"]
    def reads(f):
        if f[0] == "A":
            r = ar(f[1]); off = 256*f[1]
            return [f"ds_read_b64_tr_b16 v[{r}:{r+1}], v{V_AF} offset:{off}",
                    f"ds_read_b64_tr_b16 v[{r+2}:{r+3}], v{V_AF} offset:{off+32}"]
        r = bslot[f[1]]; off = 128*f[1] + 32
        return [f"ds_read_b64_tr_b16 v[{r}:{r+1}], v{V_BF} offset:{off}",
                f"ds_read_b64_tr_b16 v[{r+2}:{r+3}], v{V_BF} offset:{off-32}"]
    issued = 0
    fu = {}
    for i, (t, n, be) in enumerate(M):
        fu.setdefault(("B", n), i); fu.setdefault(("A", be), i)
    MAXF = o.get("ahead", 6)
    started = set()
    waited = -1; kvr = 0
    for i, (t, n, be) in enumerate(M):
        need = max(order.index(("B", n)), order.index(("A", be)))
        nr = 0
        while issued < 2*len(order) and issued // 2 <= max(need, waited) + MAXF:
            f = order[issued // 2]
            if "la" in o and i and not (nr < 1 or fu[f] <= i or (nr < 2 and fu[f] <= i + o["la"])): break
            if f[0] == "B":
                k = bl.index(f[1])
                if k >= NB and lastuse[bl[k - NB]] >= i:
                    break
            if not o.get("nocr"): g.e(reads(f)[issued % 2])
            issued += 1; nr += 1
        assert issued // 2 > need
        for k in (i, i - len(M)):
            for f in ev.get(k, []): f(name)
        if need > waited:
            g.e(f"s_waitcnt lgkmcnt({min(15, issued - 2 - 2*need)})")
            waited = need
        a = ai[t]; bs = bslot[n]; af = ar(be)
        c = f"v[{a}:{a+3}]" if t in started else "0"
        started.add(t)
        if not o.get("nocm"): g.e(f"v_mfma_f32_16x16x32_bf16 v[{a}:{a+3}], v[{bs}:{bs+3}], v[{af}:{af+3}], {c}")
        if (o.get("la2", 0) or o.get("e2", 2) & 1) and need == len(order) - 1 and not kvr:
            kvr = 1
            for k, t_ in enumerate(tiles): g.e(f"ds_read_u16 v{LDB+16+k}, v{V_KV} offset:{128*t_}")
    if o.get("stamps"): g.stamp()
    if o.get("la2", 0):
        fin = sorted(allt, key=lambda t: max(i for i, m_ in enumerate(M) if m_[0] == t))
        g.e("s_waitcnt lgkmcnt(0)")
        g.e(f"s_bfm_b64 s[{S_GX}:{S_GX+1}], 1, 63")
        ft = [t for t in fin if t in tiles]
        sh = lambda t, z: g.e(f"v_add_f32 v{ai[t]+z}, v{ai[t]+z+1}, v{ai[t]+z} wave_shr:1 row_mask:0xf bank_mask:0xf bound_ctrl:0")
        for t in ft: g.e(f"v_dot2c_f32_bf16 v{ai[t]}, s{S_D}, v{LDB+16+tiles.index(t)}")
        for t in fin: sh(t, 2)
        for t in fin: sh(t, 1)
        g.e(f"s_mov_b64 exec, s[{S_GX}:{S_GX+1}]")
        for t in fin:
            if t + 1 in tiles: g.e(f"ds_write_b128 v{V_YW}, v[{ai[t]}:{ai[t]+3}] offset:{SPB + 16*tiles.index(t + 1) - 252}")
        g.e("s_mov_b64 exec, -1")
        for k, t in enumerate(ft):
            sh(t, 0)
            if k % 2: g.e(f"ds_write2st64_b32 v{V_YW}, v{ai[ft[k-1]]}, v{ai[t]} offset0:{tiles.index(ft[k-1])} offset1:{tiles.index(t)}")
        if len(ft) % 2: g.e(f"ds_write_b32 v{V_YW}, v{ai[ft[-1]]} offset:{256*tiles.index(ft[-1])}")
        return
    KVV = 50
    KX = LDB + 16 if kvr else AF + 40
    for i, t in enumerate(tiles):
        if not kvr: g.e(f"ds_read_u16 v{LDB+16+i}, v{V_KV} offset:{128*t}")
    if kvr:
        fin = sorted(tiles, key=lambda t: max(i for i, m_ in enumerate(M) if m_[0] == t))
        g.e("s_waitcnt lgkmcnt(0)")
        for t in fin: g.e(f"v_dot2c_f32_bf16 v{ai[t]}, s{S_D}, v{KX+tiles.index(t)}")
    eo = o.get("eo", 1)
    if not eo: ev["end"][0](name)
    else:
        for f in ev.get("e0", []): f(name)
        if not kvr: g.e("s_nop 2")
    H2 = AF; H1 = AF + 16; Y = AF + 32
    idx = {t: i for i, t in enumerate(allt)}
    m = "row_mask:0xf bank_mask:0xf"
    def level(dst, src, zc, ts):
        for t in ts:
            if t in tiles and t - 1 in allt:
                g.e(f"v_add_f32 v{dst+idx[t]}, v{src(t-1)}, v{ai[t]+zc} wave_ror:1 row_mask:0x1 bank_mask:0x1")
        for t in ts:
            bc = "" if (t in tiles and t - 1 in allt) else " bound_ctrl:0"
            g.e(f"v_add_f32 v{dst+idx[t]}, v{src(t)}, v{ai[t]+zc} wave_shr:1 {m}{bc}")
    level(H2, lambda t: ai[t] + 3, 2, allt)
    if not kvr:
        g.e("s_waitcnt lgkmcnt(0)")
        for i, t in enumerate(tiles): g.e(f"v_dot2c_f32_bf16 v{ai[t]}, s{S_D2 if two and t >= 16 else S_D}, v{LDB+16+i}")
    level(H1, lambda t: H2 + idx[t], 1, allt)
    level(Y, lambda t: H1 + idx[t], 0, tiles)
    for i, t in enumerate(tiles):
        if not o.get("e2", 2) & 2 or (i == len(tiles) - 1 and i % 2 == 0): g.e(f"ds_write_b32 v{V_YW}, v{Y+idx[t]} offset:{256*i}")
        elif i % 2: g.e(f"ds_write2st64_b32 v{V_YW}, v{Y+idx[tiles[i-1]]}, v{Y+idx[t]} offset0:{i-1} offset1:{i}")

def fin_l(LD, X):
    L = []; e = L.append
    s = LD + 16; xn = s + 8; st = LD + 32
    for c in range(4):
        e(f"v_lshlrev_b32 v{xn+2*c}, 16, v{X+c}")
        e(f"v_and_b32 v{xn+2*c+1}, 0xffff0000, v{X+c}")
    for c in range(8): e(f"v_add_f32 v{s+c}, s{(S_BV if LD == LDA else S_BW)+c}, v{xn+c}")
    for c in range(8): e(f"v_fma_f32 v{xn+c}, v{xn+c}, v{st}, v{st+1}")
    for j in range(NP):
        for c in range(4):
            e(f"v_dot2c_f32_bf16 v{s+2*c}, s{S_LO}, v{LD+4*j+c}")
            e(f"v_dot2c_f32_bf16 v{s+2*c+1}, s{S_HI}, v{LD+4*j+c}")
    return L

def fin_1(g, LD, X, R, waits):
    for x in fin_l(LD, X): g.e(x)
    g.e("s_nop 2")

def fin_2(g, X, R):
    e = g.e
    s = (LDA if X == XA else LDB) + 16; xn = s + 8; y = R + 16
    if g.o.get("la2", 0):
        for c in range(4): e(f"v_pk_add_f32 v[{y+2*c}:{y+2*c+1}], v[{y+2*c}:{y+2*c+1}], v[{R+2*c}:{R+2*c+1}]")
    for c in range(4):
        e(f"v_pk_fma_f32 v[{s+2*c}:{s+2*c+1}], v[{xn+2*c}:{xn+2*c+1}], v[{y+2*c}:{y+2*c+1}], v[{s+2*c}:{s+2*c+1}]")
    for c in range(4):
        e(f"v_cvt_pk_bf16_f32 v{X+c}, v{s+2*c}, v{s+2*c+1}")

def fin_a(g, X, si, R):
    e = g.e
    s = R; y = R + 16
    e(f"s_lshl_b32 s{S_T2}, s{si}, 8")
    e(f"v_lshl_add_u32 v{V_T}, v{V_LANE}, 2, s{S_T2}")
    for c in range(4):
        e(f"ds_read2st64_b32 v[{y+2*c}:{y+2*c+1}], v{V_T} offset0:{68*c} offset1:{68*c + 34}")
    if g.o.get("la2", 0):
        for c in range(4):
            e(f"ds_read2st64_b32 v[{R+2*c}:{R+2*c+1}], v{V_XO if X == XA else V_XS} offset0:{68*c} offset1:{68*c + 34}")

def fin_b(g, LD, X, R, waits):
    e = g.e
    s = R; xn = R + 8; y = R + 16; st = LD + 32
    if waits: e(f"s_waitcnt vmcnt({NP})")
    for c in range(4):
        e(f"v_lshlrev_b32 v{R+8+2*c}, 16, v{X+c}")
        e(f"v_and_b32 v{R+8+2*c+1}, 0xffff0000, v{X+c}")
    for c in range(8): e(f"v_add_f32 v{s+c}, s{S_BV+c}, v{R+8+c}")
    for c in range(4):
        e(f"v_pk_fma_f32 v[{xn+2*c}:{xn+2*c+1}], v[{xn+2*c}:{xn+2*c+1}], v[{st}:{st+1}], v[{st}:{st+1}] op_sel:[0,0,1] op_sel_hi:[1,0,1]")
    e("s_waitcnt lgkmcnt(0)")
    for c in range(4):
        e(f"v_pk_fma_f32 v[{s+2*c}:{s+2*c+1}], v[{xn+2*c}:{xn+2*c+1}], v[{y+2*c}:{y+2*c+1}], v[{s+2*c}:{s+2*c+1}]")
    for j in range(NP):
        if waits: e(f"s_waitcnt vmcnt({NP - 1 - j})")
        for c in range(4):
            e(f"v_dot2c_f32_bf16 v{s+2*c}, s{S_LO}, v{LD+4*j+c}")
            e(f"v_dot2c_f32_bf16 v{s+2*c+1}, s{S_HI}, v{LD+4*j+c}")
    e("s_nop 2")
    for c in range(4):
        e(f"v_cvt_pk_bf16_f32 v{X+c}, v{s+2*c}, v{s+2*c+1}")

def tail(g, name):
    o = g.o; e = g.e
    out = lambda X, vx: e(f"buffer_store_dwordx4 v[{X}:{X+3}], v{vx}, s[{S_OUT}:{S_OUT+3}], 0 offen {o.get('ofl', '')}")
    TX = tile_list(g, LDA, V_RA, V_SA); TY = tile_list(g, LDB, V_RB, V_SB)
    e(f"s_cmp_eq_u32 s{S_PART}, 4")
    e(f"s_cbranch_scc1 {name}_none")
    g.stamp()
    g.wait(vm=["cl", "p0"])
    g.stamp()
    e(f"v_cmp_ne_u32 vcc, s{S_TOK}, v{V_P}")
    e(f"s_cbranch_vccnz {name}_fs")
    g.lab(f"{name}_fb")
    g.ool += [f"{name}_fs:", f"  s_mov_b32 s{S_N}, {SPIN}", f"{name}_fl:",
              f"  buffer_load_dword v{V_P}, v{V_FA}, s[{S_WS}:{S_WS+3}], s{S_FB} offen sc1", f"  s_sub_u32 s{S_N}, s{S_N}, 1", "  s_waitcnt vmcnt(0)",
              f"  s_cbranch_scc1 {name}_fb", f"  v_cmp_ne_u32 vcc, s{S_TOK}, v{V_P}", f"  s_cbranch_vccnz {name}_fl", f"  s_branch {name}_fb"]
    def masked(M, x):
        def f(nm):
            e(f"s_mov_b64 exec, s[{M}:{M+1}]")
            e(x)
            e("s_mov_b64 exec, -1")
        return f
    def chk(LD):
        e(f"v_bitop3_b32 v{V_P}, v{LD}, v{LD+4}, v{LD+8} bitop3:0x80")
        e(f"v_bitop3_b32 v{V_P}, v{V_P}, v{LD+12}, 1 bitop3:0x80")
        e(f"v_cmp_eq_u32 vcc, 0, v{V_P}")
    mid = o.get("mid", 0)
    def chx(nm):
        chk(LDA)
        e(f"s_or_b32 s{S_PX}, vcc_lo, vcc_hi")
        e(f"s_cbranch_scc0 {nm}")
        for x in TX[2:]: e(x)
        g.lab(nm)
    def evend(nm):
        g.stamp()
        e(f"s_cmp_eq_u32 s{S_BM}, 0")
        e(f"s_cbranch_scc1 {nm}_{'ky' if o.get('stamps') else 'q2'}")
        e("s_waitcnt vmcnt(0)")
        if mid:
            e(f"s_mov_b32 s{S_GX}, s{S_PX}")
            e(f"s_cmp_eq_u32 s{S_PX}, 0")
            e(f"s_cbranch_scc1 {nm}_kx")
        chx(f"{nm}_kx")
        chk(LDB)
        e(f"s_or_b32 s{S_PY}, vcc_lo, vcc_hi")
        e(f"s_cbranch_scc0 {nm}_ky")
        for x in TY[2:]: e(x)
        g.lab(f"{nm}_ky")
        g.stamp()
    ev = {"end": [evend]}
    at = lambda k, f: ev.setdefault(k, []).append(f)
    xs = o.get("xs", [2, 4, 6, 8, 10, 12] if mid else [2, 6, -64, -62, -60, -58])
    xh = o.get("xh")
    cnt = [0]
    def half(hi, x):
        def f(nm):
            cnt[0] += 1
            e(f"s_cmp_eq_u32 s{S_MH}, {hi}")
            e(f"s_cbranch_scc0 {nm}_h{cnt[0]}")
            for y in x: e(y, "lx")
            if not hi:
                for y in x: g.vm.pop()
            g.lab(f"{nm}_h{cnt[0]}")
        return f
    assert not mid
    for k, x in zip(o.get("zs", [2, 8, -60, -56, -52, -48]), [TX[:2], TY[:2], TX[2:4], TX[4:], TY[2:4], TY[4:]]): at(k, half(0, x))
    ev3 = {"end": [evend]}
    for k, x in zip(o.get("x3", [0, 0, 3, 5, 7, 9]) + o.get("y3", [2, 1, 12, 16, 20, 24]), TX + TY): ev3.setdefault(k, []).append(lambda nm, x=x: e(x))
    ev3[0] = ev3.get(0, []) + [lambda nm: [e(f"s_lshl_b32 s{S_BW+2*c}, s{S_B3+c}, 16") or e(f"s_and_b32 s{S_BW+2*c+1}, s{S_B3+c}, 0xffff0000") for c in range(4)]]
    at(1, ev3[0][-1])
    if o.get("stamps"): ev3.setdefault(32, []).append(lambda nm: g.stamp())
    if mid:
        def evmid(nm):
            assert "lx" in g.vm
            g.wait(vm=["lx"])
            chx(f"{nm}_km")
        at(mid, evmid)
        F = fin_l(LDA, XA); fn = o.get("fn", 2)
        if o.get("tv") == 1: F = [x.replace("v_dot2c_f32_bf16", "v_add_f32") for x in F]
        if o.get("tv") == 2: F = F[:24]
        if o.get("tv") == 3: F = F[24:]
        if o.get("tv") == 4: F = []
        for i in range(0, len(F), fn):
            assert mid + 1 + i // fn < 0
            at(mid + 1 + i // fn, lambda nm, i=i: [e(x) for x in F[i:i+fn]])
    if o.get("stamps"): at(32, lambda nm: g.stamp())
    e(f"s_cmp_eq_u32 s{S_PART}, 1")
    e(f"s_cbranch_scc1 {name}_j1")
    e(f"s_cmp_eq_u32 s{S_PART}, 2")
    e(f"s_cbranch_scc1 {name}_j2")
    e(f"s_cmp_eq_u32 s{S_PART}, 3")
    e(f"s_cbranch_scc1 {name}_j3")
    vm0 = list(g.vm)
    for p in (0, 1, 3, 2):
        if p: g.lab(f"{name}_j{p}")
        g.vm = list(vm0)
        conv_job(g, (JOBS + [[(0, 8), (16, 24)]])[p], f"{name}_c{p}", ev if p < 3 else ev3)
        if p != 2: e(f"s_branch {name}_cfin")
    g.lab(f"{name}_cfin")
    if o.get("eo", 1): evend(name)
    assert o.get("eo", 1)
    if o.get("stamps"):
        e(f"s_cmp_eq_u32 s{S_BM}, 0")
        e(f"s_cbranch_scc1 {name}_q2")
    RA, RB = CACC, CACC + 24
    if mid:
        e(f"s_mov_b32 s{S_XM}, 0")
        e(f"s_cmp_eq_u32 s{S_GX}, 0")
        e(f"s_cbranch_scc1 {name}_q1")
    e(f"s_cmp_ge_u32 s{S_W}, {o.get('ps', 4)}")
    e(f"s_cselect_b32 s{S_T}, 0x10000, 0")
    hp = o.get("hp", 0)
    if hp == 1: e(f"s_andn2_b32 s{S_T}, s{S_T}, s{S_BM}")
    if hp == 2: e(f"s_or_b32 s{S_GY}, s{S_PY}, s{S_T}")
    e(f"s_or_b32 s{S_XM}, s{S_PX}, s{S_T}")
    e(f"s_cbranch_scc1 {name}_q1")
    fin_1(g, LDA, XA, RA, False)
    g.lab(f"{name}_q1")
    e(f"s_cmp_eq_u32 s{S_BM}, 0")
    e(f"s_cselect_b32 s{S_T}, 1, s{S_GY if hp == 2 else S_PY}")
    e(f"s_cmp_lg_u32 s{S_T}, 0")
    e(f"s_cbranch_scc1 {name}_q2")
    fin_1(g, LDB, XB, RB, False)
    g.lab(f"{name}_q2")
    e("s_waitcnt lgkmcnt(0)")
    g.stamp()
    e("s_barrier")
    g.stamp()
    def last(nm, P, LD, T):
        if P:
            e(f"s_cmp_eq_u32 s{P}, 0")
            e(f"s_cbranch_scc1 {nm}2")
        e(f"s_mov_b32 s{S_N}, {SPIN}")
        g.lab(f"{nm}lp")
        e("s_waitcnt vmcnt(0)")
        chk(LD)
        e(f"s_sub_u32 s{S_N}, s{S_N}, 1")
        e(f"s_cbranch_scc1 {nm}2")
        e(f"s_cbranch_vccz {nm}2")
        for x in T[2:]: e(x)
        e(f"s_branch {nm}lp")
        g.lab(f"{nm}2")
    e(f"s_cmp_eq_u32 s{S_BM}, 0")
    e(f"s_cbranch_scc1 {name}_none")
    fin_a(g, XA, S_IA, RA)
    fin_a(g, XB, S_IB, RB)
    e(f"s_cmp_lg_u32 s{S_XM}, 0")
    e(f"s_cbranch_scc1 {name}_xslow")
    g.lab(f"{name}_xback")
    e("s_waitcnt lgkmcnt(0)")
    fin_2(g, XA, RA)
    e(f"s_cmp_eq_u32 s{S_GY if hp == 2 else S_PY}, 0")
    e(f"s_cbranch_scc1 {name}_b3")
    last(f"{name}_b", S_PY if hp == 2 else None, LDB, TY)
    fin_1(g, LDB, XB, RB, False)
    g.lab(f"{name}_b3")
    g.stamp()
    out(XA, V_XA)
    fin_2(g, XB, RB)
    out(XB, V_XB)
    finish(g)
    g.lab(f"{name}_xslow")
    last(f"{name}_x", S_PX, LDA, TX)
    fin_1(g, LDA, XA, RA, False)
    e(f"s_branch {name}_xback")
    g.lab(f"{name}_none")
    finish(g)

def gen(name, opt):
    g = G(opt); o = opt
    if "jobs" in o: JOBS[:] = [[tuple(x) for x in j] for j in o["jobs"]]
    e = g.e
    g.NF = 5
    SM[0] = o.get("sm", 1)
    g.ool = []; g.grp = "Z"
    g.L.append(f".globl {name}\n.p2align 8\n.type {name},@function\n{name}:")
    npro = prologue(g, name)
    nm = name + "_Z"; g.nm = nm
    full = not o.get("core")
    sc = Sched(g, npro)
    sc.claim(range(11, 20), "x"); sc.claim([10], "tbl")
    for s_ in range(9): sc.hold[s_] = 10
    work = {}; inb = {}; pre = {}; post = {}; bw = {}; bv = {}; act = {}; aft = {}; hooks = {}
    add = lambda d, k, L: d.setdefault(k, []).extend(L)
    bj = lambda r: (r - 6) // 2
    xr = o.get("xr", [[8, 2], [12, 5], [16, 8], [18, 9]])
    h0 = o.get("h0", 152); hd = o.get("hd", 4); hl = o.get("hl", 2); hs = o.get("hs", 176)
    bars = set(18*N + b_ for N in range(18) for b_ in (o.get("bs", [0, 8]) if N < 17 or not full else [4, 12]))
    bars -= set(range(xr[0][0])) | set(range(h0, h0 + 4*hd + hl*hd))
    bars |= set(x[0] for x in xr) | set(o.get("xb2", [22])) | set(h0 + hd*i for i in range(5 + hl)) | set([hs]) | set(o.get("hb2", [184]))
    bars -= set(o.get("nb", []))
    bars = sorted(bars)
    nextb = lambda r, n=1: [b_ for b_ in bars if b_ > r][n - 1]
    def scatter(L, j0, nbu, lead=0):
        pos = [(j, q) for j in range(j0, j0 + nbu) for q in range(4) if seq(j)[q]]
        for k, x in enumerate(L): add(inb, pos[(k * len(pos)) // len(L)], [x])
    for x in bias_read(0): g.put(x)
    ns = 0
    for r_, c_ in enumerate(o.get("ls", [1, 1, 2])):
        add(inb, (-1, r_), [sread(0, k) for k in SO[ns:ns + c_]]); ns += c_
    scatter([sread(0, k) for k in SO[ns:]], 0, o.get("xn", 6))
    pc = 0
    for r_, c_ in xr:
        add(bw, r_, [("s", k) for k in range(4*c_)])
        add(act, r_, [lambda a_=pc, c_=c_: sc.free(range(11 + a_, 11 + c_))]); pc = c_
    stgl = o.get("stgl", 134)
    for n in range(9):
        if n < 8: add(inb, (9*n + 1, 0) if n == 7 and stgl == 134 else (9*n + o.get("bslot", 4), 2), bias_read(n + 1))
        if n: deal(gelu_list(o, n - 1), 9*n, o.get("gn", 9) if n < 8 else min(9, bj(h0 + 3*hd) - 72), work)
    if not o.get("sup", 1): spread(atoms(setup2()) + (setup3(o) if full else []), o.get("su0", 6), o.get("su1", 34), work)
    add(pre, o.get("stl", xr[1][0]), [[f"s_lshl_b32 s{S_YT}, s{S_RB}, 9", f"s_add_u32 s{S_YT}, s{S_YT}, {STAT_OFF}",
        f"buffer_store_dwordx2 v[{V_QA}:{V_QA+1}], v{V_SAD}, s[{S_WS}:{S_WS+3}], s{S_YT} offen sc1"]])
    if full:
        for k_, (r_, cs) in enumerate(o.get("xtl", [[26, [0, 1, 2]], [54, [3, 4, 5]], [90, [6, 7, 8]]])):
            assert all(bj(r_) + 2 < 18*(c_ // 2) + 16 for c_ in cs)
            def xt(k_=k_, cs=cs):
                e(f"s_cmp_eq_u32 s{S_W}, s{S_J}")
                e(f"s_cbranch_scc1 {nm}_xt{k_}")
                g.lab(f"{nm}_xt{k_}b")
                L = [f"s_and_b32 s{S_YT}, s2, 8", f"s_lshl_b32 s{S_YT}, s{S_YT}, 2", f"v_lshrrev_b32 v{V_T2}, 3, v{V_TID}", f"v_xor_b32 v{V_T2}, s{S_YT}, v{V_T2}",
                     f"v_lshl_or_b32 v{V_T2}, v{V_TID}, 11, v{V_T2}", f"v_and_b32 v{V_T2}, 0x3fff, v{V_T2}", f"v_lshlrev_b32 v{V_T2}, 4, v{V_T2}",
                     f"s_lshl_b32 s{S_YT}, s{S_RB}, 10", f"s_add_u32 s{S_YT}, s{S_YT}, {XT_OFF + 262144*cs[0]}"]
                for c_ in cs:
                    L.append(f"buffer_store_dwordx4 v[{XR+4*c_}:{XR+4*c_+3}], v{V_T2}, s[{S_WS}:{S_WS+3}], s{S_YT} offen sc1")
                    if c_ != cs[-1]: L.append(f"s_add_u32 s{S_YT}, s{S_YT}, 262144")
                g.ool += [f"{nm}_xt{k_}:"] + ["  " + x for x in L] + [f"  s_branch {nm}_xt{k_}b"]
            add(pre, r_, [[xt]])
    add(work, 60, [f"s_lshl_b32 s{S_N}, s{S_MH}, 13", f"v_lshl_add_u32 v{V_FR}, v{V_LANE}, 4, s{S_N}"])
    if full:
        if o.get("cm", 4): add(post, o.get("rcold", 134), cold_items(o.get("cm", 4)))
        def second():
            e(f"s_lshr_b32 s{S_N}, s2, 5")
            e(f"s_cmp_eq_u32 s{S_N}, {o.get('u2', 7)}")
            e(f"s_cbranch_scc1 {nm}_u2")
            g.lab(f"{nm}_u2b")
            L = [f"s_add_u32 m0, s{S_KM}, 8192", f"v_add_u32 v{V_T2}, s{S_KM2}, v{V_K1}",
                 f"buffer_load_dwordx4 v{V_T2}, s[{S_K}:{S_K+3}], 0 offen lds",
                 f"s_add_u32 m0, s{S_KM}, {KSZ + 8192}", "s_nop 0",
                 f"buffer_load_dwordx4 v{V_T2}, s[{S_V}:{S_V+3}], 0 offen lds"]
            g.ool += [f"{nm}_u2:"] + ["  " + x for x in L] + [f"  s_branch {nm}_u2b"]
        add(pre, stgl, [[second, f"s_mov_b32 m0, s{S_KM}", (f"buffer_load_dwordx4 v{V_K1}, s[{S_K}:{S_K+3}], 0 offen lds", "kst")],
                        [f"s_add_u32 m0, s{S_KM}, {KSZ}", (f"buffer_load_dwordx4 v{V_K1}, s[{S_V}:{S_V+3}], 0 offen lds", "stg")]])
        add(bw, stgl, ["bias"])
        sc.hold[9] = 9; sc.hold[11] = 9; sc.hold[12] = 9
        add(act, stgl, [lambda: sc.claim([9, 11, 12], "stg")])
        for r_, k_ in o.get("tl", [[36, "K"], [72, "V"], [156, "F"]]):
            sr, v, d, m_ = {"K": (S_K, V_KT, V_HG, 0x37373737), "V": (S_V, V_KT, V_DUM, 0x30303030), "F": (S_KF, V_KFT, V_DUM, 0)}[k_]
            add(pre, r_, [([f"s_mov_b32 exec_lo, {m_}", "s_mov_b32 exec_hi, exec_lo"] if m_ else ["s_mov_b64 exec, 0x7ff"]) +
                          [(f"buffer_load_dword v{d}, v{v}, s[{sr}:{sr+3}], 0 offen", "t" + k_), "s_mov_b64 exec, -1"]])
    wt = o.get("wt", [])
    wn = -(-5184 // (128 * len(wt))) if wt else 0
    if wt: add(work, o.get("wts", 40), [f"s_and_b32 s{S_WT}, s{S_RB}, 15", f"s_lshl3_add_u32 s{S_WT}, s{S_WT}, s{S_W}", f"s_mul_i32 s{S_WT}, s{S_WT}, {wn*128}",
            f"s_mul_i32 s{S_N}, s{S_J}, {576*1152}", f"s_add_u32 s{S_WT}, s{S_WT}, s{S_N}", f"v_lshlrev_b32 v{V_T}, 7, v{V_LANE}"])
    for r_ in wt:
        it = [f"s_bfm_b64 exec, {wn}, 0", f"buffer_load_dword v{V_DUM}, v{V_T}, s[{S_W2}:{S_W2+3}], s{S_WT} offen", "s_mov_b64 exec, -1",
              f"s_add_u32 s{S_WT}, s{S_WT}, {128*wn*128}"]
        if r_ in pre and o.get("wtm", 1): pre[r_][0] = pre[r_][0][:-1] + it
        else: add(pre, r_, [it])
    for p in range(4):
        r_ = h0 + hd*p
        add(act, r_, [lambda p=p: sc.claim([2*p, 2*p + 1], "h")])
        add(aft, r_, [(f"ds_write_b128 v{V_HW}, v[{HP+8*p+4*t}:{HP+8*p+4*t+3}] offset:{16384*p + 1024*t}", ("hw", p)) for t in range(2)])
        add(bw, r_ + hd, [("hw", p)])
        ks = [k for k in SO if k // 8 == p]
        ha = o.get("ha", 0)
        add(aft, r_ + hd, [sread(1, k) for k in ks[:ha]])
        scatter([sread(1, k) for k in ks[ha:]], bj(r_ + hd) + 1, o.get("hn", hd // 2))
        add(bw, r_ + hd + hl*hd, [("s", 36 + k) for k in ks])
        add(act, r_ + hd + hl*hd, [lambda p=p: sc.free([2*p, 2*p + 1])])
    js = bj(hs)
    deal(gelu_list(o, 8), 81, js - 81, work)
    rc = min(b_ for b_ in bars if b_ >= 168 and b_ > h0 + 3*hd)
    assert bj(rc) < js
    add(act, rc, [lambda: sc.claim([8], "h")])
    add(aft, rc, [f"s_lshl_b32 s{S_N}, s{S_MH}, 12", f"s_add_u32 s{S_N}, s{S_N}, 65536", f"v_lshl_add_u32 v{V_HW}, v{V_LANE}, 4, s{S_N}",
                  f"s_lshr_b32 s{S_N}, s{S_QW}, 1", f"s_lshl_b32 s{S_N}, s{S_N}, 8", f"s_and_b32 s{S_T2}, s{S_QW}, 1", f"s_add_u32 s{S_N}, s{S_N}, s{S_T2}",
                  f"v_lshl_add_u32 v{V_T}, s{S_N}, 3, v{V_HW}"])
    add(work, 4*(js - 1) + 1, [(f"ds_write2st64_b64 v{V_T}, v[{HP+32}:{HP+33}], v[{HP+34}:{HP+35}] offset0:0 offset1:2", ("hw", 4))])
    add(bw, hs, [("hw", 4)])
    ks = [k for k in SO if k >= 32]
    scatter([sread(1, k) for k in ks], js + 1, 1)
    add(bw, nextb(hs, o.get("hl4", 2)), [("s", 36 + k) for k in ks])
    add(act, nextb(hs, o.get("hl4", 2)), [lambda: sc.free([8])])
    if full:
        rv = o.get("rv", h0); rk = o.get("rk", h0 + 2*hd)
        assert rv >= h0 and rk >= h0 + 2*hd
        add(bv, min(rv, rk), ["stg"])
        scatter([(f"ds_read_b32 v{VR+r}, v{V_KG} offset:{KSZ + 1024 + 128*r}", "vr") for r in range(8)], bj(rv) + 1, o.get("vn", 1))
        scatter([(f"ds_read_b32 v{KR+r}, v{V_KH} offset:{640 + 128*r}", "kr") for r in range(3)] +
                [(f"ds_read_b32 v{KR+3+r}, v{V_KG} offset:{1024 + 128*r}", "kr") for r in range(8)], bj(rk) + 1, o.get("kn", 2))
        add(bw, nextb(rv, o.get("vl", 1)), ["vr"]); add(act, nextb(rv, o.get("vl", 1)), [lambda: sc.free([11, 12])])
        add(bw, nextb(rk, o.get("kl", 2)), ["kr"]); add(act, nextb(rk, o.get("kl", 2)), [lambda: sc.free([9, 10])])
        add(pre, o.get("rx", h0 + hd), [[(f"buffer_load_dword v{V_TOK}, off, s[{S_DBG}:{S_DBG+3}], 0 sc1", "tok")]])
        add(pre, h0 + 3*hd, [[f"v_lshrrev_b32 v{V_T2}, 9, v{V_KST}", f"v_and_b32 v{V_T2}, -16, v{V_T2}",
            (f"buffer_load_dwordx4 v[{SH}:{SH+3}], v{V_T2}, s[{S_SH}:{S_SH+3}], 0 offen", "sh")]])
    told = set()
    def flags():
        for m in range(5):
            if ("p", m) in g.bdone and m not in told:
                told.add(m)
                for x in flag_store(g, m): g.put(x)
        if "kv1" in g.bdone and "rdy" not in told:
            told.add("rdy")
            e(f"s_mul_i32 s{S_N}, s2, 257")
            e(f"s_bfe_u32 s{S_N}, s{S_N}, {3 | (8 << 16)}")
            e(f"s_lshl2_add_u32 s{S_N}, s{S_N}, {RDY_OFF}")
            e(f"buffer_store_dword v{V_TOK}, v{V_L0}, s[{S_WS}:{S_WS+3}], s{S_N} offen sc1")
    def tok():
        g.wait(vm=["tok"])
        e(f"v_readfirstlane_b32 s{S_TOK}, v{V_TOK}")
        e(f"s_cmp_eq_u32 s{S_TOK}, 0")
        e(f"s_cbranch_scc1 {nm}_tok_slow")
        g.lab(f"{nm}_tok_back")
        e(f"s_andn2_b32 s{S_PF}, s{S_FLG}, 0xe0")
        e(f"s_xor_b32 s{S_PF}, s{S_PF}, 4")
    def rdy():
        assert "rdy" in told
        g.wait(vm=["rl"])
        e(f"v_cmp_ne_u32 vcc, s{S_ONES}, v{V_RDY}")
        e(f"s_cbranch_vccnz {nm}_rdy_slow")
        g.lab(f"{nm}_rdy_back")
    ss = o.get("ss", 8)
    kvb = o.get("kvb", 1)
    def kvok(): assert "vr" in g.done and "kr" in g.done and ("hw", 4) in g.done
    if full:
        spread([kvok] + kv_compute(g), o.get("kc0", 4*js + 2), o.get("kc1", 362 + 36*kvb), work)
        spread(setup4(o), o.get("s40", 324 + 36*4 + 10), o.get("s40", 324 + 36*4 + 10) + 28, work)
        xe = o.get("xe", 0); rl = o.get("rl", 278 if xe else 310)
        if xe: add(pre, rl, [[f"buffer_load_dwordx4 v[{X}:{X+3}], v{v}, s[{S_WS}:{S_WS+3}], s{S_XO} offen sc1" for X, v in ((XA, V_RA), (XB, V_RB))]])
        add(work, 4*o.get("rlj", 128 if xe else 146), [(f"buffer_load_dword v{V_RDY}, v{V_L4}, s[{S_WS}:{S_WS+3}], 0 offen sc1", "rl")])
        add(work, 4*o.get("p0j", 155) + 1, [lambda: poll(g, "p0")])
        c0 = 606 + o.get("c0", 0)
        add(act, 310, [lambda: sc.claim(range(9), "conv")])
        spread(conv_loads(g), c0, c0 + o.get("cls", 12), work)
        hooks.update({o.get("rt", 180): tok, rl: rdy})
    assert not o.get("la2")
    assert kvb == 1
    for n in range(8):
        b = 324 + 36*(n + 1)
        if n >= 4: add(work, b + 2, tswap(g, n))
        spread(cvt(g, n), b + 3, b + 8, work)
        tq = o.get("tq", 12) if n < 7 else 7
        if n >= 3: add(work, b + tq, [([] if o.get("nopf") else [fcheck(g, n + 1)]) + tload(g, n + 1)])
        if 2 <= n < 7 and not o.get("nopf"): add(work, b + max(tq, o.get("fq", 20)), [fload(g, n + 2)])
        s_ = o.get("ss7", 10) if full and n == 7 else ss
        add(work, b + s_, pstore(g, n))
        if full:
            if n == kvb:
                for k_, x in enumerate(kv_store()): add(work, b + s_ + o.get("kvo", [0, 0])[k_], x)
            add(work, b + s_, [flags])
    stream(g, sc, bars, work, hooks, pre, post, inb, bw, bv, act, aft)
    if o.get("sp"): e("s_setprio 0")
    for x in tswap(g, 8): g.put(x)
    e("s_nop 5")
    for x in cvt(g, 8) + pstore(g, 8): g.put(x)
    if not full: finish(g)
    else:
        assert told == set(range(5)) | {"rdy"}, told
        tail(g, nm)
        g.lab(f"{nm}_rdy_slow")
        e(f"s_mov_b32 s{S_N}, {SPIN}")
        g.lab(f"{nm}_rdy_lp")
        e(f"buffer_load_dword v{V_RDY}, v{V_L4}, s[{S_WS}:{S_WS+3}], 0 offen sc1")
        e(f"s_sub_u32 s{S_N}, s{S_N}, 1")
        e("s_waitcnt vmcnt(0)")
        e(f"s_cbranch_scc1 {nm}_rdy_back")
        e(f"v_cmp_ne_u32 vcc, s{S_ONES}, v{V_RDY}")
        e(f"s_cbranch_vccnz {nm}_rdy_lp")
        e(f"s_branch {nm}_rdy_back")
        g.lab(f"{nm}_tok_slow")
        e(f"s_mov_b32 s{S_N}, {SPIN}")
        g.lab(f"{nm}_tok_lp")
        e(f"buffer_load_dword v{V_TOK}, off, s[{S_DBG}:{S_DBG+3}], 0 sc1")
        e(f"s_sub_u32 s{S_N}, s{S_N}, 1")
        e("s_waitcnt vmcnt(0)")
        e(f"s_cbranch_scc1 {nm}_tok_back")
        e(f"v_readfirstlane_b32 s{S_TOK}, v{V_TOK}")
        e(f"s_cmp_eq_u32 s{S_TOK}, 0")
        e(f"s_cbranch_scc1 {nm}_tok_lp")
        e(f"s_branch {nm}_tok_back")
    g.L += g.ool
    g.lab(f"{name}_mk")
    e(f"s_mov_b32 s{S_T}, {EPO_OFF}")
    e(f"s_load_dword s{S_TOK}, s[{S_WS}:{S_WS+1}], s{S_T}")
    e(f"v_min_u32 v{V_T}, 1, v{V_LANE}")
    e(f"v_lshlrev_b32 v{V_T}, 31, v{V_T}")
    e("s_waitcnt lgkmcnt(0)")
    e(f"s_add_u32 s{S_TOK}, s{S_TOK}, 1")
    e(f"s_addc_u32 s{S_TOK}, s{S_TOK}, 0")
    e(f"v_mov_b32 v{V_L0}, s{S_TOK}")
    e(f"buffer_store_dword v{V_L0}, v{V_T}, s[{S_DBG}:{S_DBG+3}], 0 offen sc1")
    e(f"buffer_store_dword v{V_L0}, v{V_T}, s[{S_WS}:{S_WS+3}], s{S_T} offen sc1")
    e(f"s_branch {name}_mkb")
    g.lab(f"{name}_exit")
    e("s_endpgm")
    desc = f""".amdhsa_kernel {name}
  .amdhsa_next_free_vgpr 256
  .amdhsa_next_free_sgpr {102 if o.get('stamps') else 100}
  .amdhsa_accum_offset 256
  .amdhsa_group_segment_fixed_size 0
  .amdhsa_kernarg_size 112
  .amdhsa_user_sgpr_count 2
  .amdhsa_user_sgpr_kernarg_segment_ptr 1
  .amdhsa_system_sgpr_workgroup_id_x 1
.end_amdhsa_kernel"""
    return "\n".join(g.L) + "\n", desc
```

```python
import sys, json
import k17
KN = "parallel_sum__ssm_conv_h3__dense_activation_gelu__prompt_kernel"
def full(opt):
    b1, d1 = k17.gen(KN, opt)
    return (f"; @launch grid=(256,1,1) block=(512,1,1) lds={k17.LDS_SZ}\n"
            '.amdgcn_target "amdgcn-amd-amdhsa--gfx950"\n.text\n' + b1 +
            '.section .rodata,"a"\n.p2align 6\n' + d1 + "\n")
if __name__ == "__main__":
    opt = json.loads(sys.argv[2]) if len(sys.argv) > 2 else {}
    open(sys.argv[1], "w").write(full(opt))
```

```python
import struct, math
def f32bits(x): return struct.unpack("<I", struct.pack("<f", x))[0]

LDS_SZ = 163840
XL = 11 * 8192
KSTG = 73728
KSZ = 16384
TBL = 84128
STAMP_OFF = 32 << 20
KVT_OFF = 20 << 20
STAT_OFF = 24 << 20
FLAG_OFF = 25 << 20
RDY_OFF = 26 << 20
EPO_OFF = 27 << 20
XT_OFF = 28 << 20
JOBS = [[(8, 12), (28, 32)], [(12, 16), (24, 28)], [(16, 24)]]
WSTR = 8704
SPIN = 1 << 15
SPB = 3584

V_TID = 0; V_LANE = 1
V_TR = [2, 3, 4]
V_FR = 5; V_HW = 6; V_C1 = 7
V_O1 = 8; V_O2 = 9; V_BO = 10; V_ST = 11; V_L0 = 12
V_STAMP = 13; V_T = 14; V_T2 = 15
V_O1B = 52; V_O2B = 53; V_O1G = 54; V_O2G = 55
ACC = [16, 24]
WF = 32
WFS = [32, 36, 40, 44, 48, 52, 108]
S_KO = 35; S_FO = 1; S_DUM = 56
GT = 56; BI = 64; SP = 68; HP = 76; BIG = 112
XR = 76; LT = 112; BR = 63; V_QA = 60; V_SAD = 62; S_YT = 3; S_XO = 30
PKR = 56
V_K1 = 68; V_K2 = 69; V_KH = 69; V_HG = 55; V_DUM = 70; V_KFT = 71; V_XA = 72; V_XB = 73; V_KG = 74; V_KST = 75
XA = 64; XB = 68; V_KT = 53
VR = 76; KR = 84; SH = 96; KC = 100; KA = 104
V_FR2 = 56
V_TOK = 8; V_RDY = 60; V_L4 = 61; V_XO = 62; V_XS = 63; V_TM = 62; V_TC = 63; V_YO = 60; V_YS = 61; V_SA = 53; V_SB = 55
V_AF = 5; V_BF = 6; V_KV = 7; V_YW = 10; V_RA = 52; V_RB = 54; V_FA = 74; V_P = 75; V_CL = 110; V_OOB = 111
AF = 112; CACC = 176; BB = 224; NB = 6
LDA = 76; LDB = 16

S_TOK = 3
S_Q = 4; S_W1 = 8; S_W2 = 12; S_B1 = 16; S_DR = 20; S_WS = 24
S_J = 28; S_RB = 29; S_ROT = 30; S_W = 31; S_QW = 32; S_M0B = 33
S_GC = 34
S_N = 38; S_T = 39; S_T2 = 40
S_COL = 44
S_ROW = [16, 17, 18, 19, 36, 37, 41, 42, 43]
S_PB = 53; S_SI = 54; S_MH = 55
S_PC = 56; S_TM = 58; S_M0G = 56
S_FLG = 62; S_ONES = 63
S_K = 64; S_V = 68; S_SH = 72; S_KVO = 76
S_G = 77; S_PART = 78; S_INFO = 79
S_OUT = 80; S_KF = 84; S_DBG = 88; S_DP = 92; S_BP = 94; S_B2 = 96
S_TA = 92; S_TB = 93; S_IA = 94; S_IB = 95; S_BM = 57; S_KM = 30
S_BV = 64; S_LO = 72; S_HI = 73; S_D = 74; S_PX = 75; S_PY = 76; S_GX = 34; S_GY = 35; S_XM = 28; S_YM = 0; S_SO = 23; S_NX = 0; S_NY = 1; S_H2 = 8; S_CH = 9; S_FB = 10; S_GO = 11

S_PO = [11, 20, 21, 22]; S_D2 = 79; S_BW = 44; S_B3 = 4
S_WT = 35; S_KM2 = 35; S_PF = 56; V_PF = 68; TQ = 64; NP = 4

class G:
    def __init__(self, opt):
        self.L = []; self.o = opt
        self.lds = []; self.vm = []; self.done = set(); self.bdone = set()
    def e(self, s, tag=None):
        if s.endswith(" lds") and self.L[-1].split()[1:2] == ["m0,"]: self.L.append("  s_nop 0")
        self.L.append("  " + s)
        if s.startswith("ds_"): self.lds.append(tag)
        if s.startswith("buffer_") or s.startswith("global_"): self.vm.append(tag)
    def put(self, x):
        if isinstance(x, list):
            for y in x: self.put(y)
        elif callable(x): x()
        elif isinstance(x, tuple): self.e(x[0], x[1])
        else: self.e(x)
    def lab(self, s): self.L.append(s + ":")
    def _n(self, q, tags):
        idx = [i for i, t in enumerate(q) if t is not None and t in tags]
        if not idx: return None
        m = max(idx)
        for t in q[:m+1]:
            if t is not None: self.done.add(t)
        n = len(q) - 1 - m
        del q[:m+1]
        return n
    def wait(self, lds=(), vm=(), alllds=False, allvm=False):
        w = []
        if allvm:
            for t in self.vm: self.done.add(t)
            self.vm = []; w.append("vmcnt(0)")
        else:
            n = self._n(self.vm, set(vm))
            if n is not None: w.append(f"vmcnt({min(n, 63)})")
        if alllds:
            for t in self.lds: self.done.add(t)
            self.lds = []; w.append("lgkmcnt(0)")
        else:
            n = self._n(self.lds, set(lds))
            if n is not None: w.append(f"lgkmcnt({min(n, 15)})")
        if w: self.e("s_waitcnt " + " ".join(w))
    def stamp(self):
        if not self.o.get("stamps"): return
        self.e(f"s_memtime s[{S_TM}:{S_TM+1}]")
        self.e(f"s_memrealtime s[{S_TM+2}:{S_TM+3}]")
        self.e("s_mov_b32 s100, m0")
        self.e("s_waitcnt lgkmcnt(0)")
        self.e(f"s_mov_b32 m0, s{S_SI}")
        self.e(f"s_add_u32 s{S_SI}, s{S_SI}, 1")
        self.e(f"v_writelane_b32 v{V_STAMP}, s{S_TM}, m0")
        self.e(f"s_add_u32 m0, m0, 30")
        self.e(f"s_nop 0")
        self.e(f"v_writelane_b32 v{V_STAMP}, s{S_TM+2}, m0")
        self.e("s_mov_b32 m0, s100")
    def rstamp(self, lane):
        if not self.o.get("stamps"): return
        self.e(f"s_memrealtime s[{S_TM}:{S_TM+1}]")
        self.e("s_waitcnt lgkmcnt(0)")
        self.e(f"v_writelane_b32 v{V_STAMP}, s{S_TM}, {lane}")

def srd(g, s, nrec):
    g.e(f"s_mov_b32 s{s+2}, {nrec}")
    g.e(f"s_mov_b32 s{s+3}, 0x00020000")

SM = [1]
def slot(N, u):
    if N == 10 and u == 8: return 9
    if N % 2 == 0: return u
    if N == 7: return 11 + u
    if N > 8: return [13, 14, 15, 16, 17, 18, 19, 12, 11][u]
    if N < 9:
        if not SM[0]: return 11 + u
        return 10 + u if u else (9 if N == 1 else 19)
    if u == 8: return 11
    if not SM[0]: return 12 + u
    return 11 + u if u else 19

def dma(g, N, u, grp=False):
    L = [f"s_add_u32 m0, s{S_M0G if grp else S_M0B}, {slot(N, u) * 8192}"]
    if N < 9:
        L.append(f"s_add_u32 s{S_T}, s{S_COL+N}, {u*64*9216}")
        v, s = (V_O1G if grp else V_O1), S_W1
        v2 = V_O1B
    else:
        L.append(f"s_add_u32 s{S_T}, s{S_COL+N-9}, s{S_ROW[u]}")
        v, s = (V_O2G if grp else V_O2), S_W2
        v2 = V_O2B
    if g.o.get("nodma") and N: return [L]
    L.append((f"buffer_load_dwordx4 v{v}, s[{s}:{s+3}], s{S_T} offen lds", ("u", N, u)))
    if not grp: return [L]
    d2 = (f"buffer_load_dwordx4 v{v2}, s[{s}:{s+3}], s{S_T} offen offset:1024 lds", ("u", N, u))
    if g.o.get("dpair"): return [L + [d2]]
    return [L, [d2]]

def parts(N, ks):
    if N < 9: return [(ks // 2, 2*(ks % 2)), (ks // 2, 2*(ks % 2) + 1)]
    if ks < 16: return [(2*(ks // 4), ks % 4), (2*(ks // 4) + 1, ks % 4)]
    return [(8, 2*(ks - 16)), (8, 2*(ks - 16) + 1)]

def wreads(g, r):
    N, ks = r // 18, r % 18
    b = WFS[r % g.NF]
    L = []
    for h, (u, g16) in enumerate(parts(N, ks)):
        a = slot(N, u)*8192 + 2048*g16
        L.append((f"ds_read_b64_tr_b16 v[{b+2*h}:{b+2*h+1}], v{V_TR[a >> 16]} offset:{a & 0xffff}", ("w", r) if h else None))
    return L

def mfmas(g, i):
    N, ks = i // 18, i % 18
    b = WF + 4*(i % g.NF)
    L = []
    for t in range(2):
        c = ACC[N % 2] + 4*t
        f = BIG + 8*ks + 4*t
        src = f"v[{c}:{c+3}]" if ks else (f"v[{BI}:{BI+3}]" if N < 9 else "0")
        L.append(f"v_mfma_f32_16x16x32_bf16 v[{c}:{c+3}], v[{b}:{b+3}], v[{f}:{f+3}], {src}")
    return L

def sread(ph, k):
    ks, t = k // 2, k % 2
    if ph == 0:
        off = 4096*ks + 1024*t
        v = [V_FR, V_FR2, V_FR2 + 1, V_FR2 + 2][(off >> 16) + 2*(ks % 2)]
        return (f"ds_read_b128 v[{BIG+4*k}:{BIG+4*k+3}], v{v} offset:{off & 0xffff}", ("s", k))
    if ks < 16: return (f"ds_read_b128 v[{BIG+4*k}:{BIG+4*k+3}], v{V_FR} offset:{16384*(ks//4) + 2048*(ks%4) + 1024*t}", ("s", 36 + k))
    return (f"ds_read_b128 v[{BIG+4*k}:{BIG+4*k+3}], v{V_HW} offset:{2048*(ks-16) + 1024*t}", ("s", 36 + k))

def spread(items, s0, s1, work):
    n = len(items)
    for i, it in enumerate(items):
        s = s0 + (i * (s1 - s0)) // n
        work.setdefault(s, []).extend(it if isinstance(it, list) else [it])

def gelu_list(o, n):
    L = []
    A = ACC[n % 2]
    x = [A + i for i in range(8)]
    t = [GT + i for i in range(8)]
    def dst(i):
        if n == 8: return HP + 32 + i
        return HP + 8*(n // 2) + 4*(i // 2) + 2*(n % 2) + (i % 2)
    if o.get("nogelu"):
        return [f"v_cvt_pk_bf16_f32 v{dst(i)}, v{x[2*i]}, v{x[2*i+1]}" for i in range(4)]
    P = lambda r: f"v[{r}:{r+1}]"
    if o.get("pk", 0):
        sc = f"s[{S_GC}:{S_GC+1}]"
        for i in range(0, 8, 2): L.append(f"v_pk_mul_f32 {P(t[i])}, {P(x[i])}, {P(x[i])}")
        for i in range(0, 8, 2): L.append(f"v_pk_fma_f32 {P(t[i])}, {P(t[i])}, {sc}, {sc} op_sel:[0,0,1] op_sel_hi:[1,0,1]")
        for i in range(0, 8, 2): L.append(f"v_pk_mul_f32 {P(t[i])}, {P(t[i])}, {P(x[i])}")
        for i in range(8): L.append(f"v_exp_f32 v{t[i]}, v{t[i]}")
        for i in range(0, 8, 2): L.append(f"v_pk_add_f32 {P(t[i])}, {P(t[i])}, 1.0 op_sel_hi:[1,0]")
        for i in range(8): L.append(f"v_rcp_f32 v{t[i]}, v{t[i]}")
        for i in range(0, 8, 2): L.append(f"v_pk_mul_f32 {P(t[i])}, {P(t[i])}, {P(x[i])}")
    else:
        for i in range(8): L.append(f"v_mul_f32 v{t[i]}, v{x[i]}, v{x[i]}")
        for i in range(8): L.append(f"v_fma_f32 v{t[i]}, v{t[i]}, s{S_GC}, v{V_C1}")
        for i in range(8): L.append(f"v_mul_f32 v{t[i]}, v{t[i]}, v{x[i]}")
        for i in range(8): L.append(f"v_exp_f32 v{t[i]}, v{t[i]}")
        for i in range(8): L.append(f"v_add_f32 v{t[i]}, 1.0, v{t[i]}")
        for i in range(8): L.append(f"v_rcp_f32 v{t[i]}, v{t[i]}")
        for i in range(8): L.append(f"v_mul_f32 v{t[i]}, v{t[i]}, v{x[i]}")
    for i in range(4): L.append(f"v_cvt_pk_bf16_f32 v{dst(i)}, v{t[2*i]}, v{t[2*i+1]}")
    return L

def tload(g, n):
    L = [f"s_lshl_b32 s{S_T2}, s{S_COL+n}, 11", f"s_add_u32 s{S_T2}, s{S_T2}, s{S_PB}"]
    v = V_ST
    if n == 4:
        L = [f"s_lshl_b32 s{S_N}, s{S_J}, 31", f"v_or_b32 v{V_T}, s{S_N}, v{V_ST}"] + L; v = V_T
    L.append((f"buffer_load_dwordx4 v[{TQ}:{TQ+3}], v{v}, s[{S_WS}:{S_WS+3}], s{S_T2} offen {g.o.get('tfl', '')}", ("q", n)))
    return L

def fload(g, n):
    return [f"s_lshl1_add_u32 s{S_N}, s{S_COL+n}, s{S_PF}",
            (f"buffer_load_dword v{V_PF}, off, s[{S_WS}:{S_WS+3}], s{S_N} sc1", ("pf", n))]

def fcheck(g, n):
    def f():
        nm = f"{g.nm}_pf{n}"
        g.wait(vm=[("pf", n)])
        g.e(f"v_cmp_ne_u32 vcc, s{S_TOK}, v{V_PF}")
        g.e(f"s_cbranch_vccnz {nm}")
        g.lab(f"{nm}b")
        L = ([f"s_bitcmp1_b32 s{S_J}, 0", f"s_cbranch_scc1 {nm}b"] if n == 4 else []) + [
             f"s_lshl1_add_u32 s{S_N}, s{S_COL+n}, s{S_PF}", f"s_mov_b32 s{S_T2}, {SPIN}"]
        M = [f"buffer_load_dword v{V_PF}, off, s[{S_WS}:{S_WS+3}], s{S_N} sc1", f"s_sub_u32 s{S_T2}, s{S_T2}, 1", "s_waitcnt vmcnt(0)",
             f"s_cbranch_scc1 {nm}b", f"v_cmp_ne_u32 vcc, s{S_TOK}, v{V_PF}", f"s_cbranch_vccnz {nm}l", f"s_branch {nm}b"]
        g.ool += [f"{nm}:"] + ["  " + x for x in L] + [f"{nm}l:"] + ["  " + x for x in M]
    return f

def tswap(g, n):
    return [lambda: g.wait(vm=[("q", n)]), f"v_permlane16_swap_b32 v{TQ}, v{TQ+2}", f"v_permlane16_swap_b32 v{TQ+1}, v{TQ+3}"]

def cvt(g, n):
    A = ACC[(n + 9) % 2]; P = PKR + 4*(n % g.o.get("npk", 1))
    L = []
    if n >= 4:
        tc = g.o.get("tc", 0)
        if tc == 2 and n < 8:
            ex = lambda d, i: [f"v_lshlrev_b32 v{d}, 16, v{TQ+i}", f"v_and_b32 v{d+1}, 0xffff0000, v{TQ+i}"]
            ad = lambda d, i: [f"v_pk_add_f32 v[{A+2*i}:{A+2*i+1}], v[{A+2*i}:{A+2*i+1}], v[{d}:{d+1}]"]
            L += ex(P, 0) + ex(P + 2, 1) + ex(TQ, 2) + ad(P, 0) + ad(P + 2, 1) + ex(P, 3) + ad(TQ, 2) + ad(P, 3)
        else:
            for i in (0, 2, 1, 3): L += [f"v_dot2c_f32_bf16 v{A+2*i}, s{S_LO}, v{TQ+i}", f"v_dot2c_f32_bf16 v{A+2*i+1}, s{S_HI}, v{TQ+i}"]
        if tc == 1: L = [x.replace("v_dot2c_f32_bf16", "v_add_f32") for x in L]
        if tc == 3: L = []
    TM, TC = (P + 2, P + 3) if n < 2 else (V_TM, V_TC)
    if n < 3: L += [f"v_bfe_i32 v{TM}, v{V_LANE}, 4, 1", f"v_and_b32 v{TC}, 0x10000, v{TM}", f"v_or_b32 v{TM}, 0xfffe0000, v{TM}", f"v_xor_b32 v{TC}, 0x10000, v{TC}"]
    if n < 4: L += [f"v_add_u32 v{r}, v{r}, v{TC}" for r in (A, A + 4)] + [f"v_and_b32 v{r}, v{r}, v{TM}" for r in (A, A + 4)]
    if n > 4: L += [f"v_and_or_b32 v{r}, v{r}, v{V_TM}, v{V_TC}" for r in (A, A + 4)]
    if n == 4:
        L += [[f"s_lshl_b32 s{S_N}, s{S_J}, 16", f"v_and_b32 v{P}, s{S_N}, v{V_TC}"]] + [f"v_add_u32 v{r}, v{r}, v{P}" for r in (A, A + 4)]
        L += [f"v_xor_b32 v{P}, v{P}, v{V_TC}"] + [f"v_and_or_b32 v{r}, v{r}, v{V_TM}, v{P}" for r in (A, A + 4)]
    L += [f"v_cvt_pk_bf16_f32 v{P+i}, v{A+2*i}, v{A+2*i+1}" for i in range(4)]
    L.append("s_nop 0")
    L.append(f"v_permlane16_swap_b32 v{P}, v{P+2}")
    L.append(f"v_permlane16_swap_b32 v{P+1}, v{P+3}")
    return L

def pstore(g, n):
    P = PKR + 4*(n % g.o.get("npk", 1))
    L = [f"s_lshl_b32 s{S_T2}, s{S_COL+n}, 11", f"s_add_u32 s{S_T2}, s{S_T2}, s{S_PB}"]
    st = f"buffer_store_dwordx4 v[{P}:{P+3}], v{V_ST}, s[{S_WS}:{S_WS+3}], s{S_T2} offen"
    if n < 4: L.append(f"v_and_b32 v{P}, -2, v{P}")
    if n > 4: L.append(f"v_or_b32 v{P}, 1, v{P}")
    if n == 4: L += [[f"s_andn2_b32 s{S_N}, 1, s{S_J}", f"v_and_or_b32 v{P}, v{P}, -2, s{S_N}"]]
    return L + [(f"{st} {g.o.get('gfl', 'sc1') if n < 4 else g.o.get('ffl', 'sc1')}", ("p", n))]

def flag_store(g, n):
    return [f"s_lshl1_add_u32 s{S_N}, s{S_COL+n}, s{S_FLG}",
            (f"buffer_store_dword v{V_TOK}, v{V_L0}, s[{S_WS}:{S_WS+3}], s{S_N} offen sc1", ("f", n))]

class Sched:
    def __init__(self, g, first):
        self.g = g
        A = [(N, u) for N in range(18) for u in range(9)]
        self.q = A[first:]
        self.own = {}
        for N, u in A[:first]: self.own[slot(N, u)] = (N, u)
        self.hold = {}
    def ok(self, N, u):
        s_ = slot(N, u)
        return s_ not in self.own and not (s_ in self.hold and N >= self.hold[s_])
    def claim(self, slots, nm):
        for s_ in slots:
            assert s_ not in self.own, (s_, nm, self.own[s_])
            self.own[s_] = nm
    def free(self, slots):
        for s_ in slots:
            assert isinstance(self.own[s_], str), (s_, self.own[s_])
            del self.own[s_]; self.hold.pop(s_, None)
    def release(self, i):
        for s_, x in list(self.own.items()):
            if isinstance(x, tuple):
                N, u = x
                last = max(ks for ks in range(18) if any(p[0] == u for p in parts(N, ks)))
                if 18*N + last <= i: del self.own[s_]
    def take(self, cap):
        R = []
        while self.q and len(R) < cap and self.ok(*self.q[0]):
            x = self.q.pop(0); self.own[slot(*x)] = x
            R.append(x)
        return R

def mfma(g, i, t):
    N, ks = i // 18, i % 18
    b = WFS[i % g.NF]
    c = ACC[N % 2] + 4*t
    f = BIG + 8*ks + 4*t
    src = f"v[{c}:{c+3}]" if ks else (f"v[{BI}:{BI+3}]" if N < 9 else "0")
    return f"v_mfma_f32_16x16x32_bf16 v[{c}:{c+3}], v[{b}:{b+3}], v[{f}:{f+3}], {src}"

def isvalu(x):
    t = x[0] if isinstance(x, tuple) else x
    return isinstance(t, str) and t.startswith("v_")

def seq(j):
    R = []
    for i in (2*j - 2, 2*j - 1): R.append((i, 1 - (i % 18) // 2 % 2) if i >= 0 else None)
    for i in (2*j, 2*j + 1): R.append((i, (i % 18) // 2 % 2) if i < 324 else None)
    return R
SO = [2*m[0] + m[1] for j in range(10) for m in seq(j) if m and m[0] < 18]

def stream(g, sc, bars, work, hooks, pre, post, inb, bw, bv, act, aft):
    o = g.o; D = g.NF - 2; E = D + D % 2 + 2
    i1 = 324
    first = lambda r: r - D % 2
    def need(r0):
        nx = min([first(b) for b in bars if b > r0] + [i1])
        return [("u", r // 18, p[0]) for r in range(first(r0), nx) for p in parts(r // 18, r % 18)]
    due = {}
    for b in bars:
        for t in need(b): due.setdefault(t[1:], (b - E) // 2)
    for r in range(D):
        for x in wreads(g, r): g.put(x)
        for x in inb.pop((-1, r), []): g.put(x)
    vq = []
    log = []
    for j in range(163):
        r = 2*j + E
        bar = r in bars
        tgt = o.get("tgt%d" % (1 + j // 81), o.get("tgt", 7))
        if bar:
            sc.release(2*j + 1)
            for f in act.pop(r, []): f()
            vq += pre.pop(r, [])
        X = []
        if vq: X.append(vq.pop(0))
        us = sc.take(1) if j < 162 else []
        while us and len(us) < o.get("dmax", 2) and sc.q and due[sc.q[0]] - j < tgt and sc.ok(*sc.q[0]): us += sc.take(1)
        log += [(j, u, due[u] - j) for u in us]
        if bar: vq += post.pop(r, [])
        dm = [dma(g, N, u)[0] for N, u in us]
        rr = [x for i in (2*j + D, 2*j + D + 1) if i < i1 and not o.get("noread") for x in wreads(g, i)]
        sl = dm[0][:2] if dm else []
        S = seq(j)
        def stag(m): return [("s", 2*m[0] + m[1])] if m[0] < 18 else [("s", 36 + 2*(m[0] - 162) + m[1])] if 162 <= m[0] < 180 else []
        for q, m in enumerate(S):
            tags = []
            if q == o.get("wq", 0) and j > 1:
                tags += [("w", 2*j), ("w", 2*j + 1)] + (["bias"] if j % 9 == 0 else [])
                if o.get("sw", 1): tags += [t for m2 in S if m2 for t in stag(m2)]
            if m:
                tags.append(("w", m[0]))
                tags += stag(m)
                for t in stag(m): assert t in g.lds or t in g.done, (j, t)
                if m[0] % 18 == 0: tags.append("bias")
                if o.get("sp") == 2 and q == 0: g.e("s_setprio 1")
                g.wait(lds=tags)
                if o.get("sp") == 1 and q == 0: g.e("s_setprio 1")
                if o.get("sp") == 3 and q == 0: g.e("s_setprio 0")
                if not o.get("nomfma"): g.e(mfma(g, *m))
                if o.get("sp") in (1, 2) and q == 3: g.e("s_setprio 0")
                if o.get("sp") == 3 and q == 3: g.e("s_setprio 1")
                for _ in range(2 if j == 0 else 1):
                    if rr: g.put(rr.pop(0))
                if sl: g.put(sl.pop(0))
                for x in inb.pop((j, q), []): g.put(x)
        assert not rr
        if bar:
            nd = need(r)
            assert not [t for t in nd if t[1:] in sc.q or t[1:] in us], r
            for t in bw.get(r, []) + bv.get(r, []): assert t in g.lds or t in g.vm or t in g.done, (r, t)
            g.wait(vm=nd + bv.pop(r, []), lds=bw.pop(r, []))
            if r in hooks: hooks.pop(r)()
            if r in o.get("sl", [8, 18, 26, 80, 152, 164, 180, 188, 206, 242, 278, 296, 310, 318]): g.stamp()
            if not o.get("nobar"): g.e("s_barrier")
            g.bdone = set(g.done)
        if dm:
            for x in dm[0][2:]: g.put(x)
        if bar:
            for x in aft.pop(r, []): g.put(x)
        V = [x for s_ in range(4*j - 2, 4*j + 2) for x in work.pop(s_, [])]
        if j == 162: work[4*j - 2] = V; break
        for Y in dm[1:]:
            for x in Y[:2]: g.put(x)
            for _ in range(o.get("dgap", 2)):
                if V and isvalu(V[0]): g.put(V.pop(0))
            for x in Y[2:]: g.put(x)
        k = o.get("xgap", 2)
        while k and V and isvalu(V[0]) and X:
            g.put(V.pop(0)); k -= 1
        for Y in X:
            for x in Y: g.put(x)
        for x in V: g.put(x)
    if o.get("log"): print(log)
    assert not (vq or inb or pre or post or bw or bv or act or aft or hooks), (vq, inb, pre, post, bw, bv, act, aft, hooks)
    assert not [s_ for s_ in work if s_ < 2*i1 and work[s_]], sorted(work)

def deal(items, j0, n, work):
    cost = [2 if x.startswith("v_exp") or x.startswith("v_rcp") else 1 for x in items]
    tot = sum(cost); cum = 0
    for x, c in zip(items, cost):
        work.setdefault(4*(j0 + min(n - 1, int((cum + c / 2) * n / tot))), []).append(x); cum += c

def finish(g):
    if g.o.get("stamps"):
        g.stamp()
        g.e("s_waitcnt vmcnt(0)")
        g.stamp()
        g.rstamp(63)
        g.e(f"s_lshl_b32 s{S_T}, s2, 11")
        g.e(f"s_add_u32 s{S_T}, s{S_T}, {STAMP_OFF}")
        g.e(f"v_lshlrev_b32 v{V_T}, 2, v{V_TID}")
        g.e(f"buffer_store_dword v{V_STAMP}, v{V_T}, s[{S_WS}:{S_WS+3}], s{S_T} offen")
    g.e("s_endpgm")

def bf16round(g, v):
    g.e(f"v_cvt_pk_bf16_f32 v{v}, v{v}, v{v}")
    g.e(f"v_and_b32 v{v}, 0xffff0000, v{v}")

class H:
    def __init__(self): self.L = []; self.e = self.L.append

def prologue(g, name):
    o = g.o; e = g.e; raw = lambda s_: g.L.append("  " + s_)
    full = not o.get("core")
    e("s_cmp_ge_u32 s2, 256")
    e(f"s_cbranch_scc1 {name}_exit")
    e(f"s_load_dwordx2 s[{S_Q}:{S_Q+1}], s[0:1], 0")
    if o.get("stamps"):
        e(f"s_mov_b32 s{S_SI}, 0"); e(f"v_mov_b32 v{V_STAMP}, 0")
        g.rstamp(62)
        g.stamp()
    ep = o.get("ep", 0)
    if ep:
        e(f"s_getpc_b64 s[{S_PC}:{S_PC+1}]")
        e(f"v_lshrrev_b32 v{V_T}, {ep}, v{V_TID}")
        e(f"v_lshlrev_b32 v{V_T}, 7, v{V_T}")
        raw(f"global_load_dword v{V_DUM}, v{V_T}, s[{S_PC}:{S_PC+1}] offset:128")
    KA_ = [f"s_load_dwordx2 s[{s_}:{s_+1}], s[0:1], {off}" for s_, off in ((S_W1, 56), (S_B1, 64), (S_W2, 72), (S_WS, 104), (S_K, 8), (S_V, 16),
           (S_SH, 24), (S_KF, 32), (S_DP, 40), (S_BP, 80), (S_OUT, 88), (S_DBG, 96))]
    if o.get("kae", 0):
        for x in KA_: e(x)
    e(f"s_lshr_b32 s{S_RB}, s2, 4")
    e(f"s_and_b32 s{S_T}, s2, 4")
    e(f"s_lshl2_add_u32 s{S_RB}, s{S_T}, s{S_RB}")
    e(f"v_lshrrev_b32 v{LT}, 3, v{V_TID}")
    e(f"s_and_b32 s{S_T}, s2, 8")
    e(f"s_lshl_b32 s{S_T}, s{S_T}, 2")
    e(f"v_xor_b32 v{LT}, s{S_T}, v{LT}")
    e(f"v_and_b32 v{LT+1}, 7, v{V_TID}")
    e(f"s_mul_i32 s{S_T2}, s{S_RB}, {64*1152}")
    e(f"v_lshl_add_u32 v{LT+6}, v{LT+1}, 4, s{S_T2}")
    e(f"v_mul_u32_u24 v{LT+2}, 1152, v{LT}")
    e(f"v_add_u32 v{LT+6}, v{LT+6}, v{LT+2}")
    e(f"v_cmp_gt_u32 vcc, 256, v{V_TID}")
    srd(g, S_Q, 2359296)
    e("s_waitcnt lgkmcnt(0)")
    if o.get("pst"): g.stamp()
    xl = lambda i: f"buffer_load_dwordx4 v[{XR+4*i}:{XR+4*i+3}], v{LT+6}, s[{S_Q}:{S_Q+3}], 0 offen offset:{128*i}"
    y0 = o.get("y0", 1)
    for i in range(9):
        if i == y0: e(f"s_cbranch_vccz {name}_y0")
        raw(xl(i))
    e(f"s_getpc_b64 s[{S_PC}:{S_PC+1}]")
    g.lab(f"{name}_pc")
    e(f"s_lshr_b32 s{S_T}, s2, 3")
    e(f"v_lshl_add_u32 v{V_T}, v{V_TID}, 5, s{S_T}")
    e(f"v_lshlrev_b32 v{V_T}, 7, v{V_T}")
    e(f"v_min_u32 v{V_T}, {name}_exit-{name}_pc, v{V_T}")
    raw(f"global_load_dword v{V_DUM}, v{V_T}, s[{S_PC}:{S_PC+1}]")
    g.lab(f"{name}_y0")
    if not o.get("kae", 0):
        for x in KA_: e(x)
    if o.get("pst"): g.stamp()
    h = H(); e = h.e
    e(f"v_lshrrev_b32 v{V_T}, 6, v{V_TID}")
    e(f"v_and_b32 v{V_LANE}, 63, v{V_TID}")
    e(f"v_readfirstlane_b32 s{S_W}, v{V_T}")
    e(f"s_and_b32 s{S_J}, s2, 3")
    e(f"s_bfe_u32 s{S_T}, s2, {3 | (1 << 16)}")
    e(f"s_lshl1_add_u32 s{S_J}, s{S_J}, s{S_T}")
    srd(h, S_W1, 5308416); srd(h, S_W2, 5308416); srd(h, S_B1, 9216)
    srd(h, S_WS, 268435456)
    srd(h, S_K, 2359296); srd(h, S_V, 2359296); srd(h, S_SH, 4608)
    srd(h, S_KF, 2359296); srd(h, S_OUT, 2359296); srd(h, S_DBG, 256)
    e(f"s_and_b32 s{S_QW}, s{S_W}, 3")
    e(f"s_lshr_b32 s{S_MH}, s{S_W}, 2")
    e(f"s_lshl_b32 s{S_M0B}, s{S_W}, 10")
    e(f"s_lshl2_add_u32 s{S_ROT}, s{S_T}, s{S_RB}")
    e(f"s_mul_i32 s{S_T}, s{S_ROT}, 57")
    e(f"s_lshr_b32 s{S_T}, s{S_T}, 9")
    e(f"s_mul_i32 s{S_T}, s{S_T}, 9")
    e(f"s_sub_u32 s{S_ROT}, s{S_ROT}, s{S_T}")
    e(f"s_lshl_b32 s{S_COL}, s{S_ROT}, 7")
    for u in range(1, 9):
        e(f"s_add_u32 s{S_COL+u}, s{S_COL+u-1}, 128")
        e(f"s_cmp_eq_u32 s{S_COL+u}, 1152")
        e(f"s_cselect_b32 s{S_COL+u}, 0, s{S_COL+u}")
    e(f"v_lshrrev_b32 v{LT+3}, 3, v{V_TID}")
    e(f"v_and_b32 v{LT+4}, 6, v{LT+3}")
    e(f"v_xor_b32 v{LT+4}, v{LT+4}, v{LT+1}")
    e(f"v_lshlrev_b32 v{LT+4}, 4, v{LT+4}")
    e(f"s_mul_i32 s{S_N}, s{S_J}, 1152")
    e(f"v_mul_u32_u24 v{V_O1}, 9216, v{LT+3}")
    e(f"v_add3_u32 v{V_O1}, v{V_O1}, v{LT+4}, s{S_N}")
    e(f"s_mul_i32 s{S_T}, s{S_J}, {576*1152}")
    e(f"v_mul_u32_u24 v{V_O2}, 1152, v{LT+3}")
    e(f"v_add3_u32 v{V_O2}, v{V_O2}, v{LT+4}, s{S_T}")
    e(f"s_lshl_b32 s{S_T}, s{S_QW}, 1")
    e(f"s_sub_u32 s{S_T}, s{S_T}, s{S_W}")
    e(f"s_mul_i32 s{S_T2}, s{S_T}, {8*9216}")
    e(f"v_add_u32 v{V_O1G}, s{S_T2}, v{V_O1}")
    e(f"v_add_u32 v{V_O1B}, {8*9216-1024}, v{V_O1G}")
    e(f"s_lshl_b32 s{S_M0G}, s{S_QW}, 11")
    by = o.get("by", 1)
    if by:
        e(f"v_and_b32 v{V_BO}, 255, v{V_TID}")
        e(f"v_lshl_add_u32 v{V_BO}, v{V_BO}, 3, s{S_COL}")
    else: e(f"v_lshl_add_u32 v{V_BO}, v{V_TID}, 2, s{S_COL}")
    e(f"v_subrev_u32 v{V_T}, 1152, v{V_BO}")
    e(f"v_min_u32 v{V_BO}, v{V_BO}, v{V_T}")
    e(f"v_add_u32 v{V_BO}, s{S_N}, v{V_BO}")
    e(f"v_lshrrev_b32 v{LT+8}, 4, v{V_LANE}")
    e(f"v_lshrrev_b32 v{LT+9}, 2, v{V_LANE}")
    e(f"v_lshlrev_b32 v{V_TR[0]}, 7, v{LT+9}")
    e(f"v_bfe_u32 v{LT+9}, v{V_LANE}, 3, 2")
    e(f"v_xor_b32 v{LT+9}, s{S_QW}, v{LT+9}")
    e(f"v_lshl_add_u32 v{V_TR[0]}, v{LT+9}, 5, v{V_TR[0]}")
    e(f"v_and_b32 v{LT+9}, 3, v{V_LANE}")
    e(f"v_lshl_add_u32 v{V_TR[0]}, v{LT+9}, 3, v{V_TR[0]}")
    e(f"v_add_u32 v{V_TR[1]}, 65536, v{V_TR[0]}")
    e(f"v_add_u32 v{V_TR[2]}, 131072, v{V_TR[0]}")
    e(f"s_lshl_b32 s{S_T}, s{S_MH}, 11")
    e(f"s_add_u32 s{S_T}, s{S_T}, {XL}")
    e(f"v_lshrrev_b32 v{LT+7}, 5, v{V_LANE}")
    e(f"v_mul_u32_u24 v{LT+7}, 26, v{LT+7}")
    e(f"v_and_b32 v{V_FR}, 15, v{V_LANE}")
    e(f"v_xor_b32 v{V_FR}, v{V_FR}, v{LT+7}")
    e(f"v_and_b32 v{LT+7}, 16, v{V_LANE}")
    e(f"v_lshl_add_u32 v{V_FR}, v{LT+7}, 1, v{V_FR}")
    e(f"v_lshl_add_u32 v{V_FR}, v{V_FR}, 4, s{S_T}")
    e(f"v_add_u32 v{V_FR2}, 65536, v{V_FR}")
    e(f"v_xor_b32 v{V_FR2+1}, 64, v{V_FR}")
    e(f"v_xor_b32 v{V_FR2+2}, 64, v{V_FR2}")
    e(f"v_and_b32 v{LT+9}, 1, v{V_LANE}")
    e(f"v_mul_u32_u24 v{LT+9}, 26, v{LT+9}")
    e(f"v_and_b32 v{LT+2}, 15, v{LT}")
    e(f"v_xor_b32 v{LT+2}, v{LT+2}, v{LT+9}")
    e(f"v_and_b32 v{LT+9}, 48, v{LT}")
    e(f"v_lshl_add_u32 v{LT+2}, v{LT+9}, 2, v{LT+2}")
    e(f"v_and_b32 v{LT+9}, 4, v{V_LANE}")
    e(f"v_xor_b32 v{LT+2}, v{LT+2}, v{LT+9}")
    e(f"v_lshl_add_u32 v{LT+2}, v{LT+9}, 6, v{LT+2}")
    e(f"v_lshlrev_b32 v{LT+2}, 4, v{LT+2}")
    e(f"v_and_b32 v{LT+9}, 2, v{V_LANE}")
    e(f"v_lshl_add_u32 v{LT+2}, v{LT+9}, 2, v{LT+2}")
    e(f"v_add_u32 v{LT+2}, {XL}, v{LT+2}")
    c1 = 2.0 * math.sqrt(2.0 / math.pi) * math.log2(math.e)
    e(f"v_mov_b32 v{V_C1}, 0x{f32bits(-c1):08x}")
    e(f"s_mov_b32 s{S_GC}, 0x{f32bits(-c1*0.044715):08x}")
    e(f"v_or_b32 v{V_SAD}, s{S_J}, v{LT+1}")
    e(f"v_lshlrev_b32 v{V_SAD}, 28, v{V_SAD}")
    e(f"v_lshl_add_u32 v{V_SAD}, v{LT}, 3, v{V_SAD}")
    SA, SB, QA, QB, ONE = LT+10, LT+11, V_QA, V_QA+1, LT+14
    for r in (SA, SB, QA, QB): e(f"v_mov_b32 v{r}, 0")
    e(f"v_mov_b32 v{ONE}, 0x3f803f80")
    e(f"s_lshr_b32 s{S_T}, s2, 3")
    e(f"s_mul_i32 s{S_PART}, s{S_T}, 57")
    e(f"s_lshr_b32 s{S_PART}, s{S_PART}, 9")
    e(f"s_and_b32 s{S_G}, s2, 7")
    e(f"s_sub_u32 s{S_G}, s{S_G}, s{S_PART}")
    e(f"s_mul_i32 s{S_G}, s{S_G}, 9")
    e(f"s_add_u32 s{S_G}, s{S_G}, s{S_T}")
    e(f"s_lshl1_add_u32 s{S_T}, s2, -432")
    e(f"s_min_u32 s{S_T}, s{S_T}, 70")
    e(f"s_cmp_eq_u32 s{S_PART}, 3")
    e(f"s_cselect_b32 s{S_G}, s{S_T}, s{S_G}")
    e(f"s_cselect_b32 s{S_INFO}, 16, 0")
    e("s_cmp_ge_u32 s2, 252")
    e(f"s_cselect_b32 s{S_PART}, 4, s{S_PART}")
    e(f"s_lshl_b32 s{S_T}, s{S_G}, 4")
    e(f"s_add_u32 s{S_INFO}, s{S_INFO}, s{S_T}")
    S1 = atoms(h.L)
    DB = [f"s_load_dwordx4 s[{S_B2}:{S_B2+3}], s[{S_BP}:{S_BP+1}], s{S_T}",
          f"s_lshl3_add_u32 s{S_T}, s{S_MH}, s{S_T}", f"s_load_dwordx2 s[{S_DR}:{S_DR+1}], s[{S_DP}:{S_DP+1}], s{S_T}",
          f"s_lshl3_add_u32 s{S_T}, s{S_MH}, s{S_INFO}", f"s_load_dwordx2 s[{S_DR+2}:{S_DR+3}], s[{S_DP}:{S_DP+1}], s{S_T}"]
    S1.append(([] if o.get("kae", 0) else ["s_waitcnt lgkmcnt(0)"]) + DB)
    S2 = (atoms(setup2()) + (setup3(o) if full else [])) if o.get("sup", 1) else []
    S2 = [[f"s_load_dwordx4 s[{S_B3}:{S_B3+3}], s[{S_BP}:{S_BP+1}], s{S_INFO}"]] + S2
    e = g.e
    cnt = [0]
    def hook(L):
        cnt[0] += 1
        e(f"s_cbranch_vccnz {name}_h{cnt[0]}")
        for x in L: raw(x)
        g.lab(f"{name}_h{cnt[0]}")
    def weave(S, Hs, f0, f1):
        at = [int(len(S) * (f0 + (f1 - f0) * k / max(1, len(Hs) - 1))) for k in range(len(Hs))]
        for k in range(len(S) + 1):
            for a_, L in zip(at, Hs):
                if a_ == k: hook(L)
            if k < len(S):
                for x in S[k]: e(x)
    def gdma(u, st):
        N, u = u // 9, u % 9
        return [[f"s_add_u32 m0, s{S_M0G}, {slot(N, u) * 8192}", f"s_add_u32 s{st}, s{S_COL+N}, {u*64*9216}",
                 f"buffer_load_dwordx4 v{V_O1G}, s[{S_W1}:{S_W1+3}], s{st} offen lds"],
                [f"buffer_load_dwordx4 v{V_O1B}, s[{S_W1}:{S_W1+3}], s{st} offen offset:1024 lds"]]
    weave(S1, [[xl(i)] for i in range(y0, 9)], *o.get("wv1", [0.1, 1.0]))
    e(f"s_or_b32 s{S_T}, s2, s{S_W}")
    e(f"s_cbranch_scc0 {name}_mk")
    g.lab(f"{name}_mkb")
    if o.get("pst"): g.stamp()
    ny = o.get("ny", 1)
    H2 = sum([gdma(u, S_YT) for u in range(ny)], [])
    if by: H2[0] = [f"buffer_load_dwordx2 v[{LT+32}:{LT+33}], v{V_BO}, s[{S_B1}:{S_B1+3}], 0 offen"] + H2[0]
    else: raw(f"buffer_load_dword v{BR}, v{V_BO}, s[{S_B1}:{S_B1+3}], 0 offen")
    weave(S2, H2, *o.get("wv2", [0.0, 1.0]))
    if o.get("pst"): g.stamp()
    def stats(later):
        for i in range(9):
            e(f"s_waitcnt vmcnt({8 - i + later})")
            if i == 0 and o.get("pst"): g.stamp()
            for c in range(4):
                x = XR + 4*i + c
                e(f"v_dot2c_f32_bf16 v{SA if c%2==0 else SB}, v{x}, v{ONE}")
                e(f"v_dot2c_f32_bf16 v{QA if c%2==0 else QB}, v{x}, v{x}")
    e(f"s_cbranch_vccz {name}_sy")
    stats(2 - by)
    if not by: e("s_waitcnt vmcnt(0)")
    e(f"s_branch {name}_sj")
    g.lab(f"{name}_sy")
    stats(1 + 2*ny)
    e(f"s_waitcnt vmcnt({2*ny})")
    g.lab(f"{name}_sj")
    if o.get("pst") or o.get("ps2"): g.stamp()
    pl = o.get("pl", [-1, -1, -1, 2, 4, 6, 8, 9, 9])
    ool = []
    def pd(pos):
        us = [ny + k for k in range(len(pl)) if pl[k] == pos]
        if not us: return
        e(f"s_cbranch_vccnz {name}_p{pos + 1}")
        g.lab(f"{name}_p{pos + 1}b")
        ool.append(f"{name}_p{pos + 1}:")
        for u in us:
            for x in sum(gdma(u, S_T), []): ool.append("  " + x)
            g.vm.extend([("u", u // 9, u % 9)] * 2)
        ool.append(f"  s_branch {name}_p{pos + 1}b")
    pd(-1)
    e("s_nop 2")
    e(f"v_add_f32 v{SA}, v{SA}, v{SB}")
    e(f"v_add_f32 v{QA}, v{QA}, v{QB}")
    for dpp in ("quad_perm:[1,0,3,2]", "quad_perm:[2,3,0,1]", "row_half_mirror"):
        e("s_nop 0")
        e(f"v_add_f32 v{SA}, v{SA}, v{SA} {dpp} row_mask:0xf bank_mask:0xf")
        e(f"v_add_f32 v{QA}, v{QA}, v{QA} {dpp} row_mask:0xf bank_mask:0xf")
    inv = f"0x{f32bits(1.0/576.0):08x}"
    e(f"v_mul_f32 v{SA}, {inv}, v{SA}")
    e(f"v_mul_f32 v{QA}, {inv}, v{QA}")
    e(f"v_fma_f32 v{QA}, -v{SA}, v{SA}, v{QA}")
    e(f"v_max_f32 v{QA}, 0, v{QA}")
    bf16round(g, SA)
    bf16round(g, QA)
    e(f"v_add_f32 v{QA}, 0x{f32bits(1e-5):08x}, v{QA}")
    bf16round(g, QA)
    e(f"v_sqrt_f32 v{QA}, v{QA}")
    e("s_nop 0")
    bf16round(g, QA)
    e(f"v_rcp_f32 v{QA}, v{QA}")
    e("s_nop 0")
    e(f"v_mul_f32 v{QB}, -v{SA}, v{QA}")
    assert QA % 2 == 0
    T0 = LT + 16
    for i in range(9):
        t = T0 + 8*(i % 2)
        for c in range(4):
            x = XR + 4*i + c
            e(f"v_lshlrev_b32 v{t+2*c}, 16, v{x}")
            e(f"v_and_b32 v{t+2*c+1}, 0xffff0000, v{x}")
        for c in range(4):
            e(f"v_pk_fma_f32 v[{t+2*c}:{t+2*c+1}], v[{t+2*c}:{t+2*c+1}], v[{QA}:{QA+1}], v[{QA}:{QA+1}] op_sel:[0,0,1] op_sel_hi:[1,0,1]")
        x = 16 + 4*i
        for c in range(4): e(f"v_cvt_pk_bf16_f32 v{x+c}, v{t+2*c}, v{t+2*c+1}")
        e(f"ds_write2st64_b64 v{LT+2}, v[{x}:{x+1}], v[{x+2}:{x+3}] offset0:{16*i} offset1:{16*i+1}")
        if i == 1 and by:
            hook([f"v_lshlrev_b32 v{LT+36}, 16, v{LT+32}", f"v_and_b32 v{LT+37}, 0xffff0000, v{LT+32}", f"v_lshlrev_b32 v{LT+38}, 16, v{LT+33}",
                  f"v_and_b32 v{LT+39}, 0xffff0000, v{LT+33}", f"v_lshlrev_b32 v{V_BO}, 4, v{V_TID}", f"v_add_u32 v{V_BO}, {TBL - 4096}, v{V_BO}",
                  f"ds_write_b128 v{V_BO}, v[{LT+36}:{LT+39}]"])
        elif i == 1:
            e(f"v_lshlrev_b32 v{SA}, 16, v{BR}")
            e(f"v_and_b32 v{SB}, 0xffff0000, v{BR}")
            e(f"v_lshlrev_b32 v{V_BO}, 3, v{V_TID}")
            e(f"v_add_u32 v{V_BO}, {TBL}, v{V_BO}")
            e(f"ds_write_b64 v{V_BO}, v[{SA}:{SB}]")
        pd(i)
    if o.get("pst"): g.stamp()
    e(f"s_lshl_b32 s{S_T}, s{S_QW}, 6")
    e(f"s_add_u32 s{S_T}, s{S_T}, {TBL}")
    e(f"v_lshl_add_u32 v{V_BO}, v{LT+8}, 4, s{S_T}")
    pd(9)
    e(f"s_cbranch_vccnz {name}_pe")
    e("s_waitcnt vmcnt(0)")
    e(f"s_branch {name}_pe")
    g.L += ool
    g.lab(f"{name}_pe")
    for u in range(ny): g.done.add(("u", 0, u))
    fb = o.get("xr", [[8]])[0][0]
    g.wait(vm=[("u", 0, u) for u in range((fb + 1)//2)], alllds=True)
    g.stamp()
    e("s_barrier")
    return ny + len(pl)

def bias_read(n):
    return [(f"ds_read_b128 v[{BI}:{BI+3}], v{V_BO} offset:{256*n}", "bias")]

def setup2():
    L = []; e = L.append
    for u in range(9): e(f"s_mul_i32 s{S_ROW[u]}, s{S_COL+u}, 576")
    e(f"v_and_b32 v{V_ST}, 31, v{V_LANE}")
    e(f"v_lshlrev_b32 v{V_ST}, 4, v{V_ST}")
    e(f"v_lshrrev_b32 v{V_T}, 5, v{V_LANE}")
    e(f"v_lshl_add_u32 v{V_ST}, v{V_T}, 15, v{V_ST}")
    e(f"s_and_b32 s{S_PB}, s2, 3")
    e(f"s_mul_i32 s{S_PB}, s{S_PB}, 36")
    e(f"s_add_u32 s{S_PB}, s{S_PB}, s{S_QW}")
    e(f"s_lshl_b32 s{S_PB}, s{S_PB}, 6")
    e(f"s_add_u32 s{S_PB}, s{S_PB}, s{S_RB}")
    e(f"s_lshl1_add_u32 s{S_PB}, s{S_PB}, s{S_MH}")
    e(f"s_lshl_b32 s{S_PB}, s{S_PB}, 9")
    e(f"s_lshl_b32 s{S_N}, s{S_W}, 11")
    e(f"v_lshl_add_u32 v{V_HW}, v{V_LANE}, 4, s{S_N}")
    e(f"v_min_u32 v{V_L0}, 1, v{V_TID}")
    e(f"v_lshlrev_b32 v{V_L0}, 31, v{V_L0}")
    e(f"s_mul_i32 s{S_FLG}, s{S_RB}, 36")
    e(f"s_add_u32 s{S_FLG}, s{S_FLG}, s{S_QW}")
    e(f"s_lshl1_add_u32 s{S_FLG}, s{S_FLG}, s{S_MH}")
    e(f"s_lshl3_add_u32 s{S_FLG}, s{S_FLG}, s{S_J}")
    e(f"s_lshl2_add_u32 s{S_FLG}, s{S_FLG}, {FLAG_OFF}")
    return L

def atoms(L):
    R = []; open_ = False
    for x in L:
        t = x[0] if isinstance(x, tuple) else x
        if isinstance(t, str) and (t.startswith("s_cselect") or t.startswith("s_addc") or (open_ and t.startswith("s_mov"))): R[-1].append(x)
        else:
            R.append([x]); open_ = isinstance(t, str) and t.startswith("s_cmp")
    return R

def setup3(o):
    L = []; e = L.append
    e(f"s_lshr_b32 s{S_T2}, s2, 3")
    e(f"s_and_b32 s{S_ONES}, s2, 7")
    e(f"s_mul_i32 s{S_INFO}, s{S_T2}, 576")
    e(f"s_add_u32 s{S_INFO}, s{S_INFO}, s{S_ONES}")
    e(f"s_lshl_b32 s{S_INFO}, s{S_INFO}, 7")
    e(f"s_lshl_b32 s{S_N}, s{S_ONES}, 11")
    e(f"s_add_u32 s{S_N}, s{S_N}, s{S_T2}")
    e(f"s_lshl_b32 s{S_N}, s{S_N}, 7")
    e(f"s_and_b32 s{S_T2}, s2, 31")
    e(f"s_mul_i32 s{S_T}, s{S_T2}, {64*1152}")
    e(f"s_lshl_b32 s{S_T2}, s{S_T2}, 7")
    e(f"s_brev_b32 s{S_ONES}, 1")
    e(f"s_lshr_b32 s{S_KM}, s2, 5")
    e(f"s_cmp_eq_u32 s{S_KM}, {o.get('u2', 7)}")
    e(f"s_cselect_b32 s{S_KM2}, 1024, s{S_ONES}")
    e(f"s_cselect_b32 s{S_ONES}, {8 << 18}, s{S_ONES}")
    e(f"s_add_u32 s{S_T}, s{S_T}, s{S_KM2}")
    e(f"s_add_u32 s{S_T2}, s{S_T2}, s{S_ONES}")
    e(f"s_sub_u32 s{S_KM2}, s{S_T}, s{S_INFO}")
    e(f"s_sub_u32 s{S_T2}, s{S_T2}, s{S_N}")
    e(f"s_lshl_b32 s{S_KM}, s{S_W}, 10")
    e(f"s_mul_i32 s{S_T}, s{S_KM}, 9")
    e(f"s_add_u32 s{S_T}, s{S_T}, s{S_INFO}")
    e(f"s_add_u32 s{S_KM}, s{S_KM}, {KSTG}")
    e(f"s_mov_b32 s{S_KVO}, {KVT_OFF}")
    e(f"v_lshrrev_b32 v{V_T}, 3, v{V_LANE}")
    e(f"v_and_b32 v{V_T2}, 7, v{V_LANE}")
    e(f"v_mul_u32_u24 v{V_K1}, 1152, v{V_T}")
    e(f"v_xor_b32 v{V_KG}, s{S_W}, v{V_T2}")
    e(f"v_lshl_add_u32 v{V_K1}, v{V_KG}, 4, v{V_K1}")
    e(f"v_add_u32 v{V_K1}, s{S_T}, v{V_K1}")
    e(f"v_and_b32 v{V_T}, 3, v{V_T}")
    e(f"v_lshl_add_u32 v{V_KG}, v{V_KG}, 2, v{V_T}")
    e(f"v_lshl_add_u32 v{V_KG}, v{V_T2}, 8, v{V_KG}")
    e(f"v_bfe_i32 v{V_KFT}, v{V_LANE}, 5, 1")
    e(f"v_and_b32 v{V_KH}, 2048, v{V_KFT}")
    e(f"v_add_u32 v{V_KH}, {(KSTG - 1024) // 4}, v{V_KH}")
    e(f"v_add_lshl_u32 v{V_KG}, v{V_KG}, v{V_KH}, 2")
    e(f"v_add_u32 v{V_KH}, -1, v{V_T2}")
    e(f"v_xor_b32 v{V_KH}, v{V_KH}, v{V_T2}")
    e(f"v_and_b32 v{V_KH}, 7, v{V_KH}")
    e(f"v_lshlrev_b32 v{V_KH}, 4, v{V_KH}")
    e(f"v_xor_b32 v{V_KH}, v{V_KH}, v{V_KG}")
    e(f"v_lshl_add_u32 v{V_T}, s{S_W}, 2, v{V_T}")
    e(f"v_and_b32 v{V_KST}, s{S_T2}, v{V_KFT}")
    e(f"v_lshl_add_u32 v{V_KST}, v{V_T}, 13, v{V_KST}")
    e(f"v_lshl_add_u32 v{V_T2}, v{V_T2}, 4, s{S_N}")
    e(f"v_add_u32 v{V_KST}, v{V_KST}, v{V_T2}")
    e(f"v_and_b32 v{V_KT}, s{S_KM2}, v{V_KFT}")
    e(f"s_sub_u32 s{S_N}, s{S_INFO}, 3456")
    e(f"v_lshl_add_u32 v{V_T2}, v{V_T}, 2, s{S_N}")
    e(f"v_add_u32 v{V_KT}, v{V_KT}, v{V_T2}")
    e(f"v_lshl_add_u32 v{V_T}, v{V_T}, 1, -1")
    e(f"v_bfe_i32 v{V_T2}, v{V_LANE}, 2, 1")
    e(f"v_and_b32 v{V_T}, v{V_T}, v{V_T2}")
    e(f"v_and_b32 v{V_T2}, 7, v{V_LANE}")
    e(f"v_add_u32 v{V_T}, v{V_T}, v{V_T2}")
    e(f"v_mul_u32_u24 v{V_T}, 1152, v{V_T}")
    e(f"v_add_u32 v{V_KT}, v{V_KT}, v{V_T}")
    if "st" not in o: e(f"s_lshl3_add_u32 s{S_N}, s{S_PART}, s{S_W}")
    if "st" not in o: e(f"s_mul_i32 s{S_N}, s{S_N}, 11")
    if "st" not in o: e(f"v_add_u32 v{V_KFT}, s{S_N}, v{V_LANE}")
    if "st" not in o: e(f"v_min_u32 v{V_KFT}, 255, v{V_KFT}")
    if "st" not in o: e(f"s_lshl_b32 s{S_N}, s{S_G}, 8")
    if "st" not in o: e(f"v_add_lshl_u32 v{V_KFT}, v{V_KFT}, s{S_N}, 7")
    e(f"s_mov_b32 s{S_INFO}, 0")
    for p_, job in enumerate(JOBS):
        a0 = job[0][0]; l0 = job[0][1] - job[0][0]
        a1 = job[1][0] - l0 if len(job) > 1 else a0
        n = sum(b - a for a, b in job)
        e(f"s_cmp_eq_u32 s{S_PART}, {p_}")
        e(f"s_cselect_b32 s{S_INFO}, {a0 | (l0 << 8) | (a1 << 16) | (n << 24)}, s{S_INFO}")
    assert all(sum(b - a for a, b in job) == 8 for job in JOBS)
    e(f"s_cmp_eq_u32 s{S_PART}, 3")
    e(f"s_cselect_b32 s{S_INFO}, {(8 << 8) | (248 << 16) | (16 << 24)}, s{S_INFO}")
    e(f"s_bfe_u32 s{S_N}, s{S_INFO}, {8 | (8 << 16)}")
    e(f"s_bfe_i32 s{S_T2}, s{S_INFO}, {16 | (8 << 16)}")
    e(f"s_and_b32 s{S_ONES}, s{S_INFO}, 255")
    e(f"s_add_u32 s{S_IB}, s{S_W}, 8")
    e(f"s_cmp_lt_u32 s{S_W}, s{S_N}")
    e(f"s_cselect_b32 s{S_TA}, s{S_ONES}, s{S_T2}")
    e(f"s_cmp_lt_u32 s{S_IB}, s{S_N}")
    e(f"s_cselect_b32 s{S_TB}, s{S_ONES}, s{S_T2}")
    e(f"s_add_u32 s{S_TA}, s{S_TA}, s{S_W}")
    e(f"s_add_u32 s{S_TB}, s{S_TB}, s{S_IB}")
    e(f"s_lshr_b32 s{S_INFO}, s{S_INFO}, 24")
    e(f"s_cmp_lt_u32 s{S_IB}, s{S_INFO}")
    e(f"s_cselect_b32 s{S_BM}, 0xffff0000, 0")
    e(f"s_cselect_b32 s{S_TB}, s{S_TB}, s{S_TA}")
    e(f"s_lshr_b32 s{S_N}, s{S_G}, 3")
    e(f"s_add_u32 s{S_N}, s{S_N}, 36")
    e(f"s_sub_u32 s{S_T2}, s{S_N}, s{S_TB}")
    e(f"s_sub_u32 s{S_N}, s{S_N}, s{S_TA}")
    for r in (S_N, S_T2):
        e(f"s_mul_i32 s{S_ONES}, s{r}, 57")
        e(f"s_lshr_b32 s{S_ONES}, s{S_ONES}, 9")
        e(f"s_mul_i32 s{S_ONES}, s{S_ONES}, 9")
        e(f"s_sub_u32 s{r}, s{r}, s{S_ONES}")
        e(f"s_cmp_lt_u32 s{r}, 4")
        e(f"s_cselect_b32 s{S_ONES}, 11, 0")
        e(f"s_lshl1_add_u32 s{r}, s{r}, s{S_ONES}")
    e(f"s_min_u32 s{S_NX}, s{S_N}, s{S_T2}")
    e(f"s_max_u32 s{S_NY}, s{S_N}, s{S_T2}")
    e(f"s_cmp_gt_u32 s{S_N}, s{S_T2}")
    e(f"s_cselect_b32 s{S_ONES}, s{S_TB}, s{S_TA}")
    e(f"s_cselect_b32 s{S_TB}, s{S_TA}, s{S_TB}")
    e(f"s_mov_b32 s{S_TA}, s{S_ONES}")
    e(f"s_cselect_b32 s{S_IA}, s{S_IB}, s{S_W}")
    e(f"s_cselect_b32 s{S_IB}, s{S_W}, s{S_IB}")
    if o.get("la2", 0) == 1:
        assert [j[0][0] > 0 for j in JOBS] == [False, True, True]
        for p_, job in enumerate(JOBS):
            e(f"s_cmp_eq_u32 s{S_PART}, {p_}")
            e(f"s_cselect_b32 s{S_N}, {job[0][1] - job[0][0]}, s{S_N}")
        e(f"s_min_u32 s{S_T2}, s{S_PART}, 1")
        for r in (S_IA, S_IB):
            e(f"s_cmp_ge_u32 s{r}, s{S_N}"); e(f"s_addc_u32 s{r}, s{r}, s{S_T2}")
    e(f"v_mul_u32_u24 v{V_T}, 1152, v{V_LANE}")
    e(f"s_mul_i32 s{S_N}, s{S_TA}, {64*1152}")
    e(f"s_lshl4_add_u32 s{S_N}, s{S_G}, s{S_N}")
    e(f"s_cmp_eq_u32 s{S_PART}, 4")
    e(f"s_cselect_b32 s{S_T2}, 0x80000000, 0")
    e(f"s_or_b32 s{S_N}, s{S_N}, s{S_T2}")
    e(f"v_add_u32 v{V_XA}, s{S_N}, v{V_T}")
    e(f"s_mul_i32 s{S_N}, s{S_TB}, {64*1152}")
    e(f"s_lshl4_add_u32 s{S_N}, s{S_G}, s{S_N}")
    e(f"s_andn2_b32 s{S_T2}, 0x80000000, s{S_BM}")
    e(f"s_or_b32 s{S_N}, s{S_N}, s{S_T2}")
    e(f"s_add_u32 s{S_N}, s{S_N}, 16")
    e(f"v_add_u32 v{V_XB}, s{S_N}, v{V_T}")
    return atoms(L)

def stage_items(sr, off, tag, touch=None):
    ld = lambda v: (f"buffer_load_dwordx4 v{v}, s[{sr}:{sr+3}], 0 offen lds", tag)
    tc = lambda v: [f"buffer_load_dword v{V_DUM}, v{v}, s[{touch}:{touch+3}], 0 offen"] if touch else []
    R = [[f"s_add_u32 m0, s{S_KM}, {off}", "s_nop 0", ld(V_K1)]]
    if touch: R.append(tc(V_K1))
    R.append([f"s_add_u32 m0, s{S_KM2}, {off}", "s_mov_b64 exec, 0xffff", ld(V_K2), "s_mov_b64 exec, -1"])
    if off: R[0] += [f"s_sub_u32 s{S_N}, s{S_MH}, 1", f"v_lshl_or_b32 v{V_K2}, s{S_N}, 31, v{V_K2}"]
    return R

def cold_items(m=15):
    R = stage_items(S_K, 0, "kst", S_V if m & 2 else None) if m & 1 else []
    if m & 4: R.append([f"s_add_u32 s{S_N}, s{S_COL}, s{S_ROW[8]}",
              f"buffer_load_dword v{V_DUM}, v{V_O2}, s[{S_W2}:{S_W2+3}], s{S_N} offen"])
    if m & 8: R.append([f"s_lshl_b32 s{S_N}, s{S_G}, 15",
              f"buffer_load_dword v{V_DUM}, v{V_KFT}, s[{S_KF}:{S_KF+3}], s{S_N} offen"])
    return R

def touches(o, A=S_N, B=S_T2):
    m = o.get("em", 7)
    L = [f"s_lshr_b32 s{A}, s2, 3", f"s_lshl3_add_u32 s{A}, s{A}, s{S_W}", f"s_mul_i32 s{A}, s{A}, 72",
         f"s_and_b32 s{B}, s2, 7", f"s_add_u32 s{A}, s{A}, s{B}", f"s_lshl_b32 s{A}, s{A}, 7",
         f"v_bfe_u32 v{V_T}, v{V_LANE}, 1, 3", f"v_lshl_add_u32 v{V_T}, v{V_T}, 3, v{V_T}", f"v_and_b32 v{V_KFT}, 1, v{V_LANE}",
         f"v_add_lshl_u32 v{V_T}, v{V_T}, v{V_KFT}, 7",
         f"s_lshl3_add_u32 s{B}, s{S_PART}, s{S_W}", f"s_mul_i32 s{B}, s{B}, 11",
         f"v_add_u32 v{V_KFT}, s{B}, v{V_LANE}", f"v_min_u32 v{V_KFT}, 255, v{V_KFT}", f"v_lshlrev_b32 v{V_KFT}, 7, v{V_KFT}",
         f"s_lshl_b32 s{B}, s{S_G}, 15",
         "s_mov_b64 exec, 0xffff"]
    if m & 1: L.append(f"buffer_load_dword v{V_DUM}, v{V_T}, s[{S_K}:{S_K+3}], s{A} offen")
    if m & 2: L.append(f"buffer_load_dword v{V_DUM}, v{V_T}, s[{S_V}:{S_V+3}], s{A} offen")
    L.append("s_mov_b64 exec, 0x7ff")
    if m & 4: L.append(f"buffer_load_dword v{V_DUM}, v{V_KFT}, s[{S_KF}:{S_KF+3}], s{B} offen")
    L.append("s_mov_b64 exec, -1")
    return L

def stouch_setup():
    return [f"s_lshr_b32 s{S_KO}, s2, 3", f"s_lshl3_add_u32 s{S_KO}, s{S_KO}, s{S_W}", f"s_mul_i32 s{S_KO}, s{S_KO}, 72",
            f"s_and_b32 s{S_FO}, s2, 7", f"s_add_u32 s{S_KO}, s{S_KO}, s{S_FO}", f"s_lshl_b32 s{S_KO}, s{S_KO}, 7",
            f"s_lshl3_add_u32 s{S_FO}, s{S_PART}, s{S_W}", f"s_mul_i32 s{S_FO}, s{S_FO}, 11", f"s_min_u32 s{S_FO}, s{S_FO}, 245",
            f"s_lshl_b32 s{S_DUM}, s{S_G}, 8", f"s_add_u32 s{S_FO}, s{S_FO}, s{S_DUM}", f"s_lshl_b32 s{S_FO}, s{S_FO}, 7"]

def stouch(o, k):
    ld = lambda sr, so, off: f"s_buffer_load_dword s{S_DUM}, s[{sr}:{sr+3}], s{so} offset:{off}"
    if k == "F": return [ld(S_KF, S_FO, 128*i) for i in range(11)]
    return [ld(sr, S_KO, 1152*r + 128*h) for r in range(8) for h in o.get("sth", (0, 1)) for sr in (S_K, S_V)]

def place(items, j0, j1, work):
    for i, x in enumerate(items): work.setdefault(4*(j0 + (i*(j1 - j0)) // len(items)) - 2, []).insert(0, x)

def early_items(o):
    m = o.get("em", 7)
    K = sum(stage_items(S_K, 0, None), []) if m & 1 else []
    if o.get("vt", 1):
        V = [f"s_lshr_b32 s{S_N}, s2, 3", f"s_lshl3_add_u32 s{S_N}, s{S_N}, s{S_W}", f"s_mul_i32 s{S_N}, s{S_N}, 72",
             f"s_and_b32 s{S_T2}, s2, 7", f"s_add_u32 s{S_N}, s{S_N}, s{S_T2}", f"s_lshl_b32 s{S_N}, s{S_N}, 7",
             f"v_bfe_u32 v{V_T}, v{V_LANE}, 1, 3", f"v_mul_u32_u24 v{V_T}, 9, v{V_T}", f"v_and_b32 v{V_T2}, 1, v{V_LANE}",
             f"v_add_lshl_u32 v{V_T}, v{V_T}, v{V_T2}, 7", "s_mov_b64 exec, 0xffff",
             f"buffer_load_dword v{V_DUM}, v{V_T}, s[{S_V}:{S_V+3}], s{S_N} offen", "s_mov_b64 exec, -1"]
    else:
        V = [f"buffer_load_dword v{V_DUM}, v{V_K1}, s[{S_V}:{S_V+3}], 0 offen", "s_mov_b64 exec, 0x1fff",
             f"buffer_load_dword v{V_DUM}, v{V_K2}, s[{S_V}:{S_V+3}], 0 offen", "s_mov_b64 exec, -1"]
    F = sum(cold_items(8), [])
    return [K, V if m & 2 else [], F if m & 4 else []]

def kv_compute(g):
    def halo():
        g.wait(vm=["sh", "tK"])
        g.e("s_mov_b32 vcc_lo, 0xfefefefe"); g.e("s_mov_b32 vcc_hi, vcc_lo")
        g.e(f"v_cndmask_b32 v{KR}, v{V_HG}, v{KR}, vcc")
        for r in (1, 2): g.e(f"v_cndmask_b32_dpp v{KR+r}, v{V_HG}, v{KR+r}, vcc row_shl:{r} row_mask:0xf bank_mask:0xf")
    L = [halo]; e = L.append
    up = lambda d, r, h: f"v_and_b32 v{d}, 0xffff0000, v{r}" if h else f"v_lshlrev_b32 v{d}, 16, v{r}"
    if g.o.get("kf", 1):
        U = [52, 53, 54, 55]
        for h in range(2):
            for j in range(4): e(up(KC + j, SH + 2*h + j//2, j % 2))
            e(up(U[0], KR, h))
            for i in range(11):
                if i < 10: e(up(U[(i + 1) % 2], KR + i + 1, h))
                for j in range(4):
                    t = i - 3 + j
                    if 0 <= t < 8: e(f"{'v_mul_f32' if j == 3 else 'v_fmac_f32'} v{KA+t}, v{KC+j}, v{U[i % 2]}")
            for t0 in (0, 4):
                for t in range(t0, t0 + 4): e(up(U[t % 4], VR + t, h))
                for t in range(t0, t0 + 4): e(f"v_mul_f32 v{KA+t}, v{KA+t}, v{U[t % 4]}")
            O = KA if h else PKR + 4
            for t in range(4): e(f"v_cvt_pk_bf16_f32 v{O+t}, v{KA+2*t}, v{KA+2*t+1}")
        return L
    for h in range(2):
        for j in range(4):
            w = SH + 2*h + j//2
            if h == 0: e(f"v_lshrrev_b32 v{KC+j}, 16, v{w}" if j % 2 else f"v_and_b32 v{KC+j}, 0xffff, v{w}")
            else: e(f"v_and_b32 v{KC+j}, 0xffff0000, v{w}" if j % 2 else f"v_lshlrev_b32 v{KC+j}, 16, v{w}")
        for j in (3, 2, 1, 0):
            for t in range(8):
                if j == 3: e(f"v_dot2_f32_bf16 v{KA+t}, v{KR+t+3-j}, v{KC+j}, 0")
                else: e(f"v_dot2c_f32_bf16 v{KA+t}, v{KR+t+3-j}, v{KC+j}")
        for t0 in (0, 4):
            for t in range(t0, t0 + 4):
                e(f"v_and_b32 v{KC+t%4}, 0xffff0000, v{VR+t}" if h else f"v_lshlrev_b32 v{KC+t%4}, 16, v{VR+t}")
            for t in range(t0, t0 + 4): e(f"v_mul_f32 v{KA+t}, v{KA+t}, v{KC+t%4}")
        O = KA if h else PKR + 4
        for t in range(4): e(f"v_cvt_pk_bf16_f32 v{O+t}, v{KA+2*t}, v{KA+2*t+1}")
    return L

def kv_store():
    return [[(f"buffer_store_dwordx4 v[{PKR+4}:{PKR+7}], v{V_KST}, s[{S_WS}:{S_WS+3}], s{S_KVO} offen sc1", "kv0"),
             f"s_add_u32 s{S_KVO}, s{S_KVO}, 4096"],
            [(f"buffer_store_dwordx4 v[{KA}:{KA+3}], v{V_KST}, s[{S_WS}:{S_WS+3}], s{S_KVO} offen sc1", "kv1")]]

def setup4(o):
    L = []; e = L.append
    A, B = S_GC, S_GC + 1
    e(f"v_bfrev_b32 v{V_OOB}, 1")
    assert not o.get("xe")
    e(f"s_lshr_b32 s{A}, s{S_G}, 3")
    e(f"s_cmp_eq_u32 s{A}, 8")
    e(f"s_cselect_b32 s{A}, s{S_W}, s{A}")
    e(f"s_cselect_b32 s{B}, 0, s{S_W}")
    e(f"s_lshl_b32 s{A}, s{A}, 7")
    e(f"s_add_u32 s{A}, s{A}, {RDY_OFF}")
    e(f"v_and_b32 v{V_L4}, 31, v{V_LANE}")
    e(f"s_cmp_eq_u32 s{B}, 0")
    e(f"s_cselect_b32 s{A}, s{A}, 0x80000000")
    e(f"s_cselect_b32 s{S_ONES}, s{S_TOK}, 0")
    e(f"v_lshl_add_u32 v{V_L4}, v{V_L4}, 2, s{A}")
    e(f"s_mul_i32 s{S_H2}, s{S_W}, {WSTR}")
    e(f"s_lshl3_add_u32 s{S_CH}, s{S_G}, s{S_W}")
    e(f"s_lshl_b32 s{S_CH}, s{S_CH}, 12")
    e(f"v_and_b32 v{V_CL}, v{V_OOB}, v{V_XA}")
    e(f"v_lshl_or_b32 v{V_CL}, v{V_LANE}, 4, v{V_CL}")
    e(f"v_lshl_add_u32 v{V_YW}, v{V_LANE}, 2, s{S_H2}")
    e(f"s_add_u32 s{A}, s{S_H2}, 4608")
    e(f"v_lshl_add_u32 v{V_KV}, v{V_LANE}, 1, s{A}")
    e(f"v_lshrrev_b32 v{V_T2}, 4, v{V_LANE}")
    e(f"v_bfe_u32 v{V_AF}, v{V_LANE}, 2, 2")
    e(f"v_lshl_add_u32 v{V_T2}, v{V_T2}, 3, v{V_AF}")
    e(f"v_and_b32 v{V_BF}, 3, v{V_LANE}")
    e(f"v_add_u32 v{V_AF}, v{V_T2}, v{V_BF}")
    e(f"s_add_u32 s{A}, s{S_H2}, {256 - 24}")
    e(f"v_lshl_add_u32 v{V_AF}, v{V_AF}, 3, s{A}")
    e(f"v_lshlrev_b32 v{V_BF}, 2, v{V_BF}")
    e(f"v_sub_u32 v{V_BF}, v{V_BF}, v{V_T2}")
    e(f"s_add_u32 s{A}, s{S_H2}, {4608 + 24 - 32}")
    e(f"v_lshl_add_u32 v{V_BF}, v{V_BF}, 3, s{A}")
    e(f"s_lshl_b32 s{A}, s{S_QW}, 4")
    e(f"s_lshr_b64 s[{S_DR}:{S_DR+1}], s[{S_DR}:{S_DR+1}], s{A}")
    e(f"s_lshr_b64 s[{S_DR+2}:{S_DR+3}], s[{S_DR+2}:{S_DR+3}], s{A}")
    e(f"s_and_b32 s{S_D}, s{S_DR}, 0xffff")
    e(f"s_and_b32 s{S_D2}, s{S_DR+2}, 0xffff")
    e(f"s_lshl_b32 s{A}, s{S_TA}, 10")
    e(f"v_add_u32 v{V_RA}, s{A}, v{V_CL}")
    e(f"v_ashrrev_i32 v{V_SA}, 1, v{V_RA}")
    e(f"s_lshl_b32 s{A}, s{S_TB}, 10")
    e(f"s_andn2_b32 s{B}, 0x80000000, s{S_BM}")
    e(f"s_or_b32 s{A}, s{A}, s{B}")
    e(f"v_lshl_add_u32 v{V_RB}, v{V_LANE}, 4, s{A}")
    e(f"v_ashrrev_i32 v{V_SB}, 1, v{V_RB}")
    e(f"v_add_u32 v{V_RB}, 0x8000, v{V_RB}")
    e(f"s_sub_u32 s{A}, s{S_TB}, s{S_TA}")
    e(f"v_bfe_u32 v{V_P}, v{V_LANE}, 4, 1")
    e(f"v_mul_i32_i24 v{V_FA}, s{A}, v{V_P}")
    e(f"v_add_u32 v{V_FA}, s{S_TA}, v{V_FA}")
    if o.get("xe", 0):
        e(f"v_mul_u32_u24 v{V_RDY}, 57, v{V_FA}")
        e(f"v_lshrrev_b32 v{V_RDY}, 9, v{V_RDY}")
        e(f"v_mul_u32_u24 v{V_RDY}, 9, v{V_RDY}")
        e(f"v_sub_u32 v{V_RDY}, v{V_FA}, v{V_RDY}")
        e(f"v_cmp_gt_u32 vcc, s{S_ONES}, v{V_LANE}")
    e(f"v_mul_u32_u24 v{V_FA}, {9*256}, v{V_FA}")
    if o.get("xe", 0):
        e(f"v_lshl_add_u32 v{V_RDY}, v{V_RDY}, 8, v{V_FA}")
        e(f"v_and_b32 v{V_T2}, 7, v{V_LANE}")
        e(f"v_lshl_add_u32 v{V_RDY}, v{V_T2}, 2, v{V_RDY}")
        e(f"v_add_u32 v{V_RDY}, {FLAG_OFF}, v{V_RDY}")
        e(f"v_cndmask_b32 v{V_L4}, v{V_RDY}, v{V_L4}, vcc")
        e(f"s_mov_b32 s{S_ONES}, s{S_TOK}")
    e(f"s_lshr_b32 s{S_FB}, s{S_G}, 3")
    for r, N in ((A, S_NX), (B, S_NY)):
        e(f"s_lshr_b32 s{r}, s{N}, 1")
        e(f"s_cmp_lt_u32 s{S_FB}, s{r}")
        e(f"s_cselect_b32 s{S_SO}, 9, 0")
        e(f"s_sub_u32 s{r}, s{S_SO}, s{r}")
    e(f"s_sub_u32 s{B}, s{B}, s{A}")
    e(f"s_xor_b32 s{S_SO}, s{S_NX}, s{S_NY}")
    e(f"v_and_b32 v{V_T2}, s{S_SO}, v{V_P}")
    e(f"v_mul_i32_i24 v{V_P}, s{B}, v{V_P}")
    e(f"v_add_u32 v{V_P}, s{A}, v{V_P}")
    e(f"v_xor_b32 v{V_T2}, s{S_NX}, v{V_T2}")
    e(f"v_xnor_b32 v{V_T2}, v{V_LANE}, v{V_T2}")
    e(f"v_bfe_i32 v{V_T2}, v{V_T2}, 0, 1")
    e(f"v_and_b32 v{V_P}, v{V_T2}, v{V_P}")
    e(f"v_add_u32 v{V_P}, s{S_FB}, v{V_P}")
    e(f"v_lshl_add_u32 v{V_FA}, v{V_P}, 8, v{V_FA}")
    e(f"v_and_b32 v{V_T2}, 7, v{V_LANE}")
    e(f"v_lshl_add_u32 v{V_FA}, v{V_T2}, 2, v{V_FA}")
    e(f"s_mov_b32 s{S_FB}, {FLAG_OFF}")
    if o.get("la2", 0):
        for V, T, I in ((V_XO, S_TA, S_IA), (V_XS, S_TB, S_IB)):
            e(f"s_min_u32 s{A}, s{T}, 1")
            e(f"s_mul_i32 s{A}, s{A}, 3")
            e(f"s_lshl4_add_u32 s{B}, s{I}, {SPB + 4 - 4352}")
            e(f"v_subrev_u32 v{V_T2}, s{A}, v{V_LANE}")
            e(f"v_lshl_add_u32 v{V}, v{V_LANE}, 2, s{B}")
            e(f"v_ashrrev_i32 v{V_T2}, 31, v{V_T2}")
            e(f"v_and_b32 v{V}, v{V}, v{V_T2}")
            e(f"v_add_u32 v{V}, 4352, v{V}")
    e(f"s_lshl_b32 s{S_GO}, s{S_G}, 15")
    e(f"s_mov_b32 s{S_SO}, {STAT_OFF}")
    e(f"s_add_u32 s{S_XO}, s{S_GO}, {XT_OFF}")
    for j in range(NP - 1, 0, -1): e(f"s_add_u32 s{S_PO[j]}, s{S_GO}, {j*72*32768}")
    for c in range(4):
        e(f"s_lshl_b32 s{S_BV+2*c}, s{S_B2+c}, 16")
        e(f"s_and_b32 s{S_BV+2*c+1}, s{S_B2+c}, 0xffff0000")
    return [[f"s_movk_i32 s{S_LO}, 0x3f80", f"s_lshl_b32 s{S_HI}, s{S_LO}, 16"]] + atoms(L)

def conv_loads(g):
    fl = g.o.get("hotfl", "")
    R = []
    vc = [V_CL, V_T, V_T2, V_T]
    for c in (3, 2, 1, 0):
        R.append([f"buffer_load_dwordx4 v{vc[c]}, s[{S_WS}:{S_WS+3}], s{S_T} offen offset:{1024*c} {fl} lds"])
    R[0] = [f"s_cmp_eq_u32 s{S_PART}, 3", f"s_cselect_b32 s{S_T}, 0x80000000, 0", f"v_or_b32 v{V_T}, s{S_T}, v{V_CL}",
            f"s_cselect_b32 s{S_T}, {32768 - 2048}, 0", f"v_add_u32 v{V_T2}, s{S_T}, v{V_CL}", f"s_add_u32 m0, s{S_H2}, 4608", f"s_add_u32 s{S_T}, s{S_CH}, {KVT_OFF}"] + R[0]
    R[3].append(f"s_add_u32 m0, s{S_H2}, 256")
    for c in range(4):
        R.append([f"buffer_load_dwordx4 v{vc[c]}, s[{S_KF}:{S_KF+3}], s{S_CH} offen offset:{1024*c} lds"])
    R[7].append(f"s_mov_b32 m0, s{S_H2}")
    z = f"buffer_load_dword v{V_OOB}, s[{S_KF}:{S_KF+3}], 0 offen lds"
    R.append([z, f"s_add_u32 m0, s{S_H2}, 4352"])
    R.append([(z, "cl")])
    return R

def tile_list(g, LD, v, vs):
    fl = g.o.get("ldflags", "sc1")
    L = [f"buffer_load_dwordx2 v[{LD+32}:{LD+33}], v{vs}, s[{S_WS}:{S_WS+3}], s{S_SO} offen {g.o.get('sfl', '')}"]
    X = XA if LD == LDA else XB
    if not g.o.get("xe", 0): L.append(f"buffer_load_dwordx4 v[{X}:{X+3}], v{v}, s[{S_WS}:{S_WS+3}], s{S_XO} offen {fl}")
    for j in range(NP): L.append(f"buffer_load_dwordx4 v[{LD+4*j}:{LD+4*j+3}], v{v}, s[{S_WS}:{S_WS+3}], s{S_PO[j]} offen {fl}")
    for k in g.o.get("drop", []): L[k] = "s_nop 0"
    return L

def tile_loads(g, LD, v, vs):
    for x in tile_list(g, LD, v, vs): g.e(x)

def poll(g, tag=None):
    g.e(f"buffer_load_dword v{V_P}, v{V_FA}, s[{S_WS}:{S_WS+3}], s{S_FB} offen sc1", tag)

def conv_job(g, job, name, ev):
    o = g.o
    tiles = []; allt = []
    two = job == [(0, 8), (16, 24)]
    BB = 144 if two else 224
    ar = lambda be: AF + 4*(be - 4 if two and be >= 8 else be)
    for a, b in job:
        if a > 0 and not two: allt.append(a - 1)
        for t in range(a, b):
            tiles.append(t); allt.append(t)
    ai = {t: CACC + 4*i for i, t in enumerate(allt)}
    tmax = max(allt)
    M = []
    ch = o.get("ch", 1); NB = o.get("nb", 6)
    for n0 in range(tmax, -1, -2*ch):
        for n1 in (n0, n0 - 1):
            ns = [n for n in range(n1, n1 - 2*ch, -2) if n >= 0]
            ts = sorted(t for t in allt if (t - n1) % 2 == 0)
            if o.get("trev"): ts.reverse()
            for t in ts:
                for n in ns:
                    if t >= n: M.append((t, n, (t - n)//2))
    if o.get("zz") and not two:
        mid_ = job[0][1] if len(job) > 1 else job[0][0]
        H = list(range(tmax, mid_ - 1, -1)); Lo = list(range(mid_ - 1, -1, -1)); z0 = o["zz"] - 1
        key = {n: (i + 0.5) / len(H) for i, n in enumerate(H)}
        key.update({n: z0 / len(H) + (1 - z0 / len(H)) * (i + 0.75) / len(Lo) for i, n in enumerate(Lo)})
        M.sort(key=lambda m_: (key[m_[1]], m_[1]))
    if two:
        M0 = [m_ for m_ in M if m_[0] < 8]
        M = [x for (t, n, be) in M0 for x in ((t, n, be), (t + 16, n + 16, be + 8))]
    order = []
    for (t, n, be) in M:
        for f in (("B", n), ("A", be)):
            if f not in order: order.append(f)
    bslot = {}
    nb = 0
    for f in order:
        if f[0] == "B":
            bslot[f[1]] = BB + 4*(nb % NB); nb += 1
    lastuse = {}
    for i, (t, n, be) in enumerate(M): lastuse[n] = i
    bl = [f[1] for f in order if f[0] == "B"]
    def reads(f):
        if f[0] == "A":
            r = ar(f[1]); off = 256*f[1]
            return [f"ds_read_b64_tr_b16 v[{r}:{r+1}], v{V_AF} offset:{off}",
                    f"ds_read_b64_tr_b16 v[{r+2}:{r+3}], v{V_AF} offset:{off+32}"]
        r = bslot[f[1]]; off = 128*f[1] + 32
        return [f"ds_read_b64_tr_b16 v[{r}:{r+1}], v{V_BF} offset:{off}",
                f"ds_read_b64_tr_b16 v[{r+2}:{r+3}], v{V_BF} offset:{off-32}"]
    issued = 0
    fu = {}
    for i, (t, n, be) in enumerate(M):
        fu.setdefault(("B", n), i); fu.setdefault(("A", be), i)
    MAXF = o.get("ahead", 6)
    started = set()
    waited = -1; kvr = 0
    for i, (t, n, be) in enumerate(M):
        need = max(order.index(("B", n)), order.index(("A", be)))
        nr = 0
        while issued < 2*len(order) and issued // 2 <= max(need, waited) + MAXF:
            f = order[issued // 2]
            if "la" in o and i and not (nr < 1 or fu[f] <= i or (nr < 2 and fu[f] <= i + o["la"])): break
            if f[0] == "B":
                k = bl.index(f[1])
                if k >= NB and lastuse[bl[k - NB]] >= i:
                    break
            if not o.get("nocr"): g.e(reads(f)[issued % 2])
            issued += 1; nr += 1
        assert issued // 2 > need
        for k in (i, i - len(M)):
            for f in ev.get(k, []): f(name)
        if need > waited:
            g.e(f"s_waitcnt lgkmcnt({min(15, issued - 2 - 2*need)})")
            waited = need
        a = ai[t]; bs = bslot[n]; af = ar(be)
        c = f"v[{a}:{a+3}]" if t in started else "0"
        started.add(t)
        if not o.get("nocm"): g.e(f"v_mfma_f32_16x16x32_bf16 v[{a}:{a+3}], v[{bs}:{bs+3}], v[{af}:{af+3}], {c}")
        if (o.get("la2", 0) or o.get("e2", 2) & 1) and need == len(order) - 1 and not kvr:
            kvr = 1
            for k, t_ in enumerate(tiles): g.e(f"ds_read_u16 v{LDB+16+k}, v{V_KV} offset:{128*t_}")
    if o.get("stamps"): g.stamp()
    if o.get("la2", 0):
        fin = sorted(allt, key=lambda t: max(i for i, m_ in enumerate(M) if m_[0] == t))
        g.e("s_waitcnt lgkmcnt(0)")
        g.e(f"s_bfm_b64 s[{S_GX}:{S_GX+1}], 1, 63")
        ft = [t for t in fin if t in tiles]
        sh = lambda t, z: g.e(f"v_add_f32 v{ai[t]+z}, v{ai[t]+z+1}, v{ai[t]+z} wave_shr:1 row_mask:0xf bank_mask:0xf bound_ctrl:0")
        for t in ft: g.e(f"v_dot2c_f32_bf16 v{ai[t]}, s{S_D}, v{LDB+16+tiles.index(t)}")
        for t in fin: sh(t, 2)
        for t in fin: sh(t, 1)
        g.e(f"s_mov_b64 exec, s[{S_GX}:{S_GX+1}]")
        for t in fin:
            if t + 1 in tiles: g.e(f"ds_write_b128 v{V_YW}, v[{ai[t]}:{ai[t]+3}] offset:{SPB + 16*tiles.index(t + 1) - 252}")
        g.e("s_mov_b64 exec, -1")
        for k, t in enumerate(ft):
            sh(t, 0)
            if k % 2: g.e(f"ds_write2st64_b32 v{V_YW}, v{ai[ft[k-1]]}, v{ai[t]} offset0:{tiles.index(ft[k-1])} offset1:{tiles.index(t)}")
        if len(ft) % 2: g.e(f"ds_write_b32 v{V_YW}, v{ai[ft[-1]]} offset:{256*tiles.index(ft[-1])}")
        return
    KVV = 50
    KX = LDB + 16 if kvr else AF + 40
    for i, t in enumerate(tiles):
        if not kvr: g.e(f"ds_read_u16 v{LDB+16+i}, v{V_KV} offset:{128*t}")
    if kvr:
        fin = sorted(tiles, key=lambda t: max(i for i, m_ in enumerate(M) if m_[0] == t))
        g.e("s_waitcnt lgkmcnt(0)")
        for t in fin: g.e(f"v_dot2c_f32_bf16 v{ai[t]}, s{S_D}, v{KX+tiles.index(t)}")
    eo = o.get("eo", 1)
    if not eo: ev["end"][0](name)
    else:
        for f in ev.get("e0", []): f(name)
        if not kvr: g.e("s_nop 2")
    H2 = AF; H1 = AF + 16; Y = AF + 32
    idx = {t: i for i, t in enumerate(allt)}
    m = "row_mask:0xf bank_mask:0xf"
    def level(dst, src, zc, ts):
        for t in ts:
            if t in tiles and t - 1 in allt:
                g.e(f"v_add_f32 v{dst+idx[t]}, v{src(t-1)}, v{ai[t]+zc} wave_ror:1 row_mask:0x1 bank_mask:0x1")
        for t in ts:
            bc = "" if (t in tiles and t - 1 in allt) else " bound_ctrl:0"
            g.e(f"v_add_f32 v{dst+idx[t]}, v{src(t)}, v{ai[t]+zc} wave_shr:1 {m}{bc}")
    level(H2, lambda t: ai[t] + 3, 2, allt)
    if not kvr:
        g.e("s_waitcnt lgkmcnt(0)")
        for i, t in enumerate(tiles): g.e(f"v_dot2c_f32_bf16 v{ai[t]}, s{S_D2 if two and t >= 16 else S_D}, v{LDB+16+i}")
    level(H1, lambda t: H2 + idx[t], 1, allt)
    level(Y, lambda t: H1 + idx[t], 0, tiles)
    for i, t in enumerate(tiles):
        if not o.get("e2", 2) & 2 or (i == len(tiles) - 1 and i % 2 == 0): g.e(f"ds_write_b32 v{V_YW}, v{Y+idx[t]} offset:{256*i}")
        elif i % 2: g.e(f"ds_write2st64_b32 v{V_YW}, v{Y+idx[tiles[i-1]]}, v{Y+idx[t]} offset0:{i-1} offset1:{i}")

def fin_l(LD, X):
    L = []; e = L.append
    s = LD + 16; xn = s + 8; st = LDA + 32
    for c in range(4):
        e(f"v_lshlrev_b32 v{xn+2*c}, 16, v{X+c}")
        e(f"v_and_b32 v{xn+2*c+1}, 0xffff0000, v{X+c}")
    for c in range(8): e(f"v_add_f32 v{s+c}, s{(S_BV if LD == LDA else S_BW)+c}, v{xn+c}")
    for c in range(8): e(f"v_fma_f32 v{xn+c}, v{xn+c}, v{st}, v{st+1}")
    for j in range(NP):
        for c in range(4):
            e(f"v_dot2c_f32_bf16 v{s+2*c}, s{S_LO}, v{LD+4*j+c}")
            e(f"v_dot2c_f32_bf16 v{s+2*c+1}, s{S_HI}, v{LD+4*j+c}")
    return L

def fin_1(g, LD, X, R, waits):
    for x in fin_l(LD, X): g.e(x)
    g.e("s_nop 2")

def fin_2(g, X, R):
    e = g.e
    s = (LDA if X == XA else LDB) + 16; xn = s + 8; y = R + 16
    if g.o.get("la2", 0):
        for c in range(4): e(f"v_pk_add_f32 v[{y+2*c}:{y+2*c+1}], v[{y+2*c}:{y+2*c+1}], v[{R+2*c}:{R+2*c+1}]")
    for c in range(4):
        e(f"v_pk_fma_f32 v[{s+2*c}:{s+2*c+1}], v[{xn+2*c}:{xn+2*c+1}], v[{y+2*c}:{y+2*c+1}], v[{s+2*c}:{s+2*c+1}]")
    for c in range(4):
        e(f"v_cvt_pk_bf16_f32 v{X+c}, v{s+2*c}, v{s+2*c+1}")

def fin_a(g, X, si, R):
    e = g.e
    s = R; y = R + 16
    e(f"s_lshl_b32 s{S_T2}, s{si}, 8")
    e(f"v_lshl_add_u32 v{V_T}, v{V_LANE}, 2, s{S_T2}")
    for c in range(4):
        e(f"ds_read2st64_b32 v[{y+2*c}:{y+2*c+1}], v{V_T} offset0:{68*c} offset1:{68*c + 34}")
    if g.o.get("la2", 0):
        for c in range(4):
            e(f"ds_read2st64_b32 v[{R+2*c}:{R+2*c+1}], v{V_XO if X == XA else V_XS} offset0:{68*c} offset1:{68*c + 34}")

def fin_b(g, LD, X, R, waits):
    e = g.e
    s = R; xn = R + 8; y = R + 16; st = LD + 32
    if waits: e(f"s_waitcnt vmcnt({NP})")
    for c in range(4):
        e(f"v_lshlrev_b32 v{R+8+2*c}, 16, v{X+c}")
        e(f"v_and_b32 v{R+8+2*c+1}, 0xffff0000, v{X+c}")
    for c in range(8): e(f"v_add_f32 v{s+c}, s{S_BV+c}, v{R+8+c}")
    for c in range(4):
        e(f"v_pk_fma_f32 v[{xn+2*c}:{xn+2*c+1}], v[{xn+2*c}:{xn+2*c+1}], v[{st}:{st+1}], v[{st}:{st+1}] op_sel:[0,0,1] op_sel_hi:[1,0,1]")
    e("s_waitcnt lgkmcnt(0)")
    for c in range(4):
        e(f"v_pk_fma_f32 v[{s+2*c}:{s+2*c+1}], v[{xn+2*c}:{xn+2*c+1}], v[{y+2*c}:{y+2*c+1}], v[{s+2*c}:{s+2*c+1}]")
    for j in range(NP):
        if waits: e(f"s_waitcnt vmcnt({NP - 1 - j})")
        for c in range(4):
            e(f"v_dot2c_f32_bf16 v{s+2*c}, s{S_LO}, v{LD+4*j+c}")
            e(f"v_dot2c_f32_bf16 v{s+2*c+1}, s{S_HI}, v{LD+4*j+c}")
    e("s_nop 2")
    for c in range(4):
        e(f"v_cvt_pk_bf16_f32 v{X+c}, v{s+2*c}, v{s+2*c+1}")

def tail(g, name):
    o = g.o; e = g.e
    out = lambda X, vx: e(f"buffer_store_dwordx4 v[{X}:{X+3}], v{vx}, s[{S_OUT}:{S_OUT+3}], 0 offen {o.get('ofl', '')}")
    TX = tile_list(g, LDA, V_RA, V_SA); TY = tile_list(g, LDB, V_RB, V_SB)
    e(f"s_cmp_eq_u32 s{S_PART}, 4")
    e(f"s_cbranch_scc1 {name}_none")
    g.stamp()
    g.wait(vm=["cl", "p0"])
    g.stamp()
    e(f"v_cmp_ne_u32 vcc, s{S_TOK}, v{V_P}")
    e(f"s_cbranch_vccnz {name}_fs")
    g.lab(f"{name}_fb")
    g.ool += [f"{name}_fs:", f"  s_mov_b32 s{S_N}, {SPIN}", f"{name}_fl:",
              f"  buffer_load_dword v{V_P}, v{V_FA}, s[{S_WS}:{S_WS+3}], s{S_FB} offen sc1", f"  s_sub_u32 s{S_N}, s{S_N}, 1", "  s_waitcnt vmcnt(0)",
              f"  s_cbranch_scc1 {name}_fb", f"  v_cmp_ne_u32 vcc, s{S_TOK}, v{V_P}", f"  s_cbranch_vccnz {name}_fl", f"  s_branch {name}_fb"]
    def masked(M, x):
        def f(nm):
            e(f"s_mov_b64 exec, s[{M}:{M+1}]")
            e(x)
            e("s_mov_b64 exec, -1")
        return f
    def chk(LD):
        e(f"v_bitop3_b32 v{V_P}, v{LD}, v{LD+4}, v{LD+8} bitop3:0x80")
        e(f"v_bitop3_b32 v{V_P}, v{V_P}, v{LD+12}, 1 bitop3:0x80")
        e(f"v_cmp_eq_u32 vcc, 0, v{V_P}")
    mid = o.get("mid", 0)
    def chx(nm):
        chk(LDA)
        e(f"s_or_b32 s{S_PX}, vcc_lo, vcc_hi")
        e(f"s_cbranch_scc0 {nm}")
        for x in TX[2:]: e(x)
        g.lab(nm)
    def evend(nm):
        g.stamp()
        e("s_waitcnt vmcnt(0)")
        if mid:
            e(f"s_mov_b32 s{S_GX}, s{S_PX}")
            e(f"s_cmp_eq_u32 s{S_PX}, 0")
            e(f"s_cbranch_scc1 {nm}_kx")
        chx(f"{nm}_kx")
        e(f"s_cmp_eq_u32 s{S_BM}, 0")
        e(f"s_cbranch_scc1 {nm}_ky")
        chk(LDB)
        e(f"s_or_b32 s{S_PY}, vcc_lo, vcc_hi")
        e(f"s_cbranch_scc0 {nm}_ky")
        for x in TY[2:]: e(x)
        g.lab(f"{nm}_ky")
        g.stamp()
    ev = {"end": [evend]}
    at = lambda k, f: ev.setdefault(k, []).append(f)
    xs = o.get("xs", [2, 4, 6, 8, 10, 12] if mid else [2, 6, -64, -62, -60, -58])
    xh = o.get("xh")
    cnt = [0]
    def half(hi, x):
        def f(nm):
            cnt[0] += 1
            e(f"s_cmp_eq_u32 s{S_MH}, {hi}")
            e(f"s_cbranch_scc0 {nm}_h{cnt[0]}")
            for y in x: e(y, "lx")
            if not hi:
                for y in x: g.vm.pop()
            g.lab(f"{nm}_h{cnt[0]}")
        return f
    for k, x in list(zip(xs, TX))[:2 if xh else 6]: at(k, lambda nm, x=x: e(x, "lx"))
    if xh:
        assert xh[0] < xh[1]
        at(xh[0], half(0, TX[2:])); at(xh[1], half(1, TX[2:]))
    ev3 = {"end": [evend]}
    for k, x in zip(o.get("x3", [0, 0, 8, 11, 14, 17]) + o.get("y3", [1, 20, 23, 26, 29]), TX + TY[1:]): ev3.setdefault(k, []).append(lambda nm, x=x: e(x))
    ev3[0] = ev3.get(0, []) + [lambda nm: [e(f"s_lshl_b32 s{S_BW+2*c}, s{S_B3+c}, 16") or e(f"s_and_b32 s{S_BW+2*c+1}, s{S_B3+c}, 0xffff0000") for c in range(4)]]
    if o.get("stamps"): ev3.setdefault(32, []).append(lambda nm: g.stamp())
    if mid:
        def evmid(nm):
            assert "lx" in g.vm
            g.wait(vm=["lx"])
            chx(f"{nm}_km")
        at(mid, evmid)
        F = fin_l(LDA, XA); fn = o.get("fn", 2)
        if o.get("tv") == 1: F = [x.replace("v_dot2c_f32_bf16", "v_add_f32") for x in F]
        if o.get("tv") == 2: F = F[:24]
        if o.get("tv") == 3: F = F[24:]
        if o.get("tv") == 4: F = []
        for i in range(0, len(F), fn):
            assert mid + 1 + i // fn < 0
            at(mid + 1 + i // fn, lambda nm, i=i: [e(x) for x in F[i:i+fn]])
    if o.get("stamps"): at(32, lambda nm: g.stamp())
    e(f"s_cmp_eq_u32 s{S_PART}, 1")
    e(f"s_cbranch_scc1 {name}_j1")
    e(f"s_cmp_eq_u32 s{S_PART}, 2")
    e(f"s_cbranch_scc1 {name}_j2")
    e(f"s_cmp_eq_u32 s{S_PART}, 3")
    e(f"s_cbranch_scc1 {name}_j3")
    vm0 = list(g.vm)
    for p in (0, 1, 3, 2):
        if p: g.lab(f"{name}_j{p}")
        g.vm = list(vm0)
        conv_job(g, (JOBS + [[(0, 8), (16, 24)]])[p], f"{name}_c{p}", ev if p < 3 else ev3)
        if p != 2: e(f"s_branch {name}_cfin")
    g.lab(f"{name}_cfin")
    if o.get("eo", 1): evend(name)
    RA, RB = CACC, CACC + 24
    if mid:
        e(f"s_mov_b32 s{S_XM}, 0")
        e(f"s_cmp_eq_u32 s{S_GX}, 0")
        e(f"s_cbranch_scc1 {name}_q1")
    e(f"s_cmp_ge_u32 s{S_W}, {o.get('ps', 4)}")
    e(f"s_cselect_b32 s{S_T}, 0x10000, 0")
    hp = o.get("hp", 0)
    if hp == 1: e(f"s_andn2_b32 s{S_T}, s{S_T}, s{S_BM}")
    if hp == 2: e(f"s_or_b32 s{S_GY}, s{S_PY}, s{S_T}")
    e(f"s_or_b32 s{S_XM}, s{S_PX}, s{S_T}")
    e(f"s_cbranch_scc1 {name}_q1")
    fin_1(g, LDA, XA, RA, False)
    g.lab(f"{name}_q1")
    e(f"s_cmp_eq_u32 s{S_BM}, 0")
    e(f"s_cselect_b32 s{S_T}, 1, s{S_GY if hp == 2 else S_PY}")
    e(f"s_cmp_lg_u32 s{S_T}, 0")
    e(f"s_cbranch_scc1 {name}_q2")
    fin_1(g, LDB, XB, RB, False)
    g.lab(f"{name}_q2")
    e("s_waitcnt lgkmcnt(0)")
    g.stamp()
    e("s_barrier")
    g.stamp()
    def last(nm, P, LD, T):
        if P:
            e(f"s_cmp_eq_u32 s{P}, 0")
            e(f"s_cbranch_scc1 {nm}2")
        e(f"s_mov_b32 s{S_N}, {SPIN}")
        g.lab(f"{nm}lp")
        e("s_waitcnt vmcnt(0)")
        chk(LD)
        e(f"s_sub_u32 s{S_N}, s{S_N}, 1")
        e(f"s_cbranch_scc1 {nm}2")
        e(f"s_cbranch_vccz {nm}2")
        for x in T[2:]: e(x)
        e(f"s_branch {nm}lp")
        g.lab(f"{nm}2")
    fin_a(g, XA, S_IA, RA)
    e(f"s_cmp_lg_u32 s{S_BM}, 0")
    e(f"s_cbranch_scc1 {name}_two")
    e(f"s_cmp_eq_u32 s{S_XM}, 0")
    e(f"s_cbranch_scc1 {name}_a3")
    last(f"{name}_a", S_PX, LDA, TX)
    fin_1(g, LDA, XA, RA, False)
    g.lab(f"{name}_a3")
    g.stamp()
    e("s_waitcnt lgkmcnt(0)")
    fin_2(g, XA, RA)
    out(XA, V_XA)
    finish(g)
    g.lab(f"{name}_two")
    fin_a(g, XB, S_IB, RB)
    e(f"s_cmp_lg_u32 s{S_XM}, 0")
    e(f"s_cbranch_scc1 {name}_xslow")
    g.lab(f"{name}_xback")
    e("s_waitcnt lgkmcnt(0)")
    fin_2(g, XA, RA)
    e(f"s_cmp_eq_u32 s{S_GY if hp == 2 else S_PY}, 0")
    e(f"s_cbranch_scc1 {name}_b3")
    last(f"{name}_b", S_PY if hp == 2 else None, LDB, TY)
    fin_1(g, LDB, XB, RB, False)
    g.lab(f"{name}_b3")
    g.stamp()
    out(XA, V_XA)
    fin_2(g, XB, RB)
    out(XB, V_XB)
    finish(g)
    g.lab(f"{name}_xslow")
    last(f"{name}_x", S_PX, LDA, TX)
    fin_1(g, LDA, XA, RA, False)
    e(f"s_branch {name}_xback")
    g.lab(f"{name}_none")
    finish(g)

def gen(name, opt):
    g = G(opt); o = opt
    if "jobs" in o: JOBS[:] = [[tuple(x) for x in j] for j in o["jobs"]]
    e = g.e
    g.NF = 5
    SM[0] = o.get("sm", 1)
    g.ool = []; g.grp = "Z"
    g.L.append(f".globl {name}\n.p2align 8\n.type {name},@function\n{name}:")
    npro = prologue(g, name)
    nm = name + "_Z"; g.nm = nm
    full = not o.get("core")
    sc = Sched(g, npro)
    sc.claim(range(11, 20), "x"); sc.claim([10], "tbl")
    for s_ in range(9): sc.hold[s_] = 10
    work = {}; inb = {}; pre = {}; post = {}; bw = {}; bv = {}; act = {}; aft = {}; hooks = {}
    add = lambda d, k, L: d.setdefault(k, []).extend(L)
    bj = lambda r: (r - 6) // 2
    xr = o.get("xr", [[8, 2], [12, 5], [16, 8], [18, 9]])
    h0 = o.get("h0", 152); hd = o.get("hd", 4); hl = o.get("hl", 2); hs = o.get("hs", 176)
    bars = set(18*N + b_ for N in range(18) for b_ in (o.get("bs", [0, 8]) if N < 17 or not full else [4, 12]))
    bars -= set(range(xr[0][0])) | set(range(h0, h0 + 4*hd + hl*hd))
    bars |= set(x[0] for x in xr) | set(o.get("xb2", [22])) | set(h0 + hd*i for i in range(5 + hl)) | set([hs]) | set(o.get("hb2", [184]))
    bars -= set(o.get("nb", []))
    bars = sorted(bars)
    nextb = lambda r, n=1: [b_ for b_ in bars if b_ > r][n - 1]
    def scatter(L, j0, nbu, lead=0):
        pos = [(j, q) for j in range(j0, j0 + nbu) for q in range(4) if seq(j)[q]]
        for k, x in enumerate(L): add(inb, pos[(k * len(pos)) // len(L)], [x])
    for x in bias_read(0): g.put(x)
    ns = 0
    for r_, c_ in enumerate(o.get("ls", [1, 1, 2])):
        add(inb, (-1, r_), [sread(0, k) for k in SO[ns:ns + c_]]); ns += c_
    scatter([sread(0, k) for k in SO[ns:]], 0, o.get("xn", 6))
    pc = 0
    for r_, c_ in xr:
        add(bw, r_, [("s", k) for k in range(4*c_)])
        add(act, r_, [lambda a_=pc, c_=c_: sc.free(range(11 + a_, 11 + c_))]); pc = c_
    stgl = o.get("stgl", 134)
    for n in range(9):
        if n < 8: add(inb, (9*n + 1, 0) if n == 7 and stgl == 134 else (9*n + o.get("bslot", 4), 2), bias_read(n + 1))
        if n: deal(gelu_list(o, n - 1), 9*n, o.get("gn", 9) if n < 8 else min(9, bj(h0 + 3*hd) - 72), work)
    if not o.get("sup", 1): spread(atoms(setup2()) + (setup3(o) if full else []), o.get("su0", 6), o.get("su1", 34), work)
    add(pre, o.get("stl", xr[1][0]), [[f"s_lshl_b32 s{S_YT}, s{S_RB}, 9", f"s_add_u32 s{S_YT}, s{S_YT}, {STAT_OFF}",
        f"buffer_store_dwordx2 v[{V_QA}:{V_QA+1}], v{V_SAD}, s[{S_WS}:{S_WS+3}], s{S_YT} offen sc1"]])
    if full:
        for k_, (r_, cs) in enumerate(o.get("xtl", [[26, [0, 1, 2]], [54, [3, 4, 5]], [90, [6, 7, 8]]])):
            assert all(bj(r_) + 2 < 18*(c_ // 2) + 16 for c_ in cs)
            def xt(k_=k_, cs=cs):
                e(f"s_cmp_eq_u32 s{S_W}, s{S_J}")
                e(f"s_cbranch_scc1 {nm}_xt{k_}")
                g.lab(f"{nm}_xt{k_}b")
                L = [f"s_and_b32 s{S_YT}, s2, 8", f"s_lshl_b32 s{S_YT}, s{S_YT}, 2", f"v_lshrrev_b32 v{V_T2}, 3, v{V_TID}", f"v_xor_b32 v{V_T2}, s{S_YT}, v{V_T2}",
                     f"v_lshl_or_b32 v{V_T2}, v{V_TID}, 11, v{V_T2}", f"v_and_b32 v{V_T2}, 0x3fff, v{V_T2}", f"v_lshlrev_b32 v{V_T2}, 4, v{V_T2}",
                     f"s_lshl_b32 s{S_YT}, s{S_RB}, 10", f"s_add_u32 s{S_YT}, s{S_YT}, {XT_OFF + 262144*cs[0]}"]
                for c_ in cs:
                    L.append(f"buffer_store_dwordx4 v[{XR+4*c_}:{XR+4*c_+3}], v{V_T2}, s[{S_WS}:{S_WS+3}], s{S_YT} offen sc1")
                    if c_ != cs[-1]: L.append(f"s_add_u32 s{S_YT}, s{S_YT}, 262144")
                g.ool += [f"{nm}_xt{k_}:"] + ["  " + x for x in L] + [f"  s_branch {nm}_xt{k_}b"]
            add(pre, r_, [[xt]])
    add(work, 60, [f"s_lshl_b32 s{S_N}, s{S_MH}, 13", f"v_lshl_add_u32 v{V_FR}, v{V_LANE}, 4, s{S_N}"])
    if full:
        if o.get("cm", 4): add(post, o.get("rcold", 134), cold_items(o.get("cm", 4)))
        def second():
            e(f"s_lshr_b32 s{S_N}, s2, 5")
            e(f"s_cmp_eq_u32 s{S_N}, {o.get('u2', 7)}")
            e(f"s_cbranch_scc1 {nm}_u2")
            g.lab(f"{nm}_u2b")
            L = [f"s_add_u32 m0, s{S_KM}, 8192", f"v_add_u32 v{V_T2}, s{S_KM2}, v{V_K1}",
                 f"buffer_load_dwordx4 v{V_T2}, s[{S_K}:{S_K+3}], 0 offen lds",
                 f"s_add_u32 m0, s{S_KM}, {KSZ + 8192}", "s_nop 0",
                 f"buffer_load_dwordx4 v{V_T2}, s[{S_V}:{S_V+3}], 0 offen lds"]
            g.ool += [f"{nm}_u2:"] + ["  " + x for x in L] + [f"  s_branch {nm}_u2b"]
        add(pre, stgl, [[second, f"s_mov_b32 m0, s{S_KM}", (f"buffer_load_dwordx4 v{V_K1}, s[{S_K}:{S_K+3}], 0 offen lds", "kst")],
                        [f"s_add_u32 m0, s{S_KM}, {KSZ}", (f"buffer_load_dwordx4 v{V_K1}, s[{S_V}:{S_V+3}], 0 offen lds", "stg")]])
        add(bw, stgl, ["bias"])
        sc.hold[9] = 9; sc.hold[11] = 9; sc.hold[12] = 9
        add(act, stgl, [lambda: sc.claim([9, 11, 12], "stg")])
        for r_, k_ in o.get("tl", [[36, "K"], [72, "V"], [156, "F"]]):
            sr, v, d, m_ = {"K": (S_K, V_KT, V_HG, 0x37373737), "V": (S_V, V_KT, V_DUM, 0x30303030), "F": (S_KF, V_KFT, V_DUM, 0)}[k_]
            add(pre, r_, [([f"s_mov_b32 exec_lo, {m_}", "s_mov_b32 exec_hi, exec_lo"] if m_ else ["s_mov_b64 exec, 0x7ff"]) +
                          [(f"buffer_load_dword v{d}, v{v}, s[{sr}:{sr+3}], 0 offen", "t" + k_), "s_mov_b64 exec, -1"]])
    wt = o.get("wt", [])
    wn = -(-5184 // (128 * len(wt))) if wt else 0
    if wt: add(work, o.get("wts", 40), [f"s_and_b32 s{S_WT}, s{S_RB}, 15", f"s_lshl3_add_u32 s{S_WT}, s{S_WT}, s{S_W}", f"s_mul_i32 s{S_WT}, s{S_WT}, {wn*128}",
            f"s_mul_i32 s{S_N}, s{S_J}, {576*1152}", f"s_add_u32 s{S_WT}, s{S_WT}, s{S_N}", f"v_lshlrev_b32 v{V_T}, 7, v{V_LANE}"])
    for r_ in wt:
        it = [f"s_bfm_b64 exec, {wn}, 0", f"buffer_load_dword v{V_DUM}, v{V_T}, s[{S_W2}:{S_W2+3}], s{S_WT} offen", "s_mov_b64 exec, -1",
              f"s_add_u32 s{S_WT}, s{S_WT}, {128*wn*128}"]
        if r_ in pre and o.get("wtm", 1): pre[r_][0] = pre[r_][0][:-1] + it
        else: add(pre, r_, [it])
    for p in range(4):
        r_ = h0 + hd*p
        add(act, r_, [lambda p=p: sc.claim([2*p, 2*p + 1], "h")])
        add(aft, r_, [(f"ds_write_b128 v{V_HW}, v[{HP+8*p+4*t}:{HP+8*p+4*t+3}] offset:{16384*p + 1024*t}", ("hw", p)) for t in range(2)])
        add(bw, r_ + hd, [("hw", p)])
        ks = [k for k in SO if k // 8 == p]
        ha = o.get("ha", 0)
        add(aft, r_ + hd, [sread(1, k) for k in ks[:ha]])
        scatter([sread(1, k) for k in ks[ha:]], bj(r_ + hd) + 1, o.get("hn", hd // 2))
        add(bw, r_ + hd + hl*hd, [("s", 36 + k) for k in ks])
        add(act, r_ + hd + hl*hd, [lambda p=p: sc.free([2*p, 2*p + 1])])
    js = bj(hs)
    deal(gelu_list(o, 8), 81, js - 81, work)
    rc = min(b_ for b_ in bars if b_ >= 168 and b_ > h0 + 3*hd)
    assert bj(rc) < js
    add(act, rc, [lambda: sc.claim([8], "h")])
    add(aft, rc, [f"s_lshl_b32 s{S_N}, s{S_MH}, 12", f"s_add_u32 s{S_N}, s{S_N}, 65536", f"v_lshl_add_u32 v{V_HW}, v{V_LANE}, 4, s{S_N}",
                  f"s_lshr_b32 s{S_N}, s{S_QW}, 1", f"s_lshl_b32 s{S_N}, s{S_N}, 8", f"s_and_b32 s{S_T2}, s{S_QW}, 1", f"s_add_u32 s{S_N}, s{S_N}, s{S_T2}",
                  f"v_lshl_add_u32 v{V_T}, s{S_N}, 3, v{V_HW}"])
    add(work, 4*(js - 1) + 1, [(f"ds_write2st64_b64 v{V_T}, v[{HP+32}:{HP+33}], v[{HP+34}:{HP+35}] offset0:0 offset1:2", ("hw", 4))])
    add(bw, hs, [("hw", 4)])
    ks = [k for k in SO if k >= 32]
    scatter([sread(1, k) for k in ks], js + 1, 1)
    add(bw, nextb(hs, o.get("hl4", 2)), [("s", 36 + k) for k in ks])
    add(act, nextb(hs, o.get("hl4", 2)), [lambda: sc.free([8])])
    if full:
        rv = o.get("rv", h0); rk = o.get("rk", h0 + 2*hd)
        assert rv >= h0 and rk >= h0 + 2*hd
        add(bv, min(rv, rk), ["stg"])
        scatter([(f"ds_read_b32 v{VR+r}, v{V_KG} offset:{KSZ + 1024 + 128*r}", "vr") for r in range(8)], bj(rv) + 1, o.get("vn", 1))
        scatter([(f"ds_read_b32 v{KR+r}, v{V_KH} offset:{640 + 128*r}", "kr") for r in range(3)] +
                [(f"ds_read_b32 v{KR+3+r}, v{V_KG} offset:{1024 + 128*r}", "kr") for r in range(8)], bj(rk) + 1, o.get("kn", 2))
        add(bw, nextb(rv, o.get("vl", 1)), ["vr"]); add(act, nextb(rv, o.get("vl", 1)), [lambda: sc.free([11, 12])])
        add(bw, nextb(rk, o.get("kl", 2)), ["kr"]); add(act, nextb(rk, o.get("kl", 2)), [lambda: sc.free([9, 10])])
        add(pre, o.get("rx", h0 + hd), [[(f"buffer_load_dword v{V_TOK}, off, s[{S_DBG}:{S_DBG+3}], 0 sc1", "tok")]])
        add(pre, h0 + 3*hd, [[f"v_lshrrev_b32 v{V_T2}, 9, v{V_KST}", f"v_and_b32 v{V_T2}, -16, v{V_T2}",
            (f"buffer_load_dwordx4 v[{SH}:{SH+3}], v{V_T2}, s[{S_SH}:{S_SH+3}], 0 offen", "sh")]])
    told = set()
    def flags():
        for m in range(5):
            if ("p", m) in g.bdone and m not in told:
                told.add(m)
                for x in flag_store(g, m): g.put(x)
        if "kv1" in g.bdone and "rdy" not in told:
            told.add("rdy")
            e(f"s_mul_i32 s{S_N}, s2, 257")
            e(f"s_bfe_u32 s{S_N}, s{S_N}, {3 | (8 << 16)}")
            e(f"s_lshl2_add_u32 s{S_N}, s{S_N}, {RDY_OFF}")
            e(f"buffer_store_dword v{V_TOK}, v{V_L0}, s[{S_WS}:{S_WS+3}], s{S_N} offen sc1")
    def tok():
        g.wait(vm=["tok"])
        e(f"v_readfirstlane_b32 s{S_TOK}, v{V_TOK}")
        e(f"s_cmp_eq_u32 s{S_TOK}, 0")
        e(f"s_cbranch_scc1 {nm}_tok_slow")
        g.lab(f"{nm}_tok_back")
        e(f"s_andn2_b32 s{S_PF}, s{S_FLG}, 0xe0")
        e(f"s_xor_b32 s{S_PF}, s{S_PF}, 4")
    def rdy():
        assert "rdy" in told
        g.wait(vm=["rl"])
        e(f"v_cmp_ne_u32 vcc, s{S_ONES}, v{V_RDY}")
        e(f"s_cbranch_vccnz {nm}_rdy_slow")
        g.lab(f"{nm}_rdy_back")
    ss = o.get("ss", 8)
    kvb = o.get("kvb", 1)
    def kvok(): assert "vr" in g.done and "kr" in g.done and ("hw", 4) in g.done
    if full:
        spread([kvok] + kv_compute(g), o.get("kc0", 4*js + 2), o.get("kc1", 362 + 36*kvb), work)
        spread(setup4(o), o.get("s40", 324 + 36*4 + 10), o.get("s40", 324 + 36*4 + 10) + 28, work)
        xe = o.get("xe", 0); rl = o.get("rl", 278 if xe else 310)
        if xe: add(pre, rl, [[f"buffer_load_dwordx4 v[{X}:{X+3}], v{v}, s[{S_WS}:{S_WS+3}], s{S_XO} offen sc1" for X, v in ((XA, V_RA), (XB, V_RB))]])
        add(work, 4*o.get("rlj", 128 if xe else 146), [(f"buffer_load_dword v{V_RDY}, v{V_L4}, s[{S_WS}:{S_WS+3}], 0 offen sc1", "rl")])
        add(work, 4*o.get("p0j", 155) + 1, [lambda: poll(g, "p0")])
        c0 = 606 + o.get("c0", 0)
        add(act, 310, [lambda: sc.claim(range(9), "conv")])
        spread(conv_loads(g), c0, c0 + o.get("cls", 12), work)
        hooks.update({o.get("rt", 180): tok, rl: rdy})
    assert not o.get("la2")
    assert kvb == 1
    for n in range(8):
        b = 324 + 36*(n + 1)
        if n >= 4: add(work, b + 2, tswap(g, n))
        spread(cvt(g, n), b + 3, b + 8, work)
        tq = o.get("tq", 12) if n < 7 else 7
        if n >= 3: add(work, b + tq, [([] if o.get("nopf") else [fcheck(g, n + 1)]) + tload(g, n + 1)])
        if 2 <= n < 7 and not o.get("nopf"): add(work, b + max(tq, o.get("fq", 20)), [fload(g, n + 2)])
        s_ = o.get("ss7", 10) if full and n == 7 else ss
        add(work, b + s_, pstore(g, n))
        if full:
            if n == kvb:
                for k_, x in enumerate(kv_store()): add(work, b + s_ + o.get("kvo", [0, 0])[k_], x)
            add(work, b + s_, [flags])
    stream(g, sc, bars, work, hooks, pre, post, inb, bw, bv, act, aft)
    if o.get("sp"): e("s_setprio 0")
    for x in tswap(g, 8): g.put(x)
    e("s_nop 5")
    for x in cvt(g, 8) + pstore(g, 8): g.put(x)
    if not full: finish(g)
    else:
        assert told == set(range(5)) | {"rdy"}, told
        tail(g, nm)
        g.lab(f"{nm}_rdy_slow")
        e(f"s_mov_b32 s{S_N}, {SPIN}")
        g.lab(f"{nm}_rdy_lp")
        e(f"buffer_load_dword v{V_RDY}, v{V_L4}, s[{S_WS}:{S_WS+3}], 0 offen sc1")
        e(f"s_sub_u32 s{S_N}, s{S_N}, 1")
        e("s_waitcnt vmcnt(0)")
        e(f"s_cbranch_scc1 {nm}_rdy_back")
        e(f"v_cmp_ne_u32 vcc, s{S_ONES}, v{V_RDY}")
        e(f"s_cbranch_vccnz {nm}_rdy_lp")
        e(f"s_branch {nm}_rdy_back")
        g.lab(f"{nm}_tok_slow")
        e(f"s_mov_b32 s{S_N}, {SPIN}")
        g.lab(f"{nm}_tok_lp")
        e(f"buffer_load_dword v{V_TOK}, off, s[{S_DBG}:{S_DBG+3}], 0 sc1")
        e(f"s_sub_u32 s{S_N}, s{S_N}, 1")
        e("s_waitcnt vmcnt(0)")
        e(f"s_cbranch_scc1 {nm}_tok_back")
        e(f"v_readfirstlane_b32 s{S_TOK}, v{V_TOK}")
        e(f"s_cmp_eq_u32 s{S_TOK}, 0")
        e(f"s_cbranch_scc1 {nm}_tok_lp")
        e(f"s_branch {nm}_tok_back")
    g.L += g.ool
    g.lab(f"{name}_mk")
    e(f"s_mov_b32 s{S_T}, {EPO_OFF}")
    e(f"s_load_dword s{S_TOK}, s[{S_WS}:{S_WS+1}], s{S_T}")
    e(f"v_min_u32 v{V_T}, 1, v{V_LANE}")
    e(f"v_lshlrev_b32 v{V_T}, 31, v{V_T}")
    e("s_waitcnt lgkmcnt(0)")
    e(f"s_add_u32 s{S_TOK}, s{S_TOK}, 1")
    e(f"s_addc_u32 s{S_TOK}, s{S_TOK}, 0")
    e(f"v_mov_b32 v{V_L0}, s{S_TOK}")
    e(f"buffer_store_dword v{V_L0}, v{V_T}, s[{S_DBG}:{S_DBG+3}], 0 offen sc1")
    e(f"buffer_store_dword v{V_L0}, v{V_T}, s[{S_WS}:{S_WS+3}], s{S_T} offen sc1")
    e(f"s_branch {name}_mkb")
    g.lab(f"{name}_exit")
    e("s_endpgm")
    desc = f""".amdhsa_kernel {name}
  .amdhsa_next_free_vgpr 256
  .amdhsa_next_free_sgpr {102 if o.get('stamps') else 100}
  .amdhsa_accum_offset 256
  .amdhsa_group_segment_fixed_size 0
  .amdhsa_kernarg_size 112
  .amdhsa_user_sgpr_count 2
  .amdhsa_user_sgpr_kernarg_segment_ptr 1
  .amdhsa_system_sgpr_workgroup_id_x 1
.end_amdhsa_kernel"""
    return "\n".join(g.L) + "\n", desc
```
